```python
import torch

def _softmax(x, axis=-1):
    return torch.softmax(x, dim=axis)
def _gelu(x):
    return torch.nn.functional.gelu(x, approximate="tanh")
def _silu(x):
    return torch.nn.functional.silu(x)
def _sigmoid(x):
    return torch.sigmoid(x)
def _layernorm(x, axis=-1, eps=1e-5):
    m = x.mean(dim=axis, keepdim=True)
    v = x.var(dim=axis, keepdim=True, unbiased=False)
    return (x - m) / torch.sqrt(v + eps)
def _scatter_add(tgt, idx, src, axis=0):
    return tgt.clone().index_add_(axis, idx, src)
def _segment_sum(src, seg, n):
    out = torch.zeros((n,) + src.shape[1:], dtype=src.dtype)
    return out.index_add_(0, seg, src)
def _pad(x, pw):
    flat = tuple(v for pair in reversed(pw) for v in pair)
    return torch.nn.functional.pad(x, flat)

kernel_name = 'gated_mix__ssm_conv_h3__mixer_token_mlp__prompt'

def setup_inputs():

    _w = (lambda a: (lambda t: t.to(torch.bfloat16) if t.is_floating_point() else t)(torch.as_tensor(a)))
    def _A_setup():
        B, S, D = 1, 2048, 640
        ks = 4
        return {
            "q": _w((lambda *s: torch.randn(*s, dtype=torch.bfloat16) * 0.05)(B, S, D)),
            "k": _w((lambda *s: torch.randn(*s, dtype=torch.bfloat16) * 0.4)(B, S, D)),
            "v": _w((lambda *s: torch.randn(*s, dtype=torch.bfloat16) * 0.2)(B, S, D)),
            "shift_k": _w((lambda *s: torch.randn(*s, dtype=torch.bfloat16) * 0.4)(D, ks) * 0.5),
            "ssm_k": _w((lambda *s: torch.randn(*s, dtype=torch.bfloat16) * 0.8)(D, S) * (1.0 / S ** 0.5)),
            "ssm_D": _w((lambda *s: torch.randn(*s, dtype=torch.bfloat16) * 0.2)(D)),
        }
    _A_in = _A_setup()

    def _B_setup():
        B, S, D, F = 1, 2048, 640, 1536
        return {
            "x": _w((lambda *s: torch.randn(*s, dtype=torch.bfloat16) * 0.05)(B, S, D)),
            "w1": _w((lambda *s: torch.randn(*s, dtype=torch.bfloat16) * 0.2)(S, F) * (S ** -0.5)),
            "b1": _w((lambda *s: torch.randn(*s, dtype=torch.bfloat16) * 3.2)(F) * 0.02),
            "w2": _w((lambda *s: torch.randn(*s, dtype=torch.bfloat16) * 0.05)(F, S) * (F ** -0.5)),
            "b2": _w((lambda *s: torch.randn(*s, dtype=torch.bfloat16) * 0.1)(S) * 0.02),
        }
    _B_in = _B_setup()

    return {
        "A_q": _A_in["q"],
        "A_k": _A_in["k"],
        "A_v": _A_in["v"],
        "A_shift_k": _A_in["shift_k"],
        "A_ssm_k": _A_in["ssm_k"],
        "A_ssm_D": _A_in["ssm_D"],
        "B_x": _B_in["x"],
        "B_w1": _B_in["w1"],
        "B_b1": _B_in["b1"],
        "B_w2": _B_in["w2"],
        "B_b2": _B_in["b2"],
        "gate_w": _w((lambda *s: torch.randn(*s, dtype=torch.bfloat16) * 0.05)(640) * 16.0),
    }

def reference(A_q, A_k, A_v, A_shift_k, A_ssm_k, A_ssm_D, B_x, B_w1, B_b1, B_w2, B_b2, gate_w):
    def _A_ref(q, k, v, shift_k, ssm_k, ssm_D):
        B, S, D = q.shape
        ks = shift_k.shape[-1]
        k_pad = _pad(k, ((0, 0), (ks - 1, 0), (0, 0)))
        k_shift = torch.zeros_like(k)
        for t in range(ks):
            k_shift = k_shift + k_pad[:, t:t + S, :] * shift_k[:, ks - 1 - t][None, None, :]
        kv = k_shift * v
        L = 2 * S
        kv_pad = _pad(kv, ((0, 0), (0, S), (0, 0)))
        kf_pad = _pad(ssm_k, ((0, 0), (0, S)))
        kv_f = (lambda x, axes=(-2,-1): torch.fft.rfft2(x.float(), dim=axes))(kv_pad[:, None, :, :], axes=(1, 2))
        kf_f = (lambda x, axes=(-2,-1): torch.fft.rfft2(x.float(), dim=axes))(kf_pad[:, None, :], axes=(1, 2))
        kf_f = (lambda x, *d: x.permute(*d))(kf_f, 1, 2, 0)
        y_f = kv_f * kf_f[None, :, :, :]
        y = (lambda x, s, axes=(-2,-1): torch.fft.irfft2(x, s=s, dim=axes).to(torch.bfloat16))(y_f, (1, L), axes=(1, 2))[:, 0, :S, :]
        y = y + kv * ssm_D[None, None, :]
        return q * y

    def _B_ref(x, w1, b1, w2, b2):
        B, S, D = x.shape
        h = _layernorm(x, axis=-1)
        u = torch.einsum("bsd,sf->bdf", h, w1) + b1
        u = _gelu(u)
        y = torch.einsum("bdf,fs->bds", u, w2) + b2
        return (lambda x, *d: x.permute(*d))(y, 0, 2, 1)

    x = A_q
    g = _sigmoid((x * gate_w).sum(-1, keepdims=True))
    a = _A_ref(x, A_k, A_v, A_shift_k, A_ssm_k, A_ssm_D)
    b = _B_ref(x, B_w1, B_b1, B_w2, B_b2)
    return g * a + (1 - g) * b
```

```python
import re

REG = re.compile(r'^(-|\|)?([vas])(\d+)\|?$|^(-)?([vas])\[(\d+):(\d+)\]$')
TRANS = ('v_exp_f32', 'v_log_f32', 'v_rcp_f32', 'v_rsq_f32', 'v_sqrt_f32', 'v_sin_f32', 'v_cos_f32')


def regs_of(tok):
    tok = tok.strip()
    if tok in ('vcc', 'exec', 'm0', 'scc'):
        return [tok]
    if tok in ('vcc_lo', 'vcc_hi'):
        return ['vcc']
    if tok in ('exec_lo', 'exec_hi'):
        return ['exec']
    m = REG.match(tok)
    if not m:
        return []
    if m.group(2):
        return [m.group(2) + m.group(3)]
    return [m.group(5) + str(i) for i in range(int(m.group(6)), int(m.group(7)) + 1)]


class Ins:
    __slots__ = ('text', 'op', 'kind', 'rd', 'wr', 'srcC', 'srcAB', 'wide_data', 'dpp', 'states', 'tok', 'cond')

    def __init__(self, text):
        self.text = text
        t = text.split(';')[0].strip()
        parts = t.split(None, 1)
        op = parts[0]
        self.op = op
        rest = parts[1] if len(parts) > 1 else ''
        ops = []
        mods = ''
        depth = 0
        cur = ''
        for ch in rest:
            if ch in '[(':
                depth += 1
            if ch in '])':
                depth -= 1
            if ch == ',' and depth == 0:
                ops.append(cur.strip())
                cur = ''
            else:
                cur += ch
        if cur.strip():
            last = cur.strip().split(None, 1)
            ops.append(last[0])
            mods = last[1] if len(last) > 1 else ''
        R = [regs_of(o) for o in ops]
        flat = lambda l: [x for y in l for x in y]
        self.rd, self.wr, self.srcC, self.srcAB, self.wide_data = [], [], [], [], []
        self.dpp = False
        self.states = 1
        self.tok = None
        self.cond = None
        if op.startswith('v_mfma'):
            self.kind = 'mfma'
            self.wr = R[0]
            self.srcAB = R[1] + R[2]
            self.srcC = R[3]
            self.rd = self.srcAB + self.srcC
        elif op.startswith('v_'):
            self.kind = 'valu'
            self.wr = list(R[0])
            self.rd = flat(R[1:])
            if op.startswith(('v_fmac', 'v_dot2c', 'v_pk_fmac')):
                self.rd += R[0]
            if op.startswith('v_permlane') and 'swap' in op:
                self.wr = R[0] + R[1]
                self.rd = R[0] + R[1]
            if '_dpp' in op:
                self.dpp = True
                self.rd += R[0]
            if op.startswith('v_cndmask') and len(ops) == 3:
                self.rd += ['vcc']
            if op.startswith('v_cmpx'):
                self.wr += ['exec']
            if op.startswith('v_writelane'):
                self.rd += R[0]
        elif op.startswith('ds_'):
            self.kind = 'ds'
            if op.startswith(('ds_read', 'ds_bpermute', 'ds_permute', 'ds_swizzle')) or '_rtn' in op:
                self.wr = R[0]
                self.rd = flat(R[1:])
                if 'd16' in op:
                    self.rd += R[0]
            else:
                self.rd = flat(R)
        elif op.startswith(('buffer_', 'global_')):
            self.kind = 'vm'
            lds = 'lds' in mods.split() or '_lds_' in op
            if 'load' in op and not lds:
                self.wr = R[0]
                self.rd = flat(R[1:])
                if 'd16' in op:
                    self.rd += R[0]
            elif 'load' in op:
                self.rd = flat(R) + ['m0']
            else:
                self.rd = flat(R)
                if op.endswith(('x3', 'x4')):
                    self.wide_data = R[0] if op.startswith('buffer') else R[1]
        elif op.startswith(('s_load', 's_memtime', 's_memrealtime', 's_buffer_load')):
            self.kind = 'smem'
            self.wr = R[0]
            self.rd = flat(R[1:])
        elif op.startswith('s_'):
            self.kind = 'salu'
            if op == 's_nop':
                self.states = int(ops[0], 0) + 1
            elif op.startswith(('s_cmp', 's_waitcnt', 's_barrier', 's_cbranch', 's_branch', 's_endpgm', 's_sleep',
                                's_setprio', 's_setpc', 's_bitcmp')):
                self.rd = flat(R)
            else:
                self.wr = list(R[0])
                self.rd = flat(R[1:])
                if 'saveexec' in op:
                    self.wr += ['exec']
        else:
            raise ValueError('unknown instr ' + text)


def need_states(p, c):
    n = 0
    pw = set(p.wr)
    if p.kind == 'valu':
        vw = {r for r in pw if r[0] in 'va' and r != 'vcc'}
        sw = pw - vw
        if c.kind == 'mfma' and vw & set(c.rd):
            n = max(n, 2)
        if c.kind == 'mfma' and 'exec' in pw:
            n = max(n, 4)
        if c.kind == 'valu':
            crd = set(c.rd)
            if c.dpp and vw & crd:
                n = max(n, 2)
            if c.dpp and 'exec' in pw:
                n = max(n, 5)
            if c.op.startswith(('v_readlane', 'v_readfirstlane')) and vw & crd:
                n = max(n, 1)
            if c.op.startswith('v_permlane') and vw & crd:
                n = max(n, 2)
            if sw & crd:
                n = max(n, 4 if c.op.startswith(('v_readlane', 'v_writelane')) else 2)
            if p.op.startswith(TRANS) and not c.op.startswith(TRANS) and vw & (crd | set(c.wr)):
                n = max(n, 1)
            if ('_sdwa' in p.op or 'op_sel:' in p.text) and vw & (crd | set(c.wr)):
                n = max(n, 1)
        if p.op.startswith('v_dot') and c.kind in ('valu', 'mfma', 'vm', 'ds'):
            if vw & (set(c.rd) | set(c.wr)):
                if c.op == p.op:
                    ops = c.text.split(None, 1)[1].split(',')
                    ab = set(regs_of(ops[1].strip()) + regs_of(ops[2].strip().split()[0]))
                    if vw & ab:
                        n = max(n, 3)
                else:
                    n = max(n, 3)
        if c.kind == 'vm' and sw & set(c.rd):
            n = max(n, 5)
        if c.kind in ('salu', 'smem') and sw & set(c.rd):
            n = max(n, 1)
    if p.kind == 'mfma':
        if c.kind == 'mfma':
            if pw & set(c.srcAB):
                n = max(n, 8)
            if pw & set(c.srcC) and list(p.wr) != list(c.srcC):
                n = max(n, 6)
            if pw & set(c.wr) and list(p.wr) != list(c.srcC):
                n = max(n, 6)
        elif c.kind in ('valu', 'vm', 'ds'):
            if pw & (set(c.rd) | set(c.wr)):
                n = max(n, 8)
            if c.kind == 'valu' and set(p.srcC) & set(c.wr):
                n = max(n, 3)
    if p.kind == 'salu' and 'm0' in pw and c.kind == 'vm' and 'm0' in c.rd:
        n = max(n, 1)
    if p.kind == 'vm' and p.wide_data and set(p.wide_data) & set(c.wr):
        n = max(n, 2)
    return n


class Asm:
    def __init__(self):
        self.out = []
        self.hist = []
        self.vm = []
        self.lg = []
        self.smem_pending = set()
        self.pend = {}
        self.toks = {}
        self.nid = 0
        self.cond = None
        self.n_ins = 0
        self.n_nop = 0

    def raw(self, s):
        self.out.append(s)

    def label(self, name):
        self.out.append(name + ':')

    def comment(self, s):
        self.out.append('; ' + s)

    def begin_cond(self, name):
        self.cond = name

    def end_cond(self):
        self.cond = None

    def _count_after(self, q, idn):
        idx = [i for i, (j, c) in enumerate(q) if j == idn]
        if not idx:
            return None
        i = idx[0]
        cx = q[i][1]
        return i, sum(1 for (j, c) in q[i + 1:] if c is None or c == cx or c == self.cond)

    def _wait(self, needs):
        w = {}
        for cls, idn in needs:
            q = self.vm if cls == 'vm' else self.lg
            r = self._count_after(q, idn)
            if r is None:
                continue
            i, n = r
            if cls not in w or i > w[cls][0]:
                w[cls] = (i, n if cls not in w else min(n, w[cls][1]))
            else:
                w[cls] = (w[cls][0], min(n, w[cls][1]))
        if not w:
            return
        s = 's_waitcnt'
        if 'vm' in w:
            n = min(w['vm'][1], 63)
            s += f' vmcnt({n})'
        if 'lg' in w:
            n = min(w['lg'][1], 15)
            if self.smem_pending:
                n = 0
            s += f' lgkmcnt({n})'
        self._push(Ins(s))
        if self.cond is None:
            if 'vm' in w:
                self._retire('vm', w['vm'][0])
            if 'lg' in w:
                self._retire('lg', w['lg'][0])
                if n == 0:
                    self.smem_pending = set()
        else:
            for cls in w:
                q = self.vm if cls == 'vm' else self.lg
                done = {j for (j, c) in q[:w[cls][0] + 1] if c == self.cond}
                q[:] = [(j, c) for (j, c) in q if j not in done]
                self.pend = {r: v for r, v in self.pend.items() if not (v[0] == cls and v[1] in done)}

    def _retire(self, cls, i):
        q = self.vm if cls == 'vm' else self.lg
        done = {j for (j, c) in q[:i + 1]}
        del q[:i + 1]
        self.pend = {r: v for r, v in self.pend.items() if not (v[0] == cls and v[1] in done)}

    def wait(self, *names):
        self._wait([self.toks[n] for n in names])

    def wait_all(self, vm=True, lg=True):
        needs = []
        if vm and self.vm:
            needs.append(('vm', self.vm[-1][0]))
        if lg and self.lg:
            needs.append(('lg', self.lg[-1][0]))
        self._wait(needs)

    def wait_smem(self):
        self._push(Ins('s_waitcnt lgkmcnt(0)'))
        if self.lg:
            self._retire('lg', len(self.lg) - 1)
        self.smem_pending = set()

    def _push(self, ins):
        need = 0
        dist = 0
        for p in reversed(self.hist):
            n = need_states(p, ins)
            need = max(need, n - dist)
            dist += p.states
            if dist >= 12:
                break
        if need > 0:
            nop = Ins(f's_nop {need - 1}')
            self.hist.append(nop)
            self.out.append('    ' + nop.text)
            self.n_ins += 1
            self.n_nop += need
        self.hist.append(ins)
        if len(self.hist) > 40:
            self.hist = self.hist[-20:]
        self.out.append('    ' + ins.text)
        self.n_ins += 1

    def __call__(self, text, tok=None):
        for line in text.split('\n'):
            line = line.strip()
            if not line:
                continue
            if line.endswith(':'):
                self.out.append(line)
                continue
            if line.startswith(';'):
                self.out.append(line)
                continue
            ins = Ins(line)
            touched = set(ins.rd) | set(ins.wr)
            if self.smem_pending & touched:
                self.wait_smem()
            needs = [self.pend[r] for r in touched if r in self.pend]
            if needs:
                self._wait(needs)
            self._push(ins)
            if ins.kind in ('vm', 'ds'):
                cls = 'vm' if ins.kind == 'vm' else 'lg'
                self.nid += 1
                (self.vm if cls == 'vm' else self.lg).append((self.nid, self.cond))
                for r in ins.wr:
                    self.pend[r] = (cls, self.nid)
                if tok:
                    self.toks[tok] = (cls, self.nid)
                assert len(self.vm) <= 63 or cls != 'vm', 'vmcnt overflow'
            elif ins.kind == 'smem':
                self.smem_pending |= set(ins.wr)

    def run(self, items):
        for it in items:
            if callable(it):
                it(self)
            elif isinstance(it, tuple):
                if it[0] == 'wait':
                    self.wait(*it[1:])
                else:
                    self(it[0], tok=it[1])
            else:
                self(it)

    def text(self):
        return '\n'.join(self.out) + '\n'


def merge(main, side, start=0, end=None):
    end = len(main) if end is None else end
    n = max(end - start, 1)
    out = []
    k = 0
    for i, it in enumerate(main):
        out.append(it)
        if start <= i < end:
            tgt = (len(side) * (i - start + 1)) // n
            while k < tgt:
                out.append(side[k])
                k += 1
    out.extend(side[k:])
    return out
```

```python
import sys
from asmlib import Asm, merge

NAME = "gated_mix__ssm_conv_h3__mixer_token_mlp__prompt"

WS_H, WS_U, WS_KV, WS_Z, WS_G = 0x0, 0x280000, 0x480000, 0x700000, 0x980000
WS_F1, WS_FU, WS_FZ, WS_EP, WS_DBG = 0x990000, 0x9A0000, 0x9B0000, 0x9C0000, 0x9D0000
WS_SIZE = 0xA00000
OOB = 0x7F000000
TAGC = 0x9E3779B9

NR = 4
L_RING = 0
L_RED = 65536
PL = 1344
L_LN = L_RED
L_KI = L_LN + 8 * PL
L_VI = L_KI + 11584
L_ZSTG = L_RED + 4 * 12288
L_CK = L_RED + 61440
KP, KPAD = 4224, 96
L_CX = L_CK + 3 * KP
XP, XPAD = 4544, 448
L_CAR = L_CX + 3 * XP
L_END = L_CAR + 1600
L_ZI = L_CK
PZ = 144

S_WS, S_K, S_V, S_W1, S_W2, S_SSM, S_D = 4, 8, 12, 16, 20, 24, 28
P_Q, P_SH, P_B1, P_B2, P_GW, P_OUT = 36, 42, 54, 58, 60, 62
TK = 68
sW, sXC, sID, sDG, sFT, sDT, sST, sTAG, sP, sRING, sOWN, sC0 = range(84, 96)
sT0, sT1, sT2, sT3 = 32, 33, 34, 35
sU0, sU1, sU2, sU3, sU4, sU5 = 44, 45, 46, 47, 48, 49
sM63 = 50
sCNT = 3


def srd(n):
    return f"s[{n}:{n+3}]"


def sp(n):
    return f"s[{n}:{n+1}]"


def vr(n, k):
    return f"v[{n}:{n+k-1}]"


def ar(n, k):
    return f"a[{n}:{n+k-1}]"


def setexec(mask):
    return "s_mov_b32 exec_hi, 0" if mask == '0xffffffff' else f"s_mov_b64 exec, {mask}"


def gen(cfg):
    a = Asm()
    stamps = cfg.get('stamps', False)
    FS1, FSU, FSZ = cfg.get('fs1', 16), cfg.get('fsu', 64), cfg.get('fsz', 64)
    NB = cfg.get('nb', 8)
    cold = cfg.get('cold', '')
    wpol = cfg.get('wpol', '')
    nstamp = [0]

    def stamp(name):
        def f(a):
            if not stamps:
                return
            a("s_memtime s[98:99]")
            a(f"v_writelane_b32 v255, s98, {nstamp[0]}")
            STAMPS.append(name)
            nstamp[0] += 1
        return f
    STAMPS = []

    a("s_load_dwordx16 s[36:51], s[0:1], 0")
    a("s_load_dwordx16 s[52:67], s[0:1], 56")
    if stamps:
        a("s_memrealtime s[96:97]")
    a("s_cmp_ge_u32 s2, 256")
    a("s_cbranch_scc1 L_end")
    a("v_lshrrev_b32 v1, 6, v0")
    a("v_and_b32 v0, 63, v0")
    a(f"v_readfirstlane_b32 s{sW}, v1")
    a(f"s_and_b32 s{sXC}, s2, 7")
    a(f"s_lshr_b32 s{sID}, s2, 3")
    a(f"s_lshl_b32 s{sP}, s{sXC}, 5")
    a(f"s_add_u32 s{sP}, s{sP}, s{sID}")
    a(f"s_lshr_b32 s{sT0}, s{sP}, 2")
    a(f"s_lshl_b32 s{sT0}, s{sT0}, 5")
    a(f"s_and_b32 s{sT1}, s{sP}, 3")
    a(f"s_lshl_b32 s{sT1}, s{sT1}, 2")
    a(f"s_add_u32 s{sT0}, s{sT0}, s{sT1}")
    a(f"s_lshr_b32 s{sT2}, s{sW}, 1")
    a(f"s_and_b32 s{sT3}, s{sW}, 1")
    a(f"s_lshl_b32 s{sT1}, s{sT2}, 4")
    a(f"s_add_u32 s{sT0}, s{sT0}, s{sT1}")
    a(f"s_lshl_b32 s{sT1}, s{sT3}, 1")
    a(f"s_add_u32 s{sT0}, s{sT0}, s{sT1}")
    vHW, vL32, vQ, vQ3, vG, vG3 = 10, 11, 12, 13, 14, 15
    a(f"v_lshrrev_b32 v{vHW}, 5, v0")
    a(f"v_and_b32 v{vL32}, 31, v0")
    a(f"v_add_u32 v{vQ}, s{sT0}, v{vHW}")
    a(f"v_mul_u32_u24 v{vQ}, 1280, v{vQ}")
    a(f"v_lshlrev_b32 v{vG}, 4, v{vL32}")
    a(f"v_lshlrev_b32 v{vG3}, 3, v{vL32}")
    a(f"v_add_u32 v{vQ3}, v{vQ}, v{vG3}")
    a(f"v_add_u32 v{vQ}, v{vQ}, v{vG}")
    a("v_lshlrev_b32 v1, 4, v0")
    for (s, n) in ((S_WS, WS_SIZE), (S_K, 2621440), (S_V, 2621440), (S_W1, 6291456), (S_W2, 6291456),
                   (S_SSM, 2621440), (S_D, 1280)):
        a(f"s_mov_b32 s{s+2}, {n}")
        a(f"s_mov_b32 s{s+3}, 0x20000")
    a(f"s_mul_i32 s{sT0}, s{sID}, 52")
    a(f"s_lshr_b32 s{sT0}, s{sT0}, 8")
    a(f"s_mul_i32 s{sT1}, s{sT0}, 5")
    a(f"s_sub_u32 s{sT1}, s{sID}, s{sT1}")
    a(f"s_min_u32 s{sT0}, s{sT0}, 5")
    a(f"s_and_b32 s{sDT}, s{sXC}, 1")
    a(f"s_lshr_b32 s{sST}, s{sXC}, 1")
    a(f"s_mul_i32 s{sDG}, s{sDT}, 5")
    a(f"s_add_u32 s{sDG}, s{sDG}, s{sT1}")
    a(f"s_mul_i32 s{sFT}, s{sST}, 6")
    a(f"s_add_u32 s{sFT}, s{sFT}, s{sT0}")
    a(f"s_lshl_b32 s{sT1}, s{sT1}, 1")
    a(f"s_add_u32 s{sT1}, s{sT1}, s{sDT}")
    a(f"s_mul_i32 s{sT1}, s{sT1}, 410")
    a(f"s_lshr_b32 s{sT1}, s{sT1}, 8")
    a(f"s_mul_i32 s{sCNT}, s{sT0}, {cfg.get('rotf', 3)}")
    a(f"s_add_u32 s{sT1}, s{sT1}, s{sCNT}")
    a(f"s_add_u32 s{sOWN}, s{sW}, s{sT0}")
    a(f"s_and_b32 s{sOWN}, s{sOWN}, 3")
    a(f"s_lshl_b32 s{sT1}, s{sT1}, 10")
    XR, GR = 16, 26
    a(f"global_load_dwordx4 {vr(XR,4)}, v{vQ}, {sp(P_Q)}")
    a(f"global_load_dwordx4 {vr(XR+4,4)}, v{vQ}, {sp(P_Q)} offset:512")
    a(f"global_load_dwordx2 {vr(XR+8,2)}, v{vQ3}, {sp(P_Q)} offset:1024")
    a(f"global_load_dwordx4 {vr(GR,4)}, v{vG}, {sp(P_GW)}")
    a(f"global_load_dwordx4 {vr(GR+4,4)}, v{vG}, {sp(P_GW)} offset:512")
    a(f"global_load_dwordx2 {vr(GR+8,2)}, v{vG3}, {sp(P_GW)} offset:1024")
    a.run([stamp('start')])
    for (s, p) in ((S_WS, 66), (S_K, 38), (S_V, 40), (S_W1, 50), (S_W2, 56), (S_SSM, 44), (S_D, 46)):
        a(f"s_mov_b64 {sp(s)}, {sp(p)}")
    for j in range(16):
        a(f"s_and_b32 s{TK+j}, s{sT1}, 0x3c00")
        if j < 15:
            a(f"s_add_u32 s{sT1}, s{sT1}, 1024")
    a(f"s_lshl_b32 s{sDT}, s{sDT}, 2")
    a(f"s_and_b32 s{sT0}, s{sID}, 3")
    a(f"s_add_u32 s{sDT}, s{sDT}, s{sT0}")
    a(f"s_lshl_b32 s{sST}, s{sST}, 3")
    a(f"s_lshr_b32 s{sT0}, s{sID}, 2")
    a(f"s_add_u32 s{sST}, s{sST}, s{sT0}")
    a(f"s_mul_i32 s{sRING}, s{sW}, {NR*4096}")
    a(f"s_mov_b32 s{sM63}, 0")
    a(f"s_mov_b32 s{sM63+1}, 0x80000000")
    vEP = 36
    a("v_mov_b32 v2, 0")
    a(f"s_mov_b32 s{sT0}, {WS_EP}")
    a("s_mov_b64 exec, 1")
    a(f"buffer_load_dword v{vEP}, v2, {srd(S_WS)}, s{sT0} offen sc1")
    a("s_mov_b64 exec, -1")
    vH, vI, vR, vC = 37, 38, 39, 40
    a(f"v_lshrrev_b32 v{vH}, 4, v0")
    a(f"v_and_b32 v{vI}, 15, v0")
    a(f"v_bfe_u32 v{vR}, v0, 2, 2")
    a(f"v_and_b32 v{vC}, 3, v0")
    vKo, vT, vT2 = 41, 42, 43
    a(f"v_mul_u32_u24 v{vT}, 26, v0")
    a(f"v_lshrrev_b32 v{vT}, 8, v{vT}")
    a(f"v_mul_u32_u24 v{vT2}, 10, v{vT}")
    a(f"v_sub_u32 v{vT2}, v0, v{vT2}")
    a(f"v_mul_u32_u24 v{vT}, 1280, v{vT}")
    a(f"v_lshl_add_u32 v{vKo}, v{vT2}, 4, v{vT}")
    a(f"s_lshl_b32 s{sT0}, s{sST}, 6")
    a(f"s_mul_i32 s{sT1}, s{sW}, 18")
    a(f"s_add_u32 s{sT0}, s{sT0}, s{sT1}")
    a(f"s_mul_i32 s{sT0}, s{sT0}, 1280")
    a(f"s_mul_i32 s{sT1}, s{sDT}, 160")
    a(f"s_add_u32 s{sT0}, s{sT0}, s{sT1}")
    a(f"s_mul_i32 s{sT1}, s{sW}, 2880")
    for i in range(3):
        a(f"s_add_u32 s{sU0}, s{sT0}, {(i*6-4)*1280 & 0xffffffff}")
        a(f"v_add_u32 v{vT}, s{sU0}, v{vKo}")
        a(f"s_add_u32 m0, s{sT1}, {L_KI + i*960}")
        a(f"buffer_load_dwordx4 v{vT}, {srd(S_K)}, 0 offen {cold} lds")
    for i in range(3):
        a(f"s_add_u32 s{sU0}, s{sT0}, {i*6*1280}")
        a(f"s_add_u32 m0, s{sT1}, {L_VI + i*960}")
        a(f"buffer_load_dwordx4 v{vKo}, {srd(S_V)}, s{sU0} offen {cold} lds", tok='kvdma')
    CF = 44
    vCH = 50
    a(f"s_mul_i32 s{sT0}, s{sDT}, 80")
    a(f"s_lshl_b32 s{sT1}, s{sT2}, 4")
    a(f"s_add_u32 s{sT1}, s{sT1}, s{sT0}")
    a(f"v_add_u32 v{vCH}, s{sT1}, v{vI}")
    a(f"v_lshlrev_b32 v{vT}, 3, v{vCH}")
    a(f"v_add_lshl_u32 v{vT2}, s{sT0}, v{vI}, 3")
    a(f"global_load_dwordx2 {vr(CF,2)}, v{vT}, {sp(P_SH)}")
    a(f"global_load_dwordx2 {vr(CF+2,2)}, v{vT}, {sp(P_SH)} offset:256")
    a(f"global_load_dwordx2 {vr(CF+4,2)}, v{vT2}, {sp(P_SH)} offset:512")
    a(f"s_lshr_b32 s{sT1}, s{sST}, 1")
    a(f"s_mul_i32 s{sT1}, s{sT1}, 5")
    a(f"s_add_u32 s{sC0}, s{sT0}, s{sT1}")
    a(f"s_and_b32 s{sT1}, s{sST}, 1")
    a(f"s_lshl_b32 s{sT1}, s{sT1}, 1")
    a(f"s_add_u32 s{sC0}, s{sC0}, s{sT1}")

    VW, VT = 2, 6

    def weight_addr(pitch, sbase, xorw):
        it = []
        it.append(f"v_lshrrev_b32 v{vT}, 3, v0")
        it.append(f"v_and_b32 v{vT2}, 6, v{vT}")
        it.append(f"v_xor_b32 v{vT2}, v{vT2}, v0")
        it.append(f"v_and_b32 v{vT2}, 7, v{vT2}")
        it.append(f"v_mul_u32_u24 v{vT}, {pitch}, v{vT}")
        it.append(f"v_lshl_add_u32 v{vT}, v{vT2}, 4, v{vT}")
        it.append(f"v_add_u32 v{VW}, s{sbase}, v{vT}")
        for i in range(1, 4):
            it.append(f"v_add_u32 v{VW+i}, {8*pitch-1024}, v{VW+i-1}")
        it.append(f"v_lshrrev_b32 v{vT}, 2, v0")
        it.append(f"v_lshlrev_b32 v{vT}, 7, v{vT}")
        it.append(f"v_lshl_add_u32 v{vT}, v{vC}, 3, v{vT}")
        it.append(f"v_bfe_u32 v{vT2}, v0, 3, 2")
        if xorw:
            it.append(f"v_xor_b32 v{vT2}, s{sW}, v{vT2}")
        it.append(f"v_lshl_add_u32 v{vT}, v{vT2}, 5, v{vT}")
        it.append(f"v_add_u32 v{VT}, s{sRING}, v{vT}")
        for t in range(1, 4):
            it.append(f"v_xor_b32 v{VT+t}, {t*32}, v{VT}")
        return it

    def w_issue(which, j):
        it = []
        if j >= NR:
            it.append(('wait', f'{which}r{j-NR}'))
        if which == 'w1':
            it.append(f"s_mul_i32 s{sU1}, s{TK+j}, 96")
        else:
            it.append(f"s_lshl_b32 s{sU1}, s{TU+j}, 7")
        it.append(f"s_add_u32 m0, s{sRING}, {(j % NR)*4096}")
        s = S_W1 if which == 'w1' else S_W2
        for i in range(4):
            it.append((f"buffer_load_dwordx4 v{VW+i}, {srd(s)}, s{sU1} offen offset:{i*1024} {wpol} lds", f'{which}d{j}'))
        return it

    def w_drain(which, j):
        it = [('wait', f'{which}d{j}')]
        for t in range(4):
            for e2 in range(2):
                it.append((f"ds_read_b64_tr_b16 {ar(16*j+4*t+2*e2,2)}, v{VT+t} offset:{(j % NR)*4096 + e2*2048}", f'{which}r{j}'))
        return it

    a(f"s_mul_i32 s{sT0}, s{sW}, {512*3072}")
    a(f"s_lshl_b32 s{sT1}, s{sFT}, 7")
    a(f"s_add_u32 s{sT0}, s{sT0}, s{sT1}")
    a.run(weight_addr(3072, sT0, False))
    PRE = cfg.get('pre', 1)
    for j in range(PRE):
        a.run(w_issue('w1', j))

    a("v_mov_b32 v60, 0\nv_mov_b32 v61, 0\nv_mov_b32 v62, 0\nv_mov_b32 v63, 0")
    a(f"s_min_u32 s{sT0}, s{sW}, 2")
    a(f"s_mul_i32 s{sT1}, s{sT0}, {XP}")
    a(f"s_add_u32 s{sT1}, s{sT1}, {L_CX}")
    a(f"v_add_u32 v{vT}, s{sT1}, v1")
    a(f"s_mul_i32 s{sT1}, s{sT0}, {KP}")
    a(f"s_add_u32 s{sT1}, s{sT1}, {L_CK}")
    a(f"v_add_u32 v{vT2}, s{sT1}, v1")
    a(f"s_mul_i32 s{sT1}, s{sT0}, {33*16}")
    a(f"s_add_u32 s{sT1}, s{sT1}, {L_CAR}")
    a(f"v_mov_b32 v59, s{sT1}")
    a(f"s_mov_b64 exec, {hex((1 << (XPAD//16)) - 1)}")
    a(f"ds_write_b128 v{vT}, v[60:63]")
    a(f"s_mov_b64 exec, {hex((1 << (KPAD//16)) - 1)}")
    a(f"ds_write_b128 v{vT2}, v[60:63]")
    a("s_mov_b64 exec, 1")
    a(f"ds_write_b128 v59, v[60:63]")
    a("s_mov_b64 exec, -1")

    vLW, vLW3, vA1, vA2, vHS, vGS, vKVA, vKVS = 51, 52, 53, 54, 55, 56, 57, 58
    a(f"s_lshl_b32 s{sT0}, s{sW}, 1")
    a(f"v_add_u32 v{vT}, s{sT0}, v{vHW}")
    a(f"s_lshl_b32 s{sT0}, s{sP}, 3")
    a(f"v_add_lshl_u32 v{vGS}, s{sT0}, v{vT}, 2")
    a(f"v_mul_u32_u24 v{vT}, {PL}, v{vT}")
    a(f"v_add_u32 v{vT}, {L_LN}, v{vT}")
    a(f"v_add_u32 v{vLW}, v{vT}, v{vG}")
    a(f"v_add_u32 v{vLW3}, v{vT}, v{vG3}")
    a(f"v_mul_u32_u24 v{vT}, {PL}, v{vR}")
    a(f"v_mul_u32_u24 v{vT2}, 160, v{vH}")
    a(f"v_add_u32 v{vT}, v{vT}, v{vT2}")
    a(f"s_lshl_b32 s{sT0}, s{sT2}, 6")
    a(f"s_lshl_b32 s{sT1}, s{sT3}, 3")
    a(f"s_add_u32 s{sT0}, s{sT0}, s{sT1}")
    a(f"s_add_u32 s{sT0}, s{sT0}, {L_LN}")
    a(f"v_lshl_add_u32 v{vA1}, v{vC}, 4, v{vT}")
    a(f"v_add_u32 v{vA1}, s{sT0}, v{vA1}")
    a(f"s_mul_i32 s{sT0}, s{sT3}, 640")
    a(f"s_add_u32 s{sT0}, s{sT0}, {L_LN + 128}")
    a(f"v_lshl_add_u32 v{vA2}, v{vC}, 3, v{vT}")
    a(f"v_add_u32 v{vA2}, s{sT0}, v{vA2}")
    a(f"v_mul_u32_u24 v{vHS}, {5*65536}, v{vH}")
    a(f"v_lshl_add_u32 v{vHS}, v{vI}, 4, v{vHS}")
    a(f"s_lshl_b32 s{sT0}, s{sP}, 8")
    a(f"s_lshl_b32 s{sT1}, s{sW}, 16")
    a(f"s_add_u32 s{sU2}, s{sT0}, s{sT1}")
    a(f"s_add_u32 s{sU3}, s{sU2}, {20*65536}")
    a(f"s_mul_i32 s{sT1}, s{sT3}, {20*65536}")
    a(f"s_add_u32 s{sU4}, s{sT0}, s{sT1}")
    a(f"s_add_u32 s{sU4}, s{sU4}, {4*65536}")
    a(f"s_cmp_ge_u32 s{sW}, 2")
    a(f"s_cselect_b32 s{sU4}, s{sU4}, {OOB}")
    a(f"v_lshl_add_u32 v{vT}, v{vH}, 3, v{vR}")
    a(f"v_mul_u32_u24 v{vT}, 160, v{vT}")
    a(f"v_lshl_add_u32 v{vT}, v{vC}, 3, v{vT}")
    a(f"s_mul_i32 s{sT0}, s{sT3}, {32*160}")
    a(f"s_lshl_b32 s{sT1}, s{sT2}, 5")
    a(f"s_add_u32 s{sT0}, s{sT0}, s{sT1}")
    a(f"s_add_u32 s{sT0}, s{sT0}, {L_KI}")
    a(f"v_add_u32 v{vKVA}, s{sT0}, v{vT}")
    a(f"v_lshlrev_b32 v{vKVS}, 12, v{vCH}")
    a(f"v_lshl_add_u32 v{vKVS}, v{vH}, 4, v{vKVS}")
    a(f"s_lshl_b32 s{sT0}, s{sST}, 7")
    a(f"s_lshl_b32 s{sT1}, s{sT3}, 6")
    a(f"s_add_u32 s{sT0}, s{sT0}, s{sT1}")
    a(f"s_add_u32 s{sT0}, s{sT0}, {WS_KV}")
    a(f"v_add_u32 v{vKVS}, s{sT0}, v{vKVS}")

    S1, S2, S3, TT = 64, 65, 66, 67
    XF = 72
    a(f"s_mov_b32 s{sT0}, 0x3f803f80")
    for i in range(10):
        c = lambda r: "0" if i == 0 else f"v{r}"
        a(f"v_dot2_f32_bf16 v{S1}, v{XR+i}, s{sT0}, {c(S1)}")
        a(f"v_dot2_f32_bf16 v{S2}, v{XR+i}, v{XR+i}, {c(S2)}")
    a.run([stamp('q_in')])
    for i in range(10):
        a(f"v_dot2_f32_bf16 v{S3}, v{XR+i}, v{GR+i}, {'0' if i == 0 else f'v{S3}'}")
    unp = []
    for i in range(10):
        unp.append(f"v_lshlrev_b32 v{XF+2*i}, 16, v{XR+i}")
        unp.append(f"v_and_b32 v{XF+2*i+1}, 0xffff0000, v{XR+i}")
    a(unp.pop(0))
    for m in ("quad_perm:[1,0,3,2]", "quad_perm:[2,3,0,1]", "row_half_mirror", "row_mirror"):
        for s in (S1, S2, S3):
            a(f"v_add_f32_dpp v{s}, v{s}, v{s} {m} row_mask:0xf bank_mask:0xf")
    for k, s in enumerate((S1, S2, S3)):
        a(f"v_mov_b32 v{TT+k}, v{s}")
    for k, s in enumerate((S1, S2, S3)):
        a(f"v_permlane16_swap_b32 v{s}, v{TT+k}")
    for k, s in enumerate((S1, S2, S3)):
        a(f"v_add_f32 v{s}, v{s}, v{TT+k}")
    vRS, vNM = 70, 92
    inv = 0x3ACCCCCD
    a(f"v_mul_f32 v{S1}, {hex(inv)}, v{S1}")
    a(f"v_mul_f32 v{S2}, {hex(inv)}, v{S2}")
    a(f"v_mul_f32 v{S3}, 0xbfb8aa3b, v{S3}")
    a(f"v_fma_f32 v{S2}, -v{S1}, v{S1}, v{S2}")
    a(f"v_exp_f32 v{S3}, v{S3}")
    a(f"v_max_f32 v{S2}, 0, v{S2}")
    a(f"v_add_f32 v{S2}, 0x3727c5ac, v{S2}")
    a(f"v_rsq_f32 v{vRS}, v{S2}")
    a(f"v_add_f32 v{S3}, 1.0, v{S3}")
    a(f"v_rcp_f32 v{S3}, v{S3}")
    a(f"v_mul_f32_e64 v{vNM}, -v{S1}, v{vRS}")
    for u in unp:
        a(u)
    for i in range(10):
        a(f"v_pk_fma_f32 {vr(XF+2*i,2)}, {vr(XF+2*i,2)}, {vr(vRS,2)}, {vr(vNM,2)} op_sel_hi:[1,0,0]")
    for i in range(10):
        a(f"v_cvt_pk_bf16_f32 v{XR+i}, v{XF+2*i}, v{XF+2*i+1}")
        if i == 3:
            a(f"ds_write_b128 v{vLW}, {vr(XR,4)}")
        if i == 7:
            a(f"ds_write_b128 v{vLW}, {vr(XR+4,4)} offset:512")
    a(f"ds_write_b64 v{vLW3}, {vr(XR+8,2)} offset:1024")
    a(f"s_mov_b32 s{sT0}, {WS_G}")
    a(f"s_mov_b32 exec_lo, 1")
    a(f"s_mov_b32 exec_hi, 1")
    a(f"buffer_store_dword v{S3}, v{vGS}, {srd(S_WS)}, s{sT0} offen sc1")
    a("s_mov_b64 exec, -1")
    a.wait('kvdma')
    a.wait_all(vm=False)
    a("s_barrier")
    a.run([stamp('barA')])
    HB = 64
    for u, (va, off) in enumerate(((vA1, 0), (vA1, 640), (vA2, 0))):
        for e2 in range(2):
            a(f"ds_read_b64_tr_b16 {vr(HB+4*u+2*e2,2)}, v{va} offset:{off + e2*4*PL}")
    KR = 80

    def kv_reads(u):
        it = []
        off = (64, 0)[0] * u if u < 2 else 128
        for j in range(3):
            it.append(f"ds_read_b64_tr_b16 {vr(KR+10*u+2*j,2)}, v{vKVA} offset:{off + j*640}")
        for j in range(2):
            it.append(f"ds_read_b64_tr_b16 {vr(KR+10*u+6+2*j,2)}, v{vKVA} offset:{off + j*640 + (L_VI-L_KI)}")
        return it
    for u in range(3):
        a.run(kv_reads(u))
    for u, so in enumerate((sU2, sU3, sU4)):
        a(f"buffer_store_dwordx4 {vr(HB+4*u,4)}, v{vHS}, {srd(S_WS)}, s{so} offen sc1")
    a(f"v_readfirstlane_b32 s{sTAG}, v{vEP}")
    a(f"s_add_u32 s{sTAG}, s{sTAG}, {hex(TAGC)}")

    def kv_compute(u):
        it = []
        k = KR + 10 * u
        c10, c32 = CF + 2 * u, CF + 2 * u + 1
        SH, AC, VF, OUT = 112, 120, 128, 136 + 4 * u
        it.append(f"v_alignbit_b32 v{c10}, v{c10}, v{c10}, 16")
        it.append(f"v_alignbit_b32 v{c32}, v{c32}, v{c32}, 16")
        for n in range(5):
            it.append(f"v_alignbit_b32 v{SH+n}, v{k+n+1}, v{k+n}, 16")
        for e in range(8):
            if e & 1:
                lo, hi = k + (e + 1) // 2, k + (e + 3) // 2
            else:
                lo, hi = SH + e // 2, SH + e // 2 + 1
            it.append(f"v_dot2_f32_bf16 v{AC+e}, v{lo}, v{c32}, 0")
        for e in range(8):
            if e & 1:
                lo, hi = k + (e + 1) // 2, k + (e + 3) // 2
            else:
                lo, hi = SH + e // 2, SH + e // 2 + 1
            it.append(f"v_dot2_f32_bf16 v{AC+e}, v{hi}, v{c10}, v{AC+e}")
        for n in range(4):
            it.append(f"v_lshlrev_b32 v{VF+2*n}, 16, v{k+6+n}")
            it.append(f"v_and_b32 v{VF+2*n+1}, 0xffff0000, v{k+6+n}")
        for n in range(4):
            it.append(f"v_pk_mul_f32 {vr(AC+2*n,2)}, {vr(AC+2*n,2)}, {vr(VF+2*n,2)}")
        for n in range(4):
            it.append(f"v_cvt_pk_bf16_f32 v{OUT+n}, v{AC+2*n}, v{AC+2*n+1}")
        if u < 2:
            it.append(f"s_mov_b32 s{sT0}, {u*32*4096}")
        else:
            it.append(f"s_cmp_lt_u32 s{sW}, 2")
            it.append(f"s_cselect_b32 s{sT0}, {64*4096}, s{sT1}")
        it.append((f"buffer_store_dwordx4 {vr(OUT,4)}, v{vKVS}, {srd(S_WS)}, s{sT0} offen sc1", 'kvst'))
        return it
    a(f"s_mov_b32 s{sT1}, {OOB}")
    nxt = PRE
    drn = 0
    for u in range(3):
        if nxt < NR:
            a.run(w_issue('w1', nxt)); nxt += 1
        a.run(kv_compute(u))
    a.run([stamp('kv_done')])
    KL, DL = 96, 108
    a(f"s_lshl_b32 s{sT0}, s{sC0}, 12")
    a(f"s_lshl_b32 s{sT1}, s{sW}, 10")
    a(f"s_add_u32 s{sU2}, s{sT0}, s{sT1}")
    a(f"s_add_u32 s{sU3}, s{sU2}, 4096")
    a(f"s_add_u32 s{sU4}, s{sU2}, 8192")
    a(f"s_bitcmp1_b32 s{sST}, 0")
    a(f"s_cselect_b32 s{sU4}, s{sU4}, {OOB}")
    a(f"v_or_b32 v{vT}, s{sW}, v0")
    a(f"v_cmp_eq_u32 vcc, 0, v{vT}")
    a(f"s_lshl_b32 s{sT0}, s{sC0}, 1")
    a(f"v_mov_b32 v{vT}, {OOB}")
    a(f"v_mov_b32 v{vT2}, s{sT0}")
    a(f"v_cndmask_b32 v{vT}, v{vT}, v{vT2}, vcc")
    for cs, so in enumerate((sU2, sU3, sU4)):
        a(f"buffer_load_dwordx4 {vr(KL+4*cs,4)}, v1, {srd(S_SSM)}, s{so} offen {cold}")
    for cs in range(3):
        a(f"buffer_load_ushort v{DL+cs}, v{vT}, {srd(S_D)}, 0 offen offset:{2*cs}")
    POST = cfg.get('post', 1)
    for _ in range(POST):
        a.run(w_drain('w1', drn)); drn += 1
        a.run(w_issue('w1', nxt)); nxt += 1
    a.wait('kvst')
    a("s_barrier")
    a.run([stamp('barB')])

    def flag_store(base, sidx, stride, name, guard=None):
        def f(a):
            a(f"s_cmp_lg_u32 s{sW}, 0")
            a(f"s_cbranch_scc1 L_nf_{name}")
            a.begin_cond(name)
            if guard:
                a(guard)
                a(f"s_cbranch_scc1 L_nf_{name}")
            a(f"s_mul_i32 s{sU0}, s{sidx}, {stride}")
            a(f"s_add_u32 s{sU0}, s{sU0}, {base}")
            a(f"v_mov_b32 v34, s{sTAG}")
            a("s_mov_b64 exec, 1")
            a(f"buffer_store_dword v34, v0, {srd(S_WS)}, s{sU0} offen sc1")
            a("s_mov_b64 exec, -1")
            a.end_cond()
            a.label(f"L_nf_{name}")
        return f
    a.run([flag_store(WS_F1, sP, FS1, 'f1')])
    vCW = 59
    a(f"s_lshl_b32 s{sT0}, s{sW}, 10")
    a(f"s_add_u32 s{sT0}, s{sT0}, {L_CK + KPAD}")
    a(f"v_add_u32 v{vCW}, s{sT0}, v1")
    kfix = []
    for cs in range(3):
        kfix += [f"v_lshlrev_b32 v{DL+cs}, 16, v{DL+cs}",
                 f"v_lshlrev_b32 v{vT}, 16, v{KL+4*cs}",
                 f"v_and_b32 v{vT2}, 0xffff0000, v{KL+4*cs}",
                 f"v_add_f32 v{vT}, v{vT}, v{DL+cs}",
                 f"v_cvt_pk_bf16_f32 v{KL+4*cs}, v{vT}, v{vT2}",
                 f"ds_write_b128 v{vCW}, {vr(KL+4*cs,4)} offset:{cs*KP}"]
    a.run(kfix)
    vHL = 10
    vRW = 14
    vRR = 17
    vPO, vPD = 18, 19
    g1set = []
    for i in range(4):
        g1set += [f"s_add_u32 s{sT0}, s{sOWN}, {i+1}",
                  f"s_and_b32 s{sT0}, s{sT0}, 3",
                  f"s_mul_i32 s{sT1}, s{sT0}, 12288",
                  f"s_add_u32 s{sT1}, s{sT1}, {L_RED + (i*4096 if i < 3 else 0)}",
                  f"v_add_u32 v{vRW+i}, s{sT1}, v1",
                  f"s_lshl_b32 s{sT1}, s{sDG}, 2",
                  f"s_add_u32 s{sT0}, s{sT0}, s{sT1}",
                  f"s_lshl_b32 s{sT0}, s{sT0}, 16",
                  f"s_lshl_b32 s{sT1}, s{sW}, 14",
                  f"s_add_u32 s{sT0}, s{sT0}, s{sT1}",
                  f"v_add_u32 v{vHL+i}, s{sT0}, v1"]
    g1set += [f"s_lshl_b32 s{sT0}, s{sW}, 6",
              f"v_add_u32 v{vPO}, s{sT0}, v0",
              f"v_mul_u32_u24 v{vPO}, {FS1}, v{vPO}",
              f"v_add_u32 v{vPO}, {WS_F1}, v{vPO}"]
    BI = 224
    BL = 20
    g1set += [f"s_lshl_b32 s{sT0}, s{sFT}, 7",
              f"v_lshl_add_u32 v{vT}, v{vH}, 3, s{sT0}"]
    for t in range(4):
        g1set.append(f"global_load_dwordx2 {vr(BL+2*t,2)}, v{vT}, {sp(P_B1)} offset:{32*t}")
    a.run(g1set)

    def poll_issue(mask=None):
        it = []
        if mask:
            it.append(setexec(mask))
        it.append(f"buffer_load_dword v{vPD}, v{vPO}, {srd(S_WS)}, 0 offen sc1")
        if mask:
            it.append("s_mov_b64 exec, -1")
        return it

    def poll_check(name, mask=None):
        def f(a):
            if mask:
                a(setexec(mask))
            a(f"v_cmp_ne_u32 vcc, s{sTAG}, v{vPD}")
            a(f"s_mov_b32 s{sCNT}, 0")
            a(f"s_cbranch_vccz L_pk_{name}")
            a.label(f"L_pl_{name}")
            a.begin_cond('poll' + name)
            a("s_mov_b64 exec, vcc")
            a(f"buffer_load_dword v{vPD}, v{vPO}, {srd(S_WS)}, 0 offen sc1")
            a(f"s_add_u32 s{sCNT}, s{sCNT}, 1")
            a(f"s_cmp_ge_u32 s{sCNT}, 0x40000")
            a(f"s_cbranch_scc1 L_pk_{name}")
            a(f"v_cmp_ne_u32 vcc, s{sTAG}, v{vPD}")
            a("s_nop 0")
            a(f"s_cbranch_vccnz L_pl_{name}")
            a.end_cond()
            a.label(f"L_pk_{name}")
            a("s_mov_b64 exec, -1")
            if stamps:
                a(f"v_writelane_b32 v254, s{sCNT}, {['f1','fu','fz'].index(name)}")
        return f

    while drn < 16:
        if nxt == 16 and drn == 16 - cfg.get('pollat', 3):
            a.run(poll_issue())
        a.run(w_drain('w1', drn)); drn += 1
        if nxt < 16:
            a.run(w_issue('w1', nxt)); nxt += 1
    a.run([stamp('w1_done')])
    a.run([poll_check('f1')])
    BUF = 64
    ACC = (192, 208)
    RD = 144

    def h_load(n):
        i, j = divmod(n, 16)
        return f"buffer_load_dwordx4 {vr(BUF+4*(n % NB),4)}, v{vHL+i}, {srd(S_WS)}, s{TK+j} offen sc1"
    for n in range(NB):
        a(h_load(n))
    a.wait_all(vm=False)
    a("s_barrier")
    a.run([stamp('barC')])
    a(f"s_or_b32 s{sT0}, s2, s{sW}")
    a(f"s_cbranch_scc1 L_noep")
    a.begin_cond('ep')
    a(f"s_mov_b32 s{sT0}, {WS_EP}")
    a(f"v_mov_b32 v{vT}, s{sTAG}")
    a("s_mov_b64 exec, 1")
    a(f"buffer_store_dword v{vT}, v0, {srd(S_WS)}, s{sT0} offen sc1")
    a("s_mov_b64 exec, -1")
    a.end_cond()
    a.label("L_noep")

    XL = 104
    TU = TK + 0
    TU = 38
    TUmap = [38, 39, 40, 41, 52, 53, 56, 57, 64, 65, 66, 67]

    class _TU:
        def __add__(self, j):
            return TUmap[j]
    TU = _TU()

    side = {}

    def at(n, items):
        side.setdefault(n, []).extend(items)
    xl = [f"s_add_u32 s{sU2}, s{sU2}, {WS_KV}", f"s_add_u32 s{sU3}, s{sU3}, {WS_KV}", f"s_add_u32 s{sU4}, s{sU4}, {WS_KV}"]
    for cs, so in enumerate((sU2, sU3, sU4)):
        xl.append(f"buffer_load_dwordx4 {vr(XL+4*cs,4)}, v1, {srd(S_WS)}, s{so} offen sc1")
    at(2, xl)
    for cs in range(3):
        at(14 + cs, [f"ds_write_b128 v{vCW}, {vr(XL+4*cs,4)} offset:{L_CX + XPAD - L_CK - KPAD + cs*XP}"])
    for t in range(8):
        at(20 + t, [f"v_lshlrev_b32 v{BI+2*t}, 16, v{BL+t}", f"v_and_b32 v{BI+2*t+1}, 0xffff0000, v{BL+t}"])
    for i in range(3):
        for t in range(4):
            at(16 * (i + 1) + 1 + t, [(f"ds_write_b128 v{vRW+i}, {vr(ACC[i & 1]+4*t,4)} offset:{t*1024}", 'redw')])
    w2set = [f"s_and_b32 s{sT0}, s{sDT}, 3", f"s_lshl_b32 s{sT0}, s{sT0}, 1", f"s_lshr_b32 s{sT1}, s{sDT}, 2",
             f"s_add_u32 s{sT0}, s{sT0}, s{sT1}", f"s_mul_i32 s{sT0}, s{sT0}, 3", f"s_lshr_b32 s{sT0}, s{sT0}, 1",
             f"s_and_b32 s{sT1}, s{sST}, 7", f"s_mul_i32 s{sT1}, s{sT1}, {cfg.get('rots', 3)}", f"s_lshr_b32 s{sT1}, s{sT1}, 1",
             f"s_add_u32 s{sT0}, s{sT0}, s{sT1}", f"s_lshl_b32 s{sT0}, s{sT0}, 10"]
    for j in range(12):
        w2set += [f"s_sub_u32 s{sT1}, s{sT0}, {12*1024}", f"s_cselect_b32 s{TU+j}, s{sT0}, s{sT1}"]
        w2set += [f"s_add_u32 s{sT0}, s{TU+j}, 1024"]
    w2set += [f"s_mul_i32 s{sT0}, s{sW}, {384*4096}", f"s_lshl_b32 s{sT1}, s{sST}, 7", f"s_add_u32 s{sT0}, s{sT0}, s{sT1}"]
    w2set += weight_addr(4096, sT0, True)
    vCA, vCB, vCA2, vCB2, vUS = 20, 21, 22, 23, 24
    cvset = [f"v_lshlrev_b32 v{vT}, 3, v{vH}",
             f"v_add_u32 v{vT}, v{vT}, v{vR}",
             f"v_lshlrev_b32 v{vT2}, 2, v{vC}",
             f"v_sub_u32 v{vT2}, v{vT2}, v{vT}",
             f"v_lshlrev_b32 v{vT2}, 3, v{vT2}",
             f"s_mul_i32 s{sT0}, s{sT2}, {KP}",
             f"s_add_u32 s{sT0}, s{sT0}, {L_CK + KPAD + 152 - 32}",
             f"v_add_u32 v{vCA}, s{sT0}, v{vT2}",
             f"v_add_u32 v{vCA2}, {L_CK + 2*KP + KPAD + 152 - 32}, v{vT2}",
             f"v_add_lshl_u32 v{vT}, v{vT}, v{vC}, 3",
             f"s_mul_i32 s{sT0}, s{sT2}, {XP}",
             f"s_lshl_b32 s{sT1}, s{sT3}, 7",
             f"s_add_u32 s{sT0}, s{sT0}, s{sT1}",
             f"s_add_u32 s{sT0}, s{sT0}, {L_CX + XPAD - 152}",
             f"v_add_u32 v{vCB}, s{sT0}, v{vT}",
             f"s_lshl_b32 s{sT0}, s{sW}, 7",
             f"s_add_u32 s{sT0}, s{sT0}, {L_CX + 2*XP + XPAD - 152 - 256}",
             f"v_add_u32 v{vCB2}, s{sT0}, v{vT}",
             f"s_lshl_b32 s{sT0}, s{sDG}, 2",
             f"s_add_u32 s{sT0}, s{sT0}, s{sOWN}",
             f"s_mul_i32 s{sT0}, s{sT0}, 48",
             f"s_lshl_b32 s{sT1}, s{sFT}, 1",
             f"s_add_u32 s{sT0}, s{sT0}, s{sT1}",
             f"s_lshl_b32 s{sT0}, s{sT0}, 10",
             f"s_add_u32 s{sT0}, s{sT0}, {WS_U}",
             f"s_cmp_ge_u32 s{sID}, 30",
             f"s_cselect_b32 s{sT0}, {OOB}, s{sT0}",
             f"v_add_u32 v{vUS}, s{sT0}, v1"]
    lst = w2set + cvset
    per = 5
    for k in range(0, len(lst), per):
        at(28 + k // per, lst[k:k + per])
    assert 28 + len(lst) // per < 48, len(lst)
    at(53, [('wait', 'redw'), "s_barrier"])
    k = 0
    for i in range(3):
        for t in range(4):
            at(54 + k // 4, [f"ds_read_b128 {vr(RD+16*i+4*t,4)}, v{vRR} offset:{i*4096 + t*1024}"])
            k += 1
    adds = []
    for i in range(3):
        for t in range(8):
            adds.append(f"v_pk_add_f32 {vr(BI+2*t,2)}, {vr(BI+2*t,2)}, {vr(RD+16*i+2*t,2)}")
    for k in range(0, 24, 4):
        at(58 + k // 4, adds[k:k + 4])
    nx2 = 0
    W2PRE = cfg.get('w2pre', 2)
    for k in range(W2PRE):
        at(64 - NB + 1 + 3 * k, w_issue('w2', nx2)); nx2 += 1

    for n in range(64):
        i, j = divmod(n, 16)
        for t in range(4):
            d = vr(ACC[i & 1] + 4 * t, 4)
            a(f"v_mfma_f32_16x16x32_bf16 {d}, {ar(16*j+4*t,4)}, {vr(BUF+4*(n % NB),4)}, {'0' if j == 0 else d}")
        if n + NB < 64:
            a(h_load(n + NB))
        a.run(side.get(n, []))
        if n == 0:
            a.run([stamp('g1_first')])
    a.run([stamp('g1_mfma')])

    CA, CB, CACC, CY = 64, 128, 192, 224

    def ca_read(part, c):
        va = vCA if part == 1 else vCA2
        return [f"ds_read_b64_tr_b16 {vr(CA+4*c+2*e2,2)}, v{va} offset:{256*c + 32*(1-e2)}" for e2 in range(2)]

    def cb_slot(part, n):
        return CB + 4 * (n if part == 1 else 15 - n)

    def cb_read(part, n):
        va = vCB if part == 1 else vCB2
        return [f"ds_read_b64_tr_b16 {vr(cb_slot(part,n)+2*e2,2)}, v{va} offset:{256*n + 32*e2}" for e2 in range(2)]
    CPRE = 4
    for c in range(CPRE):
        a.run(ca_read(1, c) + cb_read(1, c))
    Z = ACC[1]
    G0, G1r = 80, 96
    UO = 240
    a(f"s_mov_b32 s{sU2}, 0xbdd2d3e8")
    a(f"v_mov_b32 v{vT}, 0xc0135761")
    for half in range(2):
        o = 8 * half
        for t in range(4):
            a(f"v_pk_add_f32 {vr(Z+o+2*t,2)}, {vr(Z+o+2*t,2)}, {vr(BI+o+2*t,2)}")
        for t in range(4):
            a(f"v_pk_mul_f32 {vr(G0+o+2*t,2)}, {vr(Z+o+2*t,2)}, {vr(Z+o+2*t,2)}")
        for t in range(4):
            a(f"v_pk_fma_f32 {vr(G0+o+2*t,2)}, {vr(G0+o+2*t,2)}, {sp(sU2)}, {vr(vT,2)} op_sel_hi:[1,0,0]")
        for t in range(4):
            a(f"v_pk_mul_f32 {vr(G0+o+2*t,2)}, {vr(G0+o+2*t,2)}, {vr(Z+o+2*t,2)}")
        for t in range(8):
            a(f"v_exp_f32 v{G0+o+t}, v{G0+o+t}")
        for t in range(4):
            a(f"v_pk_add_f32 {vr(G0+o+2*t,2)}, {vr(G0+o+2*t,2)}, 1.0 op_sel_hi:[1,0]")
        for t in range(8):
            a(f"v_rcp_f32 v{G0+o+t}, v{G0+o+t}")
        for t in range(4):
            a(f"v_pk_mul_f32 {vr(G0+o+2*t,2)}, {vr(G0+o+2*t,2)}, {vr(Z+o+2*t,2)}")
        for t in range(4):
            a(f"v_cvt_pk_bf16_f32 v{UO+4*half+t}, v{G0+o+2*t}, v{G0+o+2*t+1}")
        a(f"buffer_store_dwordx4 {vr(UO+4*half,4)}, v{vUS}, {srd(S_WS)}, 0 offen offset:{1024*half} sc1", tok='ust')
    a.run([stamp('u_st')])

    vCRW, vCRW2, vCRR, vCRR2, vZW, vZR, vZS, vZS2 = 25, 26, 27, 28, 29, 30, 31, 32
    cset2 = [f"s_mul_i32 s{sT0}, s{sT2}, {33*16}",
             f"s_lshl_b32 s{sT1}, s{sT3}, 4",
             f"s_add_u32 s{sT0}, s{sT0}, s{sT1}",
             f"s_add_u32 s{sT0}, s{sT0}, {L_CAR}",
             f"v_mov_b32 v{vCRW}, s{sT0}",
             f"v_lshl_add_u32 v{vCRR}, v0, 2, s{sT0}",
             f"s_lshl_b32 s{sT0}, s{sW}, 4",
             f"s_add_u32 s{sT0}, s{sT0}, {L_CAR + 2*33*16}",
             f"v_mov_b32 v{vCRW2}, s{sT0}",
             f"v_lshl_add_u32 v{vCRR2}, v0, 2, s{sT0}",
             f"s_mul_i32 s{sT0}, s{sW}, 3072",
             f"s_add_u32 s{sT0}, s{sT0}, {L_ZSTG}",
             f"v_lshl_add_u32 v{vZW}, v0, 1, s{sT0}",
             f"v_add_u32 v{vZR}, s{sT0}, v1",
             f"v_lshrrev_b32 v{vT}, 3, v0",
             f"v_and_b32 v{vT2}, 7, v0",
             f"v_lshlrev_b32 v{vT2}, 4, v{vT2}",
             f"v_lshl_add_u32 v{vZS}, v{vT}, 8, v{vT2}",
             f"v_lshl_add_u32 v{vZS2}, v{vT}, 9, v{vT2}",
             f"s_add_u32 s{sT0}, s{sC0}, s{sT2}",
             f"s_lshl_b32 s{sT0}, s{sT0}, 12",
             f"s_lshl_b32 s{sT1}, s{sT3}, 7",
             f"s_add_u32 s{sT0}, s{sT0}, s{sT1}",
             f"s_add_u32 s{sT0}, s{sT0}, {WS_Z}",
             f"v_add_u32 v{vZS}, s{sT0}, v{vZS}",
             f"s_lshl_b32 s{sT0}, s{sC0}, 12",
             f"s_lshl_b32 s{sT1}, s{sW}, 7",
             f"s_add_u32 s{sT0}, s{sT0}, s{sT1}",
             f"s_add_u32 s{sT0}, s{sT0}, {WS_Z + 8192}",
             f"s_bitcmp1_b32 s{sST}, 0\ns_cselect_b32 s{sT0}, s{sT0}, {OOB}",
             f"v_add_u32 v{vZS2}, s{sT0}, v{vZS2}"]
    vUL = 10
    vR2W = 15
    vR2R = 33
    g2set = [f"s_mul_i32 s{sT0}, s{sDT}, {5*48}",
             f"s_mul_i32 s{sT1}, s{sW}, 12",
             f"s_add_u32 s{sT0}, s{sT0}, s{sT1}",
             f"s_lshl_b32 s{sT0}, s{sT0}, 10",
             f"s_add_u32 s{sT0}, s{sT0}, {WS_U}",
             f"v_add_u32 v{vUL}, s{sT0}, v1"]
    for m in range(1, 5):
        g2set.append(f"v_add_u32 v{vUL+m}, {48*1024}, v{vUL+m-1}")
    for jn in range(1, 4):
        g2set += [f"s_xor_b32 s{sT0}, s{sW}, {jn}",
                  f"s_mul_i32 s{sT0}, s{sT0}, 3072",
                  f"s_add_u32 s{sT0}, s{sT0}, {L_RED + (jn-1)*1024}",
                  f"v_add_u32 v{vR2W+jn-1}, s{sT0}, v1"]
    g2set += [f"s_mul_i32 s{sT0}, s{sW}, 3072",
              f"s_add_u32 s{sT0}, s{sT0}, {L_RED}",
              f"v_add_u32 v{vR2R}, s{sT0}, v1",
              f"s_mul_i32 s{sT0}, s{sDT}, 5",
              f"s_lshr_b32 s{sT0}, s{sT0}, 2",
              f"s_mul_i32 s{sT0}, s{sT0}, 24",
              f"s_mul_i32 s{sT1}, s{sW}, 6",
              f"s_add_u32 s{sT0}, s{sT0}, s{sT1}",
              f"v_cmp_lt_u32 vcc, 5, v0",
              f"v_add_u32 v{vPO}, s{sT0}, v0",
              f"v_cndmask_b32_e64 v{vT}, 0, 18, vcc",
              f"v_add_u32 v{vPO}, v{vPO}, v{vT}",
              f"v_mul_u32_u24 v{vPO}, {FSU}, v{vPO}",
              f"v_add_u32 v{vPO}, {WS_FU}, v{vPO}"]

    def horner(slot, y):
        d = CACC + 4 * slot
        dp = "wave_shr:1 row_mask:0xf bank_mask:0xf bound_ctrl:0"
        return [f"v_add_f32_dpp v{d+2}, v{d+3}, v{d+2} {dp}",
                f"v_add_f32_dpp v{d+1}, v{d+2}, v{d+1} {dp}",
                f"v_add_f32_dpp v{y}, v{d+1}, v{d} {dp}"]

    def carry_w(part, tiles):
        def f(a):
            a(f"s_mov_b64 exec, {sp(sM63)}")
            for (g, k) in tiles:
                va, st = (vCRW, 32) if part == 1 else (vCRW2, 64)
                a(f"ds_write_b128 v{va}, {vr(CACC+4*(g % 8),4)} offset:{16 + st*k}", tok='carw')
            a("s_mov_b64 exec, -1")
        return f

    main = []
    tiles = [(1, m, m) for m in range(16)] + [(2, n, 2 * n + 1) for n in range(8)]
    pending_h = []
    for g, (part, k, m) in enumerate(tiles):
        d = vr(CACC + 4 * (g % 8), 4)
        mf = [f"v_mfma_f32_16x16x32_bf16 {d}, {vr(CA+4*c,4)}, {vr(cb_slot(part,m-c),4)}, {'0' if c == 0 else d}"
              for c in range(m + 1)]
        sd = []
        if part == 1 and m + CPRE < 16:
            sd += ca_read(1, m + CPRE) + cb_read(1, m + CPRE)
        if part == 2:
            for c in (2 * k + 6, 2 * k + 7):
                if c < 16:
                    sd += ca_read(2, c) + cb_read(2, c)
        hp, pending_h = pending_h, horner(g % 8, CY + g)
        if g % 4 == 1 and g > 4:
            pp = tiles[g - 5][0]
            hp = [carry_w(pp, [(q, tiles[q][1]) for q in range(g - 5, g - 1)])] + hp
        if part == 1 and m == 15:
            seq = []
            for c in range(16):
                seq.append(mf[c])
                if 1 <= c <= 6:
                    seq += ca_read(2, c - 1) + cb_read(2, c - 1)
                if c >= 8 and hp:
                    seq.append(hp.pop(0))
            main += seq
        else:
            main += merge(mf, sd + hp)
    main += pending_h
    main.append(carry_w(2, [(q, tiles[q][1]) for q in range(20, 24)]))

    w2s = []
    dr2 = 0
    while nx2 < min(NR, 12):
        w2s += w_issue('w2', nx2); nx2 += 1
    w2a = list(w2s)
    w2s = []
    uflag = [('wait', 'ust'), "s_barrier", stamp('barD'),
             f"s_mul_i32 s{sU5}, s{sDG}, 24\ns_add_u32 s{sU5}, s{sU5}, s{sFT}",
             flag_store(WS_FU, sU5, FSU, 'fu', guard=f"s_cmp_ge_u32 s{sID}, 30")]
    while dr2 < 12:
        w2s += w_drain('w2', dr2); dr2 += 1
        if nx2 < 12:
            w2s += w_issue('w2', nx2); nx2 += 1
        if dr2 == cfg.get('uflag_at', 2):
            w2s += uflag
        if dr2 == cfg.get('upoll_at', 10):
            w2s += ["\n".join(poll_issue('0xfff'))]
    stream = merge(main, w2a + cset2 + g2set, 0, 60)
    stream = merge(stream, w2s, 60, int(len(stream) * cfg.get('w2end', 0.97)))
    a.run(stream)
    a.run([stamp('conv_mfma')])
    NB2 = cfg.get('nb2', 8)
    UB = 192

    def u_load(n):
        m, j = divmod(n, 12)
        return f"buffer_load_dwordx4 {ar(UB+4*(n % NB2),4)}, v{vUL+m}, {srd(S_WS)}, s{TU+j} offen sc1"
    a.wait('carw')
    a("s_barrier")
    CR = 64
    a("s_mov_b64 exec, 7")
    for k in range(0, 16, 2):
        a(f"ds_read2_b32 {vr(CR+k,2)}, v{vCRR} offset0:{1+8*k} offset1:{1+8*(k+1)}")
    for k in range(0, 8, 2):
        a(f"ds_read2_b32 {vr(CR+16+k,2)}, v{vCRR2} offset0:{1+16*k} offset1:{1+16*(k+1)}")
    for k in range(0, 24, 2):
        a(f"v_pk_add_f32 {vr(CY+k,2)}, {vr(CY+k,2)}, {vr(CR+k,2)}")
    a("s_mov_b64 exec, -1")
    for k in range(0, 24, 2):
        a(f"v_cvt_pk_bf16_f32 v{CY+k}, v{CY+k}, v{CY+k+1}")
        a(f"ds_write_b16 v{vZW}, v{CY+k} offset:{128*k}")
        a(f"ds_write_b16_d16_hi v{vZW}, v{CY+k} offset:{128*(k+1)}", tok='zstg')
    ZO = 96
    for i in range(3):
        a(f"ds_read_b128 {vr(ZO+4*i,4)}, v{vZR} offset:{1024*i}")
    a(f"buffer_store_dwordx4 {vr(ZO,4)}, v{vZS}, {srd(S_WS)}, 0 offen sc1")
    a(f"buffer_store_dwordx4 {vr(ZO+4,4)}, v{vZS}, {srd(S_WS)}, 0 offen offset:2048 sc1")
    a(f"buffer_store_dwordx4 {vr(ZO+8,4)}, v{vZS2}, {srd(S_WS)}, 0 offen sc1", tok='zst')
    a.run([stamp('z_st')])
    a.run([poll_check('fu', '0xfff')])
    a.run([stamp('fu_ok')])
    for n in range(NB2):
        a(u_load(n))

    AC2 = (104, 116)
    OWN = 128
    RD2 = 148
    PP = 196
    QR, ZRg, ZL = 64, 76, 88
    vQO, vQO2, vZG, vZLW, vZT, vZT2, vGG, vOG, vB2 = 20, 21, 22, 23, 24, 25, 26, 28, 27
    side = {}
    e1 = [f"s_lshl_b32 s{sT0}, s{sST}, 6",
          f"s_lshl_b32 s{sT1}, s{sW}, 4",
          f"s_add_u32 s{sT0}, s{sT0}, s{sT1}",
          f"v_add_u32 v{vT}, s{sT0}, v{vI}",
          f"v_lshlrev_b32 v{vT2}, 1, v{vT}",
          f"global_load_ushort v{vB2}, v{vT2}, {sp(P_B2)}",
          f"v_mul_u32_u24 v{vT}, 1280, v{vT}",
          f"s_mul_i32 s{sT0}, s{sDT}, 160",
          f"v_add_u32 v{vT}, s{sT0}, v{vT}",
          f"v_lshl_add_u32 v{vQO}, v{vH}, 4, v{vT}",
          f"v_lshl_add_u32 v{vQO2}, v{vH}, 3, v{vT}",
          f"global_load_dwordx4 {vr(QR,4)}, v{vQO}, {sp(P_Q)}",
          f"global_load_dwordx4 {vr(QR+4,4)}, v{vQO}, {sp(P_Q)} offset:64",
          f"global_load_dwordx2 {vr(QR+8,2)}, v{vQO2}, {sp(P_Q)} offset:128",
          f"s_lshl_b32 s{sT0}, s{sST}, 8",
          f"s_lshl_b32 s{sT1}, s{sT2}, 7",
          f"s_add_u32 s{sT0}, s{sT0}, s{sT1}",
          f"s_lshl_b32 s{sT1}, s{sT3}, 4",
          f"s_add_u32 s{sT0}, s{sT0}, s{sT1}",
          f"s_add_u32 s{sT0}, s{sT0}, {WS_G}",
          f"v_lshlrev_b32 v{vT}, 5, v{vR}",
          f"v_lshl_add_u32 v{vT}, v{vC}, 2, v{vT}",
          f"buffer_load_dword v{vGG}, v{vT}, {srd(S_WS)}, s{sT0} offen sc1",
          f"v_lshrrev_b32 v{vT}, 3, v0",
          f"s_lshl_b32 s{sT0}, s{sW}, 3",
          f"v_add_u32 v{vT}, s{sT0}, v{vT}",
          f"v_and_b32 v{vT2}, 7, v0",
          f"v_lshlrev_b32 v{vT2}, 4, v{vT2}",
          f"v_lshl_add_u32 v{vZG}, v{vT}, 12, v{vT2}",
          f"v_mul_u32_u24 v{vT}, {PZ}, v{vT}",
          f"v_add_u32 v{vT}, v{vT}, v{vT2}",
          f"v_add_u32 v{vZLW}, {L_ZI}, v{vT}",
          f"s_mul_i32 s{sT0}, s{sDT}, {80*4096}",
          f"s_lshl_b32 s{sT1}, s{sST}, 7",
          f"s_add_u32 s{sT0}, s{sT0}, s{sT1}",
          f"s_add_u32 s{sU2}, s{sT0}, {WS_Z}",
          f"s_add_u32 s{sU3}, s{sU2}, {32*4096}",
          f"s_add_u32 s{sU4}, s{sU2}, {64*4096}",
          f"s_cmp_lt_u32 s{sW}, 2\ns_cselect_b32 s{sU4}, s{sU4}, {OOB}",
          f"v_lshl_add_u32 v{vT}, v{vH}, 3, v{vR}",
          f"v_mul_u32_u24 v{vT}, {PZ}, v{vT}",
          f"v_lshl_add_u32 v{vT2}, v{vH}, 2, v{vR}",
          f"v_mul_u32_u24 v{vT2}, {PZ}, v{vT2}",
          f"s_lshl_b32 s{sT0}, s{sW}, 5",
          f"s_add_u32 s{sT0}, s{sT0}, {L_ZI}",
          f"v_lshl_add_u32 v{vZT}, v{vC}, 3, s{sT0}",
          f"v_add_u32 v{vZT2}, v{vZT}, v{vT2}",
          f"v_add_u32 v{vZT}, v{vZT}, v{vT}",
          f"s_lshl_b32 s{sT0}, s{sDT}, 5",
          f"s_add_u32 s{sU5}, s{sT0}, s{sST}",
          f"v_add_u32 v{vPO}, s{sT0}, v0",
          f"v_mul_u32_u24 v{vPO}, {FSZ}, v{vPO}",
          f"v_add_u32 v{vPO}, {WS_FZ}, v{vPO}"]
    a.run(e1)
    ZF = cfg.get('zflag_at', 2)
    at(ZF, [('wait', 'zst'), "s_barrier", stamp('barF'), flag_store(WS_FZ, sU5, FSZ, 'fz')])
    pm = [f"v_lshlrev_b32 v{vB2}, 16, v{vB2}", f"v_sub_f32 v{vOG}, 1.0, v{vGG}", f"v_mul_f32 v{vB2}, v{vB2}, v{vOG}"]
    for k in range(10):
        pm += [f"v_lshlrev_b32 v{PP+2*k}, 16, v{QR+k}", f"v_and_b32 v{PP+2*k+1}, 0xffff0000, v{QR+k}",
               f"v_pk_mul_f32 {vr(PP+2*k,2)}, {vr(PP+2*k,2)}, {vr(vGG,2)} op_sel_hi:[1,0]"]
    for k in range(0, len(pm), 4):
        at(14 + k // 4, pm[k:k + 4])
    for m in range(4):
        for jn in range(1, 4):
            at(12 * (m + 1) + jn, [(f"ds_write_b128 v{vR2W+jn-1}, {vr(AC2[m & 1]+4*(jn-1),4)} offset:{m*12288}", 'r2w')])
    ZP = cfg.get('zpoll_at', 24)
    at(ZP, ["\n".join(poll_issue('0xffffffff'))])
    zl = [poll_check('fz', '0xffffffff'), stamp('fz_ok')]
    for i, so in enumerate((sU2, sU3, sU4)):
        zl.append(f"buffer_load_dwordx4 {vr(ZL+4*i,4)}, v{vZG}, {srd(S_WS)}, s{so} offen sc1")
    at(ZP + NB2, zl)
    zw = [(f"ds_write_b128 v{vZLW}, {vr(ZL+4*i,4)} offset:{i*32*PZ}", 'r2w') for i in range(3)]
    at(min(ZP + 2 * NB2 + 1, 51), zw)
    at(52, [('wait', 'r2w'), "s_barrier"])
    zr = []
    for m in range(5):
        va, off = (vZT, (32 * (m >> 1) + 4 * (m & 1)) * PZ) if m < 4 else (vZT2, 64 * PZ)
        zr.append(f"ds_read_b64_tr_b16 {vr(ZRg+2*m,2)}, v{va} offset:{off}")
    for m in range(4):
        for k in range(3):
            zr.append(f"ds_read_b128 {vr(RD2+12*m+4*k,4)}, v{vR2R} offset:{m*12288 + k*1024}")
    ZU = 216
    for k in range(10):
        zr += [f"v_lshlrev_b32 v{ZU+2*k}, 16, v{ZRg+k}", f"v_and_b32 v{ZU+2*k+1}, 0xffff0000, v{ZRg+k}",
               f"v_pk_fma_f32 {vr(PP+2*k,2)}, {vr(PP+2*k,2)}, {vr(ZU+2*k,2)}, {vr(vGG,2)} op_sel:[0,0,1] op_sel_hi:[1,1,1]"]
    for k in range(0, len(zr), 7):
        at(53 + k // 7, zr[k:k + 7])

    def fin(m):
        it = []
        for k in range(3):
            for hh in range(2):
                it.append(f"v_pk_add_f32 {vr(OWN+4*m+2*hh,2)}, {vr(OWN+4*m+2*hh,2)}, {vr(RD2+12*(m % 4)+4*k+2*hh,2)}")
        for hh in range(2):
            it.append(f"v_pk_fma_f32 {vr(PP+4*m+2*hh,2)}, {vr(OWN+4*m+2*hh,2)}, {vr(vOG,2)}, {vr(PP+4*m+2*hh,2)} op_sel_hi:[1,0,1]")
        for hh in range(2):
            it.append(f"v_cvt_pk_bf16_f32 v{QR+2*m+hh}, v{PP+4*m+2*hh}, v{PP+4*m+2*hh+1}")
        return it

    for n in range(60):
        m, j = divmod(n, 12)
        for jn in range(4):
            d = vr(OWN + 4 * m, 4) if jn == 0 else vr(AC2[m & 1] + 4 * (jn - 1), 4)
            a(f"v_mfma_f32_16x16x32_bf16 {d}, {ar(UB+4*(n % NB2),4)}, {ar(16*j+4*jn,4)}, {'0' if j == 0 else d}")
        if n + NB2 < 60:
            a(u_load(n + NB2))
        a.run(side.get(n, []))
        if n == 0:
            a.run([stamp('g2_first')])
    a.run([stamp('g2_mfma')])
    a.run(fin(0))
    for jn in range(1, 4):
        a(f"ds_write_b128 v{vR2W+jn-1}, {vr(AC2[0]+4*(jn-1),4)} offset:{4*12288}", tok='r2w')
    a.run(fin(1))
    a(f"global_store_dwordx4 v{vQO}, {vr(QR,4)}, {sp(P_OUT)}")
    a.wait('r2w')
    a("s_barrier")
    for k in range(3):
        a(f"ds_read_b128 {vr(RD2+4*k,4)}, v{vR2R} offset:{4*12288 + k*1024}")
    a.run(fin(2) + fin(3))
    a(f"global_store_dwordx4 v{vQO}, {vr(QR+4,4)}, {sp(P_OUT)} offset:64")
    a.run(fin(4))
    a(f"global_store_dwordx2 v{vQO2}, {vr(QR+8,2)}, {sp(P_OUT)} offset:128")
    a.run([stamp('end')])
    if stamps:
        a.wait_all()
        a.run([stamp('drained')])
        a("s_memrealtime s[98:99]")
        a(f"v_writelane_b32 v255, s96, 30")
        a(f"v_writelane_b32 v255, s98, 31")
        for k in range(3):
            a(f"v_readlane_b32 s{sT0}, v254, {k}")
            a(f"v_writelane_b32 v255, s{sT0}, {27+k}")
        a(f"s_lshl_b32 s{sT0}, s2, 2")
        a(f"s_add_u32 s{sT0}, s{sT0}, s{sW}")
        a(f"s_lshl_b32 s{sT0}, s{sT0}, 7")
        a(f"s_add_u32 s{sT0}, s{sT0}, {WS_DBG}")
        a(f"v_lshlrev_b32 v{vT}, 2, v0")
        a("s_mov_b32 exec_hi, 0")
        a(f"buffer_store_dword v255, v{vT}, {srd(S_WS)}, s{sT0} offen")
    a.label("L_end")
    a("s_endpgm")

    ref = open(f"cdna_kernels/{NAME}.s.ref").read().split('\n')
    head = [l for l in ref if l.startswith(';') and '@launch' not in l and 'Override' not in l and 'grid=ceil' not in l]
    txt = '\n'.join(head) + f"\n; @launch grid=(256,1,1) block=(256,1,1) lds={L_END}\n"
    txt += f""".amdgcn_target "amdgcn-amd-amdhsa--gfx950"
.text
.globl {NAME}_kernel
.p2align 8
.type {NAME}_kernel,@function
{NAME}_kernel:
"""
    txt += a.text()
    txt += f""".section .rodata,"a"
.p2align 6
.amdhsa_kernel {NAME}_kernel
  .amdhsa_next_free_vgpr 512
  .amdhsa_next_free_sgpr 102
  .amdhsa_accum_offset 256
  .amdhsa_group_segment_fixed_size 0
  .amdhsa_kernarg_size 120
  .amdhsa_user_sgpr_count 2
  .amdhsa_user_sgpr_kernarg_segment_ptr 1
  .amdhsa_system_sgpr_workgroup_id_x 1
  .amdhsa_float_denorm_mode_32 3
.end_amdhsa_kernel
"""
    return txt, dict(n_ins=a.n_ins, n_nop=a.n_nop, stamps=STAMPS)


if __name__ == "__main__":
    import json
    out = sys.argv[1]
    cfg = json.loads(sys.argv[2]) if len(sys.argv) > 2 else {}
    txt, info = gen(cfg)
    open(out, 'w').write(txt)
    print(out, info)
```

```python
import sys
from asmlib import Asm, merge

NAME = "gated_mix__ssm_conv_h3__mixer_token_mlp__prompt"

WS_H, WS_U, WS_KV, WS_Z, WS_G = 0x0, 0x280000, 0x480000, 0x700000, 0x980000
WS_F1, WS_FU, WS_FZ, WS_EP, WS_DBG = 0x990000, 0x9A0000, 0x9B0000, 0x9C0000, 0x9D0000
WS_SIZE = 0xA00000
OOB = 0x7F000000
TAGC = 0x9E3779B9

NR = 4
L_RING = 0
L_RED = 65536
PL = 1344
L_LN = L_RED
L_KI = L_LN + 8 * PL
L_VI = L_KI + 11584
L_ZSTG = L_RED + 4 * 12288
L_CK = L_RED + 61440
KP, KPAD = 4224, 96
L_CX = L_CK + 3 * KP
XP, XPAD = 4544, 448
L_CAR = L_CX + 3 * XP
L_END = L_CAR + 1600
L_ZI = L_CK
PZ = 144

S_WS, S_K, S_V, S_W1, S_W2, S_SSM, S_D = 4, 8, 12, 16, 20, 24, 28
P_Q, P_SH, P_B1, P_B2, P_GW, P_OUT = 36, 42, 54, 58, 60, 62
TK = 68
sW, sXC, sID, sDG, sFT, sDT, sST, sTAG, sP, sRING, sOWN, sC0 = range(84, 96)
sT0, sT1, sT2, sT3 = 32, 33, 34, 35
sU0, sU1, sU2, sU3, sU4, sU5 = 44, 45, 46, 47, 48, 49
sM63 = 50
sCNT = 3


def srd(n):
    return f"s[{n}:{n+3}]"


def sp(n):
    return f"s[{n}:{n+1}]"


def vr(n, k):
    return f"v[{n}:{n+k-1}]"


def ar(n, k):
    return f"a[{n}:{n+k-1}]"


def setexec(mask):
    return "s_mov_b32 exec_hi, 0" if mask == '0xffffffff' else f"s_mov_b64 exec, {mask}"


def gen(cfg):
    a = Asm()
    stamps = cfg.get('stamps', False)
    FS1, FSU, FSZ = cfg.get('fs1', 16), cfg.get('fsu', 64), cfg.get('fsz', 64)
    NB = cfg.get('nb', 8)
    cold = cfg.get('cold', '')
    wpol = cfg.get('wpol', '')
    nstamp = [0]

    amp = cfg.get('amp')
    def stamp(name):
        def f(a):
            if amp:
                op = 's_memrealtime' if amp[3] == 'r' else 's_memtime'
                if name == amp[0]:
                    a(f"{op} s[96:97]")
                if name == amp[1]:
                    a(f"{op} s[98:99]")
            if not stamps:
                return
            a("s_memtime s[98:99]")
            a(f"v_writelane_b32 v255, s98, {nstamp[0]}")
            STAMPS.append(name)
            nstamp[0] += 1
        return f
    STAMPS = []

    a("s_load_dwordx16 s[36:51], s[0:1], 0")
    a("s_load_dwordx16 s[52:67], s[0:1], 56")
    if stamps:
        a("s_memrealtime s[96:97]")
    else:
        a.run([stamp('entry')])
    a("s_cmp_ge_u32 s2, 256")
    a("s_cbranch_scc1 L_end")
    a("v_lshrrev_b32 v1, 6, v0")
    a("v_and_b32 v0, 63, v0")
    a(f"v_readfirstlane_b32 s{sW}, v1")
    a(f"s_and_b32 s{sXC}, s2, 7")
    a(f"s_lshr_b32 s{sID}, s2, 3")
    a(f"s_lshl_b32 s{sP}, s{sXC}, 5")
    a(f"s_add_u32 s{sP}, s{sP}, s{sID}")
    a(f"s_lshr_b32 s{sT0}, s{sP}, 2")
    a(f"s_lshl_b32 s{sT0}, s{sT0}, 5")
    a(f"s_and_b32 s{sT1}, s{sP}, 3")
    a(f"s_lshl_b32 s{sT1}, s{sT1}, 2")
    a(f"s_add_u32 s{sT0}, s{sT0}, s{sT1}")
    a(f"s_lshr_b32 s{sT2}, s{sW}, 1")
    a(f"s_and_b32 s{sT3}, s{sW}, 1")
    a(f"s_lshl_b32 s{sT1}, s{sT2}, 4")
    a(f"s_add_u32 s{sT0}, s{sT0}, s{sT1}")
    a(f"s_lshl_b32 s{sT1}, s{sT3}, 1")
    a(f"s_add_u32 s{sT0}, s{sT0}, s{sT1}")
    vHW, vL32, vQ, vQ3, vG, vG3 = 10, 11, 12, 13, 14, 15
    a(f"v_lshrrev_b32 v{vHW}, 5, v0")
    a(f"v_and_b32 v{vL32}, 31, v0")
    a(f"v_add_u32 v{vQ}, s{sT0}, v{vHW}")
    a(f"v_mul_u32_u24 v{vQ}, 1280, v{vQ}")
    a(f"v_lshlrev_b32 v{vG}, 4, v{vL32}")
    a(f"v_lshlrev_b32 v{vG3}, 3, v{vL32}")
    a(f"v_add_u32 v{vQ3}, v{vQ}, v{vG3}")
    a(f"v_add_u32 v{vQ}, v{vQ}, v{vG}")
    a("v_lshlrev_b32 v1, 4, v0")
    for (s, n) in ((S_WS, WS_SIZE), (S_K, 2621440), (S_V, 2621440), (S_W1, 6291456), (S_W2, 6291456),
                   (S_SSM, 2621440), (S_D, 1280)):
        a(f"s_mov_b32 s{s+2}, {n}")
        a(f"s_mov_b32 s{s+3}, 0x20000")
    a(f"s_mul_i32 s{sT0}, s{sID}, 52")
    a(f"s_lshr_b32 s{sT0}, s{sT0}, 8")
    a(f"s_mul_i32 s{sT1}, s{sT0}, 5")
    a(f"s_sub_u32 s{sT1}, s{sID}, s{sT1}")
    a(f"s_min_u32 s{sT0}, s{sT0}, 5")
    a(f"s_and_b32 s{sDT}, s{sXC}, 1")
    a(f"s_lshr_b32 s{sST}, s{sXC}, 1")
    a(f"s_mul_i32 s{sDG}, s{sDT}, 5")
    a(f"s_add_u32 s{sDG}, s{sDG}, s{sT1}")
    a(f"s_mul_i32 s{sFT}, s{sST}, 6")
    a(f"s_add_u32 s{sFT}, s{sFT}, s{sT0}")
    a(f"s_lshl_b32 s{sT1}, s{sT1}, 1")
    a(f"s_add_u32 s{sT1}, s{sT1}, s{sDT}")
    a(f"s_mul_i32 s{sT1}, s{sT1}, 410")
    a(f"s_lshr_b32 s{sT1}, s{sT1}, 8")
    a(f"s_mul_i32 s{sCNT}, s{sT0}, {cfg.get('rotf', 3)}")
    a(f"s_add_u32 s{sT1}, s{sT1}, s{sCNT}")
    a(f"s_add_u32 s{sOWN}, s{sW}, s{sT0}")
    a(f"s_and_b32 s{sOWN}, s{sOWN}, 3")
    a(f"s_lshl_b32 s{sT1}, s{sT1}, 10")
    XR, GR = 16, 26
    a(f"global_load_dwordx4 {vr(XR,4)}, v{vQ}, {sp(P_Q)}")
    a(f"global_load_dwordx4 {vr(XR+4,4)}, v{vQ}, {sp(P_Q)} offset:512")
    a(f"global_load_dwordx2 {vr(XR+8,2)}, v{vQ3}, {sp(P_Q)} offset:1024")
    a(f"global_load_dwordx4 {vr(GR,4)}, v{vG}, {sp(P_GW)}")
    a(f"global_load_dwordx4 {vr(GR+4,4)}, v{vG}, {sp(P_GW)} offset:512")
    a(f"global_load_dwordx2 {vr(GR+8,2)}, v{vG3}, {sp(P_GW)} offset:1024")
    a.run([stamp('start')])
    for (s, p) in ((S_WS, 66), (S_K, 38), (S_V, 40), (S_W1, 50), (S_W2, 56), (S_SSM, 44), (S_D, 46)):
        a(f"s_mov_b64 {sp(s)}, {sp(p)}")
    for j in range(16):
        a(f"s_and_b32 s{TK+j}, s{sT1}, 0x3c00")
        if j < 15:
            a(f"s_add_u32 s{sT1}, s{sT1}, 1024")
    a(f"s_lshl_b32 s{sDT}, s{sDT}, 2")
    a(f"s_and_b32 s{sT0}, s{sID}, 3")
    a(f"s_add_u32 s{sDT}, s{sDT}, s{sT0}")
    a(f"s_lshl_b32 s{sST}, s{sST}, 3")
    a(f"s_lshr_b32 s{sT0}, s{sID}, 2")
    a(f"s_add_u32 s{sST}, s{sST}, s{sT0}")
    a(f"s_mul_i32 s{sRING}, s{sW}, {NR*4096}")
    a(f"s_mov_b32 s{sM63}, 0")
    a(f"s_mov_b32 s{sM63+1}, 0x80000000")
    vEP = 36
    a("v_mov_b32 v2, 0")
    a(f"s_mov_b32 s{sT0}, {WS_EP}")
    a("s_mov_b64 exec, 1")
    a(f"buffer_load_dword v{vEP}, v2, {srd(S_WS)}, s{sT0} offen sc1")
    a("s_mov_b64 exec, -1")
    vH, vI, vR, vC = 37, 38, 39, 40
    a(f"v_lshrrev_b32 v{vH}, 4, v0")
    a(f"v_and_b32 v{vI}, 15, v0")
    a(f"v_bfe_u32 v{vR}, v0, 2, 2")
    a(f"v_and_b32 v{vC}, 3, v0")
    vKo, vT, vT2 = 41, 42, 43
    a(f"v_mul_u32_u24 v{vT}, 26, v0")
    a(f"v_lshrrev_b32 v{vT}, 8, v{vT}")
    a(f"v_mul_u32_u24 v{vT2}, 10, v{vT}")
    a(f"v_sub_u32 v{vT2}, v0, v{vT2}")
    a(f"v_mul_u32_u24 v{vT}, 1280, v{vT}")
    a(f"v_lshl_add_u32 v{vKo}, v{vT2}, 4, v{vT}")
    a(f"s_lshl_b32 s{sT0}, s{sST}, 6")
    a(f"s_mul_i32 s{sT1}, s{sW}, 18")
    a(f"s_add_u32 s{sT0}, s{sT0}, s{sT1}")
    a(f"s_mul_i32 s{sT0}, s{sT0}, 1280")
    a(f"s_mul_i32 s{sT1}, s{sDT}, 160")
    a(f"s_add_u32 s{sT0}, s{sT0}, s{sT1}")
    a(f"s_mul_i32 s{sT1}, s{sW}, 2880")
    for i in range(3):
        a(f"s_add_u32 s{sU0}, s{sT0}, {(i*6-4)*1280 & 0xffffffff}")
        a(f"v_add_u32 v{vT}, s{sU0}, v{vKo}")
        a(f"s_add_u32 m0, s{sT1}, {L_KI + i*960}")
        a(f"buffer_load_dwordx4 v{vT}, {srd(S_K)}, 0 offen {cold} lds")
    for i in range(3):
        a(f"s_add_u32 s{sU0}, s{sT0}, {i*6*1280}")
        a(f"s_add_u32 m0, s{sT1}, {L_VI + i*960}")
        a(f"buffer_load_dwordx4 v{vKo}, {srd(S_V)}, s{sU0} offen {cold} lds", tok='kvdma')
    CF = 44
    vCH = 50
    a(f"s_mul_i32 s{sT0}, s{sDT}, 80")
    a(f"s_lshl_b32 s{sT1}, s{sT2}, 4")
    a(f"s_add_u32 s{sT1}, s{sT1}, s{sT0}")
    a(f"v_add_u32 v{vCH}, s{sT1}, v{vI}")
    a(f"v_lshlrev_b32 v{vT}, 3, v{vCH}")
    a(f"v_add_lshl_u32 v{vT2}, s{sT0}, v{vI}, 3")
    a(f"global_load_dwordx2 {vr(CF,2)}, v{vT}, {sp(P_SH)}")
    a(f"global_load_dwordx2 {vr(CF+2,2)}, v{vT}, {sp(P_SH)} offset:256")
    a(f"global_load_dwordx2 {vr(CF+4,2)}, v{vT2}, {sp(P_SH)} offset:512")
    a(f"s_lshr_b32 s{sT1}, s{sST}, 1")
    a(f"s_mul_i32 s{sT1}, s{sT1}, 5")
    a(f"s_add_u32 s{sC0}, s{sT0}, s{sT1}")
    a(f"s_and_b32 s{sT1}, s{sST}, 1")
    a(f"s_lshl_b32 s{sT1}, s{sT1}, 1")
    a(f"s_add_u32 s{sC0}, s{sC0}, s{sT1}")

    VW, VT = 2, 6

    def weight_addr(pitch, sbase, xorw):
        it = []
        it.append(f"v_lshrrev_b32 v{vT}, 3, v0")
        it.append(f"v_and_b32 v{vT2}, 6, v{vT}")
        it.append(f"v_xor_b32 v{vT2}, v{vT2}, v0")
        it.append(f"v_and_b32 v{vT2}, 7, v{vT2}")
        it.append(f"v_mul_u32_u24 v{vT}, {pitch}, v{vT}")
        it.append(f"v_lshl_add_u32 v{vT}, v{vT2}, 4, v{vT}")
        it.append(f"v_add_u32 v{VW}, s{sbase}, v{vT}")
        for i in range(1, 4):
            it.append(f"v_add_u32 v{VW+i}, {8*pitch-1024}, v{VW+i-1}")
        it.append(f"v_lshrrev_b32 v{vT}, 2, v0")
        it.append(f"v_lshlrev_b32 v{vT}, 7, v{vT}")
        it.append(f"v_lshl_add_u32 v{vT}, v{vC}, 3, v{vT}")
        it.append(f"v_bfe_u32 v{vT2}, v0, 3, 2")
        if xorw:
            it.append(f"v_xor_b32 v{vT2}, s{sW}, v{vT2}")
        it.append(f"v_lshl_add_u32 v{vT}, v{vT2}, 5, v{vT}")
        it.append(f"v_add_u32 v{VT}, s{sRING}, v{vT}")
        for t in range(1, 4):
            it.append(f"v_xor_b32 v{VT+t}, {t*32}, v{VT}")
        return it

    def w_issue(which, j):
        it = []
        if j >= NR:
            it.append(('wait', f'{which}r{j-NR}'))
        if which == 'w1':
            it.append(f"s_mul_i32 s{sU1}, s{TK+j}, 96")
        else:
            it.append(f"s_lshl_b32 s{sU1}, s{TU+j}, 7")
        it.append(f"s_add_u32 m0, s{sRING}, {(j % NR)*4096}")
        s = S_W1 if which == 'w1' else S_W2
        for i in range(4):
            it.append((f"buffer_load_dwordx4 v{VW+i}, {srd(s)}, s{sU1} offen offset:{i*1024} {wpol} lds", f'{which}d{j}'))
        return it

    def w_drain(which, j):
        it = [('wait', f'{which}d{j}')]
        for t in range(4):
            for e2 in range(2):
                it.append((f"ds_read_b64_tr_b16 {ar(16*j+4*t+2*e2,2)}, v{VT+t} offset:{(j % NR)*4096 + e2*2048}", f'{which}r{j}'))
        return it

    a(f"s_mul_i32 s{sT0}, s{sW}, {512*3072}")
    a(f"s_lshl_b32 s{sT1}, s{sFT}, 7")
    a(f"s_add_u32 s{sT0}, s{sT0}, s{sT1}")
    a.run(weight_addr(3072, sT0, False))
    PRE = cfg.get('pre', 1)
    for j in range(PRE):
        a.run(w_issue('w1', j))

    a("v_mov_b32 v60, 0\nv_mov_b32 v61, 0\nv_mov_b32 v62, 0\nv_mov_b32 v63, 0")
    a(f"s_min_u32 s{sT0}, s{sW}, 2")
    a(f"s_mul_i32 s{sT1}, s{sT0}, {XP}")
    a(f"s_add_u32 s{sT1}, s{sT1}, {L_CX}")
    a(f"v_add_u32 v{vT}, s{sT1}, v1")
    a(f"s_mul_i32 s{sT1}, s{sT0}, {KP}")
    a(f"s_add_u32 s{sT1}, s{sT1}, {L_CK}")
    a(f"v_add_u32 v{vT2}, s{sT1}, v1")
    a(f"s_mul_i32 s{sT1}, s{sT0}, {33*16}")
    a(f"s_add_u32 s{sT1}, s{sT1}, {L_CAR}")
    a(f"v_mov_b32 v59, s{sT1}")
    a(f"s_mov_b64 exec, {hex((1 << (XPAD//16)) - 1)}")
    a(f"ds_write_b128 v{vT}, v[60:63]")
    a(f"s_mov_b64 exec, {hex((1 << (KPAD//16)) - 1)}")
    a(f"ds_write_b128 v{vT2}, v[60:63]")
    a("s_mov_b64 exec, 1")
    a(f"ds_write_b128 v59, v[60:63]")
    a("s_mov_b64 exec, -1")

    vLW, vLW3, vA1, vA2, vHS, vGS, vKVA, vKVS = 51, 52, 53, 54, 55, 56, 57, 58
    a(f"s_lshl_b32 s{sT0}, s{sW}, 1")
    a(f"v_add_u32 v{vT}, s{sT0}, v{vHW}")
    a(f"s_lshl_b32 s{sT0}, s{sP}, 3")
    a(f"v_add_lshl_u32 v{vGS}, s{sT0}, v{vT}, 2")
    a(f"v_mul_u32_u24 v{vT}, {PL}, v{vT}")
    a(f"v_add_u32 v{vT}, {L_LN}, v{vT}")
    a(f"v_add_u32 v{vLW}, v{vT}, v{vG}")
    a(f"v_add_u32 v{vLW3}, v{vT}, v{vG3}")
    a(f"v_mul_u32_u24 v{vT}, {PL}, v{vR}")
    a(f"v_mul_u32_u24 v{vT2}, 160, v{vH}")
    a(f"v_add_u32 v{vT}, v{vT}, v{vT2}")
    a(f"s_lshl_b32 s{sT0}, s{sT2}, 6")
    a(f"s_lshl_b32 s{sT1}, s{sT3}, 3")
    a(f"s_add_u32 s{sT0}, s{sT0}, s{sT1}")
    a(f"s_add_u32 s{sT0}, s{sT0}, {L_LN}")
    a(f"v_lshl_add_u32 v{vA1}, v{vC}, 4, v{vT}")
    a(f"v_add_u32 v{vA1}, s{sT0}, v{vA1}")
    a(f"s_mul_i32 s{sT0}, s{sT3}, 640")
    a(f"s_add_u32 s{sT0}, s{sT0}, {L_LN + 128}")
    a(f"v_lshl_add_u32 v{vA2}, v{vC}, 3, v{vT}")
    a(f"v_add_u32 v{vA2}, s{sT0}, v{vA2}")
    a(f"v_mul_u32_u24 v{vHS}, {5*65536}, v{vH}")
    a(f"v_lshl_add_u32 v{vHS}, v{vI}, 4, v{vHS}")
    a(f"s_lshl_b32 s{sT0}, s{sP}, 8")
    a(f"s_lshl_b32 s{sT1}, s{sW}, 16")
    a(f"s_add_u32 s{sU2}, s{sT0}, s{sT1}")
    a(f"s_add_u32 s{sU3}, s{sU2}, {20*65536}")
    a(f"s_mul_i32 s{sT1}, s{sT3}, {20*65536}")
    a(f"s_add_u32 s{sU4}, s{sT0}, s{sT1}")
    a(f"s_add_u32 s{sU4}, s{sU4}, {4*65536}")
    a(f"s_cmp_ge_u32 s{sW}, 2")
    a(f"s_cselect_b32 s{sU4}, s{sU4}, {OOB}")
    a(f"v_lshl_add_u32 v{vT}, v{vH}, 3, v{vR}")
    a(f"v_mul_u32_u24 v{vT}, 160, v{vT}")
    a(f"v_lshl_add_u32 v{vT}, v{vC}, 3, v{vT}")
    a(f"s_mul_i32 s{sT0}, s{sT3}, {32*160}")
    a(f"s_lshl_b32 s{sT1}, s{sT2}, 5")
    a(f"s_add_u32 s{sT0}, s{sT0}, s{sT1}")
    a(f"s_add_u32 s{sT0}, s{sT0}, {L_KI}")
    a(f"v_add_u32 v{vKVA}, s{sT0}, v{vT}")
    a(f"v_lshlrev_b32 v{vKVS}, 12, v{vCH}")
    a(f"v_lshl_add_u32 v{vKVS}, v{vH}, 4, v{vKVS}")
    a(f"s_lshl_b32 s{sT0}, s{sST}, 7")
    a(f"s_lshl_b32 s{sT1}, s{sT3}, 6")
    a(f"s_add_u32 s{sT0}, s{sT0}, s{sT1}")
    a(f"s_add_u32 s{sT0}, s{sT0}, {WS_KV}")
    a(f"v_add_u32 v{vKVS}, s{sT0}, v{vKVS}")

    S1, S2, S3, TT = 64, 65, 66, 67
    XF = 72
    a(f"s_mov_b32 s{sT0}, 0x3f803f80")
    for i in range(10):
        c = lambda r: "0" if i == 0 else f"v{r}"
        a(f"v_dot2_f32_bf16 v{S1}, v{XR+i}, s{sT0}, {c(S1)}")
        a(f"v_dot2_f32_bf16 v{S2}, v{XR+i}, v{XR+i}, {c(S2)}")
    a.run([stamp('q_in')])
    for i in range(10):
        a(f"v_dot2_f32_bf16 v{S3}, v{XR+i}, v{GR+i}, {'0' if i == 0 else f'v{S3}'}")
    unp = []
    for i in range(10):
        unp.append(f"v_lshlrev_b32 v{XF+2*i}, 16, v{XR+i}")
        unp.append(f"v_and_b32 v{XF+2*i+1}, 0xffff0000, v{XR+i}")
    a(unp.pop(0))
    for m in ("quad_perm:[1,0,3,2]", "quad_perm:[2,3,0,1]", "row_half_mirror", "row_mirror"):
        for s in (S1, S2, S3):
            a(f"v_add_f32_dpp v{s}, v{s}, v{s} {m} row_mask:0xf bank_mask:0xf")
    for k, s in enumerate((S1, S2, S3)):
        a(f"v_mov_b32 v{TT+k}, v{s}")
    for k, s in enumerate((S1, S2, S3)):
        a(f"v_permlane16_swap_b32 v{s}, v{TT+k}")
    for k, s in enumerate((S1, S2, S3)):
        a(f"v_add_f32 v{s}, v{s}, v{TT+k}")
    vRS, vNM = 70, 92
    inv = 0x3ACCCCCD
    a(f"v_mul_f32 v{S1}, {hex(inv)}, v{S1}")
    a(f"v_mul_f32 v{S2}, {hex(inv)}, v{S2}")
    a(f"v_mul_f32 v{S3}, 0xbfb8aa3b, v{S3}")
    a(f"v_fma_f32 v{S2}, -v{S1}, v{S1}, v{S2}")
    a(f"v_exp_f32 v{S3}, v{S3}")
    a(f"v_max_f32 v{S2}, 0, v{S2}")
    a(f"v_add_f32 v{S2}, 0x3727c5ac, v{S2}")
    a(f"v_rsq_f32 v{vRS}, v{S2}")
    a(f"v_add_f32 v{S3}, 1.0, v{S3}")
    a(f"v_rcp_f32 v{S3}, v{S3}")
    a(f"v_mul_f32_e64 v{vNM}, -v{S1}, v{vRS}")
    for u in unp:
        a(u)
    for i in range(10):
        a(f"v_pk_fma_f32 {vr(XF+2*i,2)}, {vr(XF+2*i,2)}, {vr(vRS,2)}, {vr(vNM,2)} op_sel_hi:[1,0,0]")
    for i in range(10):
        a(f"v_cvt_pk_bf16_f32 v{XR+i}, v{XF+2*i}, v{XF+2*i+1}")
        if i == 3:
            a(f"ds_write_b128 v{vLW}, {vr(XR,4)}")
        if i == 7:
            a(f"ds_write_b128 v{vLW}, {vr(XR+4,4)} offset:512")
    a(f"ds_write_b64 v{vLW3}, {vr(XR+8,2)} offset:1024")
    a(f"s_mov_b32 s{sT0}, {WS_G}")
    a(f"s_mov_b32 exec_lo, 1")
    a(f"s_mov_b32 exec_hi, 1")
    a(f"buffer_store_dword v{S3}, v{vGS}, {srd(S_WS)}, s{sT0} offen sc1")
    a("s_mov_b64 exec, -1")
    a.wait('kvdma')
    a.wait_all(vm=False)
    a("s_barrier")
    a.run([stamp('barA')])
    HB = 64
    for u, (va, off) in enumerate(((vA1, 0), (vA1, 640), (vA2, 0))):
        for e2 in range(2):
            a(f"ds_read_b64_tr_b16 {vr(HB+4*u+2*e2,2)}, v{va} offset:{off + e2*4*PL}")
    KR = 80

    def kv_reads(u):
        it = []
        off = (64, 0)[0] * u if u < 2 else 128
        for j in range(3):
            it.append(f"ds_read_b64_tr_b16 {vr(KR+10*u+2*j,2)}, v{vKVA} offset:{off + j*640}")
        for j in range(2):
            it.append(f"ds_read_b64_tr_b16 {vr(KR+10*u+6+2*j,2)}, v{vKVA} offset:{off + j*640 + (L_VI-L_KI)}")
        return it
    for u in range(3):
        a.run(kv_reads(u))
    for u, so in enumerate((sU2, sU3, sU4)):
        a(f"buffer_store_dwordx4 {vr(HB+4*u,4)}, v{vHS}, {srd(S_WS)}, s{so} offen sc1")
    a(f"v_readfirstlane_b32 s{sTAG}, v{vEP}")
    a(f"s_add_u32 s{sTAG}, s{sTAG}, {hex(TAGC)}")

    def kv_compute(u):
        it = []
        k = KR + 10 * u
        c10, c32 = CF + 2 * u, CF + 2 * u + 1
        SH, AC, VF, OUT = 112, 120, 128, 136 + 4 * u
        it.append(f"v_alignbit_b32 v{c10}, v{c10}, v{c10}, 16")
        it.append(f"v_alignbit_b32 v{c32}, v{c32}, v{c32}, 16")
        for n in range(5):
            it.append(f"v_alignbit_b32 v{SH+n}, v{k+n+1}, v{k+n}, 16")
        for e in range(8):
            if e & 1:
                lo, hi = k + (e + 1) // 2, k + (e + 3) // 2
            else:
                lo, hi = SH + e // 2, SH + e // 2 + 1
            it.append(f"v_dot2_f32_bf16 v{AC+e}, v{lo}, v{c32}, 0")
        for e in range(8):
            if e & 1:
                lo, hi = k + (e + 1) // 2, k + (e + 3) // 2
            else:
                lo, hi = SH + e // 2, SH + e // 2 + 1
            it.append(f"v_dot2_f32_bf16 v{AC+e}, v{hi}, v{c10}, v{AC+e}")
        for n in range(4):
            it.append(f"v_lshlrev_b32 v{VF+2*n}, 16, v{k+6+n}")
            it.append(f"v_and_b32 v{VF+2*n+1}, 0xffff0000, v{k+6+n}")
        for n in range(4):
            it.append(f"v_pk_mul_f32 {vr(AC+2*n,2)}, {vr(AC+2*n,2)}, {vr(VF+2*n,2)}")
        for n in range(4):
            it.append(f"v_cvt_pk_bf16_f32 v{OUT+n}, v{AC+2*n}, v{AC+2*n+1}")
        if u < 2:
            it.append(f"s_mov_b32 s{sT0}, {u*32*4096}")
        else:
            it.append(f"s_cmp_lt_u32 s{sW}, 2")
            it.append(f"s_cselect_b32 s{sT0}, {64*4096}, s{sT1}")
        it.append((f"buffer_store_dwordx4 {vr(OUT,4)}, v{vKVS}, {srd(S_WS)}, s{sT0} offen sc1", 'kvst'))
        return it
    a(f"s_mov_b32 s{sT1}, {OOB}")
    nxt = PRE
    drn = 0
    for u in range(3):
        if nxt < NR:
            a.run(w_issue('w1', nxt)); nxt += 1
        a.run(kv_compute(u))
    a.run([stamp('kv_done')])
    KL, DL = 96, 108
    a(f"s_lshl_b32 s{sT0}, s{sC0}, 12")
    a(f"s_lshl_b32 s{sT1}, s{sW}, 10")
    a(f"s_add_u32 s{sU2}, s{sT0}, s{sT1}")
    a(f"s_add_u32 s{sU3}, s{sU2}, 4096")
    a(f"s_add_u32 s{sU4}, s{sU2}, 8192")
    a(f"s_bitcmp1_b32 s{sST}, 0")
    a(f"s_cselect_b32 s{sU4}, s{sU4}, {OOB}")
    a(f"v_or_b32 v{vT}, s{sW}, v0")
    a(f"v_cmp_eq_u32 vcc, 0, v{vT}")
    a(f"s_lshl_b32 s{sT0}, s{sC0}, 1")
    a(f"v_mov_b32 v{vT}, {OOB}")
    a(f"v_mov_b32 v{vT2}, s{sT0}")
    a(f"v_cndmask_b32 v{vT}, v{vT}, v{vT2}, vcc")
    for cs, so in enumerate((sU2, sU3, sU4)):
        a(f"buffer_load_dwordx4 {vr(KL+4*cs,4)}, v1, {srd(S_SSM)}, s{so} offen {cold}")
    for cs in range(3):
        a(f"buffer_load_ushort v{DL+cs}, v{vT}, {srd(S_D)}, 0 offen offset:{2*cs}")
    POST = cfg.get('post', 1)
    for _ in range(POST):
        a.run(w_drain('w1', drn)); drn += 1
        a.run(w_issue('w1', nxt)); nxt += 1
    a.wait('kvst')
    a("s_barrier")
    a.run([stamp('barB')])

    def flag_store(base, sidx, stride, name, guard=None):
        def f(a):
            a(f"s_cmp_lg_u32 s{sW}, 0")
            a(f"s_cbranch_scc1 L_nf_{name}")
            a.begin_cond(name)
            if guard:
                a(guard)
                a(f"s_cbranch_scc1 L_nf_{name}")
            a(f"s_mul_i32 s{sU0}, s{sidx}, {stride}")
            a(f"s_add_u32 s{sU0}, s{sU0}, {base}")
            a(f"v_mov_b32 v34, s{sTAG}")
            a("s_mov_b64 exec, 1")
            a(f"buffer_store_dword v34, v0, {srd(S_WS)}, s{sU0} offen sc1")
            a("s_mov_b64 exec, -1")
            a.end_cond()
            a.label(f"L_nf_{name}")
        return f
    a.run([flag_store(WS_F1, sP, FS1, 'f1')])
    vCW = 59
    a(f"s_lshl_b32 s{sT0}, s{sW}, 10")
    a(f"s_add_u32 s{sT0}, s{sT0}, {L_CK + KPAD}")
    a(f"v_add_u32 v{vCW}, s{sT0}, v1")
    kfix = []
    for cs in range(3):
        kfix += [f"v_lshlrev_b32 v{DL+cs}, 16, v{DL+cs}",
                 f"v_lshlrev_b32 v{vT}, 16, v{KL+4*cs}",
                 f"v_and_b32 v{vT2}, 0xffff0000, v{KL+4*cs}",
                 f"v_add_f32 v{vT}, v{vT}, v{DL+cs}",
                 f"v_cvt_pk_bf16_f32 v{KL+4*cs}, v{vT}, v{vT2}",
                 f"ds_write_b128 v{vCW}, {vr(KL+4*cs,4)} offset:{cs*KP}"]
    a.run(kfix)
    vHL = 10
    vRW = 14
    vRR = 17
    vPO, vPD = 18, 19
    g1set = []
    for i in range(4):
        g1set += [f"s_add_u32 s{sT0}, s{sOWN}, {i+1}",
                  f"s_and_b32 s{sT0}, s{sT0}, 3",
                  f"s_mul_i32 s{sT1}, s{sT0}, 12288",
                  f"s_add_u32 s{sT1}, s{sT1}, {L_RED + (i*4096 if i < 3 else 0)}",
                  f"v_add_u32 v{vRW+i}, s{sT1}, v1",
                  f"s_lshl_b32 s{sT1}, s{sDG}, 2",
                  f"s_add_u32 s{sT0}, s{sT0}, s{sT1}",
                  f"s_lshl_b32 s{sT0}, s{sT0}, 16",
                  f"s_lshl_b32 s{sT1}, s{sW}, 14",
                  f"s_add_u32 s{sT0}, s{sT0}, s{sT1}",
                  f"v_add_u32 v{vHL+i}, s{sT0}, v1"]
    g1set += [f"s_lshl_b32 s{sT0}, s{sW}, 6",
              f"v_add_u32 v{vPO}, s{sT0}, v0",
              f"v_mul_u32_u24 v{vPO}, {FS1}, v{vPO}",
              f"v_add_u32 v{vPO}, {WS_F1}, v{vPO}"]
    BI = 224
    BL = 20
    g1set += [f"s_lshl_b32 s{sT0}, s{sFT}, 7",
              f"v_lshl_add_u32 v{vT}, v{vH}, 3, s{sT0}"]
    for t in range(4):
        g1set.append(f"global_load_dwordx2 {vr(BL+2*t,2)}, v{vT}, {sp(P_B1)} offset:{32*t}")
    a.run(g1set)

    def poll_issue(mask=None):
        it = []
        if mask:
            it.append(setexec(mask))
        it.append(f"buffer_load_dword v{vPD}, v{vPO}, {srd(S_WS)}, 0 offen sc1")
        if mask:
            it.append("s_mov_b64 exec, -1")
        return it

    def poll_check(name, mask=None):
        def f(a):
            if mask:
                a(setexec(mask))
            a(f"v_cmp_ne_u32 vcc, s{sTAG}, v{vPD}")
            a(f"s_mov_b32 s{sCNT}, 0")
            a(f"s_cbranch_vccz L_pk_{name}")
            a.label(f"L_pl_{name}")
            a.begin_cond('poll' + name)
            a("s_mov_b64 exec, vcc")
            a(f"buffer_load_dword v{vPD}, v{vPO}, {srd(S_WS)}, 0 offen sc1")
            a(f"s_add_u32 s{sCNT}, s{sCNT}, 1")
            a(f"s_cmp_ge_u32 s{sCNT}, 0x40000")
            a(f"s_cbranch_scc1 L_pk_{name}")
            a(f"v_cmp_ne_u32 vcc, s{sTAG}, v{vPD}")
            a("s_nop 0")
            a(f"s_cbranch_vccnz L_pl_{name}")
            a.end_cond()
            a.label(f"L_pk_{name}")
            a("s_mov_b64 exec, -1")
            if stamps:
                a(f"v_writelane_b32 v254, s{sCNT}, {['f1','fu','fz'].index(name)}")
        return f

    while drn < 16:
        if nxt == 16 and drn == 16 - cfg.get('pollat', 3):
            a.run(poll_issue())
        a.run(w_drain('w1', drn)); drn += 1
        if nxt < 16:
            a.run(w_issue('w1', nxt)); nxt += 1
    a.run([stamp('w1_done')])
    a.run([poll_check('f1')])
    BUF = 64
    ACC = (192, 208)
    RD = 144

    def h_load(n):
        i, j = divmod(n, 16)
        return f"buffer_load_dwordx4 {vr(BUF+4*(n % NB),4)}, v{vHL+i}, {srd(S_WS)}, s{TK+j} offen sc1"
    for n in range(NB):
        a(h_load(n))
    a.wait_all(vm=False)
    a("s_barrier")
    a.run([stamp('barC')])
    a(f"s_or_b32 s{sT0}, s2, s{sW}")
    a(f"s_cbranch_scc1 L_noep")
    a.begin_cond('ep')
    a(f"s_mov_b32 s{sT0}, {WS_EP}")
    a(f"v_mov_b32 v{vT}, s{sTAG}")
    a("s_mov_b64 exec, 1")
    a(f"buffer_store_dword v{vT}, v0, {srd(S_WS)}, s{sT0} offen sc1")
    a("s_mov_b64 exec, -1")
    a.end_cond()
    a.label("L_noep")

    XL = 104
    TU = TK + 0
    TU = 38
    TUmap = [38, 39, 40, 41, 52, 53, 56, 57, 64, 65, 66, 67]

    class _TU:
        def __add__(self, j):
            return TUmap[j]
    TU = _TU()

    side = {}

    def at(n, items):
        side.setdefault(n, []).extend(items)
    xl = [f"s_add_u32 s{sU2}, s{sU2}, {WS_KV}", f"s_add_u32 s{sU3}, s{sU3}, {WS_KV}", f"s_add_u32 s{sU4}, s{sU4}, {WS_KV}"]
    for cs, so in enumerate((sU2, sU3, sU4)):
        xl.append(f"buffer_load_dwordx4 {vr(XL+4*cs,4)}, v1, {srd(S_WS)}, s{so} offen sc1")
    at(2, xl)
    for cs in range(3):
        at(14 + cs, [f"ds_write_b128 v{vCW}, {vr(XL+4*cs,4)} offset:{L_CX + XPAD - L_CK - KPAD + cs*XP}"])
    for t in range(8):
        at(20 + t, [f"v_lshlrev_b32 v{BI+2*t}, 16, v{BL+t}", f"v_and_b32 v{BI+2*t+1}, 0xffff0000, v{BL+t}"])
    for i in range(3):
        for t in range(4):
            at(16 * (i + 1) + 1 + t, [(f"ds_write_b128 v{vRW+i}, {vr(ACC[i & 1]+4*t,4)} offset:{t*1024}", 'redw')])
    w2set = [f"s_and_b32 s{sT0}, s{sDT}, 3", f"s_lshl_b32 s{sT0}, s{sT0}, 1", f"s_lshr_b32 s{sT1}, s{sDT}, 2",
             f"s_add_u32 s{sT0}, s{sT0}, s{sT1}", f"s_mul_i32 s{sT0}, s{sT0}, 3", f"s_lshr_b32 s{sT0}, s{sT0}, 1",
             f"s_and_b32 s{sT1}, s{sST}, 7", f"s_mul_i32 s{sT1}, s{sT1}, {cfg.get('rots', 3)}", f"s_lshr_b32 s{sT1}, s{sT1}, 1",
             f"s_add_u32 s{sT0}, s{sT0}, s{sT1}", f"s_lshl_b32 s{sT0}, s{sT0}, 10"]
    for j in range(12):
        w2set += [f"s_sub_u32 s{sT1}, s{sT0}, {12*1024}", f"s_cselect_b32 s{TU+j}, s{sT0}, s{sT1}"]
        w2set += [f"s_add_u32 s{sT0}, s{TU+j}, 1024"]
    w2set += [f"s_mul_i32 s{sT0}, s{sW}, {384*4096}", f"s_lshl_b32 s{sT1}, s{sST}, 7", f"s_add_u32 s{sT0}, s{sT0}, s{sT1}"]
    w2set += weight_addr(4096, sT0, True)
    vCA, vCB, vCA2, vCB2, vUS = 20, 21, 22, 23, 24
    cvset = [f"v_lshlrev_b32 v{vT}, 3, v{vH}",
             f"v_add_u32 v{vT}, v{vT}, v{vR}",
             f"v_lshlrev_b32 v{vT2}, 2, v{vC}",
             f"v_sub_u32 v{vT2}, v{vT2}, v{vT}",
             f"v_lshlrev_b32 v{vT2}, 3, v{vT2}",
             f"s_mul_i32 s{sT0}, s{sT2}, {KP}",
             f"s_add_u32 s{sT0}, s{sT0}, {L_CK + KPAD + 152 - 32}",
             f"v_add_u32 v{vCA}, s{sT0}, v{vT2}",
             f"v_add_u32 v{vCA2}, {L_CK + 2*KP + KPAD + 152 - 32}, v{vT2}",
             f"v_add_lshl_u32 v{vT}, v{vT}, v{vC}, 3",
             f"s_mul_i32 s{sT0}, s{sT2}, {XP}",
             f"s_lshl_b32 s{sT1}, s{sT3}, 7",
             f"s_add_u32 s{sT0}, s{sT0}, s{sT1}",
             f"s_add_u32 s{sT0}, s{sT0}, {L_CX + XPAD - 152}",
             f"v_add_u32 v{vCB}, s{sT0}, v{vT}",
             f"s_lshl_b32 s{sT0}, s{sW}, 7",
             f"s_add_u32 s{sT0}, s{sT0}, {L_CX + 2*XP + XPAD - 152 - 256}",
             f"v_add_u32 v{vCB2}, s{sT0}, v{vT}",
             f"s_lshl_b32 s{sT0}, s{sDG}, 2",
             f"s_add_u32 s{sT0}, s{sT0}, s{sOWN}",
             f"s_mul_i32 s{sT0}, s{sT0}, 48",
             f"s_lshl_b32 s{sT1}, s{sFT}, 1",
             f"s_add_u32 s{sT0}, s{sT0}, s{sT1}",
             f"s_lshl_b32 s{sT0}, s{sT0}, 10",
             f"s_add_u32 s{sT0}, s{sT0}, {WS_U}",
             f"s_cmp_ge_u32 s{sID}, 30",
             f"s_cselect_b32 s{sT0}, {OOB}, s{sT0}",
             f"v_add_u32 v{vUS}, s{sT0}, v1"]
    lst = w2set + cvset
    per = 5
    for k in range(0, len(lst), per):
        at(28 + k // per, lst[k:k + per])
    assert 28 + len(lst) // per < 48, len(lst)
    at(53, [('wait', 'redw'), "s_barrier"])
    k = 0
    for i in range(3):
        for t in range(4):
            at(54 + k // 4, [f"ds_read_b128 {vr(RD+16*i+4*t,4)}, v{vRR} offset:{i*4096 + t*1024}"])
            k += 1
    adds = []
    for i in range(3):
        for t in range(8):
            adds.append(f"v_pk_add_f32 {vr(BI+2*t,2)}, {vr(BI+2*t,2)}, {vr(RD+16*i+2*t,2)}")
    for k in range(0, 24, 4):
        at(58 + k // 4, adds[k:k + 4])
    nx2 = 0
    W2PRE = cfg.get('w2pre', 2)
    for k in range(W2PRE):
        at(64 - NB + 1 + 3 * k, w_issue('w2', nx2)); nx2 += 1

    for n in range(64):
        i, j = divmod(n, 16)
        for t in range(4):
            d = vr(ACC[i & 1] + 4 * t, 4)
            a(f"v_mfma_f32_16x16x32_bf16 {d}, {ar(16*j+4*t,4)}, {vr(BUF+4*(n % NB),4)}, {'0' if j == 0 else d}")
        if n + NB < 64:
            a(h_load(n + NB))
        a.run(side.get(n, []))
        if n == 0:
            a.run([stamp('g1_first')])
    a.run([stamp('g1_mfma')])

    CA, CB, CACC, CY = 64, 128, 192, 224

    def ca_read(part, c):
        va = vCA if part == 1 else vCA2
        return [f"ds_read_b64_tr_b16 {vr(CA+4*c+2*e2,2)}, v{va} offset:{256*c + 32*(1-e2)}" for e2 in range(2)]

    def cb_slot(part, n):
        return CB + 4 * (n if part == 1 else 15 - n)

    def cb_read(part, n):
        va = vCB if part == 1 else vCB2
        return [f"ds_read_b64_tr_b16 {vr(cb_slot(part,n)+2*e2,2)}, v{va} offset:{256*n + 32*e2}" for e2 in range(2)]
    CPRE = 4
    for c in range(CPRE):
        a.run(ca_read(1, c) + cb_read(1, c))
    Z = ACC[1]
    G0, G1r = 80, 96
    UO = 240
    a(f"s_mov_b32 s{sU2}, 0xbdd2d3e8")
    a(f"v_mov_b32 v{vT}, 0xc0135761")
    for half in range(2):
        o = 8 * half
        for t in range(4):
            a(f"v_pk_add_f32 {vr(Z+o+2*t,2)}, {vr(Z+o+2*t,2)}, {vr(BI+o+2*t,2)}")
        for t in range(4):
            a(f"v_pk_mul_f32 {vr(G0+o+2*t,2)}, {vr(Z+o+2*t,2)}, {vr(Z+o+2*t,2)}")
        for t in range(4):
            a(f"v_pk_fma_f32 {vr(G0+o+2*t,2)}, {vr(G0+o+2*t,2)}, {sp(sU2)}, {vr(vT,2)} op_sel_hi:[1,0,0]")
        for t in range(4):
            a(f"v_pk_mul_f32 {vr(G0+o+2*t,2)}, {vr(G0+o+2*t,2)}, {vr(Z+o+2*t,2)}")
        for t in range(8):
            a(f"v_exp_f32 v{G0+o+t}, v{G0+o+t}")
        for t in range(4):
            a(f"v_pk_add_f32 {vr(G0+o+2*t,2)}, {vr(G0+o+2*t,2)}, 1.0 op_sel_hi:[1,0]")
        for t in range(8):
            a(f"v_rcp_f32 v{G0+o+t}, v{G0+o+t}")
        for t in range(4):
            a(f"v_pk_mul_f32 {vr(G0+o+2*t,2)}, {vr(G0+o+2*t,2)}, {vr(Z+o+2*t,2)}")
        for t in range(4):
            a(f"v_cvt_pk_bf16_f32 v{UO+4*half+t}, v{G0+o+2*t}, v{G0+o+2*t+1}")
        a(f"buffer_store_dwordx4 {vr(UO+4*half,4)}, v{vUS}, {srd(S_WS)}, 0 offen offset:{1024*half} sc1", tok='ust')
    a.run([stamp('u_st')])

    vCRW, vCRW2, vCRR, vCRR2, vZW, vZR, vZS, vZS2 = 25, 26, 27, 28, 29, 30, 31, 32
    cset2 = [f"s_mul_i32 s{sT0}, s{sT2}, {33*16}",
             f"s_lshl_b32 s{sT1}, s{sT3}, 4",
             f"s_add_u32 s{sT0}, s{sT0}, s{sT1}",
             f"s_add_u32 s{sT0}, s{sT0}, {L_CAR}",
             f"v_mov_b32 v{vCRW}, s{sT0}",
             f"v_lshl_add_u32 v{vCRR}, v0, 2, s{sT0}",
             f"s_lshl_b32 s{sT0}, s{sW}, 4",
             f"s_add_u32 s{sT0}, s{sT0}, {L_CAR + 2*33*16}",
             f"v_mov_b32 v{vCRW2}, s{sT0}",
             f"v_lshl_add_u32 v{vCRR2}, v0, 2, s{sT0}",
             f"s_mul_i32 s{sT0}, s{sW}, 3072",
             f"s_add_u32 s{sT0}, s{sT0}, {L_ZSTG}",
             f"v_lshl_add_u32 v{vZW}, v0, 1, s{sT0}",
             f"v_add_u32 v{vZR}, s{sT0}, v1",
             f"v_lshrrev_b32 v{vT}, 3, v0",
             f"v_and_b32 v{vT2}, 7, v0",
             f"v_lshlrev_b32 v{vT2}, 4, v{vT2}",
             f"v_lshl_add_u32 v{vZS}, v{vT}, 8, v{vT2}",
             f"v_lshl_add_u32 v{vZS2}, v{vT}, 9, v{vT2}",
             f"s_add_u32 s{sT0}, s{sC0}, s{sT2}",
             f"s_lshl_b32 s{sT0}, s{sT0}, 12",
             f"s_lshl_b32 s{sT1}, s{sT3}, 7",
             f"s_add_u32 s{sT0}, s{sT0}, s{sT1}",
             f"s_add_u32 s{sT0}, s{sT0}, {WS_Z}",
             f"v_add_u32 v{vZS}, s{sT0}, v{vZS}",
             f"s_lshl_b32 s{sT0}, s{sC0}, 12",
             f"s_lshl_b32 s{sT1}, s{sW}, 7",
             f"s_add_u32 s{sT0}, s{sT0}, s{sT1}",
             f"s_add_u32 s{sT0}, s{sT0}, {WS_Z + 8192}",
             f"s_bitcmp1_b32 s{sST}, 0\ns_cselect_b32 s{sT0}, s{sT0}, {OOB}",
             f"v_add_u32 v{vZS2}, s{sT0}, v{vZS2}"]
    vUL = 10
    vR2W = 15
    vR2R = 33
    g2set = [f"s_mul_i32 s{sT0}, s{sDT}, {5*48}",
             f"s_mul_i32 s{sT1}, s{sW}, 12",
             f"s_add_u32 s{sT0}, s{sT0}, s{sT1}",
             f"s_lshl_b32 s{sT0}, s{sT0}, 10",
             f"s_add_u32 s{sT0}, s{sT0}, {WS_U}",
             f"v_add_u32 v{vUL}, s{sT0}, v1"]
    for m in range(1, 5):
        g2set.append(f"v_add_u32 v{vUL+m}, {48*1024}, v{vUL+m-1}")
    for jn in range(1, 4):
        g2set += [f"s_xor_b32 s{sT0}, s{sW}, {jn}",
                  f"s_mul_i32 s{sT0}, s{sT0}, 3072",
                  f"s_add_u32 s{sT0}, s{sT0}, {L_RED + (jn-1)*1024}",
                  f"v_add_u32 v{vR2W+jn-1}, s{sT0}, v1"]
    g2set += [f"s_mul_i32 s{sT0}, s{sW}, 3072",
              f"s_add_u32 s{sT0}, s{sT0}, {L_RED}",
              f"v_add_u32 v{vR2R}, s{sT0}, v1",
              f"s_mul_i32 s{sT0}, s{sDT}, 5",
              f"s_lshr_b32 s{sT0}, s{sT0}, 2",
              f"s_mul_i32 s{sT0}, s{sT0}, 24",
              f"s_mul_i32 s{sT1}, s{sW}, 6",
              f"s_add_u32 s{sT0}, s{sT0}, s{sT1}",
              f"v_cmp_lt_u32 vcc, 5, v0",
              f"v_add_u32 v{vPO}, s{sT0}, v0",
              f"v_cndmask_b32_e64 v{vT}, 0, 18, vcc",
              f"v_add_u32 v{vPO}, v{vPO}, v{vT}",
              f"v_mul_u32_u24 v{vPO}, {FSU}, v{vPO}",
              f"v_add_u32 v{vPO}, {WS_FU}, v{vPO}"]

    def horner(slot, y):
        d = CACC + 4 * slot
        dp = "wave_shr:1 row_mask:0xf bank_mask:0xf bound_ctrl:0"
        return [f"v_add_f32_dpp v{d+2}, v{d+3}, v{d+2} {dp}",
                f"v_add_f32_dpp v{d+1}, v{d+2}, v{d+1} {dp}",
                f"v_add_f32_dpp v{y}, v{d+1}, v{d} {dp}"]

    def carry_w(part, tiles):
        def f(a):
            a(f"s_mov_b64 exec, {sp(sM63)}")
            for (g, k) in tiles:
                va, st = (vCRW, 32) if part == 1 else (vCRW2, 64)
                a(f"ds_write_b128 v{va}, {vr(CACC+4*(g % 8),4)} offset:{16 + st*k}", tok='carw')
            a("s_mov_b64 exec, -1")
        return f

    main = []
    tiles = [(1, m, m) for m in range(16)] + [(2, n, 2 * n + 1) for n in range(8)]
    pending_h = []
    for g, (part, k, m) in enumerate(tiles):
        d = vr(CACC + 4 * (g % 8), 4)
        mf = [f"v_mfma_f32_16x16x32_bf16 {d}, {vr(CA+4*c,4)}, {vr(cb_slot(part,m-c),4)}, {'0' if c == 0 else d}"
              for c in range(m + 1)]
        sd = []
        if part == 1 and m + CPRE < 16:
            sd += ca_read(1, m + CPRE) + cb_read(1, m + CPRE)
        if part == 2:
            for c in (2 * k + 6, 2 * k + 7):
                if c < 16:
                    sd += ca_read(2, c) + cb_read(2, c)
        hp, pending_h = pending_h, horner(g % 8, CY + g)
        if g % 4 == 1 and g > 4:
            pp = tiles[g - 5][0]
            hp = [carry_w(pp, [(q, tiles[q][1]) for q in range(g - 5, g - 1)])] + hp
        if part == 1 and m == 15:
            seq = []
            for c in range(16):
                seq.append(mf[c])
                if 1 <= c <= 6:
                    seq += ca_read(2, c - 1) + cb_read(2, c - 1)
                if c >= 8 and hp:
                    seq.append(hp.pop(0))
            main += seq
        else:
            main += merge(mf, sd + hp)
    main += pending_h
    main.append(carry_w(2, [(q, tiles[q][1]) for q in range(20, 24)]))

    w2s = []
    dr2 = 0
    while nx2 < min(NR, 12):
        w2s += w_issue('w2', nx2); nx2 += 1
    w2a = list(w2s)
    w2s = []
    uflag = [('wait', 'ust'), "s_barrier", stamp('barD'),
             f"s_mul_i32 s{sU5}, s{sDG}, 24\ns_add_u32 s{sU5}, s{sU5}, s{sFT}",
             flag_store(WS_FU, sU5, FSU, 'fu', guard=f"s_cmp_ge_u32 s{sID}, 30")]
    while dr2 < 12:
        w2s += w_drain('w2', dr2); dr2 += 1
        if nx2 < 12:
            w2s += w_issue('w2', nx2); nx2 += 1
        if dr2 == cfg.get('uflag_at', 2):
            w2s += uflag
        if dr2 == cfg.get('upoll_at', 10):
            w2s += ["\n".join(poll_issue('0xfff'))]
    stream = merge(main, w2a + cset2 + g2set, 0, 60)
    stream = merge(stream, w2s, 60, int(len(stream) * cfg.get('w2end', 0.97)))
    a.run(stream)
    a.run([stamp('conv_mfma')])
    NB2 = cfg.get('nb2', 8)
    UB = 192

    def u_load(n):
        m, j = divmod(n, 12)
        return f"buffer_load_dwordx4 {ar(UB+4*(n % NB2),4)}, v{vUL+m}, {srd(S_WS)}, s{TU+j} offen sc1"
    a.wait('carw')
    a("s_barrier")
    CR = 64
    a("s_mov_b64 exec, 7")
    for k in range(0, 16, 2):
        a(f"ds_read2_b32 {vr(CR+k,2)}, v{vCRR} offset0:{1+8*k} offset1:{1+8*(k+1)}")
    for k in range(0, 8, 2):
        a(f"ds_read2_b32 {vr(CR+16+k,2)}, v{vCRR2} offset0:{1+16*k} offset1:{1+16*(k+1)}")
    for k in range(0, 24, 2):
        a(f"v_pk_add_f32 {vr(CY+k,2)}, {vr(CY+k,2)}, {vr(CR+k,2)}")
    a("s_mov_b64 exec, -1")
    for k in range(0, 24, 2):
        a(f"v_cvt_pk_bf16_f32 v{CY+k}, v{CY+k}, v{CY+k+1}")
        a(f"ds_write_b16 v{vZW}, v{CY+k} offset:{128*k}")
        a(f"ds_write_b16_d16_hi v{vZW}, v{CY+k} offset:{128*(k+1)}", tok='zstg')
    ZO = 96
    for i in range(3):
        a(f"ds_read_b128 {vr(ZO+4*i,4)}, v{vZR} offset:{1024*i}")
    a(f"buffer_store_dwordx4 {vr(ZO,4)}, v{vZS}, {srd(S_WS)}, 0 offen sc1")
    a(f"buffer_store_dwordx4 {vr(ZO+4,4)}, v{vZS}, {srd(S_WS)}, 0 offen offset:2048 sc1")
    a(f"buffer_store_dwordx4 {vr(ZO+8,4)}, v{vZS2}, {srd(S_WS)}, 0 offen sc1", tok='zst')
    a.run([stamp('z_st')])
    a.run([poll_check('fu', '0xfff')])
    a.run([stamp('fu_ok')])
    for n in range(NB2):
        a(u_load(n))

    AC2 = (104, 116)
    OWN = 128
    RD2 = 148
    PP = 196
    QR, ZRg, ZL = 64, 76, 88
    vQO, vQO2, vZG, vZLW, vZT, vZT2, vGG, vOG, vB2 = 20, 21, 22, 23, 24, 25, 26, 28, 27
    side = {}
    e1 = [f"s_lshl_b32 s{sT0}, s{sST}, 6",
          f"s_lshl_b32 s{sT1}, s{sW}, 4",
          f"s_add_u32 s{sT0}, s{sT0}, s{sT1}",
          f"v_add_u32 v{vT}, s{sT0}, v{vI}",
          f"v_lshlrev_b32 v{vT2}, 1, v{vT}",
          f"global_load_ushort v{vB2}, v{vT2}, {sp(P_B2)}",
          f"v_mul_u32_u24 v{vT}, 1280, v{vT}",
          f"s_mul_i32 s{sT0}, s{sDT}, 160",
          f"v_add_u32 v{vT}, s{sT0}, v{vT}",
          f"v_lshl_add_u32 v{vQO}, v{vH}, 4, v{vT}",
          f"v_lshl_add_u32 v{vQO2}, v{vH}, 3, v{vT}",
          f"global_load_dwordx4 {vr(QR,4)}, v{vQO}, {sp(P_Q)}",
          f"global_load_dwordx4 {vr(QR+4,4)}, v{vQO}, {sp(P_Q)} offset:64",
          f"global_load_dwordx2 {vr(QR+8,2)}, v{vQO2}, {sp(P_Q)} offset:128",
          f"s_lshl_b32 s{sT0}, s{sST}, 8",
          f"s_lshl_b32 s{sT1}, s{sT2}, 7",
          f"s_add_u32 s{sT0}, s{sT0}, s{sT1}",
          f"s_lshl_b32 s{sT1}, s{sT3}, 4",
          f"s_add_u32 s{sT0}, s{sT0}, s{sT1}",
          f"s_add_u32 s{sT0}, s{sT0}, {WS_G}",
          f"v_lshlrev_b32 v{vT}, 5, v{vR}",
          f"v_lshl_add_u32 v{vT}, v{vC}, 2, v{vT}",
          f"buffer_load_dword v{vGG}, v{vT}, {srd(S_WS)}, s{sT0} offen sc1",
          f"v_lshrrev_b32 v{vT}, 3, v0",
          f"s_lshl_b32 s{sT0}, s{sW}, 3",
          f"v_add_u32 v{vT}, s{sT0}, v{vT}",
          f"v_and_b32 v{vT2}, 7, v0",
          f"v_lshlrev_b32 v{vT2}, 4, v{vT2}",
          f"v_lshl_add_u32 v{vZG}, v{vT}, 12, v{vT2}",
          f"v_mul_u32_u24 v{vT}, {PZ}, v{vT}",
          f"v_add_u32 v{vT}, v{vT}, v{vT2}",
          f"v_add_u32 v{vZLW}, {L_ZI}, v{vT}",
          f"s_mul_i32 s{sT0}, s{sDT}, {80*4096}",
          f"s_lshl_b32 s{sT1}, s{sST}, 7",
          f"s_add_u32 s{sT0}, s{sT0}, s{sT1}",
          f"s_add_u32 s{sU2}, s{sT0}, {WS_Z}",
          f"s_add_u32 s{sU3}, s{sU2}, {32*4096}",
          f"s_add_u32 s{sU4}, s{sU2}, {64*4096}",
          f"s_cmp_lt_u32 s{sW}, 2\ns_cselect_b32 s{sU4}, s{sU4}, {OOB}",
          f"v_lshl_add_u32 v{vT}, v{vH}, 3, v{vR}",
          f"v_mul_u32_u24 v{vT}, {PZ}, v{vT}",
          f"v_lshl_add_u32 v{vT2}, v{vH}, 2, v{vR}",
          f"v_mul_u32_u24 v{vT2}, {PZ}, v{vT2}",
          f"s_lshl_b32 s{sT0}, s{sW}, 5",
          f"s_add_u32 s{sT0}, s{sT0}, {L_ZI}",
          f"v_lshl_add_u32 v{vZT}, v{vC}, 3, s{sT0}",
          f"v_add_u32 v{vZT2}, v{vZT}, v{vT2}",
          f"v_add_u32 v{vZT}, v{vZT}, v{vT}",
          f"s_lshl_b32 s{sT0}, s{sDT}, 5",
          f"s_add_u32 s{sU5}, s{sT0}, s{sST}",
          f"v_add_u32 v{vPO}, s{sT0}, v0",
          f"v_mul_u32_u24 v{vPO}, {FSZ}, v{vPO}",
          f"v_add_u32 v{vPO}, {WS_FZ}, v{vPO}"]
    a.run(e1)
    ZF = cfg.get('zflag_at', 2)
    at(ZF, [('wait', 'zst'), "s_barrier", stamp('barF'), flag_store(WS_FZ, sU5, FSZ, 'fz')])
    pm = [f"v_lshlrev_b32 v{vB2}, 16, v{vB2}", f"v_sub_f32 v{vOG}, 1.0, v{vGG}", f"v_mul_f32 v{vB2}, v{vB2}, v{vOG}"]
    for k in range(10):
        pm += [f"v_lshlrev_b32 v{PP+2*k}, 16, v{QR+k}", f"v_and_b32 v{PP+2*k+1}, 0xffff0000, v{QR+k}",
               f"v_pk_mul_f32 {vr(PP+2*k,2)}, {vr(PP+2*k,2)}, {vr(vGG,2)} op_sel_hi:[1,0]"]
    for k in range(0, len(pm), 4):
        at(14 + k // 4, pm[k:k + 4])
    for m in range(4):
        for jn in range(1, 4):
            at(12 * (m + 1) + jn, [(f"ds_write_b128 v{vR2W+jn-1}, {vr(AC2[m & 1]+4*(jn-1),4)} offset:{m*12288}", 'r2w')])
    ZP = cfg.get('zpoll_at', 24)
    at(ZP, ["\n".join(poll_issue('0xffffffff'))])
    zl = [poll_check('fz', '0xffffffff'), stamp('fz_ok')]
    for i, so in enumerate((sU2, sU3, sU4)):
        zl.append(f"buffer_load_dwordx4 {vr(ZL+4*i,4)}, v{vZG}, {srd(S_WS)}, s{so} offen sc1")
    at(ZP + NB2, zl)
    zw = [(f"ds_write_b128 v{vZLW}, {vr(ZL+4*i,4)} offset:{i*32*PZ}", 'r2w') for i in range(3)]
    at(min(ZP + 2 * NB2 + 1, 51), zw)
    at(52, [('wait', 'r2w'), "s_barrier"])
    zr = []
    for m in range(5):
        va, off = (vZT, (32 * (m >> 1) + 4 * (m & 1)) * PZ) if m < 4 else (vZT2, 64 * PZ)
        zr.append(f"ds_read_b64_tr_b16 {vr(ZRg+2*m,2)}, v{va} offset:{off}")
    for m in range(4):
        for k in range(3):
            zr.append(f"ds_read_b128 {vr(RD2+12*m+4*k,4)}, v{vR2R} offset:{m*12288 + k*1024}")
    ZU = 216
    for k in range(10):
        zr += [f"v_lshlrev_b32 v{ZU+2*k}, 16, v{ZRg+k}", f"v_and_b32 v{ZU+2*k+1}, 0xffff0000, v{ZRg+k}",
               f"v_pk_fma_f32 {vr(PP+2*k,2)}, {vr(PP+2*k,2)}, {vr(ZU+2*k,2)}, {vr(vGG,2)} op_sel:[0,0,1] op_sel_hi:[1,1,1]"]
    for k in range(0, len(zr), 7):
        at(53 + k // 7, zr[k:k + 7])

    def fin(m):
        it = []
        for k in range(3):
            for hh in range(2):
                it.append(f"v_pk_add_f32 {vr(OWN+4*m+2*hh,2)}, {vr(OWN+4*m+2*hh,2)}, {vr(RD2+12*(m % 4)+4*k+2*hh,2)}")
        for hh in range(2):
            it.append(f"v_pk_fma_f32 {vr(PP+4*m+2*hh,2)}, {vr(OWN+4*m+2*hh,2)}, {vr(vOG,2)}, {vr(PP+4*m+2*hh,2)} op_sel_hi:[1,0,1]")
        for hh in range(2):
            it.append(f"v_cvt_pk_bf16_f32 v{QR+2*m+hh}, v{PP+4*m+2*hh}, v{PP+4*m+2*hh+1}")
        return it

    for n in range(60):
        m, j = divmod(n, 12)
        for jn in range(4):
            d = vr(OWN + 4 * m, 4) if jn == 0 else vr(AC2[m & 1] + 4 * (jn - 1), 4)
            a(f"v_mfma_f32_16x16x32_bf16 {d}, {ar(UB+4*(n % NB2),4)}, {ar(16*j+4*jn,4)}, {'0' if j == 0 else d}")
        if n + NB2 < 60:
            a(u_load(n + NB2))
        a.run(side.get(n, []))
        if n == 0:
            a.run([stamp('g2_first')])
    a.run([stamp('g2_mfma')])
    a.run(fin(0))
    for jn in range(1, 4):
        a(f"ds_write_b128 v{vR2W+jn-1}, {vr(AC2[0]+4*(jn-1),4)} offset:{4*12288}", tok='r2w')
    a.run(fin(1))
    a(f"global_store_dwordx4 v{vQO}, {vr(QR,4)}, {sp(P_OUT)}")
    a.wait('r2w')
    a("s_barrier")
    for k in range(3):
        a(f"ds_read_b128 {vr(RD2+4*k,4)}, v{vR2R} offset:{4*12288 + k*1024}")
    a.run(fin(2) + fin(3))
    a(f"global_store_dwordx4 v{vQO}, {vr(QR+4,4)}, {sp(P_OUT)} offset:64")
    a.run(fin(4))
    a(f"global_store_dwordx2 v{vQO2}, {vr(QR+8,2)}, {sp(P_OUT)} offset:128")
    a.run([stamp('end')])
    if stamps:
        a.wait_all()
        a.run([stamp('drained')])
        a("s_memrealtime s[98:99]")
        a(f"v_writelane_b32 v255, s96, 30")
        a(f"v_writelane_b32 v255, s98, 31")
        for k in range(3):
            a(f"v_readlane_b32 s{sT0}, v254, {k}")
            a(f"v_writelane_b32 v255, s{sT0}, {27+k}")
        a(f"s_lshl_b32 s{sT0}, s2, 2")
        a(f"s_add_u32 s{sT0}, s{sT0}, s{sW}")
        a(f"s_lshl_b32 s{sT0}, s{sT0}, 7")
        a(f"s_add_u32 s{sT0}, s{sT0}, {WS_DBG}")
        a(f"v_lshlrev_b32 v{vT}, 2, v0")
        a("s_mov_b32 exec_hi, 0")
        a(f"buffer_store_dword v255, v{vT}, {srd(S_WS)}, s{sT0} offen")
    if amp:
        if amp[2] >= 0:
            a(f"s_cmp_lg_u32 s2, {amp[2]}")
            a("s_cbranch_scc1 L_end")
        a("s_memrealtime s[100:101]")
        a("s_sub_u32 s98, s98, s96")
        a(f"s_mul_i32 s98, s98, {20 if amp[3] == 'r' else 1}")
        a("s_min_u32 s98, s98, 200000")
        a("s_add_u32 s98, s98, s100")
        a.label("L_amp")
        a("s_memrealtime s[100:101]")
        a("s_sub_u32 s100, s100, s98")
        a("s_cmp_lt_i32 s100, 0")
        a("s_cbranch_scc1 L_amp")
    a.label("L_end")
    a("s_endpgm")

    ref = open(f"cdna_kernels/{NAME}.s.ref").read().split('\n')
    head = [l for l in ref if l.startswith(';') and '@launch' not in l and 'Override' not in l and 'grid=ceil' not in l]
    txt = '\n'.join(head) + f"\n; @launch grid=(256,1,1) block=(256,1,1) lds={L_END}\n"
    txt += f""".amdgcn_target "amdgcn-amd-amdhsa--gfx950"
.text
.globl {NAME}_kernel
.p2align 8
.type {NAME}_kernel,@function
{NAME}_kernel:
"""
    txt += a.text()
    txt += f""".section .rodata,"a"
.p2align 6
.amdhsa_kernel {NAME}_kernel
  .amdhsa_next_free_vgpr 512
  .amdhsa_next_free_sgpr 102
  .amdhsa_accum_offset 256
  .amdhsa_group_segment_fixed_size 0
  .amdhsa_kernarg_size 120
  .amdhsa_user_sgpr_count 2
  .amdhsa_user_sgpr_kernarg_segment_ptr 1
  .amdhsa_system_sgpr_workgroup_id_x 1
  .amdhsa_float_denorm_mode_32 3
.end_amdhsa_kernel
"""
    return txt, dict(n_ins=a.n_ins, n_nop=a.n_nop, stamps=STAMPS)


if __name__ == "__main__":
    import json
    out = sys.argv[1]
    cfg = json.loads(sys.argv[2]) if len(sys.argv) > 2 else {}
    txt, info = gen(cfg)
    open(out, 'w').write(txt)
    print(out, info)
```

```python
import re

REG = re.compile(r'^(-|\|)?([vas])(\d+)\|?$|^(-)?([vas])\[(\d+):(\d+)\]$')
TRANS = ('v_exp_f32', 'v_log_f32', 'v_rcp_f32', 'v_rsq_f32', 'v_sqrt_f32', 'v_sin_f32', 'v_cos_f32')


def regs_of(tok):
    tok = tok.strip()
    if tok in ('vcc', 'exec', 'm0', 'scc'):
        return [tok]
    if tok in ('vcc_lo', 'vcc_hi'):
        return ['vcc']
    if tok in ('exec_lo', 'exec_hi'):
        return ['exec']
    m = REG.match(tok)
    if not m:
        return []
    if m.group(2):
        return [m.group(2) + m.group(3)]
    return [m.group(5) + str(i) for i in range(int(m.group(6)), int(m.group(7)) + 1)]


class Ins:
    __slots__ = ('text', 'op', 'kind', 'rd', 'wr', 'srcC', 'srcAB', 'wide_data', 'dpp', 'states', 'tok', 'cond')

    def __init__(self, text):
        self.text = text
        t = text.split(';')[0].strip()
        parts = t.split(None, 1)
        op = parts[0]
        self.op = op
        rest = parts[1] if len(parts) > 1 else ''
        ops = []
        mods = ''
        depth = 0
        cur = ''
        for ch in rest:
            if ch in '[(':
                depth += 1
            if ch in '])':
                depth -= 1
            if ch == ',' and depth == 0:
                ops.append(cur.strip())
                cur = ''
            else:
                cur += ch
        if cur.strip():
            last = cur.strip().split(None, 1)
            ops.append(last[0])
            mods = last[1] if len(last) > 1 else ''
        R = [regs_of(o) for o in ops]
        flat = lambda l: [x for y in l for x in y]
        self.rd, self.wr, self.srcC, self.srcAB, self.wide_data = [], [], [], [], []
        self.dpp = False
        self.states = 1
        self.tok = None
        self.cond = None
        if op.startswith('v_mfma'):
            self.kind = 'mfma'
            self.wr = R[0]
            self.srcAB = R[1] + R[2]
            self.srcC = R[3]
            self.rd = self.srcAB + self.srcC
        elif op.startswith('v_'):
            self.kind = 'valu'
            self.wr = list(R[0])
            self.rd = flat(R[1:])
            if op.startswith(('v_fmac', 'v_dot2c', 'v_pk_fmac')):
                self.rd += R[0]
            if op.startswith('v_permlane') and 'swap' in op:
                self.wr = R[0] + R[1]
                self.rd = R[0] + R[1]
            if '_dpp' in op:
                self.dpp = True
                self.rd += R[0]
            if op.startswith('v_cndmask') and len(ops) == 3:
                self.rd += ['vcc']
            if op.startswith('v_cmpx'):
                self.wr += ['exec']
            if op.startswith('v_writelane'):
                self.rd += R[0]
        elif op.startswith('ds_'):
            self.kind = 'ds'
            if op.startswith(('ds_read', 'ds_bpermute', 'ds_permute', 'ds_swizzle')) or '_rtn' in op:
                self.wr = R[0]
                self.rd = flat(R[1:])
                if 'd16' in op:
                    self.rd += R[0]
            else:
                self.rd = flat(R)
        elif op.startswith(('buffer_', 'global_')):
            self.kind = 'vm'
            lds = 'lds' in mods.split() or '_lds_' in op
            if 'load' in op and not lds:
                self.wr = R[0]
                self.rd = flat(R[1:])
                if 'd16' in op:
                    self.rd += R[0]
            elif 'load' in op:
                self.rd = flat(R) + ['m0']
            else:
                self.rd = flat(R)
                if op.endswith(('x3', 'x4')):
                    self.wide_data = R[0] if op.startswith('buffer') else R[1]
        elif op.startswith(('s_load', 's_memtime', 's_memrealtime', 's_buffer_load')):
            self.kind = 'smem'
            self.wr = R[0]
            self.rd = flat(R[1:])
        elif op.startswith('s_'):
            self.kind = 'salu'
            if op == 's_nop':
                self.states = int(ops[0], 0) + 1
            elif op.startswith(('s_cmp', 's_waitcnt', 's_barrier', 's_cbranch', 's_branch', 's_endpgm', 's_sleep',
                                's_setprio', 's_setpc', 's_bitcmp')):
                self.rd = flat(R)
            else:
                self.wr = list(R[0])
                self.rd = flat(R[1:])
                if 'saveexec' in op:
                    self.wr += ['exec']
        else:
            raise ValueError('unknown instr ' + text)


def need_states(p, c):
    n = 0
    pw = set(p.wr)
    if p.kind == 'valu':
        vw = {r for r in pw if r[0] in 'va' and r != 'vcc'}
        sw = pw - vw
        if c.kind == 'mfma' and vw & set(c.rd):
            n = max(n, 2)
        if c.kind == 'mfma' and 'exec' in pw:
            n = max(n, 4)
        if c.kind == 'valu':
            crd = set(c.rd)
            if c.dpp and vw & crd:
                n = max(n, 2)
            if c.dpp and 'exec' in pw:
                n = max(n, 5)
            if c.op.startswith(('v_readlane', 'v_readfirstlane')) and vw & crd:
                n = max(n, 1)
            if c.op.startswith('v_permlane') and vw & crd:
                n = max(n, 2)
            if sw & crd:
                n = max(n, 4 if c.op.startswith(('v_readlane', 'v_writelane')) else 2)
            if p.op.startswith(TRANS) and not c.op.startswith(TRANS) and vw & (crd | set(c.wr)):
                n = max(n, 1)
            if ('_sdwa' in p.op or 'op_sel:' in p.text) and vw & (crd | set(c.wr)):
                n = max(n, 1)
        if p.op.startswith('v_dot') and c.kind in ('valu', 'mfma', 'vm', 'ds'):
            if vw & (set(c.rd) | set(c.wr)):
                if c.op == p.op:
                    ops = c.text.split(None, 1)[1].split(',')
                    ab = set(regs_of(ops[1].strip()) + regs_of(ops[2].strip().split()[0]))
                    if vw & ab:
                        n = max(n, 3)
                else:
                    n = max(n, 3)
        if c.kind == 'vm' and sw & set(c.rd):
            n = max(n, 5)
        if c.kind in ('salu', 'smem') and sw & set(c.rd):
            n = max(n, 1)
    if p.kind == 'mfma':
        if c.kind == 'mfma':
            if pw & set(c.srcAB):
                n = max(n, 8)
            if pw & set(c.srcC) and list(p.wr) != list(c.srcC):
                n = max(n, 6)
            if pw & set(c.wr) and list(p.wr) != list(c.srcC):
                n = max(n, 6)
        elif c.kind in ('valu', 'vm', 'ds'):
            if pw & (set(c.rd) | set(c.wr)):
                n = max(n, 8)
            if c.kind == 'valu' and set(p.srcC) & set(c.wr):
                n = max(n, 3)
    if p.kind == 'salu' and 'm0' in pw and c.kind == 'vm' and 'm0' in c.rd:
        n = max(n, 1)
    if p.kind == 'vm' and p.wide_data and set(p.wide_data) & set(c.wr):
        n = max(n, 2)
    return n


class Asm:
    def __init__(self):
        self.out = []
        self.hist = []
        self.vm = []
        self.lg = []
        self.smem_pending = set()
        self.pend = {}
        self.toks = {}
        self.nid = 0
        self.waited = set()
        self.cond = None
        self.n_ins = 0
        self.n_nop = 0

    def raw(self, s):
        self.out.append(s)

    def label(self, name):
        self.out.append(name + ':')

    def comment(self, s):
        self.out.append('; ' + s)

    def begin_cond(self, name):
        self.cond = name

    def end_cond(self):
        self.cond = None

    def _count_after(self, q, idn):
        idx = [i for i, (j, c) in enumerate(q) if j == idn]
        if not idx:
            return None
        i = idx[0]
        cx = q[i][1]
        return i, sum(1 for (j, c) in q[i + 1:] if c is None or c == cx or c == self.cond)

    def _wait(self, needs):
        w = {}
        for cls, idn in needs:
            q = self.vm if cls == 'vm' else self.lg
            r = self._count_after(q, idn)
            if r is None:
                continue
            i, n = r
            if cls not in w or i > w[cls][0]:
                w[cls] = (i, n if cls not in w else min(n, w[cls][1]))
            else:
                w[cls] = (w[cls][0], min(n, w[cls][1]))
        if not w:
            return
        s = 's_waitcnt'
        if 'vm' in w:
            n = min(w['vm'][1], 63)
            s += f' vmcnt({n})'
        if 'lg' in w:
            n = min(w['lg'][1], 15)
            if self.smem_pending:
                n = 0
            s += f' lgkmcnt({n})'
        self._push(Ins(s))
        if self.cond is None:
            if 'vm' in w:
                self._retire('vm', w['vm'][0])
            if 'lg' in w:
                self._retire('lg', w['lg'][0])
                if n == 0:
                    self.smem_pending = set()
        else:
            for cls in w:
                q = self.vm if cls == 'vm' else self.lg
                done = {j for (j, c) in q[:w[cls][0] + 1] if c == self.cond}
                q[:] = [(j, c) for (j, c) in q if j not in done]
                self.pend = {r: v for r, v in self.pend.items() if not (v[0] == cls and v[1] in done)}

    def _retire(self, cls, i):
        q = self.vm if cls == 'vm' else self.lg
        done = {j for (j, c) in q[:i + 1]}
        del q[:i + 1]
        self.pend = {r: v for r, v in self.pend.items() if not (v[0] == cls and v[1] in done)}

    def wait(self, *names):
        self.waited.update(names)
        self._wait([self.toks[n] for n in names])

    def wait_all(self, vm=True, lg=True):
        needs = []
        if vm and self.vm:
            needs.append(('vm', self.vm[-1][0]))
        if lg and self.lg:
            needs.append(('lg', self.lg[-1][0]))
        self._wait(needs)

    def wait_smem(self):
        self._push(Ins('s_waitcnt lgkmcnt(0)'))
        if self.lg:
            self._retire('lg', len(self.lg) - 1)
        self.smem_pending = set()

    def _push(self, ins):
        need = 0
        dist = 0
        for p in reversed(self.hist):
            n = need_states(p, ins)
            need = max(need, n - dist)
            dist += p.states
            if dist >= 12:
                break
        if need > 0:
            nop = Ins(f's_nop {need - 1}')
            self.hist.append(nop)
            self.out.append('    ' + nop.text)
            self.n_ins += 1
            self.n_nop += need
        self.hist.append(ins)
        if len(self.hist) > 40:
            self.hist = self.hist[-20:]
        self.out.append('    ' + ins.text)
        self.n_ins += 1

    def __call__(self, text, tok=None):
        for line in text.split('\n'):
            line = line.strip()
            if not line:
                continue
            if line.endswith(':'):
                self.out.append(line)
                continue
            if line.startswith(';'):
                self.out.append(line)
                continue
            ins = Ins(line)
            touched = set(ins.rd) | set(ins.wr)
            if self.smem_pending & touched:
                self.wait_smem()
            needs = [self.pend[r] for r in touched if r in self.pend]
            if needs:
                self._wait(needs)
            self._push(ins)
            if ins.kind in ('vm', 'ds'):
                cls = 'vm' if ins.kind == 'vm' else 'lg'
                self.nid += 1
                (self.vm if cls == 'vm' else self.lg).append((self.nid, self.cond))
                for r in ins.wr:
                    self.pend[r] = (cls, self.nid)
                if tok:
                    assert tok not in self.waited, 'token reused after wait: ' + tok
                    self.toks[tok] = (cls, self.nid)
                assert len(self.vm) <= 63 or cls != 'vm', 'vmcnt overflow'
            elif ins.kind == 'smem':
                self.smem_pending |= set(ins.wr)

    def run(self, items):
        for it in items:
            if callable(it):
                it(self)
            elif isinstance(it, tuple):
                if it[0] == 'wait':
                    self.wait(*it[1:])
                else:
                    self(it[0], tok=it[1])
            else:
                self(it)

    def text(self):
        return '\n'.join(self.out) + '\n'


def merge(main, side, start=0, end=None):
    end = len(main) if end is None else end
    n = max(end - start, 1)
    out = []
    k = 0
    for i, it in enumerate(main):
        out.append(it)
        if start <= i < end:
            tgt = (len(side) * (i - start + 1)) // n
            while k < tgt:
                out.append(side[k])
                k += 1
    out.extend(side[k:])
    return out


def cost_of(it):
    if callable(it):
        return getattr(it, 'cost', 1)
    if isinstance(it, tuple):
        if it[0] == 'wait':
            return 1
        it = it[0]
    c = 0
    for l in it.split('\n'):
        c += 2 if l.startswith(TRANS + ('ds_write_b16', 'ds_write_b32')) else (3 if l.startswith(('ds_write_b64', 'ds_write_b128')) else 1)
    return c


class Gaps:
    def __init__(self, mfmas, cap=2):
        self.m = list(mfmas)
        self.g = [[] for _ in self.m]
        self.used = [0] * len(self.m)
        self.cap = cap

    def reserve(self, i, n=1):
        if 0 <= i < len(self.m):
            self.used[i] += n

    def fixed(self, i, items):
        i = min(i, len(self.m) - 1)
        for it in items:
            self.g[i].append(it)
            self.used[i] += cost_of(it)

    def flow(self, items, start, cap=None, stride=1):
        cap = cap or self.cap
        i = start
        for it in items:
            c = cost_of(it)
            while i < len(self.m) - 1 and self.used[i] + min(c, cap) > cap:
                i += 1
            i = min(i, len(self.m) - 1)
            self.g[i].append(it)
            self.used[i] += c
            if stride > 1:
                i = min(i + stride, len(self.m) - 1)
        return i

    def spread(self, items, start, end):
        n = len(items)
        for k, it in enumerate(items):
            i = min(start + (k * (end - start)) // max(n, 1), len(self.m) - 1)
            self.g[i].append(it)
            self.used[i] += cost_of(it)

    def items(self):
        out = []
        for m, g in zip(self.m, self.g):
            out.append(m)
            out.extend(g)
        return out


def is_ds(it):
    if callable(it):
        return False
    if isinstance(it, tuple):
        if it[0] == 'wait':
            return False
        it = it[0]
    return it.startswith('ds_')


class Sched:
    INF = 10 ** 9

    def __init__(self, mfmas, cap=2):
        self.m = list(mfmas)
        self.cap = cap
        self.res = [0] * len(self.m)
        self.th = {}

    def reserve(self, i, n=1):
        if 0 <= i < len(self.m):
            self.res[i] += n

    def add(self, thread, items, rel=0, dl=None, pace=0):
        q = self.th.setdefault(thread, [])
        for k, it in enumerate(items):
            q.append([it, int(rel + k * pace), self.INF if dl is None else dl])

    def items(self, keep=()):
        for q in self.th.values():
            for k in range(len(q) - 2, -1, -1):
                q[k][2] = min(q[k][2], q[k + 1][2])
        out = []
        self.over = 0
        self.under = 0
        last = len(self.m) - 1
        fcap = self.cap
        for i, m in enumerate(self.m):
            out.append(m)
            used = self.res[i]
            ds = False
            self.cap = int(fcap * (i + 1)) - int(fcap * i)
            while True:
                cand = [(q[0][2], n) for n, q in self.th.items() if q and (q[0][1] <= i or q[0][2] <= i or (i == last and n not in keep))]
                if not cand:
                    break
                cand.sort()
                pick = None
                for d, n in cand:
                    it = self.th[n][0][0]
                    c = cost_of(it) + (1 if ds and is_ds(it) else 0)
                    if d <= i or (i == last and n not in keep) or used + c <= self.cap or (c > self.cap and used == 0):
                        pick = (n, it, c)
                        break
                if not pick:
                    break
                n, it, c = pick
                self.th[n].pop(0)
                out.append(it)
                used += c
                ds = is_ds(it) or (ds and c == 0)
            self.over += max(0, used - 2)
            self.under += max(0, 2 - used)
        self.left = {n: [x[0] for x in q] for n, q in self.th.items() if q}
        return out
```

```python
import sys
from asmlib import Asm, merge, Gaps, Sched

NAME = "gated_mix__ssm_conv_h3__mixer_token_mlp__prompt"

WS_H, WS_U, WS_KV, WS_Z, WS_G = 0x0, 0x280000, 0x480000, 0x700000, 0x980000
WS_F1, WS_FU, WS_FZ, WS_EP, WS_DBG = 0x990000, 0x9A0000, 0x9B0000, 0x9C0000, 0x9D0000
WS_SIZE = 0xA10000
WS_FK = 0x998000
OOB = 0x7F000000
TAGC = 0x9E3779B9

NR = 4
L_RING = 0
L_RED = 65536
PL = 1344
L_LN = L_RED
L_KI = L_LN + 8 * PL
L_VI = L_KI + 11584
L_ZSTG = L_RED + 4 * 12288
L_CK = L_RED + 61440
KP, KPAD = 4224, 96
L_CX = L_CK + 3 * KP
XP, XPAD = 4608, 512
L_CAR = L_CX + 3 * XP
L_END = L_CAR + 1600
L_ZI = L_CK
PZ = 144

S_WS, S_K, S_V, S_W1, S_W2, S_SSM, S_D = 4, 8, 12, 16, 20, 24, 28
P_Q, P_SH, P_B1, P_B2, P_GW, P_OUT = 36, 42, 54, 58, 60, 62
TK = 68
sW, sXC, sID, sDG, sFT, sDT, sST, sTAG, sP, sRING, sOWN, sC0 = range(84, 96)
sT0, sT1, sT2, sT3 = 32, 33, 34, 35
sU0, sU1, sU2, sU3, sU4, sU5 = 44, 45, 46, 47, 48, 49
sM63 = 50
sCNT = 3


def srd(n):
    return f"s[{n}:{n+3}]"


def sp(n):
    return f"s[{n}:{n+1}]"


def vr(n, k):
    return f"v[{n}:{n+k-1}]"


def ar(n, k):
    return f"a[{n}:{n+k-1}]"


def setexec(mask):
    if mask == 'uz':
        return "s_mov_b32 exec_lo, 0xfff"
    return "s_mov_b32 exec_hi, 0" if mask == '0xffffffff' else f"s_mov_b64 exec, {mask}"


def gen(cfg):
    a = Asm()
    stamps = cfg.get('stamps', False)
    FS1, FSU, FSZ = cfg.get('fs1', 16), cfg.get('fsu', 64), cfg.get('fsz', 64)
    NB = cfg.get('nb', 17)
    cold = cfg.get('cold', '')
    wpol = cfg.get('wpol', '')
    nstamp = [0]

    amp = cfg.get('amp')
    def stamp(name):
        def f(a):
            if amp:
                op = 's_memrealtime' if amp[3] == 'r' else 's_memtime'
                if name == amp[0]:
                    a(f"{op} s[96:97]")
                if name == amp[1]:
                    a(f"{op} s[98:99]")
            if not stamps or (stamps != 1 and name not in stamps and name not in ('start', 'end')):
                return
            a("s_memtime s[98:99]")
            a("s_memrealtime s[100:101]")
            a(f"v_writelane_b32 v255, s98, {nstamp[0]}")
            a(f"v_writelane_b32 v255, s100, {32+nstamp[0]}")
            STAMPS.append(name)
            nstamp[0] += 1
        f.cost = 0
        return f
    STAMPS = []

    a("s_load_dwordx16 s[36:51], s[0:1], 0")
    a("s_load_dwordx16 s[52:67], s[0:1], 56")
    if stamps:
        a("s_memrealtime s[96:97]")
    else:
        a.run([stamp('entry')])
    a("s_cmp_ge_u32 s2, 256")
    a("s_cbranch_scc1 L_end")
    a("v_lshrrev_b32 v1, 6, v0")
    a("v_and_b32 v0, 63, v0")
    a(f"v_readfirstlane_b32 s{sW}, v1")
    a(f"s_and_b32 s{sXC}, s2, 7")
    a(f"s_lshr_b32 s{sID}, s2, 3")
    vH, vI, vR, vC = 37, 38, 39, 40
    vT, vT2 = 42, 43
    if cfg.get('cpf', 1):
        a(f"s_getpc_b64 {sp(sT0)}")
        a.label("L_pc")
        a(f"s_lshl2_add_u32 s{sT2}, s{sID}, s{sW}")
        a(f"v_lshl_add_u32 v{vT}, s{sT2}, 1, v0")
        a(f"v_lshlrev_b32 v{vT}, 7, v{vT}")
        a(f"v_min_u32 v{vT}, L_end-L_pc, v{vT}")
        a("s_mov_b64 exec, 3")
        a(f"global_load_dword v253, v{vT}, {sp(sT0)}")
        a("s_mov_b64 exec, -1")
    a(f"s_lshr_b32 s{sT2}, s{sW}, 1")
    a(f"s_and_b32 s{sT3}, s{sW}, 1")
    a("v_lshlrev_b32 v1, 4, v0")
    a(f"v_and_b32 v{vI}, 15, v0")
    if cfg.get('m2', 1) == 2:
        a(f"s_and_b32 s{sDT}, s{sXC}, 1")
        a(f"s_lshr_b32 s{sST}, s{sXC}, 1")
        a(f"s_and_b32 s{sT0}, s{sID}, 3")
        a(f"s_lshl2_add_u32 s{sDT}, s{sDT}, s{sT0}")
        a(f"s_lshr_b32 s{sT0}, s{sID}, 2")
        a(f"s_lshl3_add_u32 s{sST}, s{sST}, s{sT0}")
    else:
        a(f"s_and_b32 s{sDT}, s{sID}, 7")
        a(f"s_lshr_b32 s{sT0}, s{sID}, 3")
        a(f"s_lshl2_add_u32 s{sST}, s{sXC}, s{sT0}")
    for (s, n) in ((S_K, 2621440), (S_V, 2621440), (S_WS, WS_SIZE)):
        a(f"s_mov_b32 s{s+2}, {n}")
        a(f"s_mov_b32 s{s+3}, 0x20000")
    VK = 60
    sKL, sVL = sOWN, sCNT
    a(f"v_mul_u32_u24 v{vT}, 26, v0")
    a(f"v_lshrrev_b32 v{vT}, 8, v{vT}")
    a(f"v_mul_u32_u24 v{vT}, 1120, v{vT}")
    a(f"s_lshl2_add_u32 s{sT0}, s{sST}, s{sW}")
    a(f"s_mul_i32 s{sT0}, s{sT0}, {16*1280}")
    a(f"s_mul_i32 s{sT1}, s{sDT}, 160")
    a(f"s_add_u32 s{sT0}, s{sT0}, s{sT1}")
    a(f"v_add3_u32 v{VK+3}, s{sT0}, v{vT}, v1")
    a(f"s_sub_u32 s{sT1}, s{sW}, 4")
    a(f"s_mul_i32 s{sT1}, s{sT1}, 1280")
    a(f"v_add_u32 v{VK}, s{sT1}, v{VK+3}")
    for i in (1, 2):
        a(f"v_add_u32 v{VK+i}, 7680, v{VK+i-1}")
        a(f"v_add_u32 v{VK+3+i}, 7680, v{VK+3+i-1}")
    a(f"s_mul_i32 s{sKL}, s{sW}, {17*160}")
    a(f"s_mul_i32 s{sVL}, s{sW}, {16*160}")
    CF = 44
    vCH, vS0, vS1 = 50, 66, 67
    a(f"s_mul_i32 s{sC0}, s{sDT}, 80")
    a(f"s_lshl4_add_u32 s{sT1}, s{sT2}, s{sC0}")
    a(f"v_add_u32 v{vCH}, s{sT1}, v{vI}")
    a(f"v_lshlrev_b32 v{vS0}, 3, v{vCH}")
    a(f"v_add_lshl_u32 v{vS1}, s{sC0}, v{vI}, 3")
    XR, GR = 160, 170
    vHW, vL32, vQ, vQ3, vG, vG3, vEP, vX0, vX1 = 180, 181, 182, 183, 184, 185, 186, 188, 189
    a(f"s_lshl_b32 s{sP}, s{sXC}, 5")
    a(f"s_add_u32 s{sP}, s{sP}, s{sID}")
    a(f"s_lshr_b32 s{sT0}, s{sP}, 2")
    a(f"s_lshl_b32 s{sT0}, s{sT0}, 5")
    a(f"s_and_b32 s{sT1}, s{sP}, 3")
    a(f"s_lshl2_add_u32 s{sT0}, s{sT1}, s{sT0}")
    a(f"s_lshl4_add_u32 s{sT0}, s{sT2}, s{sT0}")
    a(f"s_lshl1_add_u32 s{sT0}, s{sT3}, s{sT0}")
    a(f"v_lshrrev_b32 v{vHW}, 5, v0")
    a(f"v_and_b32 v{vL32}, 31, v0")
    a(f"v_add_u32 v{vQ}, s{sT0}, v{vHW}")
    a(f"v_mul_u32_u24 v{vQ}, 1280, v{vQ}")
    a(f"v_lshlrev_b32 v{vG}, 4, v{vL32}")
    a(f"v_lshlrev_b32 v{vG3}, 3, v{vL32}")
    a(f"v_add_u32 v{vQ3}, v{vQ}, v{vG3}")
    a(f"v_add_u32 v{vQ}, v{vQ}, v{vG}")
    a(f"v_lshrrev_b32 v{vH}, 4, v0")
    a(f"v_bfe_u32 v{vR}, v0, 2, 2")
    a(f"v_and_b32 v{vC}, 3, v0")

    a(f"s_add_u32 m0, s{sKL}, {L_KI}")
    a("s_mov_b32 exec_hi, 0x0fffffff")
    a(f"s_mov_b64 {sp(S_K)}, {sp(38)}")
    a(f"s_mov_b64 {sp(S_V)}, {sp(40)}")
    for i in range(3):
        if i == 2:
            a("s_mov_b32 exec_hi, 0x3ffff")
        a(f"buffer_load_dwordx4 v{VK+i}, {srd(S_K)}, 0 offen {cold} lds")
        a(f"s_add_u32 m0, s{sVL}, {L_VI + i*960}")
        if i == 2:
            a("s_mov_b32 exec_hi, 0xff")
        a(f"buffer_load_dwordx4 v{VK+3+i}, {srd(S_V)}, 0 offen {cold} lds", tok='kvdma')
        if i < 2:
            a(f"s_add_u32 m0, s{sKL}, {L_KI + (i+1)*960}")
    a("s_mov_b32 exec_hi, -1")
    a.run([stamp('start')])

    for (s, p, n) in ((S_WS, 66, None), (S_W1, 50, 6291456), (S_W2, 56, 6291456), (S_SSM, 44, 2621440)):
        a(f"s_mov_b64 {sp(s)}, {sp(p)}")
        if n:
            a(f"s_mov_b32 s{s+2}, {n}")
            a(f"s_mov_b32 s{s+3}, 0x20000")
    sX0, sX1, sX2 = 31, 50, 51
    a(f"s_lshr_b32 s{sT1}, s{sST}, 1")
    a(f"s_mul_i32 s{sT1}, s{sT1}, 5")
    a(f"s_add_u32 s{sC0}, s{sC0}, s{sT1}")
    a(f"s_and_b32 s{sT1}, s{sST}, 1")
    a(f"s_lshl1_add_u32 s{sC0}, s{sT1}, s{sC0}")
    a(f"s_lshr_b32 s{sT1}, s{sC0}, 1")
    a(f"s_lshl_b32 s30, s{sT1}, 2")
    a(f"s_load_dwordx2 s[28:29], s[46:47], s30")
    a(f"s_lshl_b32 s{sT0}, s{sC0}, 12")
    a(f"s_lshl_b32 s{sT1}, s{sW}, 10")
    a(f"s_add_u32 s{sX0}, s{sT0}, s{sT1}")
    a(f"s_add_u32 s{sX1}, s{sX0}, 4096")
    a(f"s_add_u32 s{sX2}, s{sX0}, 8192")
    a(f"s_bitcmp1_b32 s{sST}, 0")
    a(f"s_cselect_b32 s{sX2}, s{sX2}, {OOB}")
    vLW, vLW3, vA1, vA2, vHS, vGS, vKVA, vKVS = 51, 52, 53, 54, 55, 56, 57, 58
    a(f"v_lshl_add_u32 v{vT}, v{vH}, 3, v{vR}")
    a(f"v_mul_u32_u24 v{vT}, 160, v{vT}")
    a(f"v_lshl_add_u32 v{vT}, v{vC}, 3, v{vT}")
    a(f"s_mul_i32 s{sT0}, s{sT3}, {32*160}")
    a(f"s_lshl_b32 s{sT1}, s{sT2}, 5")
    a(f"s_add_u32 s{sT0}, s{sT0}, s{sT1}")
    a(f"s_add_u32 s{sT0}, s{sT0}, {L_KI}")
    a(f"v_add_u32 v{vKVA}, s{sT0}, v{vT}")
    a(f"v_lshlrev_b32 v{vKVS}, 12, v{vCH}")
    a(f"v_lshl_add_u32 v{vKVS}, v{vH}, 4, v{vKVS}")
    a(f"s_lshl1_add_u32 s{sT0}, s{sST}, s{sT3}")
    a(f"s_lshl_b32 s{sT0}, s{sT0}, 6")
    a(f"s_add_u32 s{sT0}, s{sT0}, {WS_KV}")
    a(f"v_add_u32 v{vKVS}, s{sT0}, v{vKVS}")
    if cfg.get('m1', 1) == 2:
        a(f"s_mul_i32 s{sT0}, s{sID}, 52")
        a(f"s_lshr_b32 s{sT0}, s{sT0}, 8")
        a(f"s_mul_i32 s{sT1}, s{sT0}, 5")
        a(f"s_sub_u32 s{sT1}, s{sID}, s{sT1}")
        a(f"s_min_u32 s{sT0}, s{sT0}, 5")
        a(f"s_lshr_b32 s{sFT}, s{sXC}, 1")
        a(f"s_and_b32 s{sXC}, s{sXC}, 1")
        a(f"s_mul_i32 s{sDG}, s{sXC}, 5")
        a(f"s_add_u32 s{sDG}, s{sDG}, s{sT1}")
        a(f"s_mul_i32 s{sFT}, s{sFT}, 6")
        a(f"s_add_u32 s{sFT}, s{sFT}, s{sT0}")
        a(f"s_lshl1_add_u32 s{sT1}, s{sT1}, s{sXC}")
        a(f"s_mul_i32 s{sT1}, s{sT1}, 410")
    else:
        a(f"s_mul_i32 s{sT0}, s{sID}, 26")
        a(f"s_lshr_b32 s{sT0}, s{sT0}, 8")
        a(f"s_mul_i32 s{sT1}, s{sT0}, 10")
        a(f"s_sub_u32 s{sDG}, s{sID}, s{sT1}")
        a(f"s_min_u32 s{sT0}, s{sT0}, 2")
        a(f"s_mul_i32 s{sFT}, s{sXC}, 3")
        a(f"s_add_u32 s{sFT}, s{sFT}, s{sT0}")
        a(f"s_mul_i32 s{sT1}, s{sDG}, 410")
    a(f"s_lshr_b32 s{sT1}, s{sT1}, 8")
    a(f"s_lshl_b32 s{TK}, s{sT1}, 10")
    sSP = sXC
    a(f"s_cmp_ge_u32 s{sID}, 30")
    a(f"s_cselect_b32 s{sSP}, {OOB}, 0")
    a(f"s_mul_i32 s{sRING}, s{sW}, {NR*4096}")

    KL = 148
    a(f"global_load_dwordx2 {vr(CF,2)}, v{vS0}, {sp(P_SH)}")
    a(f"global_load_dwordx2 {vr(CF+2,2)}, v{vS0}, {sp(P_SH)} offset:256")
    a(f"global_load_dwordx2 {vr(CF+4,2)}, v{vS1}, {sp(P_SH)} offset:512")
    a(f"s_mov_b32 s{sT0}, {WS_EP}")
    a("s_mov_b64 exec, 1")
    a(f"buffer_load_dword v{vEP}, v0, {srd(S_WS)}, s{sT0} offen sc1")
    a("s_mov_b64 exec, -1")

    VW, VT = 2, 6
    TUmap = [38, 39, 40, 41, 52, 53, 56, 57, 64, 65, 66, 67]

    def weight_src(pitch, sbase):
        it = [f"v_lshrrev_b32 v{vT}, 3, v0",
              f"v_and_b32 v{vT2}, 6, v{vT}",
              f"v_xor_b32 v{vT2}, v{vT2}, v0",
              f"v_and_b32 v{vT2}, 7, v{vT2}",
              f"v_mul_u32_u24 v{vT}, {pitch}, v{vT}",
              f"v_lshl_add_u32 v{vT}, v{vT2}, 4, v{vT}",
              f"v_add_u32 v{VW}, s{sbase}, v{vT}"]
        for i in range(1, 4):
            it.append(f"v_add_u32 v{VW+i}, {8*pitch-1024}, v{VW+i-1}")
        return it

    def w_issue(which, j):
        it = []
        if which == 'w1':
            it.append(f"s_mul_i32 s{sU1}, s{TK+j}, 96")
        else:
            it.append(f"s_lshl_b32 s{sU1}, s{TUmap[j]}, 7")
        it.append(f"s_add_u32 m0, s{sRING}, {(j % NR)*4096}")
        if j >= NR:
            it.append(('wait', f'{which}r{j-NR}'))
        s = S_W1 if which == 'w1' else S_W2
        for i in range(4):
            it.append((f"buffer_load_dwordx4 v{VW+i}, {srd(s)}, s{sU1} offen offset:{i*1024} {wpol} lds", f'{which}d{j}'))
        return it

    def w_drain(which, j):
        it = [('wait', f'{which}d{j}')]
        for t in range(4):
            for e2 in range(2):
                it.append((f"ds_read_b64_tr_b16 {ar(16*j+4*t+2*e2,2)}, v{VT+t} offset:{(j % NR)*4096 + e2*2048}", f'{which}r{j}'))
        return it

    a(f"s_mul_i32 s{sT0}, s{sW}, {512*3072}")
    a(f"s_lshl_b32 s{sT1}, s{sFT}, 7")
    a(f"s_add_u32 s{sT0}, s{sT0}, s{sT1}")
    a(f"s_add_u32 s{sT0}, s{sT0}, s{sSP}")
    a.run(weight_src(3072, sT0))
    a(f"v_lshrrev_b32 v{vT}, 2, v0")
    a(f"v_lshlrev_b32 v{vT}, 7, v{vT}")
    a(f"v_lshl_add_u32 v{vT}, v{vC}, 3, v{vT}")
    a(f"v_bfe_u32 v{vT2}, v0, 3, 2")
    a(f"v_lshl_add_u32 v{vT}, v{vT2}, 5, v{vT}")
    a(f"v_add_u32 v{VT}, s{sRING}, v{vT}")
    for t in range(1, 4):
        a(f"v_xor_b32 v{VT+t}, {t*32}, v{VT}")
    for j in range(1, 16):
        a(f"s_add_u32 s{sT1}, s{TK+j-1}, 1024")
        a(f"s_and_b32 s{TK+j}, s{sT1}, 0x3c00")
    ZR = 68
    for i in range(4):
        a(f"v_mov_b32 v{ZR+i}, 0")
    a(f"s_min_u32 s{sT0}, s{sW}, 2")
    a(f"s_mul_i32 s{sT1}, s{sT0}, {XP}")
    a(f"s_add_u32 s{sT1}, s{sT1}, {L_CX}")
    a(f"v_add_u32 v{vT}, s{sT1}, v1")
    a(f"s_mul_i32 s{sT1}, s{sT0}, {KP}")
    a(f"s_add_u32 s{sT1}, s{sT1}, {L_CK}")
    a(f"v_add_u32 v{vT2}, s{sT1}, v1")
    a(f"s_mul_i32 s{sT1}, s{sT0}, {33*16}")
    a(f"s_add_u32 s{sT1}, s{sT1}, {L_CAR}")
    a(f"v_mov_b32 v59, s{sT1}")
    a("s_mov_b32 exec_hi, 0")
    a(f"ds_write_b128 v{vT}, {vr(ZR,4)}")
    a(f"s_mov_b64 exec, {hex((1 << (KPAD//16)) - 1)}")
    a(f"ds_write_b128 v{vT2}, {vr(ZR,4)}")
    a("s_mov_b64 exec, 1")
    a(f"ds_write_b128 v59, {vr(ZR,4)}")
    a("s_mov_b64 exec, -1")
    a(f"v_lshl_add_u32 v{vT}, s{sW}, 1, v{vHW}")
    a(f"s_lshl_b32 s{sT0}, s{sP}, 3")
    a(f"v_add_lshl_u32 v{vGS}, s{sT0}, v{vT}, 2")
    a(f"v_add_u32 v{vGS}, {WS_G}, v{vGS}")
    a(f"v_mul_u32_u24 v{vT}, {PL}, v{vT}")
    a(f"v_add_u32 v{vT}, {L_LN}, v{vT}")
    a(f"v_add_u32 v{vLW}, v{vT}, v{vG}")
    a(f"v_add_u32 v{vLW3}, v{vT}, v{vG3}")
    a(f"v_mul_u32_u24 v{vT}, {PL}, v{vR}")
    a(f"v_mul_u32_u24 v{vT2}, 160, v{vH}")
    a(f"v_add_u32 v{vT}, v{vT}, v{vT2}")
    a(f"s_lshl_b32 s{sT0}, s{sT2}, 6")
    a(f"s_lshl3_add_u32 s{sT0}, s{sT3}, s{sT0}")
    a(f"s_add_u32 s{sT0}, s{sT0}, {L_LN}")
    a(f"v_lshl_add_u32 v{vA1}, v{vC}, 4, v{vT}")
    a(f"v_add_u32 v{vA1}, s{sT0}, v{vA1}")
    a(f"s_mul_i32 s{sT0}, s{sT3}, 640")
    a(f"s_add_u32 s{sT0}, s{sT0}, {L_LN + 128}")
    a(f"v_lshl_add_u32 v{vA2}, v{vC}, 3, v{vT}")
    a(f"v_add_u32 v{vA2}, s{sT0}, v{vA2}")
    a(f"v_mul_u32_u24 v{vHS}, {5*65536}, v{vH}")
    a(f"v_lshl_add_u32 v{vHS}, v{vI}, 4, v{vHS}")
    a(f"s_lshl_b32 s{sT0}, s{sP}, 8")
    a(f"s_lshl_b32 s{sT1}, s{sW}, 16")
    a(f"s_add_u32 s{sU2}, s{sT0}, s{sT1}")
    a(f"s_add_u32 s{sU3}, s{sU2}, {20*65536}")
    a(f"s_mul_i32 s{sT1}, s{sT3}, {20*65536}")
    a(f"s_add_u32 s{sU4}, s{sT0}, s{sT1}")
    a(f"s_add_u32 s{sU4}, s{sU4}, {4*65536}")
    a(f"s_mov_b32 s{sU5}, {OOB}")
    a(f"s_cmp_ge_u32 s{sW}, 2")
    a(f"s_cselect_b32 s{sU4}, s{sU4}, s{sU5}")
    a(f"s_cselect_b32 s{sU5}, s{sU5}, {64*4096}")
    a(f"s_mov_b32 s{sU0}, {32*4096}")
    a(f"global_load_dwordx4 {vr(XR,4)}, v{vQ}, {sp(P_Q)}")
    a(f"global_load_dwordx4 {vr(XR+4,4)}, v{vQ}, {sp(P_Q)} offset:512")
    a(f"global_load_dwordx2 {vr(XR+8,2)}, v{vQ3}, {sp(P_Q)} offset:1024")
    a(f"global_load_dwordx4 {vr(GR,4)}, v{vG}, {sp(P_GW)}")
    a(f"global_load_dwordx4 {vr(GR+4,4)}, v{vG}, {sp(P_GW)} offset:512")
    a(f"global_load_dwordx2 {vr(GR+8,2)}, v{vG3}, {sp(P_GW)} offset:1024")
    a.run([stamp('iss3')])

    vHL, vRW, vRR = 10, 14, 17
    vP1, vPD, vPK, vGA = 18, 19, 252, 253
    vCA, vCB, vCA2, vCB2, vUS = 20, 21, 22, 23, 24
    vCRW, vCRW2, vCRR, vCRR2, vZW, vZR, vZS, vZS2, vZF = 25, 26, 27, 28, 29, 30, 31, 32, 35
    vCW = 33
    vQO, vQO2 = 36, 41
    QR, BL, vGG, vB2 = 44, 54, 62, 63
    sFI = sOWN
    cvset = [f"v_lshl_add_u32 v{vT}, v{vH}, 3, v{vR}",
             f"v_lshlrev_b32 v{vT2}, 2, v{vC}",
             f"v_sub_u32 v{vT2}, v{vT2}, v{vT}",
             f"v_lshlrev_b32 v{vT2}, 3, v{vT2}",
             f"s_mul_i32 s{sT0}, s{sT2}, {KP}",
             f"s_add_u32 s{sT0}, s{sT0}, {L_CK + KPAD + 152 - 32}",
             f"v_add_u32 v{vCA}, s{sT0}, v{vT2}",
             f"v_add_u32 v{vCA2}, {L_CK + 2*KP + KPAD + 152 - 32}, v{vT2}",
             f"v_add_lshl_u32 v{vT}, v{vT}, v{vC}, 3",
             f"s_mul_i32 s{sT0}, s{sT2}, {XP}",
             f"s_lshl_b32 s{sT1}, s{sT3}, 7",
             f"s_add_u32 s{sT0}, s{sT0}, s{sT1}",
             f"s_add_u32 s{sT0}, s{sT0}, {L_CX + XPAD - 152}",
             f"v_add_u32 v{vCB}, s{sT0}, v{vT}",
             f"s_lshl_b32 s{sT0}, s{sW}, 7",
             f"s_add_u32 s{sT0}, s{sT0}, {L_CX + 2*XP + XPAD - 152 - 256}",
             f"v_add_u32 v{vCB2}, s{sT0}, v{vT}",
             f"s_lshl_b32 s{sT0}, s{sW}, 10",
             f"s_add_u32 s{sT0}, s{sT0}, {L_CK + KPAD}",
             f"v_add_u32 v{vCW}, s{sT0}, v1",
             f"s_lshl_b32 s{sFI}, s{sDT}, 5",
             f"v_add_u32 v{vPK}, s{sFI}, v0",
             f"s_add_u32 s{sFI}, s{sFI}, s{sST}",
             f"v_mul_u32_u24 v{vPK}, {FSZ}, v{vPK}",
             f"v_add_u32 v{vPK}, {WS_FK}, v{vPK}"]
    cvset2 = [f"s_mul_i32 s{sT0}, s{sT2}, {33*16}",
              f"s_lshl4_add_u32 s{sT0}, s{sT3}, s{sT0}",
              f"s_add_u32 s{sT0}, s{sT0}, {L_CAR}",
              f"v_cmp_gt_u32 vcc, 3, v0",
              f"v_mov_b32 v{vT2}, {L_CX}",
              f"v_lshl_add_u32 v{vT}, v0, 2, s{sT0}",
              f"v_cndmask_b32 v{vCRR}, v{vT2}, v{vT}, vcc",
              f"s_add_u32 s{sT0}, s{sT0}, {(16 - 48*32) & 0xffffffff}",
              f"v_lshl_add_u32 v{vCRW}, v0, 5, s{sT0}",
              f"s_lshl_b32 s{sT0}, s{sW}, 4",
              f"s_add_u32 s{sT0}, s{sT0}, {L_CAR + 2*33*16}",
              f"v_lshl_add_u32 v{vT}, v0, 2, s{sT0}",
              f"v_cndmask_b32 v{vCRR2}, v{vT2}, v{vT}, vcc",
              f"s_add_u32 s{sT0}, s{sT0}, {(16 - 56*64) & 0xffffffff}",
              f"v_lshl_add_u32 v{vCRW2}, v0, 6, s{sT0}",
              f"s_mul_i32 s{sT0}, s{sW}, 3072",
              f"s_add_u32 s{sT0}, s{sT0}, {L_ZSTG}",
              f"v_lshl_add_u32 v{vZW}, v0, 1, s{sT0}",
              f"v_add_u32 v{vZR}, s{sT0}, v1",
              f"v_lshrrev_b32 v{vT}, 3, v0",
              f"v_and_b32 v{vT2}, 7, v0",
              f"v_lshlrev_b32 v{vT2}, 4, v{vT2}",
              f"v_lshl_add_u32 v{vZS}, v{vT}, 8, v{vT2}",
              f"v_lshl_add_u32 v{vZS2}, v{vT}, 9, v{vT2}",
              f"s_add_u32 s{sT0}, s{sC0}, s{sT2}",
              f"s_lshl_b32 s{sT0}, s{sT0}, 12",
              f"s_lshl_b32 s{sT1}, s{sT3}, 7",
              f"s_add_u32 s{sT0}, s{sT0}, s{sT1}",
              f"s_add_u32 s{sT0}, s{sT0}, {WS_Z}",
              f"v_add_u32 v{vZS}, s{sT0}, v{vZS}",
              f"s_lshl_b32 s{sT0}, s{sC0}, 12",
              f"s_lshl_b32 s{sT1}, s{sW}, 7",
              f"s_add_u32 s{sT0}, s{sT0}, s{sT1}",
              f"s_add_u32 s{sT0}, s{sT0}, {WS_Z + 8192}",
              f"s_bitcmp1_b32 s{sST}, 0\ns_cselect_b32 s{sT0}, s{sT0}, {OOB}",
              f"v_add_u32 v{vZS2}, s{sT0}, v{vZS2}"]
    g1set = [f"s_lshl_b32 s{sCNT}, s{sDG}, 18", f"s_lshl_b32 s{sT1}, s{sW}, 14", f"s_add_u32 s{sCNT}, s{sCNT}, s{sT1}",
             f"s_add_u32 s{sCNT}, s{sCNT}, s{sSP}"]
    for i in range(4):
        g1set += [f"s_add_u32 s{sT0}, s{sW}, {i+1}",
                  f"s_and_b32 s{sT0}, s{sT0}, 3",
                  f"s_mul_i32 s{sT1}, s{sT0}, 12288",
                  f"s_add_u32 s{sT1}, s{sT1}, {L_RED + (i*4096 if i < 3 else 0)}",
                  f"v_add_u32 v{vRW+i}, s{sT1}, v1",
                  f"s_lshl_b32 s{sT0}, s{sT0}, 16",
                  f"s_add_u32 s{sT0}, s{sT0}, s{sCNT}",
                  f"v_add_u32 v{vHL+i}, s{sT0}, v1"]
    g1set += [f"v_lshl_add_u32 v{vP1}, s{sW}, 6, v0",
              f"v_mul_u32_u24 v{vP1}, {FS1}, v{vP1}",
              f"v_add_u32 v{vP1}, {WS_F1}, v{vP1}",
              f"s_and_b32 s{sT0}, s{sC0}, 1",
              f"s_lshl_b32 s{sT0}, s{sT0}, 4",
              f"s_lshr_b64 s[28:29], s[28:29], s{sT0}",
              f"s_cmp_eq_u32 s{sW}, 0",
              f"s_cselect_b64 s[28:29], s[28:29], 0",
              f"s_lshl_b32 s30, s29, 16",
              f"s_and_b32 s29, s28, 0xffff0000",
              f"s_lshl_b32 s28, s28, 16",
              f"s_lshl_b32 s{sT0}, s{sFT}, 7",
              f"v_lshl_add_u32 v{vX0}, v{vH}, 3, s{sT0}",
              f"s_lshl2_add_u32 s{sT0}, s{sST}, s{sW}",
              f"v_lshl_add_u32 v{vT}, s{sT0}, 4, v{vI}",
              f"v_lshlrev_b32 v{vX1}, 1, v{vT}",
              f"v_mul_u32_u24 v{vT}, 1280, v{vT}",
              f"s_mul_i32 s{sT0}, s{sDT}, 160",
              f"v_add_u32 v{vT}, s{sT0}, v{vT}",
              f"v_lshl_add_u32 v{vQO}, v{vH}, 4, v{vT}",
              f"v_lshl_add_u32 v{vQO2}, v{vH}, 3, v{vT}",
              f"s_lshl1_add_u32 s{sT0}, s{sST}, s{sT2}",
              f"s_lshl3_add_u32 s{sT0}, s{sT0}, s{sT3}",
              f"s_lshl_b32 s{sT0}, s{sT0}, 4",
              f"s_add_u32 s{sT0}, s{sT0}, {WS_G}",
              f"v_lshl_add_u32 v{vT}, v{vR}, 5, s{sT0}",
              f"v_lshl_add_u32 v{vGA}, v{vC}, 2, v{vT}"]
    ssm = [f"buffer_load_dwordx4 {vr(KL+4*cs,4)}, v1, {srd(S_SSM)}, s{so} offen {cold}" for cs, so in enumerate((sX0, sX1, sX2))]
    a.run(cvset)
    nxt = drn = 0

    def w1_step():
        nonlocal drn, nxt
        it = []
        if nxt >= NR or nxt == 16:
            it += w_drain('w1', drn); drn += 1
        if nxt < 16:
            it += w_issue('w1', nxt); nxt += 1
        return it

    def flag_store(base, sidx, stride, name, guard=None, wave=0):
        def f(a):
            a(f"s_cmp_lg_u32 s{sW}, {wave}")
            a(f"s_cbranch_scc1 L_nf_{name}")
            a.begin_cond(name)
            if guard:
                a(guard)
                a(f"s_cbranch_scc1 L_nf_{name}")
            a(f"s_mul_i32 s{sU0}, s{sidx}, {stride}")
            a(f"s_add_u32 s{sU0}, s{sU0}, {base}")
            a(f"v_mov_b32 v34, s{sTAG}")
            a("s_mov_b64 exec, 1")
            a(f"buffer_store_dword v34, v0, {srd(S_WS)}, s{sU0} offen sc1")
            a("s_mov_b64 exec, -1")
            a.end_cond()
            a.label(f"L_nf_{name}")
        f.cost = 2
        return f

    def poll_issue(va, mask=None):
        it = []
        if mask:
            it.append(setexec(mask))
        it.append(f"buffer_load_dword v{vPD}, v{va}, {srd(S_WS)}, 0 offen sc1")
        if mask:
            it.append("s_mov_b64 exec, -1")
        return "\n".join(it)

    def poll_check(name, va, mask=None):
        def f(a):
            if mask:
                a(setexec(mask))
            a(f"v_cmp_ne_u32 vcc, s{sTAG}, v{vPD}")
            a(f"s_mov_b32 s{sCNT}, 0")
            a(f"s_cbranch_vccz L_pk_{name}")
            a.label(f"L_pl_{name}")
            a.begin_cond('poll' + name)
            a("s_mov_b64 exec, vcc")
            a(f"buffer_load_dword v{vPD}, v{va}, {srd(S_WS)}, 0 offen sc1")
            a(f"s_add_u32 s{sCNT}, s{sCNT}, 1")
            a(f"s_cmp_ge_u32 s{sCNT}, 0x40000")
            a(f"s_cbranch_scc1 L_pk_{name}")
            a(f"v_cmp_ne_u32 vcc, s{sTAG}, v{vPD}")
            a("s_nop 0")
            a(f"s_cbranch_vccnz L_pl_{name}")
            a.end_cond()
            a.label(f"L_pk_{name}")
            a("s_mov_b64 exec, -1")
            if stamps:
                a(f"v_writelane_b32 v254, s{sCNT}, {['fk','f1','fz','fu'].index(name)}")
        f.cost = 5
        return f

    a.wait('kvdma')
    a("s_barrier")
    a.run([stamp('barA0')])
    KR, KO = 80, 136
    for u in range(3):
        for j in range(3):
            a(f"ds_read_b64_tr_b16 {vr(KR+10*u+2*j,2)}, v{vKVA} offset:{64*u + j*640}")
        for j in range(2):
            a(f"ds_read_b64_tr_b16 {vr(KR+10*u+6+2*j,2)}, v{vKVA} offset:{64*u + j*640 + (L_VI-L_KI)}")
        if u == 0 and cfg.get('ssm_at', 0) == 0:
            a.run(ssm)
    for u in range(6):
        a(f"v_alignbit_b32 v{CF+u}, v{CF+u}, v{CF+u}, 16")

    def kv_compute(u):
        it = []
        k = KR + 10 * u
        c10, c32 = CF + 2 * u, CF + 2 * u + 1
        SH, AC, VF, OUT = 112, 120, 128, KO + 4 * u
        for n in range(5):
            it.append(f"v_alignbit_b32 v{SH+n}, v{k+n+1}, v{k+n}, 16")
        pr = lambda e: (k + (e + 1) // 2, k + (e + 3) // 2) if e & 1 else (SH + e // 2, SH + e // 2 + 1)
        for e in range(8):
            it.append(f"v_dot2_f32_bf16 v{AC+e}, v{pr(e)[0]}, v{c32}, 0")
        for e in range(8):
            it.append(f"v_dot2_f32_bf16 v{AC+e}, v{pr(e)[1]}, v{c10}, v{AC+e}")
        for n in range(4):
            it.append(f"v_lshlrev_b32 v{VF+2*n}, 16, v{k+6+n}")
            it.append(f"v_and_b32 v{VF+2*n+1}, 0xffff0000, v{k+6+n}")
        for n in range(4):
            it.append(f"v_pk_mul_f32 {vr(AC+2*n,2)}, {vr(AC+2*n,2)}, {vr(VF+2*n,2)}")
        for n in range(4):
            it.append(f"v_cvt_pk_bf16_f32 v{OUT+n}, v{AC+2*n}, v{AC+2*n+1}")
        so = ("0", f"s{sU0}", f"s{sU5}")[u]
        it.append((f"buffer_store_dwordx4 {vr(KO+4*u,4)}, v{vKVS}, {srd(S_WS)}, {so} offen sc1", 'kvst'))
        return it
    for u in range(3):
        a.run(kv_compute(u))
    a.run([stamp('kv_done')])
    if cfg.get('ssm_at', 0) == 1:
        a.run(ssm)
    for _ in range(cfg.get('wA', 1)):
        a.run(w1_step())
    a(f"v_readfirstlane_b32 s{sTAG}, v{vEP}")
    a(f"s_add_u32 s{sTAG}, s{sTAG}, {hex(TAGC)}")

    S1, S2, S3, TT = 64, 65, 59, 67
    XF = 72
    ln = [f"s_mov_b32 s{sT0}, 0x3f803f80"]
    for i in range(10):
        c = lambda r: "0" if i == 0 else f"v{r}"
        ln.append(f"v_dot2_f32_bf16 v{S1}, v{XR+i}, s{sT0}, {c(S1)}")
        ln.append(f"v_dot2_f32_bf16 v{S2}, v{XR+i}, v{XR+i}, {c(S2)}")
    for i in range(10):
        ln.append(f"v_dot2_f32_bf16 v{S3}, v{XR+i}, v{GR+i}, {'0' if i == 0 else f'v{S3}'}")
    unp = []
    for i in range(10):
        unp.append(f"v_lshlrev_b32 v{XF+2*i}, 16, v{XR+i}")
        unp.append(f"v_and_b32 v{XF+2*i+1}, 0xffff0000, v{XR+i}")
    ln.append(unp.pop(0))
    for m in ("quad_perm:[1,0,3,2]", "quad_perm:[2,3,0,1]", "row_half_mirror", "row_mirror"):
        for s in (S1, S2, S3):
            ln.append(f"v_add_f32_dpp v{s}, v{s}, v{s} {m} row_mask:0xf bank_mask:0xf")
    for k, s in enumerate((S1, S2, S3)):
        ln.append(f"v_mov_b32 v{TT+k}, v{s}")
    for k, s in enumerate((S1, S2, S3)):
        ln.append(f"v_permlane16_swap_b32 v{s}, v{TT+k}")
    for k, s in enumerate((S1, S2, S3)):
        ln.append(f"v_add_f32 v{s}, v{s}, v{TT+k}")
    vRS, vNM = 70, 92
    inv = 0x3ACCCCCD
    ln += [f"v_mul_f32 v{S1}, {hex(inv)}, v{S1}",
           f"v_mul_f32 v{S2}, {hex(inv)}, v{S2}",
           f"v_mul_f32 v{S3}, 0xbfb8aa3b, v{S3}",
           f"v_fma_f32 v{S2}, -v{S1}, v{S1}, v{S2}",
           f"v_exp_f32 v{S3}, v{S3}",
           f"v_max_f32 v{S2}, 0, v{S2}",
           f"v_add_f32 v{S2}, 0x3727c5ac, v{S2}",
           f"v_rsq_f32 v{vRS}, v{S2}",
           f"v_add_f32 v{S3}, 1.0, v{S3}",
           f"v_rcp_f32 v{S3}, v{S3}",
           f"v_mul_f32_e64 v{vNM}, -v{S1}, v{vRS}"]
    ln += unp
    for i in range(10):
        ln.append(f"v_pk_fma_f32 {vr(XF+2*i,2)}, {vr(XF+2*i,2)}, {vr(vRS,2)}, {vr(vNM,2)} op_sel_hi:[1,0,0]")
    for i in range(10):
        ln.append(f"v_cvt_pk_bf16_f32 v{XR+i}, v{XF+2*i}, v{XF+2*i+1}")
        if i == 3:
            ln.append(f"ds_write_b128 v{vLW}, {vr(XR,4)}")
        if i == 7:
            ln.append(f"ds_write_b128 v{vLW}, {vr(XR+4,4)} offset:512")
    ln.append((f"ds_write_b64 v{vLW3}, {vr(XR+8,2)} offset:1024", 'lnw'))
    a.run(ln)
    a.run([stamp('ln_done')])
    a.wait('kvst', 'lnw')
    a("s_barrier")
    a.run([stamp('barA1')])
    a.run([flag_store(WS_FK, sFI, FSZ, 'fk')])
    HB = 64
    for u, (va, off) in enumerate(((vA1, 0), (vA1, 640), (vA2, 0))):
        for e2 in range(2):
            a(f"ds_read_b64_tr_b16 {vr(HB+4*u+2*e2,2)}, v{va} offset:{off + e2*4*PL}")
    a(f"s_mov_b32 exec_lo, 1")
    a(f"s_mov_b32 exec_hi, 1")
    a(f"buffer_store_dword v{S3}, v{vGS}, {srd(S_WS)}, 0 offen sc1")
    a("s_mov_b64 exec, -1")
    for u, so in enumerate((sU2, sU3, sU4)):
        a(f"buffer_store_dwordx4 {vr(HB+4*u,4)}, v{vHS}, {srd(S_WS)}, s{so} offen sc1", tok='hst')
    if cfg.get('ssm_at', 0) == 2:
        a.run(ssm)
    a.run(w1_step())
    a.run(g1set)
    small = [f"global_load_dwordx2 {vr(BL+2*t,2)}, v{vX0}, {sp(P_B1)} offset:{32*t}" for t in range(4)]
    small.append(f"global_load_ushort v{vB2}, v{vX1}, {sp(P_B2)}")
    qld = [f"global_load_dwordx4 {vr(QR,4)}, v{vQO}, {sp(P_Q)}",
           f"global_load_dwordx4 {vr(QR+4,4)}, v{vQO}, {sp(P_Q)} offset:64",
           f"global_load_dwordx2 {vr(QR+8,2)}, v{vQO2}, {sp(P_Q)} offset:128"]
    a.run(small)
    a.run(cvset2)
    for s in (sX0, sX1, sX2):
        a(f"s_add_u32 s{s}, s{s}, {WS_KV}")
    kfix = ["s_mov_b64 exec, 1"]
    for cs in range(3):
        kfix += [f"v_lshlrev_b32 v{vT}, 16, v{KL+4*cs}",
                 f"v_and_b32 v{vT2}, 0xffff0000, v{KL+4*cs}",
                 f"v_add_f32 v{vT}, s{28+cs}, v{vT}",
                 f"v_cvt_pk_bf16_f32 v{KL+4*cs}, v{vT}, v{vT2}"]
    kfix.append("s_mov_b64 exec, -1")
    for cs in range(3):
        kfix.append(f"ds_write_b128 v{vCW}, {vr(KL+4*cs,4)} offset:{cs*KP}")
    a.run(kfix)
    while nxt < cfg.get('pollat', 4):
        a.run(w1_step())
    a.run([stamp('pk_iss')])
    a(poll_issue(vPK, '0xffffffff'))
    for _ in range(cfg.get('pollgap', 0)):
        a.run(w1_step())
    a.run([poll_check('fk', vPK, '0xffffffff'), stamp('fk_ok')])
    XL = 192
    for cs, so in enumerate((sX0, sX1, sX2)):
        a(f"buffer_load_dwordx4 {vr(XL+4*cs,4)}, v1, {srd(S_WS)}, s{so} offen sc1")
    a.run(qld)
    for _ in range(cfg.get('xgap', 1)):
        a.run(w1_step())
    for cs in range(3):
        a(f"ds_write_b128 v{vCW}, {vr(XL+4*cs,4)} offset:{L_CX + XPAD - L_CK - KPAD + cs*XP}", tok='xw')
    a.wait('xw', 'hst')
    a("s_barrier")
    a.run([stamp('barC')])

    CA, CB, CACC, CY = 64, 128, 192, 208
    NSL = 4

    def cb_slot(part, n):
        return CB + 4 * (n if part == 1 else 15 - n)

    def c_read(part, c):
        va, vb = (vCA, vCB) if part == 1 else (vCA2, vCB2)
        return ([f"ds_read_b64_tr_b16 {vr(CA+4*c+2*e2,2)}, v{va} offset:{256*c + 32*(1-e2)}" for e2 in range(2)] +
                [f"ds_read_b64_tr_b16 {vr(cb_slot(part,c)+2*e2,2)}, v{vb} offset:{256*c + 32*e2}" for e2 in range(2)])
    tiles = [(1, m, m) for m in range(16)] + [(2, n, 2 * n + 1) for n in range(8)]

    def tile_epi(g):
        part, k, m = tiles[g]
        d = CACC + 4 * (g % NSL)
        p = CACC + 4 * ((g - 1) % NSL)
        y = CY + g
        dp = "wave_shr:1 row_mask:0xf bank_mask:0xf bound_ctrl:0"
        it = [f"v_add_f32_dpp v{d+2}, v{d+3}, v{d+2} {dp}"]
        if k:
            it.append(f"v_mov_b32_dpp v{d+3}, v{p+3} wave_shl:1 row_mask:0xf bank_mask:0xf")
        it.append(f"v_add_f32_dpp v{d+1}, v{d+2}, v{d+1} {dp}")
        if k:
            it.append(f"v_mov_b32_dpp v{d+2}, v{p+2} wave_shl:1 row_mask:0xf bank_mask:0xf")
        it.append(f"v_add_f32_dpp v{y}, v{d+1}, v{d} {dp}")
        if k:
            it.append(f"v_mov_b32_dpp v{d+1}, v{p+1} wave_shl:1 row_mask:0xf bank_mask:0xf")
        if g in (15, 23):
            va, mk = (vCRW, '0xffff0000') if g == 15 else (vCRW2, '0xff000000')
            it.append((f"s_mov_b32 exec_lo, 0\ns_mov_b32 exec_hi, {mk}\nds_write_b128 v{va}, {vr(d,4)}\ns_mov_b64 exec, -1", 'carw'))
        return it

    BUFS = ([232 + 4*i for i in range(5)] + [64 + 4*i for i in range(8)] + [128 + 4*i for i in range(4)] + [176 + 4*i for i in range(4)])[:NB]
    GR1 = cfg.get('grp', 2)

    def h_load(n):
        i, j = divmod(n, 16)
        return f"buffer_load_dwordx4 {vr(BUFS[n % NB],4)}, v{vHL+i}, {srd(S_WS)}, s{TK+j} offen sc1"
    CPRE = 3
    for c in range(CPRE):
        a.run(c_read(1, c))
    a.run([flag_store(WS_F1, sP, FS1, 'f1')])
    while nxt < NR:
        a.run(w1_step())
    mf, first = [], []
    for g, (part, k, m) in enumerate(tiles):
        d = vr(CACC + 4 * (g % NSL), 4)
        first.append(len(mf))
        mf += [f"v_mfma_f32_16x16x32_bf16 {d}, {vr(CA+4*c,4)}, {vr(cb_slot(part,m-c),4)}, {'0' if c == 0 else d}"
               for c in range(m + 1)]
    first += [len(mf)] * 8
    S = Sched(mf, cfg.get('ccap', 2.5))
    LEAD = cfg.get('lead', 7)
    for g in range(1, 24):
        S.reserve(first[g] - 1)
    for c in range(CPRE, 16):
        S.add('rd', c_read(1, c), 0, max(first[c] - LEAD, 0))
    for c in range(16):
        dl = first[16 + c // 2] - LEAD
        S.add('rd', c_read(2, c), first[15] + c + 1, max(dl, first[15] + c + 1))
    dbg = cfg.get('dbg', '')
    if 'r' in dbg:
        S.th['rd'] = []
    for g in range(23):
        ep = tile_epi(g)
        if 'e' in dbg:
            ep = []
        if 'c' in dbg:
            ep = [x for x in ep if not (isinstance(x, str) and x.startswith('v_cvt'))]
        if 'x' in dbg:
            ep = [x for x in ep if not (isinstance(x, str) and x.startswith('ds_write'))]
        if 'm' in dbg:
            ep = [x for x in ep if not (isinstance(x, str) and x.startswith('v_mov'))]
        S.add('ep', ep, first[g + 1] + 2, first[g + NSL - 1] - 1)
    cS, cE = cfg.get('cS', 0), cfg.get('cE', 185)
    nst = 16 - nxt
    P1A = cfg.get('p1at', 14)
    per = (cE - cS) / (nst + 1)
    DK = cfg.get('dk', 14)
    for r in range(nst):
        p0 = cS + r * per
        it = w1_step()
        for k, x in enumerate(it[:9]):
            S.add('wd', [x], int(p0 + k * per / DK), int(p0 + (k + 1) * per / DK))
        p1 = p0 + per
        pre = it[9:12]
        if nxt - 1 == P1A:
            pre = [poll_issue(vP1)] + pre
        S.add('w', pre[:-1], int(p1 - per / 5), int(p1) - 1)
        S.add('w', pre[-1:], int(p1), int(p1))
        for k, x in enumerate(it[12:]):
            S.add('w', [x], int(p1 + k * per / 4), int(p1 + k * per / 4))
    hn = 0
    tail = w1_step()
    S.add('wd', tail, int(cE - per), int(cE) - 1, pace=per / 11)
    tail = []
    while drn < 16:
        tail += w1_step()
        if drn == P1A:
            if 'p' not in dbg:
                tail += [poll_check('f1', vP1), stamp('f1_ok')]
        if drn >= P1A:
            for _ in range(2):
                if hn < 5:
                    tail.append(h_load(hn)); hn += 1
    S.add('wd', tail, cE, None, pace=(len(mf) - cE) / len(tail))
    if 'w' in dbg:
        a.run([x[0] for x in S.th['w']])
        a.wait_all()
        a.run([stamp('w_done')])
        S.th['w'] = []
    its = S.items()
    txt_of = lambda x: x if isinstance(x, str) else (x[0] if isinstance(x, tuple) else '')
    if 'D' in dbg:
        its = [x for x in its if not (txt_of(x).startswith('buffer_load') and 'lds' in txt_of(x)) and not (txt_of(x) == 'wait' and x[1].startswith('w1d'))]
    if 'R' in dbg:
        its = [x for x in its if not txt_of(x).startswith('ds_read_b64_tr_b16 a') and not (txt_of(x) == 'wait' and x[1].startswith('w1r'))]
    if 'V' in dbg:
        its = [x for x in its if not (txt_of(x) == 'wait' and x[1].startswith('w1d'))]
    if 'L' in dbg:
        its = [x for x in its if not (txt_of(x) == 'wait' and x[1].startswith('w1r'))]
    if 'H' in dbg:
        its = [x for x in its if not (txt_of(x).startswith('buffer_load_dwordx4 v[') )]
    a.run(its)
    info = {'conv': (S.over, S.under)}
    a.run([stamp('conv')])
    if dbg:
        a.wait_all()
    while hn < cfg.get('hearly', 8):
        a(h_load(hn)); hn += 1
    CR, ZO = 144, 208

    def epoch(a):
        a(f"s_or_b32 s{sU0}, s2, s{sW}")
        a(f"s_cbranch_scc1 L_noep")
        a.begin_cond('ep')
        a(f"s_mov_b32 s{sU0}, {WS_EP}")
        a(f"v_mov_b32 v34, s{sTAG}")
        a("s_mov_b64 exec, 1")
        a(f"buffer_store_dword v34, v0, {srd(S_WS)}, s{sU0} offen sc1")
        a("s_mov_b64 exec, -1")
        a.end_cond()
        a.label("L_noep")
    epoch.cost = 2
    zf = []
    for k in range(0, 16, 2):
        zf.append(f"ds_read2_b32 {vr(CR+k,2)}, v{vCRR} offset0:{1+8*k} offset1:{1+8*(k+1)}")
    for k in range(0, 8, 2):
        zf.append(f"ds_read2_b32 {vr(CR+16+k,2)}, v{vCRR2} offset0:{1+16*k} offset1:{1+16*(k+1)}")
    for k in range(0, 24, 2):
        zf += [f"v_add_f32 v{CY+k}, v{CY+k}, v{CR+k}", f"v_add_f32 v{CY+k+1}, v{CY+k+1}, v{CR+k+1}",
               f"v_cvt_pk_bf16_f32 v{CY+k}, v{CY+k}, v{CY+k+1}",
               f"ds_write_b16 v{vZW}, v{CY+k} offset:{128*k}", f"ds_write_b16_d16_hi v{vZW}, v{CY+k} offset:{128*(k+1)}"]
    for i in range(3):
        zf.append(f"ds_read_b128 {vr(ZO+4*i,4)}, v{vZR} offset:{1024*i}")
    zst = [f"buffer_store_dwordx4 {vr(ZO,4)}, v{vZS}, {srd(S_WS)}, 0 offen sc1",
           f"buffer_store_dwordx4 {vr(ZO+4,4)}, v{vZS}, {srd(S_WS)}, 0 offen offset:2048 sc1",
           f"buffer_store_dwordx4 {vr(ZO+8,4)}, v{vZS2}, {srd(S_WS)}, 0 offen sc1",
           f"buffer_load_dword v{vGG}, v{vGA}, {srd(S_WS)}, 0 offen sc1", epoch]

    ACC = (96, 192)
    RD, BI = 144, 112
    mf, pos = [], {}
    for q in range(64 // GR1):
        for t in range(4):
            for n in range(q * GR1, (q + 1) * GR1):
                i, j = divmod(n, 16)
                d = vr(ACC[i & 1] + 4 * t, 4)
                pos.setdefault(n, len(mf))
                c = d if j else ('0' if i < 3 else vr(BI + 4 * t, 4))
                mf.append(f"v_mfma_f32_16x16x32_bf16 {d}, {ar(16*j+4*t,4)}, {vr(BUFS[n % NB],4)}, {c}")
    S = Sched(mf)
    for n in range(64):
        S.reserve(pos[n] - 1)
    k = 0
    for n in range(hn, 64):
        free = 4 * GR1 * ((n - NB) // GR1 + 1) if n >= NB else 0
        want = max(4 * (n - NB + GR1) + 1, 2 * k)
        S.add('h', [h_load(n)], max(free, want), max(free, want))
        k += 1
    S.add('st', [stamp('g1_first')], 0, 0)
    for i in range(3):
        S.add('red', [(f"ds_write_b128 v{vRW+i}, {vr(ACC[i & 1]+4*t,4)} offset:{t*1024}", f'redw{i}') for t in range(4)],
              64 * (i + 1) + 1, 64 * (i + 1) + 13, pace=3)
        if i == 1:
            S.add('red', [('wait', 'redw1'), "s_barrier"], 128 + 16, 128 + 17)
            S.add('red', [f"ds_read_b128 {vr(RD+4*k,4)}, v{vRR} offset:{k*1024}" for k in range(8)], 128 + 18, 128 + 30)
            S.add('red', [f"v_add_f32 v{BI+k % 16}, v{BI+k % 16}, v{RD+k}" for k in range(32)], 128 + 30, 188)
    S.add('red', [('wait', 'redw2'), "s_barrier"], 192 + 16, 192 + 17)
    S.add('red', [f"ds_read_b128 {vr(RD+4*k,4)}, v{vRR} offset:{8192 + k*1024}" for k in range(4)], 192 + 18, 192 + 30)
    S.add('z', tile_epi(23), 0, 8)
    S.add('z', [('wait', 'carw'), "s_barrier"], 12, 13)
    S.add('z', zf, 14, 140)
    bun = []
    for t in range(8):
        bun += [f"v_lshlrev_b32 v{BI+2*t}, 16, v{BL+t}", f"v_and_b32 v{BI+2*t+1}, 0xffff0000, v{BL+t}"]
    w2tab = [f"s_and_b32 s{sT0}, s{sDT}, 3", f"s_lshr_b32 s{sT1}, s{sDT}, 2",
             f"s_lshl1_add_u32 s{sT0}, s{sT0}, s{sT1}",
             f"s_mul_i32 s{sT0}, s{sT0}, 3", f"s_lshr_b32 s{sT0}, s{sT0}, 1", f"s_lshl_b32 s{TUmap[0]}, s{sT0}, 10"]
    for j in range(1, 12):
        w2tab += [f"s_add_u32 s{sT0}, s{TUmap[j-1]}, 1024", f"s_cmp_lt_u32 s{sT0}, {12*1024}\ns_cselect_b32 s{TUmap[j]}, s{sT0}, 0"]
    w2src = [f"s_mul_i32 s{sT0}, s{sW}, {384*4096}", f"s_lshl_b32 s{sT1}, s{sST}, 7", f"s_add_u32 s{sT0}, s{sT0}, s{sT1}"]
    w2src += weight_src(4096, sT0)
    w2src += [f"s_lshl_b32 s{sT0}, s{sW}, 5"] + [f"v_xor_b32 v{VT+t}, s{sT0}, v{VT+t}" for t in range(4)]
    vPU = vP1
    vZG, vZLW, vZT, vZT2, vOG, vR2R = 20, 21, 22, 23, 28, 33
    vR2W = 25
    late = [
             f"s_lshl2_add_u32 s{sT0}, s{sDG}, s{sW}",
             f"s_mul_i32 s{sT0}, s{sT0}, 48",
             f"s_lshl1_add_u32 s{sT0}, s{sFT}, s{sT0}",
             f"s_lshl_b32 s{sT0}, s{sT0}, 10",
             f"s_add_u32 s{sT0}, s{sT0}, {WS_U}",
             f"s_add_u32 s{sT0}, s{sT0}, s{sSP}",
             f"v_add_u32 v{vUS}, s{sT0}, v1",
             f"s_mul_i32 s{sT0}, s{sDT}, 5",
             f"s_lshr_b32 s{sT0}, s{sT0}, 2",
             f"s_mul_i32 s{sT0}, s{sT0}, 24",
             f"s_mul_i32 s{sT1}, s{sW}, 6",
             f"s_add_u32 s{sT0}, s{sT0}, s{sT1}",
             f"v_cmp_lt_u32 vcc, 5, v0",
             f"v_add_u32 v{vPU}, s{sT0}, v0",
             f"s_mul_i32 s{sU5}, s{sDG}, 24",
             f"v_cndmask_b32_e64 v{vT}, 0, 18, vcc",
             f"v_add_u32 v{vPU}, v{vPU}, v{vT}",
             f"v_mul_u32_u24 v{vPU}, {FSU}, v{vPU}",
             f"v_add_u32 v{vPU}, {WS_FU}, v{vPU}",
             f"s_add_u32 s{sU5}, s{sU5}, s{sFT}",
             f"v_add_u32 v{vPK}, {(WS_FZ - WS_FK - 32*FSZ) & 0xffffffff}, v{vPK}",
             f"v_cmp_lt_u32 vcc, 31, v0",
             f"s_mov_b32 s{sU2}, 0xbdd2d3e8",
             f"v_mov_b32 v{vT}, 0xc0135761",
             f"v_cndmask_b32 v{vPU}, v{vPU}, v{vPK}, vcc"]
    late2 = [
             f"v_lshrrev_b32 v{vT}, 3, v0",
             f"v_lshl_add_u32 v{vT}, s{sW}, 3, v{vT}",
             f"v_and_b32 v{vT2}, 7, v0",
             f"v_lshlrev_b32 v{vT2}, 4, v{vT2}",
             f"v_lshl_add_u32 v{vZG}, v{vT}, 12, v{vT2}",
             f"v_mul_u32_u24 v{vT}, {PZ}, v{vT}",
             f"v_add_u32 v{vT}, v{vT}, v{vT2}",
             f"v_add_u32 v{vZLW}, {L_ZI}, v{vT}",
             f"s_mul_i32 s{sT0}, s{sDT}, {80*4096}",
             f"s_lshl_b32 s{sT1}, s{sST}, 7",
             f"s_add_u32 s{sT0}, s{sT0}, s{sT1}",
             f"s_add_u32 s{sX0}, s{sT0}, {WS_Z}",
             f"s_add_u32 s{sX1}, s{sX0}, {32*4096}",
             f"s_add_u32 s{sX2}, s{sX0}, {64*4096}",
             f"s_cmp_lt_u32 s{sW}, 2\ns_cselect_b32 s{sX2}, s{sX2}, {OOB}",
             f"v_lshl_add_u32 v{vT}, v{vH}, 3, v{vR}",
             f"v_mul_u32_u24 v{vT}, {PZ}, v{vT}",
             f"v_lshl_add_u32 v{vT2}, v{vH}, 2, v{vR}",
             f"v_mul_u32_u24 v{vT2}, {PZ}, v{vT2}",
             f"s_lshl_b32 s{sT0}, s{sW}, 5",
             f"s_add_u32 s{sT0}, s{sT0}, {L_ZI}",
             f"v_lshl_add_u32 v{vZT}, v{vC}, 3, s{sT0}",
             f"v_add_u32 v{vZT2}, v{vZT}, v{vT2}",
             f"v_add_u32 v{vZT}, v{vZT}, v{vT}"]
    for jn in range(1, 4):
        late2 += [f"s_xor_b32 s{sT0}, s{sW}, {jn}",
                 f"s_mul_i32 s{sT0}, s{sT0}, 3072",
                 f"s_add_u32 s{sT0}, s{sT0}, {L_RED + (jn-1)*1024}",
                 f"v_add_u32 v{vR2W+jn-1}, s{sT0}, v1"]
    late2 += [f"s_mul_i32 s{sT0}, s{sW}, 3072",
             f"s_add_u32 s{sT0}, s{sT0}, {L_RED}",
             f"v_add_u32 v{vR2R}, s{sT0}, v1"]
    nx2 = dr2 = 0
    lasth = 4 * (63 - NB + GR1) + 1
    S.add('set', bun, 4, 150)
    S.add('set', w2tab + w2src, 4, lasth)
    S.add('set', late, 4, 250)
    S.add('h', zst, max(lasth + 2, 146), None, pace=2)
    for p in cfg.get('w2pre', [12]):
        S.add('h', w_issue('w2', nx2), lasth + p, None, pace=3)
        nx2 += 1
    d1 = cfg.get('d1', '')
    for nm in ('z', 'set', 'red'):
        if nm[0] in d1:
            a.run([x[0] for x in S.th[nm]]); S.th[nm] = []
            a.wait_all(vm=False)
    a.run([stamp('g1_go')])
    its = S.items()
    if 'h' in d1:
        its = [x for x in its if not txt_of(x).startswith('buffer_load_dwordx4 v[')]
    if 'm' in d1:
        its = [(f"v_mov_b32 v35, v{x.split('v[')[2].split(':')[0]}" if txt_of(x).startswith('v_mfma') else x) for x in its]
    if 't' in d1:
        tl = [x for x in its if txt_of(x).startswith('buffer_store') or 'lds' in txt_of(x)]
        its = [x for x in its if x not in tl] + [stamp('g1_x')] + tl
    a.run(its)
    info['g1'] = (S.over, S.under)
    a.run([stamp('g1_mfma')])

    Z, G0, UO = ACC[1], 96, 220
    vUL = 10
    e1 = [f"s_mul_i32 s{sT0}, s{sDT}, {5*48}",
          f"s_mul_i32 s{sT1}, s{sW}, 12",
          f"s_add_u32 s{sT0}, s{sT0}, s{sT1}",
          f"s_lshl_b32 s{sT0}, s{sT0}, 10",
          f"s_add_u32 s{sT0}, s{sT0}, {WS_U}",
          f"v_add_u32 v{vUL}, s{sT0}, v1"]
    for m in range(1, 5):
        e1.append(f"v_add_u32 v{vUL+m}, {48*1024}, v{vUL+m-1}")
    for t in range(8):
        a(f"v_pk_add_f32 {vr(Z+2*t,2)}, {vr(Z+2*t,2)}, {vr(RD+2*t,2)}")
    for t in range(8):
        a(f"v_pk_mul_f32 {vr(G0+2*t,2)}, {vr(Z+2*t,2)}, {vr(Z+2*t,2)}")
    for t in range(8):
        a(f"v_pk_fma_f32 {vr(G0+2*t,2)}, {vr(G0+2*t,2)}, {sp(sU2)}, {vr(vT,2)} op_sel_hi:[1,0,0]")
    for t in range(8):
        a(f"v_pk_mul_f32 {vr(G0+2*t,2)}, {vr(G0+2*t,2)}, {vr(Z+2*t,2)}")
    for t in range(16):
        a(f"v_exp_f32 v{G0+t}, v{G0+t}")
    for t in range(8):
        a(f"v_pk_add_f32 {vr(G0+2*t,2)}, {vr(G0+2*t,2)}, 1.0 op_sel_hi:[1,0]")
    for t in range(16):
        a(f"v_rcp_f32 v{G0+t}, v{G0+t}")
    for t in range(8):
        a(f"v_pk_mul_f32 {vr(G0+2*t,2)}, {vr(G0+2*t,2)}, {vr(Z+2*t,2)}")
    for t in range(8):
        a(f"v_cvt_pk_bf16_f32 v{UO+t}, v{G0+2*t}, v{G0+2*t+1}")
    for half in range(2):
        a(f"buffer_store_dwordx4 {vr(UO+4*half,4)}, v{vUS}, {srd(S_WS)}, 0 offen offset:{1024*half} sc1", tok='ust')
    a.run([stamp('u_st')])

    UPA = cfg.get('upoll_at', 10)

    def w2_step():
        nonlocal dr2, nx2
        it = []
        if nx2 >= NR or nx2 == 12:
            it += w_drain('w2', dr2); dr2 += 1
        if nx2 == UPA:
            it.append(poll_issue(vPU, 'uz'))
        if nx2 < 12:
            it += w_issue('w2', nx2); nx2 += 1
        return it
    PP, ZL, ZRg, ZU = 200, 64, 76, 86
    pm = [f"v_lshlrev_b32 v{vB2}, 16, v{vB2}", f"v_sub_f32 v{vOG}, 1.0, v{vGG}", f"v_mul_f32 v{vB2}, v{vB2}, v{vOG}"]
    for k in range(10):
        pm += [f"v_lshlrev_b32 v{PP+2*k}, 16, v{QR+k}", f"v_and_b32 v{PP+2*k+1}, 0xffff0000, v{QR+k}",
               f"v_pk_mul_f32 {vr(PP+2*k,2)}, {vr(PP+2*k,2)}, {vr(vGG,2)} op_sel_hi:[1,0]"]
    zl = []
    for i, so in enumerate((sX0, sX1, sX2)):
        zl.append(f"buffer_load_dwordx4 {vr(ZL+4*i,4)}, v{vZG}, {srd(S_WS)}, s{so} offen sc1")
    zw = [(f"ds_write_b128 v{vZLW}, {vr(ZL+4*i,4)} offset:{i*32*PZ}", 'zw') for i in range(3)]
    zr = []
    for m in range(5):
        va, off = (vZT, (32 * (m >> 1) + 4 * (m & 1)) * PZ) if m < 4 else (vZT2, 64 * PZ)
        zr.append(f"ds_read_b64_tr_b16 {vr(ZRg+2*m,2)}, v{va} offset:{off}")
    zv = []
    for k in range(10):
        zv += [f"v_lshlrev_b32 v{ZU+2*k}, 16, v{ZRg+k}", f"v_and_b32 v{ZU+2*k+1}, 0xffff0000, v{ZRg+k}",
               f"v_fma_f32 v{PP+2*k}, v{PP+2*k}, v{ZU+2*k}, v{vB2}", f"v_fma_f32 v{PP+2*k+1}, v{PP+2*k+1}, v{ZU+2*k+1}, v{vB2}"]
    for _ in range(cfg.get('w2a', 1)):
        a.run(w2_step())
    a.run(e1 + late2)
    a.wait('ust')
    a("s_barrier")
    a.run([stamp('barD'), flag_store(WS_FU, sU5, FSU, 'fu', guard=f"s_cmp_ge_u32 s{sID}, 30"),
           flag_store(WS_FZ, sFI, FSZ, 'fz', wave=1)])
    a.run(w2_step())
    a.run(w2_step())
    a.run(pm)
    assert nx2 <= UPA
    while nx2 < 12 or dr2 < min(UPA, 12):
        a.run(w2_step())
    a.run([poll_check('fu', vPU, 'uz'), stamp('fu_ok')])

    NB2 = cfg.get('nb2', 16)
    GR2 = cfg.get('grp2', 2)
    UBUF = ([ar(192 + 4*i, 4) for i in range(16)] + [vr(220 + 4*i, 4) for i in range(8)] )[:NB2]
    AC2, OWN, RD2 = (108, 120), 132, 152

    def u_load(n):
        m, j = divmod(n, 12)
        return f"buffer_load_dwordx4 {UBUF[n % NB2]}, v{vUL+m}, {srd(S_WS)}, s{TUmap[j]} offen sc1"
    un = 0
    UE = cfg.get('uearly', 8)
    left = 12 - dr2
    while dr2 < 12:
        for _ in range(UE // left):
            a(u_load(un)); un += 1
        a.run(w2_step())
    while un < UE:
        a(u_load(un)); un += 1
    a.run(zl)

    def mf2(n, jn):
        m, j = divmod(n, 12)
        d = vr(OWN + 4 * m, 4) if jn == 0 else vr(AC2[m & 1] + 4 * (jn - 1), 4)
        return f"v_mfma_f32_16x16x32_bf16 {d}, {UBUF[n % NB2]}, {ar(16*j+4*jn,4)}, {'0' if j == 0 else d}"
    mf, pos = [], {}
    for q in range(60 // GR2):
        ns = range(q * GR2, (q + 1) * GR2)
        for jn in ((1, 2, 3, 0) if ns[0] < 48 else (1, 2, 3)):
            for n in ns:
                pos.setdefault(n, len(mf))
                mf.append(mf2(n, jn))
    pown = len(mf)
    mf += [mf2(n, 0) for n in range(48, 60)]
    S = Sched(mf)
    for n in range(60):
        S.reserve(pos[n] - 1)
    k = 0
    assert NB2 >= 12
    for n in range(un, 60):
        free = 4 * GR2 * ((n - NB2) // GR2 + 1) if n >= NB2 else 0
        want = max(4 * (n - NB2 + GR2) + 1, 2 * k)
        S.add('u', [u_load(n)], max(free, want), max(free, want))
        k += 1
    S.add('st', [stamp('g2_first')], 0, 0)
    rd = lambda m: [f"ds_read_b128 {vr(RD2+12*(m % 2)+4*k,4)}, v{vR2R} offset:{m*12288 + k*1024}" for k in range(3)]
    ad = lambda m: [f"v_add_f32 v{OWN+4*m+r}, v{OWN+4*m+r}, v{RD2+12*(m % 2)+4*k+r}" for k in range(3) for r in range(4)]

    def fin(m):
        it = [f"v_fmac_f32 v{PP+4*m+r}, v{OWN+4*m+r}, v{vOG}" for r in range(4)]
        for hh in range(2):
            it.append(f"v_cvt_pk_bf16_f32 v{QR+2*m+hh}, v{PP+4*m+2*hh}, v{PP+4*m+2*hh+1}")
        return it
    opol = cfg.get('opol', '')
    O0 = cfg.get('o0at', 180)
    for m in range(4):
        p = 48 * (m + 1)
        S.add('red', [(f"ds_write_b128 v{vR2W+jn-1}, {vr(AC2[m & 1]+4*(jn-1),4)} offset:{m*12288}", f'r2w{m}') for jn in range(1, 4)],
              p, p + 8, pace=3)
        if m == 0:
            S.add('red', zw, p + 12, p + 24, pace=4)
        if m & 1:
            S.add('red', [('wait', f'r2w{m}'), "s_barrier"], p + 11, p + 12)
            rr = (zr if m == 1 else []) + rd(m - 1) + rd(m)
            S.add('red', rr, p + 13, p + 13 + len(rr))
            S.add('fin', (zv if m == 1 else []) + ad(m - 1) + fin(m - 1) + ad(m) + fin(m), p + 14 + len(rr), p + 90 if m == 1 else None)
            S.add('fin', [f"global_store_dwordx4 v{vQO}, {vr(QR+2*(m-1),4)}, {sp(P_OUT)} offset:{32*(m-1)} {opol}"], O0 if m == 1 else 0, 200 if m == 1 else None)
    S.add('red', [(f"ds_write_b128 v{vR2W+jn-1}, {vr(AC2[0]+4*(jn-1),4)} offset:{4*12288}", 'r2x') for jn in range(1, 4)],
          pown + 1, pown + 6, pace=2)
    a.run(S.items(keep=('fin',)))
    info['g2'] = (S.over, S.under)
    a.run([stamp('g2_mfma')])
    a.wait('r2x')
    a("s_barrier")
    RD4 = 176
    for k in range(3):
        a(f"ds_read_b128 {vr(RD4+4*k,4)}, v{vR2R} offset:{4*12288 + k*1024}")
    a.run(S.left.get('fin', []))
    for k in range(3):
        for hh in range(2):
            a(f"v_pk_add_f32 {vr(OWN+16+2*hh,2)}, {vr(OWN+16+2*hh,2)}, {vr(RD4+4*k+2*hh,2)}")
    a.run(fin(4))
    a(f"global_store_dwordx2 v{vQO2}, {vr(QR+8,2)}, {sp(P_OUT)} offset:128 {opol}")
    a.run([stamp('end')])
    if stamps:
        a.wait_all()
        a.run([stamp('drained')])
        a("s_memrealtime s[98:99]")
        a(f"v_writelane_b32 v255, s96, 30")
        a(f"v_writelane_b32 v255, s98, 31")
        for k in range(4):
            a(f"v_readlane_b32 s{sT0}, v254, {k}")
            a(f"v_writelane_b32 v255, s{sT0}, {26+k}")
        a(f"s_lshl2_add_u32 s{sT0}, s2, s{sW}")
        a(f"s_lshl_b32 s{sT0}, s{sT0}, 8")
        a(f"s_add_u32 s{sT0}, s{sT0}, {WS_DBG}")
        a(f"v_lshlrev_b32 v{vT}, 2, v0")
        a(f"buffer_store_dword v255, v{vT}, {srd(S_WS)}, s{sT0} offen")
    if amp:
        if amp[2] >= 0:
            a(f"s_cmp_lg_u32 s2, {amp[2]}")
            a("s_cbranch_scc1 L_end")
        a("s_memrealtime s[100:101]")
        a("s_sub_u32 s98, s98, s96")
        a(f"s_mul_i32 s98, s98, {20 if amp[3] == 'r' else 1}")
        a("s_min_u32 s98, s98, 200000")
        a("s_add_u32 s98, s98, s100")
        a.label("L_amp")
        a("s_memrealtime s[100:101]")
        a("s_sub_u32 s100, s100, s98")
        a("s_cmp_lt_i32 s100, 0")
        a("s_cbranch_scc1 L_amp")
    a.label("L_end")
    a("s_endpgm")

    ref = open(f"cdna_kernels/{NAME}.s.ref").read().split('\n')
    head = [l for l in ref if l.startswith(';') and '@launch' not in l and 'Override' not in l and 'grid=ceil' not in l]
    txt = '\n'.join(head) + f"\n; @launch grid=(256,1,1) block=(256,1,1) lds={L_END}\n"
    txt += f""".amdgcn_target "amdgcn-amd-amdhsa--gfx950"
.text
.globl {NAME}_kernel
.p2align 8
.type {NAME}_kernel,@function
{NAME}_kernel:
"""
    txt += a.text()
    txt += f""".section .rodata,"a"
.p2align 6
.amdhsa_kernel {NAME}_kernel
  .amdhsa_next_free_vgpr 512
  .amdhsa_next_free_sgpr 102
  .amdhsa_accum_offset 256
  .amdhsa_group_segment_fixed_size 0
  .amdhsa_kernarg_size 120
  .amdhsa_user_sgpr_count 2
  .amdhsa_user_sgpr_kernarg_segment_ptr 1
  .amdhsa_system_sgpr_workgroup_id_x 1
  .amdhsa_float_denorm_mode_32 3
.end_amdhsa_kernel
"""
    return txt, dict(n_ins=a.n_ins, n_nop=a.n_nop, stamps=STAMPS, sched=info)


if __name__ == "__main__":
    import json
    out = sys.argv[1]
    cfg = json.loads(sys.argv[2]) if len(sys.argv) > 2 else {}
    txt, info = gen(cfg)
    open(out, 'w').write(txt)
    print(out, info)
```

```python
import sys
from asmlib import Asm, merge, Sched

NAME = "gated_mix__ssm_conv_h3__mixer_token_mlp__prompt"

WS_H, WS_U, WS_KV, WS_Z, WS_G = 0x0, 0x280000, 0x480000, 0x700000, 0x980000
WS_F1, WS_FK, WS_FU, WS_FZ, WS_EP, WS_DBG = 0x990000, 0x998000, 0x9A0000, 0x9B0000, 0x9C0000, 0x9D0000
WS_SIZE = 0xA10000
OOB = 0x7F000000
TAGC = 0x9E3779B9

NR = 4
L_RED = 65536
PL = 1344
L_LN = 32768
PK = 704
L_KI = L_RED
L_VI = L_RED + 25600
L_ZSTG = L_RED + 4 * 12288
L_CK = L_RED + 61440
KP, KPAD = 4224, 96
L_CX = L_CK + 3 * KP
XP, XPAD = 4608, 512
L_CAR = L_CX + 3 * XP
L_END = L_CAR + 1600
L_ZI = L_CK
PZ = 144

S_WS, S_K, S_V, S_W, S_SSM = 4, 8, 12, 16, 24
P_Q, P_SH, P_D, P_B1, P_B2, P_GW, P_OUT = 36, 42, 46, 54, 58, 60, 62
TK = 68
sW, sXQ, sID, sA, sB, sJ, sSP, sTAG, sRING, sC0, sFI, sFJ = range(84, 96)
sT0, sT1, sT2, sT3 = 32, 33, 34, 35
sU0, sU1, sU2, sU3 = 20, 21, 22, 23
sX0, sX1, sX2 = 31, 48, 49
sC2 = 39
sCNT = 3
vH, vI, vR, vC, vT, vT2 = 37, 38, 39, 40, 42, 43
VW, VT = 2, 6
vPD = 18
vCA, vCB, vCA2, vCB2 = 20, 21, 22, 23
vCRW, vCRW2, vCRR, vCRR2, vZW, vZR, vZS, vZS2, vCW = 25, 26, 27, 28, 29, 30, 31, 32, 33
vP0, vP1 = 35, 24
CA, CB, CACC, CY, NSL = 64, 128, 192, 208, 4


def srd(n):
    return f"s[{n}:{n+3}]"


def sp(n):
    return f"s[{n}:{n+1}]"


def vr(n, k):
    return f"v[{n}:{n+k-1}]"


def ar(n, k):
    return f"a[{n}:{n+k-1}]"


def txt_of(x):
    return x if isinstance(x, str) else (x[0] if isinstance(x, tuple) else '')


class Prog:
    def __init__(self, role, cfg):
        self.a = Asm()
        self.role = role
        self.cfg = cfg
        self.stamps = cfg.get('stamps', False)
        self.names = []
        self.npoll = 0
        self.nxt = self.drn = 0
        self.nstep = 16 if role == 'A' else 12
        self.info = {}

    def stamp(self, name):
        def f(a):
            st = self.stamps
            if not st or (st != 1 and name not in st and name not in ('start', 'end')):
                return
            k = len(self.names)
            a("s_memtime s[98:99]")
            a("s_memrealtime s[100:101]")
            a(f"v_writelane_b32 v255, s98, {k}")
            a(f"v_writelane_b32 v255, s100, {32+k}")
            self.names.append(name)
        f.cost = 0
        return f

    def weight_src(self, pitch, sbase):
        it = [f"v_lshrrev_b32 v{vT}, 3, v0",
              f"v_and_b32 v{vT2}, 6, v{vT}",
              f"v_xor_b32 v{vT2}, v{vT2}, v0",
              f"v_and_b32 v{vT2}, 7, v{vT2}",
              f"v_mul_u32_u24 v{vT}, {pitch}, v{vT}",
              f"v_lshl_add_u32 v{vT}, v{vT2}, 4, v{vT}",
              f"v_add_u32 v{VW}, s{sbase}, v{vT}"]
        for i in range(1, 4):
            it.append(f"v_add_u32 v{VW+i}, {8*pitch-1024}, v{VW+i-1}")
        return it

    def weight_dst(self, xorw):
        it = [f"v_lshrrev_b32 v{vT}, 2, v0",
              f"v_lshlrev_b32 v{vT}, 7, v{vT}",
              f"v_lshl_add_u32 v{vT}, v{vC}, 3, v{vT}",
              f"v_bfe_u32 v{vT2}, v0, 3, 2"]
        if xorw:
            it.append(f"v_xor_b32 v{vT2}, s{sW}, v{vT2}")
        it += [f"v_lshl_add_u32 v{vT}, v{vT2}, 5, v{vT}",
               f"v_add_u32 v{VT}, s{sRING}, v{vT}"]
        for t in range(1, 4):
            it.append(f"v_xor_b32 v{VT+t}, {t*32}, v{VT}")
        return it

    def w_issue(self, j):
        it = [f"s_mul_i32 s{sU1}, s{TK+j}, {96 if self.role == 'A' else 128}",
              f"s_add_u32 m0, s{sRING}, {(j % NR)*16384}"]
        if j >= NR:
            it.append(('wait', f'wr{j-NR}'))
        for i in range(4):
            it.append((f"buffer_load_dwordx4 v{VW+i}, {srd(S_W)}, s{sU1} offen offset:{i*1024} lds", f'wd{j}'))
        return it

    def w_drain(self, j):
        it = [('wait', f'wd{j}')]
        for t in range(4):
            for e2 in range(2):
                it.append((f"ds_read_b64_tr_b16 {ar(16*j+4*t+2*e2,2)}, v{VT+t} offset:{(j % NR)*16384 + e2*2048}", f'wr{j}'))
        return it

    def w_step(self):
        it = []
        if self.nxt >= NR or self.nxt == self.nstep:
            it += self.w_drain(self.drn); self.drn += 1
        if self.nxt < self.nstep:
            it += self.w_issue(self.nxt); self.nxt += 1
        return it

    def flag_store(self, base, sidx, stride, name, guard=None, wave=0):
        name = self.role + name

        def f(a):
            a(f"s_cmp_lg_u32 s{sW}, {wave}")
            a(f"s_cbranch_scc1 L_nf_{name}")
            a.begin_cond(name)
            if guard:
                a(guard)
                a(f"s_cbranch_scc1 L_nf_{name}")
            a(f"s_mul_i32 s{sU0}, s{sidx}, {stride}")
            a(f"s_add_u32 s{sU0}, s{sU0}, {base}")
            a(f"v_mov_b32 v34, s{sTAG}")
            a("s_mov_b64 exec, 1")
            a(f"buffer_store_dword v34, v0, {srd(S_WS)}, s{sU0} offen sc1")
            a("s_mov_b64 exec, -1")
            a.end_cond()
            a.label(f"L_nf_{name}")
        f.cost = 2
        return f

    @staticmethod
    def setexec(n):
        if n == 32:
            return "s_mov_b32 exec_hi, 0"
        if n > 32:
            return f"s_mov_b32 exec_hi, {hex((1 << (n-32)) - 1)}"
        return f"s_mov_b64 exec, {hex((1 << n) - 1)}"

    def poll_load(self, va, two):
        if two:
            return f"buffer_load_dwordx2 {vr(vPD,2)}, v{va}, {srd(S_WS)}, 0 offen sc1"
        return f"buffer_load_dword v{vPD}, v{va}, {srd(S_WS)}, 0 offen sc1"

    def poll_issue(self, va, n=64, two=False):
        it = [self.setexec(n)] if n < 64 else []
        it.append(self.poll_load(va, two))
        if n < 64:
            it.append("s_mov_b64 exec, -1")
        return "\n".join(it)

    def poll_check(self, name, va, n=64, two=False):
        name = self.role + name

        def cmp(a):
            if two:
                a(f"v_xor_b32 v{vPD}, s{sTAG}, v{vPD}")
                a(f"v_xor_b32 v{vPD+1}, s{sTAG}, v{vPD+1}")
                a(f"v_or_b32 v{vPD}, v{vPD}, v{vPD+1}")
                a(f"v_cmp_ne_u32 vcc, 0, v{vPD}")
            else:
                a(f"v_cmp_ne_u32 vcc, s{sTAG}, v{vPD}")

        def f(a):
            if n < 64:
                a(self.setexec(n))
            cmp(a)
            a(f"s_mov_b32 s{sCNT}, 0")
            a(f"s_cbranch_vccz L_pk_{name}")
            a.label(f"L_pl_{name}")
            a.begin_cond('poll' + name)
            a("s_mov_b64 exec, vcc")
            if self.cfg.get('psleep'):
                a(f"s_sleep {self.cfg['psleep']}")
            a(self.poll_load(va, two))
            a(f"s_add_u32 s{sCNT}, s{sCNT}, 1")
            a(f"s_cmp_ge_u32 s{sCNT}, 0x40000")
            a(f"s_cbranch_scc1 L_pk_{name}")
            cmp(a)
            a("s_nop 0")
            a(f"s_cbranch_vccnz L_pl_{name}")
            a.end_cond()
            a.label(f"L_pk_{name}")
            a("s_mov_b64 exec, -1")
            if self.stamps:
                a(f"v_writelane_b32 v254, s{sCNT}, {self.npoll}")
                self.npoll += 1
        f.cost = 5
        return f

    def lanes(self):
        return ["v_lshlrev_b32 v1, 4, v0",
                f"v_lshrrev_b32 v{vH}, 4, v0", f"v_and_b32 v{vI}, 15, v0",
                f"v_bfe_u32 v{vR}, v0, 2, 2", f"v_and_b32 v{vC}, 3, v0",
                f"s_lshr_b32 s{sT2}, s{sW}, 1", f"s_and_b32 s{sT3}, s{sW}, 1",
                f"s_lshl_b32 s{sRING}, s{sW}, 12"]

    def code_prefetch(self, end):
        r = self.role
        return [f"s_getpc_b64 {sp(sT0)}", f"L_pc{r}:",
                f"s_lshl2_add_u32 s{sT2}, s{sID}, s{sW}",
                f"v_lshl_add_u32 v{vT}, s{sT2}, 1, v0",
                f"v_lshlrev_b32 v{vT}, 7, v{vT}",
                f"v_min_u32 v{vT}, {end}-L_pc{r}, v{vT}",
                "s_mov_b64 exec, 3",
                f"global_load_dword v253, v{vT}, {sp(sT0)}",
                "s_mov_b64 exec, -1"]

    def epoch_load(self, v):
        return [f"s_mov_b32 s{sT0}, {WS_EP}", "s_mov_b64 exec, 1",
                f"buffer_load_dword v{v}, v0, {srd(S_WS)}, s{sT0} offen sc1", "s_mov_b64 exec, -1"]

    def conv_setup(self, nch):
        ZR = 68
        it = [f"s_mul_i32 s{sC2}, s{sXQ}, 160",
              f"s_lshl1_add_u32 s{sC0}, s{sID}, s{sC2}",
              f"s_add_u32 s{sC0}, s{sC0}, {64 if self.role == 'A' else 0}",
              f"s_add_u32 s{sC2}, s{sC2}, s{sID}",
              f"s_add_u32 s{sC2}, s{sC2}, 128",
              f"s_lshl_b32 s{sT0}, s{sC0}, 1",
              f"s_load_dword s28, {sp(P_D)}, s{sT0}"]
        if nch == 3:
            it += [f"s_lshr_b32 s{sT1}, s{sC2}, 1", f"s_lshl_b32 s29, s{sT1}, 2", f"s_load_dword s30, {sp(P_D)}, s29"]
        it += [f"s_lshl_b32 s{sX0}, s{sC0}, 12",
               f"s_lshl_b32 s{sT1}, s{sW}, 10",
               f"s_add_u32 s{sX0}, s{sX0}, s{sT1}",
               f"s_add_u32 s{sX1}, s{sX0}, 4096",
               f"s_lshl_b32 s{sX2}, s{sC2}, 12",
               f"s_add_u32 s{sX2}, s{sX2}, s{sT1}",
               f"s_add_u32 s{sT1}, s{sT1}, {L_CK + KPAD}",
               f"v_add_u32 v{vCW}, s{sT1}, v1"]
        it += [f"v_mov_b32 v{ZR+i}, 0" for i in range(4)]
        it += [f"s_min_u32 s{sT0}, s{sW}, 2",
               f"s_mul_i32 s{sT1}, s{sT0}, {XP}",
               f"s_add_u32 s{sT1}, s{sT1}, {L_CX}",
               f"v_add_u32 v{vT}, s{sT1}, v1",
               f"s_mul_i32 s{sT1}, s{sT0}, {KP}",
               f"s_add_u32 s{sT1}, s{sT1}, {L_CK}",
               f"v_add_u32 v{vT2}, s{sT1}, v1",
               f"s_mul_i32 s{sT1}, s{sT0}, {33*16}",
               f"s_add_u32 s{sT1}, s{sT1}, {L_CAR}",
               f"v_mov_b32 v34, s{sT1}",
               "s_mov_b32 exec_hi, 0",
               f"ds_write_b128 v{vT}, {vr(ZR,4)}",
               f"s_mov_b64 exec, {hex((1 << (KPAD//16)) - 1)}",
               f"ds_write_b128 v{vT2}, {vr(ZR,4)}",
               "s_mov_b64 exec, 1",
               f"ds_write_b128 v34, {vr(ZR,4)}",
               "s_mov_b64 exec, -1"]
        it += [f"v_lshl_add_u32 v{vT}, v{vH}, 3, v{vR}",
               f"v_lshlrev_b32 v{vT2}, 2, v{vC}",
               f"v_sub_u32 v{vT2}, v{vT2}, v{vT}",
               f"v_lshlrev_b32 v{vT2}, 3, v{vT2}",
               f"s_mul_i32 s{sT0}, s{sT2}, {KP}",
               f"s_add_u32 s{sT0}, s{sT0}, {L_CK + KPAD + 152 - 32}",
               f"v_add_u32 v{vCA}, s{sT0}, v{vT2}"]
        if nch == 3:
            it.append(f"v_add_u32 v{vCA2}, {L_CK + 2*KP + KPAD + 152 - 32}, v{vT2}")
        it += [f"v_add_lshl_u32 v{vT}, v{vT}, v{vC}, 3",
               f"s_mul_i32 s{sT0}, s{sT2}, {XP}",
               f"s_lshl_b32 s{sT1}, s{sT3}, 7",
               f"s_add_u32 s{sT0}, s{sT0}, s{sT1}",
               f"s_add_u32 s{sT0}, s{sT0}, {L_CX + XPAD - 152}",
               f"v_add_u32 v{vCB}, s{sT0}, v{vT}"]
        if nch == 3:
            it += [f"s_lshl_b32 s{sT0}, s{sW}, 7",
                   f"s_add_u32 s{sT0}, s{sT0}, {L_CX + 2*XP + XPAD - 152 - 256}",
                   f"v_add_u32 v{vCB2}, s{sT0}, v{vT}"]
        return it

    def conv_setup2(self, nch):
        it = [f"s_mul_i32 s{sT0}, s{sT2}, {33*16}",
              f"s_lshl4_add_u32 s{sT0}, s{sT3}, s{sT0}",
              f"s_add_u32 s{sT0}, s{sT0}, {L_CAR}",
              f"v_cmp_gt_u32 vcc, 3, v0",
              f"v_mov_b32 v{vT2}, {L_CX}",
              f"v_lshl_add_u32 v{vT}, v0, 2, s{sT0}",
              f"v_cndmask_b32 v{vCRR}, v{vT2}, v{vT}, vcc",
              f"s_add_u32 s{sT0}, s{sT0}, {(16 - 48*32) & 0xffffffff}",
              f"v_lshl_add_u32 v{vCRW}, v0, 5, s{sT0}"]
        if nch == 3:
            it += [f"s_lshl_b32 s{sT0}, s{sW}, 4",
                   f"s_add_u32 s{sT0}, s{sT0}, {L_CAR + 2*33*16}",
                   f"v_lshl_add_u32 v{vT}, v0, 2, s{sT0}",
                   f"v_cndmask_b32 v{vCRR2}, v{vT2}, v{vT}, vcc",
                   f"s_add_u32 s{sT0}, s{sT0}, {(16 - 56*64) & 0xffffffff}",
                   f"v_lshl_add_u32 v{vCRW2}, v0, 6, s{sT0}"]
        it += [f"s_mul_i32 s{sT0}, s{sW}, 3072",
               f"s_add_u32 s{sT0}, s{sT0}, {L_ZSTG}",
               f"v_lshl_add_u32 v{vZW}, v0, 1, s{sT0}",
               f"v_add_u32 v{vZR}, s{sT0}, v1",
               f"v_lshrrev_b32 v{vT}, 3, v0",
               f"v_and_b32 v{vT2}, 7, v0",
               f"v_lshlrev_b32 v{vT2}, 4, v{vT2}",
               f"v_lshl_add_u32 v{vZS}, v{vT}, 8, v{vT2}",
               f"s_add_u32 s{sT0}, s{sC0}, s{sT2}",
               f"s_lshl_b32 s{sT0}, s{sT0}, 12",
               f"s_lshl_b32 s{sT1}, s{sT3}, 7",
               f"s_add_u32 s{sT0}, s{sT0}, s{sT1}",
               f"s_add_u32 s{sT0}, s{sT0}, {WS_Z}",
               f"v_add_u32 v{vZS}, s{sT0}, v{vZS}"]
        if nch == 3:
            it += [f"v_lshl_add_u32 v{vZS2}, v{vT}, 9, v{vT2}",
                   f"s_lshl_b32 s{sT0}, s{sC2}, 12",
                   f"s_lshl_b32 s{sT1}, s{sW}, 7",
                   f"s_add_u32 s{sT0}, s{sT0}, s{sT1}",
                   f"s_add_u32 s{sT0}, s{sT0}, {WS_Z}",
                   f"v_add_u32 v{vZS2}, s{sT0}, v{vZS2}"]
        if nch == 3:
            it += [f"s_and_b32 s{sT0}, s{sC2}, 1",
                   f"s_lshl_b32 s{sT0}, s{sT0}, 4",
                   f"s_lshr_b32 s30, s30, s{sT0}",
                   f"s_lshl_b32 s30, s30, 16",
                   f"s_cmp_eq_u32 s{sW}, 0\ns_cselect_b32 s30, s30, 0"]
        fsk = self.cfg.get('fsk', 16)
        it += [f"s_cmp_eq_u32 s{sW}, 0\ns_cselect_b32 s28, s28, 0",
               f"s_and_b32 s29, s28, 0xffff0000", f"s_lshl_b32 s28, s28, 16",
               f"s_lshr_b32 s{sT0}, s{sXQ}, 1",
               f"s_lshl2_add_u32 s{sT0}, s{sT0}, s{sW}",
               f"v_lshl_add_u32 v{vP1}, s{sT0}, 4, v0",
               f"v_mul_u32_u24 v{vP1}, {fsk}, v{vP1}",
               f"v_add_u32 v{vP1}, {WS_FK}, v{vP1}"]
        return it

    def ssm_loads(self, nch, KL):
        return [f"buffer_load_dwordx4 {vr(KL+4*cs,4)}, v1, {srd(S_SSM)}, s{so} offen" for cs, so in enumerate((sX0, sX1, sX2)[:nch])]

    def kfix(self, nch, KL):
        it = ["s_mov_b64 exec, 1"]
        for cs in range(nch):
            it += [f"v_lshlrev_b32 v{vT}, 16, v{KL+4*cs}",
                   f"v_and_b32 v{vT2}, 0xffff0000, v{KL+4*cs}",
                   f"v_add_f32 v{vT}, s{28+cs}, v{vT}",
                   f"v_cvt_pk_bf16_f32 v{KL+4*cs}, v{vT}, v{vT2}"]
        it.append("s_mov_b64 exec, -1")
        it += [f"ds_write_b128 v{vCW}, {vr(KL+4*cs,4)} offset:{cs*KP}" for cs in range(nch)]
        it += [f"s_add_u32 s{s}, s{s}, {WS_KV}" for s in (sX0, sX1, sX2)[:nch]]
        return it

    def x_loads(self, nch, XL):
        return [f"buffer_load_dwordx4 {vr(XL+4*cs,4)}, v1, {srd(S_WS)}, s{so} offen sc1" for cs, so in enumerate((sX0, sX1, sX2)[:nch])]

    def x_writes(self, nch, XL):
        return [(f"ds_write_b128 v{vCW}, {vr(XL+4*cs,4)} offset:{L_CX + XPAD - L_CK - KPAD + cs*XP}", 'xw') for cs in range(nch)]

    tiles = [(1, m, m) for m in range(16)] + [(2, n, 2 * n + 1) for n in range(8)]

    @staticmethod
    def cb_slot(part, n):
        return CB + 4 * (n if part == 1 else 15 - n)

    def c_read(self, part, c):
        va, vb = (vCA, vCB) if part == 1 else (vCA2, vCB2)
        return ([f"ds_read_b64_tr_b16 {vr(CA+4*c+2*e2,2)}, v{va} offset:{256*c + 32*(1-e2)}" for e2 in range(2)] +
                [f"ds_read_b64_tr_b16 {vr(self.cb_slot(part,c)+2*e2,2)}, v{vb} offset:{256*c + 32*e2}" for e2 in range(2)])

    def tile_epi(self, g):
        part, k, m = self.tiles[g]
        d = CACC + 4 * (g % NSL)
        p = CACC + 4 * ((g - 1) % NSL)
        dp = "wave_shr:1 row_mask:0xf bank_mask:0xf bound_ctrl:0"
        it = []
        for j, dst in ((3, d + 2), (2, d + 1), (1, CY + g)):
            it.append(f"v_add_f32_dpp v{dst}, v{d+j}, v{d+j-1} {dp}")
            if k:
                it.append(f"v_mov_b32_dpp v{d+j}, v{p+j} wave_shl:1 row_mask:0xf bank_mask:0xf")
        if g in (15, 23):
            va, mk = (vCRW, '0xffff0000') if g == 15 else (vCRW2, '0xff000000')
            it.append((f"s_mov_b32 exec_lo, 0\ns_mov_b32 exec_hi, {mk}\nds_write_b128 v{va}, {vr(d,4)}\ns_mov_b64 exec, -1", 'carw'))
        return it

    def conv_sched(self, nt, cpre, cap):
        mf, first = [], []
        for g, (part, k, m) in enumerate(self.tiles[:nt]):
            d = vr(CACC + 4 * (g % NSL), 4)
            first.append(len(mf))
            mf += [f"v_mfma_f32_16x16x32_bf16 {d}, {vr(CA+4*c,4)}, {vr(self.cb_slot(part,m-c),4)}, {'0' if c == 0 else d}"
                   for c in range(m + 1)]
        first += [len(mf)] * 8
        S = Sched(mf, cap)
        LEAD = self.cfg.get('lead', 7)
        for g in range(1, nt):
            S.reserve(first[g] - 1)
        for c in range(cpre, 16):
            S.add('rd', self.c_read(1, c), 0, max(first[c] - LEAD, 0))
        if nt > 16:
            for c in range(16):
                S.add('rd', self.c_read(2, c), first[15] + c + 1, max(first[16 + c // 2] - LEAD, first[15] + c + 1))
        for g in range(nt - 1):
            S.add('ep', self.tile_epi(g), first[g + 1] + 2, first[g + NSL - 1] - 1)
        return S

    def z_final(self, nt, CR, ZO):
        it = [f"ds_read2_b32 {vr(CR+k,2)}, v{vCRR} offset0:{1+8*k} offset1:{1+8*(k+1)}" for k in range(0, 16, 2)]
        it += [f"ds_read2_b32 {vr(CR+16+k,2)}, v{vCRR2} offset0:{1+16*k} offset1:{1+16*(k+1)}" for k in range(0, nt - 16, 2)]
        for k in range(0, nt, 2):
            it += [f"v_pk_add_f32 {vr(CY+k,2)}, {vr(CY+k,2)}, {vr(CR+k,2)}",
                   f"v_cvt_pk_bf16_f32 v{CY+k}, v{CY+k}, v{CY+k+1}",
                   f"ds_write_b16 v{vZW}, v{CY+k} offset:{128*k}", f"ds_write_b16_d16_hi v{vZW}, v{CY+k} offset:{128*(k+1)}"]
            if k % 8 == 6:
                it.append(f"ds_read_b128 {vr(ZO+4*(k//8),4)}, v{vZR} offset:{1024*(k//8)}")
        st = [(f"buffer_store_dwordx4 {vr(ZO,4)}, v{vZS}, {srd(S_WS)}, 0 offen sc1", 'zst'),
              (f"buffer_store_dwordx4 {vr(ZO+4,4)}, v{vZS}, {srd(S_WS)}, 0 offen offset:2048 sc1", 'zst')]
        if nt > 16:
            st.append((f"buffer_store_dwordx4 {vr(ZO+8,4)}, v{vZS2}, {srd(S_WS)}, 0 offen sc1", 'zst'))
        return it, st

    def finish(self):
        a = self.a
        a.run([self.stamp('end')])
        if self.stamps:
            a.wait_all()
            a("s_memrealtime s[98:99]")
            a(f"v_writelane_b32 v255, s96, 30")
            a(f"v_writelane_b32 v255, s98, 31")
            for k in range(self.npoll):
                a(f"v_readlane_b32 s{sT0}, v254, {k}")
                a(f"v_writelane_b32 v255, s{sT0}, {24+k}")
            a(f"s_lshl2_add_u32 s{sT0}, s2, s{sW}")
            a(f"s_lshl_b32 s{sT0}, s{sT0}, 8")
            a(f"s_add_u32 s{sT0}, s{sT0}, {WS_DBG}")
            a(f"v_lshlrev_b32 v{vT}, 2, v0")
            a(f"buffer_store_dword v255, v{vT}, {srd(S_WS)}, s{sT0} offen")


KERNARG = {f"s{i}" for i in range(36, 68)}


def prog_A(cfg):
    P = Prog('A', cfg)
    a, stamp = P.a, P.stamp
    a.smem_pending = set(KERNARG) | {'s96', 's97'}
    FS1, FSU, FSZ = cfg.get('fs1', 128), cfg.get('fsu', 64), cfg.get('fsz', 32)
    NB, GR = cfg.get('nb', 13), cfg.get('grp', 2)
    sDG, sFT = sA, sB
    NC = 3 if cfg.get('third', 'A') == 'A' else 2
    NT = 8*NC
    a.label("L_A")
    if cfg.get('cpf', 1):
        a.run(P.code_prefetch("L_end"))
    a.run(P.lanes())
    a(f"s_mul_i32 s{sT0}, s{sID}, 52")
    a(f"s_lshr_b32 s{sT0}, s{sT0}, 8")
    a(f"s_mul_i32 s{sT1}, s{sT0}, 5")
    a(f"s_sub_u32 s{sDG}, s{sID}, s{sT1}")
    a(f"s_min_u32 s{sT0}, s{sT0}, 5")
    a(f"s_mul_i32 s{sFT}, s{sXQ}, 6")
    a(f"s_add_u32 s{sFT}, s{sFT}, s{sT0}")
    a(f"s_lshl4_add_u32 s{sT1}, s{sDG}, s{sW}")
    a(f"s_mul_i32 s{sT1}, s{sT1}, 205")
    a(f"s_lshr_b32 s{sT1}, s{sT1}, 10")
    sOWN = 38
    if cfg.get('rkA', 5):
        a(f"s_lshr_b32 s{sCNT}, s{sT0}, 1")
        a(f"s_mul_i32 s{sCNT}, s{sCNT}, {cfg.get('rkA', 5)}")
        a(f"s_add_u32 s{sT1}, s{sT1}, s{sCNT}")
        a(f"s_and_b32 s{sT1}, s{sT1}, 15")
    a(f"s_lshl_b32 s{TK}, s{sT1}, 10")
    a(f"s_cmp_ge_u32 s{sID}, 30")
    a(f"s_cselect_b32 s{sSP}, {OOB}, 0")
    a(f"s_mul_i32 s{sT0}, s{sW}, {512*3072}")
    a(f"s_lshl_b32 s{sT1}, s{sFT}, 7")
    a(f"s_add_u32 s{sT0}, s{sT0}, s{sT1}")
    a(f"s_add_u32 s{sT0}, s{sT0}, s{sSP}")
    a.run(P.weight_src(3072, sT0))
    for (s, n) in ((S_W, 6291456), (S_WS, WS_SIZE), (S_SSM, 2621440)):
        a(f"s_mov_b32 s{s+2}, {n}")
        a(f"s_mov_b32 s{s+3}, 0x20000")
    for j in range(1, 16):
        a(f"s_add_u32 s{sT1}, s{TK+j-1}, 1024")
        a(f"s_and_b32 s{TK+j}, s{sT1}, 0x3c00")
    a(f"s_mov_b64 {sp(S_W)}, {sp(50)}")
    a.run(P.w_step())
    a.run([stamp('start')])
    a.run(P.w_step())
    a(f"s_mov_b64 {sp(S_WS)}, {sp(66)}")
    a(f"s_mov_b64 {sp(S_SSM)}, {sp(44)}")
    a.run(P.weight_dst(False))
    a(f"s_add_u32 s{sFJ}, s{sJ}, 128")
    a.run(P.conv_setup(NC))
    vHL, vRW, vRR, vUS, vEP, vX0 = 10, 44, 47, 48, 49, 50
    BL, KL, XL = 54, 240, 208
    g1set = [f"s_mul_i32 s{sOWN}, s{sFT}, {cfg.get('roA', 0)}", f"s_add_u32 s{sOWN}, s{sOWN}, s{sW}", f"s_and_b32 s{sOWN}, s{sOWN}, 3",
             f"s_lshl_b32 s{sCNT}, s{sDG}, 18", f"s_lshl_b32 s{sT1}, s{sW}, 14", f"s_add_u32 s{sCNT}, s{sCNT}, s{sT1}",
             f"s_add_u32 s{sCNT}, s{sCNT}, s{sSP}"]
    for i in range(4):
        g1set += [f"s_add_u32 s{sT0}, s{sOWN}, {i+1}",
                  f"s_and_b32 s{sT0}, s{sT0}, 3",
                  f"s_mul_i32 s{sT1}, s{sT0}, 12288",
                  f"s_add_u32 s{sT1}, s{sT1}, {L_RED + (i*4096 if i < 3 else 0)}",
                  f"v_add_u32 v{vRW+i}, s{sT1}, v1",
                  f"s_lshl_b32 s{sT0}, s{sT0}, 16",
                  f"s_add_u32 s{sT0}, s{sT0}, s{sCNT}",
                  f"v_add_u32 v{vHL+i}, s{sT0}, v1",
                  f"v_add_u32 v{vHL+4+i}, {20*65536}, v{vHL+i}"]
    g1set += [f"v_lshl_add_u32 v{vP0}, s{sW}, 5, v0",
              f"v_mul_u32_u24 v{vP0}, {FS1}, v{vP0}",
              f"v_add_u32 v{vP0}, {WS_F1}, v{vP0}",
              f"s_lshl_b32 s{sT0}, s{sFT}, 7",
              f"v_lshl_add_u32 v{vX0}, v{vH}, 3, s{sT0}",
              f"s_lshl2_add_u32 s{sT0}, s{sDG}, s{sOWN}",
              f"s_mul_i32 s{sT0}, s{sT0}, 48",
              f"s_lshl1_add_u32 s{sT0}, s{sFT}, s{sT0}",
              f"s_lshl_b32 s{sT0}, s{sT0}, 10",
              f"s_add_u32 s{sT0}, s{sT0}, {WS_U}",
              f"s_add_u32 s{sT0}, s{sT0}, s{sSP}",
              f"v_add_u32 v{vUS}, s{sT0}, v1",
              f"s_mul_i32 s{sFI}, s{sDG}, 24",
              f"s_add_u32 s{sFI}, s{sFI}, s{sFT}",
              f"s_mov_b32 s{sU2}, 0xbdd2d3e8",
              f"s_mov_b32 s{sU3}, {20*48*1024}",
              f"v_mov_b32 v52, 0xc0135761"]
    a.run(g1set)
    a.run(P.conv_setup2(NC))
    a.run(P.epoch_load(vEP))
    for t in range(4):
        a(f"global_load_dwordx2 {vr(BL+2*t,2)}, v{vX0}, {sp(P_B1)} offset:{32*t}")
    a.run(P.w_step())
    SSA = cfg.get('ssmA', 1)
    if SSA == 0:
        a.run(P.ssm_loads(NC, KL))
    a.run(P.w_step())
    BI, RD = 112, 144
    bun = []
    for t in range(8):
        bun += [f"v_lshlrev_b32 v{BI+2*t}, 16, v{BL+t}", f"v_and_b32 v{BI+2*t+1}, 0xffff0000, v{BL+t}"]
    PA = cfg.get('pollA', 15)
    while P.nxt < 16:
        if P.nxt == 8:
            a(f"v_readfirstlane_b32 s{sTAG}, v{vEP}")
            a(f"s_add_u32 s{sTAG}, s{sTAG}, {hex(TAGC)}")
            a.run((P.kfix(NC, KL) if SSA == 0 else []) + bun)
            a.run([stamp('w8')])
        it = P.w_step()
        if P.nxt - 1 == PA:
            it.insert(9, P.poll_issue(vP0, 32))
        a.run(it)
    while P.drn < PA:
        a.run(P.w_step())
    a.run([P.poll_check('f1', vP0, 32), stamp('f1_ok')])
    BUFS = ([64 + 4*i for i in range(8)] + [128 + 4*i for i in range(4)] + [176 + 4*i for i in range(4)] + [228 + 4*i for i in range(3)])[:NB]

    def h_load(n):
        i, j = divmod(n, 16)
        return f"buffer_load_dwordx4 {vr(BUFS[n % NB],4)}, v{vHL+i}, {srd(S_WS)}, s{TK+j} offen sc1"
    hn = 0
    HE = cfg.get('hearly', 8)
    left = 16 - P.drn
    while P.drn < 16:
        for _ in range(HE // left):
            a(h_load(hn)); hn += 1
        a.run(P.w_step())
    ACC = (96, 192)
    Z, G0, UO = ACC[1], 160, 220
    for r in range(2):
        mf, pos = [], {}
        for q in range(64 // GR):
            for t in range(4):
                for n in range(q * GR, (q + 1) * GR):
                    i, j = divmod(n, 16)
                    d = vr(ACC[i & 1] + 4 * t, 4)
                    pos.setdefault(n, len(mf))
                    c = d if j else ('0' if i < 3 else vr(BI + 4 * t, 4))
                    mf.append(f"v_mfma_f32_16x16x32_bf16 {d}, {ar(16*j+4*t,4)}, {vr(BUFS[(64*r + n) % NB],4)}, {c}")
        S = Sched(mf)
        for n in range(64):
            S.reserve(pos[n] - 1)
        k = 0
        while hn < 128:
            n = hn - 64 * r
            free = 4 * GR * ((n - NB) // GR + 1) if n >= NB else 0
            p = max(free, 4 * (n - NB + GR) + 1, 2 * k)
            if p > 255:
                break
            S.add('h', [h_load(hn)], p, p)
            hn += 1
            k += 1
        S.add('st', [stamp(f'g1first{r}')], 0, 0)
        for i in range(3):
            if r == 1 and i == 2:
                S.add('red', P.x_writes(NC, XL), cfg.get('xwA', 178), 192, pace=4)
            S.add('red', [(f"ds_write_b128 v{vRW+i}, {vr(ACC[i & 1]+4*t,4)} offset:{t*1024}", f'redw{r}{i}') for t in range(4)],
                  64 * (i + 1) + 1, 64 * (i + 1) + 13, pace=4)
            if i == 1:
                S.add('red', [('wait', f'redw{r}1'), "s_barrier"], 128 + 18, 128 + 19)
                S.add('red', [f"ds_read_b128 {vr(RD+4*k,4)}, v{vRR} offset:{k*1024}" for k in range(8)], 128 + 20, 128 + 30)
                S.add('add', [f"v_add_f32 v{BI+k % 16}, v{BI+k % 16}, v{RD+k}" for k in range(32)], 128 + 34, 188)
        S.add('red', [('wait', f'redw{r}2'), "s_barrier"], 192 + 18, 192 + 19)
        S.add('red', [f"ds_read_b128 {vr(RD+4*k,4)}, v{vRR} offset:{8192 + k*1024}" for k in range(4)], 192 + 20, 192 + 30)
        if r == 1:
            pD = cfg.get('pD0', 44)
            S.add('fl', [('wait', 'ust0'), "s_barrier", stamp('barD0'),
                         P.flag_store(WS_FU, sFI, FSU, 'fu0', guard=f"s_cmp_ge_u32 s{sID}, 30"),
                         f"s_add_u32 s{sFI}, s{sFI}, {5*24}"], pD, pD + 1)
            S.add('set', bun, 4, 140)
            pK = cfg.get('pKA', pD + 2)
            S.add('fl', [P.poll_issue(vP1, 16)], pK, pK)
            if SSA:
                kf = P.kfix(NC, KL)
                n1 = 2 + 4 * NC
                S.add('fl', ["\n".join(kf[:n1])] + kf[n1:], pK + 4, pK + 4 * NB - 2, pace=4)
            S.add('fl', [P.poll_check('fk', vP1, 16), stamp('fk_ok')] + P.x_loads(NC, XL), pK + 4 * NB, pK + 4 * NB + 8, pace=2)
        a.run(S.items())
        P.info[f'g1{r}'] = (S.over, S.under)
        a.run([stamp(f'g1mfma{r}')])
        side = []
        if r == 0:
            while hn < 64 + NB:
                side.append(h_load(hn)); hn += 1
            a.run(side)
        else:
            a.run(P.c_read(1, 0)[2:] + P.c_read(1, 1)[2:])
        for t in range(8):
            a(f"v_pk_add_f32 {vr(Z+2*t,2)}, {vr(Z+2*t,2)}, {vr(RD+2*t,2)}")
        for t in range(8):
            a(f"v_pk_mul_f32 {vr(G0+2*t,2)}, {vr(Z+2*t,2)}, {vr(Z+2*t,2)}")
        for t in range(8):
            a(f"v_pk_fma_f32 {vr(G0+2*t,2)}, {vr(G0+2*t,2)}, {sp(sU2)}, v[52:53] op_sel_hi:[1,0,0]")
        for t in range(8):
            a(f"v_pk_mul_f32 {vr(G0+2*t,2)}, {vr(G0+2*t,2)}, {vr(Z+2*t,2)}")
        for t in range(16):
            a(f"v_exp_f32 v{G0+t}, v{G0+t}")
        for t in range(8):
            a(f"v_pk_add_f32 {vr(G0+2*t,2)}, {vr(G0+2*t,2)}, 1.0 op_sel_hi:[1,0]")
        for t in range(16):
            a(f"v_rcp_f32 v{G0+t}, v{G0+t}")
        for t in range(8):
            a(f"v_pk_mul_f32 {vr(G0+2*t,2)}, {vr(G0+2*t,2)}, {vr(Z+2*t,2)}")
        for t in range(8):
            a(f"v_cvt_pk_bf16_f32 v{UO+t}, v{G0+2*t}, v{G0+2*t+1}")
        for half in range(2):
            a(f"buffer_store_dwordx4 {vr(UO+4*half,4)}, v{vUS}, {srd(S_WS)}, {'0' if r == 0 else f's{sU3}'} offen offset:{1024*half} sc1", tok=f'ust{r}')
        if r == 0 and SSA:
            a.run(P.ssm_loads(NC, KL))
        a.run([stamp(f'ust{r}')])
    a.run(P.c_read(1, 0)[:2] + P.c_read(1, 1)[:2] + P.c_read(1, 2))
    S = P.conv_sched(NT, 3, 2)
    pD = cfg.get('pD1', 40)
    S.add('fl', [('wait', 'ust1'), "s_barrier", stamp('barD1'),
                 P.flag_store(WS_FU, sFI, FSU, 'fu1', guard=f"s_cmp_ge_u32 s{sID}, 30")], pD, pD + 1)
    a.run(S.items())
    P.info['conv'] = (S.over, S.under)
    a.run([stamp('conv')])
    a.run(P.tile_epi(NT - 1))
    a.wait('carw')
    a("s_barrier")
    zf, zs = P.z_final(NT, 64, 96)
    a.run(zf + zs)
    a.run([stamp('z_st')])
    a.wait('zst')
    a("s_barrier")
    a.run([P.flag_store(WS_FZ, sFJ, FSZ, 'fz')])
    a(f"s_cmp_lg_u32 s{sJ}, 31")
    a("s_cbranch_scc1 L_Adone")
    a(f"v_lshl_add_u32 v{vP0}, s{sW}, 6, v0")
    a(f"v_mul_u32_u24 v{vP0}, {FSZ}, v{vP0}")
    a(f"v_add_u32 v{vP0}, {WS_FZ}, v{vP0}")
    a(P.poll_issue(vP0))
    st, P.stamps = P.stamps, False
    a.run([P.poll_check('ep', vP0)])
    P.stamps = st
    a("s_barrier")
    a(f"s_mov_b32 s{sT0}, 0")
    a.run([P.flag_store(WS_EP, sT0, 0, 'ep')])
    a.label("L_Adone")
    P.finish()
    return P


def prog_B(cfg):
    P = Prog('B', cfg)
    a, stamp = P.a, P.stamp
    a.smem_pending = set(KERNARG) | {'s96', 's97'}
    FS1, FSU, FSZ, FSK = cfg.get('fs1', 128), cfg.get('fsu', 64), cfg.get('fsz', 32), cfg.get('fsk', 16)
    sDT, sST = sA, sB
    NC = 3 if cfg.get('third', 'A') == 'B' else 2
    NT = 8*NC
    NMF = 136 if NC == 2 else 208
    if cfg.get('cpf', 1):
        a.run(P.code_prefetch("L_A"))
    a.run(P.lanes())
    XR, GR = 160, 180
    vHW, vL32, vQ, vQ3, vG, vG3, vEP = 190, 191, 192, 193, 194, 195, 196
    a(f"s_lshr_b32 s{sT0}, s{sJ}, 1")
    a(f"s_lshl_b32 s{sT0}, s{sT0}, 5")
    a(f"s_and_b32 s{sT1}, s{sJ}, 1")
    a(f"s_lshl3_add_u32 s{sCNT}, s{sT1}, s{sT0}")
    a(f"s_lshl4_add_u32 s{sCNT}, s{sT2}, s{sCNT}")
    a(f"s_lshl1_add_u32 s{sCNT}, s{sT3}, s{sCNT}")
    a(f"v_lshrrev_b32 v{vHW}, 5, v0")
    a(f"v_and_b32 v{vL32}, 31, v0")
    a(f"v_add_u32 v{vQ}, s{sCNT}, v{vHW}")
    a(f"v_mul_u32_u24 v{vQ}, 1280, v{vQ}")
    a(f"v_add_u32 v{vQ}, 2560, v{vQ}")
    a(f"v_lshlrev_b32 v{vG}, 4, v{vL32}")
    a(f"v_lshlrev_b32 v{vG3}, 3, v{vL32}")
    a(f"v_add_u32 v{vQ3}, v{vQ}, v{vG3}")
    a(f"v_add_u32 v{vQ}, v{vQ}, v{vG}")
    vKV, vKH = 60, 61
    sKL = sFI
    a(f"s_lshl3_add_u32 s{sU0}, s{sW}, s{sT0}")
    a(f"s_mul_i32 s{sU0}, s{sU0}, 1280")
    a(f"s_mul_i32 s{sU1}, s{sT1}, 640")
    a(f"s_add_u32 s{sU0}, s{sU0}, s{sU1}")
    a(f"v_add_u32 v{vKV}, s{sU0}, v1")
    a(f"s_mul_i32 s{sU0}, s{sW}, {(-7*1280) & 0xffffffff}")
    a(f"s_sub_u32 s{sU0}, s{sU0}, {4*1280}")
    a(f"v_add_u32 v{vKH}, s{sU0}, v{vKV}")
    a(f"s_mul_i32 s{sKL}, s{sW}, {8*PK + 32}")
    for (s, n) in ((S_K, 2621440), (S_V, 2621440), (S_WS, WS_SIZE), (S_W, 6291456), (S_SSM, 2621440)):
        a(f"s_mov_b32 s{s+2}, {n}")
        a(f"s_mov_b32 s{s+3}, 0x20000")
    vCH, vS0 = 62, 63
    a(f"s_lshl2_add_u32 s{sU0}, s{sT1}, s{sW}")
    a(f"s_mul_i32 s{sU0}, s{sU0}, 80")
    a(f"v_add_u32 v{vCH}, s{sU0}, v{vI}")
    a(f"v_lshlrev_b32 v{vS0}, 3, v{vCH}")
    for e in range(2):
        o = 5120 * e - 2560
        a(f"global_load_dwordx4 {vr(XR+10*e,4)}, v{vQ}, {sp(P_Q)} offset:{o}")
        a(f"global_load_dwordx4 {vr(XR+10*e+4,4)}, v{vQ}, {sp(P_Q)} offset:{o+512}")
        a(f"global_load_dwordx2 {vr(XR+10*e+8,2)}, v{vQ3}, {sp(P_Q)} offset:{o+1024}")
        if e == 0:
            a(f"global_load_dwordx4 {vr(GR,4)}, v{vG}, {sp(P_GW)}")
            a(f"global_load_dwordx4 {vr(GR+4,4)}, v{vG}, {sp(P_GW)} offset:512")
            a(f"global_load_dwordx2 {vr(GR+8,2)}, v{vG3}, {sp(P_GW)} offset:1024")
    a.run([stamp('start')])
    for (s, p) in ((S_K, 38), (S_V, 40), (S_WS, 66), (S_W, 56), (S_SSM, 44)):
        a(f"s_mov_b64 {sp(s)}, {sp(p)}")
    a.run(P.epoch_load(vEP))

    def kv_dma(which, i):
        if which == 'h':
            return [f"s_mul_i32 s{sU0}, s{sW}, {PK}", f"s_add_u32 m0, s{sU0}, {L_KI}", "s_mov_b32 exec_hi, 0xff",
                    f"buffer_load_dwordx4 v{vKH}, {srd(S_K)}, 0 offen lds", "s_mov_b32 exec_hi, -1"]
        base = L_KI + (4 + i) * PK + (32 if i >= 4 else 0) if which == 'k' else L_VI + i * PK
        return [f"s_add_u32 m0, s{sKL}, {base}", f"s_mov_b32 s{sU0}, {i*1280}", "s_mov_b32 exec_hi, 0xff",
                (f"buffer_load_dwordx4 v{vKV}, {srd(S_K if which == 'k' else S_V)}, s{sU0} offen lds", 'kvdma'), "s_mov_b32 exec_hi, -1"]

    def kv_batch(lst):
        it = []
        for (wh, i) in lst:
            x = kv_dma(wh, i)
            if it:
                it.pop()
                x.remove("s_mov_b32 exec_hi, 0xff")
            it += x
        return it
    kvq = [('h', 0)] + [('k', i) for i in range(8)] + [('v', i) for i in range(8)]
    a(f"s_and_b32 s{sDT}, s{sID}, 3")
    a(f"s_lshr_b32 s{sT0}, s{sID}, 2")
    a(f"s_lshl3_add_u32 s{sST}, s{sXQ}, s{sT0}")
    vLW, vLW3, vA1, vA2, vHS, vGS, vKVA, vKVS = 44, 45, 46, 47, 48, 49, 50, 51
    a(f"v_lshl_add_u32 v{vT}, s{sW}, 1, v{vHW}")
    a(f"s_lshl_b32 s{sT0}, s{sJ}, 4")
    a(f"v_add_lshl_u32 v{vGS}, s{sT0}, v{vT}, 2")
    a(f"v_add_u32 v{vGS}, {WS_G}, v{vGS}")
    a(f"v_mul_u32_u24 v{vT}, {PL}, v{vT}")
    a(f"v_add_u32 v{vT}, {L_LN}, v{vT}")
    a(f"v_add_u32 v{vLW}, v{vT}, v{vG}")
    a(f"v_add_u32 v{vLW3}, v{vT}, v{vG3}")
    a(f"v_mul_u32_u24 v{vT}, {PL}, v{vR}")
    a(f"v_mul_u32_u24 v{vT2}, 320, v{vH}")
    a(f"s_mul_i32 s{sT0}, s{sT3}, {8*PL}")
    a(f"s_add_u32 s{sT0}, s{sT0}, {L_LN}")
    a(f"v_add3_u32 v{vT}, v{vT}, v{vT2}, s{sT0}")
    a(f"v_lshl_add_u32 v{vT}, v{vC}, 4, v{vT}")
    a(f"v_lshl_add_u32 v{vA1}, s{sT2}, 7, v{vT}")
    a(f"v_lshl_add_u32 v{vA2}, s{sT2}, 3, v{vT}")
    a(f"s_lshl1_add_u32 s{sT0}, s{sJ}, s{sT3}")
    a(f"s_lshl_b32 s{sT0}, s{sT0}, 8")
    a(f"s_mul_i32 s{sT1}, s{sT2}, {20*65536}")
    a(f"s_add_u32 s{sT0}, s{sT0}, s{sT1}")
    a(f"v_mul_u32_u24 v{vHS}, {5*65536}, v{vH}")
    a(f"v_lshl_add_u32 v{vHS}, v{vI}, 4, v{vHS}")
    a(f"v_add_u32 v{vHS}, s{sT0}, v{vHS}")
    a(f"v_mul_u32_u24 v{vT}, {8*PK + 32}, v{vH}")
    a(f"v_mul_u32_u24 v{vT2}, {PK}, v{vR}")
    a(f"s_mul_i32 s{sT0}, s{sW}, 160")
    a(f"s_add_u32 s{sT0}, s{sT0}, {L_KI}")
    a(f"v_add3_u32 v{vT}, v{vT}, v{vT2}, s{sT0}")
    a(f"v_lshl_add_u32 v{vKVA}, v{vC}, 3, v{vT}")
    a(f"v_lshlrev_b32 v{vKVS}, 12, v{vCH}")
    a(f"v_lshl_add_u32 v{vKVS}, v{vH}, 4, v{vKVS}")
    a(f"s_lshr_b32 s{sT0}, s{sJ}, 1")
    a(f"s_lshl_b32 s{sT1}, s{sT0}, 6")
    a(f"s_add_u32 s{sT1}, s{sT1}, {WS_KV}")
    a(f"v_add_u32 v{vKVS}, s{sT1}, v{vKVS}")
    a(f"s_and_b32 s{sT1}, s{sJ}, 1")
    a(f"s_lshl_b32 s{sT1}, s{sT1}, 6")
    a(f"s_add_u32 s{sFJ}, s{sT0}, s{sT1}")
    for k in range(1, 5):
        a(f"s_mov_b32 s{79+k}, {k*65536}")
    nq = cfg.get('kvq0', 6)
    a.run(kv_batch(kvq[:nq])); kvq = kvq[nq:]
    a.run([stamp('iss2')])

    def ln(e):
        X = XR + 10 * e
        S1, S2, S3, TT, vRS, vNM, XF = 64 + 32*e, 65 + 32*e, 58 + e, 66 + 32*e, 70 + 32*e, 92 + 32*e, 72 + 32*e
        it = []
        for i in range(10):
            c = lambda r: "0" if i == 0 else f"v{r}"
            it.append(f"v_dot2_f32_bf16 v{S1}, v{X+i}, s{sU2}, {c(S1)}")
            it.append(f"v_dot2_f32_bf16 v{S2}, v{X+i}, v{X+i}, {c(S2)}")
        for i in range(10):
            it.append(f"v_dot2_f32_bf16 v{S3}, v{X+i}, v{GR+i}, {'0' if i == 0 else f'v{S3}'}")
        unp = []
        for i in range(10):
            unp.append(f"v_lshlrev_b32 v{XF+2*i}, 16, v{X+i}")
            unp.append(f"v_and_b32 v{XF+2*i+1}, 0xffff0000, v{X+i}")
        it.append(unp.pop(0))
        for m in ("quad_perm:[1,0,3,2]", "quad_perm:[2,3,0,1]", "row_half_mirror", "row_mirror"):
            for s in (S1, S2, S3):
                it.append(f"v_add_f32_dpp v{s}, v{s}, v{s} {m} row_mask:0xf bank_mask:0xf")
        for k, s in enumerate((S1, S2, S3)):
            it.append(f"v_mov_b32 v{TT+k}, v{s}")
        for k, s in enumerate((S1, S2, S3)):
            it.append(f"v_permlane16_swap_b32 v{s}, v{TT+k}")
        for k, s in enumerate((S1, S2, S3)):
            it.append(f"v_add_f32 v{s}, v{s}, v{TT+k}")
        inv = 0x3ACCCCCD
        it += [f"v_mul_f32 v{S1}, {hex(inv)}, v{S1}",
               f"v_mul_f32 v{S2}, {hex(inv)}, v{S2}",
               f"v_mul_f32 v{S3}, 0xbfb8aa3b, v{S3}",
               f"v_fma_f32 v{S2}, -v{S1}, v{S1}, v{S2}",
               f"v_exp_f32 v{S3}, v{S3}",
               f"v_max_f32 v{S2}, 0, v{S2}",
               f"v_add_f32 v{S2}, 0x3727c5ac, v{S2}",
               f"v_rsq_f32 v{vRS}, v{S2}",
               f"v_add_f32 v{S3}, 1.0, v{S3}",
               f"v_rcp_f32 v{S3}, v{S3}",
               f"v_mul_f32_e64 v{vNM}, -v{S1}, v{vRS}"]
        it += unp
        for i in range(10):
            it.append(f"v_pk_fma_f32 {vr(XF+2*i,2)}, {vr(XF+2*i,2)}, {vr(vRS,2)}, {vr(vNM,2)} op_sel_hi:[1,0,0]")
        for i in range(10):
            it.append(f"v_cvt_pk_bf16_f32 v{X+i}, v{XF+2*i}, v{XF+2*i+1}")
            if i == 3:
                it.append(f"ds_write_b128 v{vLW}, {vr(X,4)} offset:{8*PL*e}")
            if i == 7:
                it.append(f"ds_write_b128 v{vLW}, {vr(X+4,4)} offset:{8*PL*e + 512}")
        it.append((f"ds_write_b64 v{vLW3}, {vr(X+8,2)} offset:{8*PL*e + 1024}", 'lnw'))
        return it
    a(f"s_mov_b32 s{sU2}, 0x3f803f80")
    a.run(ln(0))
    nq = cfg.get('kvq1', 4)
    a.run(kv_batch(kvq[:nq])); kvq = kvq[nq:]
    a.run(ln(1))
    a.wait('lnw')
    a("s_barrier")
    a.run([stamp('barL')])
    HB = 64
    for m in range(5):
        va, off = (vA1, 64 * (m >> 1) + 8 * (m & 1)) if m < 4 else (vA2, 256)
        for e2 in range(2):
            a(f"ds_read_b64_tr_b16 {vr(HB+4*m+2*e2,2)}, v{va} offset:{off + e2*4*PL}")
    a(f"s_mov_b32 exec_lo, 1")
    a(f"s_mov_b32 exec_hi, 1")
    for e in range(2):
        a(f"buffer_store_dword v{58+e}, v{vGS}, {srd(S_WS)}, 0 offen offset:{32*e} sc1")
    a("s_mov_b64 exec, -1")
    for m in range(5):
        a(f"buffer_store_dwordx4 {vr(HB+4*m,4)}, v{vHS}, {srd(S_WS)}, {'0' if m == 0 else f's{79+m}'} offen sc1", tok='hst')
    a(f"v_readfirstlane_b32 s{sTAG}, v{vEP}")
    a(f"s_add_u32 s{sTAG}, s{sTAG}, {hex(TAGC)}")
    nq = cfg.get('kvq2', 7)
    a.run(kv_batch(kvq[:nq])); kvq = kvq[nq:]
    a.wait('hst')
    a("s_barrier")
    a.run([stamp('barH'), P.flag_store(WS_F1, sJ, FS1, 'f1')])
    if kvq:
        a.run(kv_batch(kvq))
    CF, KL = 148, 228
    for u in range(5):
        a(f"global_load_dwordx2 {vr(CF+2*u,2)}, v{vS0}, {sp(P_SH)} offset:{128*u}")
    a(f"s_bfe_u32 s{sT0}, s{sST}, 0x10001")
    a(f"s_mul_i32 s{sT0}, s{sT0}, {cfg.get('rkB', 0)}")
    a(f"s_add_u32 s{sT0}, s{sT0}, s{sDT}")
    a(f"s_and_b32 s{sT0}, s{sT0}, 3")
    a(f"s_mul_i32 s{TK}, s{sT0}, 3072")
    a(f"s_and_b32 s{sSP}, s{sST}, {cfg.get('swB', 1)}")
    for j in range(1, 12):
        a(f"s_add_u32 s{sT0}, s{TK+j-1}, 1024")
        a(f"s_cmp_lt_u32 s{sT0}, {12*1024}")
        a(f"s_cselect_b32 s{TK+j}, s{sT0}, 0")
    a(f"s_mul_i32 s{sT0}, s{sW}, {384*4096}")
    a(f"s_lshl_b32 s{sT1}, s{sST}, 7")
    a(f"s_add_u32 s{sT0}, s{sT0}, s{sT1}")
    a.run(P.weight_src(4096, sT0) + P.weight_dst(True))
    a.run(P.conv_setup(NC))
    a.run(P.conv_setup2(NC))
    vQO, vQO2, vGA, vX1, vQO1 = 36, 41, 253, 252, 15
    QR, vGG, vB2 = 44, 16, 17
    a(f"s_lshl2_add_u32 s{sT0}, s{sST}, s{sW}")
    a(f"v_lshl_add_u32 v{vT}, s{sT0}, 4, v{vI}")
    a(f"v_lshlrev_b32 v{vX1}, 1, v{vT}")
    a(f"v_mul_u32_u24 v{vT}, 1280, v{vT}")
    a(f"s_mul_i32 s{sT0}, s{sDT}, 320")
    a(f"v_add_u32 v{vT}, s{sT0}, v{vT}")
    a(f"v_lshl_add_u32 v{vQO2}, v{vH}, 4, v{vT}")
    a(f"s_lshl_b32 s{sT0}, s{sSP}, 6")
    a(f"v_add_u32 v{vQO}, s{sT0}, v{vQO2}")
    a(f"v_subrev_u32 v{vQO1}, s{sT0}, v{vQO2}")
    a(f"s_lshl1_add_u32 s{sT0}, s{sST}, s{sT2}")
    a(f"s_lshl3_add_u32 s{sT0}, s{sT0}, s{sT3}")
    a(f"s_lshl_b32 s{sT0}, s{sT0}, 4")
    a(f"s_add_u32 s{sT0}, s{sT0}, {WS_G}")
    a(f"v_lshl_add_u32 v{vT}, v{vR}, 5, s{sT0}")
    a(f"v_lshl_add_u32 v{vGA}, v{vC}, 2, v{vT}")
    a.run(P.ssm_loads(NC, KL))

    a.wait('kvdma')
    a("s_barrier")
    a.run([stamp('barK')])
    KR, KO = 64, 160

    def kv_reads(u):
        it = [f"ds_read_b64_tr_b16 {vr(KR+10*u+2*j,2)}, v{vKVA} offset:{32*u + 4*j*PK + (32 if j == 2 else 0)}" for j in range(3)]
        it += [f"ds_read_b64_tr_b16 {vr(KR+10*u+6+2*j,2)}, v{vKVA} offset:{32*u + 4*j*PK + (L_VI-L_KI)}" for j in range(2)]
        return it

    def kv_compute(u):
        it = []
        k = KR + 10 * u
        c10, c32 = CF + 2 * u, CF + 2 * u + 1
        SH, AC, VF, OUT = 116, 124, 132, KO + 4 * u
        for n in range(5):
            it.append(f"v_alignbit_b32 v{SH+n}, v{k+n+1}, v{k+n}, 16")
        pr = lambda e: (k + (e + 1) // 2, k + (e + 3) // 2) if e & 1 else (SH + e // 2, SH + e // 2 + 1)
        for e in range(8):
            it.append(f"v_dot2_f32_bf16 v{AC+e}, v{pr(e)[0]}, v{c32}, 0")
        for e in range(8):
            it.append(f"v_dot2_f32_bf16 v{AC+e}, v{pr(e)[1]}, v{c10}, v{AC+e}")
        for n in range(4):
            it.append(f"v_lshlrev_b32 v{VF+2*n}, 16, v{k+6+n}")
            it.append(f"v_and_b32 v{VF+2*n+1}, 0xffff0000, v{k+6+n}")
        for n in range(4):
            it.append(f"v_pk_mul_f32 {vr(AC+2*n,2)}, {vr(AC+2*n,2)}, {vr(VF+2*n,2)}")
        for n in range(4):
            it.append(f"v_cvt_pk_bf16_f32 v{OUT+n}, v{AC+2*n}, v{AC+2*n+1}")
        it.append((f"buffer_store_dwordx4 {vr(OUT,4)}, v{vKVS}, {srd(S_WS)}, {'0' if u == 0 else f's{79+u}'} offen sc1", 'kvst'))
        return it
    a.run(kv_reads(0) + kv_reads(1))
    for u in range(10):
        a(f"v_alignbit_b32 v{CF+u}, v{CF+u}, v{CF+u}, 16")
    for u in range(5):
        a.run(merge(kv_compute(u), kv_reads(u + 2) if u < 3 else []))
    a.run([stamp('kv_done')])
    for _ in range(cfg.get('wB0', 1)):
        a.run(P.w_step())
    a.run(P.kfix(NC, KL))
    a.wait('kvst')
    a("s_barrier")
    a.run([stamp('barV'), P.flag_store(WS_FK, sFJ, FSK, 'fk')])
    a(f"global_load_ushort v{vB2}, v{vX1}, {sp(P_B2)}")
    while P.nxt < cfg.get('pollB', 7):
        a.run(P.w_step())
    a(P.poll_issue(vP1, 16))
    for _ in range(cfg.get('pollgapB', 0)):
        a.run(P.w_step())
    a.run([P.poll_check('fk', vP1, 16), stamp('fk_ok')])
    XL = 192
    a.run(P.x_loads(NC, XL))
    qa = lambda p: f"v{(vQO, vQO1, vQO, vQO1, vQO2)[p]}"
    qld = [f"global_load_dwordx4 {vr(QR+4*p,4)}, {qa(p)}, {sp(P_Q)} offset:{64*p}" for p in range(5)]
    for _ in range(cfg.get('xgapB', 1)):
        a.run(P.w_step())
    a.run(P.x_writes(NC, XL))
    a.wait('xw')
    a("s_barrier")
    a.run([stamp('barC')])

    for c in range(3):
        a.run(P.c_read(1, c))
    while P.nxt < NR:
        a.run(P.w_step())
    S = P.conv_sched(NT, 3, cfg.get('ccap', 2.3))
    cS, cE = cfg.get('cS', 0), cfg.get('cE', NMF - 36)
    nst = 12 - P.nxt
    per = (cE - cS) / (nst + 1)
    for r in range(nst):
        p0 = cS + r * per
        it = P.w_step()
        for k, x in enumerate(it[:9]):
            S.add('wd', [x], int(p0 + k * per / 14), int(p0 + (k + 1) * per / 14))
        p1 = p0 + per
        S.add('w', it[9:11], int(p1 - per / 5), int(p1) - 1)
        S.add('w', it[11:12], int(p1), int(p1))
        for k, x in enumerate(it[12:]):
            S.add('w', [x], int(p1 + k * per / 4), int(p1 + k * per / 4))
    S.add('wd', P.w_step(), int(cE - per), int(cE) - 1, pace=per / 11)
    tail = []
    while P.drn < 12:
        tail += P.w_step()
    S.add('wd', tail, cE, None, pace=(NMF - cE) / len(tail))
    vUL = 10
    uset = [f"s_mul_i32 s{sT0}, s{sDT}, 5",
            f"s_lshr_b32 s{sT0}, s{sT0}, 2",
            f"s_mul_i32 s{sT0}, s{sT0}, 24",
            f"s_mul_i32 s{sT1}, s{sW}, 6",
            f"s_add_u32 s{sT0}, s{sT0}, s{sT1}",
            f"v_cmp_lt_u32 vcc, 5, v0",
            f"v_add_u32 v{vP0}, s{sT0}, v0",
            f"s_mul_i32 s{sT0}, s{sDT}, {5*48}",
            f"v_cndmask_b32_e64 v{vT}, 0, 18, vcc",
            f"v_add_u32 v{vP0}, v{vP0}, v{vT}",
            f"v_mul_u32_u24 v{vP0}, {FSU}, v{vP0}",
            f"v_add_u32 v{vP0}, {WS_FU}, v{vP0}",
            f"s_lshl1_add_u32 s{sT0}, s{sT1}, s{sT0}",
            f"s_lshl_b32 s{sT0}, s{sT0}, 10",
            f"s_add_u32 s{sT0}, s{sT0}, {WS_U}",
            f"v_add_u32 v{vUL+4}, s{sT0}, v1",
            f"s_mul_i32 s{sT0}, s{sSP}, {96*1024}",
            f"v_add_u32 v{vUL}, s{sT0}, v{vUL+4}",
            f"s_sub_u32 s{sT0}, {96*1024}, s{sT0}",
            f"v_add_u32 v{vUL+2}, s{sT0}, v{vUL+4}",
            f"v_add_u32 v{vUL+1}, {48*1024}, v{vUL}",
            f"v_add_u32 v{vUL+3}, {48*1024}, v{vUL+2}",
            f"v_add_u32 v{vUL+4}, {192*1024}, v{vUL+4}"]
    S.add('set', uset, 40, NMF - 14)
    for k, x in enumerate(qld):
        S.add('w', [x], cE + 5 * k, cE + 5 * k)
    pU = NMF - cfg.get('pU0', 4)
    S.add('set', [P.poll_issue(vP0, 12)], pU, pU)
    a.run(S.items())
    P.info['conv'] = (S.over, S.under)
    a.run([stamp('conv')])
    a.run(P.tile_epi(NT - 1))
    a.wait('carw')
    a("s_barrier")
    zf, zs = P.z_final(NT, 64, 96)
    a.run(zf + zs)
    a.run([stamp('z_st')])

    NB2, GR2, UE = cfg.get('nb2', 16), cfg.get('grp2', 2), cfg.get('uearly', 8)
    UBUF = ([ar(192 + 4*i, 4) for i in range(16)] + [vr(92 + 4*i, 4) for i in range(4)])[:NB2]
    AC2, OWN, RD2, RD4 = (108, 120), 132, 172, 208
    GQ, ZL, ZRg, ZU = 228, 64, 76, 88
    vZG, vZLW, vZT, vOG, vR2R, vR2W, vUM = 20, 21, 22, 28, 33, 25, 220
    opol = cfg.get('opol', '')
    g2set = [f"v_add_u32 v{vUM+m}, {20*48*1024}, v{vUL+m}" for m in range(5)]
    g2set += [f"v_add_u32 v{vP0}, {5*24*FSU}, v{vP0}",
              f"v_lshrrev_b32 v{vT}, 3, v0",
              f"v_lshl_add_u32 v{vT}, s{sW}, 3, v{vT}",
              f"v_and_b32 v{vT2}, 7, v0",
              f"v_lshlrev_b32 v{vT2}, 4, v{vT2}",
              f"v_lshl_add_u32 v{vZG}, v{vT}, 12, v{vT2}",
              f"v_mul_u32_u24 v{vT}, {PZ}, v{vT}",
              f"v_add_u32 v{vT}, v{vT}, v{vT2}",
              f"v_add_u32 v{vZLW}, {L_ZI}, v{vT}",
              f"s_mul_i32 s{sT0}, s{sDT}, {160*4096}",
              f"s_lshl_b32 s{sT1}, s{sST}, 7",
              f"s_add_u32 s{sT0}, s{sT0}, s{sT1}",
              f"s_add_u32 s{sT0}, s{sT0}, {WS_Z}",
              f"s_lshl_b32 s{sT1}, s{sSP}, 17",
              f"s_add_u32 s80, s{sT0}, s{sT1}",
              f"s_sub_u32 s81, s{sT0}, s{sT1}",
              f"s_add_u32 s81, s81, {32*4096}",
              f"s_add_u32 s82, s80, {64*4096}",
              f"s_add_u32 s83, s81, {64*4096}",
              f"s_add_u32 s{sX0}, s{sT0}, {128*4096}",
              f"v_lshl_add_u32 v{vT}, v{vH}, 3, v{vR}",
              f"v_mul_u32_u24 v{vT}, {PZ}, v{vT}",
              f"s_lshl_b32 s{sT0}, s{sW}, 5",
              f"s_add_u32 s{sT0}, s{sT0}, {L_ZI}",
              f"v_lshl_add_u32 v{vZT}, v{vC}, 3, s{sT0}",
              f"v_add_u32 v{vZT}, v{vZT}, v{vT}"]
    for jn in range(1, 4):
        g2set += [f"s_xor_b32 s{sT0}, s{sW}, {jn}",
                  f"s_mul_i32 s{sT0}, s{sT0}, 3072",
                  f"s_add_u32 s{sT0}, s{sT0}, {L_RED + (jn-1)*1024}",
                  f"v_add_u32 v{vR2W+jn-1}, s{sT0}, v1"]
    g2set += [f"s_mul_i32 s{sT0}, s{sW}, 3072",
              f"s_add_u32 s{sT0}, s{sT0}, {L_RED}",
              f"v_add_u32 v{vR2R}, s{sT0}, v1",
              f"v_lshl_add_u32 v{vP1}, s{sDT}, 5, v0",
              f"v_mul_u32_u24 v{vP1}, {FSZ}, v{vP1}",
              f"v_add_u32 v{vP1}, {WS_FZ}, v{vP1}"]
    zso = (80, 81, 82, 83, sX0)
    ptile = ((0, 1), (2, 3), (5, 6), (7, 8), (4, 9))

    def u_load(n):
        m, j = divmod(n, 12)
        return f"buffer_load_dwordx4 {UBUF[n % NB2]}, v{vUL+m if m < 5 else vUM+m-5}, {srd(S_WS)}, s{TK+j} offen sc1"

    def mf2(n, jn):
        m, j = divmod(n, 12)
        d = vr(OWN + 4 * m, 4) if jn == 0 else vr(AC2[m & 1] + 4 * (jn - 1), 4)
        return f"v_mfma_f32_16x16x32_bf16 {d}, {UBUF[n % NB2]}, {ar(16*j+4*jn,4)}, {'0' if j == 0 else d}"
    rd = lambda m, s: [f"ds_read_b128 {vr(RD2+12*s+4*k,4)}, v{vR2R} offset:{(m % 5)*12288 + k*1024}" for k in range(3)]
    ad = lambda m, s: [f"v_add_f32 v{OWN+4*m+r}, v{OWN+4*m+r}, v{RD2+12*s+4*k+r}" for k in range(3) for r in range(4)]
    wr = lambda m: [(f"ds_write_b128 v{vR2W+jn-1}, {vr(AC2[m & 1]+4*(jn-1),4)} offset:{(m % 5)*12288}", f'r2w{m}') for jn in range(1, 4)]
    z_ld = lambda ps: [f"buffer_load_dwordx4 {vr(ZL+4*i,4)}, v{vZG}, {srd(S_WS)}, s{zso[p]} offen sc1" for i, p in enumerate(ps)]
    z_wr = lambda ps: [f"ds_write_b128 v{vZLW}, {vr(ZL+4*i,4)} offset:{p*32*PZ}" for i, p in enumerate(ps)]
    z_rd = lambda p: [f"ds_read_b64_tr_b16 {vr(ZRg+4*(p % 3)+2*hh,2)}, v{vZT} offset:{(32*p + 4*hh)*PZ}" for hh in range(2)]

    def gq(p):
        it = []
        pp = GQ + 8 * (p % 3)
        for k in range(4):
            it += [f"v_lshlrev_b32 v{pp+2*k}, 16, v{QR+4*p+k}", f"v_and_b32 v{pp+2*k+1}, 0xffff0000, v{QR+4*p+k}",
                   f"v_mul_f32 v{pp+2*k}, v{pp+2*k}, v{vGG}", f"v_mul_f32 v{pp+2*k+1}, v{pp+2*k+1}, v{vGG}"]
        return it
    sc = lambda m: [f"v_fma_f32 v{OWN+4*m+k}, v{OWN+4*m+k}, v{vOG}, v{vB2}" for k in range(4)]

    def fin(p, hh):
        it = []
        o = OWN + 4 * ptile[p][hh]
        for k in range(2):
            zu, z, g = ZU + 2 * k, ZRg + 4 * (p % 3) + 2 * hh + k, GQ + 8 * (p % 3) + 4 * hh + 2 * k
            it += [f"v_lshlrev_b32 v{zu}, 16, v{z}", f"v_and_b32 v{zu+1}, 0xffff0000, v{z}"]
            if (p, hh) == (4, 1):
                it += [f"v_fma_f32 v{g}, v{g}, v{zu}, v{vB2}", f"v_fma_f32 v{g+1}, v{g+1}, v{zu+1}, v{vB2}"]
            else:
                it += [f"v_fmac_f32 v{o+2*k}, v{g}, v{zu}", f"v_fmac_f32 v{o+2*k+1}, v{g+1}, v{zu+1}",
                       f"v_cvt_pk_bf16_f32 v{QR+4*p+2*hh+k}, v{o+2*k}, v{o+2*k+1}"]
        return it
    ost = lambda p: [f"global_store_dwordx4 {qa(p)}, {vr(QR+4*p,4)}, {sp(P_OUT)} offset:{64*p} {opol}"]
    a.run([P.poll_check('fu0', vP0, 12), stamp('fu0_ok')])
    for n in range(UE):
        a(u_load(n))
    a(f"buffer_load_dword v{vGG}, v{vGA}, {srd(S_WS)}, 0 offen sc1")
    a.run(g2set)
    mf, pos = [], {}
    for q in range(120 // GR2):
        ns = range(q * GR2, (q + 1) * GR2)
        for jn in ((1, 2, 3, 0) if ns[0] < 108 else (1, 2, 3)):
            for n in ns:
                pos.setdefault(n, len(mf))
                mf.append(mf2(n, jn))
    pown = len(mf)
    mf += [mf2(n, 0) for n in range(108, 120)]
    S = Sched(mf)
    for n in range(120):
        S.reserve(pos[n] - 1)
    UC = cfg.get('pUC', 210)
    k = 0
    for n in range(UE, 120):
        free = 4 * GR2 * ((n - NB2) // GR2 + 1) if n >= NB2 else 0
        p = max(free, 4 * (n - NB2 + GR2) + 1, 2 * k)
        if n >= 60:
            p = max(p, min(UC + 1 + 2 * (n - 60), 4 * n - 2 if UC < 236 else max(239, 4 * (n - UE))))
        if n == 60:
            S.add('u', [P.poll_check('fu1', vP0, 12), stamp('fu1_ok')], p, p)
        S.add('u', [u_load(n)], p, p)
        k += 1
    S.add('st', [stamp('g2first')], 0, 0)
    S.add('st', [stamp('g2mid')], 240, 240)
    pF = cfg.get('pF', 8)
    S.add('z', [('wait', 'zst'), "s_barrier", stamp('barF'), P.flag_store(WS_FZ, sJ, FSZ, 'fz')], pF, pF + 1)
    zB = (0, 1) if NC == 2 else (0, 1, 4)
    zA = (2, 3, 4) if NC == 2 else (2, 3)
    ZP, ZC = cfg.get('zp0', [110, 140])
    S.add('z', [P.poll_issue(vP1, 32)], ZP, ZP)
    S.add('z', [P.poll_check('fz0', vP1, 32), stamp('fz0_ok')] + z_ld(zB) + [f"v_add_u32 v{vP1}, {128*FSZ}, v{vP1}"], ZC, ZC + 10, pace=2)
    UP = UC - cfg.get('pUP', 44)
    assert UP > ZC + 10
    S.add('z', [P.poll_issue(vP0, 12)], UP, UP)
    ZP1, ZC1 = cfg.get('zp1', [330, 370])
    S.add('z', [P.poll_issue(vP1, 32)], ZP1, ZP1)
    S.add('z', [P.poll_check('fz1', vP1, 32), stamp('fz1_ok')] + z_ld(zA), ZC1, ZC1 + 8, pace=2)
    S.add('fin', [f"v_lshlrev_b32 v{vB2}, 16, v{vB2}", f"v_sub_f32 v{vOG}, 1.0, v{vGG}", f"v_mul_f32 v{vB2}, v{vB2}, v{vOG}"] + gq(0) + gq(1) + gq(2), 44, 110)
    OS = cfg.get('osat', 0)
    for m in range(9):
        p = 48 * (m + 1)
        if m == 3:
            S.add('red', z_wr(zB), p - 14, p - 1, pace=4)
        if m == 8:
            S.add('red', z_wr(zA), p - 14, p - 1, pace=4)
        S.add('red', wr(m), p, p + 8, pace=3)
        if m in (1, 3, 6, 8):
            S.add('red', [('wait', f'r2w{m}'), "s_barrier"], p + 11, p + 12)
            ms = {1: (0, 1), 3: (2, 3), 6: (4, 5, 6), 8: (7, 8)}[m]
            zz = {3: z_rd(0) + z_rd(1), 8: z_rd(2) + z_rd(3) + z_rd(4)}.get(m, [])
            rr = [x for i, t in enumerate(ms) for x in rd(t, i)]
            S.add('red', zz, p + 13, p + 13 + len(zz))
            S.add('red', rr, p + 13, p + 13 + len(zz + rr))
            p1, p2 = p + 15 + len(zz), p + 15 + len(zz + rr)
            adds = [x for i, t in enumerate(ms) for x in ad(t, i) + sc(t)]
            if m == 3:
                S.add('fin', fin(0, 0) + fin(0, 1), p1, 290)
                S.add('fin', adds + fin(1, 0) + fin(1, 1), p2, 300)
                S.add('os', ost(0) + ost(1), max(301, OS), max(304, OS + 3))
                S.add('fin', gq(3) + gq(4), p2, 345)
            elif m == 8:
                S.add('fin', fin(2, 0) + fin(2, 1) + ost(2) + fin(4, 0) + fin(4, 1), p1, None)
                S.add('fin', adds + fin(3, 0) + fin(3, 1) + ost(3), p2, None)
            else:
                S.add('fin', adds, p2, p + 90)
    S.add('red', wr(9), pown + 1, pown + 6, pace=2)
    a.run(S.items(keep=('fin',)))
    P.info['g2'] = (S.over, S.under, len(S.left.get('fin', [])))
    a.run([stamp('g2mfma')])
    a.wait('r2w9')
    a("s_barrier")
    for k in range(3):
        a(f"ds_read_b128 {vr(RD4+4*k,4)}, v{vR2R} offset:{4*12288 + k*1024}")
    a.run(S.left.get('fin', []))
    for k in range(3):
        for hh in range(2):
            a(f"v_pk_add_f32 {vr(OWN+36+2*hh,2)}, {vr(OWN+36+2*hh,2)}, {vr(RD4+4*k+2*hh,2)}")
    g = GQ + 8 + 4
    for hh in range(2):
        a(f"v_pk_fma_f32 {vr(g+2*hh,2)}, {vr(OWN+36+2*hh,2)}, {vr(vOG,2)}, {vr(g+2*hh,2)} op_sel_hi:[1,0,1]")
    for hh in range(2):
        a(f"v_cvt_pk_bf16_f32 v{QR+18+hh}, v{g+2*hh}, v{g+2*hh+1}")
    a.run(ost(4))
    P.finish()
    a("s_endpgm")
    return P


def gen(cfg):
    h = Asm()
    h("s_load_dwordx16 s[36:51], s[0:1], 0")
    h("s_load_dwordx16 s[52:67], s[0:1], 56")
    if cfg.get('stamps'):
        h("s_memrealtime s[96:97]")
    h("s_cmp_ge_u32 s2, 256")
    h("s_cbranch_scc1 L_end")
    h("v_lshrrev_b32 v1, 6, v0")
    h("v_and_b32 v0, 63, v0")
    h(f"v_readfirstlane_b32 s{sW}, v1")
    rb = cfg.get('rolebit', 0)
    h(f"s_lshr_b32 s{sID}, s2, 3")
    if rb == 0:
        h(f"s_bfe_u32 s{sXQ}, s2, 0x20001")
    elif rb == 2:
        h(f"s_and_b32 s{sXQ}, s2, 3")
    else:
        h(f"s_bfe_u32 s{sXQ}, s2, 0x10002")
        h(f"s_and_b32 s{sT0}, s2, 1")
        h(f"s_lshl1_add_u32 s{sXQ}, s{sXQ}, s{sT0}")
    h(f"s_lshl_b32 s{sJ}, s{sXQ}, 5")
    h(f"s_add_u32 s{sJ}, s{sJ}, s{sID}")
    h(f"s_bitcmp0_b32 s2, {rb}")
    h("s_cbranch_scc1 L_A")
    A, B = prog_A(cfg), prog_B(cfg)
    ref = open(f"cdna_kernels/{NAME}.s.ref").read().split('\n')
    head = [l for l in ref if l.startswith(';') and '@launch' not in l and 'Override' not in l and 'grid=ceil' not in l]
    txt = '\n'.join(head) + f"\n; @launch grid=(256,1,1) block=(256,1,1) lds={L_END}\n"
    txt += f""".amdgcn_target "amdgcn-amd-amdhsa--gfx950"
.text
.globl {NAME}_kernel
.p2align 8
.type {NAME}_kernel,@function
{NAME}_kernel:
"""
    txt += h.text() + B.a.text() + ".p2align 7\n" + A.a.text() + "L_end:\n    s_endpgm\n"
    txt += f""".section .rodata,"a"
.p2align 6
.amdhsa_kernel {NAME}_kernel
  .amdhsa_next_free_vgpr 512
  .amdhsa_next_free_sgpr 102
  .amdhsa_accum_offset 256
  .amdhsa_group_segment_fixed_size 0
  .amdhsa_kernarg_size 120
  .amdhsa_user_sgpr_count 2
  .amdhsa_user_sgpr_kernarg_segment_ptr 1
  .amdhsa_system_sgpr_workgroup_id_x 1
  .amdhsa_float_denorm_mode_32 3
.end_amdhsa_kernel
"""
    return txt, dict(n_ins=(A.a.n_ins, B.a.n_ins), n_nop=(A.a.n_nop, B.a.n_nop), stamps=B.names, stampsA=A.names,
                     rolebit=rb, sched=(A.info, B.info))


if __name__ == "__main__":
    import json
    out = sys.argv[1]
    cfg = json.loads(sys.argv[2]) if len(sys.argv) > 2 else {}
    txt, info = gen(cfg)
    open(out, 'w').write(txt)
    print(out, info)


def dmap(T, i):
    dt, m = divmod(T, 5)
    r, g = dt >> 2, dt & 3
    P, hh = (2 * r + (m >> 1), m & 1) if m < 4 else (4, r)
    return 160 * g + 32 * P + 8 * (i >> 2) + 4 * hh + (i & 3)
```

```python
import sys
from asmlib import Asm, merge, Sched

NAME = "gated_mix__ssm_conv_h3__mixer_token_mlp__prompt"

WS_H, WS_U, WS_KV, WS_Z, WS_G = 0x0, 0x280000, 0x480000, 0x700000, 0x980000
WS_F1, WS_FK, WS_FU, WS_FZ, WS_EP, WS_DBG = 0x990000, 0x998000, 0x9A0000, 0x9B0000, 0x9C0000, 0x9D0000
WS_SIZE = 0xA10000
OOB = 0x7F000000
TAGC = 0x9E3779B9

NR = 4
L_RED = 65536
PL = 1344
L_LN = 32768
PK = 704
L_KI = L_RED
L_VI = L_RED + 25600
L_ZSTG = L_RED + 4 * 12288
L_CK = L_RED + 61440
KP, KPAD = 4224, 96
L_CX = L_CK + 3 * KP
XP, XPAD = 4608, 512
L_CAR = L_CX + 3 * XP
L_END = L_CAR + 1600
L_ZI = L_CK
PZ = 144

S_WS, S_K, S_V, S_W, S_SSM = 4, 8, 12, 16, 24
P_Q, P_SH, P_D, P_B1, P_B2, P_GW, P_OUT = 36, 42, 46, 54, 58, 60, 62
TK = 68
sW, sXQ, sID, sA, sB, sJ, sSP, sTAG, sRING, sC0, sFI, sFJ = range(84, 96)
sT0, sT1, sT2, sT3 = 32, 33, 34, 35
sU0, sU1, sU2, sU3 = 20, 21, 22, 23
sX0, sX1, sX2 = 31, 48, 49
sC2 = 39
sCNT = 3
vH, vI, vR, vC, vT, vT2 = 37, 38, 39, 40, 42, 43
VW, VT = 2, 6
vPD = 18
vCA, vCB, vCA2, vCB2 = 20, 21, 22, 23
vCRW, vCRW2, vCRR, vCRR2, vZW, vZR, vZS, vZS2, vCW = 25, 26, 27, 28, 29, 30, 31, 32, 33
vP0, vP1, vTAG = 35, 24, 34
CA, CB, CACC, CY, NSL = 64, 128, 192, 208, 4
CH, CR, ZO = 232, 238, 208
vZF = 252


def srd(n):
    return f"s[{n}:{n+3}]"


def sp(n):
    return f"s[{n}:{n+1}]"


def vr(n, k):
    return f"v[{n}:{n+k-1}]"


def ar(n, k):
    return f"a[{n}:{n+k-1}]"


def txt_of(x):
    return x if isinstance(x, str) else (x[0] if isinstance(x, tuple) else '')


class Prog:
    def __init__(self, role, cfg):
        self.a = Asm()
        self.role = role
        self.cfg = cfg
        self.stamps = cfg.get('stamps', False)
        self.names = []
        self.npoll = 0
        self.nxt = self.drn = 0
        self.nstep = 16 if role == 'A' else 12
        self.info = {}

    def stamp(self, name):
        def f(a):
            st = self.stamps
            if not st or (st != 1 and name not in st and name not in ('start', 'end')) or (st == 1 and name[0] == 'w' and name != 'w8'):
                return
            k = len(self.names)
            a("s_memtime s[98:99]")
            a("s_memrealtime s[100:101]")
            a(f"v_writelane_b32 v255, s98, {k}")
            a(f"v_writelane_b32 v255, s100, {32+k}")
            self.names.append(name)
        f.cost = 0
        return f

    def weight_src(self, pitch, sbase):
        it = [f"v_lshrrev_b32 v{vT}, 3, v0",
              f"v_and_b32 v{vT2}, 6, v{vT}",
              f"v_xor_b32 v{vT2}, v{vT2}, v0",
              f"v_and_b32 v{vT2}, 7, v{vT2}",
              f"v_mul_u32_u24 v{vT}, {pitch}, v{vT}",
              f"v_lshl_add_u32 v{vT}, v{vT2}, 4, v{vT}",
              f"v_add_u32 v{VW}, s{sbase}, v{vT}"]
        for i in range(1, 4):
            it.append(f"v_add_u32 v{VW+i}, {8*pitch-1024}, v{VW+i-1}")
        return it

    def weight_dst(self, xorw):
        it = [f"v_lshrrev_b32 v{vT}, 2, v0",
              f"v_lshlrev_b32 v{vT}, 7, v{vT}",
              f"v_lshl_add_u32 v{vT}, v{vC}, 3, v{vT}",
              f"v_bfe_u32 v{vT2}, v0, 3, 2"]
        if xorw:
            it.append(f"v_xor_b32 v{vT2}, s{sW}, v{vT2}")
        it += [f"v_lshl_add_u32 v{vT}, v{vT2}, 5, v{vT}",
               f"v_add_u32 v{VT}, s{sRING}, v{vT}"]
        for t in range(1, 4):
            it.append(f"v_xor_b32 v{VT+t}, {t*32}, v{VT}")
        return it

    def w_issue(self, j):
        it = [f"s_mul_i32 s{sU1}, s{TK+j}, {96 if self.role == 'A' else 128}",
              f"s_add_u32 m0, s{sRING}, {(j % NR)*16384}"]
        if j >= NR:
            it.append(('wait', f'wr{j-NR}'))
        for i in range(4):
            it.append((f"buffer_load_dwordx4 v{VW+i}, {srd(S_W)}, s{sU1} offen offset:{i*1024} lds", f'wd{j}'))
        return it

    def w_drain(self, j):
        it = [('wait', f'wd{j}')]
        for t in range(4):
            for e2 in range(2):
                it.append((f"ds_read_b64_tr_b16 {ar(16*j+4*t+2*e2,2)}, v{VT+t} offset:{(j % NR)*16384 + e2*2048}", f'wr{j}'))
        return it

    def w_step(self):
        it = []
        if self.nxt >= NR or self.nxt == self.nstep:
            it += self.w_drain(self.drn); self.drn += 1
        if self.nxt < self.nstep:
            it += self.w_issue(self.nxt); self.nxt += 1
        return it

    def flag(self, soff):
        return f"s_mov_b64 exec, 1\nbuffer_store_dword v{vTAG}, v0, {srd(S_WS)}, s{soff} offen sc1\ns_mov_b64 exec, -1"

    def flag_wg(self, soff, name):
        def f(a):
            a("s_barrier")
            a(f"s_cmp_lg_u32 s{sW}, 0")
            a(f"s_cbranch_scc1 L_nf_{name}")
            a.begin_cond(name)
            a(self.flag(soff))
            a.end_cond()
            a.label(f"L_nf_{name}")
        return f

    def set_tag(self, v):
        return [f"v_readfirstlane_b32 s{sTAG}, v{v}", f"s_add_u32 s{sTAG}, s{sTAG}, {hex(TAGC)}", f"v_mov_b32 v{vTAG}, s{sTAG}"]

    @staticmethod
    def setexec(n):
        if n == 32:
            return "s_mov_b32 exec_hi, 0"
        if n > 32:
            return f"s_mov_b32 exec_hi, {hex((1 << (n-32)) - 1)}"
        return f"s_mov_b64 exec, {hex((1 << n) - 1)}"

    def poll_load(self, va, wd, vd):
        if wd == 1:
            return f"buffer_load_dword v{vd}, v{va}, {srd(S_WS)}, 0 offen sc1"
        return f"buffer_load_dwordx{wd} {vr(vd,wd)}, v{va}, {srd(S_WS)}, 0 offen sc1"

    def poll_issue(self, va, n=64, wd=1, vd=vPD):
        it = [self.setexec(n)] if n < 64 else []
        it.append(self.poll_load(va, wd, vd))
        if n < 64:
            it.append("s_mov_b64 exec, -1")
        return "\n".join(it)

    def poll_check(self, name, va, n=64, wd=1, vd=vPD):
        name = self.role + name

        def cmp(a):
            if wd == 1:
                a(f"v_cmp_ne_u32 vcc, s{sTAG}, v{vd}")
                return
            a(f"v_xor_b32 v{vd}, s{sTAG}, v{vd}")
            for k in range(1, wd):
                a(f"v_bitop3_b32 v{vd}, v{vd}, v{vd+k}, v{vTAG} bitop3:0xf6")
            a(f"v_cmp_ne_u32 vcc, 0, v{vd}")

        def f(a):
            if n < 64:
                a(self.setexec(n))
            cmp(a)
            a(f"s_mov_b32 s{sCNT}, 0")
            a(f"s_branch L_pk_{name}" if name[1:] in self.cfg.get('nopoll', []) else f"s_cbranch_vccz L_pk_{name}")
            a.label(f"L_pl_{name}")
            a.begin_cond('poll' + name)
            a("s_mov_b64 exec, vcc")
            if self.cfg.get('psleep'):
                a(f"s_sleep {self.cfg['psleep']}")
            a(self.poll_load(va, wd, vd))
            a(f"s_add_u32 s{sCNT}, s{sCNT}, 1")
            a(f"s_cmp_ge_u32 s{sCNT}, 0x40000")
            a(f"s_cbranch_scc1 L_pk_{name}")
            cmp(a)
            a("s_nop 0")
            a(f"s_cbranch_vccnz L_pl_{name}")
            a.end_cond()
            a.label(f"L_pk_{name}")
            a("s_mov_b64 exec, -1")
            if self.stamps:
                a(f"v_writelane_b32 v254, s{sCNT}, {self.npoll}")
                self.npoll += 1
        f.cost = 5
        return f

    def zflag_addr(self, dst, first):
        fsz = self.cfg.get('fsz', 32)
        return [f"s_add_u32 s{dst}, s{sJ}, {first}", f"s_mul_i32 s{dst}, s{dst}, {fsz}",
                f"s_lshl1_add_u32 s{sT0}, s{sT3}, s{sT2}", f"s_lshl2_add_u32 s{dst}, s{sT0}, s{dst}",
                f"s_add_u32 s{dst}, s{dst}, {WS_FZ}"]

    def lanes(self):
        return ["v_lshlrev_b32 v1, 4, v0",
                f"v_lshrrev_b32 v{vH}, 4, v0", f"v_and_b32 v{vI}, 15, v0",
                f"v_bfe_u32 v{vR}, v0, 2, 2", f"v_and_b32 v{vC}, 3, v0",
                f"s_lshr_b32 s{sT2}, s{sW}, 1", f"s_and_b32 s{sT3}, s{sW}, 1",
                f"s_lshl_b32 s{sRING}, s{sW}, 12"]

    def code_prefetch(self, beg, end):
        r = self.role
        return [f"s_getpc_b64 {sp(sU2)}", f"L_pc{r}:",
                f"s_lshl2_add_u32 s{sT2}, s{sID}, s{sW}",
                f"v_lshl_add_u32 v{vT}, s{sT2}, 1, v0",
                f"v_lshlrev_b32 v{vT}, 7, v{vT}",
                f"v_add_u32 v{vT}, {beg}-L_pc{r}, v{vT}",
                f"v_min_u32 v{vT}, {end}-L_pc{r}, v{vT}",
                "s_mov_b64 exec, 3",
                f"global_load_dword v253, v{vT}, {sp(sU2)}",
                "s_mov_b64 exec, -1"]

    def epoch_load(self, v):
        return [f"s_mov_b32 s{sT0}, {WS_EP}", "s_mov_b64 exec, 1",
                f"buffer_load_dword v{v}, v0, {srd(S_WS)}, s{sT0} offen sc1", "s_mov_b64 exec, -1"]

    def conv_setup(self, nch):
        ZR = 68
        it = [f"s_mul_i32 s{sC2}, s{sXQ}, 160",
              f"s_lshl1_add_u32 s{sC0}, s{sID}, s{sC2}",
              f"s_add_u32 s{sC0}, s{sC0}, {64 if self.role == 'A' else 0}",
              f"s_add_u32 s{sC2}, s{sC2}, s{sID}",
              f"s_add_u32 s{sC2}, s{sC2}, 128",
              f"s_lshl_b32 s{sT0}, s{sC0}, 1",
              f"s_load_dword s28, {sp(P_D)}, s{sT0}"]
        if nch == 3:
            it += [f"s_lshr_b32 s{sT1}, s{sC2}, 1", f"s_lshl_b32 s29, s{sT1}, 2", f"s_load_dword s30, {sp(P_D)}, s29"]
        it += [f"s_lshl_b32 s{sX0}, s{sC0}, 12",
               f"s_lshl_b32 s{sT1}, s{sW}, 10",
               f"s_add_u32 s{sX0}, s{sX0}, s{sT1}",
               f"s_add_u32 s{sX1}, s{sX0}, 4096",
               f"s_lshl_b32 s{sX2}, s{sC2}, 12",
               f"s_add_u32 s{sX2}, s{sX2}, s{sT1}",
               f"s_add_u32 s{sT1}, s{sT1}, {L_CK + KPAD}",
               f"v_add_u32 v{vCW}, s{sT1}, v1"]
        it += [f"v_mov_b32 v{ZR+i}, 0" for i in range(4)]
        it += [f"s_min_u32 s{sT0}, s{sW}, 2",
               f"s_mul_i32 s{sT1}, s{sT0}, {XP}",
               f"s_add_u32 s{sT1}, s{sT1}, {L_CX}",
               f"v_add_u32 v{vT}, s{sT1}, v1",
               f"s_mul_i32 s{sT1}, s{sT0}, {KP}",
               f"s_add_u32 s{sT1}, s{sT1}, {L_CK}",
               f"v_add_u32 v{vT2}, s{sT1}, v1",
               f"s_mul_i32 s{sT1}, s{sT0}, {33*16}",
               f"s_add_u32 s{sT1}, s{sT1}, {L_CAR}",
               f"v_mov_b32 v{vPD}, s{sT1}",
               "s_mov_b32 exec_hi, 0",
               f"ds_write_b128 v{vT}, {vr(ZR,4)}",
               f"s_mov_b64 exec, {hex((1 << (KPAD//16)) - 1)}",
               f"ds_write_b128 v{vT2}, {vr(ZR,4)}",
               "s_mov_b64 exec, 1",
               f"ds_write_b128 v{vPD}, {vr(ZR,4)}",
               "s_mov_b64 exec, -1"]
        it += [f"v_lshl_add_u32 v{vT}, v{vH}, 3, v{vR}",
               f"v_lshlrev_b32 v{vT2}, 2, v{vC}",
               f"v_sub_u32 v{vT2}, v{vT2}, v{vT}",
               f"v_lshlrev_b32 v{vT2}, 3, v{vT2}",
               f"s_mul_i32 s{sT0}, s{sT2}, {KP}",
               f"s_add_u32 s{sT0}, s{sT0}, {L_CK + KPAD + 152 - 32}",
               f"v_add_u32 v{vCA}, s{sT0}, v{vT2}"]
        if nch == 3:
            it.append(f"v_add_u32 v{vCA2}, {L_CK + 2*KP + KPAD + 152 - 32}, v{vT2}")
        it += [f"v_add_lshl_u32 v{vT}, v{vT}, v{vC}, 3",
               f"s_mul_i32 s{sT0}, s{sT2}, {XP}",
               f"s_lshl_b32 s{sT1}, s{sT3}, 7",
               f"s_add_u32 s{sT0}, s{sT0}, s{sT1}",
               f"s_add_u32 s{sT0}, s{sT0}, {L_CX + XPAD - 152}",
               f"v_add_u32 v{vCB}, s{sT0}, v{vT}"]
        if nch == 3:
            it += [f"s_lshl_b32 s{sT0}, s{sW}, 7",
                   f"s_add_u32 s{sT0}, s{sT0}, {L_CX + 2*XP + XPAD - 152 - 256}",
                   f"v_add_u32 v{vCB2}, s{sT0}, v{vT}"]
        return it

    def conv_setup2(self, nch):
        it = [f"s_mul_i32 s{sT0}, s{sT2}, {33*16}",
              f"s_lshl4_add_u32 s{sT0}, s{sT3}, s{sT0}",
              f"s_add_u32 s{sT0}, s{sT0}, {L_CAR}",
              f"v_lshlrev_b32 v{vT}, 2, v{vC}",
              f"v_lshl_add_u32 v{vT2}, v{vR}, 5, v{vT}",
              f"v_add_u32 v{vCRR}, s{sT0}, v{vT2}",
              f"s_add_u32 s{sT0}, s{sT0}, {(16 - 48*32) & 0xffffffff}",
              f"v_lshl_add_u32 v{vCRW}, v0, 5, s{sT0}"]
        if nch == 3:
            it += [f"s_lshl_b32 s{sT0}, s{sW}, 4",
                   f"s_add_u32 s{sT0}, s{sT0}, {L_CAR + 2*33*16}",
                   f"v_lshl_add_u32 v{vT2}, v{vR}, 6, v{vT}",
                   f"v_add_u32 v{vCRR2}, s{sT0}, v{vT2}",
                   f"s_add_u32 s{sT0}, s{sT0}, {(16 - 56*64) & 0xffffffff}",
                   f"v_lshl_add_u32 v{vCRW2}, v0, 6, s{sT0}"]
        it += [f"s_mul_i32 s{sT0}, s{sW}, 3072",
               f"s_add_u32 s{sT0}, s{sT0}, {L_ZSTG}",
               f"v_lshl_add_u32 v{vZW}, v0, 1, s{sT0}",
               f"v_add_u32 v{vZR}, s{sT0}, v1",
               f"v_lshl_add_u32 v{vT}, v{vC}, 1, s{sT0}",
               f"v_lshl_add_u32 v{vZF}, v{vR}, 7, v{vT}",
               f"v_lshrrev_b32 v{vT}, 3, v0",
               f"v_and_b32 v{vT2}, 7, v0",
               f"v_lshlrev_b32 v{vT2}, 4, v{vT2}",
               f"v_lshl_add_u32 v{vZS}, v{vT}, 8, v{vT2}",
               f"s_add_u32 s{sT0}, s{sC0}, s{sT2}",
               f"s_lshl_b32 s{sT0}, s{sT0}, 12",
               f"s_lshl_b32 s{sT1}, s{sT3}, 7",
               f"s_add_u32 s{sT0}, s{sT0}, s{sT1}",
               f"s_add_u32 s{sT0}, s{sT0}, {WS_Z}",
               f"v_add_u32 v{vZS}, s{sT0}, v{vZS}"]
        if nch == 3:
            it += [f"v_lshl_add_u32 v{vZS2}, v{vT}, 9, v{vT2}",
                   f"s_lshl_b32 s{sT0}, s{sC2}, 12",
                   f"s_lshl_b32 s{sT1}, s{sW}, 7",
                   f"s_add_u32 s{sT0}, s{sT0}, s{sT1}",
                   f"s_add_u32 s{sT0}, s{sT0}, {WS_Z}",
                   f"v_add_u32 v{vZS2}, s{sT0}, v{vZS2}"]
        if nch == 3:
            it += [f"s_and_b32 s{sT0}, s{sC2}, 1",
                   f"s_lshl_b32 s{sT0}, s{sT0}, 4",
                   f"s_lshr_b32 s30, s30, s{sT0}",
                   f"s_lshl_b32 s30, s30, 16",
                   f"s_cmp_eq_u32 s{sW}, 0\ns_cselect_b32 s30, s30, 0"]
        fsk = self.cfg.get('fsk', 16)
        it += [f"s_cmp_eq_u32 s{sW}, 0\ns_cselect_b32 s28, s28, 0",
               f"s_and_b32 s29, s28, 0xffff0000", f"s_lshl_b32 s28, s28, 16",
               f"s_lshr_b32 s{sT0}, s{sXQ}, 1",
               f"s_lshl2_add_u32 s{sT0}, s{sT0}, s{sW}",
               f"v_lshl_add_u32 v{vP1}, s{sT0}, 4, v0",
               f"v_mul_u32_u24 v{vP1}, {fsk}, v{vP1}",
               f"v_add_u32 v{vP1}, {WS_FK}, v{vP1}"]
        return it

    def ssm_loads(self, nch, KL):
        return [f"buffer_load_dwordx4 {vr(KL[cs],4)}, v1, {srd(S_SSM)}, s{so} offen" for cs, so in enumerate((sX0, sX1, sX2)[:nch])]

    def kfix(self, nch, KL):
        it = ["s_mov_b64 exec, 1"]
        for cs in range(nch):
            it += [f"v_lshlrev_b32 v{vT}, 16, v{KL[cs]}",
                   f"v_and_b32 v{vT2}, 0xffff0000, v{KL[cs]}",
                   f"v_add_f32 v{vT}, s{28+cs}, v{vT}",
                   f"v_cvt_pk_bf16_f32 v{KL[cs]}, v{vT}, v{vT2}"]
        it.append("s_mov_b64 exec, -1")
        it += [f"ds_write_b128 v{vCW}, {vr(KL[cs],4)} offset:{cs*KP}" for cs in range(nch)]
        return it

    def x_off(self, nch):
        return [f"s_add_u32 s{s}, s{s}, {WS_KV}" for s in (sX0, sX1, sX2)[:nch]]

    def x_loads(self, nch, XL):
        return [f"buffer_load_dwordx4 {vr(XL[cs],4)}, v1, {srd(S_WS)}, s{so} offen sc1" for cs, so in enumerate((sX0, sX1, sX2)[:nch])]

    def x_writes(self, nch, XL):
        return [(f"ds_write_b128 v{vCW}, {vr(XL[cs],4)} offset:{L_CX + XPAD - L_CK - KPAD + cs*XP}", 'xw') for cs in range(nch)]

    tiles = [(1, m, m) for m in range(16)] + [(2, n, 2 * n + 1) for n in range(8)]

    @staticmethod
    def cb_slot(part, n):
        return CB + 4 * (n if part == 1 else 15 - n)

    def c_read(self, part, c):
        va, vb = (vCA, vCB) if part == 1 else (vCA2, vCB2)
        return ([f"ds_read_b64_tr_b16 {vr(CA+4*c+2*e2,2)}, v{va} offset:{256*c + 32*(1-e2)}" for e2 in range(2)] +
                [f"ds_read_b64_tr_b16 {vr(self.cb_slot(part,c)+2*e2,2)}, v{vb} offset:{256*c + 32*e2}" for e2 in range(2)])

    def tile_epi(self, g):
        part, k, m = self.tiles[g]
        d = CACC + 4 * (g % NSL)
        p = CACC + 4 * ((g - 1) % NSL)
        dp = "wave_shr:1 row_mask:0xf bank_mask:0xf bound_ctrl:0"
        it = []
        for j, dst in ((3, d + 2), (2, d + 1), (1, CY + g)):
            it.append(f"v_add_f32_dpp v{dst}, v{d+j}, v{d+j-1} {dp}")
            if k:
                it.append(f"v_mov_b32_dpp v{d+j}, v{p+j} wave_shl:1 row_mask:0xf bank_mask:0xf")
        if g in (15, 23):
            va, mk = (vCRW, '0xffff0000') if g == 15 else (vCRW2, '0xff000000')
            it.append((f"s_mov_b32 exec_lo, 0\ns_mov_b32 exec_hi, {mk}\nds_write_b128 v{va}, {vr(d,4)}\ns_mov_b64 exec, -1", f'carw{part}'))
        return it

    def stage(self, g):
        it = []
        for t in (g, g + 1):
            j = t % 4
            it.append(f"v_mov_b32 v{CH+t//4}, v{CY+t}" if j == 0 else
                      f"v_mov_b32_dpp v{CH+t//4}, v{CY+t} row_shr:{4*j} row_mask:0x1 bank_mask:{hex(1 << j)}")
        return it + [f"v_cvt_pk_bf16_f32 v{CY+g}, v{CY+g}, v{CY+g+1}",
                     f"ds_write_b16 v{vZW}, v{CY+g} offset:{128*g}", f"ds_write_b16_d16_hi v{vZW}, v{CY+g} offset:{128*(g+1)}"]

    def conv_sched(self, nt, cpre, cap, sg0=0):
        mf, first = [], []
        for g, (part, k, m) in enumerate(self.tiles[:nt]):
            d = vr(CACC + 4 * (g % NSL), 4)
            first.append(len(mf))
            mf += [f"v_mfma_f32_16x16x32_bf16 {d}, {vr(CA+4*c,4)}, {vr(self.cb_slot(part,m-c),4)}, {'0' if c == 0 else d}"
                   for c in range(m + 1)]
        first += [len(mf)] * 8
        S = Sched(mf, cap)
        LEAD = self.cfg.get('lead', 7)
        for g in range(1, nt):
            S.reserve(first[g] - 1)
        for c in range(cpre, 16):
            S.add('rd', self.c_read(1, c), 0, max(first[c] - LEAD, 0))
        if nt > 16:
            for c in range(16):
                S.add('rd', self.c_read(2, c), first[15] + c + 1, max(first[16 + c // 2] - LEAD, first[15] + c + 1))
        self.sgrel = {}
        for g in range(nt - 1):
            dl = min(first[g + NSL - 1] - 1, first[g + 1] + 12)
            S.add('ep', self.tile_epi(g), first[g + 1] + 2, dl)
            if g & 1:
                self.sgrel[g - 1] = max(dl + 1, sg0)
        self.first = first
        return S

    def z_fix(self, part):
        qs = (0, 2) if part == 1 else (4,)
        va, st = (vCRR, 32) if part == 1 else (vCRR2, 64)
        it = [f"ds_read2_b32 {vr(CR+q,2)}, v{va} offset0:{1+st*(q % 4)} offset1:{1+st*(q % 4 + 1)}" for q in qs]
        for q in qs:
            it += [f"v_add_f32 v{CH+q}, v{CH+q}, v{CR+q}", f"v_add_f32 v{CH+q+1}, v{CH+q+1}, v{CR+q+1}",
                   f"v_cvt_pk_bf16_f32 v{CH+q}, v{CH+q}, v{CH+q+1}",
                   f"s_mov_b64 exec, 0x7777\nds_write_b16 v{vZF}, v{CH+q} offset:{512*q}\nds_write_b16_d16_hi v{vZF}, v{CH+q} offset:{512*(q+1)}\ns_mov_b64 exec, -1",
                   f"ds_read_b128 {vr(ZO+2*q,4)}, v{vZR} offset:{512*q}"]
        if part == 1:
            st = [(f"buffer_store_dwordx4 {vr(ZO,4)}, v{vZS}, {srd(S_WS)}, 0 offen sc1", 'zst1'),
                  (f"buffer_store_dwordx4 {vr(ZO+4,4)}, v{vZS}, {srd(S_WS)}, 0 offen offset:2048 sc1", 'zst1')]
        else:
            st = [(f"buffer_store_dwordx4 {vr(ZO+8,4)}, v{vZS2}, {srd(S_WS)}, 0 offen sc1", 'zst2')]
        return it, st

    def conv_run(self, S, nt, early, flag1=None):
        a = self.a
        for g in range(0, nt - 2, 2):
            S.add('sg', self.stage(g), self.sgrel[g], None)
            if early and g == 14:
                f1, s1 = self.z_fix(1)
                p = self.cfg.get('pE1', 150)
                S.th['sg'][-1][2] = p - 1
                S.add('sg', [('wait', 'carw1'), "s_barrier"], p, p + 1)
                S.add('sg', f1[:2], p + 1, p + 3)
                S.add('sg', f1[2:], p + 6, p + 16)
                S.add('sg', s1, p + 20, p + 22)
        a.run(S.items(keep=('sg',)))
        self.info['conv'] = (S.over, S.under, len(S.left.get('sg', [])))
        a.run([self.stamp('conv')])
        a.run(merge(S.left.get('sg', []) or ["s_nop 0"], self.tile_epi(nt - 1)))
        a.run(self.stage(nt - 2))
        a.wait('carw2' if nt > 16 else 'carw1')
        a("s_barrier")
        parts = [2] if early else ([1, 2] if nt > 16 else [1])
        fs = [self.z_fix(p) for p in parts]
        if early:
            a.run(fs[0][0][:1] + [('wait', 'zst1'), flag1] + fs[0][0][1:])
        else:
            a.run([x for f in fs for x in f[0]])
        a.run([x for f in fs for x in f[1]])
        a.run([self.stamp('z_st')])

    def finish(self):
        a = self.a
        a.run([self.stamp('end')])
        if self.stamps:
            a.wait_all()
            a("s_memrealtime s[98:99]")
            a(f"v_writelane_b32 v255, s96, 30")
            a(f"v_writelane_b32 v255, s98, 31")
            for k in range(self.npoll):
                a(f"v_readlane_b32 s{sT0}, v254, {k}")
                a(f"v_writelane_b32 v255, s{sT0}, {24+k}")
            a(f"s_lshl2_add_u32 s{sT0}, s2, s{sW}")
            a(f"s_lshl_b32 s{sT0}, s{sT0}, 8")
            a(f"s_add_u32 s{sT0}, s{sT0}, {WS_DBG}")
            a(f"v_lshlrev_b32 v{vT}, 2, v0")
            a(f"buffer_store_dword v255, v{vT}, {srd(S_WS)}, s{sT0} offen")


KERNARG = {f"s{i}" for i in range(36, 68)}


def prog_A(cfg):
    P = Prog('A', cfg)
    a, stamp = P.a, P.stamp
    a.smem_pending = set(KERNARG) | {'s96', 's97'}
    FS1, FSU, FSZ = cfg.get('fs1', 128), cfg.get('fsu', 64), cfg.get('fsz', 32)
    NB, GR = cfg.get('nb', 14), cfg.get('grp', 2)
    sDG, sFT = sA, sB
    KW, HW = cfg.get('kw', 1), cfg.get('hw', 1)
    NC = 3 if cfg.get('third', 'A') == 'A' else 2
    NT = 8*NC
    if cfg.get('cpf', 1):
        a.run(P.code_prefetch("L_Amain", "L_end"))
    a(f"s_mul_i32 s{sT0}, s{sID}, 52")
    a(f"s_lshr_b32 s{sT0}, s{sT0}, 8")
    a(f"s_mul_i32 s{sT1}, s{sT0}, 5")
    a(f"s_sub_u32 s{sDG}, s{sID}, s{sT1}")
    a(f"s_min_u32 s{sT0}, s{sT0}, 5")
    a(f"s_mul_i32 s{sFT}, s{sXQ}, 6")
    a(f"s_add_u32 s{sFT}, s{sFT}, s{sT0}")
    a(f"s_lshl4_add_u32 s{sT1}, s{sDG}, s{sW}")
    a(f"s_mul_i32 s{sT1}, s{sT1}, 205")
    a(f"s_lshr_b32 s{sT1}, s{sT1}, 10")
    sOWN = 38
    if cfg.get('rkA', 5):
        a(f"s_lshr_b32 s{sCNT}, s{sT0}, 1")
        a(f"s_mul_i32 s{sCNT}, s{sCNT}, {cfg.get('rkA', 5)}")
        a(f"s_add_u32 s{sT1}, s{sT1}, s{sCNT}")
        a(f"s_and_b32 s{sT1}, s{sT1}, 15")
    a(f"s_lshl_b32 s{TK}, s{sT1}, 10")
    a(f"s_add_u32 s{sT1}, s{TK}, 1024")
    a(f"s_and_b32 s{TK+1}, s{sT1}, 0x3c00")
    a(f"s_lshl_b32 s{sRING}, s{sW}, 12")
    a(f"s_mul_i32 s{sT0}, s{sW}, {512*3072}")
    a(f"s_lshl_b32 s{sT1}, s{sFT}, 7")
    a(f"s_add_u32 s{sT0}, s{sT0}, s{sT1}")
    a.run(P.weight_src(3072, sT0))
    a(f"s_mov_b32 s{S_W+2}, 6291456")
    a(f"s_mov_b32 s{S_W+3}, 0x20000")
    a(f"s_cmp_ge_u32 s{sID}, 30")
    a(f"s_cselect_b32 s{sSP}, {OOB}, 0")
    a(f"s_mov_b64 {sp(S_W)}, {sp(50)}")
    a("s_cbranch_scc1 L_Amain")
    a.run(P.w_step())
    a.run([stamp('start')])
    a.run(P.w_step())
    a("s_branch L_Amain")
    P.split = len(a.out)
    a.label("L_Amain")
    a.run(P.lanes())
    if cfg.get('hlpA', 1):
        a(f"s_cmp_lt_u32 s{sID}, 30")
        a("s_cbranch_scc1 L_Anh")
        a.begin_cond('hlp')
        a(f"s_lshl1_add_u32 s{sT0}, s{sXQ}, 3")
        a(f"s_and_b32 s{sT0}, s{sT0}, 7")
        a(f"s_cmp_ge_u32 s{sT0}, 6")
        a("s_cbranch_scc1 L_Anh")
        a(f"s_lshr_b32 s{sCNT}, s{sT0}, 1")
        a(f"s_mul_i32 s{sCNT}, s{sCNT}, {cfg.get('rkA', 5)}")
        a(f"s_add_u32 s{sCNT}, s{sCNT}, 15")
        a(f"s_mul_i32 s{sT1}, s{sXQ}, 6")
        a(f"s_add_u32 s{sT0}, s{sT0}, s{sT1}")
        a(f"s_lshl_b32 s{sT0}, s{sT0}, 7")
        a(f"s_mul_i32 s{sT1}, s{sW}, {512*3072}")
        a(f"s_add_u32 s{sU0}, s{sT0}, s{sT1}")
        for i in range(2):
            if i == 0:
                a(f"v_lshrrev_b32 v{vT}, 5, v0")
                a(f"v_lshl_add_u32 v{vT}, s{sDG}, 1, v{vT}")
                a(f"v_and_b32 v{vT2}, 31, v0")
            else:
                a(f"v_mov_b32 v{vT}, 4")
                a(f"v_lshl_add_u32 v{vT2}, s{sDG}, 4, v{vI}")
            a(f"v_add_u32 v{vT}, 1, v{vT}")
            a(f"v_lshl_add_u32 v{vT}, v{vT}, 4, s{sW}")
            a(f"v_mul_u32_u24 v{vT}, 205, v{vT}")
            a(f"v_lshrrev_b32 v{vT}, 10, v{vT}")
            a(f"v_add_u32 v{vT}, s{sCNT}, v{vT}")
            a(f"v_and_b32 v{vT}, 15, v{vT}")
            a(f"v_lshl_add_u32 v{vT}, v{vT}, 5, v{vT2}")
            a(f"v_mul_u32_u24 v{vT}, 3072, v{vT}")
            if i:
                a("s_mov_b64 exec, 0xffff")
            a(f"buffer_load_dword v{250+i}, v{vT}, {srd(S_W)}, s{sU0} offen")
        a("s_mov_b64 exec, -1")
        a.end_cond()
        a.label("L_Anh")
    for (s, n) in ((S_WS, WS_SIZE), (S_SSM, 2621440)):
        a(f"s_mov_b32 s{s+2}, {n}")
        a(f"s_mov_b32 s{s+3}, 0x20000")
    for j in range(2, 16):
        a(f"s_add_u32 s{sT1}, s{TK+j-1}, 1024")
        a(f"s_and_b32 s{TK+j}, s{sT1}, 0x3c00")
    a(f"s_mov_b64 {sp(S_WS)}, {sp(66)}")
    a(f"s_mov_b64 {sp(S_SSM)}, {sp(44)}")
    a.run(P.weight_dst(False))
    a.run(P.zflag_addr(sFJ, 128))
    a.run(P.conv_setup(NC))
    vHL, vRW, vRR, vUS, vEP, vX0 = 10, 44, 47, 48, 49, 50
    BL = 54
    g1set = [f"s_mul_i32 s{sOWN}, s{sFT}, {cfg.get('roA', 0)}", f"s_add_u32 s{sOWN}, s{sOWN}, s{sW}", f"s_and_b32 s{sOWN}, s{sOWN}, 3",
             f"s_lshl_b32 s{sCNT}, s{sDG}, 18", f"s_lshl_b32 s{sT1}, s{sW}, 14", f"s_add_u32 s{sCNT}, s{sCNT}, s{sT1}",
             f"s_add_u32 s{sCNT}, s{sCNT}, s{sSP}"]
    for i in range(4):
        g1set += [f"s_add_u32 s{sT0}, s{sOWN}, {i+1}",
                  f"s_and_b32 s{sT0}, s{sT0}, 3",
                  f"s_mul_i32 s{sT1}, s{sT0}, 12288",
                  f"s_add_u32 s{sT1}, s{sT1}, {L_RED + (i*4096 if i < 3 else 0)}",
                  f"v_add_u32 v{vRW+i}, s{sT1}, v1",
                  f"s_lshl_b32 s{sT0}, s{sT0}, 16",
                  f"s_add_u32 s{sT0}, s{sT0}, s{sCNT}",
                  f"v_add_u32 v{vHL+i}, s{sT0}, v1",
                  f"v_add_u32 v{vHL+4+i}, {20*65536}, v{vHL+i}"]
    g1set += [f"v_lshl_add_u32 v{vP0}, s{sW}, 5, v0",
              f"v_mul_u32_u24 v{vP0}, {FS1}, v{vP0}",
              f"v_add_u32 v{vP0}, {WS_F1}, v{vP0}",
              f"s_lshl_b32 s{sT0}, s{sFT}, 7",
              f"v_lshl_add_u32 v{vX0}, v{vH}, 3, s{sT0}",
              f"s_lshl2_add_u32 s{sT0}, s{sDG}, s{sOWN}",
              f"s_mul_i32 s{sFI}, s{sT0}, 24",
              f"s_add_u32 s{sFI}, s{sFI}, s{sFT}",
              f"s_mul_i32 s{sFI}, s{sFI}, {FSU}",
              f"s_add_u32 s{sFI}, s{sFI}, {WS_FU}",
              f"s_add_u32 s{sFI}, s{sFI}, s{sSP}",
              f"s_mul_i32 s{sT0}, s{sT0}, 48",
              f"s_lshl1_add_u32 s{sT0}, s{sFT}, s{sT0}",
              f"s_lshl_b32 s{sT0}, s{sT0}, 10",
              f"s_add_u32 s{sT0}, s{sT0}, {WS_U}",
              f"s_add_u32 s{sT0}, s{sT0}, s{sSP}",
              f"v_add_u32 v{vUS}, s{sT0}, v1",
              f"s_mov_b32 s{sU2}, 0xbdd2d3e8",
              f"s_mov_b32 s{sU3}, {20*48*1024}",
              f"v_mov_b32 v52, 0xc0135761"]
    a.run(g1set)
    a.run(P.conv_setup2(NC))
    a.run(P.epoch_load(vEP))
    for t in range(4):
        a(f"global_load_dwordx2 {vr(BL+2*t,2)}, v{vX0}, {sp(P_B1)} offset:{32*t}")
    a(f"s_cmp_ge_u32 s{sID}, 30")
    a("s_cbranch_scc1 L_Aspare")
    a.run(P.w_step())
    a.run(P.w_step())
    BI, RD, PD4 = 112, 144, 248
    bun = []
    for t in range(8):
        bun += [f"v_lshlrev_b32 v{BI+2*t}, 16, v{BL+t}", f"v_and_b32 v{BI+2*t+1}, 0xffff0000, v{BL+t}"]
    PA = cfg.get('pollA', 15)
    while P.nxt < 16:
        if P.nxt == 8:
            a.run(P.set_tag(vEP))
            a.run(bun)
        a.run([stamp(f'w{P.nxt}')])
        it = P.w_step()
        if P.nxt - 1 == PA:
            it.insert(9, P.poll_issue(vP0, 32, HW, PD4))
        a.run(it)
    while P.drn < PA:
        a.run(P.w_step())
    a.run([P.poll_check('f1', vP0, 32, HW, PD4), stamp('f1_ok')])
    BUFS = ([64 + 4*i for i in range(8)] + [128 + 4*i for i in range(4)] + [228 + 4*i for i in range(5)] + [208 + 4*i for i in range(3)])[:NB]
    KL = [BUFS[(128 + i) % NB] for i in range(NC)]
    XL = [BUFS[(128 + NC + i) % NB] for i in range(NC)]

    def h_load(n):
        i, j = divmod(n, 16)
        return f"buffer_load_dwordx4 {vr(BUFS[n % NB],4)}, v{vHL+i}, {srd(S_WS)}, s{TK+j} offen sc1"
    hn = 0
    HE = cfg.get('hearly', 8)
    left = 16 - P.drn
    while P.drn < 16:
        for _ in range(HE // left):
            a(h_load(hn)); hn += 1
        a.run(P.w_step())
    ACC = (96, 192)
    Z, G0, UO = ACC[1], 160, 220
    for r in range(2):
        mf, pos = [], {}
        for q in range(64 // GR):
            for t in range(4):
                for n in range(q * GR, (q + 1) * GR):
                    i, j = divmod(n, 16)
                    d = vr(ACC[i & 1] + 4 * t, 4)
                    pos.setdefault(n, len(mf))
                    c = d if j else ('0' if i < 3 else vr(BI + 4 * t, 4))
                    mf.append(f"v_mfma_f32_16x16x32_bf16 {d}, {ar(16*j+4*t,4)}, {vr(BUFS[(64*r + n) % NB],4)}, {c}")
        S = Sched(mf)
        for n in range(64):
            S.reserve(pos[n] - 1)
        k = 0
        while hn < 128:
            n = hn - 64 * r
            free = 4 * GR * ((n - NB) // GR + 1) if n >= NB else 0
            p = max(free, 4 * (n - NB + GR) + 1, 2 * k)
            if p > 255:
                break
            S.add('h', [h_load(hn)], p, p)
            hn += 1
            k += 1
        S.add('st', [stamp(f'g1first{r}')], 0, 0)
        lasth = p if r else 0
        for i in range(3):
            S.add('red', [(f"ds_write_b128 v{vRW+i}, {vr(ACC[i & 1]+4*t,4)} offset:{t*1024}", f'redw{r}{i}') for t in range(4)],
                  64 * (i + 1) + 1, 64 * (i + 1) + 13, pace=4 if i < 2 else 3)
        pR = 192 + cfg.get('pR', 15)
        S.add('red', [('wait', f'redw{r}2'), "s_barrier"], pR, pR + 1)
        S.add('red', [f"ds_read_b128 {vr(RD+4*k,4)}, v{vRR} offset:{k*1024}" for k in range(12)], pR + 2, pR + 16)
        S.add('add', [f"v_add_f32 v{RD+k}, v{RD+k}, v{RD+16+k}" for k in range(16)] +
                     [f"v_add_f32 v{RD+k}, v{RD+k}, v{RD+32+k}" for k in range(16)], pR + 17, 255)
        if r == 1:
            S.add('set', [f"v_subrev_u32 v{vRW+i}, {L_RED}, v{vRW+i}" for i in range(4)], 2, 30)
            pD = cfg.get('pD0', 40)
            S.add('fl', [('wait', 'ust0'), stamp('barD0'), P.flag(sFI), f"s_add_u32 s{sFI}, s{sFI}, {20*24*FSU}"], pD, pD + 1)
            S.add('fl', [P.poll_check('fk', vP1, 16, KW, PD4), stamp('fk_ok')], 150, 152)
            for i, x in enumerate(P.ssm_loads(NC, KL) + P.x_loads(NC, XL)):
                n = 64 + i
                p = max(4 * GR * ((n - NB) // GR + 1), 4 * (n - NB + GR) + 1)
                if i == NC:
                    S.add('h', P.x_off(NC), p - 3, p)
                S.add('h', [x], p, p)
        a.run(S.items())
        P.info[f'g1{r}'] = (S.over, S.under)
        a.run([stamp(f'g1mfma{r}')])
        side = []
        if r == 0:
            while hn < 64 + NB:
                side.append(h_load(hn)); hn += 1
            a.run(side)
        for t in range(8):
            a(f"v_pk_add_f32 {vr(Z+2*t,2)}, {vr(Z+2*t,2)}, {vr(RD+2*t,2)}")
        for t in range(8):
            a(f"v_pk_mul_f32 {vr(G0+2*t,2)}, {vr(Z+2*t,2)}, {vr(Z+2*t,2)}")
        for t in range(8):
            a(f"v_pk_fma_f32 {vr(G0+2*t,2)}, {vr(G0+2*t,2)}, {sp(sU2)}, v[52:53] op_sel_hi:[1,0,0]")
        for t in range(8):
            a(f"v_pk_mul_f32 {vr(G0+2*t,2)}, {vr(G0+2*t,2)}, {vr(Z+2*t,2)}")
        for t in range(16):
            a(f"v_exp_f32 v{G0+t}, v{G0+t}")
        for t in range(8):
            a(f"v_pk_add_f32 {vr(G0+2*t,2)}, {vr(G0+2*t,2)}, 1.0 op_sel_hi:[1,0]")
        for t in range(16):
            a(f"v_rcp_f32 v{G0+t}, v{G0+t}")
        for t in range(8):
            a(f"v_pk_mul_f32 {vr(G0+2*t,2)}, {vr(G0+2*t,2)}, {vr(Z+2*t,2)}")
        for t in range(8):
            a(f"v_cvt_pk_bf16_f32 v{UO+t}, v{G0+2*t}, v{G0+2*t+1}")
        for half in range(2):
            a(f"buffer_store_dwordx4 {vr(UO+4*half,4)}, v{vUS}, {srd(S_WS)}, {'0' if r == 0 else f's{sU3}'} offen offset:{1024*half} sc1", tok=f'ust{r}')
        if r == 0:
            a(P.poll_issue(vP1, 16, KW, PD4))
        a.run([stamp(f'ust{r}')])
    a.label("L_Ajoin")
    a.run(P.kfix(NC, KL) + P.x_writes(NC, XL))
    a.wait('xw')
    a("s_barrier")
    for c in range(3):
        a.run(P.c_read(1, c))
    S = P.conv_sched(NT, 3, 2)
    pD = cfg.get('pD1', 26)
    S.add('fl', [('wait', 'ust1'), stamp('barD1'), P.flag(sFI)], pD, pD + 1)
    Z2 = NC == 3 and cfg.get('z2', 1)
    P.conv_run(S, NT, Z2, P.flag(sFJ))
    if Z2:
        a(f"s_add_u32 s{sFJ}, s{sJ}, 128")
        a(f"s_mul_i32 s{sFJ}, s{sFJ}, {FSZ}")
        a(f"s_lshl2_add_u32 s{sFJ}, s{sW}, s{sFJ}")
        a(f"s_add_u32 s{sFJ}, s{sFJ}, {WS_FZ + 16}")
    a.wait('zst2' if NC == 3 else 'zst1')
    a(P.flag(sFJ))
    a(f"s_cmp_lg_u32 s{sJ}, 31")
    a("s_cbranch_scc1 L_Adone")
    a(f"v_lshl_add_u32 v{vP0}, s{sW}, 6, v0")
    a(f"v_mul_u32_u24 v{vP0}, {FSZ}, v{vP0}")
    a(f"v_add_u32 v{vP0}, {WS_FZ}, v{vP0}")
    a(P.poll_issue(vP0, 64, 4, PD4))
    st, P.stamps = P.stamps, False
    a.run([P.poll_check('ep', vP0, 64, 4, PD4)])
    P.stamps = st
    a("s_barrier")
    a(f"s_mov_b32 s{sT0}, {WS_EP}")
    a(P.flag(sT0))
    a.label("L_Adone")
    P.finish()
    a("s_endpgm")
    b = Asm()
    P.a, st, P.stamps = b, P.stamps, False
    b.label("L_Aspare")
    b(f"s_mul_i32 s{sT0}, s{sXQ}, 160")
    b(f"s_mul_i32 s{sT1}, s{sDG}, {16*NC}")
    b(f"s_add_u32 s{sT0}, s{sT0}, s{sT1}")
    b(f"s_add_u32 s{sT0}, s{sT0}, 64")
    b(f"v_lshrrev_b32 v{vT}, 3, v0")
    b(f"v_add_lshl_u32 v{vT}, s{sT0}, v{vT}, 12")
    b(f"v_and_b32 v{vT2}, 7, v0")
    b(f"v_lshl_add_u32 v{vT2}, s{sW}, 3, v{vT2}")
    b(f"v_lshl_add_u32 v{vT}, v{vT2}, 7, v{vT}")
    b("s_waitcnt vmcnt(0)")
    b.run(P.set_tag(vEP))
    for i in range(2 * NC):
        b(f"s_mov_b32 s{sT0}, {i*8*4096}")
        b(f"buffer_load_dword v{64+i}, v{vT}, {srd(S_SSM)}, s{sT0} offen")
    b.run(P.ssm_loads(NC, KL) + P.x_off(NC))
    b(P.poll_issue(vP1, 16, KW, PD4))
    b.run([P.poll_check('fs', vP1, 16, KW, PD4)])
    for i in range(2 * NC):
        b(f"s_mov_b32 s{sT0}, {WS_KV + i*8*4096}")
        b(f"buffer_load_dword v{vPD}, v{vT}, {srd(S_WS)}, s{sT0} offen sc1") if False else b.raw(f"    buffer_load_dword v{vPD}, v{vT}, {srd(S_WS)}, s{sT0} offen sc1")
    b.run(P.x_loads(NC, XL))
    b("s_waitcnt vmcnt(0) lgkmcnt(0)")
    b("s_branch L_Ajoin")
    a.out += b.out
    P.a, P.stamps = a, st
    return P


def prog_B(cfg):
    P = Prog('B', cfg)
    a, stamp = P.a, P.stamp
    a.smem_pending = set(KERNARG) | {'s96', 's97'}
    FS1, FSU, FSZ, FSK = cfg.get('fs1', 128), cfg.get('fsu', 64), cfg.get('fsz', 32), cfg.get('fsk', 16)
    sDT, sST = sA, sB
    KW, HW = cfg.get('kw', 1), cfg.get('hw', 1)
    NC = 3 if cfg.get('third', 'A') == 'B' else 2
    NT = 8*NC
    NMF = 136 if NC == 2 else 208
    a.label("L_B")
    if cfg.get('cpf', 1):
        a.run(P.code_prefetch("L_pcB", "L_Amain"))
    a.run(P.lanes())
    XR, GR = 160, 180
    vHW, vL32, vQ, vQ3, vG, vG3, vEP = 190, 191, 192, 193, 194, 195, 196
    a(f"s_lshr_b32 s{sT0}, s{sJ}, 1")
    a(f"s_lshl_b32 s{sT0}, s{sT0}, 5")
    a(f"s_and_b32 s{sT1}, s{sJ}, 1")
    a(f"s_lshl3_add_u32 s{sCNT}, s{sT1}, s{sT0}")
    a(f"s_lshl4_add_u32 s{sCNT}, s{sT2}, s{sCNT}")
    a(f"s_lshl1_add_u32 s{sCNT}, s{sT3}, s{sCNT}")
    a(f"v_lshrrev_b32 v{vHW}, 5, v0")
    a(f"v_and_b32 v{vL32}, 31, v0")
    a(f"v_add_u32 v{vQ}, s{sCNT}, v{vHW}")
    a(f"v_mul_u32_u24 v{vQ}, 1280, v{vQ}")
    a(f"v_add_u32 v{vQ}, 2560, v{vQ}")
    a(f"v_lshlrev_b32 v{vG}, 4, v{vL32}")
    a(f"v_lshlrev_b32 v{vG3}, 3, v{vL32}")
    a(f"v_add_u32 v{vQ3}, v{vQ}, v{vG3}")
    a(f"v_add_u32 v{vQ}, v{vQ}, v{vG}")
    vKV, vKH = 60, 61
    sKL = sFI
    a(f"s_lshl3_add_u32 s{sU0}, s{sW}, s{sT0}")
    a(f"s_mul_i32 s{sU0}, s{sU0}, 1280")
    a(f"s_mul_i32 s{sU1}, s{sT1}, 640")
    a(f"s_add_u32 s{sU0}, s{sU0}, s{sU1}")
    a(f"v_add_u32 v{vKV}, s{sU0}, v1")
    a(f"s_mul_i32 s{sU0}, s{sW}, {(-7*1280) & 0xffffffff}")
    a(f"s_sub_u32 s{sU0}, s{sU0}, {4*1280}")
    a(f"v_add_u32 v{vKH}, s{sU0}, v{vKV}")
    a(f"s_mul_i32 s{sKL}, s{sW}, {8*PK + 32}")
    for (s, n) in ((S_K, 2621440), (S_V, 2621440), (S_WS, WS_SIZE), (S_W, 6291456), (S_SSM, 2621440)):
        a(f"s_mov_b32 s{s+2}, {n}")
        a(f"s_mov_b32 s{s+3}, 0x20000")
    vCH, vS0 = 62, 63
    a(f"s_lshl2_add_u32 s{sU0}, s{sT1}, s{sW}")
    a(f"s_mul_i32 s{sU0}, s{sU0}, 80")
    a(f"v_add_u32 v{vCH}, s{sU0}, v{vI}")
    a(f"v_lshlrev_b32 v{vS0}, 3, v{vCH}")
    for e in range(2):
        o = 5120 * e - 2560
        a(f"global_load_dwordx4 {vr(XR+10*e,4)}, v{vQ}, {sp(P_Q)} offset:{o}")
        a(f"global_load_dwordx4 {vr(XR+10*e+4,4)}, v{vQ}, {sp(P_Q)} offset:{o+512}")
        a(f"global_load_dwordx2 {vr(XR+10*e+8,2)}, v{vQ3}, {sp(P_Q)} offset:{o+1024}")
        if e == 0:
            a(f"global_load_dwordx4 {vr(GR,4)}, v{vG}, {sp(P_GW)}")
            a(f"global_load_dwordx4 {vr(GR+4,4)}, v{vG}, {sp(P_GW)} offset:512")
            a(f"global_load_dwordx2 {vr(GR+8,2)}, v{vG3}, {sp(P_GW)} offset:1024")
    a.run([stamp('start')])
    for (s, p) in ((S_K, 38), (S_V, 40), (S_WS, 66), (S_W, 56), (S_SSM, 44)):
        a(f"s_mov_b64 {sp(s)}, {sp(p)}")
    a.run(P.epoch_load(vEP))

    def kv_dma(which, i):
        if which == 'h':
            return [f"s_mul_i32 s{sU0}, s{sW}, {PK}", f"s_add_u32 m0, s{sU0}, {L_KI}", "s_mov_b32 exec_hi, 0xff",
                    f"buffer_load_dwordx4 v{vKH}, {srd(S_K)}, 0 offen lds", "s_mov_b32 exec_hi, -1"]
        base = L_KI + (4 + i) * PK + (32 if i >= 4 else 0) if which == 'k' else L_VI + i * PK
        return [f"s_add_u32 m0, s{sKL}, {base}", f"s_mov_b32 s{sU0}, {i*1280}", "s_mov_b32 exec_hi, 0xff",
                (f"buffer_load_dwordx4 v{vKV}, {srd(S_K if which == 'k' else S_V)}, s{sU0} offen lds", 'kvdma'), "s_mov_b32 exec_hi, -1"]

    def kv_batch(lst):
        it = []
        for (wh, i) in lst:
            x = kv_dma(wh, i)
            if it:
                it.pop()
                x.remove("s_mov_b32 exec_hi, 0xff")
            it += x
        return it
    kvq = [('h', 0)] + [('k', i) for i in range(8)] + [('v', i) for i in range(8)]
    a(f"s_and_b32 s{sDT}, s{sID}, 3")
    a(f"s_lshr_b32 s{sT0}, s{sID}, 2")
    a(f"s_lshl3_add_u32 s{sST}, s{sXQ}, s{sT0}")
    vLW, vLW3, vA1, vA2, vHS, vGS, vKVA, vKVS = 44, 45, 46, 47, 48, 49, 50, 51
    a(f"v_lshl_add_u32 v{vT}, s{sW}, 1, v{vHW}")
    a(f"s_lshl_b32 s{sT0}, s{sJ}, 4")
    a(f"v_add_lshl_u32 v{vGS}, s{sT0}, v{vT}, 2")
    a(f"v_add_u32 v{vGS}, {WS_G}, v{vGS}")
    a(f"v_mul_u32_u24 v{vT}, {PL}, v{vT}")
    a(f"v_add_u32 v{vT}, {L_LN}, v{vT}")
    a(f"v_add_u32 v{vLW}, v{vT}, v{vG}")
    a(f"v_add_u32 v{vLW3}, v{vT}, v{vG3}")
    a(f"v_mul_u32_u24 v{vT}, {PL}, v{vR}")
    a(f"v_mul_u32_u24 v{vT2}, 320, v{vH}")
    a(f"s_mul_i32 s{sT0}, s{sT3}, {8*PL}")
    a(f"s_add_u32 s{sT0}, s{sT0}, {L_LN}")
    a(f"v_add3_u32 v{vT}, v{vT}, v{vT2}, s{sT0}")
    a(f"v_lshl_add_u32 v{vT}, v{vC}, 4, v{vT}")
    a(f"v_lshl_add_u32 v{vA1}, s{sT2}, 7, v{vT}")
    a(f"v_lshl_add_u32 v{vA2}, s{sT2}, 3, v{vT}")
    a(f"s_lshl1_add_u32 s{sT0}, s{sJ}, s{sT3}")
    a(f"s_lshl_b32 s{sT0}, s{sT0}, 8")
    a(f"s_mul_i32 s{sT1}, s{sT2}, {20*65536}")
    a(f"s_add_u32 s{sT0}, s{sT0}, s{sT1}")
    a(f"v_mul_u32_u24 v{vHS}, {5*65536}, v{vH}")
    a(f"v_lshl_add_u32 v{vHS}, v{vI}, 4, v{vHS}")
    a(f"v_add_u32 v{vHS}, s{sT0}, v{vHS}")
    a(f"v_mul_u32_u24 v{vT}, {8*PK + 32}, v{vH}")
    a(f"v_mul_u32_u24 v{vT2}, {PK}, v{vR}")
    a(f"s_mul_i32 s{sT0}, s{sW}, 160")
    a(f"s_add_u32 s{sT0}, s{sT0}, {L_KI}")
    a(f"v_add3_u32 v{vT}, v{vT}, v{vT2}, s{sT0}")
    a(f"v_lshl_add_u32 v{vKVA}, v{vC}, 3, v{vT}")
    a(f"v_lshlrev_b32 v{vKVS}, 12, v{vCH}")
    a(f"v_lshl_add_u32 v{vKVS}, v{vH}, 4, v{vKVS}")
    a(f"s_lshr_b32 s{sT0}, s{sJ}, 1")
    a(f"s_lshl_b32 s{sT1}, s{sT0}, 6")
    a(f"s_add_u32 s{sT1}, s{sT1}, {WS_KV}")
    a(f"v_add_u32 v{vKVS}, s{sT1}, v{vKVS}")
    a(f"s_and_b32 s{sT1}, s{sJ}, 1")
    a(f"s_lshl_b32 s{sT1}, s{sT1}, 6")
    a(f"s_add_u32 s{sFJ}, s{sT0}, s{sT1}")
    a(f"s_mul_i32 s{sFJ}, s{sFJ}, {FSK}")
    a(f"s_lshl2_add_u32 s{sFJ}, s{sW}, s{sFJ}")
    a(f"s_add_u32 s{sFJ}, s{sFJ}, {WS_FK}")
    a(f"s_mul_i32 s{sU3}, s{sJ}, {FS1}")
    a(f"s_lshl2_add_u32 s{sU3}, s{sW}, s{sU3}")
    a(f"s_add_u32 s{sU3}, s{sU3}, {WS_F1}")
    for k in range(1, 5):
        a(f"s_mov_b32 s{79+k}, {k*65536}")
    nq = cfg.get('kvq0', 6)
    a.run(kv_batch(kvq[:nq])); kvq = kvq[nq:]
    a.run([stamp('iss2')])

    def ln(e):
        X = XR + 10 * e
        S1, S2, S3, TT, vRS, vNM, XF = 64 + 32*e, 65 + 32*e, 58 + e, 66 + 32*e, 70 + 32*e, 92 + 32*e, 72 + 32*e
        it = []
        for i in range(10):
            c = lambda r: "0" if i == 0 else f"v{r}"
            it.append(f"v_dot2_f32_bf16 v{S1}, v{X+i}, s{sU2}, {c(S1)}")
            it.append(f"v_dot2_f32_bf16 v{S2}, v{X+i}, v{X+i}, {c(S2)}")
        for i in range(10):
            it.append(f"v_dot2_f32_bf16 v{S3}, v{X+i}, v{GR+i}, {'0' if i == 0 else f'v{S3}'}")
        unp = []
        for i in range(10):
            unp.append(f"v_lshlrev_b32 v{XF+2*i}, 16, v{X+i}")
            unp.append(f"v_and_b32 v{XF+2*i+1}, 0xffff0000, v{X+i}")
        it.append(unp.pop(0))
        for m in ("quad_perm:[1,0,3,2]", "quad_perm:[2,3,0,1]", "row_half_mirror", "row_mirror"):
            for s in (S1, S2, S3):
                it.append(f"v_add_f32_dpp v{s}, v{s}, v{s} {m} row_mask:0xf bank_mask:0xf")
        for k, s in enumerate((S1, S2, S3)):
            it.append(f"v_mov_b32 v{TT+k}, v{s}")
        for k, s in enumerate((S1, S2, S3)):
            it.append(f"v_permlane16_swap_b32 v{s}, v{TT+k}")
        for k, s in enumerate((S1, S2, S3)):
            it.append(f"v_add_f32 v{s}, v{s}, v{TT+k}")
        inv = 0x3ACCCCCD
        it += [f"v_mul_f32 v{S1}, {hex(inv)}, v{S1}",
               f"v_mul_f32 v{S2}, {hex(inv)}, v{S2}",
               f"v_mul_f32 v{S3}, 0xbfb8aa3b, v{S3}",
               f"v_fma_f32 v{S2}, -v{S1}, v{S1}, v{S2}",
               f"v_exp_f32 v{S3}, v{S3}",
               f"v_max_f32 v{S2}, 0, v{S2}",
               f"v_add_f32 v{S2}, 0x3727c5ac, v{S2}",
               f"v_rsq_f32 v{vRS}, v{S2}",
               f"v_add_f32 v{S3}, 1.0, v{S3}",
               f"v_rcp_f32 v{S3}, v{S3}",
               f"v_mul_f32_e64 v{vNM}, -v{S1}, v{vRS}"]
        it += unp
        for i in range(10):
            it.append(f"v_pk_fma_f32 {vr(XF+2*i,2)}, {vr(XF+2*i,2)}, {vr(vRS,2)}, {vr(vNM,2)} op_sel_hi:[1,0,0]")
        for i in range(10):
            it.append(f"v_cvt_pk_bf16_f32 v{X+i}, v{XF+2*i}, v{XF+2*i+1}")
            if i == 3:
                it.append(f"ds_write_b128 v{vLW}, {vr(X,4)} offset:{8*PL*e}")
            if i == 7:
                it.append(f"ds_write_b128 v{vLW}, {vr(X+4,4)} offset:{8*PL*e + 512}")
        it.append((f"ds_write_b64 v{vLW3}, {vr(X+8,2)} offset:{8*PL*e + 1024}", 'lnw'))
        return it
    a(f"s_mov_b32 s{sU2}, 0x3f803f80")
    a.run(ln(0))
    nq = cfg.get('kvq1', 4)
    a.run(kv_batch(kvq[:nq])); kvq = kvq[nq:]
    a.run(ln(1))
    a.wait('lnw')
    a("s_barrier")
    a.run([stamp('barL')])
    HB = 64
    for m in range(5):
        va, off = (vA1, 64 * (m >> 1) + 8 * (m & 1)) if m < 4 else (vA2, 256)
        for e2 in range(2):
            a(f"ds_read_b64_tr_b16 {vr(HB+4*m+2*e2,2)}, v{va} offset:{off + e2*4*PL}")
    a(f"s_mov_b32 exec_lo, 1")
    a(f"s_mov_b32 exec_hi, 1")
    for e in range(2):
        a(f"buffer_store_dword v{58+e}, v{vGS}, {srd(S_WS)}, 0 offen offset:{32*e} sc1")
    a("s_mov_b64 exec, -1")
    for m in range(5):
        a(f"buffer_store_dwordx4 {vr(HB+4*m,4)}, v{vHS}, {srd(S_WS)}, {'0' if m == 0 else f's{79+m}'} offen sc1", tok='hst')
    a.run(P.set_tag(vEP))
    vQO, vQO2, vGA, vX1, vQO1 = 36, 41, 253, 250, 15
    QR, vGG, vB2 = 44, 16, 17

    def bigset():
        a(f"s_bfe_u32 s{sT0}, s{sST}, 0x10001")
        a(f"s_mul_i32 s{sT0}, s{sT0}, {cfg.get('rkB', 0)}")
        a(f"s_add_u32 s{sT0}, s{sT0}, s{sDT}")
        a(f"s_and_b32 s{sT0}, s{sT0}, 3")
        a(f"s_mul_i32 s{TK}, s{sT0}, 3072")
        a(f"s_and_b32 s{sSP}, s{sST}, {cfg.get('swB', 1)}")
        for j in range(1, 12):
            a(f"s_add_u32 s{sT0}, s{TK+j-1}, 1024")
            a(f"s_cmp_lt_u32 s{sT0}, {12*1024}")
            a(f"s_cselect_b32 s{TK+j}, s{sT0}, 0")
        a(f"s_mul_i32 s{sT0}, s{sW}, {384*4096}")
        a(f"s_lshl_b32 s{sT1}, s{sST}, 7")
        a(f"s_add_u32 s{sT0}, s{sT0}, s{sT1}")
        a.run(P.weight_src(4096, sT0) + P.weight_dst(True))
        a.run(P.conv_setup(NC))
        a.run(P.conv_setup2(NC))
        a(f"s_lshl2_add_u32 s{sT0}, s{sST}, s{sW}")
        a(f"v_lshl_add_u32 v{vT}, s{sT0}, 4, v{vI}")
        a(f"v_lshlrev_b32 v{vX1}, 1, v{vT}")
        a(f"v_mul_u32_u24 v{vT}, 1280, v{vT}")
        a(f"s_mul_i32 s{sT0}, s{sDT}, 320")
        a(f"v_add_u32 v{vT}, s{sT0}, v{vT}")
        a(f"v_lshl_add_u32 v{vQO2}, v{vH}, 4, v{vT}")
        a(f"s_lshl_b32 s{sT0}, s{sSP}, 6")
        a(f"v_add_u32 v{vQO}, s{sT0}, v{vQO2}")
        a(f"v_subrev_u32 v{vQO1}, s{sT0}, v{vQO2}")
        a(f"s_lshl1_add_u32 s{sT0}, s{sST}, s{sT2}")
        a(f"s_lshl3_add_u32 s{sT0}, s{sT0}, s{sT3}")
        a(f"s_lshl_b32 s{sT0}, s{sT0}, 4")
        a(f"s_add_u32 s{sT0}, s{sT0}, {WS_G}")
        a(f"v_lshl_add_u32 v{vT}, v{vR}, 5, s{sT0}")
        a(f"v_lshl_add_u32 v{vGA}, v{vC}, 2, v{vT}")

    SP = cfg.get('setp', 0)
    if SP == 0:
        bigset()
    nq = cfg.get('kvq2', 7)
    a.run(kv_batch(kvq[:nq])); kvq = kvq[nq:]
    a.wait('hst')
    a.run([P.flag_wg(sU3, 'f1') if HW == 1 else P.flag(sU3), stamp('barH')])
    if kvq:
        a.run(kv_batch(kvq))
    CF, KL = 148, (228, 232, 236)
    for u in range(5):
        a(f"global_load_dwordx2 {vr(CF+2*u,2)}, v{vS0}, {sp(P_SH)} offset:{128*u}")
    if SP == 1:
        bigset()
    a.run(P.ssm_loads(NC, KL))

    def helper():
        HR = cfg.get('hlpB', 6)
        if HR:
            a(f"s_add_u32 s{sT0}, s{sST}, 4")
            a(f"s_and_b32 s{sT0}, s{sT0}, 7")
            a(f"s_mul_i32 s{sT1}, s{sT0}, {HR}")
            a(f"s_cmp_eq_u32 s{sT0}, 7")
            a(f"s_cselect_b32 s{sU2}, {OOB}, 0")
            a(f"s_lshl2_add_u32 s{sT0}, s{sW}, s{sDT}")
            a(f"s_mul_i32 s{sT0}, s{sT0}, 96")
            a(f"s_add_u32 s{sT0}, s{sT0}, s{sT1}")
            a(f"s_add_u32 s{sT0}, s{sT0}, {96 - 7*HR}")
            a(f"v_add_lshl_u32 v{vT}, s{sT0}, v0, 12")
            a(f"s_lshl_b32 s{sT0}, s{sXQ}, 10")
            a(f"s_add_u32 s{sT0}, s{sT0}, 384")
            a(f"s_add_u32 s{sU2}, s{sU2}, s{sT0}")
            a(f"s_mov_b64 exec, {hex((1 << HR) - 1)}")
            a(f"buffer_load_dword v251, v{vT}, {srd(S_W)}, s{sU2} offen")
            a("s_mov_b64 exec, -1")
    WP = cfg.get('wBpre', 1)
    if WP:
        helper()
    if WP >= 2:
        a.run(P.w_step())

    a.wait('kvdma')
    a("s_barrier")
    a.run([stamp('barK')])
    KR, KO = 64, 160

    def kv_reads(u):
        it = [f"ds_read_b64_tr_b16 {vr(KR+10*u+2*j,2)}, v{vKVA} offset:{32*u + 4*j*PK + (32 if j == 2 else 0)}" for j in range(3)]
        it += [f"ds_read_b64_tr_b16 {vr(KR+10*u+6+2*j,2)}, v{vKVA} offset:{32*u + 4*j*PK + (L_VI-L_KI)}" for j in range(2)]
        return it

    def kv_compute(u):
        it = []
        k = KR + 10 * u
        c10, c32 = CF + 2 * u, CF + 2 * u + 1
        SH, AC, VF, OUT = 116, 124, 132, KO + 4 * u
        for n in range(5):
            it.append(f"v_alignbit_b32 v{SH+n}, v{k+n+1}, v{k+n}, 16")
        pr = lambda e: (k + (e + 1) // 2, k + (e + 3) // 2) if e & 1 else (SH + e // 2, SH + e // 2 + 1)
        for e in range(8):
            it.append(f"v_dot2_f32_bf16 v{AC+e}, v{pr(e)[0]}, v{c32}, 0")
        for e in range(8):
            it.append(f"v_dot2_f32_bf16 v{AC+e}, v{pr(e)[1]}, v{c10}, v{AC+e}")
        for n in range(4):
            it.append(f"v_lshlrev_b32 v{VF+2*n}, 16, v{k+6+n}")
            it.append(f"v_and_b32 v{VF+2*n+1}, 0xffff0000, v{k+6+n}")
        for n in range(4):
            it.append(f"v_pk_mul_f32 {vr(AC+2*n,2)}, {vr(AC+2*n,2)}, {vr(VF+2*n,2)}")
        for n in range(4):
            it.append(f"v_cvt_pk_bf16_f32 v{OUT+n}, v{AC+2*n}, v{AC+2*n+1}")
        it.append((f"buffer_store_dwordx4 {vr(OUT,4)}, v{vKVS}, {srd(S_WS)}, {'0' if u == 0 else f's{79+u}'} offen sc1", 'kvst'))
        return it
    a.run(kv_reads(0) + kv_reads(1))
    if WP & 1:
        a.run(P.w_step())
    for u in range(10):
        a(f"v_alignbit_b32 v{CF+u}, v{CF+u}, v{CF+u}, 16")
    for u in range(5):
        a.run(merge(kv_compute(u), kv_reads(u + 2) if u < 3 else []))
    a.run([stamp('kv_done')])
    if not cfg.get('wBpre', 1):
        helper()
    for _ in range(cfg.get('wB0', 1)):
        a.run(P.w_step())
    a.run(P.kfix(NC, KL) + P.x_off(NC))
    a.wait('kvst')
    a.run([P.flag_wg(sFJ, 'fk') if KW == 1 else P.flag(sFJ), stamp('barV')] + P.zflag_addr(sFJ, 0))
    a(f"global_load_ushort v{vB2}, v{vX1}, {sp(P_B2)}")
    while P.nxt < cfg.get('pollB', 7):
        a.run(P.w_step())
    a(P.poll_issue(vP1, 16, KW, 204))
    for _ in range(cfg.get('pollgapB', 0)):
        a.run(P.w_step())
    a.run([P.poll_check('fk', vP1, 16, KW, 204), stamp('fk_ok')])
    XL = (192, 196, 200)
    a.run(P.x_loads(NC, XL))
    qa = lambda p: f"v{(vQO, vQO1, vQO, vQO1, vQO2)[p]}"
    qld = [f"global_load_dwordx4 {vr(QR+4*p,4)}, {qa(p)}, {sp(P_Q)} offset:{64*p}" for p in range(5)]
    for _ in range(cfg.get('xgapB', 1)):
        a.run(P.w_step())
    a.run(P.x_writes(NC, XL))
    a.wait('xw')
    a("s_barrier")
    a.run([stamp('barC')])

    for c in range(3):
        a.run(P.c_read(1, c))
    while P.nxt < NR:
        a.run(P.w_step())
    S = P.conv_sched(NT, 3, cfg.get('ccap', 2.3), cfg.get('sg0', 100))
    cS, cE = cfg.get('cS', 0), cfg.get('cE', NMF - 36)
    nst = 12 - P.nxt
    per = (cE - cS) / (nst + 1)
    for r in range(nst):
        p0 = cS + r * per
        it = P.w_step()
        for k, x in enumerate(it[:9]):
            S.add('wd', [x], int(p0 + k * per / 14), int(p0 + (k + 1) * per / 14))
        p1 = p0 + per
        S.add('w', it[9:11], int(p1 - per / 5), int(p1) - 1)
        S.add('w', it[11:12], int(p1), int(p1))
        for k, x in enumerate(it[12:]):
            S.add('w', [x], int(p1 + k * per / 4), int(p1 + k * per / 4))
    S.add('wd', P.w_step(), int(cE - per), int(cE) - 1, pace=per / 11)
    tail = []
    while P.drn < 12:
        tail += P.w_step()
    S.add('wd', tail, cE, None, pace=(NMF - cE) / len(tail))
    vUL = 10
    uset = [f"s_mul_i32 s{sT0}, s{sDT}, 120",
            f"s_mul_i32 s{sT1}, s{sW}, 6",
            f"s_add_u32 s{sT0}, s{sT0}, s{sT1}",
            f"v_mul_u32_u24 v{vT}, 43, v0",
            f"v_lshrrev_b32 v{vT}, 8, v{vT}",
            f"v_mul_u32_u24 v{vT}, 18, v{vT}",
            f"v_add3_u32 v{vP0}, s{sT0}, v0, v{vT}",
            f"v_mul_u32_u24 v{vP0}, {FSU}, v{vP0}",
            f"v_add_u32 v{vP0}, {WS_FU}, v{vP0}",
            f"s_mul_i32 s{sT0}, s{sDT}, {5*48}",
            f"s_lshl1_add_u32 s{sT0}, s{sT1}, s{sT0}",
            f"s_lshl_b32 s{sT0}, s{sT0}, 10",
            f"s_add_u32 s{sT0}, s{sT0}, {WS_U}",
            f"v_add_u32 v{vUL+4}, s{sT0}, v1",
            f"s_mul_i32 s{sT0}, s{sSP}, {96*1024}",
            f"v_add_u32 v{vUL}, s{sT0}, v{vUL+4}",
            f"s_sub_u32 s{sT0}, {96*1024}, s{sT0}",
            f"v_add_u32 v{vUL+2}, s{sT0}, v{vUL+4}",
            f"v_add_u32 v{vUL+1}, {48*1024}, v{vUL}",
            f"v_add_u32 v{vUL+3}, {48*1024}, v{vUL+2}",
            f"v_add_u32 v{vUL+4}, {192*1024}, v{vUL+4}"]
    S.add('set', uset, 40, NMF - 14)
    for k, x in enumerate(qld):
        S.add('w', [x], cE + 5 * k, cE + 5 * k)
    pU = NMF - cfg.get('pU0', 4)
    S.add('set', [P.poll_issue(vP0, 30)], pU, pU)
    P.conv_run(S, NT, False)

    NB2, GR2, UE = cfg.get('nb2', 16), cfg.get('grp2', 2), cfg.get('uearly', 8)
    UBUF = ([ar(192 + 4*i, 4) for i in range(16)] + [vr(92 + 4*i, 4) for i in range(4)])[:NB2]
    AC2, OWN, RD2, RD4 = (108, 120), 132, 172, 208
    GQ, ZL, ZRg, ZU = 228, 64, 76, 88
    vZG, vZLW, vZT, vOG, vR2R, vR2W, vUM = 20, 21, 22, 28, 33, 25, 220
    vR2S, vR2X, PDZ, vP2 = 23, 30, 226, 225
    opol = cfg.get('opol', '')
    g2set = [f"v_add_u32 v{vUM+m}, {20*48*1024}, v{vUL+m}" for m in range(5)]
    g2set += [f"v_add_u32 v{vP0}, {20*24*FSU}, v{vP0}",
              f"v_lshrrev_b32 v{vT}, 3, v0",
              f"v_lshl_add_u32 v{vT}, s{sW}, 3, v{vT}",
              f"v_and_b32 v{vT2}, 7, v0",
              f"v_lshlrev_b32 v{vT2}, 4, v{vT2}",
              f"v_lshl_add_u32 v{vZG}, v{vT}, 12, v{vT2}",
              f"v_mul_u32_u24 v{vT}, {PZ}, v{vT}",
              f"v_add_u32 v{vT}, v{vT}, v{vT2}",
              f"v_add_u32 v{vZLW}, {L_ZI}, v{vT}",
              f"s_mul_i32 s{sT0}, s{sDT}, {160*4096}",
              f"s_lshl_b32 s{sT1}, s{sST}, 7",
              f"s_add_u32 s{sT0}, s{sT0}, s{sT1}",
              f"s_add_u32 s{sT0}, s{sT0}, {WS_Z}",
              f"s_lshl_b32 s{sT1}, s{sSP}, 17",
              f"s_add_u32 s80, s{sT0}, s{sT1}",
              f"s_sub_u32 s81, s{sT0}, s{sT1}",
              f"s_add_u32 s81, s81, {32*4096}",
              f"s_add_u32 s82, s80, {64*4096}",
              f"s_add_u32 s83, s81, {64*4096}",
              f"s_add_u32 s{sX0}, s{sT0}, {128*4096}",
              f"v_lshl_add_u32 v{vT}, v{vH}, 3, v{vR}",
              f"v_mul_u32_u24 v{vT}, {PZ}, v{vT}",
              f"s_lshl_b32 s{sT0}, s{sW}, 5",
              f"s_add_u32 s{sT0}, s{sT0}, {L_ZI}",
              f"v_lshl_add_u32 v{vZT}, v{vC}, 3, s{sT0}",
              f"v_add_u32 v{vZT}, v{vZT}, v{vT}"]
    for jn in range(1, 4):
        g2set += [f"s_xor_b32 s{sT0}, s{sW}, {jn}",
                  f"s_mul_i32 s{sT0}, s{sT0}, 3072",
                  f"s_add_u32 s{sT0}, s{sT0}, {(jn-1)*1024}",
                  f"v_add_u32 v{vR2W+jn-1}, s{sT0}, v1",
                  f"v_add_u32 v{vR2X+jn-1}, {L_RED}, v{vR2W+jn-1}"]
    g2set += [f"s_mul_i32 s{sT0}, s{sW}, 3072",
              f"v_add_u32 v{vR2R}, s{sT0}, v1",
              f"v_add_u32 v{vR2S}, {L_RED}, v{vR2R}",
              f"s_lshl3_add_u32 s{sT0}, s{sDT}, s{sW}",
              f"s_lshl_b32 s{sT0}, s{sT0}, 2",
              f"v_lshl_add_u32 v{vP1}, v{vR}, 4, v{vC}",
              f"v_add_u32 v{vP1}, s{sT0}, v{vP1}",
              f"v_mul_u32_u24 v{vP1}, {FSZ}, v{vP1}",
              f"s_and_b32 s{sT1}, s{sST}, 1",
              f"s_lshl_b32 s{sT1}, s{sT1}, 3",
              f"s_add_u32 s{sT1}, s{sT1}, {WS_FZ}",
              f"v_add_u32 v{vP1}, s{sT1}, v{vP1}",
              f"s_lshl2_add_u32 s{sT0}, s{sDT}, s{sW}",
              f"v_and_b32 v{vT}, 7, v0",
              f"v_lshl_add_u32 v{vP2}, s{sT0}, 3, v{vT}",
              f"v_mul_u32_u24 v{vP2}, {FSZ}, v{vP2}"]
    Z2 = NC == 2 and cfg.get('z2', 1)
    if Z2:
        g2set += [f"s_and_b32 s{sT1}, s{sST}, 3", f"s_lshl_b32 s{sT1}, s{sT1}, 2", f"s_add_u32 s{sT1}, s{sT1}, {WS_FZ + 128*FSZ + 16}",
                  f"v_add_u32 v{vP2}, s{sT1}, v{vP2}"]
    else:
        g2set += [f"v_add_u32 v{vP2}, s{sT1}, v{vP2}", f"v_cmp_lt_u32 vcc, 7, v0", "s_nop 1", f"v_cndmask_b32 v{vP1}, v{vP1}, v{vP2}, vcc"]
    nz0 = 16 if NC == 3 else 8
    nz1 = 16 if NC == 2 and not Z2 else 8
    zso = (80, 81, 82, 83, sX0)
    ptile = ((0, 1), (2, 3), (5, 6), (7, 8), (4, 9))

    def u_load(n):
        m, j = divmod(n, 12)
        return f"buffer_load_dwordx4 {UBUF[n % NB2]}, v{vUL+m if m < 5 else vUM+m-5}, {srd(S_WS)}, s{TK+j} offen sc1"

    def mf2(n, jn):
        m, j = divmod(n, 12)
        d = vr(OWN + 4 * m, 4) if jn == 0 else vr(AC2[m & 1] + 4 * (jn - 1), 4)
        return f"v_mfma_f32_16x16x32_bf16 {d}, {UBUF[n % NB2]}, {ar(16*j+4*jn,4)}, {'0' if j == 0 else d}"
    rd = lambda m, s: [f"ds_read_b128 {vr(RD2+12*s+4*k,4)}, v{vR2R if m < 5 else vR2S} offset:{(m % 5)*12288 + k*1024}" for k in range(3)]
    ad = lambda m, s: [f"v_add_f32 v{OWN+4*m+r}, v{OWN+4*m+r}, v{RD2+12*s+4*k+r}" for k in range(3) for r in range(4)]
    wr = lambda m: [(f"ds_write_b128 v{(vR2W if m < 5 else vR2X)+jn-1}, {vr(AC2[m & 1]+4*(jn-1),4)} offset:{(m % 5)*12288}", f'r2w{m}') for jn in range(1, 4)]
    z_ld = lambda ps: [f"buffer_load_dwordx4 {vr(ZL+4*i,4)}, v{vZG}, {srd(S_WS)}, s{zso[p]} offen sc1" for i, p in enumerate(ps)]
    z_wr = lambda ps: [f"ds_write_b128 v{vZLW}, {vr(ZL+4*i,4)} offset:{p*32*PZ}" for i, p in enumerate(ps)]
    z_rd = lambda p: [f"ds_read_b64_tr_b16 {vr(ZRg+4*(p % 3)+2*hh,2)}, v{vZT} offset:{(32*p + 4*hh)*PZ}" for hh in range(2)]

    def gq(p):
        it = []
        pp = GQ + 8 * (p % 3)
        for k in range(4):
            it += [f"v_lshlrev_b32 v{pp+2*k}, 16, v{QR+4*p+k}", f"v_and_b32 v{pp+2*k+1}, 0xffff0000, v{QR+4*p+k}",
                   f"v_mul_f32 v{pp+2*k}, v{pp+2*k}, v{vGG}", f"v_mul_f32 v{pp+2*k+1}, v{pp+2*k+1}, v{vGG}"]
        return it
    sc = lambda m: [f"v_fma_f32 v{OWN+4*m+k}, v{OWN+4*m+k}, v{vOG}, v{vB2}" for k in range(4)]

    def fin(p, hh):
        it = []
        o = OWN + 4 * ptile[p][hh]
        for k in range(2):
            zu, z, g = ZU + 2 * k, ZRg + 4 * (p % 3) + 2 * hh + k, GQ + 8 * (p % 3) + 4 * hh + 2 * k
            it += [f"v_lshlrev_b32 v{zu}, 16, v{z}", f"v_and_b32 v{zu+1}, 0xffff0000, v{z}"]
            if (p, hh) == (4, 1):
                it += [f"v_fma_f32 v{g}, v{g}, v{zu}, v{vB2}", f"v_fma_f32 v{g+1}, v{g+1}, v{zu+1}, v{vB2}"]
            else:
                it += [f"v_fmac_f32 v{o+2*k}, v{g}, v{zu}", f"v_fmac_f32 v{o+2*k+1}, v{g+1}, v{zu+1}",
                       f"v_cvt_pk_bf16_f32 v{QR+4*p+2*hh+k}, v{o+2*k}, v{o+2*k+1}"]
        return it
    ost = lambda p: [f"global_store_dwordx4 {qa(p)}, {vr(QR+4*p,4)}, {sp(P_OUT)} offset:{64*p} {opol}"]
    if cfg.get('dly'):
        a(f"s_sleep {cfg['dly']}")
    a.run([P.poll_check('fu0', vP0, 30), stamp('fu0_ok')])
    for n in range(UE):
        a(u_load(n))
    a(f"buffer_load_dword v{vGG}, v{vGA}, {srd(S_WS)}, 0 offen sc1")
    a.run(g2set)
    mf, pos = [], {}
    for q in range(120 // GR2):
        ns = range(q * GR2, (q + 1) * GR2)
        for jn in ((1, 2, 3, 0) if ns[0] < 108 else (1, 2, 3)):
            for n in ns:
                pos.setdefault(n, len(mf))
                mf.append(mf2(n, jn))
    pown = len(mf)
    mf += [mf2(n, 0) for n in range(108, 120)]
    S = Sched(mf)
    for n in range(120):
        S.reserve(pos[n] - 1)
    UC = cfg.get('pUC', 210)
    k = 0
    for n in range(UE, 120):
        free = 4 * GR2 * ((n - NB2) // GR2 + 1) if n >= NB2 else 0
        p = max(free, 4 * (n - NB2 + GR2) + 1, 2 * k)
        if n >= 60:
            p = max(p, min(UC + 1 + 2 * (n - 60), 4 * n - 2 if UC < 236 else max(239, 4 * (n - UE))))
        if n == 60:
            S.add('u', [P.poll_check('fu1', vP0, 30), stamp('fu1_ok')], p, p)
            pZ0 = p
        S.add('u', [u_load(n)], p, p)
        k += 1
    lastu = p
    S.add('st', [stamp('g2first')], 0, 0)
    S.add('st', [stamp('g2mid')], 240, 240)
    pF = cfg.get('pF', 6)
    S.add('z', [('wait', 'zst2' if NC == 3 else 'zst1'), stamp('barF'), P.flag(sFJ)], pF, pF + 1)
    zB = (0, 1) if NC == 2 else (0, 1, 4)
    zA = (2, 3, 4) if NC == 2 and not Z2 else (2, 3)
    UP = UC - cfg.get('pUP', 44)
    S.add('z', [P.poll_issue(vP0, 30), P.poll_issue(vP1, nz0, 2, PDZ)], UP, UP + 1)
    S.add('z', [P.poll_check('fz0', vP1, nz0, 2, PDZ), stamp('fz0_ok')] + z_ld(zB) + [f"v_add_u32 v{vP1}, {128*FSZ}, v{vP1}"], pZ0 + 3, pZ0 + 14, pace=2)
    ZP1, ZC1 = cfg.get('zp1', [340, 380])
    S.add('z', [P.poll_issue(vP1, nz1, 2, PDZ)], ZP1, ZP1)
    S.add('z', [P.poll_check('fz1', vP1, nz1, 2, PDZ), stamp('fz1_ok')] + z_ld(zA), ZC1, ZC1 + 8, pace=2)
    if Z2:
        ZP2, ZC2 = cfg.get('zp2', [400, 434])
        S.add('z2', [P.poll_issue(vP2, 8)], ZP2, ZP2)
        S.add('z2', [P.poll_check('fz2', vP2, 8), stamp('fz2_ok'),
                    f"buffer_load_dwordx4 {vr(ZL+8,4)}, v{vZG}, {srd(S_WS)}, s{zso[4]} offen sc1"], ZC2, ZC2 + 1)
    S.add('fin', [f"v_lshlrev_b32 v{vB2}, 16, v{vB2}", f"v_sub_f32 v{vOG}, 1.0, v{vGG}", f"v_mul_f32 v{vB2}, v{vB2}, v{vOG}"] + gq(0) + gq(1) + gq(2), 44, 200)
    OS = cfg.get('osat', 450)
    bars = cfg.get('bars', [5, 7, 8])
    zlate = cfg.get('zlate', 0)
    flat = lambda l: [x for y in l for x in y]
    done = 0
    tailz = []
    for m in range(9):
        p = 48 * (m + 1)
        if m == 5:
            S.add('red', z_wr(zB), p - 14, p - 1, pace=4)
        if m == 8 and not zlate:
            S.add('red', z_wr(zA), p - 14, p - 1, pace=4)
        S.add('red', wr(m), p, p + 8, pace=3)
        if m in bars:
            S.add('red', [('wait', f'r2w{m}'), "s_barrier"], p + 11, p + 12)
            ms = list(range(done, m + 1))
            done = m + 1
            dl = None if m == 8 else 48 * (bars[bars.index(m) + 1] + 1) + 10
            it = []
            if m == 5:
                it += z_rd(0) + z_rd(1)
            if m == 8 and not zlate:
                it += z_rd(2) + z_rd(3) + ([] if Z2 else z_rd(4))
            it += flat(rd(t, t % 3) for t in ms[:3])
            if m == 8 and not zlate:
                it += ([] if Z2 else fin(4, 0) + fin(4, 1)) + fin(2, 0)
            if m == 5 and ms[0] > 1:
                it += fin(0, 0) + fin(0, 1)
            for i, t in enumerate(ms):
                it += ad(t, t % 3) + (rd(ms[i + 3], t % 3) if i + 3 < len(ms) else []) + sc(t)
            if m == 5:
                it += (fin(0, 0) + fin(0, 1) if ms[0] <= 1 else []) + fin(1, 0) + fin(1, 1) + gq(3) + gq(4)
                dl = min(dl, OS - 1)
                S.add('os', ost(0) + ost(1), OS, OS + 4, pace=3)
            if m == 8:
                last = fin(2, 1) + ost(2) + fin(3, 0) + fin(3, 1) + ost(3)
                if zlate:
                    tailz = fin(2, 0) + last + fin(4, 0) + fin(4, 1)
                else:
                    it += last
            S.add('fin', it, p + 13, dl)
    if zlate:
        S.add('red', z_wr(zA), pown - 8, pown, pace=3)
    S.add('red', wr(9), pown + 1, pown + 6, pace=2)
    d2 = cfg.get('d2', '')
    post = []
    if 'z' in d2:
        a.run([x[0] for x in S.th['z'][:3]])
        post += [x[0] for x in S.th['z'][3:] + S.th.get('z2', [])]; S.th['z'] = []; S.th['z2'] = []
        S.th['u'] = [x for x in S.th['u'] if not callable(x[0])]
    for nm in ('red', 'fin', 'os'):
        if nm[0] in d2:
            post += [x[0] for x in S.th[nm]]; S.th[nm] = []
    its = S.items(keep=('fin',))
    if 'u' in d2:
        its = [x for x in its if not txt_of(x).startswith('buffer_load_dwordx4 a[')]
    if 'b' in d2:
        its = [x for x in its if txt_of(x) != 's_barrier']
    if 'w' in d2:
        its = [x for x in its if not (txt_of(x).startswith('ds_write_b128') and x[1:] != ('r2w9',)) and not (txt_of(x) == 'wait' and x[1].startswith('r2w'))]
    a.run(its)
    a.run([stamp('g2x')] + post)
    P.info['g2'] = (S.over, S.under, len(S.left.get('fin', [])))
    a.run([stamp('g2mfma')])
    left = S.left.get('fin', [])
    if Z2:
        assert not zlate
        a.run(left)
        left = []
        a(f"ds_write_b128 v{vZLW}, {vr(ZL+8,4)} offset:{4*32*PZ}", tok='zw2')
        a.wait('zw2')
        tailz = fin(4, 0) + fin(4, 1)
    a.wait('r2w9')
    a("s_barrier")
    if Z2:
        a.run(z_rd(4))
    for k in range(3):
        a(f"ds_read_b128 {vr(RD4+4*k,4)}, v{vR2S} offset:{4*12288 + k*1024}")
    if zlate:
        a.run(z_rd(2) + z_rd(3) + z_rd(4))
    a.run(left + tailz)
    for k in range(3):
        for hh in range(2):
            a(f"v_pk_add_f32 {vr(OWN+36+2*hh,2)}, {vr(OWN+36+2*hh,2)}, {vr(RD4+4*k+2*hh,2)}")
    g = GQ + 8 + 4
    for hh in range(2):
        a(f"v_pk_fma_f32 {vr(g+2*hh,2)}, {vr(OWN+36+2*hh,2)}, {vr(vOG,2)}, {vr(g+2*hh,2)} op_sel_hi:[1,0,1]")
    for hh in range(2):
        a(f"v_cvt_pk_bf16_f32 v{QR+18+hh}, v{g+2*hh}, v{g+2*hh+1}")
    a.run(ost(4))
    P.finish()
    a("s_endpgm")
    return P


def gen(cfg):
    h = Asm()
    h("s_load_dwordx16 s[36:51], s[0:1], 0")
    h("s_load_dwordx16 s[52:67], s[0:1], 56")
    if cfg.get('stamps'):
        h("s_memrealtime s[96:97]")
    h("s_cmp_ge_u32 s2, 256")
    h("s_cbranch_scc1 L_end")
    h("v_lshrrev_b32 v1, 6, v0")
    h("v_and_b32 v0, 63, v0")
    h(f"v_readfirstlane_b32 s{sW}, v1")
    rb = cfg.get('rolebit', 0)
    h(f"s_lshr_b32 s{sID}, s2, 3")
    if rb == 0:
        h(f"s_bfe_u32 s{sXQ}, s2, 0x20001")
    elif rb == 2:
        h(f"s_and_b32 s{sXQ}, s2, 3")
    else:
        h(f"s_bfe_u32 s{sXQ}, s2, 0x10002")
        h(f"s_and_b32 s{sT0}, s2, 1")
        h(f"s_lshl1_add_u32 s{sXQ}, s{sXQ}, s{sT0}")
    h(f"s_lshl_b32 s{sJ}, s{sXQ}, 5")
    h(f"s_add_u32 s{sJ}, s{sJ}, s{sID}")
    lay = cfg.get('lay', 'B')
    if lay == 'A':
        h(f"s_bitcmp1_b32 s2, {rb}")
        h("s_cbranch_scc1 L_B")
    else:
        h(f"s_bitcmp0_b32 s2, {rb}")
        h("s_cbranch_scc1 L_A")
    A, B = prog_A(cfg), prog_B(cfg)
    ref = open(f"cdna_kernels/{NAME}.s.ref").read().split('\n')
    head = [l for l in ref if l.startswith(';') and '@launch' not in l and 'Override' not in l and 'grid=ceil' not in l]
    txt = '\n'.join(head) + f"\n; @launch grid=(256,1,1) block=(256,1,1) lds={L_END}\n"
    txt += f""".amdgcn_target "amdgcn-amd-amdhsa--gfx950"
.text
.globl {NAME}_kernel
.p2align 8
.type {NAME}_kernel,@function
{NAME}_kernel:
"""
    if lay == 'A':
        txt += h.text() + '\n'.join(A.a.out[:A.split]) + '\n' + B.a.text() + ".p2align 7\n" + '\n'.join(A.a.out[A.split:]) + "\nL_end:\n    s_endpgm\n"
    else:
        txt += h.text() + B.a.text() + ".p2align 7\nL_A:\n" + '\n'.join(A.a.out[:A.split-1] + A.a.out[A.split:]) + "\nL_end:\n    s_endpgm\n"
    txt += f""".section .rodata,"a"
.p2align 6
.amdhsa_kernel {NAME}_kernel
  .amdhsa_next_free_vgpr 512
  .amdhsa_next_free_sgpr 102
  .amdhsa_accum_offset 256
  .amdhsa_group_segment_fixed_size 0
  .amdhsa_kernarg_size 120
  .amdhsa_user_sgpr_count 2
  .amdhsa_user_sgpr_kernarg_segment_ptr 1
  .amdhsa_system_sgpr_workgroup_id_x 1
  .amdhsa_float_denorm_mode_32 3
.end_amdhsa_kernel
"""
    return txt, dict(n_ins=(A.a.n_ins, B.a.n_ins), n_nop=(A.a.n_nop, B.a.n_nop), stamps=B.names, stampsA=A.names,
                     rolebit=rb, sched=(A.info, B.info))


if __name__ == "__main__":
    import json
    out = sys.argv[1]
    cfg = json.loads(sys.argv[2]) if len(sys.argv) > 2 else {}
    txt, info = gen(cfg)
    open(out, 'w').write(txt)
    print(out, info)


def dmap(T, i):
    dt, m = divmod(T, 5)
    r, g = dt >> 2, dt & 3
    P, hh = (2 * r + (m >> 1), m & 1) if m < 4 else (4, r)
    return 160 * g + 32 * P + 8 * (i >> 2) + 4 * hh + (i & 3)
```

```python
import sys
from asmlib import Asm, merge, Sched

NAME = "gated_mix__ssm_conv_h3__mixer_token_mlp__prompt"

WS_H, WS_U, WS_KV, WS_Z, WS_G = 0x0, 0x280000, 0x480000, 0x700000, 0x980000
WS_F1, WS_FK, WS_FU, WS_FZ, WS_EP, WS_DBG = 0x990000, 0x998000, 0x9A0000, 0x9B0000, 0x9C0000, 0x9D0000
WS_SIZE = 0xA10000
OOB = 0x7F000000
TAGC = 0x9E3779B9

NR = 4
L_RED = 65536
PL = 1344
L_LN = 32768
PK = 704
L_KI = L_RED
L_VI = L_RED + 25600
L_ZSTG = L_RED + 4 * 12288
L_CK = L_RED + 61440
KP, KPAD = 4224, 96
L_CX = L_CK + 3 * KP
XP, XPAD = 4608, 512
L_CAR = L_CX + 3 * XP
L_END = L_CAR + 1600
L_ZI = L_CK
PZ = 144

S_WS, S_K, S_V, S_W, S_SSM = 4, 8, 12, 16, 24
P_Q, P_SH, P_D, P_B1, P_B2, P_GW, P_OUT = 36, 42, 46, 54, 58, 60, 62
TK = 68
sW, sXQ, sID, sA, sB, sJ, sSP, sTAG, sRING, sC0, sFI, sFJ = range(84, 96)
sT0, sT1, sT2, sT3 = 32, 33, 34, 35
sU0, sU1, sU2, sU3 = 20, 21, 22, 23
sX0, sX1, sX2 = 31, 48, 49
sC2 = 39
sCNT = 3
vH, vI, vR, vC, vT, vT2 = 37, 38, 39, 40, 42, 43
VW, VT = 2, 6
vPD = 18
vCA, vCB, vCA2, vCB2 = 20, 21, 22, 23
vCRW, vCRW2, vCRR, vCRR2, vZW, vZR, vZS, vZS2, vCW = 25, 26, 27, 28, 29, 30, 31, 32, 33
vP0, vP1, vTAG = 35, 24, 34
CA, CB, CACC, CY, NSL = 64, 128, 192, 208, 4
CH, CR, ZO = 232, 238, 208
vZF = 252


def srd(n):
    return f"s[{n}:{n+3}]"


def sp(n):
    return f"s[{n}:{n+1}]"


def vr(n, k):
    return f"v[{n}:{n+k-1}]"


def ar(n, k):
    return f"a[{n}:{n+k-1}]"


def txt_of(x):
    return x if isinstance(x, str) else (x[0] if isinstance(x, tuple) else '')


class Prog:
    def __init__(self, role, cfg):
        self.a = Asm()
        self.role = role
        self.cfg = cfg
        self.stamps = cfg.get('stamps', False)
        self.names = []
        self.npoll = 0
        self.nxt = self.drn = 0
        self.nstep = 16 if role == 'A' else 12
        self.info = {}

    def stamp(self, name):
        def f(a):
            st = self.stamps
            amp = self.cfg.get('amp')
            if amp and amp == [self.role, name]:
                a("s_memrealtime s[98:99]")
            if not st or (st != 1 and name not in st and name not in ('start', 'end')) or (st == 1 and name[0] == 'w' and name != 'w8'):
                return
            k = len(self.names)
            a("s_memtime s[98:99]")
            a("s_memrealtime s[100:101]")
            a(f"v_writelane_b32 v255, s98, {k}")
            a(f"v_writelane_b32 v255, s100, {32+k}")
            self.names.append(name)
        f.cost = 0
        return f

    def weight_src(self, pitch, sbase):
        it = [f"v_lshrrev_b32 v{vT}, 3, v0",
              f"v_and_b32 v{vT2}, 6, v{vT}",
              f"v_xor_b32 v{vT2}, v{vT2}, v0",
              f"v_and_b32 v{vT2}, 7, v{vT2}",
              f"v_mul_u32_u24 v{vT}, {pitch}, v{vT}",
              f"v_lshl_add_u32 v{vT}, v{vT2}, 4, v{vT}",
              f"v_add_u32 v{VW}, s{sbase}, v{vT}"]
        for i in range(1, 4):
            it.append(f"v_add_u32 v{VW+i}, {8*pitch-1024}, v{VW+i-1}")
        return it

    def weight_dst(self, xorw):
        it = [f"v_lshrrev_b32 v{vT}, 2, v0",
              f"v_lshlrev_b32 v{vT}, 7, v{vT}",
              f"v_lshl_add_u32 v{vT}, v{vC}, 3, v{vT}",
              f"v_bfe_u32 v{vT2}, v0, 3, 2"]
        if xorw:
            it.append(f"v_xor_b32 v{vT2}, s{sW}, v{vT2}")
        it += [f"v_lshl_add_u32 v{vT}, v{vT2}, 5, v{vT}",
               f"v_add_u32 v{VT}, s{sRING}, v{vT}"]
        for t in range(1, 4):
            it.append(f"v_xor_b32 v{VT+t}, {t*32}, v{VT}")
        return it

    def w_issue(self, j):
        it = [f"s_mul_i32 s{sU1}, s{TK+j}, {96 if self.role == 'A' else 128}",
              f"s_add_u32 m0, s{sRING}, {(j % NR)*16384}"]
        if j >= NR:
            it.append(('wait', f'wr{j-NR}'))
        for i in range(4):
            it.append((f"buffer_load_dwordx4 v{VW+i}, {srd(S_W)}, s{sU1} offen offset:{i*1024} lds", f'wd{j}'))
        return it

    def w_drain(self, j):
        it = [('wait', f'wd{j}')]
        for t in range(4):
            for e2 in range(2):
                it.append((f"ds_read_b64_tr_b16 {ar(16*j+4*t+2*e2,2)}, v{VT+t} offset:{(j % NR)*16384 + e2*2048}", f'wr{j}'))
        return it

    def w_step(self):
        it = []
        if self.nxt >= NR or self.nxt == self.nstep:
            it += self.w_drain(self.drn); self.drn += 1
        if self.nxt < self.nstep:
            it += self.w_issue(self.nxt); self.nxt += 1
        return it

    def flag(self, soff):
        return f"s_mov_b64 exec, 1\nbuffer_store_dword v{vTAG}, v0, {srd(S_WS)}, s{soff} offen sc1\ns_mov_b64 exec, -1"

    def flag_wg(self, soff, name):
        def f(a):
            a("s_barrier")
            a(f"s_cmp_lg_u32 s{sW}, 0")
            a(f"s_cbranch_scc1 L_nf_{name}")
            a.begin_cond(name)
            a(self.flag(soff))
            a.end_cond()
            a.label(f"L_nf_{name}")
        return f

    def set_tag(self, v):
        return [f"v_readfirstlane_b32 s{sTAG}, v{v}", f"s_add_u32 s{sTAG}, s{sTAG}, {hex(TAGC)}", f"v_mov_b32 v{vTAG}, s{sTAG}"]

    @staticmethod
    def setexec(n):
        if n == 32:
            return "s_mov_b32 exec_hi, 0"
        if n > 32:
            return f"s_mov_b32 exec_hi, {hex((1 << (n-32)) - 1)}"
        return f"s_mov_b64 exec, {hex((1 << n) - 1)}"

    def poll_load(self, va, wd, vd):
        if wd == 1:
            return f"buffer_load_dword v{vd}, v{va}, {srd(S_WS)}, 0 offen sc1"
        return f"buffer_load_dwordx{wd} {vr(vd,wd)}, v{va}, {srd(S_WS)}, 0 offen sc1"

    def poll_issue(self, va, n=64, wd=1, vd=vPD):
        it = [self.setexec(n)] if n < 64 else []
        it.append(self.poll_load(va, wd, vd))
        if n < 64:
            it.append("s_mov_b64 exec, -1")
        return "\n".join(it)

    def poll_check(self, name, va, n=64, wd=1, vd=vPD):
        name = self.role + name

        def cmp(a):
            if wd == 1:
                a(f"v_cmp_ne_u32 vcc, s{sTAG}, v{vd}")
                return
            a(f"v_xor_b32 v{vd}, s{sTAG}, v{vd}")
            for k in range(1, wd):
                a(f"v_bitop3_b32 v{vd}, v{vd}, v{vd+k}, v{vTAG} bitop3:0xf6")
            a(f"v_cmp_ne_u32 vcc, 0, v{vd}")

        def f(a):
            if n < 64:
                a(self.setexec(n))
            cmp(a)
            a(f"s_mov_b32 s{sCNT}, 0")
            a(f"s_branch L_pk_{name}" if name[1:] in self.cfg.get('nopoll', []) else f"s_cbranch_vccz L_pk_{name}")
            a.label(f"L_pl_{name}")
            a.begin_cond('poll' + name)
            a("s_mov_b64 exec, vcc")
            if self.cfg.get('psleep'):
                a(f"s_sleep {self.cfg['psleep']}")
            a(self.poll_load(va, wd, vd))
            a(f"s_add_u32 s{sCNT}, s{sCNT}, 1")
            a(f"s_cmp_ge_u32 s{sCNT}, 0x40000")
            a(f"s_cbranch_scc1 L_pk_{name}")
            cmp(a)
            a("s_nop 0")
            a(f"s_cbranch_vccnz L_pl_{name}")
            a.end_cond()
            a.label(f"L_pk_{name}")
            a("s_mov_b64 exec, -1")
            if self.stamps:
                a(f"v_writelane_b32 v254, s{sCNT}, {self.npoll}")
                self.npoll += 1
        f.cost = 5
        return f

    def zflag_addr(self, dst, first):
        fsz = self.cfg.get('fsz', 32)
        return [f"s_add_u32 s{dst}, s{sJ}, {first}", f"s_mul_i32 s{dst}, s{dst}, {fsz}",
                f"s_lshl1_add_u32 s{sT0}, s{sT3}, s{sT2}", f"s_lshl2_add_u32 s{dst}, s{sT0}, s{dst}",
                f"s_add_u32 s{dst}, s{dst}, {WS_FZ}"]

    def lanes(self):
        return ["v_lshlrev_b32 v1, 4, v0",
                f"v_lshrrev_b32 v{vH}, 4, v0", f"v_and_b32 v{vI}, 15, v0",
                f"v_bfe_u32 v{vR}, v0, 2, 2", f"v_and_b32 v{vC}, 3, v0",
                f"s_lshr_b32 s{sT2}, s{sW}, 1", f"s_and_b32 s{sT3}, s{sW}, 1",
                f"s_lshl_b32 s{sRING}, s{sW}, 12"]

    def code_prefetch(self, beg, end):
        r = self.role
        return [f"s_getpc_b64 {sp(sU2)}", f"L_pc{r}:",
                f"s_lshl2_add_u32 s{sT2}, s{sID}, s{sW}",
                f"v_lshl_add_u32 v{vT}, s{sT2}, 1, v0",
                f"v_lshlrev_b32 v{vT}, 7, v{vT}",
                f"v_add_u32 v{vT}, {beg}-L_pc{r}, v{vT}",
                f"v_min_u32 v{vT}, {end}-L_pc{r}, v{vT}",
                "s_mov_b64 exec, 3",
                f"global_load_dword v253, v{vT}, {sp(sU2)}",
                "s_mov_b64 exec, -1"]

    def epoch_load(self, v):
        return [f"s_mov_b32 s{sT0}, {WS_EP}", "s_mov_b64 exec, 1",
                f"buffer_load_dword v{v}, v0, {srd(S_WS)}, s{sT0} offen sc1", "s_mov_b64 exec, -1"]

    def conv_setup(self, nch):
        ZR = 68
        it = [f"s_mul_i32 s{sC2}, s{sXQ}, 160",
              f"s_lshl1_add_u32 s{sC0}, s{sID}, s{sC2}",
              f"s_add_u32 s{sC0}, s{sC0}, {64 if self.role == 'A' else 0}",
              f"s_add_u32 s{sC2}, s{sC2}, s{sID}",
              f"s_add_u32 s{sC2}, s{sC2}, 128",
              f"s_lshl_b32 s{sT0}, s{sC0}, 1",
              f"s_load_dword s28, {sp(P_D)}, s{sT0}"]
        if nch == 3:
            it += [f"s_lshr_b32 s{sT1}, s{sC2}, 1", f"s_lshl_b32 s29, s{sT1}, 2", f"s_load_dword s30, {sp(P_D)}, s29"]
        it += [f"s_lshl_b32 s{sX0}, s{sC0}, 12",
               f"s_lshl_b32 s{sT1}, s{sW}, 10",
               f"s_add_u32 s{sX0}, s{sX0}, s{sT1}",
               f"s_add_u32 s{sX1}, s{sX0}, 4096",
               f"s_lshl_b32 s{sX2}, s{sC2}, 12",
               f"s_add_u32 s{sX2}, s{sX2}, s{sT1}",
               f"s_add_u32 s{sT1}, s{sT1}, {L_CK + KPAD}",
               f"v_add_u32 v{vCW}, s{sT1}, v1"]
        it += [f"v_mov_b32 v{ZR+i}, 0" for i in range(4)]
        it += [f"s_min_u32 s{sT0}, s{sW}, 2",
               f"s_mul_i32 s{sT1}, s{sT0}, {XP}",
               f"s_add_u32 s{sT1}, s{sT1}, {L_CX}",
               f"v_add_u32 v{vT}, s{sT1}, v1",
               f"s_mul_i32 s{sT1}, s{sT0}, {KP}",
               f"s_add_u32 s{sT1}, s{sT1}, {L_CK}",
               f"v_add_u32 v{vT2}, s{sT1}, v1",
               f"s_mul_i32 s{sT1}, s{sT0}, {33*16}",
               f"s_add_u32 s{sT1}, s{sT1}, {L_CAR}",
               f"v_mov_b32 v{vPD}, s{sT1}",
               "s_mov_b32 exec_hi, 0",
               f"ds_write_b128 v{vT}, {vr(ZR,4)}",
               f"s_mov_b64 exec, {hex((1 << (KPAD//16)) - 1)}",
               f"ds_write_b128 v{vT2}, {vr(ZR,4)}",
               "s_mov_b64 exec, 1",
               f"ds_write_b128 v{vPD}, {vr(ZR,4)}",
               "s_mov_b64 exec, -1"]
        it += [f"v_lshl_add_u32 v{vT}, v{vH}, 3, v{vR}",
               f"v_lshlrev_b32 v{vT2}, 2, v{vC}",
               f"v_sub_u32 v{vT2}, v{vT2}, v{vT}",
               f"v_lshlrev_b32 v{vT2}, 3, v{vT2}",
               f"s_mul_i32 s{sT0}, s{sT2}, {KP}",
               f"s_add_u32 s{sT0}, s{sT0}, {L_CK + KPAD + 152 - 32}",
               f"v_add_u32 v{vCA}, s{sT0}, v{vT2}"]
        if nch == 3:
            it.append(f"v_add_u32 v{vCA2}, {L_CK + 2*KP + KPAD + 152 - 32}, v{vT2}")
        it += [f"v_add_lshl_u32 v{vT}, v{vT}, v{vC}, 3",
               f"s_mul_i32 s{sT0}, s{sT2}, {XP}",
               f"s_lshl_b32 s{sT1}, s{sT3}, 7",
               f"s_add_u32 s{sT0}, s{sT0}, s{sT1}",
               f"s_add_u32 s{sT0}, s{sT0}, {L_CX + XPAD - 152}",
               f"v_add_u32 v{vCB}, s{sT0}, v{vT}"]
        if nch == 3:
            it += [f"s_lshl_b32 s{sT0}, s{sW}, 7",
                   f"s_add_u32 s{sT0}, s{sT0}, {L_CX + 2*XP + XPAD - 152 - 256}",
                   f"v_add_u32 v{vCB2}, s{sT0}, v{vT}"]
        return it

    def conv_setup2(self, nch):
        it = [f"s_mul_i32 s{sT0}, s{sT2}, {33*16}",
              f"s_lshl4_add_u32 s{sT0}, s{sT3}, s{sT0}",
              f"s_add_u32 s{sT0}, s{sT0}, {L_CAR}",
              f"v_lshlrev_b32 v{vT}, 2, v{vC}",
              f"v_lshl_add_u32 v{vT2}, v{vR}, 5, v{vT}",
              f"v_add_u32 v{vCRR}, s{sT0}, v{vT2}",
              f"s_add_u32 s{sT0}, s{sT0}, {(16 - 48*32) & 0xffffffff}",
              f"v_lshl_add_u32 v{vCRW}, v0, 5, s{sT0}"]
        if nch == 3:
            it += [f"s_lshl_b32 s{sT0}, s{sW}, 4",
                   f"s_add_u32 s{sT0}, s{sT0}, {L_CAR + 2*33*16}",
                   f"v_lshl_add_u32 v{vT2}, v{vR}, 6, v{vT}",
                   f"v_add_u32 v{vCRR2}, s{sT0}, v{vT2}",
                   f"s_add_u32 s{sT0}, s{sT0}, {(16 - 56*64) & 0xffffffff}",
                   f"v_lshl_add_u32 v{vCRW2}, v0, 6, s{sT0}"]
        it += [f"s_mul_i32 s{sT0}, s{sW}, 3072",
               f"s_add_u32 s{sT0}, s{sT0}, {L_ZSTG}",
               f"v_lshl_add_u32 v{vZW}, v0, 1, s{sT0}",
               f"v_add_u32 v{vZR}, s{sT0}, v1",
               f"v_lshl_add_u32 v{vT}, v{vC}, 1, s{sT0}",
               f"v_lshl_add_u32 v{vZF}, v{vR}, 7, v{vT}",
               f"v_lshrrev_b32 v{vT}, 3, v0",
               f"v_and_b32 v{vT2}, 7, v0",
               f"v_lshlrev_b32 v{vT2}, 4, v{vT2}",
               f"v_lshl_add_u32 v{vZS}, v{vT}, 8, v{vT2}",
               f"s_add_u32 s{sT0}, s{sC0}, s{sT2}",
               f"s_lshl_b32 s{sT0}, s{sT0}, 12",
               f"s_lshl_b32 s{sT1}, s{sT3}, 7",
               f"s_add_u32 s{sT0}, s{sT0}, s{sT1}",
               f"s_add_u32 s{sT0}, s{sT0}, {WS_Z}",
               f"v_add_u32 v{vZS}, s{sT0}, v{vZS}"]
        if nch == 3:
            it += [f"v_lshl_add_u32 v{vZS2}, v{vT}, 9, v{vT2}",
                   f"s_lshl_b32 s{sT0}, s{sC2}, 12",
                   f"s_lshl_b32 s{sT1}, s{sW}, 7",
                   f"s_add_u32 s{sT0}, s{sT0}, s{sT1}",
                   f"s_add_u32 s{sT0}, s{sT0}, {WS_Z}",
                   f"v_add_u32 v{vZS2}, s{sT0}, v{vZS2}"]
        if nch == 3:
            it += [f"s_and_b32 s{sT0}, s{sC2}, 1",
                   f"s_lshl_b32 s{sT0}, s{sT0}, 4",
                   f"s_lshr_b32 s30, s30, s{sT0}",
                   f"s_lshl_b32 s30, s30, 16",
                   f"s_cmp_eq_u32 s{sW}, 0\ns_cselect_b32 s30, s30, 0"]
        fsk = self.cfg.get('fsk', 16)
        it += [f"s_cmp_eq_u32 s{sW}, 0\ns_cselect_b32 s28, s28, 0",
               f"s_and_b32 s29, s28, 0xffff0000", f"s_lshl_b32 s28, s28, 16",
               f"s_lshr_b32 s{sT0}, s{sXQ}, 1",
               f"s_lshl2_add_u32 s{sT0}, s{sT0}, s{sW}",
               f"v_lshl_add_u32 v{vP1}, s{sT0}, 4, v0",
               f"v_mul_u32_u24 v{vP1}, {fsk}, v{vP1}",
               f"v_add_u32 v{vP1}, {WS_FK}, v{vP1}"]
        return it

    def ssm_loads(self, nch, KL):
        return [f"buffer_load_dwordx4 {vr(KL[cs],4)}, v1, {srd(S_SSM)}, s{so} offen" for cs, so in enumerate((sX0, sX1, sX2)[:nch])]

    def kfix(self, nch, KL):
        it = ["s_mov_b64 exec, 1"]
        for cs in range(nch):
            it += [f"v_lshlrev_b32 v{vT}, 16, v{KL[cs]}",
                   f"v_and_b32 v{vT2}, 0xffff0000, v{KL[cs]}",
                   f"v_add_f32 v{vT}, s{28+cs}, v{vT}",
                   f"v_cvt_pk_bf16_f32 v{KL[cs]}, v{vT}, v{vT2}"]
        it.append("s_mov_b64 exec, -1")
        it += [f"ds_write_b128 v{vCW}, {vr(KL[cs],4)} offset:{cs*KP}" for cs in range(nch)]
        return it

    def x_off(self, nch):
        return [f"s_add_u32 s{s}, s{s}, {WS_KV}" for s in (sX0, sX1, sX2)[:nch]]

    def x_loads(self, nch, XL):
        return [f"buffer_load_dwordx4 {vr(XL[cs],4)}, v1, {srd(S_WS)}, s{so} offen sc1" for cs, so in enumerate((sX0, sX1, sX2)[:nch])]

    def x_writes(self, nch, XL):
        return [(f"ds_write_b128 v{vCW}, {vr(XL[cs],4)} offset:{L_CX + XPAD - L_CK - KPAD + cs*XP}", 'xw') for cs in range(nch)]

    tiles = [(1, m, m) for m in range(16)] + [(2, n, 2 * n + 1) for n in range(8)]

    @staticmethod
    def cb_slot(part, n):
        return CB + 4 * (n if part == 1 else 15 - n)

    def c_read(self, part, c):
        va, vb = (vCA, vCB) if part == 1 else (vCA2, vCB2)
        return ([f"ds_read_b64_tr_b16 {vr(CA+4*c+2*e2,2)}, v{va} offset:{256*c + 32*(1-e2)}" for e2 in range(2)] +
                [f"ds_read_b64_tr_b16 {vr(self.cb_slot(part,c)+2*e2,2)}, v{vb} offset:{256*c + 32*e2}" for e2 in range(2)])

    def tile_epi(self, g):
        part, k, m = self.tiles[g]
        d = CACC + 4 * (g % NSL)
        p = CACC + 4 * ((g - 1) % NSL)
        dp = "wave_shr:1 row_mask:0xf bank_mask:0xf bound_ctrl:0"
        it = []
        for j, dst in ((3, d + 2), (2, d + 1), (1, CY + g)):
            it.append(f"v_add_f32_dpp v{dst}, v{d+j}, v{d+j-1} {dp}")
            if k:
                it.append(f"v_mov_b32_dpp v{d+j}, v{p+j} wave_shl:1 row_mask:0xf bank_mask:0xf")
        if g in (15, 23):
            va, mk = (vCRW, '0xffff0000') if g == 15 else (vCRW2, '0xff000000')
            it.append((f"s_mov_b32 exec_lo, 0\ns_mov_b32 exec_hi, {mk}\nds_write_b128 v{va}, {vr(d,4)}\ns_mov_b64 exec, -1", f'carw{part}'))
        return it

    def stage(self, g):
        it = []
        for t in (g, g + 1):
            j = t % 4
            it.append(f"v_mov_b32 v{CH+t//4}, v{CY+t}" if j == 0 else
                      f"v_mov_b32_dpp v{CH+t//4}, v{CY+t} row_shr:{4*j} row_mask:0x1 bank_mask:{hex(1 << j)}")
        return it + [f"v_cvt_pk_bf16_f32 v{CY+g}, v{CY+g}, v{CY+g+1}",
                     f"ds_write_b16 v{vZW}, v{CY+g} offset:{128*g}", f"ds_write_b16_d16_hi v{vZW}, v{CY+g} offset:{128*(g+1)}"]

    def conv_sched(self, nt, cpre, cap, sg0=0):
        mf, first = [], []
        for g, (part, k, m) in enumerate(self.tiles[:nt]):
            d = vr(CACC + 4 * (g % NSL), 4)
            first.append(len(mf))
            mf += [f"v_mfma_f32_16x16x32_bf16 {d}, {vr(CA+4*c,4)}, {vr(self.cb_slot(part,m-c),4)}, {'0' if c == 0 else d}"
                   for c in range(m + 1)]
        first += [len(mf)] * 8
        S = Sched(mf, cap)
        LEAD = self.cfg.get('lead', 7)
        for g in range(1, nt):
            S.reserve(first[g] - 1)
        for c in range(cpre, 16):
            S.add('rd', self.c_read(1, c), 0, max(first[c] - LEAD, 0))
        if nt > 16:
            for c in range(16):
                S.add('rd', self.c_read(2, c), first[15] + c + 1, max(first[16 + c // 2] - LEAD, first[15] + c + 1))
        self.sgrel = {}
        for g in range(nt - 1):
            dl = min(first[g + NSL - 1] - 1, first[g + 1] + 12)
            S.add('ep', self.tile_epi(g), first[g + 1] + 2, dl)
            if g & 1:
                self.sgrel[g - 1] = max(dl + 1, sg0)
        self.first = first
        return S

    def z_fix(self, part):
        qs = (0, 2) if part == 1 else (4,)
        va, st = (vCRR, 32) if part == 1 else (vCRR2, 64)
        it = [f"ds_read2_b32 {vr(CR+q,2)}, v{va} offset0:{1+st*(q % 4)} offset1:{1+st*(q % 4 + 1)}" for q in qs]
        for q in qs:
            it += [f"v_add_f32 v{CH+q}, v{CH+q}, v{CR+q}", f"v_add_f32 v{CH+q+1}, v{CH+q+1}, v{CR+q+1}",
                   f"v_cvt_pk_bf16_f32 v{CH+q}, v{CH+q}, v{CH+q+1}",
                   f"s_mov_b64 exec, 0x7777\nds_write_b16 v{vZF}, v{CH+q} offset:{512*q}\nds_write_b16_d16_hi v{vZF}, v{CH+q} offset:{512*(q+1)}\ns_mov_b64 exec, -1",
                   f"ds_read_b128 {vr(ZO+2*q,4)}, v{vZR} offset:{512*q}"]
        if part == 1:
            st = [(f"buffer_store_dwordx4 {vr(ZO,4)}, v{vZS}, {srd(S_WS)}, 0 offen sc1", 'zst1'),
                  (f"buffer_store_dwordx4 {vr(ZO+4,4)}, v{vZS}, {srd(S_WS)}, 0 offen offset:2048 sc1", 'zst1')]
        else:
            st = [(f"buffer_store_dwordx4 {vr(ZO+8,4)}, v{vZS2}, {srd(S_WS)}, 0 offen sc1", 'zst2')]
        return it, st

    def conv_run(self, S, nt, early, flag1=None):
        a = self.a
        for g in range(0, nt - 2, 2):
            S.add('sg', self.stage(g), self.sgrel[g], None)
            if early and g == 14:
                f1, s1 = self.z_fix(1)
                p = self.cfg.get('pE1', 150)
                S.th['sg'][-1][2] = p - 1
                S.add('sg', [('wait', 'carw1'), "s_barrier"], p, p + 1)
                S.add('sg', f1[:2], p + 1, p + 3)
                S.add('sg', f1[2:], p + 6, p + 16)
                S.add('sg', s1, p + 20, p + 22)
        a.run(S.items(keep=('sg',)))
        self.info['conv'] = (S.over, S.under, len(S.left.get('sg', [])))
        a.run([self.stamp('conv')])
        a.run(merge(S.left.get('sg', []) or ["s_nop 0"], self.tile_epi(nt - 1)))
        a.run(self.stage(nt - 2))
        a.wait('carw2' if nt > 16 else 'carw1')
        a("s_barrier")
        parts = [2] if early else ([1, 2] if nt > 16 else [1])
        fs = [self.z_fix(p) for p in parts]
        if early:
            a.run(fs[0][0][:1] + [('wait', 'zst1'), flag1] + fs[0][0][1:])
        else:
            a.run([x for f in fs for x in f[0]])
        a.run([x for f in fs for x in f[1]])
        a.run([self.stamp('z_st')])

    def finish(self):
        a = self.a
        a.run([self.stamp('end')])
        amp = self.cfg.get('amp')
        if amp and amp[0] == self.role:
            if self.role == 'A':
                a(f"s_cmp_ge_u32 s{sID}, 30")
                a("s_cbranch_scc1 L_end")
            a("s_memrealtime s[100:101]")
            a("s_sub_u32 s98, s98, s96")
            a("s_mul_i32 s98, s98, 20")
            a("s_min_u32 s98, s98, 200000")
            a("s_add_u32 s98, s98, s100")
            a.label("L_amp")
            a("s_memrealtime s[100:101]")
            a("s_sub_u32 s100, s100, s98")
            a("s_cmp_lt_i32 s100, 0")
            a("s_cbranch_scc1 L_amp")
        if self.stamps:
            a.wait_all()
            a("s_memrealtime s[98:99]")
            a(f"v_writelane_b32 v255, s96, 30")
            a(f"v_writelane_b32 v255, s98, 31")
            for k in range(self.npoll):
                a(f"v_readlane_b32 s{sT0}, v254, {k}")
                a(f"v_writelane_b32 v255, s{sT0}, {24+k}")
            a(f"s_lshl2_add_u32 s{sT0}, s2, s{sW}")
            a(f"s_lshl_b32 s{sT0}, s{sT0}, 8")
            a(f"s_add_u32 s{sT0}, s{sT0}, {WS_DBG}")
            a(f"v_lshlrev_b32 v{vT}, 2, v0")
            a(f"buffer_store_dword v255, v{vT}, {srd(S_WS)}, s{sT0} offen")


KERNARG = {f"s{i}" for i in range(36, 68)}


def prog_A(cfg):
    P = Prog('A', cfg)
    a, stamp = P.a, P.stamp
    a.smem_pending = set(KERNARG) | {'s96', 's97'}
    FS1, FSU, FSZ = cfg.get('fs1', 128), cfg.get('fsu', 64), cfg.get('fsz', 32)
    NB, GR = cfg.get('nb', 14), cfg.get('grp', 2)
    sDG, sFT = sA, sB
    KW, HW = cfg.get('kw', 1), cfg.get('hw', 1)
    NC = 3 if cfg.get('third', 'A') == 'A' else 2
    NT = 8*NC
    if cfg.get('cpf', 1):
        a.run(P.code_prefetch("L_Amain", "L_end"))
    a(f"s_mul_i32 s{sT0}, s{sID}, 52")
    a(f"s_lshr_b32 s{sT0}, s{sT0}, 8")
    a(f"s_mul_i32 s{sT1}, s{sT0}, 5")
    a(f"s_sub_u32 s{sDG}, s{sID}, s{sT1}")
    a(f"s_min_u32 s{sT0}, s{sT0}, 5")
    a(f"s_mul_i32 s{sFT}, s{sXQ}, 6")
    a(f"s_add_u32 s{sFT}, s{sFT}, s{sT0}")
    a(f"s_lshl4_add_u32 s{sT1}, s{sDG}, s{sW}")
    a(f"s_mul_i32 s{sT1}, s{sT1}, 205")
    a(f"s_lshr_b32 s{sT1}, s{sT1}, 10")
    sOWN = 38
    if cfg.get('rkA', 5):
        a(f"s_lshr_b32 s{sCNT}, s{sT0}, 1")
        a(f"s_mul_i32 s{sCNT}, s{sCNT}, {cfg.get('rkA', 5)}")
        a(f"s_add_u32 s{sT1}, s{sT1}, s{sCNT}")
        a(f"s_and_b32 s{sT1}, s{sT1}, 15")
    a(f"s_lshl_b32 s{TK}, s{sT1}, 10")
    a(f"s_add_u32 s{sT1}, s{TK}, 1024")
    a(f"s_and_b32 s{TK+1}, s{sT1}, 0x3c00")
    a(f"s_lshl_b32 s{sRING}, s{sW}, 12")
    a(f"s_mul_i32 s{sT0}, s{sW}, {512*3072}")
    a(f"s_lshl_b32 s{sT1}, s{sFT}, 7")
    a(f"s_add_u32 s{sT0}, s{sT0}, s{sT1}")
    a.run(P.weight_src(3072, sT0))
    a(f"s_mov_b32 s{S_W+2}, 6291456")
    a(f"s_mov_b32 s{S_W+3}, 0x20000")
    a(f"s_cmp_ge_u32 s{sID}, 30")
    a(f"s_cselect_b32 s{sSP}, {OOB}, 0")
    a(f"s_mov_b64 {sp(S_W)}, {sp(50)}")
    a("s_cbranch_scc1 L_Amain")
    a.run(P.w_step())
    a.run([stamp('start')])
    a.run(P.w_step())
    a("s_branch L_Amain")
    P.split = len(a.out)
    a.label("L_Amain")
    a.run(P.lanes())
    if cfg.get('hlpA', 1):
        a(f"s_cmp_lt_u32 s{sID}, 30")
        a("s_cbranch_scc1 L_Anh")
        a.begin_cond('hlp')
        a(f"s_lshl1_add_u32 s{sT0}, s{sXQ}, 3")
        a(f"s_and_b32 s{sT0}, s{sT0}, 7")
        a(f"s_cmp_ge_u32 s{sT0}, 6")
        a("s_cbranch_scc1 L_Anh")
        a(f"s_lshr_b32 s{sCNT}, s{sT0}, 1")
        a(f"s_mul_i32 s{sCNT}, s{sCNT}, {cfg.get('rkA', 5)}")
        a(f"s_add_u32 s{sCNT}, s{sCNT}, 15")
        a(f"s_mul_i32 s{sT1}, s{sXQ}, 6")
        a(f"s_add_u32 s{sT0}, s{sT0}, s{sT1}")
        a(f"s_lshl_b32 s{sT0}, s{sT0}, 7")
        a(f"s_mul_i32 s{sT1}, s{sW}, {512*3072}")
        a(f"s_add_u32 s{sU0}, s{sT0}, s{sT1}")
        for i in range(2):
            if i == 0:
                a(f"v_lshrrev_b32 v{vT}, 5, v0")
                a(f"v_lshl_add_u32 v{vT}, s{sDG}, 1, v{vT}")
                a(f"v_and_b32 v{vT2}, 31, v0")
            else:
                a(f"v_mov_b32 v{vT}, 4")
                a(f"v_lshl_add_u32 v{vT2}, s{sDG}, 4, v{vI}")
            a(f"v_add_u32 v{vT}, 1, v{vT}")
            a(f"v_lshl_add_u32 v{vT}, v{vT}, 4, s{sW}")
            a(f"v_mul_u32_u24 v{vT}, 205, v{vT}")
            a(f"v_lshrrev_b32 v{vT}, 10, v{vT}")
            a(f"v_add_u32 v{vT}, s{sCNT}, v{vT}")
            a(f"v_and_b32 v{vT}, 15, v{vT}")
            a(f"v_lshl_add_u32 v{vT}, v{vT}, 5, v{vT2}")
            a(f"v_mul_u32_u24 v{vT}, 3072, v{vT}")
            if i:
                a("s_mov_b64 exec, 0xffff")
            a(f"buffer_load_dword v{250+i}, v{vT}, {srd(S_W)}, s{sU0} offen")
        a("s_mov_b64 exec, -1")
        a.end_cond()
        a.label("L_Anh")
    for (s, n) in ((S_WS, WS_SIZE), (S_SSM, 2621440)):
        a(f"s_mov_b32 s{s+2}, {n}")
        a(f"s_mov_b32 s{s+3}, 0x20000")
    for j in range(2, 16):
        a(f"s_add_u32 s{sT1}, s{TK+j-1}, 1024")
        a(f"s_and_b32 s{TK+j}, s{sT1}, 0x3c00")
    a(f"s_mov_b64 {sp(S_WS)}, {sp(66)}")
    a(f"s_mov_b64 {sp(S_SSM)}, {sp(44)}")
    a.run(P.weight_dst(False))
    a.run(P.zflag_addr(sFJ, 128))
    a.run(P.conv_setup(NC))
    vHL, vRW, vRR, vUS, vEP, vX0 = 10, 44, 47, 48, 49, 50
    BL = 54
    g1set = [f"s_mul_i32 s{sOWN}, s{sFT}, {cfg.get('roA', 0)}", f"s_add_u32 s{sOWN}, s{sOWN}, s{sW}", f"s_and_b32 s{sOWN}, s{sOWN}, 3",
             f"s_lshl_b32 s{sCNT}, s{sDG}, 18", f"s_lshl_b32 s{sT1}, s{sW}, 14", f"s_add_u32 s{sCNT}, s{sCNT}, s{sT1}",
             f"s_add_u32 s{sCNT}, s{sCNT}, s{sSP}"]
    for i in range(4):
        g1set += [f"s_add_u32 s{sT0}, s{sOWN}, {i+1}",
                  f"s_and_b32 s{sT0}, s{sT0}, 3",
                  f"s_mul_i32 s{sT1}, s{sT0}, 12288",
                  f"s_add_u32 s{sT1}, s{sT1}, {L_RED + (i*4096 if i < 3 else 0)}",
                  f"v_add_u32 v{vRW+i}, s{sT1}, v1",
                  f"s_lshl_b32 s{sT0}, s{sT0}, 16",
                  f"s_add_u32 s{sT0}, s{sT0}, s{sCNT}",
                  f"v_add_u32 v{vHL+i}, s{sT0}, v1",
                  f"v_add_u32 v{vHL+4+i}, {20*65536}, v{vHL+i}"]
    g1set += [f"v_lshl_add_u32 v{vP0}, s{sW}, 5, v0",
              f"v_mul_u32_u24 v{vP0}, {FS1}, v{vP0}",
              f"v_add_u32 v{vP0}, {WS_F1}, v{vP0}",
              f"s_lshl_b32 s{sT0}, s{sFT}, 7",
              f"v_lshl_add_u32 v{vX0}, v{vH}, 3, s{sT0}",
              f"s_lshl2_add_u32 s{sT0}, s{sDG}, s{sOWN}",
              f"s_mul_i32 s{sFI}, s{sT0}, 24",
              f"s_add_u32 s{sFI}, s{sFI}, s{sFT}",
              f"s_mul_i32 s{sFI}, s{sFI}, {FSU}",
              f"s_add_u32 s{sFI}, s{sFI}, {WS_FU}",
              f"s_add_u32 s{sFI}, s{sFI}, s{sSP}",
              f"s_mul_i32 s{sT0}, s{sT0}, 48",
              f"s_lshl1_add_u32 s{sT0}, s{sFT}, s{sT0}",
              f"s_lshl_b32 s{sT0}, s{sT0}, 10",
              f"s_add_u32 s{sT0}, s{sT0}, {WS_U}",
              f"s_add_u32 s{sT0}, s{sT0}, s{sSP}",
              f"v_add_u32 v{vUS}, s{sT0}, v1",
              f"s_mov_b32 s{sU2}, 0xbdd2d3e8",
              f"s_mov_b32 s{sU3}, {20*48*1024}",
              f"v_mov_b32 v52, 0xc0135761"]
    a.run(g1set)
    a.run(P.conv_setup2(NC))
    a.run(P.epoch_load(vEP))
    for t in range(4):
        a(f"global_load_dwordx2 {vr(BL+2*t,2)}, v{vX0}, {sp(P_B1)} offset:{32*t}")
    a(f"s_cmp_ge_u32 s{sID}, 30")
    a("s_cbranch_scc1 L_Aspare")
    a.run(P.w_step())
    a.run(P.w_step())
    BI, RD, PD4 = 112, 144, 248
    bun = []
    for t in range(8):
        bun += [f"v_lshlrev_b32 v{BI+2*t}, 16, v{BL+t}", f"v_and_b32 v{BI+2*t+1}, 0xffff0000, v{BL+t}"]
    PA = cfg.get('pollA', 15)
    while P.nxt < 16:
        if P.nxt == 8:
            a.run(P.set_tag(vEP))
            a.run(bun)
        a.run([stamp(f'w{P.nxt}')])
        it = P.w_step()
        if P.nxt - 1 == PA:
            it.insert(9, P.poll_issue(vP0, 32, HW, PD4))
        a.run(it)
    while P.drn < PA:
        a.run(P.w_step())
    a.run([P.poll_check('f1', vP0, 32, HW, PD4), stamp('f1_ok')])
    BUFS = ([64 + 4*i for i in range(8)] + [128 + 4*i for i in range(4)] + [228 + 4*i for i in range(5)] + [208 + 4*i for i in range(3)])[:NB]
    KL = [BUFS[(128 + i) % NB] for i in range(NC)]
    XL = [BUFS[(128 + NC + i) % NB] for i in range(NC)]

    def h_load(n):
        i, j = divmod(n, 16)
        return f"buffer_load_dwordx4 {vr(BUFS[n % NB],4)}, v{vHL+i}, {srd(S_WS)}, s{TK+j} offen sc1"
    hn = 0
    HE = cfg.get('hearly', 8)
    left = 16 - P.drn
    while P.drn < 16:
        for _ in range(HE // left):
            a(h_load(hn)); hn += 1
        a.run(P.w_step())
    ACC = (96, 192)
    Z, G0, UO = ACC[1], 160, 220
    for r in range(2):
        mf, pos = [], {}
        for q in range(64 // GR):
            for t in range(4):
                for n in range(q * GR, (q + 1) * GR):
                    i, j = divmod(n, 16)
                    d = vr(ACC[i & 1] + 4 * t, 4)
                    pos.setdefault(n, len(mf))
                    c = d if j else ('0' if i < 3 else vr(BI + 4 * t, 4))
                    mf.append(f"v_mfma_f32_16x16x32_bf16 {d}, {ar(16*j+4*t,4)}, {vr(BUFS[(64*r + n) % NB],4)}, {c}")
        S = Sched(mf)
        for n in range(64):
            S.reserve(pos[n] - 1)
        k = 0
        while hn < 128:
            n = hn - 64 * r
            free = 4 * GR * ((n - NB) // GR + 1) if n >= NB else 0
            p = max(free, 4 * (n - NB + GR) + 1, 2 * k)
            if p > 255:
                break
            S.add('h', [h_load(hn)], p, p)
            hn += 1
            k += 1
        S.add('st', [stamp(f'g1first{r}')], 0, 0)
        lasth = p if r else 0
        for i in range(3):
            S.add('red', [(f"ds_write_b128 v{vRW+i}, {vr(ACC[i & 1]+4*t,4)} offset:{t*1024}", f'redw{r}{i}') for t in range(4)],
                  64 * (i + 1) + 1, 64 * (i + 1) + 13, pace=4 if i < 2 else 3)
        pR = 192 + cfg.get('pR', 15)
        S.add('red', [('wait', f'redw{r}2'), "s_barrier"], pR, pR + 1)
        S.add('red', [f"ds_read_b128 {vr(RD+4*k,4)}, v{vRR} offset:{k*1024}" for k in range(12)], pR + 2, pR + 16)
        S.add('add', [f"v_add_f32 v{RD+k}, v{RD+k}, v{RD+16+k}" for k in range(16)] +
                     [f"v_add_f32 v{RD+k}, v{RD+k}, v{RD+32+k}" for k in range(16)], pR + 17, 255)
        if r == 1:
            S.add('set', [f"v_subrev_u32 v{vRW+i}, {L_RED}, v{vRW+i}" for i in range(4)], 2, 30)
            pD = cfg.get('pD0', 40)
            S.add('fl', [('wait', 'ust0'), stamp('barD0'), P.flag(sFI), f"s_add_u32 s{sFI}, s{sFI}, {20*24*FSU}"], pD, pD + 1)
            S.add('fl', [P.poll_check('fk', vP1, 16, KW, PD4), stamp('fk_ok')], 150, 152)
            for i, x in enumerate(P.ssm_loads(NC, KL) + P.x_loads(NC, XL)):
                n = 64 + i
                p = max(4 * GR * ((n - NB) // GR + 1), 4 * (n - NB + GR) + 1)
                if i == NC:
                    S.add('h', P.x_off(NC), p - 3, p)
                S.add('h', [x], p, p)
        a.run(S.items())
        P.info[f'g1{r}'] = (S.over, S.under)
        a.run([stamp(f'g1mfma{r}')])
        side = []
        if r == 0:
            while hn < 64 + NB:
                side.append(h_load(hn)); hn += 1
            a.run(side)
        for t in range(8):
            a(f"v_pk_add_f32 {vr(Z+2*t,2)}, {vr(Z+2*t,2)}, {vr(RD+2*t,2)}")
        for t in range(8):
            a(f"v_pk_mul_f32 {vr(G0+2*t,2)}, {vr(Z+2*t,2)}, {vr(Z+2*t,2)}")
        for t in range(8):
            a(f"v_pk_fma_f32 {vr(G0+2*t,2)}, {vr(G0+2*t,2)}, {sp(sU2)}, v[52:53] op_sel_hi:[1,0,0]")
        for t in range(8):
            a(f"v_pk_mul_f32 {vr(G0+2*t,2)}, {vr(G0+2*t,2)}, {vr(Z+2*t,2)}")
        for t in range(16):
            a(f"v_exp_f32 v{G0+t}, v{G0+t}")
        for t in range(8):
            a(f"v_pk_add_f32 {vr(G0+2*t,2)}, {vr(G0+2*t,2)}, 1.0 op_sel_hi:[1,0]")
        for t in range(16):
            a(f"v_rcp_f32 v{G0+t}, v{G0+t}")
        for t in range(8):
            a(f"v_pk_mul_f32 {vr(G0+2*t,2)}, {vr(G0+2*t,2)}, {vr(Z+2*t,2)}")
        for t in range(8):
            a(f"v_cvt_pk_bf16_f32 v{UO+t}, v{G0+2*t}, v{G0+2*t+1}")
        for half in range(2):
            a(f"buffer_store_dwordx4 {vr(UO+4*half,4)}, v{vUS}, {srd(S_WS)}, {'0' if r == 0 else f's{sU3}'} offen offset:{1024*half} sc1", tok=f'ust{r}')
        if r == 0:
            a(P.poll_issue(vP1, 16, KW, PD4))
        a.run([stamp(f'ust{r}')])
    a.label("L_Ajoin")
    a.run(P.kfix(NC, KL) + P.x_writes(NC, XL))
    a.wait('xw')
    a("s_barrier")
    for c in range(3):
        a.run(P.c_read(1, c))
    S = P.conv_sched(NT, 3, 2)
    pD = cfg.get('pD1', 26)
    S.add('fl', [('wait', 'ust1'), stamp('barD1'), P.flag(sFI)], pD, pD + 1)
    Z2 = NC == 3 and cfg.get('z2', 1)
    P.conv_run(S, NT, Z2, P.flag(sFJ))
    if Z2:
        a(f"s_add_u32 s{sFJ}, s{sJ}, 128")
        a(f"s_mul_i32 s{sFJ}, s{sFJ}, {FSZ}")
        a(f"s_lshl2_add_u32 s{sFJ}, s{sW}, s{sFJ}")
        a(f"s_add_u32 s{sFJ}, s{sFJ}, {WS_FZ + 16}")
    a.wait('zst2' if NC == 3 else 'zst1')
    a(P.flag(sFJ))
    a(f"s_cmp_lg_u32 s{sJ}, 31")
    a("s_cbranch_scc1 L_Adone")
    a(f"v_lshl_add_u32 v{vP0}, s{sW}, 6, v0")
    a(f"v_mul_u32_u24 v{vP0}, {FSZ}, v{vP0}")
    a(f"v_add_u32 v{vP0}, {WS_FZ}, v{vP0}")
    a(P.poll_issue(vP0, 64, 4, PD4))
    st, P.stamps = P.stamps, False
    a.run([P.poll_check('ep', vP0, 64, 4, PD4)])
    P.stamps = st
    a("s_barrier")
    a(f"s_mov_b32 s{sT0}, {WS_EP}")
    a(P.flag(sT0))
    a.label("L_Adone")
    P.finish()
    a("s_endpgm")
    b = Asm()
    P.a, st, P.stamps = b, P.stamps, False
    b.label("L_Aspare")
    b(f"s_mul_i32 s{sT0}, s{sXQ}, 160")
    b(f"s_mul_i32 s{sT1}, s{sDG}, {16*NC}")
    b(f"s_add_u32 s{sT0}, s{sT0}, s{sT1}")
    b(f"s_add_u32 s{sT0}, s{sT0}, 64")
    b(f"v_lshrrev_b32 v{vT}, 3, v0")
    b(f"v_add_lshl_u32 v{vT}, s{sT0}, v{vT}, 12")
    b(f"v_and_b32 v{vT2}, 7, v0")
    b(f"v_lshl_add_u32 v{vT2}, s{sW}, 3, v{vT2}")
    b(f"v_lshl_add_u32 v{vT}, v{vT2}, 7, v{vT}")
    b("s_waitcnt vmcnt(0)")
    b.run(P.set_tag(vEP))
    for i in range(2 * NC):
        b(f"s_mov_b32 s{sT0}, {i*8*4096}")
        b(f"buffer_load_dword v{64+i}, v{vT}, {srd(S_SSM)}, s{sT0} offen")
    b.run(P.ssm_loads(NC, KL) + P.x_off(NC))
    b(P.poll_issue(vP1, 16, KW, PD4))
    b.run([P.poll_check('fs', vP1, 16, KW, PD4)])
    for i in range(2 * NC):
        b(f"s_mov_b32 s{sT0}, {WS_KV + i*8*4096}")
        b(f"buffer_load_dword v{vPD}, v{vT}, {srd(S_WS)}, s{sT0} offen sc1") if False else b.raw(f"    buffer_load_dword v{vPD}, v{vT}, {srd(S_WS)}, s{sT0} offen sc1")
    b.run(P.x_loads(NC, XL))
    b("s_waitcnt vmcnt(0) lgkmcnt(0)")
    b("s_branch L_Ajoin")
    a.out += b.out
    P.a, P.stamps = a, st
    return P


def prog_B(cfg):
    P = Prog('B', cfg)
    a, stamp = P.a, P.stamp
    a.smem_pending = set(KERNARG) | {'s96', 's97'}
    FS1, FSU, FSZ, FSK = cfg.get('fs1', 128), cfg.get('fsu', 64), cfg.get('fsz', 32), cfg.get('fsk', 16)
    sDT, sST = sA, sB
    KW, HW = cfg.get('kw', 1), cfg.get('hw', 1)
    NC = 3 if cfg.get('third', 'A') == 'B' else 2
    NT = 8*NC
    NMF = 136 if NC == 2 else 208
    a.label("L_B")
    if cfg.get('cpf', 1):
        a.run(P.code_prefetch("L_pcB", "L_Amain"))
    a.run(P.lanes())
    XR, GR = 160, 180
    vHW, vL32, vQ, vQ3, vG, vG3, vEP = 190, 191, 192, 193, 194, 195, 196
    a(f"s_lshr_b32 s{sT0}, s{sJ}, 1")
    a(f"s_lshl_b32 s{sT0}, s{sT0}, 5")
    a(f"s_and_b32 s{sT1}, s{sJ}, 1")
    a(f"s_lshl3_add_u32 s{sCNT}, s{sT1}, s{sT0}")
    a(f"s_lshl4_add_u32 s{sCNT}, s{sT2}, s{sCNT}")
    a(f"s_lshl1_add_u32 s{sCNT}, s{sT3}, s{sCNT}")
    a(f"v_lshrrev_b32 v{vHW}, 5, v0")
    a(f"v_and_b32 v{vL32}, 31, v0")
    a(f"v_add_u32 v{vQ}, s{sCNT}, v{vHW}")
    a(f"v_mul_u32_u24 v{vQ}, 1280, v{vQ}")
    a(f"v_add_u32 v{vQ}, 2560, v{vQ}")
    a(f"v_lshlrev_b32 v{vG}, 4, v{vL32}")
    a(f"v_lshlrev_b32 v{vG3}, 3, v{vL32}")
    a(f"v_add_u32 v{vQ3}, v{vQ}, v{vG3}")
    a(f"v_add_u32 v{vQ}, v{vQ}, v{vG}")
    vKV, vKH = 60, 61
    sKL = sFI
    a(f"s_lshl3_add_u32 s{sU0}, s{sW}, s{sT0}")
    a(f"s_mul_i32 s{sU0}, s{sU0}, 1280")
    a(f"s_mul_i32 s{sU1}, s{sT1}, 640")
    a(f"s_add_u32 s{sU0}, s{sU0}, s{sU1}")
    a(f"v_add_u32 v{vKV}, s{sU0}, v1")
    a(f"s_mul_i32 s{sU0}, s{sW}, {(-7*1280) & 0xffffffff}")
    a(f"s_sub_u32 s{sU0}, s{sU0}, {4*1280}")
    a(f"v_add_u32 v{vKH}, s{sU0}, v{vKV}")
    a(f"s_mul_i32 s{sKL}, s{sW}, {8*PK + 32}")
    for (s, n) in ((S_K, 2621440), (S_V, 2621440), (S_WS, WS_SIZE), (S_W, 6291456), (S_SSM, 2621440)):
        a(f"s_mov_b32 s{s+2}, {n}")
        a(f"s_mov_b32 s{s+3}, 0x20000")
    vCH, vS0 = 62, 63
    a(f"s_lshl2_add_u32 s{sU0}, s{sT1}, s{sW}")
    a(f"s_mul_i32 s{sU0}, s{sU0}, 80")
    a(f"v_add_u32 v{vCH}, s{sU0}, v{vI}")
    a(f"v_lshlrev_b32 v{vS0}, 3, v{vCH}")
    for e in range(2):
        o = 5120 * e - 2560
        a(f"global_load_dwordx4 {vr(XR+10*e,4)}, v{vQ}, {sp(P_Q)} offset:{o}")
        a(f"global_load_dwordx4 {vr(XR+10*e+4,4)}, v{vQ}, {sp(P_Q)} offset:{o+512}")
        a(f"global_load_dwordx2 {vr(XR+10*e+8,2)}, v{vQ3}, {sp(P_Q)} offset:{o+1024}")
        if e == 0:
            a(f"global_load_dwordx4 {vr(GR,4)}, v{vG}, {sp(P_GW)}")
            a(f"global_load_dwordx4 {vr(GR+4,4)}, v{vG}, {sp(P_GW)} offset:512")
            a(f"global_load_dwordx2 {vr(GR+8,2)}, v{vG3}, {sp(P_GW)} offset:1024")
    a.run([stamp('start')])
    for (s, p) in ((S_K, 38), (S_V, 40), (S_WS, 66), (S_W, 56), (S_SSM, 44)):
        a(f"s_mov_b64 {sp(s)}, {sp(p)}")
    a.run(P.epoch_load(vEP))

    def kv_dma(which, i):
        if which == 'h':
            return [f"s_mul_i32 s{sU0}, s{sW}, {PK}", f"s_add_u32 m0, s{sU0}, {L_KI}", "s_mov_b32 exec_hi, 0xff",
                    f"buffer_load_dwordx4 v{vKH}, {srd(S_K)}, 0 offen lds", "s_mov_b32 exec_hi, -1"]
        base = L_KI + (4 + i) * PK + (32 if i >= 4 else 0) if which == 'k' else L_VI + i * PK
        return [f"s_add_u32 m0, s{sKL}, {base}", f"s_mov_b32 s{sU0}, {i*1280}", "s_mov_b32 exec_hi, 0xff",
                (f"buffer_load_dwordx4 v{vKV}, {srd(S_K if which == 'k' else S_V)}, s{sU0} offen lds", 'kvdma'), "s_mov_b32 exec_hi, -1"]

    def kv_batch(lst):
        it = []
        for (wh, i) in lst:
            x = kv_dma(wh, i)
            if it:
                it.pop()
                x.remove("s_mov_b32 exec_hi, 0xff")
            it += x
        return it
    kvq = [('h', 0)] + [('k', i) for i in range(8)] + [('v', i) for i in range(8)]
    a(f"s_and_b32 s{sDT}, s{sID}, 3")
    a(f"s_lshr_b32 s{sT0}, s{sID}, 2")
    a(f"s_lshl3_add_u32 s{sST}, s{sXQ}, s{sT0}")
    vLW, vLW3, vA1, vA2, vHS, vGS, vKVA, vKVS = 44, 45, 46, 47, 48, 49, 50, 51
    a(f"v_lshl_add_u32 v{vT}, s{sW}, 1, v{vHW}")
    a(f"s_lshl_b32 s{sT0}, s{sJ}, 4")
    a(f"v_add_lshl_u32 v{vGS}, s{sT0}, v{vT}, 2")
    a(f"v_add_u32 v{vGS}, {WS_G}, v{vGS}")
    a(f"v_mul_u32_u24 v{vT}, {PL}, v{vT}")
    a(f"v_add_u32 v{vT}, {L_LN}, v{vT}")
    a(f"v_add_u32 v{vLW}, v{vT}, v{vG}")
    a(f"v_add_u32 v{vLW3}, v{vT}, v{vG3}")
    a(f"v_mul_u32_u24 v{vT}, {PL}, v{vR}")
    a(f"v_mul_u32_u24 v{vT2}, 320, v{vH}")
    a(f"s_mul_i32 s{sT0}, s{sT3}, {8*PL}")
    a(f"s_add_u32 s{sT0}, s{sT0}, {L_LN}")
    a(f"v_add3_u32 v{vT}, v{vT}, v{vT2}, s{sT0}")
    a(f"v_lshl_add_u32 v{vT}, v{vC}, 4, v{vT}")
    a(f"v_lshl_add_u32 v{vA1}, s{sT2}, 7, v{vT}")
    a(f"v_lshl_add_u32 v{vA2}, s{sT2}, 3, v{vT}")
    a(f"s_lshl1_add_u32 s{sT0}, s{sJ}, s{sT3}")
    a(f"s_lshl_b32 s{sT0}, s{sT0}, 8")
    a(f"s_mul_i32 s{sT1}, s{sT2}, {20*65536}")
    a(f"s_add_u32 s{sT0}, s{sT0}, s{sT1}")
    a(f"v_mul_u32_u24 v{vHS}, {5*65536}, v{vH}")
    a(f"v_lshl_add_u32 v{vHS}, v{vI}, 4, v{vHS}")
    a(f"v_add_u32 v{vHS}, s{sT0}, v{vHS}")
    a(f"v_mul_u32_u24 v{vT}, {8*PK + 32}, v{vH}")
    a(f"v_mul_u32_u24 v{vT2}, {PK}, v{vR}")
    a(f"s_mul_i32 s{sT0}, s{sW}, 160")
    a(f"s_add_u32 s{sT0}, s{sT0}, {L_KI}")
    a(f"v_add3_u32 v{vT}, v{vT}, v{vT2}, s{sT0}")
    a(f"v_lshl_add_u32 v{vKVA}, v{vC}, 3, v{vT}")
    a(f"v_lshlrev_b32 v{vKVS}, 12, v{vCH}")
    a(f"v_lshl_add_u32 v{vKVS}, v{vH}, 4, v{vKVS}")
    a(f"s_lshr_b32 s{sT0}, s{sJ}, 1")
    a(f"s_lshl_b32 s{sT1}, s{sT0}, 6")
    a(f"s_add_u32 s{sT1}, s{sT1}, {WS_KV}")
    a(f"v_add_u32 v{vKVS}, s{sT1}, v{vKVS}")
    a(f"s_and_b32 s{sT1}, s{sJ}, 1")
    a(f"s_lshl_b32 s{sT1}, s{sT1}, 6")
    a(f"s_add_u32 s{sFJ}, s{sT0}, s{sT1}")
    a(f"s_mul_i32 s{sFJ}, s{sFJ}, {FSK}")
    a(f"s_lshl2_add_u32 s{sFJ}, s{sW}, s{sFJ}")
    a(f"s_add_u32 s{sFJ}, s{sFJ}, {WS_FK}")
    a(f"s_mul_i32 s{sU3}, s{sJ}, {FS1}")
    a(f"s_lshl2_add_u32 s{sU3}, s{sW}, s{sU3}")
    a(f"s_add_u32 s{sU3}, s{sU3}, {WS_F1}")
    for k in range(1, 5):
        a(f"s_mov_b32 s{79+k}, {k*65536}")
    nq = cfg.get('kvq0', 6)
    a.run(kv_batch(kvq[:nq])); kvq = kvq[nq:]
    a.run([stamp('iss2')])

    def ln(e):
        X = XR + 10 * e
        S1, S2, S3, TT, vRS, vNM, XF = 64 + 32*e, 65 + 32*e, 58 + e, 66 + 32*e, 70 + 32*e, 92 + 32*e, 72 + 32*e
        it = []
        for i in range(10):
            c = lambda r: "0" if i == 0 else f"v{r}"
            it.append(f"v_dot2_f32_bf16 v{S1}, v{X+i}, s{sU2}, {c(S1)}")
            it.append(f"v_dot2_f32_bf16 v{S2}, v{X+i}, v{X+i}, {c(S2)}")
        for i in range(10):
            it.append(f"v_dot2_f32_bf16 v{S3}, v{X+i}, v{GR+i}, {'0' if i == 0 else f'v{S3}'}")
        unp = []
        for i in range(10):
            unp.append(f"v_lshlrev_b32 v{XF+2*i}, 16, v{X+i}")
            unp.append(f"v_and_b32 v{XF+2*i+1}, 0xffff0000, v{X+i}")
        it.append(unp.pop(0))
        for m in ("quad_perm:[1,0,3,2]", "quad_perm:[2,3,0,1]", "row_half_mirror", "row_mirror"):
            for s in (S1, S2, S3):
                it.append(f"v_add_f32_dpp v{s}, v{s}, v{s} {m} row_mask:0xf bank_mask:0xf")
        for k, s in enumerate((S1, S2, S3)):
            it.append(f"v_mov_b32 v{TT+k}, v{s}")
        for k, s in enumerate((S1, S2, S3)):
            it.append(f"v_permlane16_swap_b32 v{s}, v{TT+k}")
        for k, s in enumerate((S1, S2, S3)):
            it.append(f"v_add_f32 v{s}, v{s}, v{TT+k}")
        inv = 0x3ACCCCCD
        it += [f"v_mul_f32 v{S1}, {hex(inv)}, v{S1}",
               f"v_mul_f32 v{S2}, {hex(inv)}, v{S2}",
               f"v_mul_f32 v{S3}, 0xbfb8aa3b, v{S3}",
               f"v_fma_f32 v{S2}, -v{S1}, v{S1}, v{S2}",
               f"v_exp_f32 v{S3}, v{S3}",
               f"v_max_f32 v{S2}, 0, v{S2}",
               f"v_add_f32 v{S2}, 0x3727c5ac, v{S2}",
               f"v_rsq_f32 v{vRS}, v{S2}",
               f"v_add_f32 v{S3}, 1.0, v{S3}",
               f"v_rcp_f32 v{S3}, v{S3}",
               f"v_mul_f32_e64 v{vNM}, -v{S1}, v{vRS}"]
        it += unp
        for i in range(10):
            it.append(f"v_pk_fma_f32 {vr(XF+2*i,2)}, {vr(XF+2*i,2)}, {vr(vRS,2)}, {vr(vNM,2)} op_sel_hi:[1,0,0]")
        for i in range(10):
            it.append(f"v_cvt_pk_bf16_f32 v{X+i}, v{XF+2*i}, v{XF+2*i+1}")
            if i == 3:
                it.append(f"ds_write_b128 v{vLW}, {vr(X,4)} offset:{8*PL*e}")
            if i == 7:
                it.append(f"ds_write_b128 v{vLW}, {vr(X+4,4)} offset:{8*PL*e + 512}")
        it.append((f"ds_write_b64 v{vLW3}, {vr(X+8,2)} offset:{8*PL*e + 1024}", 'lnw'))
        return it
    a(f"s_mov_b32 s{sU2}, 0x3f803f80")
    a.run(ln(0))
    nq = cfg.get('kvq1', 4)
    a.run(kv_batch(kvq[:nq])); kvq = kvq[nq:]
    a.run(ln(1))
    a.wait('lnw')
    a("s_barrier")
    a.run([stamp('barL')])
    HB = 64
    for m in range(5):
        va, off = (vA1, 64 * (m >> 1) + 8 * (m & 1)) if m < 4 else (vA2, 256)
        for e2 in range(2):
            a(f"ds_read_b64_tr_b16 {vr(HB+4*m+2*e2,2)}, v{va} offset:{off + e2*4*PL}")
    a(f"s_mov_b32 exec_lo, 1")
    a(f"s_mov_b32 exec_hi, 1")
    for e in range(2):
        a(f"buffer_store_dword v{58+e}, v{vGS}, {srd(S_WS)}, 0 offen offset:{32*e} sc1")
    a("s_mov_b64 exec, -1")
    for m in range(5):
        a(f"buffer_store_dwordx4 {vr(HB+4*m,4)}, v{vHS}, {srd(S_WS)}, {'0' if m == 0 else f's{79+m}'} offen sc1", tok='hst')
    a.run(P.set_tag(vEP))
    vQO, vQO2, vGA, vX1, vQO1 = 36, 41, 253, 250, 15
    QR, vGG, vB2 = 44, 16, 17

    def bigset():
        a(f"s_bfe_u32 s{sT0}, s{sST}, 0x10001")
        a(f"s_mul_i32 s{sT0}, s{sT0}, {cfg.get('rkB', 0)}")
        a(f"s_add_u32 s{sT0}, s{sT0}, s{sDT}")
        a(f"s_and_b32 s{sT0}, s{sT0}, 3")
        a(f"s_mul_i32 s{TK}, s{sT0}, 3072")
        a(f"s_and_b32 s{sSP}, s{sST}, {cfg.get('swB', 1)}")
        for j in range(1, 12):
            a(f"s_add_u32 s{sT0}, s{TK+j-1}, 1024")
            a(f"s_cmp_lt_u32 s{sT0}, {12*1024}")
            a(f"s_cselect_b32 s{TK+j}, s{sT0}, 0")
        a(f"s_mul_i32 s{sT0}, s{sW}, {384*4096}")
        a(f"s_lshl_b32 s{sT1}, s{sST}, 7")
        a(f"s_add_u32 s{sT0}, s{sT0}, s{sT1}")
        a.run(P.weight_src(4096, sT0) + P.weight_dst(True))
        a.run(P.conv_setup(NC))
        a.run(P.conv_setup2(NC))
        a(f"s_lshl2_add_u32 s{sT0}, s{sST}, s{sW}")
        a(f"v_lshl_add_u32 v{vT}, s{sT0}, 4, v{vI}")
        a(f"v_lshlrev_b32 v{vX1}, 1, v{vT}")
        a(f"v_mul_u32_u24 v{vT}, 1280, v{vT}")
        a(f"s_mul_i32 s{sT0}, s{sDT}, 320")
        a(f"v_add_u32 v{vT}, s{sT0}, v{vT}")
        a(f"v_lshl_add_u32 v{vQO2}, v{vH}, 4, v{vT}")
        a(f"s_lshl_b32 s{sT0}, s{sSP}, 6")
        a(f"v_add_u32 v{vQO}, s{sT0}, v{vQO2}")
        a(f"v_subrev_u32 v{vQO1}, s{sT0}, v{vQO2}")
        a(f"s_lshl1_add_u32 s{sT0}, s{sST}, s{sT2}")
        a(f"s_lshl3_add_u32 s{sT0}, s{sT0}, s{sT3}")
        a(f"s_lshl_b32 s{sT0}, s{sT0}, 4")
        a(f"s_add_u32 s{sT0}, s{sT0}, {WS_G}")
        a(f"v_lshl_add_u32 v{vT}, v{vR}, 5, s{sT0}")
        a(f"v_lshl_add_u32 v{vGA}, v{vC}, 2, v{vT}")

    SP = cfg.get('setp', 0)
    if SP == 0:
        bigset()
    nq = cfg.get('kvq2', 7)
    a.run(kv_batch(kvq[:nq])); kvq = kvq[nq:]
    a.wait('hst')
    a.run([P.flag_wg(sU3, 'f1') if HW == 1 else P.flag(sU3), stamp('barH')])
    if kvq:
        a.run(kv_batch(kvq))
    CF, KL = 148, (228, 232, 236)
    for u in range(5):
        a(f"global_load_dwordx2 {vr(CF+2*u,2)}, v{vS0}, {sp(P_SH)} offset:{128*u}")
    if SP == 1:
        bigset()
    a.run(P.ssm_loads(NC, KL))

    def helper():
        HR = cfg.get('hlpB', 6)
        if HR:
            a(f"s_add_u32 s{sT0}, s{sST}, 4")
            a(f"s_and_b32 s{sT0}, s{sT0}, 7")
            a(f"s_mul_i32 s{sT1}, s{sT0}, {HR}")
            a(f"s_cmp_eq_u32 s{sT0}, 7")
            a(f"s_cselect_b32 s{sU2}, {OOB}, 0")
            a(f"s_lshl2_add_u32 s{sT0}, s{sW}, s{sDT}")
            a(f"s_mul_i32 s{sT0}, s{sT0}, 96")
            a(f"s_add_u32 s{sT0}, s{sT0}, s{sT1}")
            a(f"s_add_u32 s{sT0}, s{sT0}, {96 - 7*HR}")
            a(f"v_add_lshl_u32 v{vT}, s{sT0}, v0, 12")
            a(f"s_lshl_b32 s{sT0}, s{sXQ}, 10")
            a(f"s_add_u32 s{sT0}, s{sT0}, 384")
            a(f"s_add_u32 s{sU2}, s{sU2}, s{sT0}")
            a(f"s_mov_b64 exec, {hex((1 << HR) - 1)}")
            a(f"buffer_load_dword v251, v{vT}, {srd(S_W)}, s{sU2} offen")
            a("s_mov_b64 exec, -1")
    WP = cfg.get('wBpre', 1)
    if WP:
        helper()
    if WP >= 2:
        a.run(P.w_step())

    a.wait('kvdma')
    a("s_barrier")
    a.run([stamp('barK')])
    KR, KO = 64, 160

    def kv_reads(u):
        it = [f"ds_read_b64_tr_b16 {vr(KR+10*u+2*j,2)}, v{vKVA} offset:{32*u + 4*j*PK + (32 if j == 2 else 0)}" for j in range(3)]
        it += [f"ds_read_b64_tr_b16 {vr(KR+10*u+6+2*j,2)}, v{vKVA} offset:{32*u + 4*j*PK + (L_VI-L_KI)}" for j in range(2)]
        return it

    def kv_compute(u):
        it = []
        k = KR + 10 * u
        c10, c32 = CF + 2 * u, CF + 2 * u + 1
        SH, AC, VF, OUT = 116, 124, 132, KO + 4 * u
        for n in range(5):
            it.append(f"v_alignbit_b32 v{SH+n}, v{k+n+1}, v{k+n}, 16")
        pr = lambda e: (k + (e + 1) // 2, k + (e + 3) // 2) if e & 1 else (SH + e // 2, SH + e // 2 + 1)
        for e in range(8):
            it.append(f"v_dot2_f32_bf16 v{AC+e}, v{pr(e)[0]}, v{c32}, 0")
        for e in range(8):
            it.append(f"v_dot2_f32_bf16 v{AC+e}, v{pr(e)[1]}, v{c10}, v{AC+e}")
        for n in range(4):
            it.append(f"v_lshlrev_b32 v{VF+2*n}, 16, v{k+6+n}")
            it.append(f"v_and_b32 v{VF+2*n+1}, 0xffff0000, v{k+6+n}")
        for n in range(4):
            it.append(f"v_pk_mul_f32 {vr(AC+2*n,2)}, {vr(AC+2*n,2)}, {vr(VF+2*n,2)}")
        for n in range(4):
            it.append(f"v_cvt_pk_bf16_f32 v{OUT+n}, v{AC+2*n}, v{AC+2*n+1}")
        it.append((f"buffer_store_dwordx4 {vr(OUT,4)}, v{vKVS}, {srd(S_WS)}, {'0' if u == 0 else f's{79+u}'} offen sc1", 'kvst'))
        return it
    a.run(kv_reads(0) + kv_reads(1))
    if WP & 1:
        a.run(P.w_step())
    for u in range(10):
        a(f"v_alignbit_b32 v{CF+u}, v{CF+u}, v{CF+u}, 16")
    for u in range(5):
        a.run(merge(kv_compute(u), kv_reads(u + 2) if u < 3 else []))
    a.run([stamp('kv_done')])
    if not cfg.get('wBpre', 1):
        helper()
    for _ in range(cfg.get('wB0', 1)):
        a.run(P.w_step())
    a.run(P.kfix(NC, KL) + P.x_off(NC))
    a.wait('kvst')
    a.run([P.flag_wg(sFJ, 'fk') if KW == 1 else P.flag(sFJ), stamp('barV')] + P.zflag_addr(sFJ, 0))
    a(f"global_load_ushort v{vB2}, v{vX1}, {sp(P_B2)}")
    while P.nxt < cfg.get('pollB', 7):
        a.run(P.w_step())
    a(P.poll_issue(vP1, 16, KW, 204))
    for _ in range(cfg.get('pollgapB', 0)):
        a.run(P.w_step())
    a.run([P.poll_check('fk', vP1, 16, KW, 204), stamp('fk_ok')])
    XL = (192, 196, 200)
    a.run(P.x_loads(NC, XL))
    qa = lambda p: f"v{(vQO, vQO1, vQO, vQO1, vQO2)[p]}"
    qld = [f"global_load_dwordx4 {vr(QR+4*p,4)}, {qa(p)}, {sp(P_Q)} offset:{64*p}" for p in range(5)]
    for _ in range(cfg.get('xgapB', 1)):
        a.run(P.w_step())
    a.run(P.x_writes(NC, XL))
    a.wait('xw')
    a("s_barrier")
    a.run([stamp('barC')])

    for c in range(3):
        a.run(P.c_read(1, c))
    while P.nxt < NR:
        a.run(P.w_step())
    S = P.conv_sched(NT, 3, cfg.get('ccap', 2.3), cfg.get('sg0', 100))
    cS, cE = cfg.get('cS', 0), cfg.get('cE', NMF - 36)
    nst = 12 - P.nxt
    per = (cE - cS) / (nst + 1)
    for r in range(nst):
        p0 = cS + r * per
        it = P.w_step()
        for k, x in enumerate(it[:9]):
            S.add('wd', [x], int(p0 + k * per / 14), int(p0 + (k + 1) * per / 14))
        p1 = p0 + per
        S.add('w', it[9:11], int(p1 - per / 5), int(p1) - 1)
        S.add('w', it[11:12], int(p1), int(p1))
        for k, x in enumerate(it[12:]):
            S.add('w', [x], int(p1 + k * per / 4), int(p1 + k * per / 4))
    S.add('wd', P.w_step(), int(cE - per), int(cE) - 1, pace=per / 11)
    tail = []
    while P.drn < 12:
        tail += P.w_step()
    S.add('wd', tail, cE, None, pace=(NMF - cE) / len(tail))
    vUL = 10
    uset = [f"s_mul_i32 s{sT0}, s{sDT}, 120",
            f"s_mul_i32 s{sT1}, s{sW}, 6",
            f"s_add_u32 s{sT0}, s{sT0}, s{sT1}",
            f"v_mul_u32_u24 v{vT}, 43, v0",
            f"v_lshrrev_b32 v{vT}, 8, v{vT}",
            f"v_mul_u32_u24 v{vT}, 18, v{vT}",
            f"v_add3_u32 v{vP0}, s{sT0}, v0, v{vT}",
            f"v_mul_u32_u24 v{vP0}, {FSU}, v{vP0}",
            f"v_add_u32 v{vP0}, {WS_FU}, v{vP0}",
            f"s_mul_i32 s{sT0}, s{sDT}, {5*48}",
            f"s_lshl1_add_u32 s{sT0}, s{sT1}, s{sT0}",
            f"s_lshl_b32 s{sT0}, s{sT0}, 10",
            f"s_add_u32 s{sT0}, s{sT0}, {WS_U}",
            f"v_add_u32 v{vUL+4}, s{sT0}, v1",
            f"s_mul_i32 s{sT0}, s{sSP}, {96*1024}",
            f"v_add_u32 v{vUL}, s{sT0}, v{vUL+4}",
            f"s_sub_u32 s{sT0}, {96*1024}, s{sT0}",
            f"v_add_u32 v{vUL+2}, s{sT0}, v{vUL+4}",
            f"v_add_u32 v{vUL+1}, {48*1024}, v{vUL}",
            f"v_add_u32 v{vUL+3}, {48*1024}, v{vUL+2}",
            f"v_add_u32 v{vUL+4}, {192*1024}, v{vUL+4}"]
    S.add('set', uset, 40, NMF - 14)
    for k, x in enumerate(qld):
        S.add('w', [x], cE + 5 * k, cE + 5 * k)
    pU = NMF - cfg.get('pU0', 4)
    S.add('set', [P.poll_issue(vP0, 30)], pU, pU)
    P.conv_run(S, NT, False)

    NB2, GR2, UE = cfg.get('nb2', 16), cfg.get('grp2', 2), cfg.get('uearly', 8)
    UBUF = ([ar(192 + 4*i, 4) for i in range(16)] + [vr(92 + 4*i, 4) for i in range(4)])[:NB2]
    AC2, OWN, RD2, RD4 = (108, 120), 132, 172, 208
    GQ, ZL, ZRg, ZU = 228, 64, 76, 88
    vZG, vZLW, vZT, vOG, vR2R, vR2W, vUM = 20, 21, 22, 28, 33, 25, 220
    vR2S, vR2X, PDZ, vP2 = 23, 30, 226, 225
    opol = cfg.get('opol', '')
    g2set = [f"v_add_u32 v{vUM+m}, {20*48*1024}, v{vUL+m}" for m in range(5)]
    g2set += [f"v_add_u32 v{vP0}, {20*24*FSU}, v{vP0}",
              f"v_lshrrev_b32 v{vT}, 3, v0",
              f"v_lshl_add_u32 v{vT}, s{sW}, 3, v{vT}",
              f"v_and_b32 v{vT2}, 7, v0",
              f"v_lshlrev_b32 v{vT2}, 4, v{vT2}",
              f"v_lshl_add_u32 v{vZG}, v{vT}, 12, v{vT2}",
              f"v_mul_u32_u24 v{vT}, {PZ}, v{vT}",
              f"v_add_u32 v{vT}, v{vT}, v{vT2}",
              f"v_add_u32 v{vZLW}, {L_ZI}, v{vT}",
              f"s_mul_i32 s{sT0}, s{sDT}, {160*4096}",
              f"s_lshl_b32 s{sT1}, s{sST}, 7",
              f"s_add_u32 s{sT0}, s{sT0}, s{sT1}",
              f"s_add_u32 s{sT0}, s{sT0}, {WS_Z}",
              f"s_lshl_b32 s{sT1}, s{sSP}, 17",
              f"s_add_u32 s80, s{sT0}, s{sT1}",
              f"s_sub_u32 s81, s{sT0}, s{sT1}",
              f"s_add_u32 s81, s81, {32*4096}",
              f"s_add_u32 s82, s80, {64*4096}",
              f"s_add_u32 s83, s81, {64*4096}",
              f"s_add_u32 s{sX0}, s{sT0}, {128*4096}",
              f"v_lshl_add_u32 v{vT}, v{vH}, 3, v{vR}",
              f"v_mul_u32_u24 v{vT}, {PZ}, v{vT}",
              f"s_lshl_b32 s{sT0}, s{sW}, 5",
              f"s_add_u32 s{sT0}, s{sT0}, {L_ZI}",
              f"v_lshl_add_u32 v{vZT}, v{vC}, 3, s{sT0}",
              f"v_add_u32 v{vZT}, v{vZT}, v{vT}"]
    for jn in range(1, 4):
        g2set += [f"s_xor_b32 s{sT0}, s{sW}, {jn}",
                  f"s_mul_i32 s{sT0}, s{sT0}, 3072",
                  f"s_add_u32 s{sT0}, s{sT0}, {(jn-1)*1024}",
                  f"v_add_u32 v{vR2W+jn-1}, s{sT0}, v1",
                  f"v_add_u32 v{vR2X+jn-1}, {L_RED}, v{vR2W+jn-1}"]
    g2set += [f"s_mul_i32 s{sT0}, s{sW}, 3072",
              f"v_add_u32 v{vR2R}, s{sT0}, v1",
              f"v_add_u32 v{vR2S}, {L_RED}, v{vR2R}",
              f"s_lshl3_add_u32 s{sT0}, s{sDT}, s{sW}",
              f"s_lshl_b32 s{sT0}, s{sT0}, 2",
              f"v_lshl_add_u32 v{vP1}, v{vR}, 4, v{vC}",
              f"v_add_u32 v{vP1}, s{sT0}, v{vP1}",
              f"v_mul_u32_u24 v{vP1}, {FSZ}, v{vP1}",
              f"s_and_b32 s{sT1}, s{sST}, 1",
              f"s_lshl_b32 s{sT1}, s{sT1}, 3",
              f"s_add_u32 s{sT1}, s{sT1}, {WS_FZ}",
              f"v_add_u32 v{vP1}, s{sT1}, v{vP1}",
              f"s_lshl2_add_u32 s{sT0}, s{sDT}, s{sW}",
              f"v_and_b32 v{vT}, 7, v0",
              f"v_lshl_add_u32 v{vP2}, s{sT0}, 3, v{vT}",
              f"v_mul_u32_u24 v{vP2}, {FSZ}, v{vP2}"]
    Z2 = NC == 2 and cfg.get('z2', 1)
    if Z2:
        g2set += [f"s_and_b32 s{sT1}, s{sST}, 3", f"s_lshl_b32 s{sT1}, s{sT1}, 2", f"s_add_u32 s{sT1}, s{sT1}, {WS_FZ + 128*FSZ + 16}",
                  f"v_add_u32 v{vP2}, s{sT1}, v{vP2}"]
    else:
        g2set += [f"v_add_u32 v{vP2}, s{sT1}, v{vP2}", f"v_cmp_lt_u32 vcc, 7, v0", "s_nop 1", f"v_cndmask_b32 v{vP1}, v{vP1}, v{vP2}, vcc"]
    nz0 = 16 if NC == 3 else 8
    nz1 = 16 if NC == 2 and not Z2 else 8
    zso = (80, 81, 82, 83, sX0)
    ptile = ((0, 1), (2, 3), (5, 6), (7, 8), (4, 9))

    def u_load(n):
        m, j = divmod(n, 12)
        return f"buffer_load_dwordx4 {UBUF[n % NB2]}, v{vUL+m if m < 5 else vUM+m-5}, {srd(S_WS)}, s{TK+j} offen sc1"

    def mf2(n, jn):
        m, j = divmod(n, 12)
        d = vr(OWN + 4 * m, 4) if jn == 0 else vr(AC2[m & 1] + 4 * (jn - 1), 4)
        return f"v_mfma_f32_16x16x32_bf16 {d}, {UBUF[n % NB2]}, {ar(16*j+4*jn,4)}, {'0' if j == 0 else d}"
    rd = lambda m, s: [f"ds_read_b128 {vr(RD2+12*s+4*k,4)}, v{vR2R if m < 5 else vR2S} offset:{(m % 5)*12288 + k*1024}" for k in range(3)]
    ad = lambda m, s: [f"v_add_f32 v{OWN+4*m+r}, v{OWN+4*m+r}, v{RD2+12*s+4*k+r}" for k in range(3) for r in range(4)]
    wr = lambda m: [(f"ds_write_b128 v{(vR2W if m < 5 else vR2X)+jn-1}, {vr(AC2[m & 1]+4*(jn-1),4)} offset:{(m % 5)*12288}", f'r2w{m}') for jn in range(1, 4)]
    z_ld = lambda ps: [f"buffer_load_dwordx4 {vr(ZL+4*i,4)}, v{vZG}, {srd(S_WS)}, s{zso[p]} offen sc1" for i, p in enumerate(ps)]
    z_wr = lambda ps: [f"ds_write_b128 v{vZLW}, {vr(ZL+4*i,4)} offset:{p*32*PZ}" for i, p in enumerate(ps)]
    z_rd = lambda p: [f"ds_read_b64_tr_b16 {vr(ZRg+4*(p % 3)+2*hh,2)}, v{vZT} offset:{(32*p + 4*hh)*PZ}" for hh in range(2)]

    def gq(p):
        it = []
        pp = GQ + 8 * (p % 3)
        for k in range(4):
            it += [f"v_lshlrev_b32 v{pp+2*k}, 16, v{QR+4*p+k}", f"v_and_b32 v{pp+2*k+1}, 0xffff0000, v{QR+4*p+k}",
                   f"v_mul_f32 v{pp+2*k}, v{pp+2*k}, v{vGG}", f"v_mul_f32 v{pp+2*k+1}, v{pp+2*k+1}, v{vGG}"]
        return it
    sc = lambda m: [f"v_fma_f32 v{OWN+4*m+k}, v{OWN+4*m+k}, v{vOG}, v{vB2}" for k in range(4)]

    def fin(p, hh):
        it = []
        o = OWN + 4 * ptile[p][hh]
        for k in range(2):
            zu, z, g = ZU + 2 * k, ZRg + 4 * (p % 3) + 2 * hh + k, GQ + 8 * (p % 3) + 4 * hh + 2 * k
            it += [f"v_lshlrev_b32 v{zu}, 16, v{z}", f"v_and_b32 v{zu+1}, 0xffff0000, v{z}"]
            if (p, hh) == (4, 1):
                it += [f"v_fma_f32 v{g}, v{g}, v{zu}, v{vB2}", f"v_fma_f32 v{g+1}, v{g+1}, v{zu+1}, v{vB2}"]
            else:
                it += [f"v_fmac_f32 v{o+2*k}, v{g}, v{zu}", f"v_fmac_f32 v{o+2*k+1}, v{g+1}, v{zu+1}",
                       f"v_cvt_pk_bf16_f32 v{QR+4*p+2*hh+k}, v{o+2*k}, v{o+2*k+1}"]
        return it
    ost = lambda p: [f"global_store_dwordx4 {qa(p)}, {vr(QR+4*p,4)}, {sp(P_OUT)} offset:{64*p} {opol}"]
    if cfg.get('dly'):
        a(f"s_sleep {cfg['dly']}")
    a.run([P.poll_check('fu0', vP0, 30), stamp('fu0_ok')])
    for n in range(UE):
        a(u_load(n))
    a(f"buffer_load_dword v{vGG}, v{vGA}, {srd(S_WS)}, 0 offen sc1")
    a.run(g2set)
    mf, pos = [], {}
    for q in range(120 // GR2):
        ns = range(q * GR2, (q + 1) * GR2)
        for jn in ((1, 2, 3, 0) if ns[0] < 108 else (1, 2, 3)):
            for n in ns:
                pos.setdefault(n, len(mf))
                mf.append(mf2(n, jn))
    pown = len(mf)
    mf += [mf2(n, 0) for n in range(108, 120)]
    S = Sched(mf)
    for n in range(120):
        S.reserve(pos[n] - 1)
    UC = cfg.get('pUC', 210)
    k = 0
    for n in range(UE, 120):
        free = 4 * GR2 * ((n - NB2) // GR2 + 1) if n >= NB2 else 0
        p = max(free, 4 * (n - NB2 + GR2) + 1, 2 * k)
        if n >= 60:
            p = max(p, min(UC + 1 + 2 * (n - 60), 4 * n - 2 if UC < 236 else max(239, 4 * (n - UE))))
        if n == 60:
            S.add('u', [P.poll_check('fu1', vP0, 30), stamp('fu1_ok')], p, p)
            pZ0 = p
        S.add('u', [u_load(n)], p, p)
        k += 1
    lastu = p
    S.add('st', [stamp('g2first')], 0, 0)
    S.add('st', [stamp('g2mid')], 240, 240)
    pF = cfg.get('pF', 6)
    S.add('z', [('wait', 'zst2' if NC == 3 else 'zst1'), stamp('barF'), P.flag(sFJ)], pF, pF + 1)
    zB = (0, 1) if NC == 2 else (0, 1, 4)
    zA = (2, 3, 4) if NC == 2 and not Z2 else (2, 3)
    UP = UC - cfg.get('pUP', 44)
    S.add('z', [P.poll_issue(vP0, 30), P.poll_issue(vP1, nz0, 2, PDZ)], UP, UP + 1)
    S.add('z', [P.poll_check('fz0', vP1, nz0, 2, PDZ), stamp('fz0_ok')] + z_ld(zB) + [f"v_add_u32 v{vP1}, {128*FSZ}, v{vP1}"], pZ0 + 3, pZ0 + 14, pace=2)
    ZP1, ZC1 = cfg.get('zp1', [340, 380])
    S.add('z', [P.poll_issue(vP1, nz1, 2, PDZ)], ZP1, ZP1)
    S.add('z', [P.poll_check('fz1', vP1, nz1, 2, PDZ), stamp('fz1_ok')] + z_ld(zA), ZC1, ZC1 + 8, pace=2)
    if Z2:
        ZP2, ZC2 = cfg.get('zp2', [400, 434])
        S.add('z2', [P.poll_issue(vP2, 8)], ZP2, ZP2)
        S.add('z2', [P.poll_check('fz2', vP2, 8), stamp('fz2_ok'),
                    f"buffer_load_dwordx4 {vr(ZL+8,4)}, v{vZG}, {srd(S_WS)}, s{zso[4]} offen sc1"], ZC2, ZC2 + 1)
    S.add('fin', [f"v_lshlrev_b32 v{vB2}, 16, v{vB2}", f"v_sub_f32 v{vOG}, 1.0, v{vGG}", f"v_mul_f32 v{vB2}, v{vB2}, v{vOG}"] + gq(0) + gq(1) + gq(2), 44, 200)
    OS = cfg.get('osat', 450)
    bars = cfg.get('bars', [5, 7, 8])
    zlate = cfg.get('zlate', 0)
    flat = lambda l: [x for y in l for x in y]
    done = 0
    tailz = []
    for m in range(9):
        p = 48 * (m + 1)
        if m == 5:
            S.add('red', z_wr(zB), p - 14, p - 1, pace=4)
        if m == 8 and not zlate:
            S.add('red', z_wr(zA), p - 14, p - 1, pace=4)
        S.add('red', wr(m), p, p + 8, pace=3)
        if m in bars:
            S.add('red', [('wait', f'r2w{m}'), "s_barrier"], p + 11, p + 12)
            ms = list(range(done, m + 1))
            done = m + 1
            dl = None if m == 8 else 48 * (bars[bars.index(m) + 1] + 1) + 10
            it = []
            if m == 5:
                it += z_rd(0) + z_rd(1)
            if m == 8 and not zlate:
                it += z_rd(2) + z_rd(3) + ([] if Z2 else z_rd(4))
            it += flat(rd(t, t % 3) for t in ms[:3])
            if m == 8 and not zlate:
                it += ([] if Z2 else fin(4, 0) + fin(4, 1)) + fin(2, 0)
            if m == 5 and ms[0] > 1:
                it += fin(0, 0) + fin(0, 1)
            for i, t in enumerate(ms):
                it += ad(t, t % 3) + (rd(ms[i + 3], t % 3) if i + 3 < len(ms) else []) + sc(t)
            if m == 5:
                it += (fin(0, 0) + fin(0, 1) if ms[0] <= 1 else []) + fin(1, 0) + fin(1, 1) + gq(3) + gq(4)
                dl = min(dl, OS - 1)
                S.add('os', ost(0) + ost(1), OS, OS + 4, pace=3)
            if m == 8:
                last = fin(2, 1) + ost(2) + fin(3, 0) + fin(3, 1) + ost(3)
                if zlate:
                    tailz = fin(2, 0) + last + fin(4, 0) + fin(4, 1)
                else:
                    it += last
            S.add('fin', it, p + 13, dl)
    if zlate:
        S.add('red', z_wr(zA), pown - 8, pown, pace=3)
    S.add('red', wr(9), pown + 1, pown + 6, pace=2)
    d2 = cfg.get('d2', '')
    post = []
    if 'z' in d2:
        a.run([x[0] for x in S.th['z'][:3]])
        post += [x[0] for x in S.th['z'][3:] + S.th.get('z2', [])]; S.th['z'] = []; S.th['z2'] = []
        S.th['u'] = [x for x in S.th['u'] if not callable(x[0])]
    for nm in ('red', 'fin', 'os'):
        if nm[0] in d2:
            post += [x[0] for x in S.th[nm]]; S.th[nm] = []
    its = S.items(keep=('fin',))
    if 'u' in d2:
        its = [x for x in its if not txt_of(x).startswith('buffer_load_dwordx4 a[')]
    if 'b' in d2:
        its = [x for x in its if txt_of(x) != 's_barrier']
    if 'w' in d2:
        its = [x for x in its if not (txt_of(x).startswith('ds_write_b128') and x[1:] != ('r2w9',)) and not (txt_of(x) == 'wait' and x[1].startswith('r2w'))]
    a.run(its)
    a.run([stamp('g2x')] + post)
    P.info['g2'] = (S.over, S.under, len(S.left.get('fin', [])))
    a.run([stamp('g2mfma')])
    left = S.left.get('fin', [])
    if Z2:
        assert not zlate
        a.run(left)
        left = []
        a(f"ds_write_b128 v{vZLW}, {vr(ZL+8,4)} offset:{4*32*PZ}", tok='zw2')
        a.wait('zw2')
        tailz = fin(4, 0) + fin(4, 1)
    a.wait('r2w9')
    a("s_barrier")
    if Z2:
        a.run(z_rd(4))
    for k in range(3):
        a(f"ds_read_b128 {vr(RD4+4*k,4)}, v{vR2S} offset:{4*12288 + k*1024}")
    if zlate:
        a.run(z_rd(2) + z_rd(3) + z_rd(4))
    a.run(left + tailz)
    for k in range(3):
        for hh in range(2):
            a(f"v_pk_add_f32 {vr(OWN+36+2*hh,2)}, {vr(OWN+36+2*hh,2)}, {vr(RD4+4*k+2*hh,2)}")
    g = GQ + 8 + 4
    for hh in range(2):
        a(f"v_pk_fma_f32 {vr(g+2*hh,2)}, {vr(OWN+36+2*hh,2)}, {vr(vOG,2)}, {vr(g+2*hh,2)} op_sel_hi:[1,0,1]")
    for hh in range(2):
        a(f"v_cvt_pk_bf16_f32 v{QR+18+hh}, v{g+2*hh}, v{g+2*hh+1}")
    a.run(ost(4))
    P.finish()
    a("s_endpgm")
    return P


def gen(cfg):
    h = Asm()
    h("s_load_dwordx16 s[36:51], s[0:1], 0")
    h("s_load_dwordx16 s[52:67], s[0:1], 56")
    if cfg.get('stamps') or cfg.get('amp'):
        h("s_memrealtime s[96:97]")
    h("s_cmp_ge_u32 s2, 256")
    h("s_cbranch_scc1 L_end")
    h("v_lshrrev_b32 v1, 6, v0")
    h("v_and_b32 v0, 63, v0")
    h(f"v_readfirstlane_b32 s{sW}, v1")
    rb = cfg.get('rolebit', 0)
    h(f"s_lshr_b32 s{sID}, s2, 3")
    if rb == 0:
        h(f"s_bfe_u32 s{sXQ}, s2, 0x20001")
    elif rb == 2:
        h(f"s_and_b32 s{sXQ}, s2, 3")
    else:
        h(f"s_bfe_u32 s{sXQ}, s2, 0x10002")
        h(f"s_and_b32 s{sT0}, s2, 1")
        h(f"s_lshl1_add_u32 s{sXQ}, s{sXQ}, s{sT0}")
    h(f"s_lshl_b32 s{sJ}, s{sXQ}, 5")
    h(f"s_add_u32 s{sJ}, s{sJ}, s{sID}")
    lay = cfg.get('lay', 'B')
    if lay == 'A':
        h(f"s_bitcmp1_b32 s2, {rb}")
        h("s_cbranch_scc1 L_B")
    else:
        h(f"s_bitcmp0_b32 s2, {rb}")
        h("s_cbranch_scc1 L_A")
    A, B = prog_A(cfg), prog_B(cfg)
    ref = open(f"cdna_kernels/{NAME}.s.ref").read().split('\n')
    head = [l for l in ref if l.startswith(';') and '@launch' not in l and 'Override' not in l and 'grid=ceil' not in l]
    txt = '\n'.join(head) + f"\n; @launch grid=(256,1,1) block=(256,1,1) lds={L_END}\n"
    txt += f""".amdgcn_target "amdgcn-amd-amdhsa--gfx950"
.text
.globl {NAME}_kernel
.p2align 8
.type {NAME}_kernel,@function
{NAME}_kernel:
"""
    if lay == 'A':
        txt += h.text() + '\n'.join(A.a.out[:A.split]) + '\n' + B.a.text() + ".p2align 7\n" + '\n'.join(A.a.out[A.split:]) + "\nL_end:\n    s_endpgm\n"
    else:
        txt += h.text() + B.a.text() + ".p2align 7\nL_A:\n" + '\n'.join(A.a.out[:A.split-1] + A.a.out[A.split:]) + "\nL_end:\n    s_endpgm\n"
    txt += f""".section .rodata,"a"
.p2align 6
.amdhsa_kernel {NAME}_kernel
  .amdhsa_next_free_vgpr 512
  .amdhsa_next_free_sgpr 102
  .amdhsa_accum_offset 256
  .amdhsa_group_segment_fixed_size 0
  .amdhsa_kernarg_size 120
  .amdhsa_user_sgpr_count 2
  .amdhsa_user_sgpr_kernarg_segment_ptr 1
  .amdhsa_system_sgpr_workgroup_id_x 1
  .amdhsa_float_denorm_mode_32 3
.end_amdhsa_kernel
"""
    return txt, dict(n_ins=(A.a.n_ins, B.a.n_ins), n_nop=(A.a.n_nop, B.a.n_nop), stamps=B.names, stampsA=A.names,
                     rolebit=rb, sched=(A.info, B.info))


if __name__ == "__main__":
    import json
    out = sys.argv[1]
    cfg = json.loads(sys.argv[2]) if len(sys.argv) > 2 else {}
    txt, info = gen(cfg)
    open(out, 'w').write(txt)
    print(out, info)


def dmap(T, i):
    dt, m = divmod(T, 5)
    r, g = dt >> 2, dt & 3
    P, hh = (2 * r + (m >> 1), m & 1) if m < 4 else (4, r)
    return 160 * g + 32 * P + 8 * (i >> 2) + 4 * hh + (i & 3)
```

```python
import sys
from asmlib import Asm, merge, Sched

NAME = "gated_mix__ssm_conv_h3__mixer_token_mlp__prompt"

WS_H, WS_U, WS_KV, WS_Z, WS_G = 0x0, 0x280000, 0x480000, 0x700000, 0x980000
WS_F1, WS_FK, WS_FU, WS_FZ, WS_EP, WS_DBG = 0x990000, 0x998000, 0x9A0000, 0x9B0000, 0x9C0000, 0x9D0000
WS_SIZE = 0xA10000
OOB = 0x7F000000
TAGC = 0x9E3779B9

NR = 4
L_RED = 65536
PL = 1344
L_LN = 32768
PK = 704
L_KI = L_RED
L_VI = L_RED + 25600
L_ZSTG = L_RED + 4 * 12288
L_CK = L_RED + 61440
KP, KPAD = 4224, 96
L_CX = L_CK + 3 * KP
XP, XPAD = 4608, 512
L_CAR = L_CX + 3 * XP
L_END = L_CAR + 1600
L_ZI = L_CK
PZ = 144

S_WS, S_K, S_V, S_W, S_SSM = 4, 8, 12, 16, 24
P_Q, P_SH, P_D, P_B1, P_B2, P_GW, P_OUT = 36, 42, 46, 54, 58, 60, 62
TK = 68
sW, sXQ, sID, sA, sB, sJ, sSP, sTAG, sRING, sC0, sFI, sFJ = range(84, 96)
sT0, sT1, sT2, sT3 = 32, 33, 34, 35
sU0, sU1, sU2, sU3 = 20, 21, 22, 23
sX0, sX1, sX2 = 31, 48, 49
sC2 = 39
sCNT = 3
vH, vI, vR, vC, vT, vT2 = 37, 38, 39, 40, 42, 43
VW, VT = 2, 6
vPD = 18
vCA, vCB, vCA2, vCB2 = 20, 21, 22, 23
vCRW, vCRW2, vCRR, vCRR2, vZW, vZR, vZS, vZS2, vCW = 25, 26, 27, 28, 29, 30, 31, 32, 33
vP0, vP1, vTAG = 35, 24, 34
CA, CB, CACC, CY, NSL = 64, 128, 192, 216, 6
CH, CR, ZO = 240, 246, 216
vZF = 252
C20 = 56


def srd(n):
    return f"s[{n}:{n+3}]"


def sp(n):
    return f"s[{n}:{n+1}]"


def vr(n, k):
    return f"v[{n}:{n+k-1}]"


def ar(n, k):
    return f"a[{n}:{n+k-1}]"


def txt_of(x):
    return x if isinstance(x, str) else (x[0] if isinstance(x, tuple) else '')


class Prog:
    def __init__(self, role, cfg):
        self.a = Asm()
        self.role = role
        self.cfg = cfg
        self.stamps = cfg.get('stamps', False)
        self.names = []
        self.npoll = 0
        self.nxt = self.drn = 0
        self.nstep = 16 if role == 'A' else 12
        self.info = {}

    def stamp(self, name):
        def f(a):
            st = self.stamps
            amp = self.cfg.get('amp')
            if amp and amp == [self.role, name]:
                a("s_memrealtime s[98:99]")
            if not st or (st != 1 and name not in st and name not in ('start', 'end')) or (st == 1 and name[0] == 'w' and name != 'w8'):
                return
            k = len(self.names)
            a("s_memtime s[98:99]")
            a("s_memrealtime s[100:101]")
            a(f"v_writelane_b32 v255, s98, {k}")
            a(f"v_writelane_b32 v255, s100, {32+k}")
            self.names.append(name)
        f.cost = 0
        return f

    def weight_src(self, pitch, sbase):
        it = [f"v_lshrrev_b32 v{vT}, 3, v0",
              f"v_and_b32 v{vT2}, 6, v{vT}",
              f"v_xor_b32 v{vT2}, v{vT2}, v0",
              f"v_and_b32 v{vT2}, 7, v{vT2}",
              f"v_mul_u32_u24 v{vT}, {pitch}, v{vT}",
              f"v_lshl_add_u32 v{vT}, v{vT2}, 4, v{vT}",
              f"v_add_u32 v{VW}, s{sbase}, v{vT}"]
        for i in range(1, 4):
            it.append(f"v_add_u32 v{VW+i}, {8*pitch-1024}, v{VW+i-1}")
        return it

    def weight_dst(self, xorw):
        it = [f"v_lshrrev_b32 v{vT}, 2, v0",
              f"v_lshlrev_b32 v{vT}, 7, v{vT}",
              f"v_lshl_add_u32 v{vT}, v{vC}, 3, v{vT}",
              f"v_bfe_u32 v{vT2}, v0, 3, 2"]
        if xorw:
            it.append(f"v_xor_b32 v{vT2}, s{sW}, v{vT2}")
        it += [f"v_lshl_add_u32 v{vT}, v{vT2}, 5, v{vT}",
               f"v_add_u32 v{VT}, s{sRING}, v{vT}"]
        for t in range(1, 4):
            it.append(f"v_xor_b32 v{VT+t}, {t*32}, v{VT}")
        return it

    def w_issue(self, j):
        it = [f"s_mul_i32 s{sU1}, s{TK+j}, {96 if self.role == 'A' else 128}",
              f"s_add_u32 m0, s{sRING}, {(j % NR)*16384}"]
        if j >= NR:
            it.append(('wait', f'wr{j-NR}'))
        for i in range(4):
            it.append((f"buffer_load_dwordx4 v{VW+i}, {srd(S_W)}, s{sU1} offen offset:{i*1024} {self.cfg.get('wpol', '')} lds", f'wd{j}'))
        return it

    def w_drain(self, j):
        it = [('wait', f'wd{j}')]
        for t in range(4):
            for e2 in range(2):
                it.append((f"ds_read_b64_tr_b16 {ar(16*j+4*t+2*e2,2)}, v{VT+t} offset:{(j % NR)*16384 + e2*2048}", f'wr{j}'))
        return it

    def w_step(self):
        it = []
        if self.nxt >= NR or self.nxt == self.nstep:
            it += self.w_drain(self.drn); self.drn += 1
        if self.nxt < self.nstep:
            it += self.w_issue(self.nxt); self.nxt += 1
        return it

    def flag(self, soff):
        return f"s_mov_b64 exec, 1\nbuffer_store_dword v{vTAG}, v0, {srd(S_WS)}, s{soff} offen sc1\ns_mov_b64 exec, -1"

    def flag_wg(self, soff, name):
        def f(a):
            a("s_barrier")
            a(f"s_cmp_lg_u32 s{sW}, 0")
            a(f"s_cbranch_scc1 L_nf_{name}")
            a.begin_cond(name)
            a(self.flag(soff))
            a.end_cond()
            a.label(f"L_nf_{name}")
        return f

    def set_tag(self, v):
        return [f"v_readfirstlane_b32 s{sTAG}, v{v}", f"s_add_u32 s{sTAG}, s{sTAG}, {hex(TAGC)}", f"v_mov_b32 v{vTAG}, s{sTAG}"]

    @staticmethod
    def setexec(n):
        if n == 32:
            return "s_mov_b32 exec_hi, 0"
        if n > 32:
            return f"s_mov_b32 exec_hi, {hex((1 << (n-32)) - 1)}"
        return f"s_mov_b64 exec, {hex((1 << n) - 1)}"

    def poll_load(self, va, wd, vd):
        if wd == 1:
            return f"buffer_load_dword v{vd}, v{va}, {srd(S_WS)}, 0 offen sc1"
        return f"buffer_load_dwordx{wd} {vr(vd,wd)}, v{va}, {srd(S_WS)}, 0 offen sc1"

    def poll_issue(self, va, n=64, wd=1, vd=vPD):
        it = [self.setexec(n)] if n < 64 else []
        it.append(self.poll_load(va, wd, vd))
        if n < 64:
            it.append("s_mov_b64 exec, -1")
        return "\n".join(it)

    def poll_check(self, name, va, n=64, wd=1, vd=vPD):
        name = self.role + name

        def cmp(a):
            if wd == 1:
                a(f"v_cmp_ne_u32 vcc, s{sTAG}, v{vd}")
                return
            a(f"v_xor_b32 v{vd}, s{sTAG}, v{vd}")
            for k in range(1, wd):
                a(f"v_bitop3_b32 v{vd}, v{vd}, v{vd+k}, v{vTAG} bitop3:0xf6")
            a(f"v_cmp_ne_u32 vcc, 0, v{vd}")

        def f(a):
            if n < 64:
                a(self.setexec(n))
            cmp(a)
            a(f"s_mov_b32 s{sCNT}, 0")
            a(f"s_branch L_pk_{name}" if name[1:] in self.cfg.get('nopoll', []) else f"s_cbranch_vccz L_pk_{name}")
            a.label(f"L_pl_{name}")
            a.begin_cond('poll' + name)
            a("s_mov_b64 exec, vcc")
            if self.cfg.get('psleep'):
                a(f"s_sleep {self.cfg['psleep']}")
            a(self.poll_load(va, wd, vd))
            a(f"s_add_u32 s{sCNT}, s{sCNT}, 1")
            a(f"s_cmp_ge_u32 s{sCNT}, 0x40000")
            a(f"s_cbranch_scc1 L_pk_{name}")
            cmp(a)
            a("s_nop 0")
            a(f"s_cbranch_vccnz L_pl_{name}")
            a.end_cond()
            a.label(f"L_pk_{name}")
            a("s_mov_b64 exec, -1")
            if self.stamps:
                a(f"v_writelane_b32 v254, s{sCNT}, {self.npoll}")
                self.npoll += 1
        f.cost = 5
        return f

    def zflag_addr(self, dst, first):
        fsz = self.cfg.get('fsz', 32)
        return [f"s_add_u32 s{dst}, s{sJ}, {first}", f"s_mul_i32 s{dst}, s{dst}, {fsz}",
                f"s_lshl1_add_u32 s{sT0}, s{sT3}, s{sT2}", f"s_lshl2_add_u32 s{dst}, s{sT0}, s{dst}",
                f"s_add_u32 s{dst}, s{dst}, {WS_FZ}"]

    def lanes(self):
        return ["v_lshlrev_b32 v1, 4, v0",
                f"v_lshrrev_b32 v{vH}, 4, v0", f"v_and_b32 v{vI}, 15, v0",
                f"v_bfe_u32 v{vR}, v0, 2, 2", f"v_and_b32 v{vC}, 3, v0",
                f"s_lshr_b32 s{sT2}, s{sW}, 1", f"s_and_b32 s{sT3}, s{sW}, 1",
                f"s_lshl_b32 s{sRING}, s{sW}, 12"]

    def code_prefetch(self, beg, end):
        r = self.role
        return [f"s_getpc_b64 {sp(sU2)}", f"L_pc{r}:",
                f"s_lshl2_add_u32 s{sT2}, s{sID}, s{sW}",
                f"v_lshl_add_u32 v{vT}, s{sT2}, 1, v0",
                f"v_lshlrev_b32 v{vT}, 7, v{vT}",
                f"v_add_u32 v{vT}, {beg}-L_pc{r}, v{vT}",
                f"v_min_u32 v{vT}, {end}-L_pc{r}, v{vT}",
                "s_mov_b64 exec, 3",
                f"global_load_dword v253, v{vT}, {sp(sU2)}",
                "s_mov_b64 exec, -1"]

    def epoch_load(self, v):
        return [f"s_mov_b32 s{sT0}, {WS_EP}", "s_mov_b64 exec, 1",
                f"buffer_load_dword v{v}, v0, {srd(S_WS)}, s{sT0} offen sc1", "s_mov_b64 exec, -1"]

    def conv_setup(self, nch):
        ZR = 68
        it = [f"s_mul_i32 s{sC2}, s{sXQ}, 160",
              f"s_lshl1_add_u32 s{sC0}, s{sID}, s{sC2}",
              f"s_add_u32 s{sC0}, s{sC0}, {64 if self.role == 'A' else 0}",
              f"s_add_u32 s{sC2}, s{sC2}, s{sID}",
              f"s_add_u32 s{sC2}, s{sC2}, 128",
              f"s_lshl_b32 s{sT0}, s{sC0}, 1",
              f"s_load_dword s28, {sp(P_D)}, s{sT0}"]
        if nch == 3:
            it += [f"s_lshr_b32 s{sT1}, s{sC2}, 1", f"s_lshl_b32 s29, s{sT1}, 2", f"s_load_dword s30, {sp(P_D)}, s29"]
        it += [f"s_lshl_b32 s{sX0}, s{sC0}, 12",
               f"s_lshl_b32 s{sT1}, s{sW}, 10",
               f"s_add_u32 s{sX0}, s{sX0}, s{sT1}",
               f"s_add_u32 s{sX1}, s{sX0}, 4096",
               f"s_lshl_b32 s{sX2}, s{sC2}, 12",
               f"s_add_u32 s{sX2}, s{sX2}, s{sT1}"]
        it += [f"v_mov_b32 v{ZR+i}, 0" for i in range(4)]
        it += [f"s_min_u32 s{sT0}, s{sW}, 2",
               f"s_mul_i32 s{sT1}, s{sT0}, {XP}",
               f"s_add_u32 s{sT1}, s{sT1}, {L_CX}",
               f"v_add_u32 v{vT}, s{sT1}, v1",
               f"s_mul_i32 s{sT1}, s{sT0}, {KP}",
               f"s_add_u32 s{sT1}, s{sT1}, {L_CK}",
               f"v_add_u32 v{vT2}, s{sT1}, v1",
               f"s_mul_i32 s{sT1}, s{sT0}, {33*16}",
               f"s_add_u32 s{sT1}, s{sT1}, {L_CAR}",
               f"v_mov_b32 v{vPD}, s{sT1}",
               "s_mov_b32 exec_hi, 0",
               f"ds_write_b128 v{vT}, {vr(ZR,4)}",
               f"s_mov_b64 exec, {hex((1 << (KPAD//16)) - 1)}",
               f"ds_write_b128 v{vT2}, {vr(ZR,4)}",
               "s_mov_b64 exec, 1",
               f"ds_write_b128 v{vPD}, {vr(ZR,4)}",
               "s_mov_b64 exec, -1"]
        it += [f"v_lshl_add_u32 v{vT}, v{vH}, 3, v{vR}",
               f"v_lshlrev_b32 v{vT2}, 2, v{vC}",
               f"v_sub_u32 v{vT2}, v{vT2}, v{vT}",
               f"v_lshlrev_b32 v{vT2}, 3, v{vT2}",
               f"s_mul_i32 s{sT0}, s{sT2}, {KP}",
               f"s_add_u32 s{sT0}, s{sT0}, {L_CK + KPAD + 152 - 32}",
               f"v_add_u32 v{vCA}, s{sT0}, v{vT2}"]
        if nch == 3:
            it.append(f"v_add_u32 v{vCA2}, {L_CK + 2*KP + KPAD + 152 - 32}, v{vT2}")
        it += [f"v_add_lshl_u32 v{vT}, v{vT}, v{vC}, 3",
               f"s_mul_i32 s{sT0}, s{sT2}, {XP}",
               f"s_lshl_b32 s{sT1}, s{sT3}, 7",
               f"s_add_u32 s{sT0}, s{sT0}, s{sT1}",
               f"s_add_u32 s{sT0}, s{sT0}, {L_CX + XPAD - 152}",
               f"v_add_u32 v{vCB}, s{sT0}, v{vT}"]
        if nch == 3:
            it += [f"s_lshl_b32 s{sT0}, s{sW}, 7",
                   f"s_add_u32 s{sT0}, s{sT0}, {L_CX + 2*XP + XPAD - 152 - 256}",
                   f"v_add_u32 v{vCB2}, s{sT0}, v{vT}"]
        return it

    def conv_setup2(self, nch):
        it = [f"s_mul_i32 s{sT0}, s{sT2}, {33*16}",
              f"s_lshl4_add_u32 s{sT0}, s{sT3}, s{sT0}",
              f"s_add_u32 s{sT0}, s{sT0}, {L_CAR}",
              f"v_lshlrev_b32 v{vT}, 2, v{vC}",
              f"v_lshl_add_u32 v{vT2}, v{vR}, 5, v{vT}",
              f"v_add_u32 v{vCRR}, s{sT0}, v{vT2}",
              f"s_add_u32 s{sT0}, s{sT0}, {(16 - 48*32) & 0xffffffff}",
              f"v_lshl_add_u32 v{vCRW}, v0, 5, s{sT0}"]
        if nch == 3:
            it += [f"s_lshl_b32 s{sT0}, s{sW}, 4",
                   f"s_add_u32 s{sT0}, s{sT0}, {L_CAR + 2*33*16}",
                   f"v_lshl_add_u32 v{vT2}, v{vR}, 6, v{vT}",
                   f"v_add_u32 v{vCRR2}, s{sT0}, v{vT2}",
                   f"s_add_u32 s{sT0}, s{sT0}, {(16 - 56*64) & 0xffffffff}",
                   f"v_lshl_add_u32 v{vCRW2}, v0, 6, s{sT0}"]
        it += [f"s_mul_i32 s{sT0}, s{sW}, 3072",
               f"s_add_u32 s{sT0}, s{sT0}, {L_ZSTG}",
               f"v_lshl_add_u32 v{vZW}, v0, 1, s{sT0}",
               f"v_add_u32 v{vZR}, s{sT0}, v1",
               f"v_lshl_add_u32 v{vT}, v{vC}, 1, s{sT0}",
               f"v_lshl_add_u32 v{vZF}, v{vR}, 7, v{vT}",
               f"v_lshrrev_b32 v{vT}, 3, v0",
               f"v_and_b32 v{vT2}, 7, v0",
               f"v_lshlrev_b32 v{vT2}, 4, v{vT2}",
               f"v_lshl_add_u32 v{vZS}, v{vT}, 8, v{vT2}",
               f"s_add_u32 s{sT0}, s{sC0}, s{sT2}",
               f"s_lshl_b32 s{sT0}, s{sT0}, 12",
               f"s_lshl_b32 s{sT1}, s{sT3}, 7",
               f"s_add_u32 s{sT0}, s{sT0}, s{sT1}",
               f"s_add_u32 s{sT0}, s{sT0}, {WS_Z}",
               f"v_add_u32 v{vZS}, s{sT0}, v{vZS}"]
        if nch == 3:
            it += [f"v_lshl_add_u32 v{vZS2}, v{vT}, 9, v{vT2}",
                   f"s_lshl_b32 s{sT0}, s{sC2}, 12",
                   f"s_lshl_b32 s{sT1}, s{sW}, 7",
                   f"s_add_u32 s{sT0}, s{sT0}, s{sT1}",
                   f"s_add_u32 s{sT0}, s{sT0}, {WS_Z}",
                   f"v_add_u32 v{vZS2}, s{sT0}, v{vZS2}"]
        if nch == 3:
            it += [f"s_and_b32 s{sT0}, s{sC2}, 1",
                   f"s_lshl_b32 s{sT0}, s{sT0}, 4",
                   f"s_lshr_b32 s30, s30, s{sT0}",
                   f"s_lshl_b32 s30, s30, 16"]
        fsk = self.cfg.get('fsk', 16)
        it += [f"s_lshl_b32 s{sT0}, s{sT2}, 4", f"s_lshr_b32 s28, s28, s{sT0}", f"s_lshl_b32 s28, s28, 16",
               f"s_lshl_b32 s29, s{sW}, 10",
               f"s_lshr_b32 s{sT0}, s{sXQ}, 1",
               f"s_lshl2_add_u32 s{sT0}, s{sT0}, s{sW}",
               f"v_lshl_add_u32 v{vP1}, s{sT0}, 4, v0",
               f"v_mul_u32_u24 v{vP1}, {fsk}, v{vP1}",
               f"v_add_u32 v{vP1}, {WS_FK}, v{vP1}"]
        return it

    def ssm_loads(self, nch):
        return [(f"s_add_u32 m0, s29, {L_CK + KPAD + cs*KP}\nbuffer_load_dwordx4 v1, {srd(S_SSM)}, s{so} offen {self.cfg.get('spol', '')} lds\ns_add_u32 s{so}, s{so}, {WS_KV}", 'kd')
                for cs, so in enumerate((sX0, sX1, sX2)[:nch])]

    def x_loads(self, nch):
        return [(f"s_add_u32 m0, s29, {L_CX + XPAD + cs*XP}\nbuffer_load_dwordx4 v1, {srd(S_WS)}, s{so} offen sc1 lds", 'xd')
                for cs, so in enumerate((sX0, sX1, sX2)[:nch])]

    def dpatch(self, part):
        it = []
        r0 = C20 if part == 2 and self.role == 'A' else CA
        for r, mk in ((r0 + 1, 0x01000001), (r0 + 3, 0x10000010)):
            it += [f"v_and_b32 v{vT2}, 0xffff0000, v{r}", f"v_lshlrev_b32 v{vT}, 16, v{r}",
                   f"v_add_f32 v{vT2}, s{28 if part == 1 else 30}, v{vT2}",
                   f"s_mov_b32 exec_lo, 0\ns_mov_b32 exec_hi, {hex(mk)}\nv_cvt_pk_bf16_f32 v{r}, v{vT}, v{vT2}\ns_mov_b64 exec, -1"]
        return it

    def conv_pre(self, n):
        it = []
        for c in range(n):
            it += self.c_read(1, c)
        return it + self.dpatch(1)

    tiles = [(1, m, m) for m in range(16)] + [(2, n, 2 * n + 1) for n in range(8)]

    def fa(self, part, c, o=0, k=4):
        if part == 2 and self.role == 'A':
            return vr(C20 + o, k) if c == 0 else ar(4 * c + o, k)
        return vr(CA + 4 * c + o, k)

    def fb(self, part, n, o=0, k=4):
        if part == 2 and self.role == 'A':
            return ar(64 + 4 * n + o, k)
        return vr(CB + 4 * (n if part == 1 else 15 - n) + o, k)

    def c_read(self, part, c):
        va, vb = (vCA, vCB) if part == 1 else (vCA2, vCB2)
        return ([f"ds_read_b64_tr_b16 {self.fa(part,c,2*e2,2)}, v{va} offset:{256*c + 32*(1-e2)}" for e2 in range(2)] +
                [f"ds_read_b64_tr_b16 {self.fb(part,c,2*e2,2)}, v{vb} offset:{256*c + 32*e2}" for e2 in range(2)])

    def tile_epi(self, g):
        part, k, m = self.tiles[g]
        d = CACC + 4 * (g % NSL)
        p = CACC + 4 * ((g - 1) % NSL)
        dp = "wave_shr:1 row_mask:0xf bank_mask:0xf bound_ctrl:0"
        it = []
        for j, dst in ((3, d + 2), (2, d + 1), (1, CY + g)):
            it.append(f"v_add_f32_dpp v{dst}, v{d+j}, v{d+j-1} {dp}")
            if k:
                it.append(f"v_mov_b32_dpp v{d+j}, v{p+j} wave_shl:1 row_mask:0xf bank_mask:0xf")
        if g in (15, 23):
            va, mk = (vCRW, '0xffff0000') if g == 15 else (vCRW2, '0xff000000')
            it.append((f"s_mov_b32 exec_lo, 0\ns_mov_b32 exec_hi, {mk}\nds_write_b128 v{va}, {vr(d,4)}\ns_mov_b64 exec, -1", f'carw{part}'))
        return it

    def stage(self, g):
        it = []
        for t in (g, g + 1):
            j = t % 4
            it.append(f"v_mov_b32 v{CH+t//4}, v{CY+t}" if j == 0 else
                      f"v_mov_b32_dpp v{CH+t//4}, v{CY+t} row_shr:{4*j} row_mask:0x1 bank_mask:{hex(1 << j)}")
        return it + [f"v_cvt_pk_bf16_f32 v{CY+g}, v{CY+g}, v{CY+g+1}",
                     f"ds_write_b16 v{vZW}, v{CY+g} offset:{128*g}", f"ds_write_b16_d16_hi v{vZW}, v{CY+g} offset:{128*(g+1)}"]

    def conv_sched(self, nt, cpre, cap, sg0=0):
        mf, first = [], []
        for g, (part, k, m) in enumerate(self.tiles[:nt]):
            d = vr(CACC + 4 * (g % NSL), 4)
            first.append(len(mf))
            mf += [f"v_mfma_f32_16x16x32_bf16 {d}, {self.fa(part,c)}, {self.fb(part,m-c)}, {'0' if c == 0 else d}"
                   for c in range(m + 1)]
        first += [len(mf)] * 8
        S = Sched(mf, cap)
        LEAD = self.cfg.get('lead', 7)
        for g in range(1, nt):
            S.reserve(first[g] - 1)
        for c in range(cpre, 16):
            S.add('rd', self.c_read(1, c), 0, max(first[c] - LEAD, 0))
        if nt > 16 and self.role == 'A':
            r0 = self.cfg.get('r2A', 60)
            for c in range(16):
                S.add('rd2', self.c_read(2, c), r0, min(first[16 + c // 2] - LEAD, r0 + 12 + 7 * c))
            S.add('dp', self.dpatch(2), r0 + 20, first[16] - 2)
        elif nt > 16:
            for c in range(16):
                dl = max(first[16 + c // 2] - LEAD, first[15] + c + 1) if c else first[15] + 4
                S.add('rd', self.c_read(2, c), first[15] + c + 1, dl)
            S.add('dp', self.dpatch(2), first[15] + 8, first[16] - 2)
        self.sgrel = {}
        for g in range(nt - 1):
            dl = min(first[g + NSL - 1] - 1, first[g + 1] + (self.cfg.get('epl', 24) if g < 12 else 8))
            S.add('ep', self.tile_epi(g), first[g + 1] + 2, dl)
            if g & 1:
                self.sgrel[g - 1] = max(dl + 1, sg0)
        self.first = first
        return S

    def z_fix(self, part):
        qs = (0, 2) if part == 1 else (4,)
        va, st = (vCRR, 32) if part == 1 else (vCRR2, 64)
        it = [f"ds_read2_b32 {vr(CR+q,2)}, v{va} offset0:{1+st*(q % 4)} offset1:{1+st*(q % 4 + 1)}" for q in qs]
        for q in qs:
            it += [f"v_add_f32 v{CH+q}, v{CH+q}, v{CR+q}", f"v_add_f32 v{CH+q+1}, v{CH+q+1}, v{CR+q+1}",
                   f"v_cvt_pk_bf16_f32 v{CH+q}, v{CH+q}, v{CH+q+1}",
                   f"s_mov_b64 exec, 0x7777\nds_write_b16 v{vZF}, v{CH+q} offset:{512*q}\nds_write_b16_d16_hi v{vZF}, v{CH+q} offset:{512*(q+1)}\ns_mov_b64 exec, -1",
                   f"ds_read_b128 {vr(ZO+2*q,4)}, v{vZR} offset:{512*q}"]
        if part == 1:
            st = [(f"buffer_store_dwordx4 {vr(ZO,4)}, v{vZS}, {srd(S_WS)}, 0 offen sc1", 'zst1'),
                  (f"buffer_store_dwordx4 {vr(ZO+4,4)}, v{vZS}, {srd(S_WS)}, 0 offen offset:2048 sc1", 'zst1')]
        else:
            st = [(f"buffer_store_dwordx4 {vr(ZO+8,4)}, v{vZS2}, {srd(S_WS)}, 0 offen sc1", 'zst2')]
        return it, st

    def conv_run(self, S, nt, early, flag1=None, mid=((), (), ())):
        a = self.a
        for g in range(0, nt - 2, 2):
            S.add('sg', self.stage(g), self.sgrel[g], None)
            if early and g == 14:
                f1, s1 = self.z_fix(1)
                p = self.cfg.get('pE1', 146)
                S.th['sg'][-1][2] = p - 1
                S.add('sg', [('wait', 'carw1'), "s_barrier"], p, p + 1)
                S.add('sg', f1[:2], p + 1, p + 3)
                e1, e2 = self.cfg.get('e12', [6, 20])
                S.add('sg', f1[2:], p + e1, p + e1 + 10)
                S.add('sg', s1, p + e2, p + e2 + 2)
        f1in = early and self.cfg.get('f1in', 1)
        its = S.items(keep=('sg',))
        wi = self.cfg.get('wi' + self.role, 0)
        if wi:
            keep, n = [], 0
            for x in its:
                t = txt_of(x)
                if t.startswith('v_mfma'):
                    n += 1
                drop = n > wi and (t.startswith(('v_mfma', 'v_add_f32_dpp', 'v_mov_b32_dpp')) or t.startswith('ds_read_b64_tr_b16 v'))
                if not drop:
                    keep.append(x)
            its = keep
        a.run(its)
        self.info['conv'] = (S.over, S.under, len(S.left.get('sg', [])))
        a.run([self.stamp('conv')])
        if f1in:
            a.run([('wait', 'zst1'), flag1])
        a.run(mid[0])
        a.run(merge(S.left.get('sg', []) or ["s_nop 0"], self.tile_epi(nt - 1)))
        a.run(self.stage(nt - 2))
        a.run(mid[1])
        a.wait('carw2' if nt > 16 else 'carw1')
        a("s_barrier")
        parts = [2] if early else ([1, 2] if nt > 16 else [1])
        fs = [self.z_fix(p) for p in parts]
        if early and not f1in:
            a.run(fs[0][0][:1] + [('wait', 'zst1'), flag1] + fs[0][0][1:])
        else:
            a.run([x for f in fs for x in f[0]])
        a.run(mid[2])
        a.run([x for f in fs for x in f[1]])
        a.run([self.stamp('z_st')])

    def finish(self):
        a = self.a
        a.run([self.stamp('end')])
        amp = self.cfg.get('amp')
        if amp and amp[0] == self.role:
            if self.role == 'A':
                a(f"s_cmp_ge_u32 s{sID}, 30")
                a("s_cbranch_scc1 L_end")
            a("s_memrealtime s[100:101]")
            a("s_sub_u32 s98, s98, s96")
            a("s_mul_i32 s98, s98, 20")
            a("s_min_u32 s98, s98, 200000")
            a("s_add_u32 s98, s98, s100")
            a.label("L_amp")
            a("s_memrealtime s[100:101]")
            a("s_sub_u32 s100, s100, s98")
            a("s_cmp_lt_i32 s100, 0")
            a("s_cbranch_scc1 L_amp")
        if self.stamps:
            if not self.cfg.get('nodrain'):
                a.wait_all()
            a("s_memrealtime s[98:99]")
            a(f"v_writelane_b32 v255, s96, 30")
            a(f"v_writelane_b32 v255, s98, 31")
            for k in range(self.npoll):
                a(f"v_readlane_b32 s{sT0}, v254, {k}")
                a(f"v_writelane_b32 v255, s{sT0}, {24+k}")
            a(f"s_lshl2_add_u32 s{sT0}, s2, s{sW}")
            a(f"s_lshl_b32 s{sT0}, s{sT0}, 8")
            a(f"s_add_u32 s{sT0}, s{sT0}, {WS_DBG}")
            a(f"v_lshlrev_b32 v{vT}, 2, v0")
            a(f"buffer_store_dword v255, v{vT}, {srd(S_WS)}, s{sT0} offen")


KERNARG = {f"s{i}" for i in range(36, 68)}


def prog_A(cfg):
    P = Prog('A', cfg)
    a, stamp = P.a, P.stamp
    a.smem_pending = set(KERNARG) | {'s96', 's97'}
    FS1, FSU, FSZ = cfg.get('fs1', 32), cfg.get('fsu', 64), cfg.get('fsz', 32)
    NB, GR = cfg.get('nb', 14), cfg.get('grp', 2)
    sDG, sFT = sA, sB
    KW, HW = cfg.get('kw', 1), cfg.get('hw', 1)
    NC = 3 if cfg.get('third', 'A') == 'A' else 2
    NT = 8*NC
    if cfg.get('cpf', 1):
        a.run(P.code_prefetch("L_Amain", "L_end"))
    a(f"s_mul_i32 s{sT0}, s{sID}, 52")
    a(f"s_lshr_b32 s{sT0}, s{sT0}, 8")
    a(f"s_mul_i32 s{sT1}, s{sT0}, 5")
    a(f"s_sub_u32 s{sDG}, s{sID}, s{sT1}")
    a(f"s_min_u32 s{sT0}, s{sT0}, 5")
    a(f"s_mul_i32 s{sFT}, s{sXQ}, 6")
    a(f"s_add_u32 s{sFT}, s{sFT}, s{sT0}")
    a(f"s_lshl4_add_u32 s{sT1}, s{sDG}, s{sW}")
    a(f"s_mul_i32 s{sT1}, s{sT1}, 205")
    a(f"s_lshr_b32 s{sT1}, s{sT1}, 10")
    sOWN = 38
    if cfg.get('rkA', 0):
        a(f"s_lshr_b32 s{sCNT}, s{sT0}, 1")
        a(f"s_mul_i32 s{sCNT}, s{sCNT}, {cfg.get('rkA', 0)}")
        a(f"s_add_u32 s{sT1}, s{sT1}, s{sCNT}")
        a(f"s_and_b32 s{sT1}, s{sT1}, 15")
    a(f"s_lshl_b32 s{TK}, s{sT1}, 10")
    a(f"s_add_u32 s{sT1}, s{TK}, 1024")
    a(f"s_and_b32 s{TK+1}, s{sT1}, 0x3c00")
    a(f"s_lshl_b32 s{sRING}, s{sW}, 12")
    a(f"s_mul_i32 s{sT0}, s{sW}, {512*3072}")
    a(f"s_lshl_b32 s{sT1}, s{sFT}, 7")
    a(f"s_add_u32 s{sT0}, s{sT0}, s{sT1}")
    a.run(P.weight_src(3072, sT0))
    a(f"s_mov_b32 s{S_W+2}, 6291456")
    a(f"s_mov_b32 s{S_W+3}, 0x20000")
    a(f"s_cmp_ge_u32 s{sID}, 30")
    a(f"s_cselect_b32 s{sSP}, {OOB}, 0")
    a(f"s_mov_b64 {sp(S_W)}, {sp(50)}")
    a("s_cbranch_scc1 L_Amain")
    a.run(P.w_step())
    a.run([stamp('start')])
    a.run(P.w_step())
    a("s_branch L_Amain")
    P.split = len(a.out)
    a.label("L_Amain")
    a.run(P.lanes())
    if cfg.get('hlpA', 1):
        a(f"s_cmp_lt_u32 s{sID}, 30")
        a("s_cbranch_scc1 L_Anh")
        a.begin_cond('hlp')
        a(f"s_lshl1_add_u32 s{sT0}, s{sXQ}, 3")
        a(f"s_and_b32 s{sT0}, s{sT0}, 7")
        a(f"s_min_u32 s{sT0}, s{sT0}, 5")
        a(f"s_lshr_b32 s{sCNT}, s{sT0}, 1")
        a(f"s_mul_i32 s{sCNT}, s{sCNT}, {cfg.get('rkA', 0)}")
        a(f"s_add_u32 s{sCNT}, s{sCNT}, 15")
        a(f"s_mul_i32 s{sT1}, s{sXQ}, 6")
        a(f"s_add_u32 s{sT0}, s{sT0}, s{sT1}")
        a(f"s_lshl_b32 s{sT0}, s{sT0}, 7")
        a(f"s_mul_i32 s{sT1}, s{sW}, {512*3072}")
        a(f"s_add_u32 s{sU0}, s{sT0}, s{sT1}")
        for i in range(2):
            if i == 0:
                a(f"v_lshrrev_b32 v{vT}, 5, v0")
                a(f"v_lshl_add_u32 v{vT}, s{sDG}, 1, v{vT}")
                a(f"v_and_b32 v{vT2}, 31, v0")
            else:
                a(f"v_mov_b32 v{vT}, 4")
                a(f"v_lshl_add_u32 v{vT2}, s{sDG}, 4, v{vI}")
            a(f"v_add_u32 v{vT}, 1, v{vT}")
            a(f"v_lshl_add_u32 v{vT}, v{vT}, 4, s{sW}")
            a(f"v_mul_u32_u24 v{vT}, 205, v{vT}")
            a(f"v_lshrrev_b32 v{vT}, 10, v{vT}")
            a(f"v_add_u32 v{vT}, s{sCNT}, v{vT}")
            a(f"v_and_b32 v{vT}, 15, v{vT}")
            a(f"v_lshl_add_u32 v{vT}, v{vT}, 5, v{vT2}")
            a(f"v_mul_u32_u24 v{vT}, 3072, v{vT}")
            if i:
                a("s_mov_b64 exec, 0xffff")
            a(f"buffer_load_dword v{250+i}, v{vT}, {srd(S_W)}, s{sU0} offen")
        a("s_mov_b64 exec, -1")
        a.end_cond()
        a.label("L_Anh")
    HA = cfg.get('hlpA2', 0)
    if HA:
        a(f"s_lshl1_add_u32 s{sT0}, s{sXQ}, 3")
        a(f"s_and_b32 s{sT0}, s{sT0}, 7")
        a(f"s_mul_i32 s{sT1}, s{sXQ}, 6")
        a(f"s_add_u32 s{sU0}, s{sT0}, s{sT1}")
        a(f"s_sub_u32 s{sT1}, s{sFT}, s{sU0}")
        a(f"s_add_u32 s{sT1}, s{sT1}, 5")
        a(f"s_cmp_ge_u32 s{sT1}, 6")
        a(f"s_cselect_b32 s{sCNT}, 6, 0")
        a(f"s_sub_u32 s{sT1}, s{sT1}, s{sCNT}")
        a(f"s_lshl_b32 s{sU0}, s{sU0}, 7")
        a(f"s_cmp_ge_u32 s{sT1}, 5")
        a(f"s_cselect_b32 s{sU0}, {OOB}, s{sU0}")
        a(f"s_cmp_ge_u32 s{sT0}, 6")
        a(f"s_cselect_b32 s{sU0}, {OOB}, s{sU0}")
        a(f"s_or_b32 s{sU0}, s{sU0}, s{sSP}")
        a(f"s_lshr_b32 s{sT0}, s{sT0}, 1")
        a(f"s_mul_i32 s{sT0}, s{sT0}, {cfg.get('rkA', 0)}")
        a(f"s_add_u32 s{sCNT}, s{sDG}, 1")
        a(f"s_lshl4_add_u32 s{sCNT}, s{sCNT}, s{sW}")
        a(f"s_mul_i32 s{sCNT}, s{sCNT}, 205")
        a(f"s_lshr_b32 s{sCNT}, s{sCNT}, 10")
        a(f"s_add_u32 s{sT0}, s{sT0}, s{sCNT}")
        a(f"s_add_u32 s{sT0}, s{sT0}, 14")
        a(f"s_and_b32 s{sT0}, s{sT0}, 15")
        a(f"s_lshl4_add_u32 s{sT0}, s{sW}, s{sT0}")
        a(f"s_lshl_b32 s{sT0}, s{sT0}, 5")
        a(f"s_mul_i32 s{sT1}, s{sT1}, {HA}")
        a(f"s_add_u32 s{sT0}, s{sT0}, s{sT1}")
        a(f"s_add_u32 s{sT0}, s{sT0}, {32 - 5*HA}")
        a(f"v_add_u32 v{vT}, s{sT0}, v0")
        a(f"v_mul_u32_u24 v{vT}, 3072, v{vT}")
        a(f"s_mov_b64 exec, {hex((1 << HA) - 1)}")
        a(f"buffer_load_dword v249, v{vT}, {srd(S_W)}, s{sU0} offen")
        a("s_mov_b64 exec, -1")
    for (s, n) in ((S_WS, WS_SIZE), (S_SSM, 2621440)):
        a(f"s_mov_b32 s{s+2}, {n}")
        a(f"s_mov_b32 s{s+3}, 0x20000")
    for j in range(2, 16):
        a(f"s_add_u32 s{sT1}, s{TK+j-1}, 1024")
        a(f"s_and_b32 s{TK+j}, s{sT1}, 0x3c00")
    a(f"s_mov_b64 {sp(S_WS)}, {sp(66)}")
    a(f"s_mov_b64 {sp(S_SSM)}, {sp(44)}")
    a.run(P.weight_dst(False))
    a.run(P.zflag_addr(sFJ, 128))
    a.run(P.conv_setup(NC))
    vHL, vRW, vRR, vUS, vEP, vX0 = 10, 44, 47, 48, 49, 50
    BL = 54
    g1set = [f"s_mul_i32 s{sOWN}, s{sFT}, {cfg.get('roA', 0)}", f"s_add_u32 s{sOWN}, s{sOWN}, s{sW}", f"s_and_b32 s{sOWN}, s{sOWN}, 3",
             f"s_lshl_b32 s{sCNT}, s{sDG}, 18", f"s_lshl_b32 s{sT1}, s{sW}, 14", f"s_add_u32 s{sCNT}, s{sCNT}, s{sT1}",
             f"s_add_u32 s{sCNT}, s{sCNT}, s{sSP}"]
    for i in range(4):
        g1set += [f"s_add_u32 s{sT0}, s{sOWN}, {i+1}",
                  f"s_and_b32 s{sT0}, s{sT0}, 3",
                  f"s_mul_i32 s{sT1}, s{sT0}, 12288",
                  f"s_add_u32 s{sT1}, s{sT1}, {L_RED + (i*4096 if i < 3 else 0)}",
                  f"v_add_u32 v{vRW+i}, s{sT1}, v1",
                  f"s_lshl_b32 s{sT0}, s{sT0}, 16",
                  f"s_add_u32 s{sT0}, s{sT0}, s{sCNT}",
                  f"v_add_u32 v{vHL+i}, s{sT0}, v1",
                  f"v_add_u32 v{vHL+4+i}, {20*65536}, v{vHL+i}"]
    g1set += [f"v_lshl_add_u32 v{vP0}, s{sW}, 5, v0",
              f"v_mul_u32_u24 v{vP0}, {FS1}, v{vP0}",
              f"v_add_u32 v{vP0}, {WS_F1}, v{vP0}",
              f"s_lshl_b32 s{sT0}, s{sFT}, 7",
              f"v_lshl_add_u32 v{vX0}, v{vH}, 3, s{sT0}",
              f"s_lshl2_add_u32 s{sT0}, s{sDG}, s{sOWN}",
              f"s_mul_i32 s{sFI}, s{sT0}, 24",
              f"s_add_u32 s{sFI}, s{sFI}, s{sFT}",
              f"s_mul_i32 s{sFI}, s{sFI}, {FSU}",
              f"s_add_u32 s{sFI}, s{sFI}, {WS_FU}",
              f"s_add_u32 s{sFI}, s{sFI}, s{sSP}",
              f"s_mul_i32 s{sT0}, s{sT0}, 48",
              f"s_lshl1_add_u32 s{sT0}, s{sFT}, s{sT0}",
              f"s_lshl_b32 s{sT0}, s{sT0}, 10",
              f"s_add_u32 s{sT0}, s{sT0}, {WS_U}",
              f"s_add_u32 s{sT0}, s{sT0}, s{sSP}",
              f"v_add_u32 v{vUS}, s{sT0}, v1",
              f"s_mov_b32 s{sU2}, 0xbdd2d3e8",
              f"s_mov_b32 s{sU3}, {20*48*1024}",
              f"v_mov_b32 v52, 0xc0135761"]
    a.run(g1set)
    a.run(P.conv_setup2(NC))
    a.run(P.epoch_load(vEP))
    for t in range(4):
        a(f"global_load_dwordx2 {vr(BL+2*t,2)}, v{vX0}, {sp(P_B1)} offset:{32*t}")
    a(f"s_cmp_ge_u32 s{sID}, 30")
    a("s_cbranch_scc1 L_Aspare")
    a.run(P.w_step())
    a.run(P.w_step())
    BI, RD, PD4 = 112, 144, 248
    bun = []
    for t in range(8):
        bun += [f"v_lshlrev_b32 v{BI+2*t}, 16, v{BL+t}", f"v_and_b32 v{BI+2*t+1}, 0xffff0000, v{BL+t}"]
    PA = cfg.get('pollA', 13)
    while P.nxt < 16:
        if P.nxt == 8:
            a.run(P.set_tag(vEP))
            a.run(bun)
        a.run([stamp(f'w{P.nxt}')])
        it = P.w_step()
        if P.nxt - 1 == PA:
            it.insert(9, P.poll_issue(vP0, 32, 1, PD4))
        a.run(it)
    while P.drn < PA:
        a.run(P.w_step())
    a.run([P.poll_check('f1', vP0, 32, 1, PD4), stamp('f1_ok')])
    BUFS = ([64 + 4*i for i in range(8)] + [128 + 4*i for i in range(4)] + [228 + 4*i for i in range(5)] + [208 + 4*i for i in range(3)])[:NB]

    def h_load(n):
        i, j = divmod(n, 16)
        return f"buffer_load_dwordx4 {vr(BUFS[n % NB],4)}, v{vHL+i}, {srd(S_WS)}, s{TK+j} offen {cfg.get('apol', 'sc1')}"
    hn = 0
    HE = cfg.get('hearly', 8)
    left = 16 - P.drn
    while P.drn < 16:
        for _ in range(HE // left):
            a(h_load(hn)); hn += 1
        a.run(P.w_step())
    ACC = (96, 192)
    Z, G0, UO = ACC[1], 160, 220
    for r in range(2):
        mf, pos = [], {}
        for q in range(64 // GR):
            for t in range(4):
                for n in range(q * GR, (q + 1) * GR):
                    i, j = divmod(n, 16)
                    d = vr(ACC[i & 1] + 4 * t, 4)
                    pos.setdefault(n, len(mf))
                    c = d if j else ('0' if i < 3 else vr(BI + 4 * t, 4))
                    mf.append(f"v_mfma_f32_16x16x32_bf16 {d}, {ar(16*j+4*t,4)}, {vr(BUFS[(64*r + n) % NB],4)}, {c}")
        S = Sched(mf)
        for n in range(64):
            S.reserve(pos[n] - 1)
        k = 0
        while hn < 128:
            n = hn - 64 * r
            free = 4 * GR * ((n - NB) // GR + 1) if n >= NB else 0
            p = max(free, 4 * (n - NB + GR) + 1, 2 * k)
            if p > 255:
                break
            S.add('h', [h_load(hn)], p, p)
            hn += 1
            k += 1
        S.add('st', [stamp(f'g1first{r}')], 0, 0)
        lasth = p if r else 0
        if r == 0 and cfg.get('h2', 1):
            p2 = cfg.get('pH2', 40)
            S.add('f2', [f"v_lshl_add_u32 v{vP0}, s{sW}, 5, v0", f"v_lshlrev_b32 v{vP0}, 4, v{vP0}", f"v_add_u32 v{vP0}, {WS_F1 + 0x4000}, v{vP0}",
                         P.poll_issue(vP0, 32, 1, PD4)], p2 - 4, p2)
            S.add('f2', [P.poll_check('f2', vP0, 32, 1, PD4)], 150, 152)
            assert 4 * (64 - NB + GR) + 1 > 153
        for i in range(3):
            S.add('red', [(f"ds_write_b128 v{vRW+i}, {vr(ACC[i & 1]+4*t,4)} offset:{t*1024}", f'redw{r}{i}') for t in range(4)],
                  64 * (i + 1) + 1, 64 * (i + 1) + 13, pace=4 if i < 2 else 3)
        pR = 192 + cfg.get('pR', 15)
        S.add('red', [('wait', f'redw{r}2'), "s_barrier"], pR, pR + 1)
        S.add('red', [f"ds_read_b128 {vr(RD+4*k,4)}, v{vRR} offset:{k*1024}" for k in range(12)], pR + 2, pR + 16)
        S.add('add', [f"v_add_f32 v{RD+k}, v{RD+k}, v{RD+16+k}" for k in range(16)] +
                     [f"v_add_f32 v{RD+k}, v{RD+k}, v{RD+32+k}" for k in range(16)], pR + 17, 255)
        if r == 1:
            S.add('set', [f"v_subrev_u32 v{vRW+i}, {L_RED}, v{vRW+i}" for i in range(4)], 2, 30)
            pD = cfg.get('pD0', 40)
            S.add('fl', [('wait', 'ust0'), stamp('barD0'), P.flag(sFI), f"s_add_u32 s{sFI}, s{sFI}, {20*24*FSU}"], pD, pD + 1)
            S.add('fl', [P.poll_check('fk', vP1, 16, KW, PD4), stamp('fk_ok')], 150, 152)
            for i, x in enumerate(P.ssm_loads(NC) + P.x_loads(NC)):
                S.add('h', [x], lasth + 4 * (i + 1), lasth + 4 * (i + 1))
        a.run(S.items())
        P.info[f'g1{r}'] = (S.over, S.under)
        a.run([stamp(f'g1mfma{r}')])
        side = []
        if r == 0:
            while hn < 64 + NB:
                side.append(h_load(hn)); hn += 1
            a.run(side)
        for t in range(8):
            a(f"v_pk_add_f32 {vr(Z+2*t,2)}, {vr(Z+2*t,2)}, {vr(RD+2*t,2)}")
        for t in range(8):
            a(f"v_pk_mul_f32 {vr(G0+2*t,2)}, {vr(Z+2*t,2)}, {vr(Z+2*t,2)}")
        for t in range(8):
            a(f"v_pk_fma_f32 {vr(G0+2*t,2)}, {vr(G0+2*t,2)}, {sp(sU2)}, v[52:53] op_sel_hi:[1,0,0]")
        for t in range(8):
            a(f"v_pk_mul_f32 {vr(G0+2*t,2)}, {vr(G0+2*t,2)}, {vr(Z+2*t,2)}")
        for t in range(16):
            a(f"v_exp_f32 v{G0+t}, v{G0+t}")
        for t in range(8):
            a(f"v_pk_add_f32 {vr(G0+2*t,2)}, {vr(G0+2*t,2)}, 1.0 op_sel_hi:[1,0]")
        for t in range(16):
            a(f"v_rcp_f32 v{G0+t}, v{G0+t}")
        for t in range(8):
            a(f"v_pk_mul_f32 {vr(G0+2*t,2)}, {vr(G0+2*t,2)}, {vr(Z+2*t,2)}")
        for t in range(8):
            a(f"v_cvt_pk_bf16_f32 v{UO+t}, v{G0+2*t}, v{G0+2*t+1}")
        for half in range(2):
            a(f"buffer_store_dwordx4 {vr(UO+4*half,4)}, v{vUS}, {srd(S_WS)}, {'0' if r == 0 else f's{sU3}'} offen offset:{1024*half} sc1", tok=f'ust{r}')
        if r == 0:
            a(P.poll_issue(vP1, 16, KW, PD4))
        a.run([stamp(f'ust{r}')])
    a.label("L_Ajoin")
    a.wait('xd')
    a("s_barrier")
    CPA = cfg.get('cpreA', 4)
    a.run(P.conv_pre(CPA))
    S = P.conv_sched(NT, CPA, 2)
    pD = cfg.get('pD1', 30)
    S.add('fl', [('wait', 'ust1'), stamp('barD1'), P.flag(sFI)], pD, pD + 1)
    Z2 = NC == 3 and cfg.get('z2', 1)
    P.conv_run(S, NT, Z2, P.flag(sFJ))
    if Z2:
        a(f"s_add_u32 s{sFJ}, s{sJ}, 128")
        a(f"s_mul_i32 s{sFJ}, s{sFJ}, {FSZ}")
        a(f"s_lshl2_add_u32 s{sFJ}, s{sW}, s{sFJ}")
        a(f"s_add_u32 s{sFJ}, s{sFJ}, {WS_FZ + 16}")
    a.wait('zst2' if NC == 3 else 'zst1')
    a(P.flag(sFJ))
    a(f"s_cmp_lg_u32 s{sJ}, 31")
    a("s_cbranch_scc1 L_Adone")
    st, P.stamps = P.stamps, False
    a(f"v_lshl_add_u32 v{vP0}, s{sW}, 5, v0")
    a(f"v_mul_u32_u24 v{vP0}, {cfg.get('fsk', 16)}, v{vP0}")
    a(f"v_add_u32 v{vP0}, {WS_FK}, v{vP0}")
    a(P.poll_issue(vP0, 32, KW, PD4))
    a.run([P.poll_check('e0', vP0, 32, KW, PD4)])
    for k in range(2):
        a(f"s_mul_i32 s{sT0}, s{sW}, 120")
        a(f"s_add_u32 s{sT0}, s{sT0}, {60*k}")
        a(f"v_add_u32 v{vP0}, s{sT0}, v0")
        a(f"v_mul_u32_u24 v{vP0}, {FSU}, v{vP0}")
        a(f"v_add_u32 v{vP0}, {WS_FU}, v{vP0}")
        a(P.poll_issue(vP0, 60))
        a.run([P.poll_check(f'e{k+1}', vP0, 60)])
    a(f"v_lshl_add_u32 v{vP0}, s{sW}, 5, v0")
    a(f"v_mul_u32_u24 v{vP0}, {FSZ}, v{vP0}")
    a(f"v_add_u32 v{vP0}, {WS_FZ + 158*FSZ}, v{vP0}")
    a(P.poll_issue(vP0, 2, 4, PD4))
    a.run([P.poll_check('e3', vP0, 2, 4, PD4)])
    P.stamps = st
    a("s_barrier")
    a(f"s_mov_b32 s{sT0}, {WS_EP}")
    a(P.flag(sT0))
    a.label("L_Adone")
    P.finish()
    a("s_endpgm")
    b = Asm()
    P.a, st, P.stamps = b, P.stamps, False
    b.label("L_Aspare")
    b(f"s_mul_i32 s{sT0}, s{sXQ}, 160")
    b(f"s_mul_i32 s{sT1}, s{sDG}, {16*NC}")
    b(f"s_add_u32 s{sT0}, s{sT0}, s{sT1}")
    b(f"s_add_u32 s{sT0}, s{sT0}, 64")
    b(f"v_lshrrev_b32 v{vT}, 3, v0")
    b(f"v_add_lshl_u32 v{vT}, s{sT0}, v{vT}, 12")
    b(f"v_and_b32 v{vT2}, 7, v0")
    b(f"v_lshl_add_u32 v{vT2}, s{sW}, 3, v{vT2}")
    b(f"v_lshl_add_u32 v{vT}, v{vT2}, 7, v{vT}")
    b("s_waitcnt vmcnt(0)")
    b.run(P.set_tag(vEP))
    for i in range(2 * NC if cfg.get('spf', 1) else 0):
        b(f"s_mov_b32 s{sT0}, {i*8*4096}")
        b(f"buffer_load_dword v{64+i}, v{vT}, {srd(S_SSM)}, s{sT0} offen")
    b.run(P.ssm_loads(NC))
    b(P.poll_issue(vP1, 16, KW, PD4))
    b.run([P.poll_check('fs', vP1, 16, KW, PD4)])
    for i in range(2 * NC if cfg.get('xpf', 0) else 0):
        b(f"s_mov_b32 s{sT0}, {WS_KV + i*8*4096}")
        b(f"buffer_load_dword v{vPD}, v{vT}, {srd(S_WS)}, s{sT0} offen sc1") if False else b.raw(f"    buffer_load_dword v{vPD}, v{vT}, {srd(S_WS)}, s{sT0} offen sc1")
    b.run(P.x_loads(NC))
    b("s_waitcnt vmcnt(0) lgkmcnt(0)")
    b("s_branch L_Ajoin")
    a.out += b.out
    P.a, P.stamps = a, st
    return P


def prog_B(cfg):
    P = Prog('B', cfg)
    a, stamp = P.a, P.stamp
    a.smem_pending = set(KERNARG) | {'s96', 's97'}
    FS1, FSU, FSZ, FSK = cfg.get('fs1', 32), cfg.get('fsu', 64), cfg.get('fsz', 32), cfg.get('fsk', 16)
    sDT, sST = sA, sB
    KW, HW = cfg.get('kw', 1), cfg.get('hw', 1)
    NC = 3 if cfg.get('third', 'A') == 'B' else 2
    NT = 8*NC
    NMF = 136 if NC == 2 else 208
    a.label("L_B")
    if cfg.get('cpf', 1):
        a.run(P.code_prefetch("L_pcB", "L_Amain"))
    a.run(P.lanes())
    XR, GR = 160, 180
    vQ, vG, vEP = 200, 201, 202
    a(f"s_lshr_b32 s{sT0}, s{sJ}, 1")
    a(f"s_lshl_b32 s{sT0}, s{sT0}, 5")
    a(f"s_and_b32 s{sT1}, s{sJ}, 1")
    a(f"s_lshl3_add_u32 s{sCNT}, s{sT1}, s{sT0}")
    a(f"s_lshl2_add_u32 s{sCNT}, s{sT2}, s{sCNT}")
    a(f"s_lshl4_add_u32 s{sCNT}, s{sT3}, s{sCNT}")
    a(f"v_add_u32 v{vQ}, s{sCNT}, v{vH}")
    a(f"v_mul_u32_u24 v{vQ}, 1280, v{vQ}")
    a(f"v_lshlrev_b32 v{vG}, 4, v{vI}")
    a(f"v_add_u32 v{vQ}, v{vQ}, v{vG}")
    def kvset():
        a(f"s_lshl3_add_u32 s{sU0}, s{sW}, s{sT0}")
        a(f"s_mul_i32 s{sU0}, s{sU0}, 1280")
        a(f"s_mul_i32 s{sU1}, s{sT1}, 640")
        a(f"s_add_u32 s{sU0}, s{sU0}, s{sU1}")
        a(f"v_add_u32 v{vKV}, s{sU0}, v1")
        a(f"s_mul_i32 s{sU0}, s{sW}, {(-7*1280) & 0xffffffff}")
        a(f"s_sub_u32 s{sU0}, s{sU0}, {4*1280}")
        a(f"v_add_u32 v{vKH}, s{sU0}, v{vKV}")
        a(f"s_mul_i32 s{sKL}, s{sW}, {8*PK + 32}")
        for (s, n) in ((S_K, 2621440), (S_V, 2621440), (S_WS, WS_SIZE), (S_W, 6291456), (S_SSM, 2621440)):
            a(f"s_mov_b32 s{s+2}, {n}")
            a(f"s_mov_b32 s{s+3}, 0x20000")
        a(f"s_lshl2_add_u32 s{sU0}, s{sT1}, s{sW}")
        a(f"s_mul_i32 s{sU0}, s{sU0}, 80")
        a(f"v_add_u32 v{vCH}, s{sU0}, v{vI}")
        a(f"v_lshlrev_b32 v{vS0}, 3, v{vCH}")
    vKV, vKH, vCH, vS0 = 60, 61, 62, 63
    sKL = sFI
    if not cfg.get('qfirst', 0):
        kvset()
    for i in range(5):
        a(f"global_load_dwordx4 {vr(XR+4*i,4)}, v{vQ}, {sp(P_Q)} offset:{256*i}")
    a.run([stamp('start')])
    if cfg.get('qfirst', 0):
        kvset()
    for (s, p) in ((S_K, 38), (S_V, 40), (S_WS, 66), (S_W, 56), (S_SSM, 44)):
        a(f"s_mov_b64 {sp(s)}, {sp(p)}")
    a.run(P.epoch_load(vEP))

    def kv_dma(which, i):
        if which == 'h':
            return [f"s_mul_i32 s{sU0}, s{sW}, {PK}", f"s_add_u32 m0, s{sU0}, {L_KI}", "s_mov_b32 exec_hi, 0xff",
                    f"buffer_load_dwordx4 v{vKH}, {srd(S_K)}, 0 offen {cfg.get('kpol', '')} lds", "s_mov_b32 exec_hi, -1"]
        base = L_KI + (4 + i) * PK + (32 if i >= 4 else 0) if which == 'k' else L_VI + i * PK
        return [f"s_add_u32 m0, s{sKL}, {base}", f"s_mov_b32 s{sU0}, {i*1280}", "s_mov_b32 exec_hi, 0xff",
                (f"buffer_load_dwordx4 v{vKV}, {srd(S_K if which == 'k' else S_V)}, s{sU0} offen {cfg.get('kpol', '')} lds", 'kvdma'), "s_mov_b32 exec_hi, -1"]

    def kv_batch(lst):
        it = []
        for (wh, i) in lst:
            x = kv_dma(wh, i)
            if it:
                it.pop()
                x.remove("s_mov_b32 exec_hi, 0xff")
            it += x
        return it
    kvq = [('h', 0)] + [('k', i) for i in range(8)] + [('v', i) for i in range(8)]
    a(f"s_and_b32 s{sDT}, s{sID}, 3")
    a(f"s_lshr_b32 s{sT0}, s{sID}, 2")
    a(f"s_lshl3_add_u32 s{sST}, s{sXQ}, s{sT0}")
    vLW, vA1, vHS, vGS, vKVA, vKVS, vGV = 44, 46, 48, 49, 50, 51, 58
    a(f"v_lshl_add_u32 v{vT}, s{sW}, 2, v{vH}")
    a(f"s_lshl_b32 s{sT0}, s{sJ}, 4")
    a(f"v_add_lshl_u32 v{vGS}, s{sT0}, v{vT}, 2")
    a(f"v_add_u32 v{vGS}, {WS_G}, v{vGS}")
    a(f"v_mul_u32_u24 v{vT}, {PL}, v{vT}")
    a(f"v_add_u32 v{vT}, {L_LN}, v{vT}")
    a(f"v_add_u32 v{vLW}, v{vT}, v{vG}")
    a(f"v_mul_u32_u24 v{vT}, {PL}, v{vR}")
    a(f"v_mul_u32_u24 v{vT2}, 320, v{vH}")
    a(f"s_mul_i32 s{sT0}, s{sT3}, {8*PL}")
    a(f"s_lshl3_add_u32 s{sT0}, s{sT2}, s{sT0}")
    a(f"s_add_u32 s{sT0}, s{sT0}, {L_LN}")
    a(f"v_add3_u32 v{vT}, v{vT}, v{vT2}, s{sT0}")
    a(f"v_lshl_add_u32 v{vA1}, v{vC}, 4, v{vT}")
    a(f"s_lshl1_add_u32 s{sT0}, s{sJ}, s{sT3}")
    a(f"s_lshl_b32 s{sT0}, s{sT0}, 8")
    a(f"s_lshl_b32 s{sT1}, s{sT2}, 16")
    a(f"s_add_u32 s{sT0}, s{sT0}, s{sT1}")
    a(f"v_mul_u32_u24 v{vHS}, {5*65536}, v{vH}")
    a(f"v_lshl_add_u32 v{vHS}, v{vI}, 4, v{vHS}")
    a(f"v_add_u32 v{vHS}, s{sT0}, v{vHS}")
    a(f"s_mul_i32 s52, s{sT2}, {19*65536}")
    a(f"s_add_u32 s52, s52, {4*65536}")
    a(f"s_mov_b32 s53, {20*65536}")
    a(f"s_mov_b32 s64, {22*65536}")
    a(f"v_mul_u32_u24 v{vT}, {8*PK + 32}, v{vH}")
    a(f"v_mul_u32_u24 v{vT2}, {PK}, v{vR}")
    a(f"s_mul_i32 s{sT0}, s{sW}, 160")
    a(f"s_add_u32 s{sT0}, s{sT0}, {L_KI}")
    a(f"v_add3_u32 v{vT}, v{vT}, v{vT2}, s{sT0}")
    a(f"v_lshl_add_u32 v{vKVA}, v{vC}, 3, v{vT}")
    a(f"v_lshlrev_b32 v{vKVS}, 12, v{vCH}")
    a(f"v_lshl_add_u32 v{vKVS}, v{vH}, 4, v{vKVS}")
    a(f"s_lshr_b32 s{sT0}, s{sJ}, 1")
    a(f"s_lshl_b32 s{sT1}, s{sT0}, 6")
    a(f"s_add_u32 s{sT1}, s{sT1}, {WS_KV}")
    a(f"v_add_u32 v{vKVS}, s{sT1}, v{vKVS}")
    a(f"s_and_b32 s{sT1}, s{sJ}, 1")
    a(f"s_lshl_b32 s{sT1}, s{sT1}, 6")
    a(f"s_add_u32 s{sFJ}, s{sT0}, s{sT1}")
    a(f"s_mul_i32 s{sFJ}, s{sFJ}, {FSK}")
    a(f"s_lshl2_add_u32 s{sFJ}, s{sW}, s{sFJ}")
    a(f"s_add_u32 s{sFJ}, s{sFJ}, {WS_FK}")
    a(f"s_mul_i32 s{sU3}, s{sJ}, {FS1}")
    a(f"s_add_u32 s{sU3}, s{sU3}, {WS_F1}")
    for k in range(1, 5):
        a(f"s_mov_b32 s{79+k}, {k*65536}")
    for i in range(5):
        a(f"global_load_dwordx4 {vr(GR+4*i,4)}, v{vG}, {sp(P_GW)} offset:{256*i}")
    nq = cfg.get('kvq0', 6)
    if nq:
        a.run(kv_batch(kvq[:nq])); kvq = kvq[nq:]
    a.run([stamp('iss2')])

    S1, S2, vRS, vNM, XF = 64, 65, 66, 68, 72
    DP = ("quad_perm:[1,0,3,2]", "quad_perm:[2,3,0,1]", "row_half_mirror", "row_mirror")
    unp = []
    for i in range(20):
        unp += [f"v_lshlrev_b32 v{XF+2*i}, 16, v{XR+i}", f"v_and_b32 v{XF+2*i+1}, 0xffff0000, v{XR+i}"]
    ln = [f"s_mov_b32 s{sU2}, 0x3f803f80"]
    for i in range(20):
        c = lambda r: "0" if i == 0 else f"v{r}"
        ln += [f"v_dot2_f32_bf16 v{S1}, v{XR+i}, s{sU2}, {c(S1)}", f"v_dot2_f32_bf16 v{S2}, v{XR+i}, v{XR+i}, {c(S2)}"]
    inv = 0x3ACCCCCD
    red = []
    for m in DP:
        red += [f"v_add_f32_dpp v{x}, v{x}, v{x} {m} row_mask:0xf bank_mask:0xf" for x in (S1, S2)]
    red += [f"v_mul_f32 v{S1}, {hex(inv)}, v{S1}",
            f"v_mul_f32 v{S2}, {hex(inv)}, v{S2}",
            f"v_fma_f32 v{S2}, -v{S1}, v{S1}, v{S2}",
            f"v_max_f32 v{S2}, 0, v{S2}",
            f"v_add_f32 v{S2}, 0x3727c5ac, v{S2}",
            f"v_rsq_f32 v{vRS}, v{S2}",
            f"v_mul_f32_e64 v{vNM}, -v{S1}, v{vRS}"]
    ln += unp[:3] + merge(red, unp[3:])
    HP = 112
    for i in range(5):
        ln += [f"v_pk_fma_f32 {vr(XF+2*k,2)}, {vr(XF+2*k,2)}, {vr(vRS,2)}, {vr(vNM,2)} op_sel_hi:[1,0,0]" for k in range(4*i, 4*i+4)]
        ln += [f"v_cvt_pk_bf16_f32 v{HP+k}, v{XF+2*k}, v{XF+2*k+1}" for k in range(4*i, 4*i+4)]
        ln.append((f"ds_write_b128 v{vLW}, {vr(HP+4*i,4)} offset:{256*i}", 'lnw'))
    gate = [f"v_dot2_f32_bf16 v{vGV}, v{XR+i}, v{GR+i}, {'0' if i == 0 else f'v{vGV}'}" for i in range(20)]
    gate += [f"v_add_f32_dpp v{vGV}, v{vGV}, v{vGV} {m} row_mask:0xf bank_mask:0xf" for m in DP]
    gate += [f"v_mul_f32 v{vGV}, 0xbfb8aa3b, v{vGV}", f"v_exp_f32 v{vGV}, v{vGV}", f"v_add_f32 v{vGV}, 1.0, v{vGV}", f"v_rcp_f32 v{vGV}, v{vGV}",
             "s_mov_b32 exec_lo, 0x10001", "s_mov_b32 exec_hi, 0x10001",
             (f"buffer_store_dword v{vGV}, v{vGS}, {srd(S_WS)}, 0 offen sc1", 'hst2'), "s_mov_b64 exec, -1"]
    a.run(ln[:41])
    nq = cfg.get('kvq1', 4)
    if nq:
        a.run(kv_batch(kvq[:nq])); kvq = kvq[nq:]
    a.run(ln[41:])
    a.wait('lnw')
    a("s_barrier")
    a.run([stamp('barL')])
    HB = 64
    H2 = cfg.get('h2', 1)
    for u, off in enumerate((0, 64, 256, 128, 192)):
        for e2 in range(2):
            a(f"ds_read_b64_tr_b16 {vr(HB+4*u+2*e2,2)}, v{vA1} offset:{off + e2*4*PL}")
    for u, so in enumerate(("0", "s81", "s52", "s53", "s64")):
        a(f"buffer_store_dwordx4 {vr(HB+4*u,4)}, v{vHS}, {srd(S_WS)}, {so} offen sc1", tok='hst' if u < 3 or not H2 else None)
    a.run(gate)
    a.run(P.set_tag(vEP))
    vQO, vQO2, vGA, vX1, vQO1 = 36, 41, 253, 250, 15
    QR, vGG, vB2 = 44, 16, 17

    def bigset():
        a(f"s_bfe_u32 s{sT0}, s{sST}, 0x10001")
        a(f"s_mul_i32 s{sT0}, s{sT0}, {cfg.get('rkB', 0)}")
        a(f"s_add_u32 s{sT0}, s{sT0}, s{sDT}")
        a(f"s_and_b32 s{sT0}, s{sT0}, 3")
        a(f"s_mul_i32 s{TK}, s{sT0}, 3072")
        a(f"s_and_b32 s{sSP}, s{sST}, {cfg.get('swB', 1)}")
        for j in range(1, 12):
            a(f"s_add_u32 s{sT0}, s{TK+j-1}, 1024")
            a(f"s_cmp_lt_u32 s{sT0}, {12*1024}")
            a(f"s_cselect_b32 s{TK+j}, s{sT0}, 0")
        a(f"s_mul_i32 s{sT0}, s{sW}, {384*4096}")
        a(f"s_lshl_b32 s{sT1}, s{sST}, 7")
        a(f"s_add_u32 s{sT0}, s{sT0}, s{sT1}")
        a.run(P.weight_src(4096, sT0) + P.weight_dst(True))
        a.run(P.conv_setup(NC))
        a.run(P.conv_setup2(NC))
        a(f"s_lshl2_add_u32 s{sT0}, s{sST}, s{sW}")
        a(f"v_lshl_add_u32 v{vT}, s{sT0}, 4, v{vI}")
        a(f"v_lshlrev_b32 v{vX1}, 1, v{vT}")
        a(f"v_mul_u32_u24 v{vT}, 1280, v{vT}")
        a(f"s_mul_i32 s{sT0}, s{sDT}, 320")
        a(f"v_add_u32 v{vT}, s{sT0}, v{vT}")
        a(f"v_lshl_add_u32 v{vQO2}, v{vH}, 4, v{vT}")
        a(f"s_lshl_b32 s{sT0}, s{sSP}, 6")
        a(f"v_add_u32 v{vQO}, s{sT0}, v{vQO2}")
        a(f"v_subrev_u32 v{vQO1}, s{sT0}, v{vQO2}")
        a(f"s_lshl1_add_u32 s{sT0}, s{sST}, s{sT2}")
        a(f"s_lshl3_add_u32 s{sT0}, s{sT0}, s{sT3}")
        a(f"s_lshl_b32 s{sT0}, s{sT0}, 4")
        a(f"s_add_u32 s{sT0}, s{sT0}, {WS_G}")
        a(f"v_lshl_add_u32 v{vT}, v{vR}, 5, s{sT0}")
        a(f"v_lshl_add_u32 v{vGA}, v{vC}, 2, v{vT}")

    SP = cfg.get('setp', 1)
    if SP == 0:
        bigset()
    nq = cfg.get('kvq2', 7)
    if nq:
        a.run(kv_batch(kvq[:nq])); kvq = kvq[nq:]
    a.wait('hst' if H2 else 'hst2')
    a.run([P.flag_wg(sU3, 'f1'), stamp('barH')])
    if kvq:
        a.run(kv_batch(kvq))
    CF = 148
    for u in range(5):
        a(f"global_load_dwordx2 {vr(CF+2*u,2)}, v{vS0}, {sp(P_SH)} offset:{128*u}")
    if SP == 1:
        bigset()
    a.run(P.ssm_loads(NC))

    def helper():
        HR = cfg.get('hlpB', 6)
        if HR:
            a(f"s_add_u32 s{sT0}, s{sST}, 4")
            a(f"s_and_b32 s{sT0}, s{sT0}, 7")
            a(f"s_mul_i32 s{sT1}, s{sT0}, {HR}")
            a(f"s_cmp_eq_u32 s{sT0}, 7")
            a(f"s_cselect_b32 s{sU2}, {OOB}, 0")
            a(f"s_lshl2_add_u32 s{sT0}, s{sW}, s{sDT}")
            a(f"s_mul_i32 s{sT0}, s{sT0}, 96")
            a(f"s_add_u32 s{sT0}, s{sT0}, s{sT1}")
            a(f"s_add_u32 s{sT0}, s{sT0}, {96 - 7*HR}")
            a(f"v_add_lshl_u32 v{vT}, s{sT0}, v0, 12")
            a(f"s_lshl_b32 s{sT0}, s{sXQ}, 10")
            a(f"s_add_u32 s{sT0}, s{sT0}, 384")
            a(f"s_add_u32 s{sU2}, s{sU2}, s{sT0}")
            a(f"s_mov_b64 exec, {hex((1 << HR) - 1)}")
            a(f"buffer_load_dword v251, v{vT}, {srd(S_W)}, s{sU2} offen")
            a("s_mov_b64 exec, -1")
    WP = cfg.get('wBpre', 1)
    if WP:
        helper()
    if WP >= 2:
        a.run(P.w_step())

    if H2:
        a(f"s_mul_i32 s{sU3}, s{sJ}, 16")
        a(f"s_add_u32 s{sU3}, s{sU3}, {WS_F1 + 0x4000}")
        a.wait('kvdma', 'hst2')
        a.run([P.flag_wg(sU3, 'f2'), stamp('barK')])
    else:
        a.wait('kvdma')
        a.run(["s_barrier", stamp('barK')])
    KR, KO = 64, 160

    def kv_reads(u):
        it = [f"ds_read_b64_tr_b16 {vr(KR+10*u+2*j,2)}, v{vKVA} offset:{32*u + 4*j*PK + (32 if j == 2 else 0)}" for j in range(3)]
        it += [f"ds_read_b64_tr_b16 {vr(KR+10*u+6+2*j,2)}, v{vKVA} offset:{32*u + 4*j*PK + (L_VI-L_KI)}" for j in range(2)]
        return it

    def kv_compute(u):
        it = []
        k = KR + 10 * u
        c10, c32 = CF + 2 * u, CF + 2 * u + 1
        SH, AC, VF, OUT = 116, 124, 132, KO + 4 * u
        for n in range(5):
            it.append(f"v_alignbit_b32 v{SH+n}, v{k+n+1}, v{k+n}, 16")
        pr = lambda e: (k + (e + 1) // 2, k + (e + 3) // 2) if e & 1 else (SH + e // 2, SH + e // 2 + 1)
        for e in range(8):
            it.append(f"v_dot2_f32_bf16 v{AC+e}, v{pr(e)[0]}, v{c32}, 0")
        for e in range(8):
            it.append(f"v_dot2_f32_bf16 v{AC+e}, v{pr(e)[1]}, v{c10}, v{AC+e}")
        for n in range(4):
            it.append(f"v_lshlrev_b32 v{VF+2*n}, 16, v{k+6+n}")
            it.append(f"v_and_b32 v{VF+2*n+1}, 0xffff0000, v{k+6+n}")
        for n in range(4):
            it.append(f"v_pk_mul_f32 {vr(AC+2*n,2)}, {vr(AC+2*n,2)}, {vr(VF+2*n,2)}")
        for n in range(4):
            it.append(f"v_cvt_pk_bf16_f32 v{OUT+n}, v{AC+2*n}, v{AC+2*n+1}")
        it.append((f"buffer_store_dwordx4 {vr(OUT,4)}, v{vKVS}, {srd(S_WS)}, {'0' if u == 0 else f's{79+u}'} offen sc1", 'kvst'))
        return it
    a.run(kv_reads(0) + kv_reads(1))
    if WP & 1:
        a.run(P.w_step())
    for u in range(10):
        a(f"v_alignbit_b32 v{CF+u}, v{CF+u}, v{CF+u}, 16")
    for u in range(5):
        a.run(merge(kv_compute(u), kv_reads(u + 2) if u < 3 else []))
    a.run([stamp('kv_done')])
    if not cfg.get('wBpre', 1):
        helper()
    for _ in range(cfg.get('wB0', 1)):
        a.run(P.w_step())
    a.wait('kvst')
    a.run([P.flag_wg(sFJ, 'fk') if KW == 1 else P.flag(sFJ), stamp('barV')] + P.zflag_addr(sFJ, 0))
    a(f"global_load_ushort v{vB2}, v{vX1}, {sp(P_B2)}")
    while P.nxt < cfg.get('pollB', 7):
        a.run(P.w_step())
    a(P.poll_issue(vP1, 16, KW, 204))
    for _ in range(cfg.get('pollgapB', 0)):
        a.run(P.w_step())
    a.run([P.poll_check('fk', vP1, 16, KW, 204), stamp('fk_ok')])
    a.run(P.x_loads(NC))
    qa = lambda p: f"v{(vQO, vQO1, vQO, vQO1, vQO2)[p]}"
    qld = [f"global_load_dwordx4 {vr(QR+4*p,4)}, {qa(p)}, {sp(P_Q)} offset:{64*p}" for p in range(5)]
    for _ in range(cfg.get('xgapB', 1)):
        a.run(P.w_step())
    a.wait('xd')
    a("s_barrier")
    a.run([stamp('barC')])

    CPB = cfg.get('cpreB', 4)
    a.run(P.conv_pre(CPB))
    while P.nxt < NR:
        a.run(P.w_step())
    S = P.conv_sched(NT, CPB, cfg.get('ccap', 2.3), cfg.get('sg0', 100))
    cS, cE = cfg.get('cS', 0), cfg.get('cE', NMF - 36)
    nst = 12 - P.nxt
    per = (cE - cS) / (nst + 1)
    for r in range(nst):
        p0 = cS + r * per
        it = P.w_step()
        for k, x in enumerate(it[:9]):
            S.add('wd', [x], int(p0 + k * per / 14), int(p0 + (k + 1) * per / 14))
        p1 = p0 + per
        S.add('w', it[9:11], int(p1 - per / 5), int(p1) - 1)
        S.add('w', it[11:12], int(p1), int(p1))
        for k, x in enumerate(it[12:]):
            S.add('w', [x], int(p1 + k * per / 4), int(p1 + k * per / 4))
    S.add('wd', P.w_step(), int(cE - per), int(cE) - 1, pace=per / 11)
    tail = []
    while P.drn < 12:
        tail += P.w_step()
    S.add('wd', tail, cE, None, pace=(NMF - cE) / len(tail))
    vUL = 10
    uset = [f"s_mul_i32 s{sT0}, s{sDT}, 120",
            f"s_mul_i32 s{sT1}, s{sW}, 6",
            f"s_add_u32 s{sT0}, s{sT0}, s{sT1}",
            f"v_mul_u32_u24 v{vT}, 43, v0",
            f"v_lshrrev_b32 v{vT}, 8, v{vT}",
            f"v_mul_u32_u24 v{vT}, 18, v{vT}",
            f"v_add3_u32 v{vP0}, s{sT0}, v0, v{vT}",
            f"v_mul_u32_u24 v{vP0}, {FSU}, v{vP0}",
            f"v_add_u32 v{vP0}, {WS_FU}, v{vP0}",
            f"s_mul_i32 s{sT0}, s{sDT}, {5*48}",
            f"s_lshl1_add_u32 s{sT0}, s{sT1}, s{sT0}",
            f"s_lshl_b32 s{sT0}, s{sT0}, 10",
            f"s_add_u32 s{sT0}, s{sT0}, {WS_U}",
            f"v_add_u32 v{vUL+4}, s{sT0}, v1",
            f"s_mul_i32 s{sT0}, s{sSP}, {96*1024}",
            f"v_add_u32 v{vUL}, s{sT0}, v{vUL+4}",
            f"s_sub_u32 s{sT0}, {96*1024}, s{sT0}",
            f"v_add_u32 v{vUL+2}, s{sT0}, v{vUL+4}",
            f"v_add_u32 v{vUL+1}, {48*1024}, v{vUL}",
            f"v_add_u32 v{vUL+3}, {48*1024}, v{vUL+2}",
            f"v_add_u32 v{vUL+4}, {192*1024}, v{vUL+4}"]
    S.add('set', uset, 40, 118)
    for k, x in enumerate(qld):
        qp = cfg.get('qS', 20) + cfg.get('qD', 16) * k
        S.add('q', [x], qp, qp)
    pU = NMF - cfg.get('pU0', 16)
    S.add('set', [P.poll_issue(vP0, 30)], pU, pU)
    NB2, GR2, UE = cfg.get('nb2', 16), cfg.get('grp2', 2), cfg.get('uearly', 8)
    UBUF = ([ar(192 + 4*i, 4) for i in range(16)] + [vr(92 + 4*i, 4) for i in range(4)])[:NB2]
    vUM = 220

    def u_load(n):
        m, j = divmod(n, 12)
        return f"buffer_load_dwordx4 {UBUF[n % NB2]}, v{vUL+m if m < 5 else vUM+m-5}, {srd(S_WS)}, s{TK+j} offen {cfg.get('apol', 'sc1')}"
    ustart = [P.poll_check('fu0', vP0, 30), stamp('fu0_ok')] + [u_load(n) for n in range(UE)]
    UEP = cfg.get('uep', 1)
    P.conv_run(S, NT, False, mid=[ustart if k == UEP else [] for k in range(3)])

    NB2, GR2, UE = cfg.get('nb2', 16), cfg.get('grp2', 2), cfg.get('uearly', 8)
    UBUF = ([ar(192 + 4*i, 4) for i in range(16)] + [vr(92 + 4*i, 4) for i in range(4)])[:NB2]
    AC2, OWN, RD2, RD4 = (108, 120), 132, 172, 208
    GQ, ZL, ZRg, ZU = 228, 64, 76, 88
    vZG, vZLW, vZT, vOG, vR2R, vR2W, vUM = 20, 21, 22, 28, 33, 25, 220
    vR2S, vR2X, PDZ, vP2 = 23, 30, 226, 225
    opol = cfg.get('opol', 'sc1')
    g2set = [f"v_add_u32 v{vUM+m}, {cfg.get('wiU', 20*48*1024)}, v{vUL+m}" for m in range(5)]
    g2set += [f"v_add_u32 v{vP0}, {20*24*FSU}, v{vP0}",
              f"v_lshrrev_b32 v{vT}, 3, v0",
              f"v_lshl_add_u32 v{vT}, s{sW}, 3, v{vT}",
              f"v_and_b32 v{vT2}, 7, v0",
              f"v_lshlrev_b32 v{vT2}, 4, v{vT2}",
              f"v_lshl_add_u32 v{vZG}, v{vT}, 12, v{vT2}",
              f"v_mul_u32_u24 v{vT}, {PZ}, v{vT}",
              f"v_add_u32 v{vT}, v{vT}, v{vT2}",
              f"v_add_u32 v{vZLW}, {L_ZI}, v{vT}",
              f"s_mul_i32 s{sT0}, s{sDT}, {160*4096}",
              f"s_lshl_b32 s{sT1}, s{sST}, 7",
              f"s_add_u32 s{sT0}, s{sT0}, s{sT1}",
              f"s_add_u32 s{sT0}, s{sT0}, {WS_Z}",
              f"s_lshl_b32 s{sT1}, s{sSP}, 17",
              f"s_add_u32 s80, s{sT0}, s{sT1}",
              f"s_sub_u32 s81, s{sT0}, s{sT1}",
              f"s_add_u32 s81, s81, {32*4096}",
              f"s_add_u32 s82, s80, {64*4096}",
              f"s_add_u32 s83, s81, {64*4096}",
              f"s_add_u32 s{sX0}, s{sT0}, {128*4096}",
              f"v_lshl_add_u32 v{vT}, v{vH}, 3, v{vR}",
              f"v_mul_u32_u24 v{vT}, {PZ}, v{vT}",
              f"s_lshl_b32 s{sT0}, s{sW}, 5",
              f"s_add_u32 s{sT0}, s{sT0}, {L_ZI}",
              f"v_lshl_add_u32 v{vZT}, v{vC}, 3, s{sT0}",
              f"v_add_u32 v{vZT}, v{vZT}, v{vT}"]
    for jn in range(1, 4):
        g2set += [f"s_xor_b32 s{sT0}, s{sW}, {jn}",
                  f"s_mul_i32 s{sT0}, s{sT0}, 3072",
                  f"s_add_u32 s{sT0}, s{sT0}, {(jn-1)*1024}",
                  f"v_add_u32 v{vR2W+jn-1}, s{sT0}, v1",
                  f"v_add_u32 v{vR2X+jn-1}, {L_RED}, v{vR2W+jn-1}"]
    g2set += [f"s_mul_i32 s{sT0}, s{sW}, 3072",
              f"v_add_u32 v{vR2R}, s{sT0}, v1",
              f"v_add_u32 v{vR2S}, {L_RED}, v{vR2R}",
              f"s_lshl3_add_u32 s{sT0}, s{sDT}, s{sW}",
              f"s_lshl_b32 s{sT0}, s{sT0}, 2",
              f"v_lshl_add_u32 v{vP1}, v{vR}, 4, v{vC}",
              f"v_add_u32 v{vP1}, s{sT0}, v{vP1}",
              f"v_mul_u32_u24 v{vP1}, {FSZ}, v{vP1}",
              f"s_and_b32 s{sT1}, s{sST}, 1",
              f"s_lshl_b32 s{sT1}, s{sT1}, 3",
              f"s_add_u32 s{sT1}, s{sT1}, {WS_FZ}",
              f"v_add_u32 v{vP1}, s{sT1}, v{vP1}",
              f"s_lshl2_add_u32 s{sT0}, s{sDT}, s{sW}",
              f"v_and_b32 v{vT}, 7, v0",
              f"v_lshl_add_u32 v{vP2}, s{sT0}, 3, v{vT}",
              f"v_mul_u32_u24 v{vP2}, {FSZ}, v{vP2}"]
    Z2 = NC == 2 and cfg.get('z2', 1)
    if Z2:
        g2set += [f"s_and_b32 s{sT1}, s{sST}, 3", f"s_lshl_b32 s{sT1}, s{sT1}, 2", f"s_add_u32 s{sT1}, s{sT1}, {WS_FZ + 128*FSZ + 16}",
                  f"v_add_u32 v{vP2}, s{sT1}, v{vP2}"]
    else:
        g2set += [f"v_add_u32 v{vP2}, s{sT1}, v{vP2}", f"v_cmp_lt_u32 vcc, 7, v0", "s_nop 1", f"v_cndmask_b32 v{vP1}, v{vP1}, v{vP2}, vcc"]
    nz0 = 16 if NC == 3 else 8
    nz1 = 16 if NC == 2 and not Z2 else 8
    zso = (80, 81, 82, 83, sX0)
    ptile = ((0, 1), (2, 3), (5, 6), (7, 8), (4, 9))

    def u_load(n):
        m, j = divmod(n, 12)
        return f"buffer_load_dwordx4 {UBUF[n % NB2]}, v{vUL+m if m < 5 else vUM+m-5}, {srd(S_WS)}, s{TK+j} offen {cfg.get('apol', 'sc1')}"

    def mf2(n, jn):
        m, j = divmod(n, 12)
        d = vr(OWN + 4 * m, 4) if jn == 0 else vr(AC2[m & 1] + 4 * (jn - 1), 4)
        return f"v_mfma_f32_16x16x32_bf16 {d}, {UBUF[n % NB2]}, {ar(16*j+4*jn,4)}, {'0' if j == 0 else d}"
    rd = lambda m, s: [f"ds_read_b128 {vr(RD2+12*s+4*k,4)}, v{vR2R if m < 5 else vR2S} offset:{(m % 5)*12288 + k*1024}" for k in range(3)]
    ad = lambda m, s: [f"v_add_f32 v{OWN+4*m+r}, v{OWN+4*m+r}, v{RD2+12*s+4*k+r}" for k in range(3) for r in range(4)]
    wr = lambda m: [(f"ds_write_b128 v{(vR2W if m < 5 else vR2X)+jn-1}, {vr(AC2[m & 1]+4*(jn-1),4)} offset:{(m % 5)*12288}", f'r2w{m}') for jn in range(1, 4)]
    z_ld = lambda ps: [f"buffer_load_dwordx4 {vr(ZL+4*i,4)}, v{vZG}, {srd(S_WS)}, s{zso[p]} offen sc1" for i, p in enumerate(ps)]
    z_wr = lambda ps: [f"ds_write_b128 v{vZLW}, {vr(ZL+4*i,4)} offset:{p*32*PZ}" for i, p in enumerate(ps)]
    z_rd = lambda p: [f"ds_read_b64_tr_b16 {vr(ZRg+4*(p % 3)+2*hh,2)}, v{vZT} offset:{(32*p + 4*hh)*PZ}" for hh in range(2)]

    def gq(p):
        it = []
        pp = GQ + 8 * (p % 3)
        for k in range(4):
            it += [f"v_lshlrev_b32 v{pp+2*k}, 16, v{QR+4*p+k}", f"v_and_b32 v{pp+2*k+1}, 0xffff0000, v{QR+4*p+k}",
                   f"v_mul_f32 v{pp+2*k}, v{pp+2*k}, v{vGG}", f"v_mul_f32 v{pp+2*k+1}, v{pp+2*k+1}, v{vGG}"]
        return it
    sc = lambda m: [f"v_fma_f32 v{OWN+4*m+k}, v{OWN+4*m+k}, v{vOG}, v{vB2}" for k in range(4)]

    def fin(p, hh):
        it = []
        o = OWN + 4 * ptile[p][hh]
        for k in range(2):
            zu, z, g = ZU + 2 * k, ZRg + 4 * (p % 3) + 2 * hh + k, GQ + 8 * (p % 3) + 4 * hh + 2 * k
            it += [f"v_lshlrev_b32 v{zu}, 16, v{z}", f"v_and_b32 v{zu+1}, 0xffff0000, v{z}"]
            if (p, hh) == (4, 1):
                it += [f"v_fma_f32 v{g}, v{g}, v{zu}, v{vB2}", f"v_fma_f32 v{g+1}, v{g+1}, v{zu+1}, v{vB2}"]
            else:
                it += [f"v_fmac_f32 v{o+2*k}, v{g}, v{zu}", f"v_fmac_f32 v{o+2*k+1}, v{g+1}, v{zu+1}",
                       f"v_cvt_pk_bf16_f32 v{QR+4*p+2*hh+k}, v{o+2*k}, v{o+2*k+1}"]
        return it
    ost = lambda p: [f"global_store_dwordx4 {qa(p)}, {vr(QR+4*p,4)}, {sp(P_OUT)} offset:{64*p} {opol if p < cfg.get('opn', 5) else ''}"]
    if cfg.get('dly'):
        a(f"s_sleep {cfg['dly']}")
    if UEP == 3:
        a.run(ustart)
    a(f"buffer_load_dword v{vGG}, v{vGA}, {srd(S_WS)}, 0 offen sc1")
    a.run(g2set)
    mf, pos = [], {}
    for q in range(120 // GR2):
        ns = range(q * GR2, (q + 1) * GR2)
        for jn in ((1, 2, 3, 0) if ns[0] < 108 else (1, 2, 3)):
            for n in ns:
                pos.setdefault(n, len(mf))
                mf.append(mf2(n, jn))
    pown = len(mf)
    mf += [mf2(n, 0) for n in range(108, 120)]
    S = Sched(mf)
    for n in range(120):
        S.reserve(pos[n] - 1)
    UC = cfg.get('pUC', 210)
    k = 0
    for n in range(UE, 120):
        free = 4 * GR2 * ((n - NB2) // GR2 + 1) if n >= NB2 else 0
        p = max(free, 4 * (n - NB2 + GR2) + 1, 2 * k)
        if n >= 60:
            p = max(p, min(UC + 1 + 2 * (n - 60), 4 * n - 2 if UC < 236 else max(239, 4 * (n - UE))))
        if n == 60:
            S.add('u', [P.poll_check('fu1', vP0, 30), stamp('fu1_ok')], p, p)
            pZ0 = p
        S.add('u', [u_load(n)], p, p)
        k += 1
    lastu = p
    S.add('st', [stamp('g2first')], 0, 0)
    S.add('st', [stamp('g2mid')], 240, 240)
    pF = cfg.get('pF', 40)
    S.add('z', [('wait', 'zst2' if NC == 3 else 'zst1'), stamp('barF'), P.flag(sFJ)], pF, pF + 1)
    zB = (0, 1) if NC == 2 else (0, 1, 4)
    zA = (2, 3, 4) if NC == 2 and not Z2 else (2, 3)
    UP = UC - cfg.get('pUP', 44)
    S.add('z', [P.poll_issue(vP0, 30), P.poll_issue(vP1, nz0, 2, PDZ)], UP, UP + 1)
    S.add('z', [P.poll_check('fz0', vP1, nz0, 2, PDZ), stamp('fz0_ok')] + z_ld(zB) + [f"v_add_u32 v{vP1}, {128*FSZ}, v{vP1}"], pZ0 + 3, pZ0 + 14, pace=2)
    ZP1, ZC1 = cfg.get('zp1', [325, 372])
    S.add('z', [P.poll_issue(vP1, nz1, 2, PDZ)], ZP1, ZP1)
    S.add('z', [P.poll_check('fz1', vP1, nz1, 2, PDZ), stamp('fz1_ok')] + z_ld(zA), ZC1, ZC1 + 8, pace=2)
    if Z2:
        ZP2, ZC2 = cfg.get('zp2', [390, 434])
        S.add('z2', [P.poll_issue(vP2, 8)], ZP2, ZP2)
        S.add('z2', [P.poll_check('fz2', vP2, 8), stamp('fz2_ok'),
                    f"buffer_load_dwordx4 {vr(ZL+8,4)}, v{vZG}, {srd(S_WS)}, s{zso[4]} offen sc1"], ZC2, ZC2 + 1)
    S.add('fin', [f"v_lshlrev_b32 v{vB2}, 16, v{vB2}", f"v_sub_f32 v{vOG}, 1.0, v{vGG}", f"v_mul_f32 v{vB2}, v{vB2}, v{vOG}"] + gq(0) + gq(1) + gq(2), 44, 200)
    OS = cfg.get('osat', 450)
    bars = cfg.get('bars', [3, 5, 7, 8])
    zlate = cfg.get('zlate', 0)
    flat = lambda l: [x for y in l for x in y]
    done = 0
    tailz = []
    for m in range(9):
        p = 48 * (m + 1)
        if m == 5:
            S.add('red', z_wr(zB), p - 14, p - 1, pace=4)
        if m == 8 and not zlate:
            S.add('red', z_wr(zA), p - 14, p - 1, pace=4)
        S.add('red', wr(m), p, p + 8, pace=3)
        if m in bars:
            S.add('red', [('wait', f'r2w{m}'), "s_barrier"], p + 11, p + 12)
            ms = list(range(done, m + 1))
            done = m + 1
            dl = None if m == 8 else 48 * (bars[bars.index(m) + 1] + 1) + 10
            it = []
            if m == 5:
                it += z_rd(0) + z_rd(1)
            if m == 8 and not zlate:
                it += z_rd(2) + z_rd(3) + ([] if Z2 else z_rd(4))
            it += flat(rd(t, t % 3) for t in ms[:3])
            if m == 8 and not zlate:
                it += ([] if Z2 else fin(4, 0) + fin(4, 1)) + fin(2, 0)
            if m == 5 and ms[0] > 1:
                it += fin(0, 0) + fin(0, 1)
            for i, t in enumerate(ms):
                it += ad(t, t % 3) + (rd(ms[i + 3], t % 3) if i + 3 < len(ms) else []) + sc(t)
            if m == 5:
                it += (fin(0, 0) + fin(0, 1) if ms[0] <= 1 else []) + fin(1, 0) + fin(1, 1) + gq(3) + gq(4)
                dl = min(dl, OS - 1)
                S.add('os', ost(0) + ost(1), OS, OS + 4, pace=3)
            if m == 8:
                last = fin(2, 1) + ost(2) + fin(3, 0) + fin(3, 1) + ost(3)
                if zlate:
                    tailz = fin(2, 0) + last + fin(4, 0) + fin(4, 1)
                else:
                    it += last
            S.add('fin', it, p + 13, dl)
    if zlate:
        S.add('red', z_wr(zA), pown - 8, pown, pace=3)
    S.add('red', wr(9), pown + 1, pown + 6, pace=2)
    ZIN = cfg.get('zin', 1)
    zw2 = (f"ds_write_b128 v{vZLW}, {vr(ZL+8,4)} offset:{4*32*PZ}", 'zw2')
    if Z2 and ZIN:
        S.add('red', [zw2], pown + 8, pown + 8)
    d2 = cfg.get('d2', '')
    post = []
    if 'z' in d2:
        a.run([x[0] for x in S.th['z'][:3]])
        post += [x[0] for x in S.th['z'][3:] + S.th.get('z2', [])]; S.th['z'] = []; S.th['z2'] = []
        S.th['u'] = [x for x in S.th['u'] if not callable(x[0])]
    for nm in ('red', 'fin', 'os'):
        if nm[0] in d2:
            post += [x[0] for x in S.th[nm]]; S.th[nm] = []
    its = S.items(keep=('fin',))
    if 'u' in d2:
        its = [x for x in its if not txt_of(x).startswith('buffer_load_dwordx4 a[')]
    if 'b' in d2:
        its = [x for x in its if txt_of(x) != 's_barrier']
    if 'w' in d2:
        its = [x for x in its if not (txt_of(x).startswith('ds_write_b128') and x[1:] != ('r2w9',)) and not (txt_of(x) == 'wait' and x[1].startswith('r2w'))]
    a.run(its)
    a.run([stamp('g2x')] + ([] if cfg.get('nopost') else post))
    P.info['g2'] = (S.over, S.under, len(S.left.get('fin', [])))
    a.run([stamp('g2mfma')])
    left = S.left.get('fin', [])
    if Z2:
        assert not zlate
        tailz = fin(4, 0) + fin(4, 1)
        if not ZIN:
            a.run(left)
            left = []
            a(zw2[0], tok='zw2')
        a.wait('zw2')
    if 'r2w9' in a.toks:
        a.wait('r2w9')
    a("s_barrier")
    if Z2:
        a.run(z_rd(4))
    for k in range(3):
        a(f"ds_read_b128 {vr(RD4+4*k,4)}, v{vR2S} offset:{4*12288 + k*1024}")
    if zlate:
        a.run(z_rd(2) + z_rd(3) + z_rd(4))
    a.run(left + tailz)
    for k in range(3):
        for hh in range(2):
            a(f"v_pk_add_f32 {vr(OWN+36+2*hh,2)}, {vr(OWN+36+2*hh,2)}, {vr(RD4+4*k+2*hh,2)}")
    g = GQ + 8 + 4
    for hh in range(2):
        a(f"v_pk_fma_f32 {vr(g+2*hh,2)}, {vr(OWN+36+2*hh,2)}, {vr(vOG,2)}, {vr(g+2*hh,2)} op_sel_hi:[1,0,1]")
    for hh in range(2):
        a(f"v_cvt_pk_bf16_f32 v{QR+18+hh}, v{g+2*hh}, v{g+2*hh+1}")
    a.run(ost(4))
    P.finish()
    a("s_endpgm")
    return P


def gen(cfg):
    h = Asm()
    h("s_load_dwordx16 s[36:51], s[0:1], 0")
    h("s_load_dwordx16 s[52:67], s[0:1], 56")
    if cfg.get('stamps') or cfg.get('amp'):
        h("s_memrealtime s[96:97]")
    h("s_cmp_ge_u32 s2, 256")
    h("s_cbranch_scc1 L_end")
    h("v_lshrrev_b32 v1, 6, v0")
    h("v_and_b32 v0, 63, v0")
    h(f"v_readfirstlane_b32 s{sW}, v1")
    rb = cfg.get('rolebit', 0)
    h(f"s_lshr_b32 s{sID}, s2, 3")
    if rb == 0:
        h(f"s_bfe_u32 s{sXQ}, s2, 0x20001")
    elif rb == 2:
        h(f"s_and_b32 s{sXQ}, s2, 3")
    else:
        h(f"s_bfe_u32 s{sXQ}, s2, 0x10002")
        h(f"s_and_b32 s{sT0}, s2, 1")
        h(f"s_lshl1_add_u32 s{sXQ}, s{sXQ}, s{sT0}")
    h(f"s_lshl_b32 s{sJ}, s{sXQ}, 5")
    h(f"s_add_u32 s{sJ}, s{sJ}, s{sID}")
    lay = cfg.get('lay', 'B')
    if lay == 'A':
        h(f"s_bitcmp1_b32 s2, {rb}")
        h("s_cbranch_scc1 L_B")
    else:
        h(f"s_bitcmp0_b32 s2, {rb}")
        h("s_cbranch_scc1 L_A")
    A, B = prog_A(cfg), prog_B(cfg)
    ref = open(f"cdna_kernels/{NAME}.s.ref").read().split('\n')
    head = [l for l in ref if l.startswith(';') and '@launch' not in l and 'Override' not in l and 'grid=ceil' not in l]
    txt = '\n'.join(head) + f"\n; @launch grid=(256,1,1) block=(256,1,1) lds={L_END}\n"
    txt += f""".amdgcn_target "amdgcn-amd-amdhsa--gfx950"
.text
.globl {NAME}_kernel
.p2align 8
.type {NAME}_kernel,@function
{NAME}_kernel:
"""
    if lay == 'A':
        txt += h.text() + '\n'.join(A.a.out[:A.split]) + '\n' + B.a.text() + ".p2align 7\n" + '\n'.join(A.a.out[A.split:]) + "\nL_end:\n    s_endpgm\n"
    else:
        txt += h.text() + B.a.text() + ".p2align 7\nL_A:\n" + '\n'.join(A.a.out[:A.split-1] + A.a.out[A.split:]) + "\nL_end:\n    s_endpgm\n"
    txt += f""".section .rodata,"a"
.p2align 6
.amdhsa_kernel {NAME}_kernel
  .amdhsa_next_free_vgpr 512
  .amdhsa_next_free_sgpr 102
  .amdhsa_accum_offset 256
  .amdhsa_group_segment_fixed_size 0
  .amdhsa_kernarg_size 120
  .amdhsa_user_sgpr_count 2
  .amdhsa_user_sgpr_kernarg_segment_ptr 1
  .amdhsa_system_sgpr_workgroup_id_x 1
  .amdhsa_float_denorm_mode_32 3
.end_amdhsa_kernel
"""
    return txt, dict(n_ins=(A.a.n_ins, B.a.n_ins), n_nop=(A.a.n_nop, B.a.n_nop), stamps=B.names, stampsA=A.names,
                     rolebit=rb, sched=(A.info, B.info))


if __name__ == "__main__":
    import json
    out = sys.argv[1]
    cfg = json.loads(sys.argv[2]) if len(sys.argv) > 2 else {}
    txt, info = gen(cfg)
    open(out, 'w').write(txt)
    print(out, info)


def dmap(T, i):
    dt, m = divmod(T, 5)
    r, g = dt >> 2, dt & 3
    P, hh = (2 * r + (m >> 1), m & 1) if m < 4 else (4, r)
    return 160 * g + 32 * P + 8 * (i >> 2) + 4 * hh + (i & 3)
```

```python
import sys
from asmlib import Asm, merge, Sched

NAME = "gated_mix__ssm_conv_h3__mixer_token_mlp__prompt"

WS_H, WS_U, WS_KV, WS_Z, WS_G = 0x0, 0x280000, 0x480000, 0x700000, 0x980000
WS_F1, WS_FK, WS_FU, WS_FZ, WS_EP, WS_DBG = 0x990000, 0x998000, 0x9A0000, 0x9B0000, 0x9C0000, 0x9D0000
WS_SIZE = 0xA10000
OOB = 0x7F000000
TAGC = 0x9E3779B9

NR = 4
L_RED = 65536
PL = 1344
L_LN = 32768
PK = 704
L_KI = L_RED
L_VI = L_RED + 25600
L_ZSTG = L_RED + 4 * 12288
L_CK = L_RED + 61440
KP, KPAD = 4224, 96
L_CX = L_CK + 3 * KP
XP, XPAD = 4608, 512
L_CAR = L_CX + 3 * XP
L_END = L_CAR + 1600
L_ZI = L_CK
PZ = 144

S_WS, S_K, S_V, S_W, S_SSM = 4, 8, 12, 16, 24
P_Q, P_SH, P_D, P_B1, P_B2, P_GW, P_OUT = 36, 42, 46, 54, 58, 60, 62
TK = 68
sW, sXQ, sID, sA, sB, sJ, sSP, sTAG, sRING, sC0, sFI, sFJ = range(84, 96)
sT0, sT1, sT2, sT3 = 32, 33, 34, 35
sU0, sU1, sU2, sU3 = 20, 21, 22, 23
sX0, sX1, sX2 = 31, 48, 49
sC2 = 39
sCNT = 3
vH, vI, vR, vC, vT, vT2 = 37, 38, 39, 40, 42, 43
VW, VT = 2, 6
vPD = 18
vCA, vCB, vCA2, vCB2 = 20, 21, 22, 23
vCRW, vCRW2, vCRR, vCRR2, vZW, vZR, vZS, vZS2, vCW = 25, 26, 27, 28, 29, 30, 31, 32, 33
vP0, vP1, vTAG = 35, 24, 34
CA, CB, CACC, CY, NSL = 64, 128, 192, 216, 6
CH, CR, ZO = 240, 246, 216
vZF = 252
C20 = 56


def srd(n):
    return f"s[{n}:{n+3}]"


def sp(n):
    return f"s[{n}:{n+1}]"


def vr(n, k):
    return f"v[{n}:{n+k-1}]"


def ar(n, k):
    return f"a[{n}:{n+k-1}]"


def txt_of(x):
    return x if isinstance(x, str) else (x[0] if isinstance(x, tuple) else '')


class Prog:
    def __init__(self, role, cfg):
        self.a = Asm()
        self.role = role
        self.cfg = cfg
        self.stamps = cfg.get('stamps', False)
        self.names = []
        self.npoll = 0
        self.nxt = self.drn = 0
        self.nstep = 16 if role == 'A' else 12
        self.info = {}

    def stamp(self, name):
        def f(a):
            st = self.stamps
            amp = self.cfg.get('amp')
            if amp and amp == [self.role, name]:
                a("s_memrealtime s[98:99]")
            if not st or (st != 1 and name not in st and name not in ('start', 'end')) or (st == 1 and name[0] == 'w' and name != 'w8'):
                return
            k = len(self.names)
            a("s_memtime s[98:99]")
            a("s_memrealtime s[100:101]")
            a(f"v_writelane_b32 v255, s98, {k}")
            a(f"v_writelane_b32 v255, s100, {32+k}")
            self.names.append(name)
        f.cost = 0
        return f

    def weight_src(self, pitch, sbase):
        it = [f"v_lshrrev_b32 v{vT}, 3, v0",
              f"v_and_b32 v{vT2}, 6, v{vT}",
              f"v_xor_b32 v{vT2}, v{vT2}, v0",
              f"v_and_b32 v{vT2}, 7, v{vT2}",
              f"v_mul_u32_u24 v{vT}, {pitch}, v{vT}",
              f"v_lshl_add_u32 v{vT}, v{vT2}, 4, v{vT}",
              f"v_add_u32 v{VW}, s{sbase}, v{vT}"]
        for i in range(1, 4):
            it.append(f"v_add_u32 v{VW+i}, {8*pitch-1024}, v{VW+i-1}")
        return it

    def weight_dst(self, xorw):
        it = [f"v_lshrrev_b32 v{vT}, 2, v0",
              f"v_lshlrev_b32 v{vT}, 7, v{vT}",
              f"v_lshl_add_u32 v{vT}, v{vC}, 3, v{vT}",
              f"v_bfe_u32 v{vT2}, v0, 3, 2"]
        if xorw:
            it.append(f"v_xor_b32 v{vT2}, s{sW}, v{vT2}")
        it += [f"v_lshl_add_u32 v{vT}, v{vT2}, 5, v{vT}",
               f"v_add_u32 v{VT}, s{sRING}, v{vT}"]
        for t in range(1, 4):
            it.append(f"v_xor_b32 v{VT+t}, {t*32}, v{VT}")
        return it

    def w_issue(self, j):
        it = [f"s_mul_i32 s{sU1}, s{TK+j}, {96 if self.role == 'A' else 128}",
              f"s_add_u32 m0, s{sRING}, {(j % NR)*16384}"]
        if j >= NR:
            it.append(('wait', f'wr{j-NR}'))
        for i in range(4):
            it.append((f"buffer_load_dwordx4 v{VW+i}, {srd(S_W)}, s{sU1} offen offset:{i*1024} {self.cfg.get('wpol', '')} lds", f'wd{j}'))
        return it

    def w_drain(self, j):
        it = [('wait', f'wd{j}')]
        for t in range(4):
            for e2 in range(2):
                it.append((f"ds_read_b64_tr_b16 {ar(16*j+4*t+2*e2,2)}, v{VT+t} offset:{(j % NR)*16384 + e2*2048}", f'wr{j}'))
        return it

    def w_step(self):
        it = []
        if self.nxt >= NR or self.nxt == self.nstep:
            it += self.w_drain(self.drn); self.drn += 1
        if self.nxt < self.nstep:
            it += self.w_issue(self.nxt); self.nxt += 1
        return it

    def flag(self, soff):
        return f"s_mov_b64 exec, 1\nbuffer_store_dword v{vTAG}, v0, {srd(S_WS)}, s{soff} offen sc1\ns_mov_b64 exec, -1"

    def flag_wg(self, soff, name):
        def f(a):
            a("s_barrier")
            a(f"s_cmp_lg_u32 s{sW}, 0")
            a(f"s_cbranch_scc1 L_nf_{name}")
            a.begin_cond(name)
            a(self.flag(soff))
            a.end_cond()
            a.label(f"L_nf_{name}")
        return f

    def set_tag(self, v):
        return [f"v_readfirstlane_b32 s{sTAG}, v{v}", f"s_add_u32 s{sTAG}, s{sTAG}, {hex(TAGC)}", f"v_mov_b32 v{vTAG}, s{sTAG}"]

    @staticmethod
    def setexec(n):
        if n == 32:
            return "s_mov_b32 exec_hi, 0"
        if n > 32:
            return f"s_mov_b32 exec_hi, {hex((1 << (n-32)) - 1)}"
        return f"s_mov_b64 exec, {hex((1 << n) - 1)}"

    def poll_load(self, va, wd, vd):
        if wd == 1:
            return f"buffer_load_dword v{vd}, v{va}, {srd(S_WS)}, 0 offen sc1"
        return f"buffer_load_dwordx{wd} {vr(vd,wd)}, v{va}, {srd(S_WS)}, 0 offen sc1"

    def poll_issue(self, va, n=64, wd=1, vd=vPD):
        it = [self.setexec(n)] if n < 64 else []
        it.append(self.poll_load(va, wd, vd))
        if n < 64:
            it.append("s_mov_b64 exec, -1")
        return "\n".join(it)

    def poll_check(self, name, va, n=64, wd=1, vd=vPD):
        name = self.role + name

        def cmp(a):
            if wd == 1:
                a(f"v_cmp_ne_u32 vcc, s{sTAG}, v{vd}")
                return
            a(f"v_xor_b32 v{vd}, s{sTAG}, v{vd}")
            for k in range(1, wd):
                a(f"v_bitop3_b32 v{vd}, v{vd}, v{vd+k}, v{vTAG} bitop3:0xf6")
            a(f"v_cmp_ne_u32 vcc, 0, v{vd}")

        def f(a):
            if n < 64:
                a(self.setexec(n))
            cmp(a)
            a(f"s_mov_b32 s{sCNT}, 0")
            a(f"s_branch L_pk_{name}" if name[1:] in self.cfg.get('nopoll', []) else f"s_cbranch_vccz L_pk_{name}")
            a.label(f"L_pl_{name}")
            a.begin_cond('poll' + name)
            a("s_mov_b64 exec, vcc")
            if self.cfg.get('psleep'):
                a(f"s_sleep {self.cfg['psleep']}")
            a(self.poll_load(va, wd, vd))
            a(f"s_add_u32 s{sCNT}, s{sCNT}, 1")
            a(f"s_cmp_ge_u32 s{sCNT}, 0x40000")
            a(f"s_cbranch_scc1 L_pk_{name}")
            cmp(a)
            a("s_nop 0")
            a(f"s_cbranch_vccnz L_pl_{name}")
            a.end_cond()
            a.label(f"L_pk_{name}")
            a("s_mov_b64 exec, -1")
            if self.stamps:
                a(f"v_writelane_b32 v254, s{sCNT}, {self.npoll}")
                self.npoll += 1
        f.cost = 5
        return f

    def zflag_addr(self, dst, first):
        fsz = self.cfg.get('fsz', 32)
        return [f"s_add_u32 s{dst}, s{sJ}, {first}", f"s_mul_i32 s{dst}, s{dst}, {fsz}",
                f"s_lshl1_add_u32 s{sT0}, s{sT3}, s{sT2}", f"s_lshl2_add_u32 s{dst}, s{sT0}, s{dst}",
                f"s_add_u32 s{dst}, s{dst}, {WS_FZ}"]

    def lanes(self):
        return ["v_lshlrev_b32 v1, 4, v0",
                f"v_lshrrev_b32 v{vH}, 4, v0", f"v_and_b32 v{vI}, 15, v0",
                f"v_bfe_u32 v{vR}, v0, 2, 2", f"v_and_b32 v{vC}, 3, v0",
                f"s_lshr_b32 s{sT2}, s{sW}, 1", f"s_and_b32 s{sT3}, s{sW}, 1",
                f"s_lshl_b32 s{sRING}, s{sW}, 12"]

    def code_prefetch(self, beg, end):
        r = self.role
        return [f"s_getpc_b64 {sp(sU2)}", f"L_pc{r}:",
                f"s_lshl2_add_u32 s{sT2}, s{sID}, s{sW}",
                f"v_lshl_add_u32 v{vT}, s{sT2}, 1, v0",
                f"v_lshlrev_b32 v{vT}, 7, v{vT}",
                f"v_add_u32 v{vT}, {beg}-L_pc{r}, v{vT}",
                f"v_min_u32 v{vT}, {end}-L_pc{r}, v{vT}",
                "s_mov_b64 exec, 3",
                f"global_load_dword v253, v{vT}, {sp(sU2)}",
                "s_mov_b64 exec, -1"]

    def epoch_load(self, v):
        return [f"s_mov_b32 s{sT0}, {WS_EP}", "s_mov_b64 exec, 1",
                f"buffer_load_dword v{v}, v0, {srd(S_WS)}, s{sT0} offen sc1", "s_mov_b64 exec, -1"]

    def conv_setup(self, nch):
        ZR = 68
        it = [f"s_mul_i32 s{sC2}, s{sXQ}, 160",
              f"s_lshl1_add_u32 s{sC0}, s{sID}, s{sC2}",
              f"s_add_u32 s{sC0}, s{sC0}, {64 if self.role == 'A' else 0}",
              f"s_add_u32 s{sC2}, s{sC2}, s{sID}",
              f"s_add_u32 s{sC2}, s{sC2}, 128",
              f"s_lshl_b32 s{sT0}, s{sC0}, 1",
              f"s_load_dword s28, {sp(P_D)}, s{sT0}"]
        if nch == 3:
            it += [f"s_lshr_b32 s{sT1}, s{sC2}, 1", f"s_lshl_b32 s29, s{sT1}, 2", f"s_load_dword s30, {sp(P_D)}, s29"]
        it += [f"s_lshl_b32 s{sX0}, s{sC0}, 12",
               f"s_lshl_b32 s{sT1}, s{sW}, 10",
               f"s_add_u32 s{sX0}, s{sX0}, s{sT1}",
               f"s_add_u32 s{sX1}, s{sX0}, 4096",
               f"s_lshl_b32 s{sX2}, s{sC2}, 12",
               f"s_add_u32 s{sX2}, s{sX2}, s{sT1}"]
        it += [f"v_mov_b32 v{ZR+i}, 0" for i in range(4)]
        it += [f"s_min_u32 s{sT0}, s{sW}, 2",
               f"s_mul_i32 s{sT1}, s{sT0}, {XP}",
               f"s_add_u32 s{sT1}, s{sT1}, {L_CX}",
               f"v_add_u32 v{vT}, s{sT1}, v1",
               f"s_mul_i32 s{sT1}, s{sT0}, {KP}",
               f"s_add_u32 s{sT1}, s{sT1}, {L_CK}",
               f"v_add_u32 v{vT2}, s{sT1}, v1",
               f"s_mul_i32 s{sT1}, s{sT0}, {33*16}",
               f"s_add_u32 s{sT1}, s{sT1}, {L_CAR}",
               f"v_mov_b32 v{vPD}, s{sT1}",
               "s_mov_b32 exec_hi, 0",
               f"ds_write_b128 v{vT}, {vr(ZR,4)}",
               f"s_mov_b64 exec, {hex((1 << (KPAD//16)) - 1)}",
               f"ds_write_b128 v{vT2}, {vr(ZR,4)}",
               "s_mov_b64 exec, 1",
               f"ds_write_b128 v{vPD}, {vr(ZR,4)}",
               "s_mov_b64 exec, -1"]
        it += [f"v_lshl_add_u32 v{vT}, v{vH}, 3, v{vR}",
               f"v_lshlrev_b32 v{vT2}, 2, v{vC}",
               f"v_sub_u32 v{vT2}, v{vT2}, v{vT}",
               f"v_lshlrev_b32 v{vT2}, 3, v{vT2}",
               f"s_mul_i32 s{sT0}, s{sT2}, {KP}",
               f"s_add_u32 s{sT0}, s{sT0}, {L_CK + KPAD + 152 - 32}",
               f"v_add_u32 v{vCA}, s{sT0}, v{vT2}"]
        if nch == 3:
            it.append(f"v_add_u32 v{vCA2}, {L_CK + 2*KP + KPAD + 152 - 32}, v{vT2}")
        it += [f"v_add_lshl_u32 v{vT}, v{vT}, v{vC}, 3",
               f"s_mul_i32 s{sT0}, s{sT2}, {XP}",
               f"s_lshl_b32 s{sT1}, s{sT3}, 7",
               f"s_add_u32 s{sT0}, s{sT0}, s{sT1}",
               f"s_add_u32 s{sT0}, s{sT0}, {L_CX + XPAD - 152}",
               f"v_add_u32 v{vCB}, s{sT0}, v{vT}"]
        if nch == 3:
            it += [f"s_lshl_b32 s{sT0}, s{sW}, 7",
                   f"s_add_u32 s{sT0}, s{sT0}, {L_CX + 2*XP + XPAD - 152 - 256}",
                   f"v_add_u32 v{vCB2}, s{sT0}, v{vT}"]
        return it

    def conv_setup2(self, nch):
        it = [f"s_mul_i32 s{sT0}, s{sT2}, {33*16}",
              f"s_lshl4_add_u32 s{sT0}, s{sT3}, s{sT0}",
              f"s_add_u32 s{sT0}, s{sT0}, {L_CAR}",
              f"v_lshlrev_b32 v{vT}, 2, v{vC}",
              f"v_lshl_add_u32 v{vT2}, v{vR}, 5, v{vT}",
              f"v_add_u32 v{vCRR}, s{sT0}, v{vT2}",
              f"s_add_u32 s{sT0}, s{sT0}, {(16 - 48*32) & 0xffffffff}",
              f"v_lshl_add_u32 v{vCRW}, v0, 5, s{sT0}"]
        if nch == 3:
            it += [f"s_lshl_b32 s{sT0}, s{sW}, 4",
                   f"s_add_u32 s{sT0}, s{sT0}, {L_CAR + 2*33*16}",
                   f"v_lshl_add_u32 v{vT2}, v{vR}, 6, v{vT}",
                   f"v_add_u32 v{vCRR2}, s{sT0}, v{vT2}",
                   f"s_add_u32 s{sT0}, s{sT0}, {(16 - 56*64) & 0xffffffff}",
                   f"v_lshl_add_u32 v{vCRW2}, v0, 6, s{sT0}"]
        it += [f"s_mul_i32 s{sT0}, s{sW}, 3072",
               f"s_add_u32 s{sT0}, s{sT0}, {L_ZSTG}",
               f"v_lshl_add_u32 v{vZW}, v0, 1, s{sT0}",
               f"v_add_u32 v{vZR}, s{sT0}, v1",
               f"v_lshl_add_u32 v{vT}, v{vC}, 1, s{sT0}",
               f"v_lshl_add_u32 v{vZF}, v{vR}, 7, v{vT}",
               f"v_lshrrev_b32 v{vT}, 3, v0",
               f"v_and_b32 v{vT2}, 7, v0",
               f"v_lshlrev_b32 v{vT2}, 4, v{vT2}",
               f"v_lshl_add_u32 v{vZS}, v{vT}, 8, v{vT2}",
               f"s_add_u32 s{sT0}, s{sC0}, s{sT2}",
               f"s_lshl_b32 s{sT0}, s{sT0}, 12",
               f"s_lshl_b32 s{sT1}, s{sT3}, 7",
               f"s_add_u32 s{sT0}, s{sT0}, s{sT1}",
               f"s_add_u32 s{sT0}, s{sT0}, {WS_Z}",
               f"v_add_u32 v{vZS}, s{sT0}, v{vZS}"]
        if nch == 3:
            it += [f"v_lshl_add_u32 v{vZS2}, v{vT}, 9, v{vT2}",
                   f"s_lshl_b32 s{sT0}, s{sC2}, 12",
                   f"s_lshl_b32 s{sT1}, s{sW}, 7",
                   f"s_add_u32 s{sT0}, s{sT0}, s{sT1}",
                   f"s_add_u32 s{sT0}, s{sT0}, {WS_Z}",
                   f"v_add_u32 v{vZS2}, s{sT0}, v{vZS2}"]
        if nch == 3:
            it += [f"s_and_b32 s{sT0}, s{sC2}, 1",
                   f"s_lshl_b32 s{sT0}, s{sT0}, 4",
                   f"s_lshr_b32 s30, s30, s{sT0}",
                   f"s_lshl_b32 s30, s30, 16"]
        fsk = self.cfg.get('fsk', 16)
        it += [f"s_lshl_b32 s{sT0}, s{sT2}, 4", f"s_lshr_b32 s28, s28, s{sT0}", f"s_lshl_b32 s28, s28, 16",
               f"s_lshl_b32 s29, s{sW}, 10",
               f"s_lshr_b32 s{sT0}, s{sXQ}, 1",
               f"s_lshl2_add_u32 s{sT0}, s{sT0}, s{sW}",
               f"v_lshl_add_u32 v{vP1}, s{sT0}, 4, v0",
               f"v_mul_u32_u24 v{vP1}, {fsk}, v{vP1}",
               f"v_add_u32 v{vP1}, {WS_FK}, v{vP1}"]
        return it

    def ssm_loads(self, nch):
        return [(f"s_add_u32 m0, s29, {L_CK + KPAD + cs*KP}\nbuffer_load_dwordx4 v1, {srd(S_SSM)}, s{so} offen {self.cfg.get('spol', '')} lds\ns_add_u32 s{so}, s{so}, {WS_KV}", 'kd')
                for cs, so in enumerate((sX0, sX1, sX2)[:nch])]

    def x_loads(self, nch):
        return [(f"s_add_u32 m0, s29, {L_CX + XPAD + cs*XP}\nbuffer_load_dwordx4 v1, {srd(S_WS)}, s{so} offen sc1 lds", 'xd')
                for cs, so in enumerate((sX0, sX1, sX2)[:nch])]

    def dpatch(self, part):
        it = []
        r0 = C20 if part == 2 and self.role == 'A' else CA
        for r, mk in ((r0 + 1, 0x01000001), (r0 + 3, 0x10000010)):
            it += [f"v_and_b32 v{vT2}, 0xffff0000, v{r}", f"v_lshlrev_b32 v{vT}, 16, v{r}",
                   f"v_add_f32 v{vT2}, s{28 if part == 1 else 30}, v{vT2}",
                   f"s_mov_b32 exec_lo, 0\ns_mov_b32 exec_hi, {hex(mk)}\nv_cvt_pk_bf16_f32 v{r}, v{vT}, v{vT2}\ns_mov_b64 exec, -1"]
        return it

    def conv_pre(self, n):
        it = []
        for c in range(n):
            it += self.c_read(1, c)
        return it + self.dpatch(1)

    tiles = [(1, m, m) for m in range(16)] + [(2, n, 2 * n + 1) for n in range(8)]

    def fa(self, part, c, o=0, k=4):
        if part == 2 and self.role == 'A':
            return vr(C20 + o, k) if c == 0 else ar(4 * c + o, k)
        return vr(CA + 4 * c + o, k)

    def fb(self, part, n, o=0, k=4):
        if part == 2 and self.role == 'A':
            return ar(64 + 4 * n + o, k)
        return vr(CB + 4 * (n if part == 1 else 15 - n) + o, k)

    def c_read(self, part, c):
        va, vb = (vCA, vCB) if part == 1 else (vCA2, vCB2)
        return ([f"ds_read_b64_tr_b16 {self.fa(part,c,2*e2,2)}, v{va} offset:{256*c + 32*(1-e2)}" for e2 in range(2)] +
                [f"ds_read_b64_tr_b16 {self.fb(part,c,2*e2,2)}, v{vb} offset:{256*c + 32*e2}" for e2 in range(2)])

    def tile_epi(self, g):
        part, k, m = self.tiles[g]
        d = CACC + 4 * (g % NSL)
        p = CACC + 4 * ((g - 1) % NSL)
        dp = "wave_shr:1 row_mask:0xf bank_mask:0xf bound_ctrl:0"
        it = []
        for j, dst in ((3, d + 2), (2, d + 1), (1, CY + g)):
            it.append(f"v_add_f32_dpp v{dst}, v{d+j}, v{d+j-1} {dp}")
            if k:
                it.append(f"v_mov_b32_dpp v{d+j}, v{p+j} wave_shl:1 row_mask:0xf bank_mask:0xf")
        if g in (15, 23):
            va, mk = (vCRW, '0xffff0000') if g == 15 else (vCRW2, '0xff000000')
            it.append((f"s_mov_b32 exec_lo, 0\ns_mov_b32 exec_hi, {mk}\nds_write_b128 v{va}, {vr(d,4)}\ns_mov_b64 exec, -1", f'carw{part}'))
        return it

    def stage(self, g):
        it = []
        for t in (g, g + 1):
            j = t % 4
            it.append(f"v_mov_b32 v{CH+t//4}, v{CY+t}" if j == 0 else
                      f"v_mov_b32_dpp v{CH+t//4}, v{CY+t} row_shr:{4*j} row_mask:0x1 bank_mask:{hex(1 << j)}")
        return it + [f"v_cvt_pk_bf16_f32 v{CY+g}, v{CY+g}, v{CY+g+1}",
                     f"ds_write_b16 v{vZW}, v{CY+g} offset:{128*g}", f"ds_write_b16_d16_hi v{vZW}, v{CY+g} offset:{128*(g+1)}"]

    def conv_sched(self, nt, cpre, cap, sg0=0):
        mf, first = [], []
        for g, (part, k, m) in enumerate(self.tiles[:nt]):
            d = vr(CACC + 4 * (g % NSL), 4)
            first.append(len(mf))
            mf += [f"v_mfma_f32_16x16x32_bf16 {d}, {self.fa(part,c)}, {self.fb(part,m-c)}, {'0' if c == 0 else d}"
                   for c in range(m + 1)]
        first += [len(mf)] * 8
        S = Sched(mf, cap)
        LEAD = self.cfg.get('lead', 7)
        for g in range(1, nt):
            S.reserve(first[g] - 1)
        for c in range(cpre, 16):
            S.add('rd', self.c_read(1, c), 0, max(first[c] - LEAD, 0))
        if nt > 16 and self.role == 'A':
            r0 = self.cfg.get('r2A', 60)
            for c in range(16):
                S.add('rd2', self.c_read(2, c), r0, min(first[16 + c // 2] - LEAD, r0 + 12 + 7 * c))
            S.add('dp', self.dpatch(2), r0 + 20, first[16] - 2)
        elif nt > 16:
            for c in range(16):
                dl = max(first[16 + c // 2] - LEAD, first[15] + c + 1) if c else first[15] + 4
                S.add('rd', self.c_read(2, c), first[15] + c + 1, dl)
            S.add('dp', self.dpatch(2), first[15] + 8, first[16] - 2)
        self.sgrel = {}
        for g in range(nt - 1):
            dl = min(first[g + NSL - 1] - 1, first[g + 1] + (self.cfg.get('epl', 24) if g < 12 else 8))
            S.add('ep', self.tile_epi(g), first[g + 1] + 2, dl)
            if g & 1:
                self.sgrel[g - 1] = max(dl + 1, sg0)
        self.first = first
        return S

    def z_fix(self, part):
        qs = (0, 2) if part == 1 else (4,)
        va, st = (vCRR, 32) if part == 1 else (vCRR2, 64)
        it = [f"ds_read2_b32 {vr(CR+q,2)}, v{va} offset0:{1+st*(q % 4)} offset1:{1+st*(q % 4 + 1)}" for q in qs]
        for q in qs:
            it += [f"v_add_f32 v{CH+q}, v{CH+q}, v{CR+q}", f"v_add_f32 v{CH+q+1}, v{CH+q+1}, v{CR+q+1}",
                   f"v_cvt_pk_bf16_f32 v{CH+q}, v{CH+q}, v{CH+q+1}",
                   f"s_mov_b64 exec, 0x7777\nds_write_b16 v{vZF}, v{CH+q} offset:{512*q}\nds_write_b16_d16_hi v{vZF}, v{CH+q} offset:{512*(q+1)}\ns_mov_b64 exec, -1",
                   f"ds_read_b128 {vr(ZO+2*q,4)}, v{vZR} offset:{512*q}"]
        if part == 1:
            st = [(f"buffer_store_dwordx4 {vr(ZO,4)}, v{vZS}, {srd(S_WS)}, 0 offen sc1", 'zst1'),
                  (f"buffer_store_dwordx4 {vr(ZO+4,4)}, v{vZS}, {srd(S_WS)}, 0 offen offset:2048 sc1", 'zst1')]
        else:
            st = [(f"buffer_store_dwordx4 {vr(ZO+8,4)}, v{vZS2}, {srd(S_WS)}, 0 offen sc1", 'zst2')]
        return it, st

    def conv_run(self, S, nt, early, flag1=None, mid=((), (), ())):
        a = self.a
        for g in range(0, nt - 2, 2):
            S.add('sg', self.stage(g), self.sgrel[g], None)
            if early and g == 14:
                f1, s1 = self.z_fix(1)
                p = self.cfg.get('pE1', 146)
                S.th['sg'][-1][2] = p - 1
                S.add('sg', [('wait', 'carw1'), "s_barrier"], p, p + 1)
                S.add('sg', f1[:2], p + 1, p + 3)
                e1, e2 = self.cfg.get('e12', [6, 20])
                S.add('sg', f1[2:], p + e1, p + e1 + 10)
                S.add('sg', s1, p + e2, p + e2 + 2)
        f1in = early and self.cfg.get('f1in', 1)
        its = S.items(keep=('sg',))
        wi = self.cfg.get('wi' + self.role, 0)
        if wi:
            keep, n = [], 0
            for x in its:
                t = txt_of(x)
                if t.startswith('v_mfma'):
                    n += 1
                drop = n > wi and (t.startswith(('v_mfma', 'v_add_f32_dpp', 'v_mov_b32_dpp')) or t.startswith('ds_read_b64_tr_b16 v'))
                if not drop:
                    keep.append(x)
            its = keep
        a.run(its)
        self.info['conv'] = (S.over, S.under, len(S.left.get('sg', [])))
        a.run([self.stamp('conv')])
        if f1in:
            a.run([('wait', 'zst1'), flag1])
        a.run(mid[0])
        a.run(merge(S.left.get('sg', []) or ["s_nop 0"], self.tile_epi(nt - 1)))
        a.run(self.stage(nt - 2))
        a.run(mid[1])
        a.wait('carw2' if nt > 16 else 'carw1')
        a("s_barrier")
        parts = [2] if early else ([1, 2] if nt > 16 else [1])
        fs = [self.z_fix(p) for p in parts]
        if early and not f1in:
            a.run(fs[0][0][:1] + [('wait', 'zst1'), flag1] + fs[0][0][1:])
        else:
            a.run([x for f in fs for x in f[0]])
        a.run(mid[2])
        a.run([x for f in fs for x in f[1]])
        a.run([self.stamp('z_st')])

    def finish(self):
        a = self.a
        a.run([self.stamp('end')])
        amp = self.cfg.get('amp')
        if amp and amp[0] == self.role:
            if self.role == 'A':
                a(f"s_cmp_ge_u32 s{sID}, 30")
                a("s_cbranch_scc1 L_end")
            a("s_memrealtime s[100:101]")
            a("s_sub_u32 s98, s98, s96")
            a("s_mul_i32 s98, s98, 20")
            a("s_min_u32 s98, s98, 200000")
            a("s_add_u32 s98, s98, s100")
            a.label("L_amp")
            a("s_memrealtime s[100:101]")
            a("s_sub_u32 s100, s100, s98")
            a("s_cmp_lt_i32 s100, 0")
            a("s_cbranch_scc1 L_amp")
        if self.stamps:
            if not self.cfg.get('nodrain'):
                a.wait_all()
            a("s_memrealtime s[98:99]")
            a(f"v_writelane_b32 v255, s96, 30")
            a(f"v_writelane_b32 v255, s98, 31")
            for k in range(self.npoll):
                a(f"v_readlane_b32 s{sT0}, v254, {k}")
                a(f"v_writelane_b32 v255, s{sT0}, {24+k}")
            a(f"s_lshl2_add_u32 s{sT0}, s2, s{sW}")
            a(f"s_lshl_b32 s{sT0}, s{sT0}, 8")
            a(f"s_add_u32 s{sT0}, s{sT0}, {WS_DBG}")
            a(f"v_lshlrev_b32 v{vT}, 2, v0")
            a(f"buffer_store_dword v255, v{vT}, {srd(S_WS)}, s{sT0} offen")


KERNARG = {f"s{i}" for i in range(36, 68)}


def prog_A(cfg):
    P = Prog('A', cfg)
    a, stamp = P.a, P.stamp
    a.smem_pending = set(KERNARG) | {'s96', 's97'}
    FS1, FSU, FSZ = cfg.get('fs1', 32), cfg.get('fsu', 64), cfg.get('fsz', 32)
    NB, GR = cfg.get('nb', 14), cfg.get('grp', 2)
    sDG, sFT = sA, sB
    KW, HW = cfg.get('kw', 1), cfg.get('hw', 1)
    NC = 3 if cfg.get('third', 'A') == 'A' else 2
    NT = 8*NC
    if cfg.get('cpf', 1) and cfg.get('lay', 'C') != 'C':
        a.run(P.code_prefetch("L_Amain", "L_end"))
    a(f"s_mul_i32 s{sT0}, s{sID}, 52")
    a(f"s_lshr_b32 s{sT0}, s{sT0}, 8")
    a(f"s_mul_i32 s{sT1}, s{sT0}, 5")
    a(f"s_sub_u32 s{sDG}, s{sID}, s{sT1}")
    a(f"s_min_u32 s{sT0}, s{sT0}, 5")
    a(f"s_mul_i32 s{sFT}, s{sXQ}, 6")
    a(f"s_add_u32 s{sFT}, s{sFT}, s{sT0}")
    a(f"s_lshl4_add_u32 s{sT1}, s{sDG}, s{sW}")
    a(f"s_mul_i32 s{sT1}, s{sT1}, 205")
    a(f"s_lshr_b32 s{sT1}, s{sT1}, 10")
    sOWN = 38
    if cfg.get('rkA', 0):
        a(f"s_lshr_b32 s{sCNT}, s{sT0}, 1")
        a(f"s_mul_i32 s{sCNT}, s{sCNT}, {cfg.get('rkA', 0)}")
        a(f"s_add_u32 s{sT1}, s{sT1}, s{sCNT}")
        a(f"s_and_b32 s{sT1}, s{sT1}, 15")
    a(f"s_lshl_b32 s{TK}, s{sT1}, 10")
    a(f"s_add_u32 s{sT1}, s{TK}, 1024")
    a(f"s_and_b32 s{TK+1}, s{sT1}, 0x3c00")
    a(f"s_lshl_b32 s{sRING}, s{sW}, 12")
    a(f"s_mul_i32 s{sT0}, s{sW}, {512*3072}")
    a(f"s_lshl_b32 s{sT1}, s{sFT}, 7")
    a(f"s_add_u32 s{sT0}, s{sT0}, s{sT1}")
    a.run(P.weight_src(3072, sT0))
    a(f"s_mov_b32 s{S_W+2}, 6291456")
    a(f"s_mov_b32 s{S_W+3}, 0x20000")
    P.split0 = len(a.out)
    a(f"s_cmp_ge_u32 s{sID}, 30")
    a(f"s_cselect_b32 s{sSP}, {OOB}, 0")
    a(f"s_mov_b64 {sp(S_W)}, {sp(50)}")
    a("s_cbranch_scc1 L_Amain")
    a.run(P.w_step())
    a.run([stamp('start')])
    a.run(P.w_step())
    a("s_branch L_Amain")
    P.split = len(a.out)
    a.label("L_Amain")
    if cfg.get('lay', 'C') != 'C':
        a.run(P.lanes())
    if cfg.get('hlpA', 1):
        a(f"s_cmp_lt_u32 s{sID}, 30")
        a("s_cbranch_scc1 L_Anh")
        a.begin_cond('hlp')
        a(f"s_lshl1_add_u32 s{sT0}, s{sXQ}, 3")
        a(f"s_and_b32 s{sT0}, s{sT0}, 7")
        a(f"s_min_u32 s{sT0}, s{sT0}, 5")
        a(f"s_lshr_b32 s{sCNT}, s{sT0}, 1")
        a(f"s_mul_i32 s{sCNT}, s{sCNT}, {cfg.get('rkA', 0)}")
        a(f"s_add_u32 s{sCNT}, s{sCNT}, 15")
        a(f"s_mul_i32 s{sT1}, s{sXQ}, 6")
        a(f"s_add_u32 s{sT0}, s{sT0}, s{sT1}")
        a(f"s_lshl_b32 s{sT0}, s{sT0}, 7")
        a(f"s_mul_i32 s{sT1}, s{sW}, {512*3072}")
        a(f"s_add_u32 s{sU0}, s{sT0}, s{sT1}")
        for i in range(2):
            if i == 0:
                a(f"v_lshrrev_b32 v{vT}, 5, v0")
                a(f"v_lshl_add_u32 v{vT}, s{sDG}, 1, v{vT}")
                a(f"v_and_b32 v{vT2}, 31, v0")
            else:
                a(f"v_mov_b32 v{vT}, 4")
                a(f"v_lshl_add_u32 v{vT2}, s{sDG}, 4, v{vI}")
            a(f"v_add_u32 v{vT}, 1, v{vT}")
            a(f"v_lshl_add_u32 v{vT}, v{vT}, 4, s{sW}")
            a(f"v_mul_u32_u24 v{vT}, 205, v{vT}")
            a(f"v_lshrrev_b32 v{vT}, 10, v{vT}")
            a(f"v_add_u32 v{vT}, s{sCNT}, v{vT}")
            a(f"v_and_b32 v{vT}, 15, v{vT}")
            a(f"v_lshl_add_u32 v{vT}, v{vT}, 5, v{vT2}")
            a(f"v_mul_u32_u24 v{vT}, 3072, v{vT}")
            if i:
                a("s_mov_b64 exec, 0xffff")
            a(f"buffer_load_dword v{250+i}, v{vT}, {srd(S_W)}, s{sU0} offen")
        a("s_mov_b64 exec, -1")
        a.end_cond()
        a.label("L_Anh")
    HA = cfg.get('hlpA2', 0)
    if HA:
        a(f"s_lshl1_add_u32 s{sT0}, s{sXQ}, 3")
        a(f"s_and_b32 s{sT0}, s{sT0}, 7")
        a(f"s_mul_i32 s{sT1}, s{sXQ}, 6")
        a(f"s_add_u32 s{sU0}, s{sT0}, s{sT1}")
        a(f"s_sub_u32 s{sT1}, s{sFT}, s{sU0}")
        a(f"s_add_u32 s{sT1}, s{sT1}, 5")
        a(f"s_cmp_ge_u32 s{sT1}, 6")
        a(f"s_cselect_b32 s{sCNT}, 6, 0")
        a(f"s_sub_u32 s{sT1}, s{sT1}, s{sCNT}")
        a(f"s_lshl_b32 s{sU0}, s{sU0}, 7")
        a(f"s_cmp_ge_u32 s{sT1}, 5")
        a(f"s_cselect_b32 s{sU0}, {OOB}, s{sU0}")
        a(f"s_cmp_ge_u32 s{sT0}, 6")
        a(f"s_cselect_b32 s{sU0}, {OOB}, s{sU0}")
        a(f"s_or_b32 s{sU0}, s{sU0}, s{sSP}")
        a(f"s_lshr_b32 s{sT0}, s{sT0}, 1")
        a(f"s_mul_i32 s{sT0}, s{sT0}, {cfg.get('rkA', 0)}")
        a(f"s_add_u32 s{sCNT}, s{sDG}, 1")
        a(f"s_lshl4_add_u32 s{sCNT}, s{sCNT}, s{sW}")
        a(f"s_mul_i32 s{sCNT}, s{sCNT}, 205")
        a(f"s_lshr_b32 s{sCNT}, s{sCNT}, 10")
        a(f"s_add_u32 s{sT0}, s{sT0}, s{sCNT}")
        a(f"s_add_u32 s{sT0}, s{sT0}, 14")
        a(f"s_and_b32 s{sT0}, s{sT0}, 15")
        a(f"s_lshl4_add_u32 s{sT0}, s{sW}, s{sT0}")
        a(f"s_lshl_b32 s{sT0}, s{sT0}, 5")
        a(f"s_mul_i32 s{sT1}, s{sT1}, {HA}")
        a(f"s_add_u32 s{sT0}, s{sT0}, s{sT1}")
        a(f"s_add_u32 s{sT0}, s{sT0}, {32 - 5*HA}")
        a(f"v_add_u32 v{vT}, s{sT0}, v0")
        a(f"v_mul_u32_u24 v{vT}, 3072, v{vT}")
        a(f"s_mov_b64 exec, {hex((1 << HA) - 1)}")
        a(f"buffer_load_dword v249, v{vT}, {srd(S_W)}, s{sU0} offen")
        a("s_mov_b64 exec, -1")
    for (s, n) in ((S_WS, WS_SIZE), (S_SSM, 2621440)):
        a(f"s_mov_b32 s{s+2}, {n}")
        a(f"s_mov_b32 s{s+3}, 0x20000")
    for j in range(2, 16):
        a(f"s_add_u32 s{sT1}, s{TK+j-1}, 1024")
        a(f"s_and_b32 s{TK+j}, s{sT1}, 0x3c00")
    a(f"s_mov_b64 {sp(S_WS)}, {sp(66)}")
    a(f"s_mov_b64 {sp(S_SSM)}, {sp(44)}")
    a.run(P.weight_dst(False))
    a.run(P.zflag_addr(sFJ, 128))
    a.run(P.conv_setup(NC))
    vHL, vRW, vRR, vUS, vEP, vX0 = 10, 44, 47, 48, 49, 50
    BL = 54
    g1set = [f"s_mul_i32 s{sOWN}, s{sFT}, {cfg.get('roA', 0)}", f"s_add_u32 s{sOWN}, s{sOWN}, s{sW}", f"s_and_b32 s{sOWN}, s{sOWN}, 3",
             f"s_lshl_b32 s{sCNT}, s{sDG}, 18", f"s_lshl_b32 s{sT1}, s{sW}, 14", f"s_add_u32 s{sCNT}, s{sCNT}, s{sT1}",
             f"s_add_u32 s{sCNT}, s{sCNT}, s{sSP}"]
    for i in range(4):
        g1set += [f"s_add_u32 s{sT0}, s{sOWN}, {i+1}",
                  f"s_and_b32 s{sT0}, s{sT0}, 3",
                  f"s_mul_i32 s{sT1}, s{sT0}, 12288",
                  f"s_add_u32 s{sT1}, s{sT1}, {L_RED + (i*4096 if i < 3 else 0)}",
                  f"v_add_u32 v{vRW+i}, s{sT1}, v1",
                  f"s_lshl_b32 s{sT0}, s{sT0}, 16",
                  f"s_add_u32 s{sT0}, s{sT0}, s{sCNT}",
                  f"v_add_u32 v{vHL+i}, s{sT0}, v1",
                  f"v_add_u32 v{vHL+4+i}, {20*65536}, v{vHL+i}"]
    g1set += [f"v_lshl_add_u32 v{vP0}, s{sW}, 5, v0",
              f"v_mul_u32_u24 v{vP0}, {FS1}, v{vP0}",
              f"v_add_u32 v{vP0}, {WS_F1}, v{vP0}",
              f"s_lshl_b32 s{sT0}, s{sFT}, 7",
              f"v_lshl_add_u32 v{vX0}, v{vH}, 3, s{sT0}",
              f"s_lshl2_add_u32 s{sT0}, s{sDG}, s{sOWN}",
              f"s_mul_i32 s{sFI}, s{sT0}, 24",
              f"s_add_u32 s{sFI}, s{sFI}, s{sFT}",
              f"s_mul_i32 s{sFI}, s{sFI}, {FSU}",
              f"s_add_u32 s{sFI}, s{sFI}, {WS_FU}",
              f"s_add_u32 s{sFI}, s{sFI}, s{sSP}",
              f"s_mul_i32 s{sT0}, s{sT0}, 48",
              f"s_lshl1_add_u32 s{sT0}, s{sFT}, s{sT0}",
              f"s_lshl_b32 s{sT0}, s{sT0}, 10",
              f"s_add_u32 s{sT0}, s{sT0}, {WS_U}",
              f"s_add_u32 s{sT0}, s{sT0}, s{sSP}",
              f"v_add_u32 v{vUS}, s{sT0}, v1",
              f"s_mov_b32 s{sU2}, 0xbdd2d3e8",
              f"s_mov_b32 s{sU3}, {20*48*1024}",
              f"v_mov_b32 v52, 0xc0135761"]
    a.run(g1set)
    a.run(P.conv_setup2(NC))
    a.run(P.epoch_load(vEP))
    for t in range(4):
        a(f"global_load_dwordx2 {vr(BL+2*t,2)}, v{vX0}, {sp(P_B1)} offset:{32*t}")
    a(f"s_cmp_ge_u32 s{sID}, 30")
    a("s_cbranch_scc1 L_Aspare")
    a.run(P.w_step())
    a.run(P.w_step())
    BI, RD, PD4 = 112, 144, 248
    bun = []
    for t in range(8):
        bun += [f"v_lshlrev_b32 v{BI+2*t}, 16, v{BL+t}", f"v_and_b32 v{BI+2*t+1}, 0xffff0000, v{BL+t}"]
    PA = cfg.get('pollA', 14)
    while P.nxt < 16:
        if P.nxt == 8:
            a.run(P.set_tag(vEP))
            a.run(bun)
        a.run([stamp(f'w{P.nxt}')])
        it = P.w_step()
        if P.nxt - 1 == PA:
            it.insert(9, P.poll_issue(vP0, 32, 1, PD4))
        a.run(it)
    while P.drn < PA:
        a.run(P.w_step())
    a.run([P.poll_check('f1', vP0, 32, 1, PD4), stamp('f1_ok')])
    BUFS = ([64 + 4*i for i in range(8)] + [128 + 4*i for i in range(4)] + [228 + 4*i for i in range(5)] + [208 + 4*i for i in range(3)])[:NB]

    def h_load(n):
        i, j = divmod(n, 16)
        return f"buffer_load_dwordx4 {vr(BUFS[n % NB],4)}, v{vHL+i}, {srd(S_WS)}, s{TK+j} offen {cfg.get('apol', 'sc1')}"
    hn = 0
    HE = cfg.get('hearly', 8)
    left = 16 - P.drn
    while P.drn < 16:
        for _ in range(HE // left):
            a(h_load(hn)); hn += 1
        a.run(P.w_step())
    ACC = (96, 192)
    Z, G0, UO = ACC[1], 160, 220
    for r in range(2):
        mf, pos = [], {}
        for q in range(64 // GR):
            for t in range(4):
                for n in range(q * GR, (q + 1) * GR):
                    i, j = divmod(n, 16)
                    d = vr(ACC[i & 1] + 4 * t, 4)
                    pos.setdefault(n, len(mf))
                    c = d if j else ('0' if i < 3 else vr(BI + 4 * t, 4))
                    mf.append(f"v_mfma_f32_16x16x32_bf16 {d}, {ar(16*j+4*t,4)}, {vr(BUFS[(64*r + n) % NB],4)}, {c}")
        S = Sched(mf)
        for n in range(64):
            S.reserve(pos[n] - 1)
        k = 0
        while hn < 128:
            n = hn - 64 * r
            free = 4 * GR * ((n - NB) // GR + 1) if n >= NB else 0
            p = max(free, 4 * (n - NB + GR) + 1, 2 * k)
            if p > 255:
                break
            S.add('h', [h_load(hn)], p, p)
            hn += 1
            k += 1
        S.add('st', [stamp(f'g1first{r}')], 0, 0)
        lasth = p if r else 0
        if r == 0 and cfg.get('h2', 1):
            p2 = cfg.get('pH2', 40)
            S.add('f2', [f"v_lshl_add_u32 v{vP0}, s{sW}, 5, v0", f"v_lshlrev_b32 v{vP0}, 4, v{vP0}", f"v_add_u32 v{vP0}, {WS_F1 + 0x4000}, v{vP0}",
                         P.poll_issue(vP0, 32, 1, PD4)], p2 - 4, p2)
            S.add('f2', [P.poll_check('f2', vP0, 32, 1, PD4)], 150, 152)
            assert 4 * (64 - NB + GR) + 1 > 153
        for i in range(3):
            S.add('red', [(f"ds_write_b128 v{vRW+i}, {vr(ACC[i & 1]+4*t,4)} offset:{t*1024}", f'redw{r}{i}') for t in range(4)],
                  64 * (i + 1) + 1, 64 * (i + 1) + 13, pace=4 if i < 2 else 3)
        pR = 192 + cfg.get('pR', 15)
        S.add('red', [('wait', f'redw{r}2'), "s_barrier"], pR, pR + 1)
        S.add('red', [f"ds_read_b128 {vr(RD+4*k,4)}, v{vRR} offset:{k*1024}" for k in range(12)], pR + 2, pR + 16)
        S.add('add', [f"v_add_f32 v{RD+k}, v{RD+k}, v{RD+16+k}" for k in range(16)] +
                     [f"v_add_f32 v{RD+k}, v{RD+k}, v{RD+32+k}" for k in range(16)], pR + 17, 255)
        if r == 1:
            S.add('set', [f"v_subrev_u32 v{vRW+i}, {L_RED}, v{vRW+i}" for i in range(4)], 2, 30)
            pD = cfg.get('pD0', 40)
            S.add('fl', [('wait', 'ust0'), stamp('barD0'), P.flag(sFI), f"s_add_u32 s{sFI}, s{sFI}, {20*24*FSU}"], pD, pD + 1)
            S.add('fl', [P.poll_check('fk', vP1, 16, KW, PD4), stamp('fk_ok')], 150, 152)
            for i, x in enumerate(P.ssm_loads(NC) + P.x_loads(NC)):
                S.add('h', [x], lasth + 4 * (i + 1), lasth + 4 * (i + 1))
        a.run(S.items())
        P.info[f'g1{r}'] = (S.over, S.under)
        a.run([stamp(f'g1mfma{r}')])
        side = []
        if r == 0:
            while hn < 64 + NB:
                side.append(h_load(hn)); hn += 1
            a.run(side)
        for t in range(8):
            a(f"v_pk_add_f32 {vr(Z+2*t,2)}, {vr(Z+2*t,2)}, {vr(RD+2*t,2)}")
        for t in range(8):
            a(f"v_pk_mul_f32 {vr(G0+2*t,2)}, {vr(Z+2*t,2)}, {vr(Z+2*t,2)}")
        for t in range(8):
            a(f"v_pk_fma_f32 {vr(G0+2*t,2)}, {vr(G0+2*t,2)}, {sp(sU2)}, v[52:53] op_sel_hi:[1,0,0]")
        for t in range(8):
            a(f"v_pk_mul_f32 {vr(G0+2*t,2)}, {vr(G0+2*t,2)}, {vr(Z+2*t,2)}")
        for t in range(16):
            a(f"v_exp_f32 v{G0+t}, v{G0+t}")
        for t in range(8):
            a(f"v_pk_add_f32 {vr(G0+2*t,2)}, {vr(G0+2*t,2)}, 1.0 op_sel_hi:[1,0]")
        for t in range(16):
            a(f"v_rcp_f32 v{G0+t}, v{G0+t}")
        for t in range(8):
            a(f"v_pk_mul_f32 {vr(G0+2*t,2)}, {vr(G0+2*t,2)}, {vr(Z+2*t,2)}")
        for t in range(8):
            a(f"v_cvt_pk_bf16_f32 v{UO+t}, v{G0+2*t}, v{G0+2*t+1}")
        for half in range(2):
            a(f"buffer_store_dwordx4 {vr(UO+4*half,4)}, v{vUS}, {srd(S_WS)}, {'0' if r == 0 else f's{sU3}'} offen offset:{1024*half} sc1", tok=f'ust{r}')
        if r == 0:
            a(P.poll_issue(vP1, 16, KW, PD4))
        a.run([stamp(f'ust{r}')])
    a.label("L_Ajoin")
    a.wait('xd')
    a("s_barrier")
    CPA = cfg.get('cpreA', 4)
    a.run(P.conv_pre(CPA))
    S = P.conv_sched(NT, CPA, 2)
    pD = cfg.get('pD1', 30)
    S.add('fl', [('wait', 'ust1'), stamp('barD1'), P.flag(sFI)], pD, pD + 1)
    Z2 = NC == 3 and cfg.get('z2', 1)
    P.conv_run(S, NT, Z2, P.flag(sFJ))
    if Z2:
        a(f"s_add_u32 s{sFJ}, s{sJ}, 128")
        a(f"s_mul_i32 s{sFJ}, s{sFJ}, {FSZ}")
        a(f"s_lshl2_add_u32 s{sFJ}, s{sW}, s{sFJ}")
        a(f"s_add_u32 s{sFJ}, s{sFJ}, {WS_FZ + 16}")
    a.wait('zst2' if NC == 3 else 'zst1')
    a(P.flag(sFJ))
    a(f"s_cmp_lg_u32 s{sJ}, 31")
    a("s_cbranch_scc1 L_Adone")
    st, P.stamps = P.stamps, False
    a(f"v_lshl_add_u32 v{vP0}, s{sW}, 5, v0")
    a(f"v_mul_u32_u24 v{vP0}, {cfg.get('fsk', 16)}, v{vP0}")
    a(f"v_add_u32 v{vP0}, {WS_FK}, v{vP0}")
    a(P.poll_issue(vP0, 32, KW, PD4))
    a.run([P.poll_check('e0', vP0, 32, KW, PD4)])
    for k in range(2):
        a(f"s_mul_i32 s{sT0}, s{sW}, 120")
        a(f"s_add_u32 s{sT0}, s{sT0}, {60*k}")
        a(f"v_add_u32 v{vP0}, s{sT0}, v0")
        a(f"v_mul_u32_u24 v{vP0}, {FSU}, v{vP0}")
        a(f"v_add_u32 v{vP0}, {WS_FU}, v{vP0}")
        a(P.poll_issue(vP0, 60))
        a.run([P.poll_check(f'e{k+1}', vP0, 60)])
    a(f"v_lshl_add_u32 v{vP0}, s{sW}, 5, v0")
    a(f"v_mul_u32_u24 v{vP0}, {FSZ}, v{vP0}")
    a(f"v_add_u32 v{vP0}, {WS_FZ + 158*FSZ}, v{vP0}")
    a(P.poll_issue(vP0, 2, 4, PD4))
    a.run([P.poll_check('e3', vP0, 2, 4, PD4)])
    P.stamps = st
    a("s_barrier")
    a(f"s_mov_b32 s{sT0}, {WS_EP}")
    a(P.flag(sT0))
    a.label("L_Adone")
    P.finish()
    a("s_endpgm")
    b = Asm()
    P.a, st, P.stamps = b, P.stamps, False
    b.label("L_Aspare")
    b(f"s_mul_i32 s{sT0}, s{sXQ}, 160")
    b(f"s_mul_i32 s{sT1}, s{sDG}, {16*NC}")
    b(f"s_add_u32 s{sT0}, s{sT0}, s{sT1}")
    b(f"s_add_u32 s{sT0}, s{sT0}, 64")
    b(f"v_lshrrev_b32 v{vT}, 3, v0")
    b(f"v_add_lshl_u32 v{vT}, s{sT0}, v{vT}, 12")
    b(f"v_and_b32 v{vT2}, 7, v0")
    b(f"v_lshl_add_u32 v{vT2}, s{sW}, 3, v{vT2}")
    b(f"v_lshl_add_u32 v{vT}, v{vT2}, 7, v{vT}")
    b("s_waitcnt vmcnt(0)")
    b.run(P.set_tag(vEP))
    for i in range(2 * NC if cfg.get('spf', 1) else 0):
        b(f"s_mov_b32 s{sT0}, {i*8*4096}")
        b(f"buffer_load_dword v{64+i}, v{vT}, {srd(S_SSM)}, s{sT0} offen")
    b.run(P.ssm_loads(NC))
    b(P.poll_issue(vP1, 16, KW, PD4))
    b.run([P.poll_check('fs', vP1, 16, KW, PD4)])
    for i in range(2 * NC if cfg.get('xpf', 0) else 0):
        b(f"s_mov_b32 s{sT0}, {WS_KV + i*8*4096}")
        b(f"buffer_load_dword v{vPD}, v{vT}, {srd(S_WS)}, s{sT0} offen sc1") if False else b.raw(f"    buffer_load_dword v{vPD}, v{vT}, {srd(S_WS)}, s{sT0} offen sc1")
    b.run(P.x_loads(NC))
    b("s_waitcnt vmcnt(0) lgkmcnt(0)")
    b("s_branch L_Ajoin")
    a.out += b.out
    P.a, P.stamps = a, st
    return P


def prog_B(cfg):
    P = Prog('B', cfg)
    a, stamp = P.a, P.stamp
    a.smem_pending = set(KERNARG) | {'s96', 's97'}
    FS1, FSU, FSZ, FSK = cfg.get('fs1', 32), cfg.get('fsu', 64), cfg.get('fsz', 32), cfg.get('fsk', 16)
    sDT, sST = sA, sB
    KW, HW = cfg.get('kw', 1), cfg.get('hw', 1)
    NC = 3 if cfg.get('third', 'A') == 'B' else 2
    NT = 8*NC
    NMF = 136 if NC == 2 else 208
    a.label("L_B")
    if cfg.get('cpf', 1) and cfg.get('lay', 'C') != 'C':
        a.run(P.code_prefetch("L_pcB", "L_Amain"))
    a.run(P.lanes())
    XR, GR = 160, 180
    vQ, vG, vEP = 200, 201, 202
    a(f"s_lshr_b32 s{sT0}, s{sJ}, 1")
    a(f"s_lshl_b32 s{sT0}, s{sT0}, 5")
    a(f"s_and_b32 s{sT1}, s{sJ}, 1")
    a(f"s_lshl3_add_u32 s{sCNT}, s{sT1}, s{sT0}")
    a(f"s_lshl2_add_u32 s{sCNT}, s{sT2}, s{sCNT}")
    a(f"s_lshl4_add_u32 s{sCNT}, s{sT3}, s{sCNT}")
    a(f"v_add_u32 v{vQ}, s{sCNT}, v{vH}")
    a(f"v_mul_u32_u24 v{vQ}, 1280, v{vQ}")
    a(f"v_lshlrev_b32 v{vG}, 4, v{vI}")
    a(f"v_add_u32 v{vQ}, v{vQ}, v{vG}")
    def kvset():
        a(f"s_lshl3_add_u32 s{sU0}, s{sW}, s{sT0}")
        a(f"s_mul_i32 s{sU0}, s{sU0}, 1280")
        a(f"s_mul_i32 s{sU1}, s{sT1}, 640")
        a(f"s_add_u32 s{sU0}, s{sU0}, s{sU1}")
        a(f"v_add_u32 v{vKV}, s{sU0}, v1")
        a(f"s_mul_i32 s{sU0}, s{sW}, {(-7*1280) & 0xffffffff}")
        a(f"s_sub_u32 s{sU0}, s{sU0}, {4*1280}")
        a(f"v_add_u32 v{vKH}, s{sU0}, v{vKV}")
        a(f"s_mul_i32 s{sKL}, s{sW}, {8*PK + 32}")
        for (s, n) in ((S_K, 2621440), (S_V, 2621440), (S_WS, WS_SIZE), (S_W, 6291456), (S_SSM, 2621440)):
            a(f"s_mov_b32 s{s+2}, {n}")
            a(f"s_mov_b32 s{s+3}, 0x20000")
        a(f"s_lshl2_add_u32 s{sU0}, s{sT1}, s{sW}")
        a(f"s_mul_i32 s{sU0}, s{sU0}, 80")
        a(f"v_add_u32 v{vCH}, s{sU0}, v{vI}")
        a(f"v_lshlrev_b32 v{vS0}, 3, v{vCH}")
    vKV, vKH, vCH, vS0 = 60, 61, 62, 63
    sKL = sFI
    if not cfg.get('qfirst', 1):
        kvset()
    P.split0 = len(a.out)
    for i in range(5):
        a(f"global_load_dwordx4 {vr(XR+4*i,4)}, v{vQ}, {sp(P_Q)} offset:{256*i}")
    a.run([stamp('start')])
    if cfg.get('qfirst', 1):
        kvset()
    for (s, p) in ((S_K, 38), (S_V, 40), (S_WS, 66), (S_W, 56), (S_SSM, 44)):
        a(f"s_mov_b64 {sp(s)}, {sp(p)}")
    a.run(P.epoch_load(vEP))

    def kv_dma(which, i):
        if which == 'h':
            return [f"s_mul_i32 s{sU0}, s{sW}, {PK}", f"s_add_u32 m0, s{sU0}, {L_KI}", "s_mov_b32 exec_hi, 0xff",
                    f"buffer_load_dwordx4 v{vKH}, {srd(S_K)}, 0 offen {cfg.get('kpol', '')} lds", "s_mov_b32 exec_hi, -1"]
        base = L_KI + (4 + i) * PK + (32 if i >= 4 else 0) if which == 'k' else L_VI + i * PK
        return [f"s_add_u32 m0, s{sKL}, {base}", f"s_mov_b32 s{sU0}, {i*1280}", "s_mov_b32 exec_hi, 0xff",
                (f"buffer_load_dwordx4 v{vKV}, {srd(S_K if which == 'k' else S_V)}, s{sU0} offen {cfg.get('kpol', '')} lds", 'kvdma'), "s_mov_b32 exec_hi, -1"]

    def kv_batch(lst):
        it = []
        for (wh, i) in lst:
            x = kv_dma(wh, i)
            if it:
                it.pop()
                x.remove("s_mov_b32 exec_hi, 0xff")
            it += x
        return it
    kvq = [('h', 0)] + [('k', i) for i in range(8)] + [('v', i) for i in range(8)]
    a(f"s_and_b32 s{sDT}, s{sID}, 3")
    a(f"s_lshr_b32 s{sT0}, s{sID}, 2")
    a(f"s_lshl3_add_u32 s{sST}, s{sXQ}, s{sT0}")
    vLW, vA1, vHS, vGS, vKVA, vKVS, vGV = 44, 46, 48, 49, 50, 51, 58
    a(f"v_lshl_add_u32 v{vT}, s{sW}, 2, v{vH}")
    a(f"s_lshl_b32 s{sT0}, s{sJ}, 4")
    a(f"v_add_lshl_u32 v{vGS}, s{sT0}, v{vT}, 2")
    a(f"v_add_u32 v{vGS}, {WS_G}, v{vGS}")
    a(f"v_mul_u32_u24 v{vT}, {PL}, v{vT}")
    a(f"v_add_u32 v{vT}, {L_LN}, v{vT}")
    a(f"v_add_u32 v{vLW}, v{vT}, v{vG}")
    a(f"v_mul_u32_u24 v{vT}, {PL}, v{vR}")
    a(f"v_mul_u32_u24 v{vT2}, 320, v{vH}")
    a(f"s_mul_i32 s{sT0}, s{sT3}, {8*PL}")
    a(f"s_lshl3_add_u32 s{sT0}, s{sT2}, s{sT0}")
    a(f"s_add_u32 s{sT0}, s{sT0}, {L_LN}")
    a(f"v_add3_u32 v{vT}, v{vT}, v{vT2}, s{sT0}")
    a(f"v_lshl_add_u32 v{vA1}, v{vC}, 4, v{vT}")
    a(f"s_lshl1_add_u32 s{sT0}, s{sJ}, s{sT3}")
    a(f"s_lshl_b32 s{sT0}, s{sT0}, 8")
    a(f"s_lshl_b32 s{sT1}, s{sT2}, 16")
    a(f"s_add_u32 s{sT0}, s{sT0}, s{sT1}")
    a(f"v_mul_u32_u24 v{vHS}, {5*65536}, v{vH}")
    a(f"v_lshl_add_u32 v{vHS}, v{vI}, 4, v{vHS}")
    a(f"v_add_u32 v{vHS}, s{sT0}, v{vHS}")
    a(f"s_mul_i32 s52, s{sT2}, {19*65536}")
    a(f"s_add_u32 s52, s52, {4*65536}")
    a(f"s_mov_b32 s53, {20*65536}")
    a(f"s_mov_b32 s64, {22*65536}")
    a(f"v_mul_u32_u24 v{vT}, {8*PK + 32}, v{vH}")
    a(f"v_mul_u32_u24 v{vT2}, {PK}, v{vR}")
    a(f"s_mul_i32 s{sT0}, s{sW}, 160")
    a(f"s_add_u32 s{sT0}, s{sT0}, {L_KI}")
    a(f"v_add3_u32 v{vT}, v{vT}, v{vT2}, s{sT0}")
    a(f"v_lshl_add_u32 v{vKVA}, v{vC}, 3, v{vT}")
    a(f"v_lshlrev_b32 v{vKVS}, 12, v{vCH}")
    a(f"v_lshl_add_u32 v{vKVS}, v{vH}, 4, v{vKVS}")
    a(f"s_lshr_b32 s{sT0}, s{sJ}, 1")
    a(f"s_lshl_b32 s{sT1}, s{sT0}, 6")
    a(f"s_add_u32 s{sT1}, s{sT1}, {WS_KV}")
    a(f"v_add_u32 v{vKVS}, s{sT1}, v{vKVS}")
    a(f"s_and_b32 s{sT1}, s{sJ}, 1")
    a(f"s_lshl_b32 s{sT1}, s{sT1}, 6")
    a(f"s_add_u32 s{sFJ}, s{sT0}, s{sT1}")
    a(f"s_mul_i32 s{sFJ}, s{sFJ}, {FSK}")
    a(f"s_lshl2_add_u32 s{sFJ}, s{sW}, s{sFJ}")
    a(f"s_add_u32 s{sFJ}, s{sFJ}, {WS_FK}")
    a(f"s_mul_i32 s{sU3}, s{sJ}, {FS1}")
    a(f"s_add_u32 s{sU3}, s{sU3}, {WS_F1}")
    for k in range(1, 5):
        a(f"s_mov_b32 s{79+k}, {k*65536}")
    for i in range(5):
        a(f"global_load_dwordx4 {vr(GR+4*i,4)}, v{vG}, {sp(P_GW)} offset:{256*i}")
    nq = cfg.get('kvq0', 6)
    if nq:
        a.run(kv_batch(kvq[:nq])); kvq = kvq[nq:]
    a.run([stamp('iss2')])

    S1, S2, vRS, vNM, XF = 64, 65, 66, 68, 72
    DP = ("quad_perm:[1,0,3,2]", "quad_perm:[2,3,0,1]", "row_half_mirror", "row_mirror")
    unp = []
    for i in range(20):
        unp += [f"v_lshlrev_b32 v{XF+2*i}, 16, v{XR+i}", f"v_and_b32 v{XF+2*i+1}, 0xffff0000, v{XR+i}"]
    ln = [f"s_mov_b32 s{sU2}, 0x3f803f80"]
    for i in range(20):
        c = lambda r: "0" if i == 0 else f"v{r}"
        ln += [f"v_dot2_f32_bf16 v{S1}, v{XR+i}, s{sU2}, {c(S1)}", f"v_dot2_f32_bf16 v{S2}, v{XR+i}, v{XR+i}, {c(S2)}"]
    inv = 0x3ACCCCCD
    red = []
    for m in DP:
        red += [f"v_add_f32_dpp v{x}, v{x}, v{x} {m} row_mask:0xf bank_mask:0xf" for x in (S1, S2)]
    red += [f"v_mul_f32 v{S1}, {hex(inv)}, v{S1}",
            f"v_mul_f32 v{S2}, {hex(inv)}, v{S2}",
            f"v_fma_f32 v{S2}, -v{S1}, v{S1}, v{S2}",
            f"v_max_f32 v{S2}, 0, v{S2}",
            f"v_add_f32 v{S2}, 0x3727c5ac, v{S2}",
            f"v_rsq_f32 v{vRS}, v{S2}",
            f"v_mul_f32_e64 v{vNM}, -v{S1}, v{vRS}"]
    ln += unp[:3] + merge(red, unp[3:])
    HP = 112
    for i in range(5):
        ln += [f"v_pk_fma_f32 {vr(XF+2*k,2)}, {vr(XF+2*k,2)}, {vr(vRS,2)}, {vr(vNM,2)} op_sel_hi:[1,0,0]" for k in range(4*i, 4*i+4)]
        ln += [f"v_cvt_pk_bf16_f32 v{HP+k}, v{XF+2*k}, v{XF+2*k+1}" for k in range(4*i, 4*i+4)]
        ln.append((f"ds_write_b128 v{vLW}, {vr(HP+4*i,4)} offset:{256*i}", 'lnw'))
    gate = [f"v_dot2_f32_bf16 v{vGV}, v{XR+i}, v{GR+i}, {'0' if i == 0 else f'v{vGV}'}" for i in range(20)]
    gate += [f"v_add_f32_dpp v{vGV}, v{vGV}, v{vGV} {m} row_mask:0xf bank_mask:0xf" for m in DP]
    gate += [f"v_mul_f32 v{vGV}, 0xbfb8aa3b, v{vGV}", f"v_exp_f32 v{vGV}, v{vGV}", f"v_add_f32 v{vGV}, 1.0, v{vGV}", f"v_rcp_f32 v{vGV}, v{vGV}",
             "s_mov_b32 exec_lo, 0x10001", "s_mov_b32 exec_hi, 0x10001",
             (f"buffer_store_dword v{vGV}, v{vGS}, {srd(S_WS)}, 0 offen sc1", 'hst2'), "s_mov_b64 exec, -1"]
    a.run(ln[:41])
    nq = cfg.get('kvq1', 4)
    if nq:
        a.run(kv_batch(kvq[:nq])); kvq = kvq[nq:]
    a.run(ln[41:])
    a.wait('lnw')
    a("s_barrier")
    a.run([stamp('barL')])
    HB = 64
    H2 = cfg.get('h2', 1)
    for u, off in enumerate((0, 64, 256, 128, 192)):
        for e2 in range(2):
            a(f"ds_read_b64_tr_b16 {vr(HB+4*u+2*e2,2)}, v{vA1} offset:{off + e2*4*PL}")
    for u, so in enumerate(("0", "s81", "s52", "s53", "s64")):
        a(f"buffer_store_dwordx4 {vr(HB+4*u,4)}, v{vHS}, {srd(S_WS)}, {so} offen sc1", tok='hst' if u < 3 or not H2 else None)
    a.run(gate)
    a.run(P.set_tag(vEP))
    vQO, vQO2, vGA, vX1, vQO1 = 36, 41, 253, 250, 15
    QR, vGG, vB2 = 44, 16, 17

    def bigset():
        a(f"s_bfe_u32 s{sT0}, s{sST}, 0x10001")
        a(f"s_mul_i32 s{sT0}, s{sT0}, {cfg.get('rkB', 0)}")
        a(f"s_add_u32 s{sT0}, s{sT0}, s{sDT}")
        a(f"s_and_b32 s{sT0}, s{sT0}, 3")
        a(f"s_mul_i32 s{TK}, s{sT0}, 3072")
        a(f"s_and_b32 s{sSP}, s{sST}, {cfg.get('swB', 1)}")
        for j in range(1, 12):
            a(f"s_add_u32 s{sT0}, s{TK+j-1}, 1024")
            a(f"s_cmp_lt_u32 s{sT0}, {12*1024}")
            a(f"s_cselect_b32 s{TK+j}, s{sT0}, 0")
        a(f"s_mul_i32 s{sT0}, s{sW}, {384*4096}")
        a(f"s_lshl_b32 s{sT1}, s{sST}, 7")
        a(f"s_add_u32 s{sT0}, s{sT0}, s{sT1}")
        a.run(P.weight_src(4096, sT0) + P.weight_dst(True))
        a.run(P.conv_setup(NC))
        a.run(P.conv_setup2(NC))
        a(f"s_lshl2_add_u32 s{sT0}, s{sST}, s{sW}")
        a(f"v_lshl_add_u32 v{vT}, s{sT0}, 4, v{vI}")
        a(f"v_lshlrev_b32 v{vX1}, 1, v{vT}")
        a(f"v_mul_u32_u24 v{vT}, 1280, v{vT}")
        a(f"s_mul_i32 s{sT0}, s{sDT}, 320")
        a(f"v_add_u32 v{vT}, s{sT0}, v{vT}")
        a(f"v_lshl_add_u32 v{vQO2}, v{vH}, 4, v{vT}")
        a(f"s_lshl_b32 s{sT0}, s{sSP}, 6")
        a(f"v_add_u32 v{vQO}, s{sT0}, v{vQO2}")
        a(f"v_subrev_u32 v{vQO1}, s{sT0}, v{vQO2}")
        a(f"s_lshl1_add_u32 s{sT0}, s{sST}, s{sT2}")
        a(f"s_lshl3_add_u32 s{sT0}, s{sT0}, s{sT3}")
        a(f"s_lshl_b32 s{sT0}, s{sT0}, 4")
        a(f"s_add_u32 s{sT0}, s{sT0}, {WS_G}")
        a(f"v_lshl_add_u32 v{vT}, v{vR}, 5, s{sT0}")
        a(f"v_lshl_add_u32 v{vGA}, v{vC}, 2, v{vT}")

    SP = cfg.get('setp', 1)
    if SP == 0:
        bigset()
    nq = cfg.get('kvq2', 7)
    if nq:
        a.run(kv_batch(kvq[:nq])); kvq = kvq[nq:]
    a.wait('hst' if H2 else 'hst2')
    a.run([P.flag_wg(sU3, 'f1'), stamp('barH')])
    if kvq:
        a.run(kv_batch(kvq))
    CF = 148
    for u in range(5):
        a(f"global_load_dwordx2 {vr(CF+2*u,2)}, v{vS0}, {sp(P_SH)} offset:{128*u}")
    if SP == 1:
        bigset()
    a.run(P.ssm_loads(NC))

    def helper():
        HR = cfg.get('hlpB', 6)
        if HR:
            a(f"s_add_u32 s{sT0}, s{sST}, 4")
            a(f"s_and_b32 s{sT0}, s{sT0}, 7")
            a(f"s_mul_i32 s{sT1}, s{sT0}, {HR}")
            a(f"s_cmp_eq_u32 s{sT0}, 7")
            a(f"s_cselect_b32 s{sU2}, {OOB}, 0")
            a(f"s_lshl2_add_u32 s{sT0}, s{sW}, s{sDT}")
            a(f"s_mul_i32 s{sT0}, s{sT0}, 96")
            a(f"s_add_u32 s{sT0}, s{sT0}, s{sT1}")
            a(f"s_add_u32 s{sT0}, s{sT0}, {96 - 7*HR}")
            a(f"v_add_lshl_u32 v{vT}, s{sT0}, v0, 12")
            a(f"s_lshl_b32 s{sT0}, s{sXQ}, 10")
            a(f"s_add_u32 s{sT0}, s{sT0}, 384")
            a(f"s_add_u32 s{sU2}, s{sU2}, s{sT0}")
            a(f"s_mov_b64 exec, {hex((1 << HR) - 1)}")
            a(f"buffer_load_dword v251, v{vT}, {srd(S_W)}, s{sU2} offen")
            a("s_mov_b64 exec, -1")
    WP = cfg.get('wBpre', 1)
    if WP:
        helper()
    if WP >= 2:
        a.run(P.w_step())

    if H2:
        a(f"s_mul_i32 s{sU3}, s{sJ}, 16")
        a(f"s_add_u32 s{sU3}, s{sU3}, {WS_F1 + 0x4000}")
        a.wait('kvdma', 'hst2')
        a.run([P.flag_wg(sU3, 'f2'), stamp('barK')])
    else:
        a.wait('kvdma')
        a.run(["s_barrier", stamp('barK')])
    KR, KO = 64, 160

    def kv_reads(u):
        it = [f"ds_read_b64_tr_b16 {vr(KR+10*u+2*j,2)}, v{vKVA} offset:{32*u + 4*j*PK + (32 if j == 2 else 0)}" for j in range(3)]
        it += [f"ds_read_b64_tr_b16 {vr(KR+10*u+6+2*j,2)}, v{vKVA} offset:{32*u + 4*j*PK + (L_VI-L_KI)}" for j in range(2)]
        return it

    def kv_compute(u):
        it = []
        k = KR + 10 * u
        c10, c32 = CF + 2 * u, CF + 2 * u + 1
        SH, AC, VF, OUT = 116, 124, 132, KO + 4 * u
        for n in range(5):
            it.append(f"v_alignbit_b32 v{SH+n}, v{k+n+1}, v{k+n}, 16")
        pr = lambda e: (k + (e + 1) // 2, k + (e + 3) // 2) if e & 1 else (SH + e // 2, SH + e // 2 + 1)
        for e in range(8):
            it.append(f"v_dot2_f32_bf16 v{AC+e}, v{pr(e)[0]}, v{c32}, 0")
        for e in range(8):
            it.append(f"v_dot2_f32_bf16 v{AC+e}, v{pr(e)[1]}, v{c10}, v{AC+e}")
        for n in range(4):
            it.append(f"v_lshlrev_b32 v{VF+2*n}, 16, v{k+6+n}")
            it.append(f"v_and_b32 v{VF+2*n+1}, 0xffff0000, v{k+6+n}")
        for n in range(4):
            it.append(f"v_pk_mul_f32 {vr(AC+2*n,2)}, {vr(AC+2*n,2)}, {vr(VF+2*n,2)}")
        for n in range(4):
            it.append(f"v_cvt_pk_bf16_f32 v{OUT+n}, v{AC+2*n}, v{AC+2*n+1}")
        it.append((f"buffer_store_dwordx4 {vr(OUT,4)}, v{vKVS}, {srd(S_WS)}, {'0' if u == 0 else f's{79+u}'} offen sc1", 'kvst'))
        return it
    a.run(kv_reads(0) + kv_reads(1))
    if WP & 1:
        a.run(P.w_step())
    for u in range(10):
        a(f"v_alignbit_b32 v{CF+u}, v{CF+u}, v{CF+u}, 16")
    for u in range(5):
        a.run(merge(kv_compute(u), kv_reads(u + 2) if u < 3 else []))
    a.run([stamp('kv_done')])
    if not cfg.get('wBpre', 1):
        helper()
    for _ in range(cfg.get('wB0', 1)):
        a.run(P.w_step())
    a.wait('kvst')
    a.run([P.flag_wg(sFJ, 'fk') if KW == 1 else P.flag(sFJ), stamp('barV')] + P.zflag_addr(sFJ, 0))
    a(f"global_load_ushort v{vB2}, v{vX1}, {sp(P_B2)}")
    while P.nxt < cfg.get('pollB', 7):
        a.run(P.w_step())
    a(P.poll_issue(vP1, 16, KW, 204))
    for _ in range(cfg.get('pollgapB', 0)):
        a.run(P.w_step())
    a.run([P.poll_check('fk', vP1, 16, KW, 204), stamp('fk_ok')])
    a.run(P.x_loads(NC))
    qa = lambda p: f"v{(vQO, vQO1, vQO, vQO1, vQO2)[p]}"
    qld = [f"global_load_dwordx4 {vr(QR+4*p,4)}, {qa(p)}, {sp(P_Q)} offset:{64*p}" for p in range(5)]
    for _ in range(cfg.get('xgapB', 1)):
        a.run(P.w_step())
    a.wait('xd')
    a("s_barrier")
    a.run([stamp('barC')])

    CPB = cfg.get('cpreB', 4)
    a.run(P.conv_pre(CPB))
    while P.nxt < NR:
        a.run(P.w_step())
    S = P.conv_sched(NT, CPB, cfg.get('ccap', 2.3), cfg.get('sg0', 100))
    cS, cE = cfg.get('cS', 0), cfg.get('cE', NMF - 36)
    nst = 12 - P.nxt
    per = (cE - cS) / (nst + 1)
    for r in range(nst):
        p0 = cS + r * per
        it = P.w_step()
        for k, x in enumerate(it[:9]):
            S.add('wd', [x], int(p0 + k * per / 14), int(p0 + (k + 1) * per / 14))
        p1 = p0 + per
        S.add('w', it[9:11], int(p1 - per / 5), int(p1) - 1)
        S.add('w', it[11:12], int(p1), int(p1))
        for k, x in enumerate(it[12:]):
            S.add('w', [x], int(p1 + k * per / 4), int(p1 + k * per / 4))
    S.add('wd', P.w_step(), int(cE - per), int(cE) - 1, pace=per / 11)
    tail = []
    while P.drn < 12:
        tail += P.w_step()
    S.add('wd', tail, cE, None, pace=(NMF - cE) / len(tail))
    vUL = 10
    uset = [f"s_mul_i32 s{sT0}, s{sDT}, 120",
            f"s_mul_i32 s{sT1}, s{sW}, 6",
            f"s_add_u32 s{sT0}, s{sT0}, s{sT1}",
            f"v_mul_u32_u24 v{vT}, 43, v0",
            f"v_lshrrev_b32 v{vT}, 8, v{vT}",
            f"v_mul_u32_u24 v{vT}, 18, v{vT}",
            f"v_add3_u32 v{vP0}, s{sT0}, v0, v{vT}",
            f"v_mul_u32_u24 v{vP0}, {FSU}, v{vP0}",
            f"v_add_u32 v{vP0}, {WS_FU}, v{vP0}",
            f"s_mul_i32 s{sT0}, s{sDT}, {5*48}",
            f"s_lshl1_add_u32 s{sT0}, s{sT1}, s{sT0}",
            f"s_lshl_b32 s{sT0}, s{sT0}, 10",
            f"s_add_u32 s{sT0}, s{sT0}, {WS_U}",
            f"v_add_u32 v{vUL+4}, s{sT0}, v1",
            f"s_mul_i32 s{sT0}, s{sSP}, {96*1024}",
            f"v_add_u32 v{vUL}, s{sT0}, v{vUL+4}",
            f"s_sub_u32 s{sT0}, {96*1024}, s{sT0}",
            f"v_add_u32 v{vUL+2}, s{sT0}, v{vUL+4}",
            f"v_add_u32 v{vUL+1}, {48*1024}, v{vUL}",
            f"v_add_u32 v{vUL+3}, {48*1024}, v{vUL+2}",
            f"v_add_u32 v{vUL+4}, {192*1024}, v{vUL+4}"]
    S.add('set', uset, 40, 118)
    for k, x in enumerate(qld):
        qp = cfg.get('qS', 20) + cfg.get('qD', 16) * k
        S.add('q', [x], qp, qp)
    pU = NMF - cfg.get('pU0', 16)
    S.add('set', [P.poll_issue(vP0, 30)], pU, pU)
    NB2, GR2, UE = cfg.get('nb2', 16), cfg.get('grp2', 2), cfg.get('uearly', 8)
    UBUF = ([ar(192 + 4*i, 4) for i in range(16)] + [vr(92 + 4*i, 4) for i in range(4)])[:NB2]
    vUM = 220

    def u_load(n):
        m, j = divmod(n, 12)
        return f"buffer_load_dwordx4 {UBUF[n % NB2]}, v{vUL+m if m < 5 else vUM+m-5}, {srd(S_WS)}, s{TK+j} offen {cfg.get('apol', 'sc1')}"
    ustart = [P.poll_check('fu0', vP0, 30), stamp('fu0_ok')] + [u_load(n) for n in range(UE)]
    UEP = cfg.get('uep', 1)
    P.conv_run(S, NT, False, mid=[ustart if k == UEP else [] for k in range(3)])

    NB2, GR2, UE = cfg.get('nb2', 16), cfg.get('grp2', 2), cfg.get('uearly', 8)
    UBUF = ([ar(192 + 4*i, 4) for i in range(16)] + [vr(92 + 4*i, 4) for i in range(4)])[:NB2]
    AC2, OWN, RD2, RD4 = (108, 120), 132, 172, 208
    GQ, ZL, ZRg, ZU = 228, 64, 76, 88
    vZG, vZLW, vZT, vOG, vR2R, vR2W, vUM = 20, 21, 22, 28, 33, 25, 220
    vR2S, vR2X, PDZ, vP2 = 23, 30, 226, 225
    opol = cfg.get('opol', 'sc1')
    g2set = [f"v_add_u32 v{vUM+m}, {cfg.get('wiU', 20*48*1024)}, v{vUL+m}" for m in range(5)]
    g2set += [f"v_add_u32 v{vP0}, {20*24*FSU}, v{vP0}",
              f"v_lshrrev_b32 v{vT}, 3, v0",
              f"v_lshl_add_u32 v{vT}, s{sW}, 3, v{vT}",
              f"v_and_b32 v{vT2}, 7, v0",
              f"v_lshlrev_b32 v{vT2}, 4, v{vT2}",
              f"v_lshl_add_u32 v{vZG}, v{vT}, 12, v{vT2}",
              f"v_mul_u32_u24 v{vT}, {PZ}, v{vT}",
              f"v_add_u32 v{vT}, v{vT}, v{vT2}",
              f"v_add_u32 v{vZLW}, {L_ZI}, v{vT}",
              f"s_mul_i32 s{sT0}, s{sDT}, {160*4096}",
              f"s_lshl_b32 s{sT1}, s{sST}, 7",
              f"s_add_u32 s{sT0}, s{sT0}, s{sT1}",
              f"s_add_u32 s{sT0}, s{sT0}, {WS_Z}",
              f"s_lshl_b32 s{sT1}, s{sSP}, 17",
              f"s_add_u32 s80, s{sT0}, s{sT1}",
              f"s_sub_u32 s81, s{sT0}, s{sT1}",
              f"s_add_u32 s81, s81, {32*4096}",
              f"s_add_u32 s82, s80, {64*4096}",
              f"s_add_u32 s83, s81, {64*4096}",
              f"s_add_u32 s{sX0}, s{sT0}, {128*4096}",
              f"v_lshl_add_u32 v{vT}, v{vH}, 3, v{vR}",
              f"v_mul_u32_u24 v{vT}, {PZ}, v{vT}",
              f"s_lshl_b32 s{sT0}, s{sW}, 5",
              f"s_add_u32 s{sT0}, s{sT0}, {L_ZI}",
              f"v_lshl_add_u32 v{vZT}, v{vC}, 3, s{sT0}",
              f"v_add_u32 v{vZT}, v{vZT}, v{vT}"]
    for jn in range(1, 4):
        g2set += [f"s_xor_b32 s{sT0}, s{sW}, {jn}",
                  f"s_mul_i32 s{sT0}, s{sT0}, 3072",
                  f"s_add_u32 s{sT0}, s{sT0}, {(jn-1)*1024}",
                  f"v_add_u32 v{vR2W+jn-1}, s{sT0}, v1",
                  f"v_add_u32 v{vR2X+jn-1}, {L_RED}, v{vR2W+jn-1}"]
    g2set += [f"s_mul_i32 s{sT0}, s{sW}, 3072",
              f"v_add_u32 v{vR2R}, s{sT0}, v1",
              f"v_add_u32 v{vR2S}, {L_RED}, v{vR2R}",
              f"s_lshl3_add_u32 s{sT0}, s{sDT}, s{sW}",
              f"s_lshl_b32 s{sT0}, s{sT0}, 2",
              f"v_lshl_add_u32 v{vP1}, v{vR}, 4, v{vC}",
              f"v_add_u32 v{vP1}, s{sT0}, v{vP1}",
              f"v_mul_u32_u24 v{vP1}, {FSZ}, v{vP1}",
              f"s_and_b32 s{sT1}, s{sST}, 1",
              f"s_lshl_b32 s{sT1}, s{sT1}, 3",
              f"s_add_u32 s{sT1}, s{sT1}, {WS_FZ}",
              f"v_add_u32 v{vP1}, s{sT1}, v{vP1}",
              f"s_lshl2_add_u32 s{sT0}, s{sDT}, s{sW}",
              f"v_and_b32 v{vT}, 7, v0",
              f"v_lshl_add_u32 v{vP2}, s{sT0}, 3, v{vT}",
              f"v_mul_u32_u24 v{vP2}, {FSZ}, v{vP2}"]
    Z2 = NC == 2 and cfg.get('z2', 1)
    if Z2:
        g2set += [f"s_and_b32 s{sT1}, s{sST}, 3", f"s_lshl_b32 s{sT1}, s{sT1}, 2", f"s_add_u32 s{sT1}, s{sT1}, {WS_FZ + 128*FSZ + 16}",
                  f"v_add_u32 v{vP2}, s{sT1}, v{vP2}"]
    else:
        g2set += [f"v_add_u32 v{vP2}, s{sT1}, v{vP2}", f"v_cmp_lt_u32 vcc, 7, v0", "s_nop 1", f"v_cndmask_b32 v{vP1}, v{vP1}, v{vP2}, vcc"]
    nz0 = 16 if NC == 3 else 8
    nz1 = 16 if NC == 2 and not Z2 else 8
    zso = (80, 81, 82, 83, sX0)
    ptile = ((0, 1), (2, 3), (5, 6), (7, 8), (4, 9))

    def u_load(n):
        m, j = divmod(n, 12)
        return f"buffer_load_dwordx4 {UBUF[n % NB2]}, v{vUL+m if m < 5 else vUM+m-5}, {srd(S_WS)}, s{TK+j} offen {cfg.get('apol', 'sc1')}"

    def mf2(n, jn):
        m, j = divmod(n, 12)
        d = vr(OWN + 4 * m, 4) if jn == 0 else vr(AC2[m & 1] + 4 * (jn - 1), 4)
        return f"v_mfma_f32_16x16x32_bf16 {d}, {UBUF[n % NB2]}, {ar(16*j+4*jn,4)}, {'0' if j == 0 else d}"
    rd = lambda m, s: [f"ds_read_b128 {vr(RD2+12*s+4*k,4)}, v{vR2R if m < 5 else vR2S} offset:{(m % 5)*12288 + k*1024}" for k in range(3)]
    ad = lambda m, s: [f"v_add_f32 v{OWN+4*m+r}, v{OWN+4*m+r}, v{RD2+12*s+4*k+r}" for k in range(3) for r in range(4)]
    wr = lambda m: [(f"ds_write_b128 v{(vR2W if m < 5 else vR2X)+jn-1}, {vr(AC2[m & 1]+4*(jn-1),4)} offset:{(m % 5)*12288}", f'r2w{m}') for jn in range(1, 4)]
    z_ld = lambda ps: [f"buffer_load_dwordx4 {vr(ZL+4*i,4)}, v{vZG}, {srd(S_WS)}, s{zso[p]} offen sc1" for i, p in enumerate(ps)]
    z_wr = lambda ps: [f"ds_write_b128 v{vZLW}, {vr(ZL+4*i,4)} offset:{p*32*PZ}" for i, p in enumerate(ps)]
    z_rd = lambda p: [f"ds_read_b64_tr_b16 {vr(ZRg+4*(p % 3)+2*hh,2)}, v{vZT} offset:{(32*p + 4*hh)*PZ}" for hh in range(2)]

    def gq(p):
        it = []
        pp = GQ + 8 * (p % 3)
        for k in range(4):
            it += [f"v_lshlrev_b32 v{pp+2*k}, 16, v{QR+4*p+k}", f"v_and_b32 v{pp+2*k+1}, 0xffff0000, v{QR+4*p+k}",
                   f"v_mul_f32 v{pp+2*k}, v{pp+2*k}, v{vGG}", f"v_mul_f32 v{pp+2*k+1}, v{pp+2*k+1}, v{vGG}"]
        return it
    sc = lambda m: [f"v_fma_f32 v{OWN+4*m+k}, v{OWN+4*m+k}, v{vOG}, v{vB2}" for k in range(4)]

    def fin(p, hh):
        it = []
        o = OWN + 4 * ptile[p][hh]
        for k in range(2):
            zu, z, g = ZU + 2 * k, ZRg + 4 * (p % 3) + 2 * hh + k, GQ + 8 * (p % 3) + 4 * hh + 2 * k
            it += [f"v_lshlrev_b32 v{zu}, 16, v{z}", f"v_and_b32 v{zu+1}, 0xffff0000, v{z}"]
            if (p, hh) == (4, 1):
                it += [f"v_fma_f32 v{g}, v{g}, v{zu}, v{vB2}", f"v_fma_f32 v{g+1}, v{g+1}, v{zu+1}, v{vB2}"]
            else:
                it += [f"v_fmac_f32 v{o+2*k}, v{g}, v{zu}", f"v_fmac_f32 v{o+2*k+1}, v{g+1}, v{zu+1}",
                       f"v_cvt_pk_bf16_f32 v{QR+4*p+2*hh+k}, v{o+2*k}, v{o+2*k+1}"]
        return it
    ost = lambda p: [f"global_store_dwordx4 {qa(p)}, {vr(QR+4*p,4)}, {sp(P_OUT)} offset:{64*p} {opol if p < cfg.get('opn', 5) else ''}"]
    if cfg.get('dly'):
        a(f"s_sleep {cfg['dly']}")
    if UEP == 3:
        a.run(ustart)
    a(f"buffer_load_dword v{vGG}, v{vGA}, {srd(S_WS)}, 0 offen sc1")
    a.run(g2set)
    mf, pos = [], {}
    for q in range(120 // GR2):
        ns = range(q * GR2, (q + 1) * GR2)
        for jn in ((1, 2, 3, 0) if ns[0] < 108 else (1, 2, 3)):
            for n in ns:
                pos.setdefault(n, len(mf))
                mf.append(mf2(n, jn))
    pown = len(mf)
    mf += [mf2(n, 0) for n in range(108, 120)]
    S = Sched(mf)
    for n in range(120):
        S.reserve(pos[n] - 1)
    UC = cfg.get('pUC', 210)
    k = 0
    for n in range(UE, 120):
        free = 4 * GR2 * ((n - NB2) // GR2 + 1) if n >= NB2 else 0
        p = max(free, 4 * (n - NB2 + GR2) + 1, 2 * k)
        if n >= 60:
            p = max(p, min(UC + 1 + 2 * (n - 60), 4 * n - 2 if UC < 236 else max(239, 4 * (n - UE))))
        if n == 60:
            S.add('u', [P.poll_check('fu1', vP0, 30), stamp('fu1_ok')], p, p)
            pZ0 = p
        S.add('u', [u_load(n)], p, p)
        k += 1
    lastu = p
    S.add('st', [stamp('g2first')], 0, 0)
    S.add('st', [stamp('g2mid')], 240, 240)
    pF = cfg.get('pF', 40)
    S.add('z', [('wait', 'zst2' if NC == 3 else 'zst1'), stamp('barF'), P.flag(sFJ)], pF, pF + 1)
    zB = (0, 1) if NC == 2 else (0, 1, 4)
    zA = (2, 3, 4) if NC == 2 and not Z2 else (2, 3)
    UP = UC - cfg.get('pUP', 44)
    S.add('z', [P.poll_issue(vP0, 30), P.poll_issue(vP1, nz0, 2, PDZ)], UP, UP + 1)
    S.add('z', [P.poll_check('fz0', vP1, nz0, 2, PDZ), stamp('fz0_ok')] + z_ld(zB) + [f"v_add_u32 v{vP1}, {128*FSZ}, v{vP1}"], pZ0 + 3, pZ0 + 14, pace=2)
    ZP1, ZC1 = cfg.get('zp1', [325, 372])
    S.add('z', [P.poll_issue(vP1, nz1, 2, PDZ)], ZP1, ZP1)
    S.add('z', [P.poll_check('fz1', vP1, nz1, 2, PDZ), stamp('fz1_ok')] + z_ld(zA), ZC1, ZC1 + 8, pace=2)
    if Z2:
        ZP2, ZC2 = cfg.get('zp2', [390, 434])
        S.add('z2', [P.poll_issue(vP2, 8)], ZP2, ZP2)
        S.add('z2', [P.poll_check('fz2', vP2, 8), stamp('fz2_ok'),
                    f"buffer_load_dwordx4 {vr(ZL+8,4)}, v{vZG}, {srd(S_WS)}, s{zso[4]} offen sc1"], ZC2, ZC2 + 1)
    S.add('fin', [f"v_lshlrev_b32 v{vB2}, 16, v{vB2}", f"v_sub_f32 v{vOG}, 1.0, v{vGG}", f"v_mul_f32 v{vB2}, v{vB2}, v{vOG}"] + gq(0) + gq(1) + gq(2), 44, 200)
    OS = cfg.get('osat', 450)
    bars = cfg.get('bars', [3, 5, 7, 8])
    zlate = cfg.get('zlate', 0)
    flat = lambda l: [x for y in l for x in y]
    done = 0
    tailz = []
    for m in range(9):
        p = 48 * (m + 1)
        if m == 5:
            S.add('red', z_wr(zB), p - 14, p - 1, pace=4)
        if m == 8 and not zlate:
            S.add('red', z_wr(zA), p - 14, p - 1, pace=4)
        S.add('red', wr(m), p, p + 8, pace=3)
        if m in bars:
            S.add('red', [('wait', f'r2w{m}'), "s_barrier"], p + 11, p + 12)
            ms = list(range(done, m + 1))
            done = m + 1
            dl = None if m == 8 else 48 * (bars[bars.index(m) + 1] + 1) + 10
            it = []
            if m == 5:
                it += z_rd(0) + z_rd(1)
            if m == 8 and not zlate:
                it += z_rd(2) + z_rd(3) + ([] if Z2 else z_rd(4))
            it += flat(rd(t, t % 3) for t in ms[:3])
            if m == 8 and not zlate:
                it += ([] if Z2 else fin(4, 0) + fin(4, 1)) + fin(2, 0)
            if m == 5 and ms[0] > 1:
                it += fin(0, 0) + fin(0, 1)
            for i, t in enumerate(ms):
                it += ad(t, t % 3) + (rd(ms[i + 3], t % 3) if i + 3 < len(ms) else []) + sc(t)
            if m == 5:
                it += (fin(0, 0) + fin(0, 1) if ms[0] <= 1 else []) + fin(1, 0) + fin(1, 1) + gq(3) + gq(4)
                dl = min(dl, OS - 1)
                S.add('os', ost(0) + ost(1), OS, OS + 4, pace=3)
            if m == 8:
                last = fin(2, 1) + ost(2) + fin(3, 0) + fin(3, 1) + ost(3)
                if zlate:
                    tailz = fin(2, 0) + last + fin(4, 0) + fin(4, 1)
                else:
                    it += last
            S.add('fin', it, p + 13, dl)
    if zlate:
        S.add('red', z_wr(zA), pown - 8, pown, pace=3)
    S.add('red', wr(9), pown + 1, pown + 6, pace=2)
    ZIN = cfg.get('zin', 1)
    zw2 = (f"ds_write_b128 v{vZLW}, {vr(ZL+8,4)} offset:{4*32*PZ}", 'zw2')
    if Z2 and ZIN:
        S.add('red', [zw2], pown + 8, pown + 8)
    d2 = cfg.get('d2', '')
    post = []
    if 'z' in d2:
        a.run([x[0] for x in S.th['z'][:3]])
        post += [x[0] for x in S.th['z'][3:] + S.th.get('z2', [])]; S.th['z'] = []; S.th['z2'] = []
        S.th['u'] = [x for x in S.th['u'] if not callable(x[0])]
    for nm in ('red', 'fin', 'os'):
        if nm[0] in d2:
            post += [x[0] for x in S.th[nm]]; S.th[nm] = []
    its = S.items(keep=('fin',))
    if 'u' in d2:
        its = [x for x in its if not txt_of(x).startswith('buffer_load_dwordx4 a[')]
    if 'b' in d2:
        its = [x for x in its if txt_of(x) != 's_barrier']
    if 'w' in d2:
        its = [x for x in its if not (txt_of(x).startswith('ds_write_b128') and x[1:] != ('r2w9',)) and not (txt_of(x) == 'wait' and x[1].startswith('r2w'))]
    a.run(its)
    a.run([stamp('g2x')] + ([] if cfg.get('nopost') else post))
    P.info['g2'] = (S.over, S.under, len(S.left.get('fin', [])))
    a.run([stamp('g2mfma')])
    left = S.left.get('fin', [])
    if Z2:
        assert not zlate
        tailz = fin(4, 0) + fin(4, 1)
        if not ZIN:
            a.run(left)
            left = []
            a(zw2[0], tok='zw2')
        a.wait('zw2')
    if 'r2w9' in a.toks:
        a.wait('r2w9')
    a("s_barrier")
    if Z2:
        a.run(z_rd(4))
    for k in range(3):
        a(f"ds_read_b128 {vr(RD4+4*k,4)}, v{vR2S} offset:{4*12288 + k*1024}")
    if zlate:
        a.run(z_rd(2) + z_rd(3) + z_rd(4))
    a.run(left + tailz)
    for k in range(3):
        for hh in range(2):
            a(f"v_pk_add_f32 {vr(OWN+36+2*hh,2)}, {vr(OWN+36+2*hh,2)}, {vr(RD4+4*k+2*hh,2)}")
    g = GQ + 8 + 4
    for hh in range(2):
        a(f"v_pk_fma_f32 {vr(g+2*hh,2)}, {vr(OWN+36+2*hh,2)}, {vr(vOG,2)}, {vr(g+2*hh,2)} op_sel_hi:[1,0,1]")
    for hh in range(2):
        a(f"v_cvt_pk_bf16_f32 v{QR+18+hh}, v{g+2*hh}, v{g+2*hh+1}")
    a.run(ost(4))
    P.finish()
    a("s_endpgm")
    return P


def gen(cfg):
    h = Asm()
    h("s_load_dwordx16 s[36:51], s[0:1], 0")
    h("s_load_dwordx16 s[52:67], s[0:1], 56")
    if cfg.get('stamps') or cfg.get('amp'):
        h("s_memrealtime s[96:97]")
    h("s_cmp_ge_u32 s2, 256")
    h("s_cbranch_scc1 L_end")
    h("v_lshrrev_b32 v1, 6, v0")
    h("v_and_b32 v0, 63, v0")
    h(f"v_readfirstlane_b32 s{sW}, v1")
    rb = cfg.get('rolebit', 0)
    h(f"s_lshr_b32 s{sID}, s2, 3")
    if rb == 0:
        h(f"s_bfe_u32 s{sXQ}, s2, 0x20001")
    elif rb == 2:
        h(f"s_and_b32 s{sXQ}, s2, 3")
    else:
        h(f"s_bfe_u32 s{sXQ}, s2, 0x10002")
        h(f"s_and_b32 s{sT0}, s2, 1")
        h(f"s_lshl1_add_u32 s{sXQ}, s{sXQ}, s{sT0}")
    h(f"s_lshl_b32 s{sJ}, s{sXQ}, 5")
    h(f"s_add_u32 s{sJ}, s{sJ}, s{sID}")
    lay = cfg.get('lay', 'C')
    if lay == 'C':
        if cfg.get('cpf', 1):
            h(f"s_bitcmp0_b32 s2, {rb}")
            h(f"s_cselect_b32 s{sT1}, L_Amain-L_pcC, 0")
            h.run([x.replace("@-L_pcC", f"s{sT1}") for x in Prog('C', cfg).code_prefetch("@", "L_end")])
    elif lay == 'A':
        h(f"s_bitcmp1_b32 s2, {rb}")
        h("s_cbranch_scc1 L_B")
    else:
        h(f"s_bitcmp0_b32 s2, {rb}")
        h("s_cbranch_scc1 L_A")
    A, B = prog_A(cfg), prog_B(cfg)
    ref = open(f"cdna_kernels/{NAME}.s.ref").read().split('\n')
    head = [l for l in ref if l.startswith(';') and '@launch' not in l and 'Override' not in l and 'grid=ceil' not in l]
    txt = '\n'.join(head) + f"\n; @launch grid=(256,1,1) block=(256,1,1) lds={L_END}\n"
    txt += f""".amdgcn_target "amdgcn-amd-amdhsa--gfx950"
.text
.globl {NAME}_kernel
.p2align 8
.type {NAME}_kernel,@function
{NAME}_kernel:
"""
    if lay == 'C':
        J = lambda l: '\n'.join(l) + '\n'
        txt += (h.text() + J(A.a.out[:A.split0]) + J(B.a.out[:B.split0]) + f"    s_waitcnt lgkmcnt(0)\n    s_bitcmp1_b32 s2, {rb}\n    s_cbranch_scc1 L_Bgo\n" +
                J(A.a.out[A.split0:A.split]) + "L_Bgo:\n" + J(B.a.out[B.split0:]) + ".p2align 7\n" + J(A.a.out[A.split:]) + "L_end:\n    s_endpgm\n")
    elif lay == 'A':
        txt += h.text() + '\n'.join(A.a.out[:A.split]) + '\n' + B.a.text() + ".p2align 7\n" + '\n'.join(A.a.out[A.split:]) + "\nL_end:\n    s_endpgm\n"
    else:
        txt += h.text() + B.a.text() + ".p2align 7\nL_A:\n" + '\n'.join(A.a.out[:A.split-1] + A.a.out[A.split:]) + "\nL_end:\n    s_endpgm\n"
    txt += f""".section .rodata,"a"
.p2align 6
.amdhsa_kernel {NAME}_kernel
  .amdhsa_next_free_vgpr 512
  .amdhsa_next_free_sgpr 102
  .amdhsa_accum_offset 256
  .amdhsa_group_segment_fixed_size 0
  .amdhsa_kernarg_size 120
  .amdhsa_user_sgpr_count 2
  .amdhsa_user_sgpr_kernarg_segment_ptr 1
  .amdhsa_system_sgpr_workgroup_id_x 1
  .amdhsa_float_denorm_mode_32 3
.end_amdhsa_kernel
"""
    return txt, dict(n_ins=(A.a.n_ins, B.a.n_ins), n_nop=(A.a.n_nop, B.a.n_nop), stamps=B.names, stampsA=A.names,
                     rolebit=rb, sched=(A.info, B.info))


if __name__ == "__main__":
    import json
    out = sys.argv[1]
    cfg = json.loads(sys.argv[2]) if len(sys.argv) > 2 else {}
    txt, info = gen(cfg)
    open(out, 'w').write(txt)
    print(out, info)


def dmap(T, i):
    dt, m = divmod(T, 5)
    r, g = dt >> 2, dt & 3
    P, hh = (2 * r + (m >> 1), m & 1) if m < 4 else (4, r)
    return 160 * g + 32 * P + 8 * (i >> 2) + 4 * hh + (i & 3)
```

```python
import sys
from asmlib import Asm, merge, Sched

NAME = "gated_mix__ssm_conv_h3__mixer_token_mlp__prompt"

WS_H, WS_U, WS_KV, WS_Z, WS_G = 0x0, 0x280000, 0x480000, 0x700000, 0x980000
WS_F1, WS_FK, WS_FU, WS_FZ, WS_EP, WS_DBG = 0x990000, 0x998000, 0x9A0000, 0x9B0000, 0x9C0000, 0x9D0000
WS_SIZE = 0xA10000
OOB = 0x7F000000
TAGC = 0x9E3779B9

NR = 4
L_RED = 65536
PL = 1344
L_LN = 32768
PK = 704
L_KI = L_RED
L_VI = L_RED + 25600
L_ZSTG = L_RED + 4 * 12288
L_CK = L_RED + 61440
KP, KPAD = 4224, 96
L_CX = L_CK + 3 * KP
XP, XPAD = 4608, 512
L_CAR = L_CX + 3 * XP
L_END = L_CAR + 1600
L_ZI = L_CK
PZ = 144

S_WS, S_K, S_V, S_W, S_SSM = 4, 8, 12, 16, 24
P_Q, P_SH, P_D, P_B1, P_B2, P_GW, P_OUT = 36, 42, 46, 54, 58, 60, 62
TK = 68
sW, sXQ, sID, sA, sB, sJ, sSP, sTAG, sRING, sC0, sFI, sFJ = range(84, 96)
sT0, sT1, sT2, sT3 = 32, 33, 34, 35
sU0, sU1, sU2, sU3 = 20, 21, 22, 23
sX0, sX1, sX2 = 31, 48, 49
sC2 = 39
sCNT = 3
vH, vI, vR, vC, vT, vT2 = 37, 38, 39, 40, 42, 43
VW, VT = 2, 6
vPD = 18
vCA, vCB, vCA2, vCB2 = 20, 21, 22, 23
vCRW, vCRW2, vCRR, vCRR2, vZW, vZR, vZS, vZS2, vCW = 25, 26, 27, 28, 29, 30, 31, 32, 33
vP0, vP1, vTAG = 35, 24, 34
CA, CB, CACC, CY, NSL = 64, 128, 192, 216, 6
CH, CR, ZO = 240, 246, 216
vZF = 252
C20 = 56


def srd(n):
    return f"s[{n}:{n+3}]"


def sp(n):
    return f"s[{n}:{n+1}]"


def vr(n, k):
    return f"v[{n}:{n+k-1}]"


def ar(n, k):
    return f"a[{n}:{n+k-1}]"


def txt_of(x):
    return x if isinstance(x, str) else (x[0] if isinstance(x, tuple) else '')


class Prog:
    def __init__(self, role, cfg):
        self.a = Asm()
        self.role = role
        self.cfg = cfg
        self.stamps = cfg.get('stamps', False)
        self.names = []
        self.npoll = 0
        self.nxt = self.drn = 0
        self.nstep = 16 if role == 'A' else 12
        self.info = {}

    def stamp(self, name):
        def f(a):
            st = self.stamps
            amp = self.cfg.get('amp')
            if amp and amp == [self.role, name]:
                a("s_memrealtime s[98:99]")
            if not st or (st != 1 and name not in st and name not in ('start', 'end')) or (st == 1 and name[0] == 'w' and name != 'w8'):
                return
            k = len(self.names)
            a("s_memtime s[98:99]")
            a("s_memrealtime s[100:101]")
            a(f"v_writelane_b32 v255, s98, {k}")
            a(f"v_writelane_b32 v255, s100, {32+k}")
            self.names.append(name)
        f.cost = 0
        return f

    def weight_src(self, pitch, sbase):
        it = [f"v_lshrrev_b32 v{vT}, 3, v0",
              f"v_and_b32 v{vT2}, 6, v{vT}",
              f"v_xor_b32 v{vT2}, v{vT2}, v0",
              f"v_and_b32 v{vT2}, 7, v{vT2}",
              f"v_mul_u32_u24 v{vT}, {pitch}, v{vT}",
              f"v_lshl_add_u32 v{vT}, v{vT2}, 4, v{vT}",
              f"v_add_u32 v{VW}, s{sbase}, v{vT}"]
        for i in range(1, 4):
            it.append(f"v_add_u32 v{VW+i}, {8*pitch-1024}, v{VW+i-1}")
        return it

    def weight_dst(self, xorw):
        it = [f"v_lshrrev_b32 v{vT}, 2, v0",
              f"v_lshlrev_b32 v{vT}, 7, v{vT}",
              f"v_lshl_add_u32 v{vT}, v{vC}, 3, v{vT}",
              f"v_bfe_u32 v{vT2}, v0, 3, 2"]
        if xorw:
            it.append(f"v_xor_b32 v{vT2}, s{sW}, v{vT2}")
        it += [f"v_lshl_add_u32 v{vT}, v{vT2}, 5, v{vT}",
               f"v_add_u32 v{VT}, s{sRING}, v{vT}"]
        for t in range(1, 4):
            it.append(f"v_xor_b32 v{VT+t}, {t*32}, v{VT}")
        return it

    def w_issue(self, j):
        it = [f"s_mul_i32 s{sU1}, s{TK+j}, {96 if self.role == 'A' else 128}",
              f"s_add_u32 m0, s{sRING}, {(j % NR)*16384}"]
        if j >= NR:
            it.append(('wait', f'wr{j-NR}'))
        for i in range(4):
            it.append((f"buffer_load_dwordx4 v{VW+i}, {srd(S_W)}, s{sU1} offen offset:{i*1024} {self.cfg.get('wpol', '')} lds", f'wd{j}'))
        return it

    def w_drain(self, j):
        it = [('wait', f'wd{j}')]
        for t in range(4):
            for e2 in range(2):
                it.append((f"ds_read_b64_tr_b16 {ar(16*j+4*t+2*e2,2)}, v{VT+t} offset:{(j % NR)*16384 + e2*2048}", f'wr{j}'))
        return it

    def w_step(self):
        it = []
        if self.nxt >= NR or self.nxt == self.nstep:
            it += self.w_drain(self.drn); self.drn += 1
        if self.nxt < self.nstep:
            it += self.w_issue(self.nxt); self.nxt += 1
        return it

    def flag(self, soff):
        return f"s_mov_b64 exec, 1\nbuffer_store_dword v{vTAG}, v0, {srd(S_WS)}, s{soff} offen sc1\ns_mov_b64 exec, -1"

    def flag_wg(self, soff, name):
        def f(a):
            a("s_barrier")
            a(f"s_cmp_lg_u32 s{sW}, 0")
            a(f"s_cbranch_scc1 L_nf_{name}")
            a.begin_cond(name)
            a(self.flag(soff))
            a.end_cond()
            a.label(f"L_nf_{name}")
        return f

    def set_tag(self, v):
        return [f"v_readfirstlane_b32 s{sTAG}, v{v}", f"s_add_u32 s{sTAG}, s{sTAG}, {hex(TAGC)}", f"v_mov_b32 v{vTAG}, s{sTAG}"]

    @staticmethod
    def setexec(n):
        if n == 32:
            return "s_mov_b32 exec_hi, 0"
        if n > 32:
            return f"s_mov_b32 exec_hi, {hex((1 << (n-32)) - 1)}"
        return f"s_mov_b64 exec, {hex((1 << n) - 1)}"

    def poll_load(self, va, wd, vd):
        if wd == 1:
            return f"buffer_load_dword v{vd}, v{va}, {srd(S_WS)}, 0 offen sc1"
        return f"buffer_load_dwordx{wd} {vr(vd,wd)}, v{va}, {srd(S_WS)}, 0 offen sc1"

    def poll_issue(self, va, n=64, wd=1, vd=vPD):
        it = [self.setexec(n)] if n < 64 else []
        it.append(self.poll_load(va, wd, vd))
        if n < 64:
            it.append("s_mov_b64 exec, -1")
        return "\n".join(it)

    def poll_check(self, name, va, n=64, wd=1, vd=vPD):
        name = self.role + name

        def cmp(a):
            if wd == 1:
                a(f"v_cmp_ne_u32 vcc, s{sTAG}, v{vd}")
                return
            a(f"v_xor_b32 v{vd}, s{sTAG}, v{vd}")
            for k in range(1, wd):
                a(f"v_bitop3_b32 v{vd}, v{vd}, v{vd+k}, v{vTAG} bitop3:0xf6")
            a(f"v_cmp_ne_u32 vcc, 0, v{vd}")

        def f(a):
            if n < 64:
                a(self.setexec(n))
            cmp(a)
            a(f"s_mov_b32 s{sCNT}, 0")
            a(f"s_branch L_pk_{name}" if name[1:] in self.cfg.get('nopoll', []) else f"s_cbranch_vccz L_pk_{name}")
            a.label(f"L_pl_{name}")
            a.begin_cond('poll' + name)
            a("s_mov_b64 exec, vcc")
            if self.cfg.get('psleep'):
                a(f"s_sleep {self.cfg['psleep']}")
            a(self.poll_load(va, wd, vd))
            a(f"s_add_u32 s{sCNT}, s{sCNT}, 1")
            a(f"s_cmp_ge_u32 s{sCNT}, 0x40000")
            a(f"s_cbranch_scc1 L_pk_{name}")
            cmp(a)
            a("s_nop 0")
            a(f"s_cbranch_vccnz L_pl_{name}")
            a.end_cond()
            a.label(f"L_pk_{name}")
            a("s_mov_b64 exec, -1")
            if self.stamps:
                a(f"v_writelane_b32 v254, s{sCNT}, {self.npoll}")
                self.npoll += 1
        f.cost = 5
        return f

    def zflag_addr(self, dst, first):
        fsz = self.cfg.get('fsz', 32)
        return [f"s_add_u32 s{dst}, s{sJ}, {first}", f"s_mul_i32 s{dst}, s{dst}, {fsz}",
                f"s_lshl1_add_u32 s{sT0}, s{sT3}, s{sT2}", f"s_lshl2_add_u32 s{dst}, s{sT0}, s{dst}",
                f"s_add_u32 s{dst}, s{dst}, {WS_FZ}"]

    def lanes(self):
        return ["v_lshlrev_b32 v1, 4, v0",
                f"v_lshrrev_b32 v{vH}, 4, v0", f"v_and_b32 v{vI}, 15, v0",
                f"v_bfe_u32 v{vR}, v0, 2, 2", f"v_and_b32 v{vC}, 3, v0",
                f"s_lshr_b32 s{sT2}, s{sW}, 1", f"s_and_b32 s{sT3}, s{sW}, 1",
                f"s_lshl_b32 s{sRING}, s{sW}, 12"]

    def code_prefetch(self, beg, end):
        r = self.role
        return [f"s_getpc_b64 {sp(sU2)}", f"L_pc{r}:",
                f"s_lshl2_add_u32 s{sT2}, s{sID}, s{sW}",
                f"v_lshl_add_u32 v{vT}, s{sT2}, 1, v0",
                f"v_lshlrev_b32 v{vT}, 7, v{vT}",
                f"v_add_u32 v{vT}, {beg}-L_pc{r}, v{vT}",
                f"v_min_u32 v{vT}, {end}-L_pc{r}, v{vT}",
                "s_mov_b64 exec, 3",
                f"global_load_dword v253, v{vT}, {sp(sU2)}",
                "s_mov_b64 exec, -1"]

    def epoch_load(self, v):
        return [f"s_mov_b32 s{sT0}, {WS_EP}", "s_mov_b64 exec, 1",
                f"buffer_load_dword v{v}, v0, {srd(S_WS)}, s{sT0} offen sc1", "s_mov_b64 exec, -1"]

    def conv_setup(self, nch):
        ZR = 68
        it = [f"s_mul_i32 s{sC2}, s{sXQ}, 160",
              f"s_lshl1_add_u32 s{sC0}, s{sID}, s{sC2}",
              f"s_add_u32 s{sC0}, s{sC0}, {64 if self.role == 'A' else 0}",
              f"s_add_u32 s{sC2}, s{sC2}, s{sID}",
              f"s_add_u32 s{sC2}, s{sC2}, 128",
              f"s_lshl_b32 s{sT0}, s{sC0}, 1",
              f"s_load_dword s28, {sp(P_D)}, s{sT0}"]
        if nch == 3:
            it += [f"s_lshr_b32 s{sT1}, s{sC2}, 1", f"s_lshl_b32 s29, s{sT1}, 2", f"s_load_dword s30, {sp(P_D)}, s29"]
        it += [f"s_lshl_b32 s{sX0}, s{sC0}, 12",
               f"s_lshl_b32 s{sT1}, s{sW}, 10",
               f"s_add_u32 s{sX0}, s{sX0}, s{sT1}",
               f"s_add_u32 s{sX1}, s{sX0}, 4096",
               f"s_lshl_b32 s{sX2}, s{sC2}, 12",
               f"s_add_u32 s{sX2}, s{sX2}, s{sT1}"]
        it += [f"v_mov_b32 v{ZR+i}, 0" for i in range(4)]
        it += [f"s_min_u32 s{sT0}, s{sW}, 2",
               f"s_mul_i32 s{sT1}, s{sT0}, {XP}",
               f"s_add_u32 s{sT1}, s{sT1}, {L_CX}",
               f"v_add_u32 v{vT}, s{sT1}, v1",
               f"s_mul_i32 s{sT1}, s{sT0}, {KP}",
               f"s_add_u32 s{sT1}, s{sT1}, {L_CK}",
               f"v_add_u32 v{vT2}, s{sT1}, v1",
               f"s_mul_i32 s{sT1}, s{sT0}, {33*16}",
               f"s_add_u32 s{sT1}, s{sT1}, {L_CAR}",
               f"v_mov_b32 v{vPD}, s{sT1}",
               "s_mov_b32 exec_hi, 0",
               f"ds_write_b128 v{vT}, {vr(ZR,4)}",
               f"s_mov_b64 exec, {hex((1 << (KPAD//16)) - 1)}",
               f"ds_write_b128 v{vT2}, {vr(ZR,4)}",
               "s_mov_b64 exec, 1",
               f"ds_write_b128 v{vPD}, {vr(ZR,4)}",
               "s_mov_b64 exec, -1"]
        it += [f"v_lshl_add_u32 v{vT}, v{vH}, 3, v{vR}",
               f"v_lshlrev_b32 v{vT2}, 2, v{vC}",
               f"v_sub_u32 v{vT2}, v{vT2}, v{vT}",
               f"v_lshlrev_b32 v{vT2}, 3, v{vT2}",
               f"s_mul_i32 s{sT0}, s{sT2}, {KP}",
               f"s_add_u32 s{sT0}, s{sT0}, {L_CK + KPAD + 152 - 32}",
               f"v_add_u32 v{vCA}, s{sT0}, v{vT2}"]
        if nch == 3:
            it.append(f"v_add_u32 v{vCA2}, {L_CK + 2*KP + KPAD + 152 - 32}, v{vT2}")
        it += [f"v_add_lshl_u32 v{vT}, v{vT}, v{vC}, 3",
               f"s_mul_i32 s{sT0}, s{sT2}, {XP}",
               f"s_lshl_b32 s{sT1}, s{sT3}, 7",
               f"s_add_u32 s{sT0}, s{sT0}, s{sT1}",
               f"s_add_u32 s{sT0}, s{sT0}, {L_CX + XPAD - 152}",
               f"v_add_u32 v{vCB}, s{sT0}, v{vT}"]
        if nch == 3:
            it += [f"s_lshl_b32 s{sT0}, s{sW}, 7",
                   f"s_add_u32 s{sT0}, s{sT0}, {L_CX + 2*XP + XPAD - 152 - 256}",
                   f"v_add_u32 v{vCB2}, s{sT0}, v{vT}"]
        return it

    def conv_setup2(self, nch):
        it = [f"s_mul_i32 s{sT0}, s{sT2}, {33*16}",
              f"s_lshl4_add_u32 s{sT0}, s{sT3}, s{sT0}",
              f"s_add_u32 s{sT0}, s{sT0}, {L_CAR}",
              f"v_lshlrev_b32 v{vT}, 2, v{vC}",
              f"v_lshl_add_u32 v{vT2}, v{vR}, 5, v{vT}",
              f"v_add_u32 v{vCRR}, s{sT0}, v{vT2}",
              f"s_add_u32 s{sT0}, s{sT0}, {(16 - 48*32) & 0xffffffff}",
              f"v_lshl_add_u32 v{vCRW}, v0, 5, s{sT0}"]
        if nch == 3:
            it += [f"s_lshl_b32 s{sT0}, s{sW}, 4",
                   f"s_add_u32 s{sT0}, s{sT0}, {L_CAR + 2*33*16}",
                   f"v_lshl_add_u32 v{vT2}, v{vR}, 6, v{vT}",
                   f"v_add_u32 v{vCRR2}, s{sT0}, v{vT2}",
                   f"s_add_u32 s{sT0}, s{sT0}, {(16 - 56*64) & 0xffffffff}",
                   f"v_lshl_add_u32 v{vCRW2}, v0, 6, s{sT0}"]
        it += [f"s_mul_i32 s{sT0}, s{sW}, 3072",
               f"s_add_u32 s{sT0}, s{sT0}, {L_ZSTG}",
               f"v_lshl_add_u32 v{vZW}, v0, 1, s{sT0}",
               f"v_add_u32 v{vZR}, s{sT0}, v1",
               f"v_lshl_add_u32 v{vT}, v{vC}, 1, s{sT0}",
               f"v_lshl_add_u32 v{vZF}, v{vR}, 7, v{vT}",
               f"v_lshrrev_b32 v{vT}, 3, v0",
               f"v_and_b32 v{vT2}, 7, v0",
               f"v_lshlrev_b32 v{vT2}, 4, v{vT2}",
               f"v_lshl_add_u32 v{vZS}, v{vT}, 8, v{vT2}",
               f"s_add_u32 s{sT0}, s{sC0}, s{sT2}",
               f"s_lshl_b32 s{sT0}, s{sT0}, 12",
               f"s_lshl_b32 s{sT1}, s{sT3}, 7",
               f"s_add_u32 s{sT0}, s{sT0}, s{sT1}",
               f"s_add_u32 s{sT0}, s{sT0}, {WS_Z}",
               f"v_add_u32 v{vZS}, s{sT0}, v{vZS}"]
        if nch == 3:
            it += [f"v_lshl_add_u32 v{vZS2}, v{vT}, 9, v{vT2}",
                   f"s_lshl_b32 s{sT0}, s{sC2}, 12",
                   f"s_lshl_b32 s{sT1}, s{sW}, 7",
                   f"s_add_u32 s{sT0}, s{sT0}, s{sT1}",
                   f"s_add_u32 s{sT0}, s{sT0}, {WS_Z}",
                   f"v_add_u32 v{vZS2}, s{sT0}, v{vZS2}"]
        if nch == 3:
            it += [f"s_and_b32 s{sT0}, s{sC2}, 1",
                   f"s_lshl_b32 s{sT0}, s{sT0}, 4",
                   f"s_lshr_b32 s30, s30, s{sT0}",
                   f"s_lshl_b32 s30, s30, 16"]
        fsk = self.cfg.get('fsk', 16)
        it += [f"s_lshl_b32 s{sT0}, s{sT2}, 4", f"s_lshr_b32 s28, s28, s{sT0}", f"s_lshl_b32 s28, s28, 16",
               f"s_lshl_b32 s29, s{sW}, 10",
               f"s_lshr_b32 s{sT0}, s{sXQ}, 1",
               f"s_lshl2_add_u32 s{sT0}, s{sT0}, s{sW}",
               f"v_lshl_add_u32 v{vP1}, s{sT0}, 4, v0",
               f"v_mul_u32_u24 v{vP1}, {fsk}, v{vP1}",
               f"v_add_u32 v{vP1}, {WS_FK}, v{vP1}"]
        return it

    def ssm_loads(self, nch):
        return [(f"s_add_u32 m0, s29, {L_CK + KPAD + cs*KP}\nbuffer_load_dwordx4 v1, {srd(S_SSM)}, s{so} offen {self.cfg.get('spol', '')} lds\ns_add_u32 s{so}, s{so}, {WS_KV}", 'kd')
                for cs, so in enumerate((sX0, sX1, sX2)[:nch])]

    def x_loads(self, nch):
        return [(f"s_add_u32 m0, s29, {L_CX + XPAD + cs*XP}\nbuffer_load_dwordx4 v1, {srd(S_WS)}, s{so} offen sc1 lds", 'xd')
                for cs, so in enumerate((sX0, sX1, sX2)[:nch])]

    def dpatch(self, part):
        it = []
        r0 = C20 if part == 2 and self.role == 'A' else CA
        for r, mk in ((r0 + 1, 0x01000001), (r0 + 3, 0x10000010)):
            it += [f"v_and_b32 v{vT2}, 0xffff0000, v{r}", f"v_lshlrev_b32 v{vT}, 16, v{r}",
                   f"v_add_f32 v{vT2}, s{28 if part == 1 else 30}, v{vT2}",
                   f"s_mov_b32 exec_lo, 0\ns_mov_b32 exec_hi, {hex(mk)}\nv_cvt_pk_bf16_f32 v{r}, v{vT}, v{vT2}\ns_mov_b64 exec, -1"]
        return it

    def conv_pre(self, n):
        it = []
        for c in range(n):
            it += self.c_read(1, c)
        return it + self.dpatch(1)

    tiles = [(1, m, m) for m in range(16)] + [(2, n, 2 * n + 1) for n in range(8)]

    def fa(self, part, c, o=0, k=4):
        if part == 2 and self.role == 'A':
            return vr(C20 + o, k) if c == 0 else ar(4 * c + o, k)
        return vr(CA + 4 * c + o, k)

    def fb(self, part, n, o=0, k=4):
        if part == 2 and self.role == 'A':
            return ar(64 + 4 * n + o, k)
        return vr(CB + 4 * (n if part == 1 else 15 - n) + o, k)

    def c_read(self, part, c):
        va, vb = (vCA, vCB) if part == 1 else (vCA2, vCB2)
        return ([f"ds_read_b64_tr_b16 {self.fa(part,c,2*e2,2)}, v{va} offset:{256*c + 32*(1-e2)}" for e2 in range(2)] +
                [f"ds_read_b64_tr_b16 {self.fb(part,c,2*e2,2)}, v{vb} offset:{256*c + 32*e2}" for e2 in range(2)])

    def tile_epi(self, g):
        part, k, m = self.tiles[g]
        d = CACC + 4 * (g % NSL)
        p = CACC + 4 * ((g - 1) % NSL)
        dp = "wave_shr:1 row_mask:0xf bank_mask:0xf bound_ctrl:0"
        it = []
        for j, dst in ((3, d + 2), (2, d + 1), (1, CY + g)):
            it.append(f"v_add_f32_dpp v{dst}, v{d+j}, v{d+j-1} {dp}")
            if k:
                it.append(f"v_mov_b32_dpp v{d+j}, v{p+j} wave_shl:1 row_mask:0xf bank_mask:0xf")
        if g in (15, 23):
            va, mk = (vCRW, '0xffff0000') if g == 15 else (vCRW2, '0xff000000')
            it.append((f"s_mov_b32 exec_lo, 0\ns_mov_b32 exec_hi, {mk}\nds_write_b128 v{va}, {vr(d,4)}\ns_mov_b64 exec, -1", f'carw{part}'))
        return it

    def stage(self, g):
        it = []
        for t in (g, g + 1):
            j = t % 4
            it.append(f"v_mov_b32 v{CH+t//4}, v{CY+t}" if j == 0 else
                      f"v_mov_b32_dpp v{CH+t//4}, v{CY+t} row_shr:{4*j} row_mask:0x1 bank_mask:{hex(1 << j)}")
        return it + [f"v_cvt_pk_bf16_f32 v{CY+g}, v{CY+g}, v{CY+g+1}",
                     f"ds_write_b16 v{vZW}, v{CY+g} offset:{128*g}", f"ds_write_b16_d16_hi v{vZW}, v{CY+g} offset:{128*(g+1)}"]

    def conv_sched(self, nt, cpre, cap, sg0=0):
        mf, first = [], []
        for g, (part, k, m) in enumerate(self.tiles[:nt]):
            d = vr(CACC + 4 * (g % NSL), 4)
            first.append(len(mf))
            mf += [f"v_mfma_f32_16x16x32_bf16 {d}, {self.fa(part,c)}, {self.fb(part,m-c)}, {'0' if c == 0 else d}"
                   for c in range(m + 1)]
        first += [len(mf)] * 8
        S = Sched(mf, cap)
        LEAD = self.cfg.get('lead', 7)
        for g in range(1, nt):
            S.reserve(first[g] - 1)
        for c in range(cpre, 16):
            S.add('rd', self.c_read(1, c), 0, max(first[c] - LEAD, 0))
        if nt > 16 and self.role == 'A':
            r0 = self.cfg.get('r2A', 60)
            for c in range(16):
                S.add('rd2', self.c_read(2, c), r0, min(first[16 + c // 2] - LEAD, r0 + 12 + 7 * c))
            S.add('dp', self.dpatch(2), r0 + 20, first[16] - 2)
        elif nt > 16:
            for c in range(16):
                dl = max(first[16 + c // 2] - LEAD, first[15] + c + 1) if c else first[15] + 4
                S.add('rd', self.c_read(2, c), first[15] + c + 1, dl)
            S.add('dp', self.dpatch(2), first[15] + 8, first[16] - 2)
        self.sgrel = {}
        for g in range(nt - 1):
            dl = min(first[g + NSL - 1] - 1, first[g + 1] + (self.cfg.get('epl', 24) if g < 12 else 8))
            S.add('ep', self.tile_epi(g), first[g + 1] + 2, dl)
            if g & 1:
                self.sgrel[g - 1] = max(dl + 1, sg0)
        self.first = first
        return S

    def z_fix(self, part):
        qs = (0, 2) if part == 1 else (4,)
        va, st = (vCRR, 32) if part == 1 else (vCRR2, 64)
        it = [f"ds_read2_b32 {vr(CR+q,2)}, v{va} offset0:{1+st*(q % 4)} offset1:{1+st*(q % 4 + 1)}" for q in qs]
        for q in qs:
            it += [f"v_add_f32 v{CH+q}, v{CH+q}, v{CR+q}", f"v_add_f32 v{CH+q+1}, v{CH+q+1}, v{CR+q+1}",
                   f"v_cvt_pk_bf16_f32 v{CH+q}, v{CH+q}, v{CH+q+1}",
                   f"s_mov_b64 exec, 0x7777\nds_write_b16 v{vZF}, v{CH+q} offset:{512*q}\nds_write_b16_d16_hi v{vZF}, v{CH+q} offset:{512*(q+1)}\ns_mov_b64 exec, -1",
                   f"ds_read_b128 {vr(ZO+2*q,4)}, v{vZR} offset:{512*q}"]
        if part == 1:
            st = [(f"buffer_store_dwordx4 {vr(ZO,4)}, v{vZS}, {srd(S_WS)}, 0 offen sc1", 'zst1'),
                  (f"buffer_store_dwordx4 {vr(ZO+4,4)}, v{vZS}, {srd(S_WS)}, 0 offen offset:2048 sc1", 'zst1')]
        else:
            st = [(f"buffer_store_dwordx4 {vr(ZO+8,4)}, v{vZS2}, {srd(S_WS)}, 0 offen sc1", 'zst2')]
        return it, st

    def conv_run(self, S, nt, early, flag1=None, mid=((), (), ())):
        a = self.a
        for g in range(0, nt - 2, 2):
            S.add('sg', self.stage(g), self.sgrel[g], None)
            if early and g == 14:
                f1, s1 = self.z_fix(1)
                p = self.cfg.get('pE1', 146)
                S.th['sg'][-1][2] = p - 1
                S.add('sg', [('wait', 'carw1'), "s_barrier"], p, p + 1)
                S.add('sg', f1[:2], p + 1, p + 3)
                e1, e2 = self.cfg.get('e12', [6, 20])
                S.add('sg', f1[2:], p + e1, p + e1 + 10)
                S.add('sg', s1, p + e2, p + e2 + 2)
        f1in = early and self.cfg.get('f1in', 1)
        its = S.items(keep=('sg',))
        wi = self.cfg.get('wi' + self.role, 0)
        if wi:
            keep, n = [], 0
            for x in its:
                t = txt_of(x)
                if t.startswith('v_mfma'):
                    n += 1
                drop = n > wi and (t.startswith(('v_mfma', 'v_add_f32_dpp', 'v_mov_b32_dpp')) or t.startswith('ds_read_b64_tr_b16 v'))
                if not drop:
                    keep.append(x)
            its = keep
        a.run(its)
        self.info['conv'] = (S.over, S.under, len(S.left.get('sg', [])))
        a.run([self.stamp('conv')])
        if f1in:
            a.run([('wait', 'zst1'), flag1])
        a.run(mid[0])
        a.run(merge(S.left.get('sg', []) or ["s_nop 0"], self.tile_epi(nt - 1)))
        a.run(self.stage(nt - 2))
        a.run(mid[1])
        a.wait('carw2' if nt > 16 else 'carw1')
        a("s_barrier")
        parts = [2] if early else ([1, 2] if nt > 16 else [1])
        fs = [self.z_fix(p) for p in parts]
        if early and not f1in:
            a.run(fs[0][0][:1] + [('wait', 'zst1'), flag1] + fs[0][0][1:])
        else:
            a.run([x for f in fs for x in f[0]])
        a.run(mid[2])
        a.run([x for f in fs for x in f[1]])
        a.run([self.stamp('z_st')])

    def finish(self):
        a = self.a
        a.run([self.stamp('end')])
        amp = self.cfg.get('amp')
        if amp and amp[0] == self.role:
            if self.role == 'A':
                a(f"s_cmp_ge_u32 s{sID}, 30")
                a("s_cbranch_scc1 L_end")
            a("s_memrealtime s[100:101]")
            a("s_sub_u32 s98, s98, s96")
            a("s_mul_i32 s98, s98, 20")
            a("s_min_u32 s98, s98, 200000")
            a("s_add_u32 s98, s98, s100")
            a.label("L_amp")
            a("s_memrealtime s[100:101]")
            a("s_sub_u32 s100, s100, s98")
            a("s_cmp_lt_i32 s100, 0")
            a("s_cbranch_scc1 L_amp")
        if self.stamps:
            if not self.cfg.get('nodrain'):
                a.wait_all()
            a("s_memrealtime s[98:99]")
            a(f"v_writelane_b32 v255, s96, 30")
            a(f"v_writelane_b32 v255, s98, 31")
            for k in range(self.npoll):
                a(f"v_readlane_b32 s{sT0}, v254, {k}")
                a(f"v_writelane_b32 v255, s{sT0}, {24+k}")
            a(f"s_lshl2_add_u32 s{sT0}, s2, s{sW}")
            a(f"s_lshl_b32 s{sT0}, s{sT0}, 8")
            a(f"s_add_u32 s{sT0}, s{sT0}, {WS_DBG}")
            a(f"v_lshlrev_b32 v{vT}, 2, v0")
            a(f"buffer_store_dword v255, v{vT}, {srd(S_WS)}, s{sT0} offen")


KERNARG = {f"s{i}" for i in range(36, 68)}


def prog_A(cfg):
    P = Prog('A', cfg)
    a, stamp = P.a, P.stamp
    a.smem_pending = set(KERNARG) | {'s96', 's97'}
    FS1, FSU, FSZ = cfg.get('fs1', 32), cfg.get('fsu', 64), cfg.get('fsz', 32)
    NB, GR = cfg.get('nb', 14), cfg.get('grp', 2)
    sDG, sFT = sA, sB
    KW, HW = cfg.get('kw', 1), cfg.get('hw', 1)
    NC = 3 if cfg.get('third', 'A') == 'A' else 2
    NT = 8*NC
    if cfg.get('cpf', 1) and cfg.get('lay', 'C') != 'C':
        a.run(P.code_prefetch("L_Amain", "L_end"))
    a(f"s_mul_i32 s{sT0}, s{sID}, 52")
    a(f"s_lshr_b32 s{sT0}, s{sT0}, 8")
    a(f"s_mul_i32 s{sT1}, s{sT0}, 5")
    a(f"s_sub_u32 s{sDG}, s{sID}, s{sT1}")
    a(f"s_min_u32 s{sT0}, s{sT0}, 5")
    a(f"s_mul_i32 s{sFT}, s{sXQ}, 6")
    a(f"s_add_u32 s{sFT}, s{sFT}, s{sT0}")
    a(f"s_lshl4_add_u32 s{sT1}, s{sDG}, s{sW}")
    a(f"s_mul_i32 s{sT1}, s{sT1}, 205")
    a(f"s_lshr_b32 s{sT1}, s{sT1}, 10")
    sOWN = 38
    if cfg.get('rkA', 0):
        a(f"s_lshr_b32 s{sCNT}, s{sT0}, 1")
        a(f"s_mul_i32 s{sCNT}, s{sCNT}, {cfg.get('rkA', 0)}")
        a(f"s_add_u32 s{sT1}, s{sT1}, s{sCNT}")
        a(f"s_and_b32 s{sT1}, s{sT1}, 15")
    a(f"s_lshl_b32 s{TK}, s{sT1}, 10")
    a(f"s_add_u32 s{sT1}, s{TK}, 1024")
    a(f"s_and_b32 s{TK+1}, s{sT1}, 0x3c00")
    a(f"s_lshl_b32 s{sRING}, s{sW}, 12")
    a(f"s_mul_i32 s{sT0}, s{sW}, {512*3072}")
    a(f"s_lshl_b32 s{sT1}, s{sFT}, 7")
    a(f"s_add_u32 s{sT0}, s{sT0}, s{sT1}")
    a.run(P.weight_src(3072, sT0))
    a(f"s_mov_b32 s{S_W+2}, 6291456")
    a(f"s_mov_b32 s{S_W+3}, 0x20000")
    P.split0 = len(a.out)
    a(f"s_cmp_ge_u32 s{sID}, 30")
    a(f"s_cselect_b32 s{sSP}, {OOB}, 0")
    a(f"s_mov_b64 {sp(S_W)}, {sp(50)}")
    a("s_cbranch_scc1 L_Amain")
    a.run(P.w_step())
    a.run([stamp('start')])
    a.run(P.w_step())
    a("s_branch L_Amain")
    P.split = len(a.out)
    a.label("L_Amain")
    if cfg.get('lay', 'C') != 'C':
        a.run(P.lanes())
    if cfg.get('hlpA', 1):
        a(f"s_cmp_lt_u32 s{sID}, 30")
        a("s_cbranch_scc1 L_Anh")
        a.begin_cond('hlp')
        a(f"s_lshl1_add_u32 s{sT0}, s{sXQ}, 3")
        a(f"s_and_b32 s{sT0}, s{sT0}, 7")
        a(f"s_min_u32 s{sT0}, s{sT0}, 5")
        a(f"s_lshr_b32 s{sCNT}, s{sT0}, 1")
        a(f"s_mul_i32 s{sCNT}, s{sCNT}, {cfg.get('rkA', 0)}")
        a(f"s_add_u32 s{sCNT}, s{sCNT}, 15")
        a(f"s_mul_i32 s{sT1}, s{sXQ}, 6")
        a(f"s_add_u32 s{sT0}, s{sT0}, s{sT1}")
        a(f"s_lshl_b32 s{sT0}, s{sT0}, 7")
        a(f"s_mul_i32 s{sT1}, s{sW}, {512*3072}")
        a(f"s_add_u32 s{sU0}, s{sT0}, s{sT1}")
        for i in range(2):
            if i == 0:
                a(f"v_lshrrev_b32 v{vT}, 5, v0")
                a(f"v_lshl_add_u32 v{vT}, s{sDG}, 1, v{vT}")
                a(f"v_and_b32 v{vT2}, 31, v0")
            else:
                a(f"v_mov_b32 v{vT}, 4")
                a(f"v_lshl_add_u32 v{vT2}, s{sDG}, 4, v{vI}")
            a(f"v_add_u32 v{vT}, 1, v{vT}")
            a(f"v_lshl_add_u32 v{vT}, v{vT}, 4, s{sW}")
            a(f"v_mul_u32_u24 v{vT}, 205, v{vT}")
            a(f"v_lshrrev_b32 v{vT}, 10, v{vT}")
            a(f"v_add_u32 v{vT}, s{sCNT}, v{vT}")
            a(f"v_and_b32 v{vT}, 15, v{vT}")
            a(f"v_lshl_add_u32 v{vT}, v{vT}, 5, v{vT2}")
            a(f"v_mul_u32_u24 v{vT}, 3072, v{vT}")
            if i:
                a("s_mov_b64 exec, 0xffff")
            a(f"buffer_load_dword v{250+i}, v{vT}, {srd(S_W)}, s{sU0} offen")
        a("s_mov_b64 exec, -1")
        a.end_cond()
        a.label("L_Anh")
    HA = cfg.get('hlpA2', 0)
    if HA:
        a(f"s_lshl1_add_u32 s{sT0}, s{sXQ}, 3")
        a(f"s_and_b32 s{sT0}, s{sT0}, 7")
        a(f"s_mul_i32 s{sT1}, s{sXQ}, 6")
        a(f"s_add_u32 s{sU0}, s{sT0}, s{sT1}")
        a(f"s_sub_u32 s{sT1}, s{sFT}, s{sU0}")
        a(f"s_add_u32 s{sT1}, s{sT1}, 5")
        a(f"s_cmp_ge_u32 s{sT1}, 6")
        a(f"s_cselect_b32 s{sCNT}, 6, 0")
        a(f"s_sub_u32 s{sT1}, s{sT1}, s{sCNT}")
        a(f"s_lshl_b32 s{sU0}, s{sU0}, 7")
        a(f"s_cmp_ge_u32 s{sT1}, 5")
        a(f"s_cselect_b32 s{sU0}, {OOB}, s{sU0}")
        a(f"s_cmp_ge_u32 s{sT0}, 6")
        a(f"s_cselect_b32 s{sU0}, {OOB}, s{sU0}")
        a(f"s_or_b32 s{sU0}, s{sU0}, s{sSP}")
        a(f"s_lshr_b32 s{sT0}, s{sT0}, 1")
        a(f"s_mul_i32 s{sT0}, s{sT0}, {cfg.get('rkA', 0)}")
        a(f"s_add_u32 s{sCNT}, s{sDG}, 1")
        a(f"s_lshl4_add_u32 s{sCNT}, s{sCNT}, s{sW}")
        a(f"s_mul_i32 s{sCNT}, s{sCNT}, 205")
        a(f"s_lshr_b32 s{sCNT}, s{sCNT}, 10")
        a(f"s_add_u32 s{sT0}, s{sT0}, s{sCNT}")
        a(f"s_add_u32 s{sT0}, s{sT0}, 14")
        a(f"s_and_b32 s{sT0}, s{sT0}, 15")
        a(f"s_lshl4_add_u32 s{sT0}, s{sW}, s{sT0}")
        a(f"s_lshl_b32 s{sT0}, s{sT0}, 5")
        a(f"s_mul_i32 s{sT1}, s{sT1}, {HA}")
        a(f"s_add_u32 s{sT0}, s{sT0}, s{sT1}")
        a(f"s_add_u32 s{sT0}, s{sT0}, {32 - 5*HA}")
        a(f"v_add_u32 v{vT}, s{sT0}, v0")
        a(f"v_mul_u32_u24 v{vT}, 3072, v{vT}")
        a(f"s_mov_b64 exec, {hex((1 << HA) - 1)}")
        a(f"buffer_load_dword v249, v{vT}, {srd(S_W)}, s{sU0} offen")
        a("s_mov_b64 exec, -1")
    for (s, n) in ((S_WS, WS_SIZE), (S_SSM, 2621440)):
        a(f"s_mov_b32 s{s+2}, {n}")
        a(f"s_mov_b32 s{s+3}, 0x20000")
    for j in range(2, 16):
        a(f"s_add_u32 s{sT1}, s{TK+j-1}, 1024")
        a(f"s_and_b32 s{TK+j}, s{sT1}, 0x3c00")
    a(f"s_add_u32 s{S_WS}, s66, {cfg.get('wso', 0) << 20}")
    a(f"s_addc_u32 s{S_WS+1}, s67, 0")
    a(f"s_mov_b64 {sp(S_SSM)}, {sp(44)}")
    a.run(P.weight_dst(False))
    a.run(P.zflag_addr(sFJ, 128))
    a.run(P.conv_setup(NC))
    vHL, vRW, vRR, vUS, vEP, vX0 = 10, 44, 47, 48, 49, 50
    BL = 54
    g1set = [f"s_mul_i32 s{sOWN}, s{sFT}, {cfg.get('roA', 0)}", f"s_add_u32 s{sOWN}, s{sOWN}, s{sW}", f"s_and_b32 s{sOWN}, s{sOWN}, 3",
             f"s_lshl_b32 s{sCNT}, s{sDG}, 18", f"s_lshl_b32 s{sT1}, s{sW}, 14", f"s_add_u32 s{sCNT}, s{sCNT}, s{sT1}",
             f"s_add_u32 s{sCNT}, s{sCNT}, s{sSP}"]
    for i in range(4):
        g1set += [f"s_add_u32 s{sT0}, s{sOWN}, {i+1}",
                  f"s_and_b32 s{sT0}, s{sT0}, 3",
                  f"s_mul_i32 s{sT1}, s{sT0}, 12288",
                  f"s_add_u32 s{sT1}, s{sT1}, {L_RED + (i*4096 if i < 3 else 0)}",
                  f"v_add_u32 v{vRW+i}, s{sT1}, v1",
                  f"s_lshl_b32 s{sT0}, s{sT0}, 16",
                  f"s_add_u32 s{sT0}, s{sT0}, s{sCNT}",
                  f"v_add_u32 v{vHL+i}, s{sT0}, v1",
                  f"v_add_u32 v{vHL+4+i}, {20*65536}, v{vHL+i}"]
    g1set += [f"v_lshl_add_u32 v{vP0}, s{sW}, 5, v0",
              f"v_mul_u32_u24 v{vP0}, {FS1}, v{vP0}",
              f"v_add_u32 v{vP0}, {WS_F1}, v{vP0}",
              f"s_lshl_b32 s{sT0}, s{sFT}, 7",
              f"v_lshl_add_u32 v{vX0}, v{vH}, 3, s{sT0}",
              f"s_lshl2_add_u32 s{sT0}, s{sDG}, s{sOWN}",
              f"s_mul_i32 s{sFI}, s{sT0}, 24",
              f"s_add_u32 s{sFI}, s{sFI}, s{sFT}",
              f"s_mul_i32 s{sFI}, s{sFI}, {FSU}",
              f"s_add_u32 s{sFI}, s{sFI}, {WS_FU}",
              f"s_add_u32 s{sFI}, s{sFI}, s{sSP}",
              f"s_mul_i32 s{sT0}, s{sT0}, 48",
              f"s_lshl1_add_u32 s{sT0}, s{sFT}, s{sT0}",
              f"s_lshl_b32 s{sT0}, s{sT0}, 10",
              f"s_add_u32 s{sT0}, s{sT0}, {WS_U}",
              f"s_add_u32 s{sT0}, s{sT0}, s{sSP}",
              f"v_add_u32 v{vUS}, s{sT0}, v1",
              f"s_mov_b32 s{sU2}, 0xbdd2d3e8",
              f"s_mov_b32 s{sU3}, {20*48*1024}",
              f"v_mov_b32 v52, 0xc0135761"]
    a.run(g1set)
    a.run(P.conv_setup2(NC))
    a.run(P.epoch_load(vEP))
    for t in range(4):
        a(f"global_load_dwordx2 {vr(BL+2*t,2)}, v{vX0}, {sp(P_B1)} offset:{32*t}")
    a(f"s_cmp_ge_u32 s{sID}, 30")
    a("s_cbranch_scc1 L_Aspare")
    a.run(P.w_step())
    a.run(P.w_step())
    BI, RD, PD4 = 112, 144, 248
    bun = []
    for t in range(8):
        bun += [f"v_lshlrev_b32 v{BI+2*t}, 16, v{BL+t}", f"v_and_b32 v{BI+2*t+1}, 0xffff0000, v{BL+t}"]
    PA = cfg.get('pollA', 14)
    while P.nxt < 16:
        if P.nxt == 8:
            a.run(P.set_tag(vEP))
            a.run(bun)
        a.run([stamp(f'w{P.nxt}')])
        it = P.w_step()
        if P.nxt - 1 == PA:
            it.insert(9, P.poll_issue(vP0, 32, 1, PD4))
        a.run(it)
    while P.drn < PA:
        a.run(P.w_step())
    a.run([P.poll_check('f1', vP0, 32, 1, PD4), stamp('f1_ok')])
    BUFS = ([64 + 4*i for i in range(8)] + [128 + 4*i for i in range(4)] + [228 + 4*i for i in range(5)] + [208 + 4*i for i in range(3)])[:NB]

    def h_load(n):
        i, j = divmod(n, 16)
        return f"buffer_load_dwordx4 {vr(BUFS[n % NB],4)}, v{vHL+i}, {srd(S_WS)}, s{TK+j} offen {cfg.get('apol', 'sc1')}"
    hn = 0
    HE = cfg.get('hearly', 8)
    left = 16 - P.drn
    while P.drn < 16:
        for _ in range(HE // left):
            a(h_load(hn)); hn += 1
        a.run(P.w_step())
    ACC = (96, 192)
    Z, G0, UO = ACC[1], 160, 220
    for r in range(2):
        mf, pos = [], {}
        for q in range(64 // GR):
            for t in range(4):
                for n in range(q * GR, (q + 1) * GR):
                    i, j = divmod(n, 16)
                    d = vr(ACC[i & 1] + 4 * t, 4)
                    pos.setdefault(n, len(mf))
                    c = d if j else ('0' if i < 3 else vr(BI + 4 * t, 4))
                    mf.append(f"v_mfma_f32_16x16x32_bf16 {d}, {ar(16*j+4*t,4)}, {vr(BUFS[(64*r + n) % NB],4)}, {c}")
        S = Sched(mf)
        for n in range(64):
            S.reserve(pos[n] - 1)
        k = 0
        while hn < 128:
            n = hn - 64 * r
            free = 4 * GR * ((n - NB) // GR + 1) if n >= NB else 0
            p = max(free, 4 * (n - NB + GR) + 1, 2 * k)
            if p > 255:
                break
            S.add('h', [h_load(hn)], p, p)
            hn += 1
            k += 1
        S.add('st', [stamp(f'g1first{r}')], 0, 0)
        lasth = p if r else 0
        if r == 0 and cfg.get('h2', 1):
            p2 = cfg.get('pH2', 40)
            S.add('f2', [f"v_lshl_add_u32 v{vP0}, s{sW}, 5, v0", f"v_lshlrev_b32 v{vP0}, 4, v{vP0}", f"v_add_u32 v{vP0}, {WS_F1 + 0x4000}, v{vP0}",
                         P.poll_issue(vP0, 32, 1, PD4)], p2 - 4, p2)
            S.add('f2', [P.poll_check('f2', vP0, 32, 1, PD4)], 150, 152)
            assert 4 * (64 - NB + GR) + 1 > 153
        for i in range(3):
            S.add('red', [(f"ds_write_b128 v{vRW+i}, {vr(ACC[i & 1]+4*t,4)} offset:{t*1024}", f'redw{r}{i}') for t in range(4)],
                  64 * (i + 1) + 1, 64 * (i + 1) + 13, pace=4 if i < 2 else 3)
        pR = 192 + cfg.get('pR', 15)
        S.add('red', [('wait', f'redw{r}2'), "s_barrier"], pR, pR + 1)
        S.add('red', [f"ds_read_b128 {vr(RD+4*k,4)}, v{vRR} offset:{k*1024}" for k in range(12)], pR + 2, pR + 16)
        S.add('add', [f"v_add_f32 v{RD+k}, v{RD+k}, v{RD+16+k}" for k in range(16)] +
                     [f"v_add_f32 v{RD+k}, v{RD+k}, v{RD+32+k}" for k in range(16)], pR + 17, 255)
        if r == 1:
            S.add('set', [f"v_subrev_u32 v{vRW+i}, {L_RED}, v{vRW+i}" for i in range(4)], 2, 30)
            pD = cfg.get('pD0', 40)
            S.add('fl', [('wait', 'ust0'), stamp('barD0'), P.flag(sFI), f"s_add_u32 s{sFI}, s{sFI}, {20*24*FSU}"], pD, pD + 1)
            S.add('fl', [P.poll_check('fk', vP1, 16, KW, PD4), stamp('fk_ok')], 150, 152)
            for i, x in enumerate(P.ssm_loads(NC) + P.x_loads(NC)):
                S.add('h', [x], lasth + 4 * (i + 1), lasth + 4 * (i + 1))
        a.run(S.items())
        P.info[f'g1{r}'] = (S.over, S.under)
        a.run([stamp(f'g1mfma{r}')])
        side = []
        if r == 0:
            while hn < 64 + NB:
                side.append(h_load(hn)); hn += 1
            a.run(side)
        for t in range(8):
            a(f"v_pk_add_f32 {vr(Z+2*t,2)}, {vr(Z+2*t,2)}, {vr(RD+2*t,2)}")
        for t in range(8):
            a(f"v_pk_mul_f32 {vr(G0+2*t,2)}, {vr(Z+2*t,2)}, {vr(Z+2*t,2)}")
        for t in range(8):
            a(f"v_pk_fma_f32 {vr(G0+2*t,2)}, {vr(G0+2*t,2)}, {sp(sU2)}, v[52:53] op_sel_hi:[1,0,0]")
        for t in range(8):
            a(f"v_pk_mul_f32 {vr(G0+2*t,2)}, {vr(G0+2*t,2)}, {vr(Z+2*t,2)}")
        for t in range(16):
            a(f"v_exp_f32 v{G0+t}, v{G0+t}")
        for t in range(8):
            a(f"v_pk_add_f32 {vr(G0+2*t,2)}, {vr(G0+2*t,2)}, 1.0 op_sel_hi:[1,0]")
        for t in range(16):
            a(f"v_rcp_f32 v{G0+t}, v{G0+t}")
        for t in range(8):
            a(f"v_pk_mul_f32 {vr(G0+2*t,2)}, {vr(G0+2*t,2)}, {vr(Z+2*t,2)}")
        for t in range(8):
            a(f"v_cvt_pk_bf16_f32 v{UO+t}, v{G0+2*t}, v{G0+2*t+1}")
        for half in range(2):
            a(f"buffer_store_dwordx4 {vr(UO+4*half,4)}, v{vUS}, {srd(S_WS)}, {'0' if r == 0 else f's{sU3}'} offen offset:{1024*half} sc1", tok=f'ust{r}')
        if r == 0:
            a(P.poll_issue(vP1, 16, KW, PD4))
        a.run([stamp(f'ust{r}')])
    a.label("L_Ajoin")
    a.wait('xd')
    a("s_barrier")
    CPA = cfg.get('cpreA', 4)
    a.run(P.conv_pre(CPA))
    S = P.conv_sched(NT, CPA, 2)
    pD = cfg.get('pD1', 30)
    S.add('fl', [('wait', 'ust1'), stamp('barD1'), P.flag(sFI)], pD, pD + 1)
    Z2 = NC == 3 and cfg.get('z2', 1)
    P.conv_run(S, NT, Z2, P.flag(sFJ))
    if Z2:
        a(f"s_add_u32 s{sFJ}, s{sJ}, 128")
        a(f"s_mul_i32 s{sFJ}, s{sFJ}, {FSZ}")
        a(f"s_lshl2_add_u32 s{sFJ}, s{sW}, s{sFJ}")
        a(f"s_add_u32 s{sFJ}, s{sFJ}, {WS_FZ + 16}")
    a.wait('zst2' if NC == 3 else 'zst1')
    a(P.flag(sFJ))
    a(f"s_cmp_lg_u32 s{sJ}, 31")
    a("s_cbranch_scc1 L_Adone")
    st, P.stamps = P.stamps, False
    a(f"v_lshl_add_u32 v{vP0}, s{sW}, 5, v0")
    a(f"v_mul_u32_u24 v{vP0}, {cfg.get('fsk', 16)}, v{vP0}")
    a(f"v_add_u32 v{vP0}, {WS_FK}, v{vP0}")
    a(P.poll_issue(vP0, 32, KW, PD4))
    a.run([P.poll_check('e0', vP0, 32, KW, PD4)])
    for k in range(2):
        a(f"s_mul_i32 s{sT0}, s{sW}, 120")
        a(f"s_add_u32 s{sT0}, s{sT0}, {60*k}")
        a(f"v_add_u32 v{vP0}, s{sT0}, v0")
        a(f"v_mul_u32_u24 v{vP0}, {FSU}, v{vP0}")
        a(f"v_add_u32 v{vP0}, {WS_FU}, v{vP0}")
        a(P.poll_issue(vP0, 60))
        a.run([P.poll_check(f'e{k+1}', vP0, 60)])
    a(f"v_lshl_add_u32 v{vP0}, s{sW}, 5, v0")
    a(f"v_mul_u32_u24 v{vP0}, {FSZ}, v{vP0}")
    a(f"v_add_u32 v{vP0}, {WS_FZ + 158*FSZ}, v{vP0}")
    a(P.poll_issue(vP0, 2, 4, PD4))
    a.run([P.poll_check('e3', vP0, 2, 4, PD4)])
    P.stamps = st
    a("s_barrier")
    a(f"s_mov_b32 s{sT0}, {WS_EP}")
    a(P.flag(sT0))
    a.label("L_Adone")
    P.finish()
    a("s_endpgm")
    b = Asm()
    P.a, st, P.stamps = b, P.stamps, False
    b.label("L_Aspare")
    b(f"s_mul_i32 s{sT0}, s{sXQ}, 160")
    b(f"s_mul_i32 s{sT1}, s{sDG}, {16*NC}")
    b(f"s_add_u32 s{sT0}, s{sT0}, s{sT1}")
    b(f"s_add_u32 s{sT0}, s{sT0}, 64")
    b(f"v_lshrrev_b32 v{vT}, 3, v0")
    b(f"v_add_lshl_u32 v{vT}, s{sT0}, v{vT}, 12")
    b(f"v_and_b32 v{vT2}, 7, v0")
    b(f"v_lshl_add_u32 v{vT2}, s{sW}, 3, v{vT2}")
    b(f"v_lshl_add_u32 v{vT}, v{vT2}, 7, v{vT}")
    b("s_waitcnt vmcnt(0)")
    b.run(P.set_tag(vEP))
    for i in range(2 * NC if cfg.get('spf', 1) else 0):
        b(f"s_mov_b32 s{sT0}, {i*8*4096}")
        b(f"buffer_load_dword v{64+i}, v{vT}, {srd(S_SSM)}, s{sT0} offen")
    b.run(P.ssm_loads(NC))
    b(P.poll_issue(vP1, 16, KW, PD4))
    b.run([P.poll_check('fs', vP1, 16, KW, PD4)])
    for i in range(2 * NC if cfg.get('xpf', 0) else 0):
        b(f"s_mov_b32 s{sT0}, {WS_KV + i*8*4096}")
        b(f"buffer_load_dword v{vPD}, v{vT}, {srd(S_WS)}, s{sT0} offen sc1") if False else b.raw(f"    buffer_load_dword v{vPD}, v{vT}, {srd(S_WS)}, s{sT0} offen sc1")
    b.run(P.x_loads(NC))
    b("s_waitcnt vmcnt(0) lgkmcnt(0)")
    b("s_branch L_Ajoin")
    a.out += b.out
    P.a, P.stamps = a, st
    return P


def prog_B(cfg):
    P = Prog('B', cfg)
    a, stamp = P.a, P.stamp
    a.smem_pending = set(KERNARG) | {'s96', 's97'}
    FS1, FSU, FSZ, FSK = cfg.get('fs1', 32), cfg.get('fsu', 64), cfg.get('fsz', 32), cfg.get('fsk', 16)
    sDT, sST = sA, sB
    KW, HW = cfg.get('kw', 1), cfg.get('hw', 1)
    NC = 3 if cfg.get('third', 'A') == 'B' else 2
    NT = 8*NC
    NMF = 136 if NC == 2 else 208
    a.label("L_B")
    if cfg.get('cpf', 1) and cfg.get('lay', 'C') != 'C':
        a.run(P.code_prefetch("L_pcB", "L_Amain"))
    a.run(P.lanes())
    XR, GR = 160, 180
    vQ, vG, vEP = 200, 201, 202
    a(f"s_lshr_b32 s{sT0}, s{sJ}, 1")
    a(f"s_lshl_b32 s{sT0}, s{sT0}, 5")
    a(f"s_and_b32 s{sT1}, s{sJ}, 1")
    a(f"s_lshl3_add_u32 s{sCNT}, s{sT1}, s{sT0}")
    a(f"s_lshl2_add_u32 s{sCNT}, s{sT2}, s{sCNT}")
    a(f"s_lshl4_add_u32 s{sCNT}, s{sT3}, s{sCNT}")
    a(f"v_add_u32 v{vQ}, s{sCNT}, v{vH}")
    a(f"v_mul_u32_u24 v{vQ}, 1280, v{vQ}")
    a(f"v_lshlrev_b32 v{vG}, 4, v{vI}")
    a(f"v_add_u32 v{vQ}, v{vQ}, v{vG}")
    def kvset():
        a(f"s_lshl3_add_u32 s{sU0}, s{sW}, s{sT0}")
        a(f"s_mul_i32 s{sU0}, s{sU0}, 1280")
        a(f"s_mul_i32 s{sU1}, s{sT1}, 640")
        a(f"s_add_u32 s{sU0}, s{sU0}, s{sU1}")
        a(f"v_add_u32 v{vKV}, s{sU0}, v1")
        a(f"s_mul_i32 s{sU0}, s{sW}, {(-7*1280) & 0xffffffff}")
        a(f"s_sub_u32 s{sU0}, s{sU0}, {4*1280}")
        a(f"v_add_u32 v{vKH}, s{sU0}, v{vKV}")
        a(f"s_mul_i32 s{sKL}, s{sW}, {8*PK + 32}")
        for (s, n) in ((S_K, 2621440), (S_V, 2621440), (S_WS, WS_SIZE), (S_W, 6291456), (S_SSM, 2621440)):
            a(f"s_mov_b32 s{s+2}, {n}")
            a(f"s_mov_b32 s{s+3}, 0x20000")
        a(f"s_lshl2_add_u32 s{sU0}, s{sT1}, s{sW}")
        a(f"s_mul_i32 s{sU0}, s{sU0}, 80")
        a(f"v_add_u32 v{vCH}, s{sU0}, v{vI}")
        a(f"v_lshlrev_b32 v{vS0}, 3, v{vCH}")
    vKV, vKH, vCH, vS0 = 60, 61, 62, 63
    sKL = sFI
    if not cfg.get('qfirst', 1):
        kvset()
    P.split0 = len(a.out)
    for i in range(5):
        a(f"global_load_dwordx4 {vr(XR+4*i,4)}, v{vQ}, {sp(P_Q)} offset:{256*i}")
    a.run([stamp('start')])
    if cfg.get('qfirst', 1):
        kvset()
    for (s, p) in ((S_K, 38), (S_V, 40), (S_W, 56), (S_SSM, 44)):
        a(f"s_mov_b64 {sp(s)}, {sp(p)}")
    a(f"s_add_u32 s{S_WS}, s66, {cfg.get('wso', 0) << 20}")
    a(f"s_addc_u32 s{S_WS+1}, s67, 0")
    a.run(P.epoch_load(vEP))

    def kv_dma(which, i):
        if which == 'h':
            return [f"s_mul_i32 s{sU0}, s{sW}, {PK}", f"s_add_u32 m0, s{sU0}, {L_KI}", "s_mov_b32 exec_hi, 0xff",
                    f"buffer_load_dwordx4 v{vKH}, {srd(S_K)}, 0 offen {cfg.get('kpol', '')} lds", "s_mov_b32 exec_hi, -1"]
        base = L_KI + (4 + i) * PK + (32 if i >= 4 else 0) if which == 'k' else L_VI + i * PK
        return [f"s_add_u32 m0, s{sKL}, {base}", f"s_mov_b32 s{sU0}, {i*1280}", "s_mov_b32 exec_hi, 0xff",
                (f"buffer_load_dwordx4 v{vKV}, {srd(S_K if which == 'k' else S_V)}, s{sU0} offen {cfg.get('kpol', '')} lds", 'kvdma'), "s_mov_b32 exec_hi, -1"]

    def kv_batch(lst):
        it = []
        for (wh, i) in lst:
            x = kv_dma(wh, i)
            if it:
                it.pop()
                x.remove("s_mov_b32 exec_hi, 0xff")
            it += x
        return it
    kvq = [('h', 0)] + [('k', i) for i in range(8)] + [('v', i) for i in range(8)]
    a(f"s_and_b32 s{sDT}, s{sID}, 3")
    a(f"s_lshr_b32 s{sT0}, s{sID}, 2")
    a(f"s_lshl3_add_u32 s{sST}, s{sXQ}, s{sT0}")
    vLW, vA1, vHS, vGS, vKVA, vKVS, vGV = 44, 46, 48, 49, 50, 51, 58
    a(f"v_lshl_add_u32 v{vT}, s{sW}, 2, v{vH}")
    a(f"s_lshl_b32 s{sT0}, s{sJ}, 4")
    a(f"v_add_lshl_u32 v{vGS}, s{sT0}, v{vT}, 2")
    a(f"v_add_u32 v{vGS}, {WS_G}, v{vGS}")
    a(f"v_mul_u32_u24 v{vT}, {PL}, v{vT}")
    a(f"v_add_u32 v{vT}, {L_LN}, v{vT}")
    a(f"v_add_u32 v{vLW}, v{vT}, v{vG}")
    a(f"v_mul_u32_u24 v{vT}, {PL}, v{vR}")
    a(f"v_mul_u32_u24 v{vT2}, 320, v{vH}")
    a(f"s_mul_i32 s{sT0}, s{sT3}, {8*PL}")
    a(f"s_lshl3_add_u32 s{sT0}, s{sT2}, s{sT0}")
    a(f"s_add_u32 s{sT0}, s{sT0}, {L_LN}")
    a(f"v_add3_u32 v{vT}, v{vT}, v{vT2}, s{sT0}")
    a(f"v_lshl_add_u32 v{vA1}, v{vC}, 4, v{vT}")
    a(f"s_lshl1_add_u32 s{sT0}, s{sJ}, s{sT3}")
    a(f"s_lshl_b32 s{sT0}, s{sT0}, 8")
    a(f"s_lshl_b32 s{sT1}, s{sT2}, 16")
    a(f"s_add_u32 s{sT0}, s{sT0}, s{sT1}")
    a(f"v_mul_u32_u24 v{vHS}, {5*65536}, v{vH}")
    a(f"v_lshl_add_u32 v{vHS}, v{vI}, 4, v{vHS}")
    a(f"v_add_u32 v{vHS}, s{sT0}, v{vHS}")
    a(f"s_mul_i32 s52, s{sT2}, {19*65536}")
    a(f"s_add_u32 s52, s52, {4*65536}")
    a(f"s_mov_b32 s53, {20*65536}")
    a(f"s_mov_b32 s64, {22*65536}")
    a(f"v_mul_u32_u24 v{vT}, {8*PK + 32}, v{vH}")
    a(f"v_mul_u32_u24 v{vT2}, {PK}, v{vR}")
    a(f"s_mul_i32 s{sT0}, s{sW}, 160")
    a(f"s_add_u32 s{sT0}, s{sT0}, {L_KI}")
    a(f"v_add3_u32 v{vT}, v{vT}, v{vT2}, s{sT0}")
    a(f"v_lshl_add_u32 v{vKVA}, v{vC}, 3, v{vT}")
    a(f"v_lshlrev_b32 v{vKVS}, 12, v{vCH}")
    a(f"v_lshl_add_u32 v{vKVS}, v{vH}, 4, v{vKVS}")
    a(f"s_lshr_b32 s{sT0}, s{sJ}, 1")
    a(f"s_lshl_b32 s{sT1}, s{sT0}, 6")
    a(f"s_add_u32 s{sT1}, s{sT1}, {WS_KV}")
    a(f"v_add_u32 v{vKVS}, s{sT1}, v{vKVS}")
    a(f"s_and_b32 s{sT1}, s{sJ}, 1")
    a(f"s_lshl_b32 s{sT1}, s{sT1}, 6")
    a(f"s_add_u32 s{sFJ}, s{sT0}, s{sT1}")
    a(f"s_mul_i32 s{sFJ}, s{sFJ}, {FSK}")
    a(f"s_lshl2_add_u32 s{sFJ}, s{sW}, s{sFJ}")
    a(f"s_add_u32 s{sFJ}, s{sFJ}, {WS_FK}")
    a(f"s_mul_i32 s{sU3}, s{sJ}, {FS1}")
    a(f"s_add_u32 s{sU3}, s{sU3}, {WS_F1}")
    for k in range(1, 5):
        a(f"s_mov_b32 s{79+k}, {k*65536}")
    for i in range(5):
        a(f"global_load_dwordx4 {vr(GR+4*i,4)}, v{vG}, {sp(P_GW)} offset:{256*i}")
    nq = cfg.get('kvq0', 6)
    if nq:
        a.run(kv_batch(kvq[:nq])); kvq = kvq[nq:]
    a.run([stamp('iss2')])

    S1, S2, vRS, vNM, XF = 64, 65, 66, 68, 72
    DP = ("quad_perm:[1,0,3,2]", "quad_perm:[2,3,0,1]", "row_half_mirror", "row_mirror")
    unp = []
    for i in range(20):
        unp += [f"v_lshlrev_b32 v{XF+2*i}, 16, v{XR+i}", f"v_and_b32 v{XF+2*i+1}, 0xffff0000, v{XR+i}"]
    ln = [f"s_mov_b32 s{sU2}, 0x3f803f80"]
    for i in range(20):
        c = lambda r: "0" if i == 0 else f"v{r}"
        ln += [f"v_dot2_f32_bf16 v{S1}, v{XR+i}, s{sU2}, {c(S1)}", f"v_dot2_f32_bf16 v{S2}, v{XR+i}, v{XR+i}, {c(S2)}"]
    inv = 0x3ACCCCCD
    red = []
    for m in DP:
        red += [f"v_add_f32_dpp v{x}, v{x}, v{x} {m} row_mask:0xf bank_mask:0xf" for x in (S1, S2)]
    red += [f"v_mul_f32 v{S1}, {hex(inv)}, v{S1}",
            f"v_mul_f32 v{S2}, {hex(inv)}, v{S2}",
            f"v_fma_f32 v{S2}, -v{S1}, v{S1}, v{S2}",
            f"v_max_f32 v{S2}, 0, v{S2}",
            f"v_add_f32 v{S2}, 0x3727c5ac, v{S2}",
            f"v_rsq_f32 v{vRS}, v{S2}",
            f"v_mul_f32_e64 v{vNM}, -v{S1}, v{vRS}"]
    ln += unp[:3] + merge(red, unp[3:])
    HP = 112
    for i in range(5):
        ln += [f"v_pk_fma_f32 {vr(XF+2*k,2)}, {vr(XF+2*k,2)}, {vr(vRS,2)}, {vr(vNM,2)} op_sel_hi:[1,0,0]" for k in range(4*i, 4*i+4)]
        ln += [f"v_cvt_pk_bf16_f32 v{HP+k}, v{XF+2*k}, v{XF+2*k+1}" for k in range(4*i, 4*i+4)]
        ln.append((f"ds_write_b128 v{vLW}, {vr(HP+4*i,4)} offset:{256*i}", 'lnw'))
    gate = [f"v_dot2_f32_bf16 v{vGV}, v{XR+i}, v{GR+i}, {'0' if i == 0 else f'v{vGV}'}" for i in range(20)]
    gate += [f"v_add_f32_dpp v{vGV}, v{vGV}, v{vGV} {m} row_mask:0xf bank_mask:0xf" for m in DP]
    gate += [f"v_mul_f32 v{vGV}, 0xbfb8aa3b, v{vGV}", f"v_exp_f32 v{vGV}, v{vGV}", f"v_add_f32 v{vGV}, 1.0, v{vGV}", f"v_rcp_f32 v{vGV}, v{vGV}",
             "s_mov_b32 exec_lo, 0x10001", "s_mov_b32 exec_hi, 0x10001",
             (f"buffer_store_dword v{vGV}, v{vGS}, {srd(S_WS)}, 0 offen sc1", 'hst2'), "s_mov_b64 exec, -1"]
    a.run(ln[:41])
    a.run([stamp('q_in')])
    nq = cfg.get('kvq1', 4)
    if nq:
        a.run(kv_batch(kvq[:nq])); kvq = kvq[nq:]
    a.run(ln[41:])
    a.wait('lnw')
    a("s_barrier")
    a.run([stamp('barL')])
    HB = 64
    H2 = cfg.get('h2', 1)
    for u, off in enumerate((0, 64, 256, 128, 192)):
        for e2 in range(2):
            a(f"ds_read_b64_tr_b16 {vr(HB+4*u+2*e2,2)}, v{vA1} offset:{off + e2*4*PL}")
    for u, so in enumerate(("0", "s81", "s52", "s53", "s64")):
        a(f"buffer_store_dwordx4 {vr(HB+4*u,4)}, v{vHS}, {srd(S_WS)}, {so} offen sc1", tok='hst' if u < 3 or not H2 else None)
    a.run([stamp('h_iss')])
    a.run(gate)
    a.run(P.set_tag(vEP))
    vQO, vQO2, vGA, vX1, vQO1 = 36, 41, 253, 250, 15
    QR, vGG, vB2 = 44, 16, 17

    def bigset():
        a(f"s_bfe_u32 s{sT0}, s{sST}, 0x10001")
        a(f"s_mul_i32 s{sT0}, s{sT0}, {cfg.get('rkB', 0)}")
        a(f"s_add_u32 s{sT0}, s{sT0}, s{sDT}")
        a(f"s_and_b32 s{sT0}, s{sT0}, 3")
        a(f"s_mul_i32 s{TK}, s{sT0}, 3072")
        a(f"s_and_b32 s{sSP}, s{sST}, {cfg.get('swB', 1)}")
        for j in range(1, 12):
            a(f"s_add_u32 s{sT0}, s{TK+j-1}, 1024")
            a(f"s_cmp_lt_u32 s{sT0}, {12*1024}")
            a(f"s_cselect_b32 s{TK+j}, s{sT0}, 0")
        a(f"s_mul_i32 s{sT0}, s{sW}, {384*4096}")
        a(f"s_lshl_b32 s{sT1}, s{sST}, 7")
        a(f"s_add_u32 s{sT0}, s{sT0}, s{sT1}")
        a.run(P.weight_src(4096, sT0) + P.weight_dst(True))
        a.run(P.conv_setup(NC))
        a.run(P.conv_setup2(NC))
        a(f"s_lshl2_add_u32 s{sT0}, s{sST}, s{sW}")
        a(f"v_lshl_add_u32 v{vT}, s{sT0}, 4, v{vI}")
        a(f"v_lshlrev_b32 v{vX1}, 1, v{vT}")
        a(f"v_mul_u32_u24 v{vT}, 1280, v{vT}")
        a(f"s_mul_i32 s{sT0}, s{sDT}, 320")
        a(f"v_add_u32 v{vT}, s{sT0}, v{vT}")
        a(f"v_lshl_add_u32 v{vQO2}, v{vH}, 4, v{vT}")
        a(f"s_lshl_b32 s{sT0}, s{sSP}, 6")
        a(f"v_add_u32 v{vQO}, s{sT0}, v{vQO2}")
        a(f"v_subrev_u32 v{vQO1}, s{sT0}, v{vQO2}")
        a(f"s_lshl1_add_u32 s{sT0}, s{sST}, s{sT2}")
        a(f"s_lshl3_add_u32 s{sT0}, s{sT0}, s{sT3}")
        a(f"s_lshl_b32 s{sT0}, s{sT0}, 4")
        a(f"s_add_u32 s{sT0}, s{sT0}, {WS_G}")
        a(f"v_lshl_add_u32 v{vT}, v{vR}, 5, s{sT0}")
        a(f"v_lshl_add_u32 v{vGA}, v{vC}, 2, v{vT}")

    SP = cfg.get('setp', 1)
    if SP == 0:
        bigset()
    nq = cfg.get('kvq2', 7)
    if nq:
        a.run(kv_batch(kvq[:nq])); kvq = kvq[nq:]
    a.wait('hst' if H2 else 'hst2')
    a.run([P.flag_wg(sU3, 'f1'), stamp('barH')])
    if kvq:
        a.run(kv_batch(kvq))
    CF = 148
    for u in range(5):
        a(f"global_load_dwordx2 {vr(CF+2*u,2)}, v{vS0}, {sp(P_SH)} offset:{128*u}")
    if SP == 1:
        bigset()
    a.run(P.ssm_loads(NC))

    def helper():
        HR = cfg.get('hlpB', 6)
        if HR:
            a(f"s_add_u32 s{sT0}, s{sST}, 4")
            a(f"s_and_b32 s{sT0}, s{sT0}, 7")
            a(f"s_mul_i32 s{sT1}, s{sT0}, {HR}")
            a(f"s_cmp_eq_u32 s{sT0}, 7")
            a(f"s_cselect_b32 s{sU2}, {OOB}, 0")
            a(f"s_lshl2_add_u32 s{sT0}, s{sW}, s{sDT}")
            a(f"s_mul_i32 s{sT0}, s{sT0}, 96")
            a(f"s_add_u32 s{sT0}, s{sT0}, s{sT1}")
            a(f"s_add_u32 s{sT0}, s{sT0}, {96 - 7*HR}")
            a(f"v_add_lshl_u32 v{vT}, s{sT0}, v0, 12")
            a(f"s_lshl_b32 s{sT0}, s{sXQ}, 10")
            a(f"s_add_u32 s{sT0}, s{sT0}, 384")
            a(f"s_add_u32 s{sU2}, s{sU2}, s{sT0}")
            a(f"s_mov_b64 exec, {hex((1 << HR) - 1)}")
            a(f"buffer_load_dword v251, v{vT}, {srd(S_W)}, s{sU2} offen")
            a("s_mov_b64 exec, -1")
    WP = cfg.get('wBpre', 1)
    if WP:
        helper()
    if WP >= 2:
        a.run(P.w_step())

    if H2:
        a(f"s_mul_i32 s{sU3}, s{sJ}, 16")
        a(f"s_add_u32 s{sU3}, s{sU3}, {WS_F1 + 0x4000}")
        a.wait('kvdma', 'hst2')
        a.run([P.flag_wg(sU3, 'f2'), stamp('barK')])
    else:
        a.wait('kvdma')
        a.run(["s_barrier", stamp('barK')])
    KR, KO = 64, 160

    def kv_reads(u):
        it = [f"ds_read_b64_tr_b16 {vr(KR+10*u+2*j,2)}, v{vKVA} offset:{32*u + 4*j*PK + (32 if j == 2 else 0)}" for j in range(3)]
        it += [f"ds_read_b64_tr_b16 {vr(KR+10*u+6+2*j,2)}, v{vKVA} offset:{32*u + 4*j*PK + (L_VI-L_KI)}" for j in range(2)]
        return it

    def kv_compute(u):
        it = []
        k = KR + 10 * u
        c10, c32 = CF + 2 * u, CF + 2 * u + 1
        SH, AC, VF, OUT = 116, 124, 132, KO + 4 * u
        for n in range(5):
            it.append(f"v_alignbit_b32 v{SH+n}, v{k+n+1}, v{k+n}, 16")
        pr = lambda e: (k + (e + 1) // 2, k + (e + 3) // 2) if e & 1 else (SH + e // 2, SH + e // 2 + 1)
        for e in range(8):
            it.append(f"v_dot2_f32_bf16 v{AC+e}, v{pr(e)[0]}, v{c32}, 0")
        for e in range(8):
            it.append(f"v_dot2_f32_bf16 v{AC+e}, v{pr(e)[1]}, v{c10}, v{AC+e}")
        for n in range(4):
            it.append(f"v_lshlrev_b32 v{VF+2*n}, 16, v{k+6+n}")
            it.append(f"v_and_b32 v{VF+2*n+1}, 0xffff0000, v{k+6+n}")
        for n in range(4):
            it.append(f"v_pk_mul_f32 {vr(AC+2*n,2)}, {vr(AC+2*n,2)}, {vr(VF+2*n,2)}")
        for n in range(4):
            it.append(f"v_cvt_pk_bf16_f32 v{OUT+n}, v{AC+2*n}, v{AC+2*n+1}")
        it.append((f"buffer_store_dwordx4 {vr(OUT,4)}, v{vKVS}, {srd(S_WS)}, {'0' if u == 0 else f's{79+u}'} offen sc1", 'kvst'))
        return it
    a.run(kv_reads(0) + kv_reads(1))
    if WP & 1:
        a.run(P.w_step())
    for u in range(10):
        a(f"v_alignbit_b32 v{CF+u}, v{CF+u}, v{CF+u}, 16")
    for u in range(5):
        a.run(merge(kv_compute(u), kv_reads(u + 2) if u < 3 else []))
    a.run([stamp('kv_done')])
    if not cfg.get('wBpre', 1):
        helper()
    for _ in range(cfg.get('wB0', 1)):
        a.run(P.w_step())
    a.wait('kvst')
    a.run([P.flag_wg(sFJ, 'fk') if KW == 1 else P.flag(sFJ), stamp('barV')] + P.zflag_addr(sFJ, 0))
    a(f"global_load_ushort v{vB2}, v{vX1}, {sp(P_B2)}")
    while P.nxt < cfg.get('pollB', 7):
        a.run(P.w_step())
    a(P.poll_issue(vP1, 16, KW, 204))
    for _ in range(cfg.get('pollgapB', 0)):
        a.run(P.w_step())
    a.run([P.poll_check('fk', vP1, 16, KW, 204), stamp('fk_ok')])
    a.run(P.x_loads(NC))
    qa = lambda p: f"v{(vQO, vQO1, vQO, vQO1, vQO2)[p]}"
    qld = [f"global_load_dwordx4 {vr(QR+4*p,4)}, {qa(p)}, {sp(P_Q)} offset:{64*p}" for p in range(5)]
    for _ in range(cfg.get('xgapB', 1)):
        a.run(P.w_step())
    a.wait('xd')
    a("s_barrier")
    a.run([stamp('barC')])

    CPB = cfg.get('cpreB', 4)
    a.run(P.conv_pre(CPB))
    while P.nxt < NR:
        a.run(P.w_step())
    S = P.conv_sched(NT, CPB, cfg.get('ccap', 2.3), cfg.get('sg0', 100))
    cS, cE = cfg.get('cS', 0), cfg.get('cE', NMF - 36)
    nst = 12 - P.nxt
    per = (cE - cS) / (nst + 1)
    for r in range(nst):
        p0 = cS + r * per
        it = P.w_step()
        for k, x in enumerate(it[:9]):
            S.add('wd', [x], int(p0 + k * per / 14), int(p0 + (k + 1) * per / 14))
        p1 = p0 + per
        S.add('w', it[9:11], int(p1 - per / 5), int(p1) - 1)
        S.add('w', it[11:12], int(p1), int(p1))
        for k, x in enumerate(it[12:]):
            S.add('w', [x], int(p1 + k * per / 4), int(p1 + k * per / 4))
    S.add('wd', P.w_step(), int(cE - per), int(cE) - 1, pace=per / 11)
    tail = []
    while P.drn < 12:
        tail += P.w_step()
    S.add('wd', tail, cE, None, pace=(NMF - cE) / len(tail))
    vUL = 10
    uset = [f"s_mul_i32 s{sT0}, s{sDT}, 120",
            f"s_mul_i32 s{sT1}, s{sW}, 6",
            f"s_add_u32 s{sT0}, s{sT0}, s{sT1}",
            f"v_mul_u32_u24 v{vT}, 43, v0",
            f"v_lshrrev_b32 v{vT}, 8, v{vT}",
            f"v_mul_u32_u24 v{vT}, 18, v{vT}",
            f"v_add3_u32 v{vP0}, s{sT0}, v0, v{vT}",
            f"v_mul_u32_u24 v{vP0}, {FSU}, v{vP0}",
            f"v_add_u32 v{vP0}, {WS_FU}, v{vP0}",
            f"s_mul_i32 s{sT0}, s{sDT}, {5*48}",
            f"s_lshl1_add_u32 s{sT0}, s{sT1}, s{sT0}",
            f"s_lshl_b32 s{sT0}, s{sT0}, 10",
            f"s_add_u32 s{sT0}, s{sT0}, {WS_U}",
            f"v_add_u32 v{vUL+4}, s{sT0}, v1",
            f"s_mul_i32 s{sT0}, s{sSP}, {96*1024}",
            f"v_add_u32 v{vUL}, s{sT0}, v{vUL+4}",
            f"s_sub_u32 s{sT0}, {96*1024}, s{sT0}",
            f"v_add_u32 v{vUL+2}, s{sT0}, v{vUL+4}",
            f"v_add_u32 v{vUL+1}, {48*1024}, v{vUL}",
            f"v_add_u32 v{vUL+3}, {48*1024}, v{vUL+2}",
            f"v_add_u32 v{vUL+4}, {192*1024}, v{vUL+4}"]
    S.add('set', uset, 40, 118)
    for k, x in enumerate(qld):
        qp = cfg.get('qS', 20) + cfg.get('qD', 16) * k
        S.add('q', [x], qp, qp)
    pU = NMF - cfg.get('pU0', 16)
    S.add('set', [P.poll_issue(vP0, 30)], pU, pU)
    NB2, GR2, UE = cfg.get('nb2', 16), cfg.get('grp2', 2), cfg.get('uearly', 8)
    UBUF = ([ar(192 + 4*i, 4) for i in range(16)] + [vr(92 + 4*i, 4) for i in range(4)])[:NB2]
    vUM = 220

    def u_load(n):
        m, j = divmod(n, 12)
        return f"buffer_load_dwordx4 {UBUF[n % NB2]}, v{vUL+m if m < 5 else vUM+m-5}, {srd(S_WS)}, s{TK+j} offen {cfg.get('apol', 'sc1')}"
    ustart = [P.poll_check('fu0', vP0, 30), stamp('fu0_ok')] + [u_load(n) for n in range(UE)]
    UEP = cfg.get('uep', 1)
    P.conv_run(S, NT, False, mid=[ustart if k == UEP else [] for k in range(3)])

    NB2, GR2, UE = cfg.get('nb2', 16), cfg.get('grp2', 2), cfg.get('uearly', 8)
    UBUF = ([ar(192 + 4*i, 4) for i in range(16)] + [vr(92 + 4*i, 4) for i in range(4)])[:NB2]
    AC2, OWN, RD2, RD4 = (108, 120), 132, 172, 208
    GQ, ZL, ZRg, ZU = 228, 64, 76, 88
    vZG, vZLW, vZT, vOG, vR2R, vR2W, vUM = 20, 21, 22, 28, 33, 25, 220
    vR2S, vR2X, PDZ, vP2 = 23, 30, 226, 225
    opol = cfg.get('opol', 'sc1')
    g2set = [f"v_add_u32 v{vUM+m}, {cfg.get('wiU', 20*48*1024)}, v{vUL+m}" for m in range(5)]
    g2set += [f"v_add_u32 v{vP0}, {20*24*FSU}, v{vP0}",
              f"v_lshrrev_b32 v{vT}, 3, v0",
              f"v_lshl_add_u32 v{vT}, s{sW}, 3, v{vT}",
              f"v_and_b32 v{vT2}, 7, v0",
              f"v_lshlrev_b32 v{vT2}, 4, v{vT2}",
              f"v_lshl_add_u32 v{vZG}, v{vT}, 12, v{vT2}",
              f"v_mul_u32_u24 v{vT}, {PZ}, v{vT}",
              f"v_add_u32 v{vT}, v{vT}, v{vT2}",
              f"v_add_u32 v{vZLW}, {L_ZI}, v{vT}",
              f"s_mul_i32 s{sT0}, s{sDT}, {160*4096}",
              f"s_lshl_b32 s{sT1}, s{sST}, 7",
              f"s_add_u32 s{sT0}, s{sT0}, s{sT1}",
              f"s_add_u32 s{sT0}, s{sT0}, {WS_Z}",
              f"s_lshl_b32 s{sT1}, s{sSP}, 17",
              f"s_add_u32 s80, s{sT0}, s{sT1}",
              f"s_sub_u32 s81, s{sT0}, s{sT1}",
              f"s_add_u32 s81, s81, {32*4096}",
              f"s_add_u32 s82, s80, {64*4096}",
              f"s_add_u32 s83, s81, {64*4096}",
              f"s_add_u32 s{sX0}, s{sT0}, {128*4096}",
              f"v_lshl_add_u32 v{vT}, v{vH}, 3, v{vR}",
              f"v_mul_u32_u24 v{vT}, {PZ}, v{vT}",
              f"s_lshl_b32 s{sT0}, s{sW}, 5",
              f"s_add_u32 s{sT0}, s{sT0}, {L_ZI}",
              f"v_lshl_add_u32 v{vZT}, v{vC}, 3, s{sT0}",
              f"v_add_u32 v{vZT}, v{vZT}, v{vT}"]
    for jn in range(1, 4):
        g2set += [f"s_xor_b32 s{sT0}, s{sW}, {jn}",
                  f"s_mul_i32 s{sT0}, s{sT0}, 3072",
                  f"s_add_u32 s{sT0}, s{sT0}, {(jn-1)*1024}",
                  f"v_add_u32 v{vR2W+jn-1}, s{sT0}, v1",
                  f"v_add_u32 v{vR2X+jn-1}, {L_RED}, v{vR2W+jn-1}"]
    g2set += [f"s_mul_i32 s{sT0}, s{sW}, 3072",
              f"v_add_u32 v{vR2R}, s{sT0}, v1",
              f"v_add_u32 v{vR2S}, {L_RED}, v{vR2R}",
              f"s_lshl3_add_u32 s{sT0}, s{sDT}, s{sW}",
              f"s_lshl_b32 s{sT0}, s{sT0}, 2",
              f"v_lshl_add_u32 v{vP1}, v{vR}, 4, v{vC}",
              f"v_add_u32 v{vP1}, s{sT0}, v{vP1}",
              f"v_mul_u32_u24 v{vP1}, {FSZ}, v{vP1}",
              f"s_and_b32 s{sT1}, s{sST}, 1",
              f"s_lshl_b32 s{sT1}, s{sT1}, 3",
              f"s_add_u32 s{sT1}, s{sT1}, {WS_FZ}",
              f"v_add_u32 v{vP1}, s{sT1}, v{vP1}",
              f"s_lshl2_add_u32 s{sT0}, s{sDT}, s{sW}",
              f"v_and_b32 v{vT}, 7, v0",
              f"v_lshl_add_u32 v{vP2}, s{sT0}, 3, v{vT}",
              f"v_mul_u32_u24 v{vP2}, {FSZ}, v{vP2}"]
    Z2 = NC == 2 and cfg.get('z2', 1)
    if Z2:
        g2set += [f"s_and_b32 s{sT1}, s{sST}, 3", f"s_lshl_b32 s{sT1}, s{sT1}, 2", f"s_add_u32 s{sT1}, s{sT1}, {WS_FZ + 128*FSZ + 16}",
                  f"v_add_u32 v{vP2}, s{sT1}, v{vP2}"]
    else:
        g2set += [f"v_add_u32 v{vP2}, s{sT1}, v{vP2}", f"v_cmp_lt_u32 vcc, 7, v0", "s_nop 1", f"v_cndmask_b32 v{vP1}, v{vP1}, v{vP2}, vcc"]
    nz0 = 16 if NC == 3 else 8
    nz1 = 16 if NC == 2 and not Z2 else 8
    zso = (80, 81, 82, 83, sX0)
    ptile = ((0, 1), (2, 3), (5, 6), (7, 8), (4, 9))

    def u_load(n):
        m, j = divmod(n, 12)
        return f"buffer_load_dwordx4 {UBUF[n % NB2]}, v{vUL+m if m < 5 else vUM+m-5}, {srd(S_WS)}, s{TK+j} offen {cfg.get('apol', 'sc1')}"

    def mf2(n, jn):
        m, j = divmod(n, 12)
        d = vr(OWN + 4 * m, 4) if jn == 0 else vr(AC2[m & 1] + 4 * (jn - 1), 4)
        return f"v_mfma_f32_16x16x32_bf16 {d}, {UBUF[n % NB2]}, {ar(16*j+4*jn,4)}, {'0' if j == 0 else d}"
    rd = lambda m, s: [f"ds_read_b128 {vr(RD2+12*s+4*k,4)}, v{vR2R if m < 5 else vR2S} offset:{(m % 5)*12288 + k*1024}" for k in range(3)]
    ad = lambda m, s: [f"v_add_f32 v{OWN+4*m+r}, v{OWN+4*m+r}, v{RD2+12*s+4*k+r}" for k in range(3) for r in range(4)]
    wr = lambda m: [(f"ds_write_b128 v{(vR2W if m < 5 else vR2X)+jn-1}, {vr(AC2[m & 1]+4*(jn-1),4)} offset:{(m % 5)*12288}", f'r2w{m}') for jn in range(1, 4)]
    z_ld = lambda ps: [f"buffer_load_dwordx4 {vr(ZL+4*i,4)}, v{vZG}, {srd(S_WS)}, s{zso[p]} offen sc1" for i, p in enumerate(ps)]
    z_wr = lambda ps: [f"ds_write_b128 v{vZLW}, {vr(ZL+4*i,4)} offset:{p*32*PZ}" for i, p in enumerate(ps)]
    z_rd = lambda p: [f"ds_read_b64_tr_b16 {vr(ZRg+4*(p % 3)+2*hh,2)}, v{vZT} offset:{(32*p + 4*hh)*PZ}" for hh in range(2)]

    def gq(p):
        it = []
        pp = GQ + 8 * (p % 3)
        for k in range(4):
            it += [f"v_lshlrev_b32 v{pp+2*k}, 16, v{QR+4*p+k}", f"v_and_b32 v{pp+2*k+1}, 0xffff0000, v{QR+4*p+k}",
                   f"v_mul_f32 v{pp+2*k}, v{pp+2*k}, v{vGG}", f"v_mul_f32 v{pp+2*k+1}, v{pp+2*k+1}, v{vGG}"]
        return it
    sc = lambda m: [f"v_fma_f32 v{OWN+4*m+k}, v{OWN+4*m+k}, v{vOG}, v{vB2}" for k in range(4)]

    def fin(p, hh):
        it = []
        o = OWN + 4 * ptile[p][hh]
        for k in range(2):
            zu, z, g = ZU + 2 * k, ZRg + 4 * (p % 3) + 2 * hh + k, GQ + 8 * (p % 3) + 4 * hh + 2 * k
            it += [f"v_lshlrev_b32 v{zu}, 16, v{z}", f"v_and_b32 v{zu+1}, 0xffff0000, v{z}"]
            if (p, hh) == (4, 1):
                it += [f"v_fma_f32 v{g}, v{g}, v{zu}, v{vB2}", f"v_fma_f32 v{g+1}, v{g+1}, v{zu+1}, v{vB2}"]
            else:
                it += [f"v_fmac_f32 v{o+2*k}, v{g}, v{zu}", f"v_fmac_f32 v{o+2*k+1}, v{g+1}, v{zu+1}",
                       f"v_cvt_pk_bf16_f32 v{QR+4*p+2*hh+k}, v{o+2*k}, v{o+2*k+1}"]
        return it
    ost = lambda p: [f"global_store_dwordx4 {qa(p)}, {vr(QR+4*p,4)}, {sp(P_OUT)} offset:{64*p} {opol if p < cfg.get('opn', 5) else ''}"]
    if cfg.get('dly'):
        a(f"s_sleep {cfg['dly']}")
    if UEP == 3:
        a.run(ustart)
    a(f"buffer_load_dword v{vGG}, v{vGA}, {srd(S_WS)}, 0 offen sc1")
    a.run(g2set)
    mf, pos = [], {}
    for q in range(120 // GR2):
        ns = range(q * GR2, (q + 1) * GR2)
        for jn in ((1, 2, 3, 0) if ns[0] < 108 else (1, 2, 3)):
            for n in ns:
                pos.setdefault(n, len(mf))
                mf.append(mf2(n, jn))
    pown = len(mf)
    mf += [mf2(n, 0) for n in range(108, 120)]
    S = Sched(mf)
    for n in range(120):
        S.reserve(pos[n] - 1)
    UC = cfg.get('pUC', 210)
    k = 0
    for n in range(UE, 120):
        free = 4 * GR2 * ((n - NB2) // GR2 + 1) if n >= NB2 else 0
        p = max(free, 4 * (n - NB2 + GR2) + 1, 2 * k)
        if n >= 60:
            p = max(p, min(UC + 1 + 2 * (n - 60), 4 * n - 2 if UC < 236 else max(239, 4 * (n - UE))))
        if n == 60:
            S.add('u', [P.poll_check('fu1', vP0, 30), stamp('fu1_ok')], p, p)
            pZ0 = p
        S.add('u', [u_load(n)], p, p)
        k += 1
    lastu = p
    S.add('st', [stamp('g2first')], 0, 0)
    S.add('st', [stamp('g2mid')], 240, 240)
    pF = cfg.get('pF', 40)
    S.add('z', [('wait', 'zst2' if NC == 3 else 'zst1'), stamp('barF'), P.flag(sFJ)], pF, pF + 1)
    zB = (0, 1) if NC == 2 else (0, 1, 4)
    zA = (2, 3, 4) if NC == 2 and not Z2 else (2, 3)
    UP = UC - cfg.get('pUP', 44)
    S.add('z', [P.poll_issue(vP0, 30), P.poll_issue(vP1, nz0, 2, PDZ)], UP, UP + 1)
    S.add('z', [P.poll_check('fz0', vP1, nz0, 2, PDZ), stamp('fz0_ok')] + z_ld(zB) + [f"v_add_u32 v{vP1}, {128*FSZ}, v{vP1}"], pZ0 + 3, pZ0 + 14, pace=2)
    ZP1, ZC1 = cfg.get('zp1', [325, 372])
    S.add('z', [P.poll_issue(vP1, nz1, 2, PDZ)], ZP1, ZP1)
    S.add('z', [P.poll_check('fz1', vP1, nz1, 2, PDZ), stamp('fz1_ok')] + z_ld(zA), ZC1, ZC1 + 8, pace=2)
    if Z2:
        ZP2, ZC2 = cfg.get('zp2', [390, 434])
        S.add('z2', [P.poll_issue(vP2, 8)], ZP2, ZP2)
        S.add('z2', [P.poll_check('fz2', vP2, 8), stamp('fz2_ok'),
                    f"buffer_load_dwordx4 {vr(ZL+8,4)}, v{vZG}, {srd(S_WS)}, s{zso[4]} offen sc1"], ZC2, ZC2 + 1)
    S.add('fin', [f"v_lshlrev_b32 v{vB2}, 16, v{vB2}", f"v_sub_f32 v{vOG}, 1.0, v{vGG}", f"v_mul_f32 v{vB2}, v{vB2}, v{vOG}"] + gq(0) + gq(1) + gq(2), 44, 200)
    OS = cfg.get('osat', 450)
    bars = cfg.get('bars', [3, 5, 7, 8])
    zlate = cfg.get('zlate', 0)
    flat = lambda l: [x for y in l for x in y]
    done = 0
    tailz = []
    for m in range(9):
        p = 48 * (m + 1)
        if m == 5:
            S.add('red', z_wr(zB), p - 14, p - 1, pace=4)
        if m == 8 and not zlate:
            S.add('red', z_wr(zA), p - 14, p - 1, pace=4)
        S.add('red', wr(m), p, p + 8, pace=3)
        if m in bars:
            S.add('red', [('wait', f'r2w{m}'), "s_barrier"], p + 11, p + 12)
            ms = list(range(done, m + 1))
            done = m + 1
            dl = None if m == 8 else 48 * (bars[bars.index(m) + 1] + 1) + 10
            it = []
            if m == 5:
                it += z_rd(0) + z_rd(1)
            if m == 8 and not zlate:
                it += z_rd(2) + z_rd(3) + ([] if Z2 else z_rd(4))
            it += flat(rd(t, t % 3) for t in ms[:3])
            if m == 8 and not zlate:
                it += ([] if Z2 else fin(4, 0) + fin(4, 1)) + fin(2, 0)
            if m == 5 and ms[0] > 1:
                it += fin(0, 0) + fin(0, 1)
            for i, t in enumerate(ms):
                it += ad(t, t % 3) + (rd(ms[i + 3], t % 3) if i + 3 < len(ms) else []) + sc(t)
            if m == 5:
                it += (fin(0, 0) + fin(0, 1) if ms[0] <= 1 else []) + fin(1, 0) + fin(1, 1) + gq(3) + gq(4)
                dl = min(dl, OS - 1)
                S.add('os', ost(0) + ost(1), OS, OS + 4, pace=3)
            if m == 8:
                last = fin(2, 1) + ost(2) + fin(3, 0) + fin(3, 1) + ost(3)
                if zlate:
                    tailz = fin(2, 0) + last + fin(4, 0) + fin(4, 1)
                else:
                    it += last
            S.add('fin', it, p + 13, dl)
    if zlate:
        S.add('red', z_wr(zA), pown - 8, pown, pace=3)
    S.add('red', wr(9), pown + 1, pown + 6, pace=2)
    ZIN = cfg.get('zin', 1)
    zw2 = (f"ds_write_b128 v{vZLW}, {vr(ZL+8,4)} offset:{4*32*PZ}", 'zw2')
    if Z2 and ZIN:
        S.add('red', [zw2], pown + 8, pown + 8)
    d2 = cfg.get('d2', '')
    post = []
    if 'z' in d2:
        a.run([x[0] for x in S.th['z'][:3]])
        post += [x[0] for x in S.th['z'][3:] + S.th.get('z2', [])]; S.th['z'] = []; S.th['z2'] = []
        S.th['u'] = [x for x in S.th['u'] if not callable(x[0])]
    for nm in ('red', 'fin', 'os'):
        if nm[0] in d2:
            post += [x[0] for x in S.th[nm]]; S.th[nm] = []
    its = S.items(keep=('fin',))
    if 'u' in d2:
        its = [x for x in its if not txt_of(x).startswith('buffer_load_dwordx4 a[')]
    if 'b' in d2:
        its = [x for x in its if txt_of(x) != 's_barrier']
    if 'w' in d2:
        its = [x for x in its if not (txt_of(x).startswith('ds_write_b128') and x[1:] != ('r2w9',)) and not (txt_of(x) == 'wait' and x[1].startswith('r2w'))]
    a.run(its)
    a.run([stamp('g2x')] + ([] if cfg.get('nopost') else post))
    P.info['g2'] = (S.over, S.under, len(S.left.get('fin', [])))
    a.run([stamp('g2mfma')])
    left = S.left.get('fin', [])
    if Z2:
        assert not zlate
        tailz = fin(4, 0) + fin(4, 1)
        if not ZIN:
            a.run(left)
            left = []
            a(zw2[0], tok='zw2')
        a.wait('zw2')
    if 'r2w9' in a.toks:
        a.wait('r2w9')
    a("s_barrier")
    if Z2:
        a.run(z_rd(4))
    for k in range(3):
        a(f"ds_read_b128 {vr(RD4+4*k,4)}, v{vR2S} offset:{4*12288 + k*1024}")
    if zlate:
        a.run(z_rd(2) + z_rd(3) + z_rd(4))
    a.run(left + tailz)
    for k in range(3):
        for hh in range(2):
            a(f"v_pk_add_f32 {vr(OWN+36+2*hh,2)}, {vr(OWN+36+2*hh,2)}, {vr(RD4+4*k+2*hh,2)}")
    g = GQ + 8 + 4
    for hh in range(2):
        a(f"v_pk_fma_f32 {vr(g+2*hh,2)}, {vr(OWN+36+2*hh,2)}, {vr(vOG,2)}, {vr(g+2*hh,2)} op_sel_hi:[1,0,1]")
    for hh in range(2):
        a(f"v_cvt_pk_bf16_f32 v{QR+18+hh}, v{g+2*hh}, v{g+2*hh+1}")
    a.run(ost(4))
    P.finish()
    a("s_endpgm")
    return P


def gen(cfg):
    h = Asm()
    h("s_load_dwordx16 s[36:51], s[0:1], 0")
    h("s_load_dwordx16 s[52:67], s[0:1], 56")
    if cfg.get('stamps') or cfg.get('amp'):
        h("s_memrealtime s[96:97]")
    h("s_cmp_ge_u32 s2, 256")
    h("s_cbranch_scc1 L_end")
    h("v_lshrrev_b32 v1, 6, v0")
    h("v_and_b32 v0, 63, v0")
    h(f"v_readfirstlane_b32 s{sW}, v1")
    rb = cfg.get('rolebit', 0)
    h(f"s_lshr_b32 s{sID}, s2, 3")
    if rb == 0:
        h(f"s_bfe_u32 s{sXQ}, s2, 0x20001")
    elif rb == 2:
        h(f"s_and_b32 s{sXQ}, s2, 3")
    else:
        h(f"s_bfe_u32 s{sXQ}, s2, 0x10002")
        h(f"s_and_b32 s{sT0}, s2, 1")
        h(f"s_lshl1_add_u32 s{sXQ}, s{sXQ}, s{sT0}")
    h(f"s_lshl_b32 s{sJ}, s{sXQ}, 5")
    h(f"s_add_u32 s{sJ}, s{sJ}, s{sID}")
    lay = cfg.get('lay', 'C')
    if lay == 'C':
        if cfg.get('cpf', 1):
            h(f"s_bitcmp0_b32 s2, {rb}")
            h(f"s_cselect_b32 s{sT1}, L_Amain-L_pcC, 0")
            h.run([x.replace("@-L_pcC", f"s{sT1}") for x in Prog('C', cfg).code_prefetch("@", "L_end")])
    elif lay == 'A':
        h(f"s_bitcmp1_b32 s2, {rb}")
        h("s_cbranch_scc1 L_B")
    else:
        h(f"s_bitcmp0_b32 s2, {rb}")
        h("s_cbranch_scc1 L_A")
    A, B = prog_A(cfg), prog_B(cfg)
    ref = open(f"cdna_kernels/{NAME}.s.ref").read().split('\n')
    head = [l for l in ref if l.startswith(';') and '@launch' not in l and 'Override' not in l and 'grid=ceil' not in l]
    txt = '\n'.join(head) + f"\n; @launch grid=(256,1,1) block=(256,1,1) lds={L_END}\n"
    txt += f""".amdgcn_target "amdgcn-amd-amdhsa--gfx950"
.text
.globl {NAME}_kernel
.p2align 8
.type {NAME}_kernel,@function
{NAME}_kernel:
"""
    if lay == 'C':
        J = lambda l: '\n'.join(l) + '\n'
        txt += (h.text() + J(A.a.out[:A.split0]) + J(B.a.out[:B.split0]) + f"    s_waitcnt lgkmcnt(0)\n    s_bitcmp1_b32 s2, {rb}\n    s_cbranch_scc1 L_Bgo\n" +
                J(A.a.out[A.split0:A.split]) + "L_Bgo:\n" + J(B.a.out[B.split0:]) + ".p2align 7\n" + J(A.a.out[A.split:]) + "L_end:\n    s_endpgm\n")
    elif lay == 'A':
        txt += h.text() + '\n'.join(A.a.out[:A.split]) + '\n' + B.a.text() + ".p2align 7\n" + '\n'.join(A.a.out[A.split:]) + "\nL_end:\n    s_endpgm\n"
    else:
        txt += h.text() + B.a.text() + ".p2align 7\nL_A:\n" + '\n'.join(A.a.out[:A.split-1] + A.a.out[A.split:]) + "\nL_end:\n    s_endpgm\n"
    txt += f""".section .rodata,"a"
.p2align 6
.amdhsa_kernel {NAME}_kernel
  .amdhsa_next_free_vgpr 512
  .amdhsa_next_free_sgpr 102
  .amdhsa_accum_offset 256
  .amdhsa_group_segment_fixed_size 0
  .amdhsa_kernarg_size 120
  .amdhsa_user_sgpr_count 2
  .amdhsa_user_sgpr_kernarg_segment_ptr 1
  .amdhsa_system_sgpr_workgroup_id_x 1
  .amdhsa_float_denorm_mode_32 3
.end_amdhsa_kernel
"""
    return txt, dict(n_ins=(A.a.n_ins, B.a.n_ins), n_nop=(A.a.n_nop, B.a.n_nop), stamps=B.names, stampsA=A.names,
                     rolebit=rb, sched=(A.info, B.info))


if __name__ == "__main__":
    import json
    out = sys.argv[1]
    cfg = json.loads(sys.argv[2]) if len(sys.argv) > 2 else {}
    txt, info = gen(cfg)
    open(out, 'w').write(txt)
    print(out, info)


def dmap(T, i):
    dt, m = divmod(T, 5)
    r, g = dt >> 2, dt & 3
    P, hh = (2 * r + (m >> 1), m & 1) if m < 4 else (4, r)
    return 160 * g + 32 * P + 8 * (i >> 2) + 4 * hh + (i & 3)
```

```python
import sys
from asmlib import Asm, merge, Sched

NAME = "gated_mix__ssm_conv_h3__mixer_token_mlp__prompt"

WS_H, WS_U, WS_KV, WS_Z, WS_G = 0x0, 0x280000, 0x480000, 0x700000, 0x980000
WS_F1, WS_FK, WS_FU, WS_FZ, WS_EP, WS_DBG = 0x990000, 0x998000, 0x9A0000, 0x9B0000, 0x9C0000, 0x9D0000
WS_SIZE = 0xA10000
OOB = 0x7F000000
TAGC = 0x9E3779B9

NR = 4
L_RED = 65536
PL = 1344
L_LN = 32768
PK = 704
L_KI = L_RED
L_VI = L_RED + 25600
L_ZSTG = L_RED + 4 * 12288
L_CK = L_RED + 61440
KP, KPAD = 4224, 96
L_CX = L_CK + 3 * KP
XP, XPAD = 4608, 512
L_CAR = L_CX + 3 * XP
L_END = L_CAR + 1600
L_ZI = L_CK
PZ = 144

S_WS, S_K, S_V, S_W, S_SSM = 4, 8, 12, 16, 24
P_Q, P_SH, P_D, P_B1, P_B2, P_GW, P_OUT = 36, 42, 46, 54, 58, 60, 62
TK = 68
sW, sXQ, sID, sA, sB, sJ, sSP, sTAG, sRING, sC0, sFI, sFJ = range(84, 96)
sT0, sT1, sT2, sT3 = 32, 33, 34, 35
sU0, sU1, sU2, sU3 = 20, 21, 22, 23
sX0, sX1, sX2 = 31, 48, 49
sC2 = 39
sCNT = 3
vH, vI, vR, vC, vT, vT2 = 37, 38, 39, 40, 42, 43
VW, VT = 2, 6
vPD = 18
vCA, vCB, vCA2, vCB2 = 20, 21, 22, 23
vCRW, vCRW2, vCRR, vCRR2, vZW, vZR, vZS, vZS2, vCW = 25, 26, 27, 28, 29, 30, 31, 32, 33
vP0, vP1, vTAG = 35, 24, 34
CA, CB, CACC, CY, NSL = 64, 128, 192, 216, 6
CH, CR, ZO = 240, 246, 216
vZF = 252
C20 = 56


def srd(n):
    return f"s[{n}:{n+3}]"


def sp(n):
    return f"s[{n}:{n+1}]"


def vr(n, k):
    return f"v[{n}:{n+k-1}]"


def ar(n, k):
    return f"a[{n}:{n+k-1}]"


def txt_of(x):
    return x if isinstance(x, str) else (x[0] if isinstance(x, tuple) else '')


class Prog:
    def __init__(self, role, cfg):
        self.a = Asm()
        self.role = role
        self.cfg = cfg
        self.stamps = cfg.get('stamps', False)
        self.names = []
        self.npoll = 0
        self.nxt = self.drn = 0
        self.nstep = 16 if role == 'A' else 12
        self.info = {}

    def stamp(self, name):
        def f(a):
            st = self.stamps
            amp = self.cfg.get('amp')
            if amp and amp == [self.role, name]:
                a("s_memrealtime s[98:99]")
            if not st or (st != 1 and name not in st and name not in ('start', 'end')) or (st == 1 and name[0] == 'w' and name != 'w8'):
                return
            k = len(self.names)
            a("s_memtime s[98:99]")
            a("s_memrealtime s[100:101]")
            a(f"v_writelane_b32 v255, s98, {k}")
            a(f"v_writelane_b32 v255, s100, {32+k}")
            self.names.append(name)
        f.cost = 0
        return f

    def weight_src(self, pitch, sbase):
        it = [f"v_lshrrev_b32 v{vT}, 3, v0",
              f"v_and_b32 v{vT2}, 6, v{vT}",
              f"v_xor_b32 v{vT2}, v{vT2}, v0",
              f"v_and_b32 v{vT2}, 7, v{vT2}",
              f"v_mul_u32_u24 v{vT}, {pitch}, v{vT}",
              f"v_lshl_add_u32 v{vT}, v{vT2}, 4, v{vT}",
              f"v_add_u32 v{VW}, s{sbase}, v{vT}"]
        for i in range(1, 4):
            it.append(f"v_add_u32 v{VW+i}, {8*pitch-1024}, v{VW+i-1}")
        return it

    def weight_dst(self, xorw):
        it = [f"v_lshrrev_b32 v{vT}, 2, v0",
              f"v_lshlrev_b32 v{vT}, 7, v{vT}",
              f"v_lshl_add_u32 v{vT}, v{vC}, 3, v{vT}",
              f"v_bfe_u32 v{vT2}, v0, 3, 2"]
        if xorw:
            it.append(f"v_xor_b32 v{vT2}, s{sW}, v{vT2}")
        it += [f"v_lshl_add_u32 v{vT}, v{vT2}, 5, v{vT}",
               f"v_add_u32 v{VT}, s{sRING}, v{vT}"]
        for t in range(1, 4):
            it.append(f"v_xor_b32 v{VT+t}, {t*32}, v{VT}")
        return it

    def w_issue(self, j):
        it = [f"s_mul_i32 s{sU1}, s{TK+j}, {96 if self.role == 'A' else 128}",
              f"s_add_u32 m0, s{sRING}, {(j % NR)*16384}"]
        if j >= NR:
            it.append(('wait', f'wr{j-NR}'))
        for i in range(4):
            it.append((f"buffer_load_dwordx4 v{VW+i}, {srd(S_W)}, s{sU1} offen offset:{i*1024} {self.cfg.get('wpol', '')} lds", f'wd{j}'))
        return it

    def w_drain(self, j):
        it = [('wait', f'wd{j}')]
        for t in range(4):
            for e2 in range(2):
                it.append((f"ds_read_b64_tr_b16 {ar(16*j+4*t+2*e2,2)}, v{VT+t} offset:{(j % NR)*16384 + e2*2048}", f'wr{j}'))
        return it

    def w_step(self):
        it = []
        if self.nxt >= NR or self.nxt == self.nstep:
            it += self.w_drain(self.drn); self.drn += 1
        if self.nxt < self.nstep:
            it += self.w_issue(self.nxt); self.nxt += 1
        return it

    def flag(self, soff):
        return f"s_mov_b64 exec, 1\nbuffer_store_dword v{vTAG}, v0, {srd(S_WS)}, s{soff} offen sc1\ns_mov_b64 exec, -1"

    def flag_wg(self, soff, name):
        def f(a):
            a("s_barrier")
            a(f"s_cmp_lg_u32 s{sW}, 0")
            a(f"s_cbranch_scc1 L_nf_{name}")
            a.begin_cond(name)
            a(self.flag(soff))
            a.end_cond()
            a.label(f"L_nf_{name}")
        return f

    def set_tag(self, v):
        return [f"v_readfirstlane_b32 s{sTAG}, v{v}", f"s_add_u32 s{sTAG}, s{sTAG}, {hex(TAGC)}", f"v_mov_b32 v{vTAG}, s{sTAG}"]

    @staticmethod
    def setexec(n):
        if n == 32:
            return "s_mov_b32 exec_hi, 0"
        if n > 32:
            return f"s_mov_b32 exec_hi, {hex((1 << (n-32)) - 1)}"
        return f"s_mov_b64 exec, {hex((1 << n) - 1)}"

    def poll_load(self, va, wd, vd):
        if wd == 1:
            return f"buffer_load_dword v{vd}, v{va}, {srd(S_WS)}, 0 offen sc1"
        return f"buffer_load_dwordx{wd} {vr(vd,wd)}, v{va}, {srd(S_WS)}, 0 offen sc1"

    def poll_issue(self, va, n=64, wd=1, vd=vPD):
        it = [self.setexec(n)] if n < 64 else []
        it.append(self.poll_load(va, wd, vd))
        if n < 64:
            it.append("s_mov_b64 exec, -1")
        return "\n".join(it)

    def poll_check(self, name, va, n=64, wd=1, vd=vPD):
        name = self.role + name

        def cmp(a):
            if wd == 1:
                a(f"v_cmp_ne_u32 vcc, s{sTAG}, v{vd}")
                return
            a(f"v_xor_b32 v{vd}, s{sTAG}, v{vd}")
            for k in range(1, wd):
                a(f"v_bitop3_b32 v{vd}, v{vd}, v{vd+k}, v{vTAG} bitop3:0xf6")
            a(f"v_cmp_ne_u32 vcc, 0, v{vd}")

        def f(a):
            if n < 64:
                a(self.setexec(n))
            cmp(a)
            a(f"s_mov_b32 s{sCNT}, 0")
            a(f"s_branch L_pk_{name}" if name[1:] in self.cfg.get('nopoll', []) else f"s_cbranch_vccz L_pk_{name}")
            a.label(f"L_pl_{name}")
            a.begin_cond('poll' + name)
            a("s_mov_b64 exec, vcc")
            if self.cfg.get('psleep'):
                a(f"s_sleep {self.cfg['psleep']}")
            a(self.poll_load(va, wd, vd))
            a(f"s_add_u32 s{sCNT}, s{sCNT}, 1")
            a(f"s_cmp_ge_u32 s{sCNT}, 0x40000")
            a(f"s_cbranch_scc1 L_pk_{name}")
            cmp(a)
            a("s_nop 0")
            a(f"s_cbranch_vccnz L_pl_{name}")
            a.end_cond()
            a.label(f"L_pk_{name}")
            a("s_mov_b64 exec, -1")
            if self.stamps:
                a(f"v_writelane_b32 v254, s{sCNT}, {self.npoll}")
                self.npoll += 1
        f.cost = 5
        return f

    def zflag_addr(self, dst, first):
        fsz = self.cfg.get('fsz', 32)
        return [f"s_add_u32 s{dst}, s{sJ}, {first}", f"s_mul_i32 s{dst}, s{dst}, {fsz}",
                f"s_lshl1_add_u32 s{sT0}, s{sT3}, s{sT2}", f"s_lshl2_add_u32 s{dst}, s{sT0}, s{dst}",
                f"s_add_u32 s{dst}, s{dst}, {WS_FZ}"]

    def lanes(self):
        return ["v_lshlrev_b32 v1, 4, v0",
                f"v_lshrrev_b32 v{vH}, 4, v0", f"v_and_b32 v{vI}, 15, v0",
                f"v_bfe_u32 v{vR}, v0, 2, 2", f"v_and_b32 v{vC}, 3, v0",
                f"s_lshr_b32 s{sT2}, s{sW}, 1", f"s_and_b32 s{sT3}, s{sW}, 1",
                f"s_lshl_b32 s{sRING}, s{sW}, 12"]

    def code_prefetch(self, beg, end):
        r = self.role
        return [f"s_getpc_b64 {sp(sU2)}", f"L_pc{r}:",
                f"s_lshl2_add_u32 s{sT2}, s{sID}, s{sW}",
                f"v_lshl_add_u32 v{vT}, s{sT2}, 1, v0",
                f"v_lshlrev_b32 v{vT}, 7, v{vT}",
                f"v_add_u32 v{vT}, {beg}-L_pc{r}, v{vT}",
                f"v_min_u32 v{vT}, {end}-L_pc{r}, v{vT}",
                "s_mov_b64 exec, 3",
                f"global_load_dword v253, v{vT}, {sp(sU2)}",
                "s_mov_b64 exec, -1"]

    def epoch_load(self, v):
        return [f"s_mov_b32 s{sT0}, {WS_EP}", "s_mov_b64 exec, 1",
                f"buffer_load_dword v{v}, v0, {srd(S_WS)}, s{sT0} offen sc1", "s_mov_b64 exec, -1"]

    def conv_setup(self, nch):
        ZR = 68
        it = [f"s_mul_i32 s{sC2}, s{sXQ}, 160",
              f"s_lshl1_add_u32 s{sC0}, s{sID}, s{sC2}",
              f"s_add_u32 s{sC0}, s{sC0}, {64 if self.role == 'A' else 0}",
              f"s_add_u32 s{sC2}, s{sC2}, s{sID}",
              f"s_add_u32 s{sC2}, s{sC2}, 128",
              f"s_lshl_b32 s{sT0}, s{sC0}, 1",
              f"s_load_dword s28, {sp(P_D)}, s{sT0}"]
        if nch == 3:
            it += [f"s_lshr_b32 s{sT1}, s{sC2}, 1", f"s_lshl_b32 s29, s{sT1}, 2", f"s_load_dword s30, {sp(P_D)}, s29"]
        it += [f"s_lshl_b32 s{sX0}, s{sC0}, 12",
               f"s_lshl_b32 s{sT1}, s{sW}, 10",
               f"s_add_u32 s{sX0}, s{sX0}, s{sT1}",
               f"s_add_u32 s{sX1}, s{sX0}, 4096",
               f"s_lshl_b32 s{sX2}, s{sC2}, 12",
               f"s_add_u32 s{sX2}, s{sX2}, s{sT1}"]
        it += [f"v_mov_b32 v{ZR+i}, 0" for i in range(4)]
        it += [f"s_min_u32 s{sT0}, s{sW}, 2",
               f"s_mul_i32 s{sT1}, s{sT0}, {XP}",
               f"s_add_u32 s{sT1}, s{sT1}, {L_CX}",
               f"v_add_u32 v{vT}, s{sT1}, v1",
               f"s_mul_i32 s{sT1}, s{sT0}, {KP}",
               f"s_add_u32 s{sT1}, s{sT1}, {L_CK}",
               f"v_add_u32 v{vT2}, s{sT1}, v1",
               f"s_mul_i32 s{sT1}, s{sT0}, {33*16}",
               f"s_add_u32 s{sT1}, s{sT1}, {L_CAR}",
               f"v_mov_b32 v{vPD}, s{sT1}",
               "s_mov_b32 exec_hi, 0",
               f"ds_write_b128 v{vT}, {vr(ZR,4)}",
               f"s_mov_b64 exec, {hex((1 << (KPAD//16)) - 1)}",
               f"ds_write_b128 v{vT2}, {vr(ZR,4)}",
               "s_mov_b64 exec, 1",
               f"ds_write_b128 v{vPD}, {vr(ZR,4)}",
               "s_mov_b64 exec, -1"]
        it += [f"v_lshl_add_u32 v{vT}, v{vH}, 3, v{vR}",
               f"v_lshlrev_b32 v{vT2}, 2, v{vC}",
               f"v_sub_u32 v{vT2}, v{vT2}, v{vT}",
               f"v_lshlrev_b32 v{vT2}, 3, v{vT2}",
               f"s_mul_i32 s{sT0}, s{sT2}, {KP}",
               f"s_add_u32 s{sT0}, s{sT0}, {L_CK + KPAD + 152 - 32}",
               f"v_add_u32 v{vCA}, s{sT0}, v{vT2}"]
        if nch == 3:
            it.append(f"v_add_u32 v{vCA2}, {L_CK + 2*KP + KPAD + 152 - 32}, v{vT2}")
        it += [f"v_add_lshl_u32 v{vT}, v{vT}, v{vC}, 3",
               f"s_mul_i32 s{sT0}, s{sT2}, {XP}",
               f"s_lshl_b32 s{sT1}, s{sT3}, 7",
               f"s_add_u32 s{sT0}, s{sT0}, s{sT1}",
               f"s_add_u32 s{sT0}, s{sT0}, {L_CX + XPAD - 152}",
               f"v_add_u32 v{vCB}, s{sT0}, v{vT}"]
        if nch == 3:
            it += [f"s_lshl_b32 s{sT0}, s{sW}, 7",
                   f"s_add_u32 s{sT0}, s{sT0}, {L_CX + 2*XP + XPAD - 152 - 256}",
                   f"v_add_u32 v{vCB2}, s{sT0}, v{vT}"]
        return it

    def conv_setup2(self, nch):
        it = [f"s_mul_i32 s{sT0}, s{sT2}, {33*16}",
              f"s_lshl4_add_u32 s{sT0}, s{sT3}, s{sT0}",
              f"s_add_u32 s{sT0}, s{sT0}, {L_CAR}",
              f"v_lshlrev_b32 v{vT}, 2, v{vC}",
              f"v_lshl_add_u32 v{vT2}, v{vR}, 5, v{vT}",
              f"v_add_u32 v{vCRR}, s{sT0}, v{vT2}",
              f"s_add_u32 s{sT0}, s{sT0}, {(16 - 48*32) & 0xffffffff}",
              f"v_lshl_add_u32 v{vCRW}, v0, 5, s{sT0}"]
        if nch == 3:
            it += [f"s_lshl_b32 s{sT0}, s{sW}, 4",
                   f"s_add_u32 s{sT0}, s{sT0}, {L_CAR + 2*33*16}",
                   f"v_lshl_add_u32 v{vT2}, v{vR}, 6, v{vT}",
                   f"v_add_u32 v{vCRR2}, s{sT0}, v{vT2}",
                   f"s_add_u32 s{sT0}, s{sT0}, {(16 - 56*64) & 0xffffffff}",
                   f"v_lshl_add_u32 v{vCRW2}, v0, 6, s{sT0}"]
        it += [f"s_mul_i32 s{sT0}, s{sW}, 3072",
               f"s_add_u32 s{sT0}, s{sT0}, {L_ZSTG}",
               f"v_lshl_add_u32 v{vZW}, v0, 1, s{sT0}",
               f"v_add_u32 v{vZR}, s{sT0}, v1",
               f"v_lshl_add_u32 v{vT}, v{vC}, 1, s{sT0}",
               f"v_lshl_add_u32 v{vZF}, v{vR}, 7, v{vT}",
               f"v_lshrrev_b32 v{vT}, 3, v0",
               f"v_and_b32 v{vT2}, 7, v0",
               f"v_lshlrev_b32 v{vT2}, 4, v{vT2}",
               f"v_lshl_add_u32 v{vZS}, v{vT}, 8, v{vT2}",
               f"s_add_u32 s{sT0}, s{sC0}, s{sT2}",
               f"s_lshl_b32 s{sT0}, s{sT0}, 12",
               f"s_lshl_b32 s{sT1}, s{sT3}, 7",
               f"s_add_u32 s{sT0}, s{sT0}, s{sT1}",
               f"s_add_u32 s{sT0}, s{sT0}, {WS_Z}",
               f"v_add_u32 v{vZS}, s{sT0}, v{vZS}"]
        if nch == 3:
            it += [f"v_lshl_add_u32 v{vZS2}, v{vT}, 9, v{vT2}",
                   f"s_lshl_b32 s{sT0}, s{sC2}, 12",
                   f"s_lshl_b32 s{sT1}, s{sW}, 7",
                   f"s_add_u32 s{sT0}, s{sT0}, s{sT1}",
                   f"s_add_u32 s{sT0}, s{sT0}, {WS_Z}",
                   f"v_add_u32 v{vZS2}, s{sT0}, v{vZS2}"]
        if nch == 3:
            it += [f"s_and_b32 s{sT0}, s{sC2}, 1",
                   f"s_lshl_b32 s{sT0}, s{sT0}, 4",
                   f"s_lshr_b32 s30, s30, s{sT0}",
                   f"s_lshl_b32 s30, s30, 16"]
        fsk = self.cfg.get('fsk', 16)
        it += [f"s_lshl_b32 s{sT0}, s{sT2}, 4", f"s_lshr_b32 s28, s28, s{sT0}", f"s_lshl_b32 s28, s28, 16",
               f"s_lshl_b32 s29, s{sW}, 10",
               f"s_lshr_b32 s{sT0}, s{sXQ}, 1",
               f"s_lshl2_add_u32 s{sT0}, s{sT0}, s{sW}",
               f"v_lshl_add_u32 v{vP1}, s{sT0}, 4, v0",
               f"v_mul_u32_u24 v{vP1}, {fsk}, v{vP1}",
               f"v_add_u32 v{vP1}, {WS_FK}, v{vP1}"]
        return it

    def ssm_loads(self, nch):
        return [(f"s_add_u32 m0, s29, {L_CK + KPAD + cs*KP}\nbuffer_load_dwordx4 v1, {srd(S_SSM)}, s{so} offen {self.cfg.get('spol', '')} lds\ns_add_u32 s{so}, s{so}, {WS_KV}", 'kd')
                for cs, so in enumerate((sX0, sX1, sX2)[:nch])]

    def x_loads(self, nch):
        return [(f"s_add_u32 m0, s29, {L_CX + XPAD + cs*XP}\nbuffer_load_dwordx4 v1, {srd(S_WS)}, s{so} offen sc1 lds", 'xd')
                for cs, so in enumerate((sX0, sX1, sX2)[:nch])]

    def dpatch(self, part):
        it = []
        r0 = C20 if part == 2 and self.role == 'A' else CA
        for r, mk in ((r0 + 1, 0x01000001), (r0 + 3, 0x10000010)):
            it += [f"v_and_b32 v{vT2}, 0xffff0000, v{r}", f"v_lshlrev_b32 v{vT}, 16, v{r}",
                   f"v_add_f32 v{vT2}, s{28 if part == 1 else 30}, v{vT2}",
                   f"s_mov_b32 exec_lo, 0\ns_mov_b32 exec_hi, {hex(mk)}\nv_cvt_pk_bf16_f32 v{r}, v{vT}, v{vT2}\ns_mov_b64 exec, -1"]
        return it

    def conv_pre(self, n):
        it = []
        for c in range(n):
            it += self.c_read(1, c)
        return it + self.dpatch(1)

    tiles = [(1, m, m) for m in range(16)] + [(2, n, 2 * n + 1) for n in range(8)]

    def fa(self, part, c, o=0, k=4):
        if part == 2 and self.role == 'A':
            return vr(C20 + o, k) if c == 0 else ar(4 * c + o, k)
        return vr(CA + 4 * c + o, k)

    def fb(self, part, n, o=0, k=4):
        if part == 2 and self.role == 'A':
            return ar(64 + 4 * n + o, k)
        return vr(CB + 4 * (n if part == 1 else 15 - n) + o, k)

    def c_read(self, part, c):
        va, vb = (vCA, vCB) if part == 1 else (vCA2, vCB2)
        return ([f"ds_read_b64_tr_b16 {self.fa(part,c,2*e2,2)}, v{va} offset:{256*c + 32*(1-e2)}" for e2 in range(2)] +
                [f"ds_read_b64_tr_b16 {self.fb(part,c,2*e2,2)}, v{vb} offset:{256*c + 32*e2}" for e2 in range(2)])

    def tile_epi(self, g):
        part, k, m = self.tiles[g]
        d = CACC + 4 * (g % NSL)
        p = CACC + 4 * ((g - 1) % NSL)
        dp = "wave_shr:1 row_mask:0xf bank_mask:0xf bound_ctrl:0"
        it = []
        for j, dst in ((3, d + 2), (2, d + 1), (1, CY + g)):
            it.append(f"v_add_f32_dpp v{dst}, v{d+j}, v{d+j-1} {dp}")
            if k:
                it.append(f"v_mov_b32_dpp v{d+j}, v{p+j} wave_shl:1 row_mask:0xf bank_mask:0xf")
        if g in (15, 23):
            va, mk = (vCRW, '0xffff0000') if g == 15 else (vCRW2, '0xff000000')
            it.append((f"s_mov_b32 exec_lo, 0\ns_mov_b32 exec_hi, {mk}\nds_write_b128 v{va}, {vr(d,4)}\ns_mov_b64 exec, -1", f'carw{part}'))
        return it

    def stage(self, g):
        it = []
        for t in (g, g + 1):
            j = t % 4
            it.append(f"v_mov_b32 v{CH+t//4}, v{CY+t}" if j == 0 else
                      f"v_mov_b32_dpp v{CH+t//4}, v{CY+t} row_shr:{4*j} row_mask:0x1 bank_mask:{hex(1 << j)}")
        return it + [f"v_cvt_pk_bf16_f32 v{CY+g}, v{CY+g}, v{CY+g+1}",
                     f"ds_write_b16 v{vZW}, v{CY+g} offset:{128*g}", f"ds_write_b16_d16_hi v{vZW}, v{CY+g} offset:{128*(g+1)}"]

    def conv_sched(self, nt, cpre, cap, sg0=0):
        mf, first = [], []
        for g, (part, k, m) in enumerate(self.tiles[:nt]):
            d = vr(CACC + 4 * (g % NSL), 4)
            first.append(len(mf))
            mf += [f"v_mfma_f32_16x16x32_bf16 {d}, {self.fa(part,c)}, {self.fb(part,m-c)}, {'0' if c == 0 else d}"
                   for c in range(m + 1)]
        first += [len(mf)] * 8
        S = Sched(mf, cap)
        LEAD = self.cfg.get('lead', 7)
        for g in range(1, nt):
            S.reserve(first[g] - 1)
        for c in range(cpre, 16):
            S.add('rd', self.c_read(1, c), 0, max(first[c] - LEAD, 0))
        if nt > 16 and self.role == 'A':
            r0 = self.cfg.get('r2A', 60)
            for c in range(16):
                S.add('rd2', self.c_read(2, c), r0, min(first[16 + c // 2] - LEAD, r0 + 12 + 7 * c))
            S.add('dp', self.dpatch(2), r0 + 20, first[16] - 2)
        elif nt > 16:
            for c in range(16):
                dl = max(first[16 + c // 2] - LEAD, first[15] + c + 1) if c else first[15] + 4
                S.add('rd', self.c_read(2, c), first[15] + c + 1, dl)
            S.add('dp', self.dpatch(2), first[15] + 8, first[16] - 2)
        self.sgrel = {}
        for g in range(nt - 1):
            dl = min(first[g + NSL - 1] - 1, first[g + 1] + (self.cfg.get('epl', 24) if g < 12 else 8))
            S.add('ep', self.tile_epi(g), first[g + 1] + 2, dl)
            if g & 1:
                self.sgrel[g - 1] = max(dl + 1, sg0)
        self.first = first
        return S

    def z_fix(self, part):
        qs = (0, 2) if part == 1 else (4,)
        va, st = (vCRR, 32) if part == 1 else (vCRR2, 64)
        it = [f"ds_read2_b32 {vr(CR+q,2)}, v{va} offset0:{1+st*(q % 4)} offset1:{1+st*(q % 4 + 1)}" for q in qs]
        for q in qs:
            it += [f"v_add_f32 v{CH+q}, v{CH+q}, v{CR+q}", f"v_add_f32 v{CH+q+1}, v{CH+q+1}, v{CR+q+1}",
                   f"v_cvt_pk_bf16_f32 v{CH+q}, v{CH+q}, v{CH+q+1}",
                   f"s_mov_b64 exec, 0x7777\nds_write_b16 v{vZF}, v{CH+q} offset:{512*q}\nds_write_b16_d16_hi v{vZF}, v{CH+q} offset:{512*(q+1)}\ns_mov_b64 exec, -1",
                   f"ds_read_b128 {vr(ZO+2*q,4)}, v{vZR} offset:{512*q}"]
        if part == 1:
            st = [(f"buffer_store_dwordx4 {vr(ZO,4)}, v{vZS}, {srd(S_WS)}, 0 offen sc1", 'zst1'),
                  (f"buffer_store_dwordx4 {vr(ZO+4,4)}, v{vZS}, {srd(S_WS)}, 0 offen offset:2048 sc1", 'zst1')]
        else:
            st = [(f"buffer_store_dwordx4 {vr(ZO+8,4)}, v{vZS2}, {srd(S_WS)}, 0 offen sc1", 'zst2')]
        return it, st

    def conv_run(self, S, nt, early, flag1=None, mid=((), (), ())):
        a = self.a
        for g in range(0, nt - 2, 2):
            S.add('sg', self.stage(g), self.sgrel[g], None)
            if early and g == 14:
                f1, s1 = self.z_fix(1)
                p = self.cfg.get('pE1', 146)
                S.th['sg'][-1][2] = p - 1
                S.add('sg', [('wait', 'carw1'), "s_barrier"], p, p + 1)
                S.add('sg', f1[:2], p + 1, p + 3)
                e1, e2 = self.cfg.get('e12', [6, 20])
                S.add('sg', f1[2:], p + e1, p + e1 + 10)
                S.add('sg', s1, p + e2, p + e2 + 2)
        f1in = early and self.cfg.get('f1in', 1)
        its = S.items(keep=('sg',))
        wi = self.cfg.get('wi' + self.role, 0)
        if wi:
            keep, n = [], 0
            for x in its:
                t = txt_of(x)
                if t.startswith('v_mfma'):
                    n += 1
                drop = n > wi and (t.startswith(('v_mfma', 'v_add_f32_dpp', 'v_mov_b32_dpp')) or t.startswith('ds_read_b64_tr_b16 v'))
                if not drop:
                    keep.append(x)
            its = keep
        a.run(its)
        self.info['conv'] = (S.over, S.under, len(S.left.get('sg', [])))
        a.run([self.stamp('conv')])
        if f1in:
            a.run([('wait', 'zst1'), flag1])
        a.run(mid[0])
        a.run(merge(S.left.get('sg', []) or ["s_nop 0"], self.tile_epi(nt - 1)))
        a.run(self.stage(nt - 2))
        a.run(mid[1])
        a.wait('carw2' if nt > 16 else 'carw1')
        a("s_barrier")
        parts = [2] if early else ([1, 2] if nt > 16 else [1])
        fs = [self.z_fix(p) for p in parts]
        if early and not f1in:
            a.run(fs[0][0][:1] + [('wait', 'zst1'), flag1] + fs[0][0][1:])
        else:
            a.run([x for f in fs for x in f[0]])
        a.run(mid[2])
        a.run([x for f in fs for x in f[1]])
        a.run([self.stamp('z_st')])

    def finish(self):
        a = self.a
        a.run([self.stamp('end')])
        amp = self.cfg.get('amp')
        if amp and amp[0] == self.role:
            if self.role == 'A':
                a(f"s_cmp_ge_u32 s{sID}, 30")
                a("s_cbranch_scc1 L_end")
            a("s_memrealtime s[100:101]")
            a("s_sub_u32 s98, s98, s96")
            a("s_mul_i32 s98, s98, 20")
            a("s_min_u32 s98, s98, 200000")
            a("s_add_u32 s98, s98, s100")
            a.label("L_amp")
            a("s_memrealtime s[100:101]")
            a("s_sub_u32 s100, s100, s98")
            a("s_cmp_lt_i32 s100, 0")
            a("s_cbranch_scc1 L_amp")
        if self.stamps:
            if not self.cfg.get('nodrain'):
                a.wait_all()
            a("s_memrealtime s[98:99]")
            a(f"v_writelane_b32 v255, s96, 30")
            a(f"v_writelane_b32 v255, s98, 31")
            for k in range(self.npoll):
                a(f"v_readlane_b32 s{sT0}, v254, {k}")
                a(f"v_writelane_b32 v255, s{sT0}, {24+k}")
            a(f"s_lshl2_add_u32 s{sT0}, s2, s{sW}")
            a(f"s_lshl_b32 s{sT0}, s{sT0}, 8")
            a(f"s_add_u32 s{sT0}, s{sT0}, {WS_DBG}")
            a(f"v_lshlrev_b32 v{vT}, 2, v0")
            a(f"buffer_store_dword v255, v{vT}, {srd(S_WS)}, s{sT0} offen")


KERNARG = {f"s{i}" for i in range(36, 68)}


def prog_A(cfg):
    P = Prog('A', cfg)
    a, stamp = P.a, P.stamp
    a.smem_pending = set(KERNARG) | {'s96', 's97'}
    FS1, FSU, FSZ = cfg.get('fs1', 32), cfg.get('fsu', 64), cfg.get('fsz', 32)
    NB, GR = cfg.get('nb', 14), cfg.get('grp', 2)
    sDG, sFT = sA, sB
    KW, HW = cfg.get('kw', 1), cfg.get('hw', 1)
    NC = 3 if cfg.get('third', 'A') == 'A' else 2
    NT = 8*NC
    if cfg.get('cpf', 1) and cfg.get('lay', 'C') != 'C':
        a.run(P.code_prefetch("L_Amain", "L_end"))
    a(f"s_mul_i32 s{sT0}, s{sID}, 52")
    a(f"s_lshr_b32 s{sT0}, s{sT0}, 8")
    a(f"s_mul_i32 s{sT1}, s{sT0}, 5")
    a(f"s_sub_u32 s{sDG}, s{sID}, s{sT1}")
    a(f"s_min_u32 s{sT0}, s{sT0}, 5")
    a(f"s_mul_i32 s{sFT}, s{sXQ}, 6")
    a(f"s_add_u32 s{sFT}, s{sFT}, s{sT0}")
    a(f"s_lshl4_add_u32 s{sT1}, s{sDG}, s{sW}")
    a(f"s_mul_i32 s{sT1}, s{sT1}, 205")
    a(f"s_lshr_b32 s{sT1}, s{sT1}, 10")
    sOWN = 38
    if cfg.get('rkA', 0):
        a(f"s_lshr_b32 s{sCNT}, s{sT0}, 1")
        a(f"s_mul_i32 s{sCNT}, s{sCNT}, {cfg.get('rkA', 0)}")
        a(f"s_add_u32 s{sT1}, s{sT1}, s{sCNT}")
        a(f"s_and_b32 s{sT1}, s{sT1}, 15")
    a(f"s_lshl_b32 s{TK}, s{sT1}, 10")
    a(f"s_add_u32 s{sT1}, s{TK}, 1024")
    a(f"s_and_b32 s{TK+1}, s{sT1}, 0x3c00")
    a(f"s_lshl_b32 s{sRING}, s{sW}, 12")
    a(f"s_mul_i32 s{sT0}, s{sW}, {512*3072}")
    a(f"s_lshl_b32 s{sT1}, s{sFT}, 7")
    a(f"s_add_u32 s{sT0}, s{sT0}, s{sT1}")
    a.run(P.weight_src(3072, sT0))
    a(f"s_mov_b32 s{S_W+2}, 6291456")
    a(f"s_mov_b32 s{S_W+3}, 0x20000")
    P.split0 = len(a.out)
    a(f"s_cmp_ge_u32 s{sID}, 30")
    a(f"s_cselect_b32 s{sSP}, {OOB}, 0")
    a(f"s_mov_b64 {sp(S_W)}, {sp(50)}")
    a("s_cbranch_scc1 L_Amain")
    a.run(P.w_step())
    a.run([stamp('start')])
    a.run(P.w_step())
    a("s_branch L_Amain")
    P.split = len(a.out)
    a.label("L_Amain")
    if cfg.get('lay', 'C') != 'C':
        a.run(P.lanes())
    if cfg.get('hlpA', 1):
        a(f"s_cmp_lt_u32 s{sID}, 30")
        a("s_cbranch_scc1 L_Anh")
        a.begin_cond('hlp')
        a(f"s_lshl1_add_u32 s{sT0}, s{sXQ}, 3")
        a(f"s_and_b32 s{sT0}, s{sT0}, 7")
        a(f"s_min_u32 s{sT0}, s{sT0}, 5")
        a(f"s_lshr_b32 s{sCNT}, s{sT0}, 1")
        a(f"s_mul_i32 s{sCNT}, s{sCNT}, {cfg.get('rkA', 0)}")
        a(f"s_add_u32 s{sCNT}, s{sCNT}, 15")
        a(f"s_mul_i32 s{sT1}, s{sXQ}, 6")
        a(f"s_add_u32 s{sT0}, s{sT0}, s{sT1}")
        a(f"s_lshl_b32 s{sT0}, s{sT0}, 7")
        a(f"s_mul_i32 s{sT1}, s{sW}, {512*3072}")
        a(f"s_add_u32 s{sU0}, s{sT0}, s{sT1}")
        for i in range(2):
            if i == 0:
                a(f"v_lshrrev_b32 v{vT}, 5, v0")
                a(f"v_lshl_add_u32 v{vT}, s{sDG}, 1, v{vT}")
                a(f"v_and_b32 v{vT2}, 31, v0")
            else:
                a(f"v_mov_b32 v{vT}, 4")
                a(f"v_lshl_add_u32 v{vT2}, s{sDG}, 4, v{vI}")
            a(f"v_add_u32 v{vT}, 1, v{vT}")
            a(f"v_lshl_add_u32 v{vT}, v{vT}, 4, s{sW}")
            a(f"v_mul_u32_u24 v{vT}, 205, v{vT}")
            a(f"v_lshrrev_b32 v{vT}, 10, v{vT}")
            a(f"v_add_u32 v{vT}, s{sCNT}, v{vT}")
            a(f"v_and_b32 v{vT}, 15, v{vT}")
            a(f"v_lshl_add_u32 v{vT}, v{vT}, 5, v{vT2}")
            a(f"v_mul_u32_u24 v{vT}, 3072, v{vT}")
            if i:
                a("s_mov_b64 exec, 0xffff")
            a(f"buffer_load_dword v{250+i}, v{vT}, {srd(S_W)}, s{sU0} offen")
        a("s_mov_b64 exec, -1")
        a.end_cond()
        a.label("L_Anh")
    HA = cfg.get('hlpA2', 0)
    if HA:
        a(f"s_lshl1_add_u32 s{sT0}, s{sXQ}, 3")
        a(f"s_and_b32 s{sT0}, s{sT0}, 7")
        a(f"s_mul_i32 s{sT1}, s{sXQ}, 6")
        a(f"s_add_u32 s{sU0}, s{sT0}, s{sT1}")
        a(f"s_sub_u32 s{sT1}, s{sFT}, s{sU0}")
        a(f"s_add_u32 s{sT1}, s{sT1}, 5")
        a(f"s_cmp_ge_u32 s{sT1}, 6")
        a(f"s_cselect_b32 s{sCNT}, 6, 0")
        a(f"s_sub_u32 s{sT1}, s{sT1}, s{sCNT}")
        a(f"s_lshl_b32 s{sU0}, s{sU0}, 7")
        a(f"s_cmp_ge_u32 s{sT1}, 5")
        a(f"s_cselect_b32 s{sU0}, {OOB}, s{sU0}")
        a(f"s_cmp_ge_u32 s{sT0}, 6")
        a(f"s_cselect_b32 s{sU0}, {OOB}, s{sU0}")
        a(f"s_or_b32 s{sU0}, s{sU0}, s{sSP}")
        a(f"s_lshr_b32 s{sT0}, s{sT0}, 1")
        a(f"s_mul_i32 s{sT0}, s{sT0}, {cfg.get('rkA', 0)}")
        a(f"s_add_u32 s{sCNT}, s{sDG}, 1")
        a(f"s_lshl4_add_u32 s{sCNT}, s{sCNT}, s{sW}")
        a(f"s_mul_i32 s{sCNT}, s{sCNT}, 205")
        a(f"s_lshr_b32 s{sCNT}, s{sCNT}, 10")
        a(f"s_add_u32 s{sT0}, s{sT0}, s{sCNT}")
        a(f"s_add_u32 s{sT0}, s{sT0}, 14")
        a(f"s_and_b32 s{sT0}, s{sT0}, 15")
        a(f"s_lshl4_add_u32 s{sT0}, s{sW}, s{sT0}")
        a(f"s_lshl_b32 s{sT0}, s{sT0}, 5")
        a(f"s_mul_i32 s{sT1}, s{sT1}, {HA}")
        a(f"s_add_u32 s{sT0}, s{sT0}, s{sT1}")
        a(f"s_add_u32 s{sT0}, s{sT0}, {32 - 5*HA}")
        a(f"v_add_u32 v{vT}, s{sT0}, v0")
        a(f"v_mul_u32_u24 v{vT}, 3072, v{vT}")
        a(f"s_mov_b64 exec, {hex((1 << HA) - 1)}")
        a(f"buffer_load_dword v249, v{vT}, {srd(S_W)}, s{sU0} offen")
        a("s_mov_b64 exec, -1")
    for (s, n) in ((S_WS, WS_SIZE), (S_SSM, 2621440)):
        a(f"s_mov_b32 s{s+2}, {n}")
        a(f"s_mov_b32 s{s+3}, 0x20000")
    for j in range(2, 16):
        a(f"s_add_u32 s{sT1}, s{TK+j-1}, 1024")
        a(f"s_and_b32 s{TK+j}, s{sT1}, 0x3c00")
    a(f"s_add_u32 s{S_WS}, s66, {cfg.get('wso', 0) << 20}")
    a(f"s_addc_u32 s{S_WS+1}, s67, 0")
    a(f"s_mov_b64 {sp(S_SSM)}, {sp(44)}")
    a.run(P.weight_dst(False))
    a.run(P.zflag_addr(sFJ, 128))
    a.run(P.conv_setup(NC))
    vHL, vRW, vRR, vUS, vEP, vX0 = 10, 44, 47, 48, 49, 50
    BL = 54
    g1set = [f"s_mul_i32 s{sOWN}, s{sFT}, {cfg.get('roA', 0)}", f"s_add_u32 s{sOWN}, s{sOWN}, s{sW}", f"s_and_b32 s{sOWN}, s{sOWN}, 3",
             f"s_lshl_b32 s{sCNT}, s{sDG}, 18", f"s_lshl_b32 s{sT1}, s{sW}, 14", f"s_add_u32 s{sCNT}, s{sCNT}, s{sT1}",
             f"s_add_u32 s{sCNT}, s{sCNT}, s{sSP}"]
    for i in range(4):
        g1set += [f"s_add_u32 s{sT0}, s{sOWN}, {i+1}",
                  f"s_and_b32 s{sT0}, s{sT0}, 3",
                  f"s_mul_i32 s{sT1}, s{sT0}, 12288",
                  f"s_add_u32 s{sT1}, s{sT1}, {L_RED + (i*4096 if i < 3 else 0)}",
                  f"v_add_u32 v{vRW+i}, s{sT1}, v1",
                  f"s_lshl_b32 s{sT0}, s{sT0}, 16",
                  f"s_add_u32 s{sT0}, s{sT0}, s{sCNT}",
                  f"v_add_u32 v{vHL+i}, s{sT0}, v1",
                  f"v_add_u32 v{vHL+4+i}, {20*65536}, v{vHL+i}"]
    g1set += [f"v_lshl_add_u32 v{vP0}, s{sW}, 5, v0",
              f"v_mul_u32_u24 v{vP0}, {FS1}, v{vP0}",
              f"v_add_u32 v{vP0}, {WS_F1}, v{vP0}",
              f"s_lshl_b32 s{sT0}, s{sFT}, 7",
              f"v_lshl_add_u32 v{vX0}, v{vH}, 3, s{sT0}",
              f"s_lshl2_add_u32 s{sT0}, s{sDG}, s{sOWN}",
              f"s_mul_i32 s{sFI}, s{sT0}, 24",
              f"s_add_u32 s{sFI}, s{sFI}, s{sFT}",
              f"s_mul_i32 s{sFI}, s{sFI}, {FSU}",
              f"s_add_u32 s{sFI}, s{sFI}, {WS_FU}",
              f"s_add_u32 s{sFI}, s{sFI}, s{sSP}",
              f"s_mul_i32 s{sT0}, s{sT0}, 48",
              f"s_lshl1_add_u32 s{sT0}, s{sFT}, s{sT0}",
              f"s_lshl_b32 s{sT0}, s{sT0}, 10",
              f"s_add_u32 s{sT0}, s{sT0}, {WS_U}",
              f"s_add_u32 s{sT0}, s{sT0}, s{sSP}",
              f"v_add_u32 v{vUS}, s{sT0}, v1",
              f"s_mov_b32 s{sU2}, 0xbdd2d3e8",
              f"s_mov_b32 s{sU3}, {20*48*1024}",
              f"v_mov_b32 v52, 0xc0135761"]
    a.run(g1set)
    a.run(P.conv_setup2(NC))
    a.run(P.epoch_load(vEP))
    for t in range(4):
        a(f"global_load_dwordx2 {vr(BL+2*t,2)}, v{vX0}, {sp(P_B1)} offset:{32*t}")
    a(f"s_cmp_ge_u32 s{sID}, 30")
    a("s_cbranch_scc1 L_Aspare")
    a.run(P.w_step())
    a.run(P.w_step())
    BI, RD, PD4 = 112, 144, 248
    bun = []
    for t in range(8):
        bun += [f"v_lshlrev_b32 v{BI+2*t}, 16, v{BL+t}", f"v_and_b32 v{BI+2*t+1}, 0xffff0000, v{BL+t}"]
    PA = cfg.get('pollA', 14)
    while P.nxt < 16:
        if P.nxt == 8:
            a.run(P.set_tag(vEP))
            a.run(bun)
        a.run([stamp(f'w{P.nxt}')])
        it = P.w_step()
        if P.nxt - 1 == PA:
            it.insert(9, P.poll_issue(vP0, 32, 1, PD4))
        a.run(it)
    while P.drn < PA:
        a.run(P.w_step())
    a.run([P.poll_check('f1', vP0, 32, 1, PD4), stamp('f1_ok')])
    BUFS = ([64 + 4*i for i in range(8)] + [128 + 4*i for i in range(4)] + [228 + 4*i for i in range(5)] + [208 + 4*i for i in range(3)])[:NB]

    def h_load(n):
        i, j = divmod(n, 16)
        return f"buffer_load_dwordx4 {vr(BUFS[n % NB],4)}, v{vHL+i}, {srd(S_WS)}, s{TK+j} offen {cfg.get('apol', 'sc1')}"
    hn = 0
    HE = cfg.get('hearly', 8)
    left = 16 - P.drn
    while P.drn < 16:
        for _ in range(HE // left):
            a(h_load(hn)); hn += 1
        a.run(P.w_step())
    ACC = (96, 192)
    Z, G0, UO = ACC[1], 160, 220
    for r in range(2):
        mf, pos = [], {}
        for q in range(64 // GR):
            for t in range(4):
                for n in range(q * GR, (q + 1) * GR):
                    i, j = divmod(n, 16)
                    d = vr(ACC[i & 1] + 4 * t, 4)
                    pos.setdefault(n, len(mf))
                    c = d if j else ('0' if i < 3 else vr(BI + 4 * t, 4))
                    mf.append(f"v_mfma_f32_16x16x32_bf16 {d}, {ar(16*j+4*t,4)}, {vr(BUFS[(64*r + n) % NB],4)}, {c}")
        S = Sched(mf)
        for n in range(64):
            S.reserve(pos[n] - 1)
        k = 0
        while hn < 128:
            n = hn - 64 * r
            free = 4 * GR * ((n - NB) // GR + 1) if n >= NB else 0
            p = max(free, 4 * (n - NB + GR) + 1, 2 * k)
            if p > 255:
                break
            S.add('h', [h_load(hn)], p, p)
            hn += 1
            k += 1
        S.add('st', [stamp(f'g1first{r}')], 0, 0)
        lasth = p if r else 0
        if r == 0 and cfg.get('h2', 1):
            p2 = cfg.get('pH2', 40)
            S.add('f2', [f"v_lshl_add_u32 v{vP0}, s{sW}, 5, v0", f"v_lshlrev_b32 v{vP0}, 4, v{vP0}", f"v_add_u32 v{vP0}, {WS_F1 + 0x4000}, v{vP0}",
                         P.poll_issue(vP0, 32, 1, PD4)], p2 - 4, p2)
            S.add('f2', [P.poll_check('f2', vP0, 32, 1, PD4)], 150, 152)
            assert 4 * (64 - NB + GR) + 1 > 153
        for i in range(3):
            S.add('red', [(f"ds_write_b128 v{vRW+i}, {vr(ACC[i & 1]+4*t,4)} offset:{t*1024}", f'redw{r}{i}') for t in range(4)],
                  64 * (i + 1) + 1, 64 * (i + 1) + 13, pace=4 if i < 2 else 3)
        pR = 192 + cfg.get('pR', 15)
        S.add('red', [('wait', f'redw{r}2'), "s_barrier"], pR, pR + 1)
        S.add('red', [f"ds_read_b128 {vr(RD+4*k,4)}, v{vRR} offset:{k*1024}" for k in range(12)], pR + 2, pR + 16)
        S.add('add', [f"v_add_f32 v{RD+k}, v{RD+k}, v{RD+16+k}" for k in range(16)] +
                     [f"v_add_f32 v{RD+k}, v{RD+k}, v{RD+32+k}" for k in range(16)], pR + 17, 255)
        if r == 1:
            S.add('set', [f"v_subrev_u32 v{vRW+i}, {L_RED}, v{vRW+i}" for i in range(4)], 2, 30)
            pD = cfg.get('pD0', 40)
            S.add('fl', [('wait', 'ust0'), stamp('barD0'), P.flag(sFI), f"s_add_u32 s{sFI}, s{sFI}, {20*24*FSU}"], pD, pD + 1)
            S.add('fl', [P.poll_check('fk', vP1, 16, KW, PD4), stamp('fk_ok')], 150, 152)
            for i, x in enumerate(P.ssm_loads(NC) + P.x_loads(NC)):
                S.add('h', [x], lasth + 4 * (i + 1), lasth + 4 * (i + 1))
        a.run(S.items())
        P.info[f'g1{r}'] = (S.over, S.under)
        a.run([stamp(f'g1mfma{r}')])
        side = []
        if r == 0:
            while hn < 64 + NB:
                side.append(h_load(hn)); hn += 1
            a.run(side)
        for t in range(8):
            a(f"v_pk_add_f32 {vr(Z+2*t,2)}, {vr(Z+2*t,2)}, {vr(RD+2*t,2)}")
        for t in range(8):
            a(f"v_pk_mul_f32 {vr(G0+2*t,2)}, {vr(Z+2*t,2)}, {vr(Z+2*t,2)}")
        for t in range(8):
            a(f"v_pk_fma_f32 {vr(G0+2*t,2)}, {vr(G0+2*t,2)}, {sp(sU2)}, v[52:53] op_sel_hi:[1,0,0]")
        for t in range(8):
            a(f"v_pk_mul_f32 {vr(G0+2*t,2)}, {vr(G0+2*t,2)}, {vr(Z+2*t,2)}")
        for t in range(16):
            a(f"v_exp_f32 v{G0+t}, v{G0+t}")
        for t in range(8):
            a(f"v_pk_add_f32 {vr(G0+2*t,2)}, {vr(G0+2*t,2)}, 1.0 op_sel_hi:[1,0]")
        for t in range(16):
            a(f"v_rcp_f32 v{G0+t}, v{G0+t}")
        for t in range(8):
            a(f"v_pk_mul_f32 {vr(G0+2*t,2)}, {vr(G0+2*t,2)}, {vr(Z+2*t,2)}")
        for t in range(8):
            a(f"v_cvt_pk_bf16_f32 v{UO+t}, v{G0+2*t}, v{G0+2*t+1}")
        for half in range(2):
            a(f"buffer_store_dwordx4 {vr(UO+4*half,4)}, v{vUS}, {srd(S_WS)}, {'0' if r == 0 else f's{sU3}'} offen offset:{1024*half} sc1", tok=f'ust{r}')
        if r == 0:
            a(P.poll_issue(vP1, 16, KW, PD4))
        a.run([stamp(f'ust{r}')])
    a.label("L_Ajoin")
    a.wait('xd')
    a("s_barrier")
    CPA = cfg.get('cpreA', 4)
    a.run(P.conv_pre(CPA))
    S = P.conv_sched(NT, CPA, 2)
    pD = cfg.get('pD1', 30)
    S.add('fl', [('wait', 'ust1'), stamp('barD1'), P.flag(sFI)], pD, pD + 1)
    Z2 = NC == 3 and cfg.get('z2', 1)
    P.conv_run(S, NT, Z2, P.flag(sFJ))
    if Z2:
        a(f"s_add_u32 s{sFJ}, s{sJ}, 128")
        a(f"s_mul_i32 s{sFJ}, s{sFJ}, {FSZ}")
        a(f"s_lshl2_add_u32 s{sFJ}, s{sW}, s{sFJ}")
        a(f"s_add_u32 s{sFJ}, s{sFJ}, {WS_FZ + 16}")
    a.wait('zst2' if NC == 3 else 'zst1')
    a(P.flag(sFJ))
    a(f"s_cmp_lg_u32 s{sJ}, 31")
    a("s_cbranch_scc1 L_Adone")
    st, P.stamps = P.stamps, False
    a(f"v_lshl_add_u32 v{vP0}, s{sW}, 5, v0")
    a(f"v_mul_u32_u24 v{vP0}, {cfg.get('fsk', 16)}, v{vP0}")
    a(f"v_add_u32 v{vP0}, {WS_FK}, v{vP0}")
    a(P.poll_issue(vP0, 32, KW, PD4))
    a.run([P.poll_check('e0', vP0, 32, KW, PD4)])
    for k in range(2):
        a(f"s_mul_i32 s{sT0}, s{sW}, 120")
        a(f"s_add_u32 s{sT0}, s{sT0}, {60*k}")
        a(f"v_add_u32 v{vP0}, s{sT0}, v0")
        a(f"v_mul_u32_u24 v{vP0}, {FSU}, v{vP0}")
        a(f"v_add_u32 v{vP0}, {WS_FU}, v{vP0}")
        a(P.poll_issue(vP0, 60))
        a.run([P.poll_check(f'e{k+1}', vP0, 60)])
    a(f"v_lshl_add_u32 v{vP0}, s{sW}, 5, v0")
    a(f"v_mul_u32_u24 v{vP0}, {FSZ}, v{vP0}")
    a(f"v_add_u32 v{vP0}, {WS_FZ + 158*FSZ}, v{vP0}")
    a(P.poll_issue(vP0, 2, 4, PD4))
    a.run([P.poll_check('e3', vP0, 2, 4, PD4)])
    P.stamps = st
    a("s_barrier")
    a(f"s_mov_b32 s{sT0}, {WS_EP}")
    a(P.flag(sT0))
    a.label("L_Adone")
    P.finish()
    a("s_endpgm")
    b = Asm()
    P.a, st, P.stamps = b, P.stamps, False
    b.label("L_Aspare")
    b(f"s_mul_i32 s{sT0}, s{sXQ}, 160")
    b(f"s_mul_i32 s{sT1}, s{sDG}, {16*NC}")
    b(f"s_add_u32 s{sT0}, s{sT0}, s{sT1}")
    b(f"s_add_u32 s{sT0}, s{sT0}, 64")
    b(f"v_lshrrev_b32 v{vT}, 3, v0")
    b(f"v_add_lshl_u32 v{vT}, s{sT0}, v{vT}, 12")
    b(f"v_and_b32 v{vT2}, 7, v0")
    b(f"v_lshl_add_u32 v{vT2}, s{sW}, 3, v{vT2}")
    b(f"v_lshl_add_u32 v{vT}, v{vT2}, 7, v{vT}")
    b("s_waitcnt vmcnt(0)")
    b.run(P.set_tag(vEP))
    for i in range(2 * NC if cfg.get('spf', 1) else 0):
        b(f"s_mov_b32 s{sT0}, {i*8*4096}")
        b(f"buffer_load_dword v{64+i}, v{vT}, {srd(S_SSM)}, s{sT0} offen")
    b.run(P.ssm_loads(NC))
    b(P.poll_issue(vP1, 16, KW, PD4))
    b.run([P.poll_check('fs', vP1, 16, KW, PD4)])
    for i in range(2 * NC if cfg.get('xpf', 0) else 0):
        b(f"s_mov_b32 s{sT0}, {WS_KV + i*8*4096}")
        b(f"buffer_load_dword v{vPD}, v{vT}, {srd(S_WS)}, s{sT0} offen sc1") if False else b.raw(f"    buffer_load_dword v{vPD}, v{vT}, {srd(S_WS)}, s{sT0} offen sc1")
    b.run(P.x_loads(NC))
    b("s_waitcnt vmcnt(0) lgkmcnt(0)")
    b("s_branch L_Ajoin")
    a.out += b.out
    P.a, P.stamps = a, st
    return P


def prog_B(cfg):
    P = Prog('B', cfg)
    a, stamp = P.a, P.stamp
    a.smem_pending = set(KERNARG) | {'s96', 's97'}
    FS1, FSU, FSZ, FSK = cfg.get('fs1', 32), cfg.get('fsu', 64), cfg.get('fsz', 32), cfg.get('fsk', 16)
    sDT, sST = sA, sB
    KW, HW = cfg.get('kw', 1), cfg.get('hw', 1)
    NC = 3 if cfg.get('third', 'A') == 'B' else 2
    NT = 8*NC
    NMF = 136 if NC == 2 else 208
    a.label("L_B")
    if cfg.get('cpf', 1) and cfg.get('lay', 'C') != 'C':
        a.run(P.code_prefetch("L_pcB", "L_Amain"))
    a.run(P.lanes())
    XR, GR = 160, 180
    vQ, vG, vEP = 200, 201, 202
    a(f"s_lshr_b32 s{sT0}, s{sJ}, 1")
    a(f"s_lshl_b32 s{sT0}, s{sT0}, 5")
    a(f"s_and_b32 s{sT1}, s{sJ}, 1")
    a(f"s_lshl3_add_u32 s{sCNT}, s{sT1}, s{sT0}")
    a(f"s_lshl2_add_u32 s{sCNT}, s{sT2}, s{sCNT}")
    a(f"s_lshl4_add_u32 s{sCNT}, s{sT3}, s{sCNT}")
    a(f"v_add_u32 v{vQ}, s{sCNT}, v{vH}")
    a(f"v_mul_u32_u24 v{vQ}, 1280, v{vQ}")
    a(f"v_lshlrev_b32 v{vG}, 4, v{vI}")
    a(f"v_add_u32 v{vQ}, v{vQ}, v{vG}")
    def kvset():
        a(f"s_lshl3_add_u32 s{sU0}, s{sW}, s{sT0}")
        a(f"s_mul_i32 s{sU0}, s{sU0}, 1280")
        a(f"s_mul_i32 s{sU1}, s{sT1}, 640")
        a(f"s_add_u32 s{sU0}, s{sU0}, s{sU1}")
        a(f"v_add_u32 v{vKV}, s{sU0}, v1")
        a(f"s_mul_i32 s{sU0}, s{sW}, {(-7*1280) & 0xffffffff}")
        a(f"s_sub_u32 s{sU0}, s{sU0}, {4*1280}")
        a(f"v_add_u32 v{vKH}, s{sU0}, v{vKV}")
        a(f"s_mul_i32 s{sKL}, s{sW}, {8*PK + 32}")
        for (s, n) in ((S_K, 2621440), (S_V, 2621440), (S_WS, WS_SIZE), (S_W, 6291456), (S_SSM, 2621440)):
            a(f"s_mov_b32 s{s+2}, {n}")
            a(f"s_mov_b32 s{s+3}, 0x20000")
        a(f"s_lshl2_add_u32 s{sU0}, s{sT1}, s{sW}")
        a(f"s_mul_i32 s{sU0}, s{sU0}, 80")
        a(f"v_add_u32 v{vCH}, s{sU0}, v{vI}")
        a(f"v_lshlrev_b32 v{vS0}, 3, v{vCH}")
    vKV, vKH, vCH, vS0 = 60, 61, 62, 63
    sKL = sFI
    if not cfg.get('qfirst', 1):
        kvset()
    P.split0 = len(a.out)
    for i in range(5):
        a(f"global_load_dwordx4 {vr(XR+4*i,4)}, v{vQ}, {sp(P_Q)} offset:{256*i}")
    a.run([stamp('start')])
    if cfg.get('qfirst', 1):
        kvset()
    for (s, p) in ((S_K, 38), (S_V, 40), (S_W, 56), (S_SSM, 44)):
        a(f"s_mov_b64 {sp(s)}, {sp(p)}")
    a(f"s_add_u32 s{S_WS}, s66, {cfg.get('wso', 0) << 20}")
    a(f"s_addc_u32 s{S_WS+1}, s67, 0")
    a.run(P.epoch_load(vEP))

    def kv_dma(which, i):
        if which == 'h':
            return [f"s_mul_i32 s{sU0}, s{sW}, {PK}", f"s_add_u32 m0, s{sU0}, {L_KI}", "s_mov_b32 exec_hi, 0xff",
                    f"buffer_load_dwordx4 v{vKH}, {srd(S_K)}, 0 offen {cfg.get('kpol', '')} lds", "s_mov_b32 exec_hi, -1"]
        base = L_KI + (4 + i) * PK + (32 if i >= 4 else 0) if which == 'k' else L_VI + i * PK
        return [f"s_add_u32 m0, s{sKL}, {base}", f"s_mov_b32 s{sU0}, {i*1280}", "s_mov_b32 exec_hi, 0xff",
                (f"buffer_load_dwordx4 v{vKV}, {srd(S_K if which == 'k' else S_V)}, s{sU0} offen {cfg.get('kpol', '')} lds", 'kvdma'), "s_mov_b32 exec_hi, -1"]

    def kv_batch(lst):
        it = []
        for (wh, i) in lst:
            x = kv_dma(wh, i)
            if it:
                it.pop()
                x.remove("s_mov_b32 exec_hi, 0xff")
            it += x
        return it
    kvq = [('h', 0)] + [('k', i) for i in range(8)] + [('v', i) for i in range(8)]
    a(f"s_and_b32 s{sDT}, s{sID}, 3")
    a(f"s_lshr_b32 s{sT0}, s{sID}, 2")
    a(f"s_lshl3_add_u32 s{sST}, s{sXQ}, s{sT0}")
    vLW, vA1, vHS, vGS, vKVA, vKVS, vGV = 44, 46, 48, 49, 50, 51, 58
    a(f"v_lshl_add_u32 v{vT}, s{sW}, 2, v{vH}")
    a(f"s_lshl_b32 s{sT0}, s{sJ}, 4")
    a(f"v_add_lshl_u32 v{vGS}, s{sT0}, v{vT}, 2")
    a(f"v_add_u32 v{vGS}, {WS_G}, v{vGS}")
    a(f"v_mul_u32_u24 v{vT}, {PL}, v{vT}")
    a(f"v_add_u32 v{vT}, {L_LN}, v{vT}")
    a(f"v_add_u32 v{vLW}, v{vT}, v{vG}")
    a(f"v_mul_u32_u24 v{vT}, {PL}, v{vR}")
    a(f"v_mul_u32_u24 v{vT2}, 320, v{vH}")
    a(f"s_mul_i32 s{sT0}, s{sT3}, {8*PL}")
    a(f"s_lshl3_add_u32 s{sT0}, s{sT2}, s{sT0}")
    a(f"s_add_u32 s{sT0}, s{sT0}, {L_LN}")
    a(f"v_add3_u32 v{vT}, v{vT}, v{vT2}, s{sT0}")
    a(f"v_lshl_add_u32 v{vA1}, v{vC}, 4, v{vT}")
    a(f"s_lshl1_add_u32 s{sT0}, s{sJ}, s{sT3}")
    a(f"s_lshl_b32 s{sT0}, s{sT0}, 8")
    a(f"s_lshl_b32 s{sT1}, s{sT2}, 16")
    a(f"s_add_u32 s{sT0}, s{sT0}, s{sT1}")
    a(f"v_mul_u32_u24 v{vHS}, {5*65536}, v{vH}")
    a(f"v_lshl_add_u32 v{vHS}, v{vI}, 4, v{vHS}")
    a(f"v_add_u32 v{vHS}, s{sT0}, v{vHS}")
    a(f"s_mul_i32 s52, s{sT2}, {19*65536}")
    a(f"s_add_u32 s52, s52, {4*65536}")
    a(f"s_mov_b32 s53, {20*65536}")
    a(f"s_mov_b32 s64, {22*65536}")
    a(f"v_mul_u32_u24 v{vT}, {8*PK + 32}, v{vH}")
    a(f"v_mul_u32_u24 v{vT2}, {PK}, v{vR}")
    a(f"s_mul_i32 s{sT0}, s{sW}, 160")
    a(f"s_add_u32 s{sT0}, s{sT0}, {L_KI}")
    a(f"v_add3_u32 v{vT}, v{vT}, v{vT2}, s{sT0}")
    a(f"v_lshl_add_u32 v{vKVA}, v{vC}, 3, v{vT}")
    a(f"v_lshlrev_b32 v{vKVS}, 12, v{vCH}")
    a(f"v_lshl_add_u32 v{vKVS}, v{vH}, 4, v{vKVS}")
    a(f"s_lshr_b32 s{sT0}, s{sJ}, 1")
    a(f"s_lshl_b32 s{sT1}, s{sT0}, 6")
    a(f"s_add_u32 s{sT1}, s{sT1}, {WS_KV}")
    a(f"v_add_u32 v{vKVS}, s{sT1}, v{vKVS}")
    a(f"s_and_b32 s{sT1}, s{sJ}, 1")
    a(f"s_lshl_b32 s{sT1}, s{sT1}, 6")
    a(f"s_add_u32 s{sFJ}, s{sT0}, s{sT1}")
    a(f"s_mul_i32 s{sFJ}, s{sFJ}, {FSK}")
    a(f"s_lshl2_add_u32 s{sFJ}, s{sW}, s{sFJ}")
    a(f"s_add_u32 s{sFJ}, s{sFJ}, {WS_FK}")
    a(f"s_mul_i32 s{sU3}, s{sJ}, {FS1}")
    a(f"s_add_u32 s{sU3}, s{sU3}, {WS_F1}")
    for k in range(1, 5):
        a(f"s_mov_b32 s{79+k}, {k*65536}")
    for i in range(5):
        a(f"global_load_dwordx4 {vr(GR+4*i,4)}, v{vG}, {sp(P_GW)} offset:{256*i}")
    nq = cfg.get('kvq0', 6)
    if nq:
        a.run(kv_batch(kvq[:nq])); kvq = kvq[nq:]
    if cfg.get('ptouch'):
        a(f"v_lshlrev_b32 v{vT}, {cfg['ptouch']}, v0")
        a(f"s_lshl_b32 s{sT0}, s{sJ}, 9")
        a(P.setexec(min(64, (5 << 20) >> cfg['ptouch'])) if (5 << 20) >> cfg['ptouch'] < 64 else "s_nop 0")
        a(f"buffer_load_dword v251, v{vT}, {srd(S_WS)}, s{sT0} offen")
        a("s_mov_b64 exec, -1")
    a.run([stamp('iss2')])

    S1, S2, vRS, vNM, XF = 64, 65, 66, 68, 72
    DP = ("quad_perm:[1,0,3,2]", "quad_perm:[2,3,0,1]", "row_half_mirror", "row_mirror")
    unp = []
    for i in range(20):
        unp += [f"v_lshlrev_b32 v{XF+2*i}, 16, v{XR+i}", f"v_and_b32 v{XF+2*i+1}, 0xffff0000, v{XR+i}"]
    ln = [f"s_mov_b32 s{sU2}, 0x3f803f80"]
    for i in range(20):
        c = lambda r: "0" if i == 0 else f"v{r}"
        ln += [f"v_dot2_f32_bf16 v{S1}, v{XR+i}, s{sU2}, {c(S1)}", f"v_dot2_f32_bf16 v{S2}, v{XR+i}, v{XR+i}, {c(S2)}"]
    inv = 0x3ACCCCCD
    red = []
    for m in DP:
        red += [f"v_add_f32_dpp v{x}, v{x}, v{x} {m} row_mask:0xf bank_mask:0xf" for x in (S1, S2)]
    red += [f"v_mul_f32 v{S1}, {hex(inv)}, v{S1}",
            f"v_mul_f32 v{S2}, {hex(inv)}, v{S2}",
            f"v_fma_f32 v{S2}, -v{S1}, v{S1}, v{S2}",
            f"v_max_f32 v{S2}, 0, v{S2}",
            f"v_add_f32 v{S2}, 0x3727c5ac, v{S2}",
            f"v_rsq_f32 v{vRS}, v{S2}",
            f"v_mul_f32_e64 v{vNM}, -v{S1}, v{vRS}"]
    ln += unp[:3] + merge(red, unp[3:])
    HP = 112
    for i in range(5):
        ln += [f"v_pk_fma_f32 {vr(XF+2*k,2)}, {vr(XF+2*k,2)}, {vr(vRS,2)}, {vr(vNM,2)} op_sel_hi:[1,0,0]" for k in range(4*i, 4*i+4)]
        ln += [f"v_cvt_pk_bf16_f32 v{HP+k}, v{XF+2*k}, v{XF+2*k+1}" for k in range(4*i, 4*i+4)]
        ln.append((f"ds_write_b128 v{vLW}, {vr(HP+4*i,4)} offset:{256*i}", 'lnw'))
    gate = [f"v_dot2_f32_bf16 v{vGV}, v{XR+i}, v{GR+i}, {'0' if i == 0 else f'v{vGV}'}" for i in range(20)]
    gate += [f"v_add_f32_dpp v{vGV}, v{vGV}, v{vGV} {m} row_mask:0xf bank_mask:0xf" for m in DP]
    gate += [f"v_mul_f32 v{vGV}, 0xbfb8aa3b, v{vGV}", f"v_exp_f32 v{vGV}, v{vGV}", f"v_add_f32 v{vGV}, 1.0, v{vGV}", f"v_rcp_f32 v{vGV}, v{vGV}",
             "s_mov_b32 exec_lo, 0x10001", "s_mov_b32 exec_hi, 0x10001",
             (f"buffer_store_dword v{vGV}, v{vGS}, {srd(S_WS)}, 0 offen sc1", 'hst2'), "s_mov_b64 exec, -1"]
    a.run(ln[:41])
    a.run([stamp('q_in')])
    nq = cfg.get('kvq1', 4)
    if nq:
        a.run(kv_batch(kvq[:nq])); kvq = kvq[nq:]
    a.run(ln[41:])
    a.wait('lnw')
    a("s_barrier")
    a.run([stamp('barL')])
    HB = 64
    H2 = cfg.get('h2', 1)
    for u, off in enumerate((0, 64, 256, 128, 192)):
        for e2 in range(2):
            a(f"ds_read_b64_tr_b16 {vr(HB+4*u+2*e2,2)}, v{vA1} offset:{off + e2*4*PL}")
    for u, so in enumerate(("0", "s81", "s52", "s53", "s64")):
        a(f"buffer_store_dwordx4 {vr(HB+4*u,4)}, v{vHS}, {srd(S_WS)}, {so} offen sc1", tok='hst' if u < 3 or not H2 else None)
    a.run([stamp('h_iss')])
    a.run(gate)
    a.run(P.set_tag(vEP))
    vQO, vQO2, vGA, vX1, vQO1 = 36, 41, 253, 250, 15
    QR, vGG, vB2 = 44, 16, 17

    def bigset():
        a(f"s_bfe_u32 s{sT0}, s{sST}, 0x10001")
        a(f"s_mul_i32 s{sT0}, s{sT0}, {cfg.get('rkB', 0)}")
        a(f"s_add_u32 s{sT0}, s{sT0}, s{sDT}")
        a(f"s_and_b32 s{sT0}, s{sT0}, 3")
        a(f"s_mul_i32 s{TK}, s{sT0}, 3072")
        a(f"s_and_b32 s{sSP}, s{sST}, {cfg.get('swB', 1)}")
        for j in range(1, 12):
            a(f"s_add_u32 s{sT0}, s{TK+j-1}, 1024")
            a(f"s_cmp_lt_u32 s{sT0}, {12*1024}")
            a(f"s_cselect_b32 s{TK+j}, s{sT0}, 0")
        a(f"s_mul_i32 s{sT0}, s{sW}, {384*4096}")
        a(f"s_lshl_b32 s{sT1}, s{sST}, 7")
        a(f"s_add_u32 s{sT0}, s{sT0}, s{sT1}")
        a.run(P.weight_src(4096, sT0) + P.weight_dst(True))
        a.run(P.conv_setup(NC))
        a.run(P.conv_setup2(NC))
        a(f"s_lshl2_add_u32 s{sT0}, s{sST}, s{sW}")
        a(f"v_lshl_add_u32 v{vT}, s{sT0}, 4, v{vI}")
        a(f"v_lshlrev_b32 v{vX1}, 1, v{vT}")
        a(f"v_mul_u32_u24 v{vT}, 1280, v{vT}")
        a(f"s_mul_i32 s{sT0}, s{sDT}, 320")
        a(f"v_add_u32 v{vT}, s{sT0}, v{vT}")
        a(f"v_lshl_add_u32 v{vQO2}, v{vH}, 4, v{vT}")
        a(f"s_lshl_b32 s{sT0}, s{sSP}, 6")
        a(f"v_add_u32 v{vQO}, s{sT0}, v{vQO2}")
        a(f"v_subrev_u32 v{vQO1}, s{sT0}, v{vQO2}")
        a(f"s_lshl1_add_u32 s{sT0}, s{sST}, s{sT2}")
        a(f"s_lshl3_add_u32 s{sT0}, s{sT0}, s{sT3}")
        a(f"s_lshl_b32 s{sT0}, s{sT0}, 4")
        a(f"s_add_u32 s{sT0}, s{sT0}, {WS_G}")
        a(f"v_lshl_add_u32 v{vT}, v{vR}, 5, s{sT0}")
        a(f"v_lshl_add_u32 v{vGA}, v{vC}, 2, v{vT}")

    SP = cfg.get('setp', 1)
    if SP == 0:
        bigset()
    nq = cfg.get('kvq2', 7)
    if nq:
        a.run(kv_batch(kvq[:nq])); kvq = kvq[nq:]
    a.wait('hst' if H2 else 'hst2')
    a.run([P.flag_wg(sU3, 'f1'), stamp('barH')])
    if kvq:
        a.run(kv_batch(kvq))
    CF = 148
    for u in range(5):
        a(f"global_load_dwordx2 {vr(CF+2*u,2)}, v{vS0}, {sp(P_SH)} offset:{128*u}")
    if SP == 1:
        bigset()
    a.run(P.ssm_loads(NC))

    def helper():
        HR = cfg.get('hlpB', 6)
        if HR:
            a(f"s_add_u32 s{sT0}, s{sST}, 4")
            a(f"s_and_b32 s{sT0}, s{sT0}, 7")
            a(f"s_mul_i32 s{sT1}, s{sT0}, {HR}")
            a(f"s_cmp_eq_u32 s{sT0}, 7")
            a(f"s_cselect_b32 s{sU2}, {OOB}, 0")
            a(f"s_lshl2_add_u32 s{sT0}, s{sW}, s{sDT}")
            a(f"s_mul_i32 s{sT0}, s{sT0}, 96")
            a(f"s_add_u32 s{sT0}, s{sT0}, s{sT1}")
            a(f"s_add_u32 s{sT0}, s{sT0}, {96 - 7*HR}")
            a(f"v_add_lshl_u32 v{vT}, s{sT0}, v0, 12")
            a(f"s_lshl_b32 s{sT0}, s{sXQ}, 10")
            a(f"s_add_u32 s{sT0}, s{sT0}, 384")
            a(f"s_add_u32 s{sU2}, s{sU2}, s{sT0}")
            a(f"s_mov_b64 exec, {hex((1 << HR) - 1)}")
            a(f"buffer_load_dword v251, v{vT}, {srd(S_W)}, s{sU2} offen")
            a("s_mov_b64 exec, -1")
    WP = cfg.get('wBpre', 1)
    if WP:
        helper()
    if WP >= 2:
        a.run(P.w_step())

    if H2:
        a(f"s_mul_i32 s{sU3}, s{sJ}, 16")
        a(f"s_add_u32 s{sU3}, s{sU3}, {WS_F1 + 0x4000}")
        a.wait('kvdma', 'hst2')
        a.run([P.flag_wg(sU3, 'f2'), stamp('barK')])
    else:
        a.wait('kvdma')
        a.run(["s_barrier", stamp('barK')])
    KR, KO = 64, 160

    def kv_reads(u):
        it = [f"ds_read_b64_tr_b16 {vr(KR+10*u+2*j,2)}, v{vKVA} offset:{32*u + 4*j*PK + (32 if j == 2 else 0)}" for j in range(3)]
        it += [f"ds_read_b64_tr_b16 {vr(KR+10*u+6+2*j,2)}, v{vKVA} offset:{32*u + 4*j*PK + (L_VI-L_KI)}" for j in range(2)]
        return it

    def kv_compute(u):
        it = []
        k = KR + 10 * u
        c10, c32 = CF + 2 * u, CF + 2 * u + 1
        SH, AC, VF, OUT = 116, 124, 132, KO + 4 * u
        for n in range(5):
            it.append(f"v_alignbit_b32 v{SH+n}, v{k+n+1}, v{k+n}, 16")
        pr = lambda e: (k + (e + 1) // 2, k + (e + 3) // 2) if e & 1 else (SH + e // 2, SH + e // 2 + 1)
        for e in range(8):
            it.append(f"v_dot2_f32_bf16 v{AC+e}, v{pr(e)[0]}, v{c32}, 0")
        for e in range(8):
            it.append(f"v_dot2_f32_bf16 v{AC+e}, v{pr(e)[1]}, v{c10}, v{AC+e}")
        for n in range(4):
            it.append(f"v_lshlrev_b32 v{VF+2*n}, 16, v{k+6+n}")
            it.append(f"v_and_b32 v{VF+2*n+1}, 0xffff0000, v{k+6+n}")
        for n in range(4):
            it.append(f"v_pk_mul_f32 {vr(AC+2*n,2)}, {vr(AC+2*n,2)}, {vr(VF+2*n,2)}")
        for n in range(4):
            it.append(f"v_cvt_pk_bf16_f32 v{OUT+n}, v{AC+2*n}, v{AC+2*n+1}")
        it.append((f"buffer_store_dwordx4 {vr(OUT,4)}, v{vKVS}, {srd(S_WS)}, {'0' if u == 0 else f's{79+u}'} offen sc1", 'kvst'))
        return it
    a.run(kv_reads(0) + kv_reads(1))
    if WP & 1:
        a.run(P.w_step())
    for u in range(10):
        a(f"v_alignbit_b32 v{CF+u}, v{CF+u}, v{CF+u}, 16")
    for u in range(5):
        a.run(merge(kv_compute(u), kv_reads(u + 2) if u < 3 else []))
    a.run([stamp('kv_done')])
    if not cfg.get('wBpre', 1):
        helper()
    for _ in range(cfg.get('wB0', 1)):
        a.run(P.w_step())
    a.wait('kvst')
    a.run([P.flag_wg(sFJ, 'fk') if KW == 1 else P.flag(sFJ), stamp('barV')] + P.zflag_addr(sFJ, 0))
    a(f"global_load_ushort v{vB2}, v{vX1}, {sp(P_B2)}")
    while P.nxt < cfg.get('pollB', 7):
        a.run(P.w_step())
    a(P.poll_issue(vP1, 16, KW, 204))
    for _ in range(cfg.get('pollgapB', 0)):
        a.run(P.w_step())
    a.run([P.poll_check('fk', vP1, 16, KW, 204), stamp('fk_ok')])
    a.run(P.x_loads(NC))
    qa = lambda p: f"v{(vQO, vQO1, vQO, vQO1, vQO2)[p]}"
    qld = [f"global_load_dwordx4 {vr(QR+4*p,4)}, {qa(p)}, {sp(P_Q)} offset:{64*p}" for p in range(5)]
    for _ in range(cfg.get('xgapB', 1)):
        a.run(P.w_step())
    a.wait('xd')
    a("s_barrier")
    a.run([stamp('barC')])

    CPB = cfg.get('cpreB', 4)
    a.run(P.conv_pre(CPB))
    while P.nxt < NR:
        a.run(P.w_step())
    S = P.conv_sched(NT, CPB, cfg.get('ccap', 2.3), cfg.get('sg0', 100))
    cS, cE = cfg.get('cS', 0), cfg.get('cE', NMF - 36)
    nst = 12 - P.nxt
    per = (cE - cS) / (nst + 1)
    for r in range(nst):
        p0 = cS + r * per
        it = P.w_step()
        for k, x in enumerate(it[:9]):
            S.add('wd', [x], int(p0 + k * per / 14), int(p0 + (k + 1) * per / 14))
        p1 = p0 + per
        S.add('w', it[9:11], int(p1 - per / 5), int(p1) - 1)
        S.add('w', it[11:12], int(p1), int(p1))
        for k, x in enumerate(it[12:]):
            S.add('w', [x], int(p1 + k * per / 4), int(p1 + k * per / 4))
    S.add('wd', P.w_step(), int(cE - per), int(cE) - 1, pace=per / 11)
    tail = []
    while P.drn < 12:
        tail += P.w_step()
    S.add('wd', tail, cE, None, pace=(NMF - cE) / len(tail))
    vUL = 10
    uset = [f"s_mul_i32 s{sT0}, s{sDT}, 120",
            f"s_mul_i32 s{sT1}, s{sW}, 6",
            f"s_add_u32 s{sT0}, s{sT0}, s{sT1}",
            f"v_mul_u32_u24 v{vT}, 43, v0",
            f"v_lshrrev_b32 v{vT}, 8, v{vT}",
            f"v_mul_u32_u24 v{vT}, 18, v{vT}",
            f"v_add3_u32 v{vP0}, s{sT0}, v0, v{vT}",
            f"v_mul_u32_u24 v{vP0}, {FSU}, v{vP0}",
            f"v_add_u32 v{vP0}, {WS_FU}, v{vP0}",
            f"s_mul_i32 s{sT0}, s{sDT}, {5*48}",
            f"s_lshl1_add_u32 s{sT0}, s{sT1}, s{sT0}",
            f"s_lshl_b32 s{sT0}, s{sT0}, 10",
            f"s_add_u32 s{sT0}, s{sT0}, {WS_U}",
            f"v_add_u32 v{vUL+4}, s{sT0}, v1",
            f"s_mul_i32 s{sT0}, s{sSP}, {96*1024}",
            f"v_add_u32 v{vUL}, s{sT0}, v{vUL+4}",
            f"s_sub_u32 s{sT0}, {96*1024}, s{sT0}",
            f"v_add_u32 v{vUL+2}, s{sT0}, v{vUL+4}",
            f"v_add_u32 v{vUL+1}, {48*1024}, v{vUL}",
            f"v_add_u32 v{vUL+3}, {48*1024}, v{vUL+2}",
            f"v_add_u32 v{vUL+4}, {192*1024}, v{vUL+4}"]
    S.add('set', uset, 40, 118)
    for k, x in enumerate(qld):
        qp = cfg.get('qS', 20) + cfg.get('qD', 16) * k
        S.add('q', [x], qp, qp)
    pU = NMF - cfg.get('pU0', 16)
    S.add('set', [P.poll_issue(vP0, 30)], pU, pU)
    NB2, GR2, UE = cfg.get('nb2', 16), cfg.get('grp2', 2), cfg.get('uearly', 8)
    UBUF = ([ar(192 + 4*i, 4) for i in range(16)] + [vr(92 + 4*i, 4) for i in range(4)])[:NB2]
    vUM = 220

    def u_load(n):
        m, j = divmod(n, 12)
        return f"buffer_load_dwordx4 {UBUF[n % NB2]}, v{vUL+m if m < 5 else vUM+m-5}, {srd(S_WS)}, s{TK+j} offen {cfg.get('apol', 'sc1')}"
    ustart = [P.poll_check('fu0', vP0, 30), stamp('fu0_ok')] + [u_load(n) for n in range(UE)]
    UEP = cfg.get('uep', 1)
    P.conv_run(S, NT, False, mid=[ustart if k == UEP else [] for k in range(3)])

    NB2, GR2, UE = cfg.get('nb2', 16), cfg.get('grp2', 2), cfg.get('uearly', 8)
    UBUF = ([ar(192 + 4*i, 4) for i in range(16)] + [vr(92 + 4*i, 4) for i in range(4)])[:NB2]
    AC2, OWN, RD2, RD4 = (108, 120), 132, 172, 208
    GQ, ZL, ZRg, ZU = 228, 64, 76, 88
    vZG, vZLW, vZT, vOG, vR2R, vR2W, vUM = 20, 21, 22, 28, 33, 25, 220
    vR2S, vR2X, PDZ, vP2 = 23, 30, 226, 225
    opol = cfg.get('opol', 'sc1')
    g2set = [f"v_add_u32 v{vUM+m}, {cfg.get('wiU', 20*48*1024)}, v{vUL+m}" for m in range(5)]
    g2set += [f"v_add_u32 v{vP0}, {20*24*FSU}, v{vP0}",
              f"v_lshrrev_b32 v{vT}, 3, v0",
              f"v_lshl_add_u32 v{vT}, s{sW}, 3, v{vT}",
              f"v_and_b32 v{vT2}, 7, v0",
              f"v_lshlrev_b32 v{vT2}, 4, v{vT2}",
              f"v_lshl_add_u32 v{vZG}, v{vT}, 12, v{vT2}",
              f"v_mul_u32_u24 v{vT}, {PZ}, v{vT}",
              f"v_add_u32 v{vT}, v{vT}, v{vT2}",
              f"v_add_u32 v{vZLW}, {L_ZI}, v{vT}",
              f"s_mul_i32 s{sT0}, s{sDT}, {160*4096}",
              f"s_lshl_b32 s{sT1}, s{sST}, 7",
              f"s_add_u32 s{sT0}, s{sT0}, s{sT1}",
              f"s_add_u32 s{sT0}, s{sT0}, {WS_Z}",
              f"s_lshl_b32 s{sT1}, s{sSP}, 17",
              f"s_add_u32 s80, s{sT0}, s{sT1}",
              f"s_sub_u32 s81, s{sT0}, s{sT1}",
              f"s_add_u32 s81, s81, {32*4096}",
              f"s_add_u32 s82, s80, {64*4096}",
              f"s_add_u32 s83, s81, {64*4096}",
              f"s_add_u32 s{sX0}, s{sT0}, {128*4096}",
              f"v_lshl_add_u32 v{vT}, v{vH}, 3, v{vR}",
              f"v_mul_u32_u24 v{vT}, {PZ}, v{vT}",
              f"s_lshl_b32 s{sT0}, s{sW}, 5",
              f"s_add_u32 s{sT0}, s{sT0}, {L_ZI}",
              f"v_lshl_add_u32 v{vZT}, v{vC}, 3, s{sT0}",
              f"v_add_u32 v{vZT}, v{vZT}, v{vT}"]
    for jn in range(1, 4):
        g2set += [f"s_xor_b32 s{sT0}, s{sW}, {jn}",
                  f"s_mul_i32 s{sT0}, s{sT0}, 3072",
                  f"s_add_u32 s{sT0}, s{sT0}, {(jn-1)*1024}",
                  f"v_add_u32 v{vR2W+jn-1}, s{sT0}, v1",
                  f"v_add_u32 v{vR2X+jn-1}, {L_RED}, v{vR2W+jn-1}"]
    g2set += [f"s_mul_i32 s{sT0}, s{sW}, 3072",
              f"v_add_u32 v{vR2R}, s{sT0}, v1",
              f"v_add_u32 v{vR2S}, {L_RED}, v{vR2R}",
              f"s_lshl3_add_u32 s{sT0}, s{sDT}, s{sW}",
              f"s_lshl_b32 s{sT0}, s{sT0}, 2",
              f"v_lshl_add_u32 v{vP1}, v{vR}, 4, v{vC}",
              f"v_add_u32 v{vP1}, s{sT0}, v{vP1}",
              f"v_mul_u32_u24 v{vP1}, {FSZ}, v{vP1}",
              f"s_and_b32 s{sT1}, s{sST}, 1",
              f"s_lshl_b32 s{sT1}, s{sT1}, 3",
              f"s_add_u32 s{sT1}, s{sT1}, {WS_FZ}",
              f"v_add_u32 v{vP1}, s{sT1}, v{vP1}",
              f"s_lshl2_add_u32 s{sT0}, s{sDT}, s{sW}",
              f"v_and_b32 v{vT}, 7, v0",
              f"v_lshl_add_u32 v{vP2}, s{sT0}, 3, v{vT}",
              f"v_mul_u32_u24 v{vP2}, {FSZ}, v{vP2}"]
    Z2 = NC == 2 and cfg.get('z2', 1)
    if Z2:
        g2set += [f"s_and_b32 s{sT1}, s{sST}, 3", f"s_lshl_b32 s{sT1}, s{sT1}, 2", f"s_add_u32 s{sT1}, s{sT1}, {WS_FZ + 128*FSZ + 16}",
                  f"v_add_u32 v{vP2}, s{sT1}, v{vP2}"]
    else:
        g2set += [f"v_add_u32 v{vP2}, s{sT1}, v{vP2}", f"v_cmp_lt_u32 vcc, 7, v0", "s_nop 1", f"v_cndmask_b32 v{vP1}, v{vP1}, v{vP2}, vcc"]
    nz0 = 16 if NC == 3 else 8
    nz1 = 16 if NC == 2 and not Z2 else 8
    zso = (80, 81, 82, 83, sX0)
    ptile = ((0, 1), (2, 3), (5, 6), (7, 8), (4, 9))

    def u_load(n):
        m, j = divmod(n, 12)
        return f"buffer_load_dwordx4 {UBUF[n % NB2]}, v{vUL+m if m < 5 else vUM+m-5}, {srd(S_WS)}, s{TK+j} offen {cfg.get('apol', 'sc1')}"

    def mf2(n, jn):
        m, j = divmod(n, 12)
        d = vr(OWN + 4 * m, 4) if jn == 0 else vr(AC2[m & 1] + 4 * (jn - 1), 4)
        return f"v_mfma_f32_16x16x32_bf16 {d}, {UBUF[n % NB2]}, {ar(16*j+4*jn,4)}, {'0' if j == 0 else d}"
    rd = lambda m, s: [f"ds_read_b128 {vr(RD2+12*s+4*k,4)}, v{vR2R if m < 5 else vR2S} offset:{(m % 5)*12288 + k*1024}" for k in range(3)]
    ad = lambda m, s: [f"v_add_f32 v{OWN+4*m+r}, v{OWN+4*m+r}, v{RD2+12*s+4*k+r}" for k in range(3) for r in range(4)]
    wr = lambda m: [(f"ds_write_b128 v{(vR2W if m < 5 else vR2X)+jn-1}, {vr(AC2[m & 1]+4*(jn-1),4)} offset:{(m % 5)*12288}", f'r2w{m}') for jn in range(1, 4)]
    z_ld = lambda ps: [f"buffer_load_dwordx4 {vr(ZL+4*i,4)}, v{vZG}, {srd(S_WS)}, s{zso[p]} offen sc1" for i, p in enumerate(ps)]
    z_wr = lambda ps: [f"ds_write_b128 v{vZLW}, {vr(ZL+4*i,4)} offset:{p*32*PZ}" for i, p in enumerate(ps)]
    z_rd = lambda p: [f"ds_read_b64_tr_b16 {vr(ZRg+4*(p % 3)+2*hh,2)}, v{vZT} offset:{(32*p + 4*hh)*PZ}" for hh in range(2)]

    def gq(p):
        it = []
        pp = GQ + 8 * (p % 3)
        for k in range(4):
            it += [f"v_lshlrev_b32 v{pp+2*k}, 16, v{QR+4*p+k}", f"v_and_b32 v{pp+2*k+1}, 0xffff0000, v{QR+4*p+k}",
                   f"v_mul_f32 v{pp+2*k}, v{pp+2*k}, v{vGG}", f"v_mul_f32 v{pp+2*k+1}, v{pp+2*k+1}, v{vGG}"]
        return it
    sc = lambda m: [f"v_fma_f32 v{OWN+4*m+k}, v{OWN+4*m+k}, v{vOG}, v{vB2}" for k in range(4)]

    def fin(p, hh):
        it = []
        o = OWN + 4 * ptile[p][hh]
        for k in range(2):
            zu, z, g = ZU + 2 * k, ZRg + 4 * (p % 3) + 2 * hh + k, GQ + 8 * (p % 3) + 4 * hh + 2 * k
            it += [f"v_lshlrev_b32 v{zu}, 16, v{z}", f"v_and_b32 v{zu+1}, 0xffff0000, v{z}"]
            if (p, hh) == (4, 1):
                it += [f"v_fma_f32 v{g}, v{g}, v{zu}, v{vB2}", f"v_fma_f32 v{g+1}, v{g+1}, v{zu+1}, v{vB2}"]
            else:
                it += [f"v_fmac_f32 v{o+2*k}, v{g}, v{zu}", f"v_fmac_f32 v{o+2*k+1}, v{g+1}, v{zu+1}",
                       f"v_cvt_pk_bf16_f32 v{QR+4*p+2*hh+k}, v{o+2*k}, v{o+2*k+1}"]
        return it
    ost = lambda p: [f"global_store_dwordx4 {qa(p)}, {vr(QR+4*p,4)}, {sp(P_OUT)} offset:{64*p} {opol if p < cfg.get('opn', 5) else ''}"]
    if cfg.get('dly'):
        a(f"s_sleep {cfg['dly']}")
    if UEP == 3:
        a.run(ustart)
    a(f"buffer_load_dword v{vGG}, v{vGA}, {srd(S_WS)}, 0 offen sc1")
    a.run(g2set)
    mf, pos = [], {}
    for q in range(120 // GR2):
        ns = range(q * GR2, (q + 1) * GR2)
        for jn in ((1, 2, 3, 0) if ns[0] < 108 else (1, 2, 3)):
            for n in ns:
                pos.setdefault(n, len(mf))
                mf.append(mf2(n, jn))
    pown = len(mf)
    mf += [mf2(n, 0) for n in range(108, 120)]
    S = Sched(mf)
    for n in range(120):
        S.reserve(pos[n] - 1)
    UC = cfg.get('pUC', 210)
    k = 0
    for n in range(UE, 120):
        free = 4 * GR2 * ((n - NB2) // GR2 + 1) if n >= NB2 else 0
        p = max(free, 4 * (n - NB2 + GR2) + 1, 2 * k)
        if n >= 60:
            p = max(p, min(UC + 1 + 2 * (n - 60), 4 * n - 2 if UC < 236 else max(239, 4 * (n - UE))))
        if n == 60:
            S.add('u', [P.poll_check('fu1', vP0, 30), stamp('fu1_ok')], p, p)
            pZ0 = p
        S.add('u', [u_load(n)], p, p)
        k += 1
    lastu = p
    S.add('st', [stamp('g2first')], 0, 0)
    S.add('st', [stamp('g2mid')], 240, 240)
    pF = cfg.get('pF', 40)
    S.add('z', [('wait', 'zst2' if NC == 3 else 'zst1'), stamp('barF'), P.flag(sFJ)], pF, pF + 1)
    zB = (0, 1) if NC == 2 else (0, 1, 4)
    zA = (2, 3, 4) if NC == 2 and not Z2 else (2, 3)
    UP = UC - cfg.get('pUP', 44)
    S.add('z', [P.poll_issue(vP0, 30), P.poll_issue(vP1, nz0, 2, PDZ)], UP, UP + 1)
    S.add('z', [P.poll_check('fz0', vP1, nz0, 2, PDZ), stamp('fz0_ok')] + z_ld(zB) + [f"v_add_u32 v{vP1}, {128*FSZ}, v{vP1}"], pZ0 + 3, pZ0 + 14, pace=2)
    ZP1, ZC1 = cfg.get('zp1', [325, 372])
    S.add('z', [P.poll_issue(vP1, nz1, 2, PDZ)], ZP1, ZP1)
    S.add('z', [P.poll_check('fz1', vP1, nz1, 2, PDZ), stamp('fz1_ok')] + z_ld(zA), ZC1, ZC1 + 8, pace=2)
    if Z2:
        ZP2, ZC2 = cfg.get('zp2', [390, 434])
        S.add('z2', [P.poll_issue(vP2, 8)], ZP2, ZP2)
        S.add('z2', [P.poll_check('fz2', vP2, 8), stamp('fz2_ok'),
                    f"buffer_load_dwordx4 {vr(ZL+8,4)}, v{vZG}, {srd(S_WS)}, s{zso[4]} offen sc1"], ZC2, ZC2 + 1)
    S.add('fin', [f"v_lshlrev_b32 v{vB2}, 16, v{vB2}", f"v_sub_f32 v{vOG}, 1.0, v{vGG}", f"v_mul_f32 v{vB2}, v{vB2}, v{vOG}"] + gq(0) + gq(1) + gq(2), 44, 200)
    OS = cfg.get('osat', 450)
    bars = cfg.get('bars', [3, 5, 7, 8])
    zlate = cfg.get('zlate', 0)
    flat = lambda l: [x for y in l for x in y]
    done = 0
    tailz = []
    for m in range(9):
        p = 48 * (m + 1)
        if m == 5:
            S.add('red', z_wr(zB), p - 14, p - 1, pace=4)
        if m == 8 and not zlate:
            S.add('red', z_wr(zA), p - 14, p - 1, pace=4)
        S.add('red', wr(m), p, p + 8, pace=3)
        if m in bars:
            S.add('red', [('wait', f'r2w{m}'), "s_barrier"], p + 11, p + 12)
            ms = list(range(done, m + 1))
            done = m + 1
            dl = None if m == 8 else 48 * (bars[bars.index(m) + 1] + 1) + 10
            it = []
            if m == 5:
                it += z_rd(0) + z_rd(1)
            if m == 8 and not zlate:
                it += z_rd(2) + z_rd(3) + ([] if Z2 else z_rd(4))
            it += flat(rd(t, t % 3) for t in ms[:3])
            if m == 8 and not zlate:
                it += ([] if Z2 else fin(4, 0) + fin(4, 1)) + fin(2, 0)
            if m == 5 and ms[0] > 1:
                it += fin(0, 0) + fin(0, 1)
            for i, t in enumerate(ms):
                it += ad(t, t % 3) + (rd(ms[i + 3], t % 3) if i + 3 < len(ms) else []) + sc(t)
            if m == 5:
                it += (fin(0, 0) + fin(0, 1) if ms[0] <= 1 else []) + fin(1, 0) + fin(1, 1) + gq(3) + gq(4)
                dl = min(dl, OS - 1)
                S.add('os', ost(0) + ost(1), OS, OS + 4, pace=3)
            if m == 8:
                last = fin(2, 1) + ost(2) + fin(3, 0) + fin(3, 1) + ost(3)
                if zlate:
                    tailz = fin(2, 0) + last + fin(4, 0) + fin(4, 1)
                else:
                    it += last
            S.add('fin', it, p + 13, dl)
    if zlate:
        S.add('red', z_wr(zA), pown - 8, pown, pace=3)
    S.add('red', wr(9), pown + 1, pown + 6, pace=2)
    ZIN = cfg.get('zin', 1)
    zw2 = (f"ds_write_b128 v{vZLW}, {vr(ZL+8,4)} offset:{4*32*PZ}", 'zw2')
    if Z2 and ZIN:
        S.add('red', [zw2], pown + 8, pown + 8)
    d2 = cfg.get('d2', '')
    post = []
    if 'z' in d2:
        a.run([x[0] for x in S.th['z'][:3]])
        post += [x[0] for x in S.th['z'][3:] + S.th.get('z2', [])]; S.th['z'] = []; S.th['z2'] = []
        S.th['u'] = [x for x in S.th['u'] if not callable(x[0])]
    for nm in ('red', 'fin', 'os'):
        if nm[0] in d2:
            post += [x[0] for x in S.th[nm]]; S.th[nm] = []
    its = S.items(keep=('fin',))
    if 'u' in d2:
        its = [x for x in its if not txt_of(x).startswith('buffer_load_dwordx4 a[')]
    if 'b' in d2:
        its = [x for x in its if txt_of(x) != 's_barrier']
    if 'w' in d2:
        its = [x for x in its if not (txt_of(x).startswith('ds_write_b128') and x[1:] != ('r2w9',)) and not (txt_of(x) == 'wait' and x[1].startswith('r2w'))]
    a.run(its)
    a.run([stamp('g2x')] + ([] if cfg.get('nopost') else post))
    P.info['g2'] = (S.over, S.under, len(S.left.get('fin', [])))
    a.run([stamp('g2mfma')])
    left = S.left.get('fin', [])
    if Z2:
        assert not zlate
        tailz = fin(4, 0) + fin(4, 1)
        if not ZIN:
            a.run(left)
            left = []
            a(zw2[0], tok='zw2')
        a.wait('zw2')
    if 'r2w9' in a.toks:
        a.wait('r2w9')
    a("s_barrier")
    if Z2:
        a.run(z_rd(4))
    for k in range(3):
        a(f"ds_read_b128 {vr(RD4+4*k,4)}, v{vR2S} offset:{4*12288 + k*1024}")
    if zlate:
        a.run(z_rd(2) + z_rd(3) + z_rd(4))
    a.run(left + tailz)
    for k in range(3):
        for hh in range(2):
            a(f"v_pk_add_f32 {vr(OWN+36+2*hh,2)}, {vr(OWN+36+2*hh,2)}, {vr(RD4+4*k+2*hh,2)}")
    g = GQ + 8 + 4
    for hh in range(2):
        a(f"v_pk_fma_f32 {vr(g+2*hh,2)}, {vr(OWN+36+2*hh,2)}, {vr(vOG,2)}, {vr(g+2*hh,2)} op_sel_hi:[1,0,1]")
    for hh in range(2):
        a(f"v_cvt_pk_bf16_f32 v{QR+18+hh}, v{g+2*hh}, v{g+2*hh+1}")
    a.run(ost(4))
    P.finish()
    a("s_endpgm")
    return P


def gen(cfg):
    h = Asm()
    h("s_load_dwordx16 s[36:51], s[0:1], 0")
    h("s_load_dwordx16 s[52:67], s[0:1], 56")
    if cfg.get('stamps') or cfg.get('amp'):
        h("s_memrealtime s[96:97]")
    h("s_cmp_ge_u32 s2, 256")
    h("s_cbranch_scc1 L_end")
    h("v_lshrrev_b32 v1, 6, v0")
    h("v_and_b32 v0, 63, v0")
    h(f"v_readfirstlane_b32 s{sW}, v1")
    rb = cfg.get('rolebit', 0)
    h(f"s_lshr_b32 s{sID}, s2, 3")
    if rb == 0:
        h(f"s_bfe_u32 s{sXQ}, s2, 0x20001")
    elif rb == 2:
        h(f"s_and_b32 s{sXQ}, s2, 3")
    else:
        h(f"s_bfe_u32 s{sXQ}, s2, 0x10002")
        h(f"s_and_b32 s{sT0}, s2, 1")
        h(f"s_lshl1_add_u32 s{sXQ}, s{sXQ}, s{sT0}")
    h(f"s_lshl_b32 s{sJ}, s{sXQ}, 5")
    h(f"s_add_u32 s{sJ}, s{sJ}, s{sID}")
    lay = cfg.get('lay', 'C')
    if lay == 'C':
        if cfg.get('cpf', 1):
            h(f"s_bitcmp0_b32 s2, {rb}")
            h(f"s_cselect_b32 s{sT1}, L_Amain-L_pcC, 0")
            h.run([x.replace("@-L_pcC", f"s{sT1}") for x in Prog('C', cfg).code_prefetch("@", "L_end")])
    elif lay == 'A':
        h(f"s_bitcmp1_b32 s2, {rb}")
        h("s_cbranch_scc1 L_B")
    else:
        h(f"s_bitcmp0_b32 s2, {rb}")
        h("s_cbranch_scc1 L_A")
    A, B = prog_A(cfg), prog_B(cfg)
    ref = open(f"cdna_kernels/{NAME}.s.ref").read().split('\n')
    head = [l for l in ref if l.startswith(';') and '@launch' not in l and 'Override' not in l and 'grid=ceil' not in l]
    txt = '\n'.join(head) + f"\n; @launch grid=(256,1,1) block=(256,1,1) lds={L_END}\n"
    txt += f""".amdgcn_target "amdgcn-amd-amdhsa--gfx950"
.text
.globl {NAME}_kernel
.p2align 8
.type {NAME}_kernel,@function
{NAME}_kernel:
"""
    if lay == 'C':
        J = lambda l: '\n'.join(l) + '\n'
        txt += (h.text() + J(A.a.out[:A.split0]) + J(B.a.out[:B.split0]) + f"    s_waitcnt lgkmcnt(0)\n    s_bitcmp1_b32 s2, {rb}\n    s_cbranch_scc1 L_Bgo\n" +
                J(A.a.out[A.split0:A.split]) + "L_Bgo:\n" + J(B.a.out[B.split0:]) + ".p2align 7\n" + J(A.a.out[A.split:]) + "L_end:\n    s_endpgm\n")
    elif lay == 'A':
        txt += h.text() + '\n'.join(A.a.out[:A.split]) + '\n' + B.a.text() + ".p2align 7\n" + '\n'.join(A.a.out[A.split:]) + "\nL_end:\n    s_endpgm\n"
    else:
        txt += h.text() + B.a.text() + ".p2align 7\nL_A:\n" + '\n'.join(A.a.out[:A.split-1] + A.a.out[A.split:]) + "\nL_end:\n    s_endpgm\n"
    txt += f""".section .rodata,"a"
.p2align 6
.amdhsa_kernel {NAME}_kernel
  .amdhsa_next_free_vgpr 512
  .amdhsa_next_free_sgpr 102
  .amdhsa_accum_offset 256
  .amdhsa_group_segment_fixed_size 0
  .amdhsa_kernarg_size 120
  .amdhsa_user_sgpr_count 2
  .amdhsa_user_sgpr_kernarg_segment_ptr 1
  .amdhsa_system_sgpr_workgroup_id_x 1
  .amdhsa_float_denorm_mode_32 3
.end_amdhsa_kernel
"""
    return txt, dict(n_ins=(A.a.n_ins, B.a.n_ins), n_nop=(A.a.n_nop, B.a.n_nop), stamps=B.names, stampsA=A.names,
                     rolebit=rb, sched=(A.info, B.info))


if __name__ == "__main__":
    import json
    out = sys.argv[1]
    cfg = json.loads(sys.argv[2]) if len(sys.argv) > 2 else {}
    txt, info = gen(cfg)
    open(out, 'w').write(txt)
    print(out, info)


def dmap(T, i):
    dt, m = divmod(T, 5)
    r, g = dt >> 2, dt & 3
    P, hh = (2 * r + (m >> 1), m & 1) if m < 4 else (4, r)
    return 160 * g + 32 * P + 8 * (i >> 2) + 4 * hh + (i & 3)
```

```python
import sys
from asmlib import Asm, merge, Sched

NAME = "gated_mix__ssm_conv_h3__mixer_token_mlp__prompt"

WS_H, WS_U, WS_KV, WS_Z, WS_G = 0x0, 0x280000, 0x480000, 0x700000, 0x980000
WS_F1, WS_FK, WS_FU, WS_FZ, WS_EP, WS_DBG = 0x990000, 0x998000, 0x9A0000, 0x9B0000, 0x9C0000, 0x9D0000
WS_SIZE = 0xA10000
OOB = 0x7F000000
TAGC = 0x9E3779B9

NR = 4
L_RED = 65536
PL = 1344
L_LN = 32768
PK = 704
L_KI = L_RED
L_VI = L_RED + 25600
L_ZSTG = L_RED + 4 * 12288
L_CK = L_RED + 61440
KP, KPAD = 4224, 96
L_CX = L_CK + 3 * KP
XP, XPAD = 4608, 512
L_CAR = L_CX + 3 * XP
L_END = L_CAR + 1600
L_ZI = L_CK
PZ = 144

S_WS, S_K, S_V, S_W, S_SSM = 4, 8, 12, 16, 24
P_Q, P_SH, P_D, P_B1, P_B2, P_GW, P_OUT = 36, 42, 46, 54, 58, 60, 62
TK = 68
sW, sXQ, sID, sA, sB, sJ, sSP, sTAG, sRING, sC0, sFI, sFJ = range(84, 96)
sT0, sT1, sT2, sT3 = 32, 33, 34, 35
sU0, sU1, sU2, sU3 = 20, 21, 22, 23
sX0, sX1, sX2 = 31, 48, 49
sC2 = 39
sCNT = 3
vH, vI, vR, vC, vT, vT2 = 37, 38, 39, 40, 42, 43
VW, VT = 2, 6
vPD = 18
vCA, vCB, vCA2, vCB2 = 20, 21, 22, 23
vCRW, vCRW2, vCRR, vCRR2, vZW, vZR, vZS, vZS2, vCW = 25, 26, 27, 28, 29, 30, 31, 32, 33
vP0, vP1, vTAG = 35, 24, 34
CA, CB, CACC, CY, NSL = 64, 128, 192, 216, 6
CH, CR, ZO = 240, 246, 216
vZF = 252
C20 = 56


def srd(n):
    return f"s[{n}:{n+3}]"


def sp(n):
    return f"s[{n}:{n+1}]"


def vr(n, k):
    return f"v[{n}:{n+k-1}]"


def ar(n, k):
    return f"a[{n}:{n+k-1}]"


def txt_of(x):
    return x if isinstance(x, str) else (x[0] if isinstance(x, tuple) else '')


class Prog:
    def __init__(self, role, cfg):
        self.a = Asm()
        self.role = role
        self.cfg = cfg
        self.stamps = cfg.get('stamps', False)
        self.names = []
        self.npoll = 0
        self.nxt = self.drn = 0
        self.nstep = 16 if role == 'A' else 12
        self.info = {}

    def stamp(self, name):
        def f(a):
            st = self.stamps
            amp = self.cfg.get('amp')
            if amp and amp == [self.role, name]:
                a("s_memrealtime s[98:99]")
            if not st or (st != 1 and name not in st and name not in ('start', 'end')) or (st == 1 and name[0] == 'w' and name != 'w8'):
                return
            k = len(self.names)
            a("s_memtime s[98:99]")
            a("s_memrealtime s[100:101]")
            a(f"v_writelane_b32 v255, s98, {k}")
            a(f"v_writelane_b32 v255, s100, {32+k}")
            self.names.append(name)
        f.cost = 0
        return f

    def weight_src(self, pitch, sbase):
        it = [f"v_lshrrev_b32 v{vT}, 3, v0",
              f"v_and_b32 v{vT2}, 6, v{vT}",
              f"v_xor_b32 v{vT2}, v{vT2}, v0",
              f"v_and_b32 v{vT2}, 7, v{vT2}",
              f"v_mul_u32_u24 v{vT}, {pitch}, v{vT}",
              f"v_lshl_add_u32 v{vT}, v{vT2}, 4, v{vT}",
              f"v_add_u32 v{VW}, s{sbase}, v{vT}"]
        for i in range(1, 4):
            it.append(f"v_add_u32 v{VW+i}, {8*pitch-1024}, v{VW+i-1}")
        return it

    def weight_dst(self, xorw):
        it = [f"v_lshrrev_b32 v{vT}, 2, v0",
              f"v_lshlrev_b32 v{vT}, 7, v{vT}",
              f"v_lshl_add_u32 v{vT}, v{vC}, 3, v{vT}",
              f"v_bfe_u32 v{vT2}, v0, 3, 2"]
        if xorw:
            it.append(f"v_xor_b32 v{vT2}, s{sW}, v{vT2}")
        it += [f"v_lshl_add_u32 v{vT}, v{vT2}, 5, v{vT}",
               f"v_add_u32 v{VT}, s{sRING}, v{vT}"]
        for t in range(1, 4):
            it.append(f"v_xor_b32 v{VT+t}, {t*32}, v{VT}")
        return it

    def w_issue(self, j):
        it = [f"s_mul_i32 s{sU1}, s{TK+j}, {96 if self.role == 'A' else 128}",
              f"s_add_u32 m0, s{sRING}, {(j % NR)*16384}"]
        if j >= NR:
            it.append(('wait', f'wr{j-NR}'))
        for i in range(4):
            it.append((f"buffer_load_dwordx4 v{VW+i}, {srd(S_W)}, s{sU1} offen offset:{i*1024} {self.cfg.get('wpol', '')} lds", f'wd{j}'))
        return it

    def w_drain(self, j):
        it = [('wait', f'wd{j}')]
        for t in range(4):
            for e2 in range(2):
                it.append((f"ds_read_b64_tr_b16 {ar(16*j+4*t+2*e2,2)}, v{VT+t} offset:{(j % NR)*16384 + e2*2048}", f'wr{j}'))
        return it

    def w_step(self):
        it = []
        if self.nxt >= NR or self.nxt == self.nstep:
            it += self.w_drain(self.drn); self.drn += 1
        if self.nxt < self.nstep:
            it += self.w_issue(self.nxt); self.nxt += 1
        return it

    def flag(self, soff):
        return f"s_mov_b64 exec, 1\nbuffer_store_dword v{vTAG}, v0, {srd(S_WS)}, s{soff} offen sc1\ns_mov_b64 exec, -1"

    def flag_wg(self, soff, name):
        def f(a):
            a("s_barrier")
            a(f"s_cmp_lg_u32 s{sW}, 0")
            a(f"s_cbranch_scc1 L_nf_{name}")
            a.begin_cond(name)
            a(self.flag(soff))
            a.end_cond()
            a.label(f"L_nf_{name}")
        return f

    def set_tag(self, v):
        return [f"v_readfirstlane_b32 s{sTAG}, v{v}", f"s_add_u32 s{sTAG}, s{sTAG}, {hex(TAGC)}", f"v_mov_b32 v{vTAG}, s{sTAG}"]

    @staticmethod
    def setexec(n):
        if n == 32:
            return "s_mov_b32 exec_hi, 0"
        if n > 32:
            return f"s_mov_b32 exec_hi, {hex((1 << (n-32)) - 1)}"
        return f"s_mov_b64 exec, {hex((1 << n) - 1)}"

    def poll_load(self, va, wd, vd):
        if wd == 1:
            return f"buffer_load_dword v{vd}, v{va}, {srd(S_WS)}, 0 offen sc1"
        return f"buffer_load_dwordx{wd} {vr(vd,wd)}, v{va}, {srd(S_WS)}, 0 offen sc1"

    def poll_issue(self, va, n=64, wd=1, vd=vPD):
        it = [self.setexec(n)] if n < 64 else []
        it.append(self.poll_load(va, wd, vd))
        if n < 64:
            it.append("s_mov_b64 exec, -1")
        return "\n".join(it)

    def poll_check(self, name, va, n=64, wd=1, vd=vPD):
        name = self.role + name

        def cmp(a):
            if wd == 1:
                a(f"v_cmp_ne_u32 vcc, s{sTAG}, v{vd}")
                return
            a(f"v_xor_b32 v{vd}, s{sTAG}, v{vd}")
            for k in range(1, wd):
                a(f"v_bitop3_b32 v{vd}, v{vd}, v{vd+k}, v{vTAG} bitop3:0xf6")
            a(f"v_cmp_ne_u32 vcc, 0, v{vd}")

        def f(a):
            if n < 64:
                a(self.setexec(n))
            cmp(a)
            a(f"s_mov_b32 s{sCNT}, 0")
            a(f"s_branch L_pk_{name}" if name[1:] in self.cfg.get('nopoll', []) else f"s_cbranch_vccz L_pk_{name}")
            a.label(f"L_pl_{name}")
            a.begin_cond('poll' + name)
            a("s_mov_b64 exec, vcc")
            if self.cfg.get('psleep'):
                a(f"s_sleep {self.cfg['psleep']}")
            a(self.poll_load(va, wd, vd))
            a(f"s_add_u32 s{sCNT}, s{sCNT}, 1")
            a(f"s_cmp_ge_u32 s{sCNT}, 0x40000")
            a(f"s_cbranch_scc1 L_pk_{name}")
            cmp(a)
            a("s_nop 0")
            a(f"s_cbranch_vccnz L_pl_{name}")
            a.end_cond()
            a.label(f"L_pk_{name}")
            a("s_mov_b64 exec, -1")
            if self.stamps:
                a(f"v_writelane_b32 v254, s{sCNT}, {self.npoll}")
                self.npoll += 1
        f.cost = 5
        return f

    def zflag_addr(self, dst, first):
        fsz = self.cfg.get('fsz', 32)
        return [f"s_add_u32 s{dst}, s{sJ}, {first}", f"s_mul_i32 s{dst}, s{dst}, {fsz}",
                f"s_lshl1_add_u32 s{sT0}, s{sT3}, s{sT2}", f"s_lshl2_add_u32 s{dst}, s{sT0}, s{dst}",
                f"s_add_u32 s{dst}, s{dst}, {WS_FZ}"]

    def lanes(self):
        return ["v_lshlrev_b32 v1, 4, v0",
                f"v_lshrrev_b32 v{vH}, 4, v0", f"v_and_b32 v{vI}, 15, v0",
                f"v_bfe_u32 v{vR}, v0, 2, 2", f"v_and_b32 v{vC}, 3, v0",
                f"s_lshr_b32 s{sT2}, s{sW}, 1", f"s_and_b32 s{sT3}, s{sW}, 1",
                f"s_lshl_b32 s{sRING}, s{sW}, 12"]

    def code_prefetch(self, beg, end):
        r = self.role
        return [f"s_getpc_b64 {sp(sU2)}", f"L_pc{r}:",
                f"s_lshl2_add_u32 s{sT2}, s{sID}, s{sW}",
                f"v_lshl_add_u32 v{vT}, s{sT2}, 1, v0",
                f"v_lshlrev_b32 v{vT}, 7, v{vT}",
                f"v_add_u32 v{vT}, {beg}-L_pc{r}, v{vT}",
                f"v_min_u32 v{vT}, {end}-L_pc{r}, v{vT}",
                "s_mov_b64 exec, 3",
                f"global_load_dword v253, v{vT}, {sp(sU2)}",
                "s_mov_b64 exec, -1"]

    def epoch_load(self, v):
        return [f"s_mov_b32 s{sT0}, {WS_EP}", "s_mov_b64 exec, 1",
                f"buffer_load_dword v{v}, v0, {srd(S_WS)}, s{sT0} offen sc1", "s_mov_b64 exec, -1"]

    def conv_setup(self, nch):
        ZR = 68
        it = [f"s_mul_i32 s{sC2}, s{sXQ}, 160",
              f"s_lshl1_add_u32 s{sC0}, s{sID}, s{sC2}",
              f"s_add_u32 s{sC0}, s{sC0}, {64 if self.role == 'A' else 0}",
              f"s_add_u32 s{sC2}, s{sC2}, s{sID}",
              f"s_add_u32 s{sC2}, s{sC2}, 128",
              f"s_lshl_b32 s{sT0}, s{sC0}, 1",
              f"s_load_dword s28, {sp(P_D)}, s{sT0}"]
        if nch == 3:
            it += [f"s_lshr_b32 s{sT1}, s{sC2}, 1", f"s_lshl_b32 s29, s{sT1}, 2", f"s_load_dword s30, {sp(P_D)}, s29"]
        it += [f"s_lshl_b32 s{sX0}, s{sC0}, 12",
               f"s_lshl_b32 s{sT1}, s{sW}, 10",
               f"s_add_u32 s{sX0}, s{sX0}, s{sT1}",
               f"s_add_u32 s{sX1}, s{sX0}, 4096",
               f"s_lshl_b32 s{sX2}, s{sC2}, 12",
               f"s_add_u32 s{sX2}, s{sX2}, s{sT1}"]
        it += [f"v_mov_b32 v{ZR+i}, 0" for i in range(4)]
        it += [f"s_min_u32 s{sT0}, s{sW}, 2",
               f"s_mul_i32 s{sT1}, s{sT0}, {XP}",
               f"s_add_u32 s{sT1}, s{sT1}, {L_CX}",
               f"v_add_u32 v{vT}, s{sT1}, v1",
               f"s_mul_i32 s{sT1}, s{sT0}, {KP}",
               f"s_add_u32 s{sT1}, s{sT1}, {L_CK}",
               f"v_add_u32 v{vT2}, s{sT1}, v1",
               f"s_mul_i32 s{sT1}, s{sT0}, {33*16}",
               f"s_add_u32 s{sT1}, s{sT1}, {L_CAR}",
               f"v_mov_b32 v{vPD}, s{sT1}",
               "s_mov_b32 exec_hi, 0",
               f"ds_write_b128 v{vT}, {vr(ZR,4)}",
               f"s_mov_b64 exec, {hex((1 << (KPAD//16)) - 1)}",
               f"ds_write_b128 v{vT2}, {vr(ZR,4)}",
               "s_mov_b64 exec, 1",
               f"ds_write_b128 v{vPD}, {vr(ZR,4)}",
               "s_mov_b64 exec, -1"]
        it += [f"v_lshl_add_u32 v{vT}, v{vH}, 3, v{vR}",
               f"v_lshlrev_b32 v{vT2}, 2, v{vC}",
               f"v_sub_u32 v{vT2}, v{vT2}, v{vT}",
               f"v_lshlrev_b32 v{vT2}, 3, v{vT2}",
               f"s_mul_i32 s{sT0}, s{sT2}, {KP}",
               f"s_add_u32 s{sT0}, s{sT0}, {L_CK + KPAD + 152 - 32}",
               f"v_add_u32 v{vCA}, s{sT0}, v{vT2}"]
        if nch == 3:
            it.append(f"v_add_u32 v{vCA2}, {L_CK + 2*KP + KPAD + 152 - 32}, v{vT2}")
        it += [f"v_add_lshl_u32 v{vT}, v{vT}, v{vC}, 3",
               f"s_mul_i32 s{sT0}, s{sT2}, {XP}",
               f"s_lshl_b32 s{sT1}, s{sT3}, 7",
               f"s_add_u32 s{sT0}, s{sT0}, s{sT1}",
               f"s_add_u32 s{sT0}, s{sT0}, {L_CX + XPAD - 152}",
               f"v_add_u32 v{vCB}, s{sT0}, v{vT}"]
        if nch == 3:
            it += [f"s_lshl_b32 s{sT0}, s{sW}, 7",
                   f"s_add_u32 s{sT0}, s{sT0}, {L_CX + 2*XP + XPAD - 152 - 256}",
                   f"v_add_u32 v{vCB2}, s{sT0}, v{vT}"]
        return it

    def conv_setup2(self, nch):
        it = [f"s_mul_i32 s{sT0}, s{sT2}, {33*16}",
              f"s_lshl4_add_u32 s{sT0}, s{sT3}, s{sT0}",
              f"s_add_u32 s{sT0}, s{sT0}, {L_CAR}",
              f"v_lshlrev_b32 v{vT}, 2, v{vC}",
              f"v_lshl_add_u32 v{vT2}, v{vR}, 5, v{vT}",
              f"v_add_u32 v{vCRR}, s{sT0}, v{vT2}",
              f"s_add_u32 s{sT0}, s{sT0}, {(16 - 48*32) & 0xffffffff}",
              f"v_lshl_add_u32 v{vCRW}, v0, 5, s{sT0}"]
        if nch == 3:
            it += [f"s_lshl_b32 s{sT0}, s{sW}, 4",
                   f"s_add_u32 s{sT0}, s{sT0}, {L_CAR + 2*33*16}",
                   f"v_lshl_add_u32 v{vT2}, v{vR}, 6, v{vT}",
                   f"v_add_u32 v{vCRR2}, s{sT0}, v{vT2}",
                   f"s_add_u32 s{sT0}, s{sT0}, {(16 - 56*64) & 0xffffffff}",
                   f"v_lshl_add_u32 v{vCRW2}, v0, 6, s{sT0}"]
        it += [f"s_mul_i32 s{sT0}, s{sW}, 3072",
               f"s_add_u32 s{sT0}, s{sT0}, {L_ZSTG}",
               f"v_lshl_add_u32 v{vZW}, v0, 1, s{sT0}",
               f"v_add_u32 v{vZR}, s{sT0}, v1",
               f"v_lshl_add_u32 v{vT}, v{vC}, 1, s{sT0}",
               f"v_lshl_add_u32 v{vZF}, v{vR}, 7, v{vT}",
               f"v_lshrrev_b32 v{vT}, 3, v0",
               f"v_and_b32 v{vT2}, 7, v0",
               f"v_lshlrev_b32 v{vT2}, 4, v{vT2}",
               f"v_lshl_add_u32 v{vZS}, v{vT}, 8, v{vT2}",
               f"s_add_u32 s{sT0}, s{sC0}, s{sT2}",
               f"s_lshl_b32 s{sT0}, s{sT0}, 12",
               f"s_lshl_b32 s{sT1}, s{sT3}, 7",
               f"s_add_u32 s{sT0}, s{sT0}, s{sT1}",
               f"s_add_u32 s{sT0}, s{sT0}, {WS_Z}",
               f"v_add_u32 v{vZS}, s{sT0}, v{vZS}"]
        if nch == 3:
            it += [f"v_lshl_add_u32 v{vZS2}, v{vT}, 9, v{vT2}",
                   f"s_lshl_b32 s{sT0}, s{sC2}, 12",
                   f"s_lshl_b32 s{sT1}, s{sW}, 7",
                   f"s_add_u32 s{sT0}, s{sT0}, s{sT1}",
                   f"s_add_u32 s{sT0}, s{sT0}, {WS_Z}",
                   f"v_add_u32 v{vZS2}, s{sT0}, v{vZS2}"]
        if nch == 3:
            it += [f"s_and_b32 s{sT0}, s{sC2}, 1",
                   f"s_lshl_b32 s{sT0}, s{sT0}, 4",
                   f"s_lshr_b32 s30, s30, s{sT0}",
                   f"s_lshl_b32 s30, s30, 16"]
        fsk = self.cfg.get('fsk', 16)
        it += [f"s_lshl_b32 s{sT0}, s{sT2}, 4", f"s_lshr_b32 s28, s28, s{sT0}", f"s_lshl_b32 s28, s28, 16",
               f"s_lshl_b32 s29, s{sW}, 10",
               f"s_lshr_b32 s{sT0}, s{sXQ}, 1",
               f"s_lshl2_add_u32 s{sT0}, s{sT0}, s{sW}",
               f"v_lshl_add_u32 v{vP1}, s{sT0}, 4, v0",
               f"v_mul_u32_u24 v{vP1}, {fsk}, v{vP1}",
               f"v_add_u32 v{vP1}, {WS_FK}, v{vP1}"]
        return it

    def ssm_loads(self, nch):
        return [(f"s_add_u32 m0, s29, {L_CK + KPAD + cs*KP}\nbuffer_load_dwordx4 v1, {srd(S_SSM)}, s{so} offen {self.cfg.get('spol', '')} lds\ns_add_u32 s{so}, s{so}, {WS_KV}", 'kd')
                for cs, so in enumerate((sX0, sX1, sX2)[:nch])]

    def x_loads(self, nch):
        return [(f"s_add_u32 m0, s29, {L_CX + XPAD + cs*XP}\nbuffer_load_dwordx4 v1, {srd(S_WS)}, s{so} offen sc1 lds", 'xd')
                for cs, so in enumerate((sX0, sX1, sX2)[:nch])]

    def dpatch(self, part):
        it = []
        r0 = C20 if part == 2 and self.role == 'A' else CA
        for r, mk in ((r0 + 1, 0x01000001), (r0 + 3, 0x10000010)):
            it += [f"v_and_b32 v{vT2}, 0xffff0000, v{r}", f"v_lshlrev_b32 v{vT}, 16, v{r}",
                   f"v_add_f32 v{vT2}, s{28 if part == 1 else 30}, v{vT2}",
                   f"s_mov_b32 exec_lo, 0\ns_mov_b32 exec_hi, {hex(mk)}\nv_cvt_pk_bf16_f32 v{r}, v{vT}, v{vT2}\ns_mov_b64 exec, -1"]
        return it

    def conv_pre(self, n):
        it = []
        for c in range(n):
            it += self.c_read(1, c)
        return it + self.dpatch(1)

    tiles = [(1, m, m) for m in range(16)] + [(2, n, 2 * n + 1) for n in range(8)]

    def fa(self, part, c, o=0, k=4):
        if part == 2 and self.role == 'A':
            return vr(C20 + o, k) if c == 0 else ar(4 * c + o, k)
        return vr(CA + 4 * c + o, k)

    def fb(self, part, n, o=0, k=4):
        if part == 2 and self.role == 'A':
            return ar(64 + 4 * n + o, k)
        return vr(CB + 4 * (n if part == 1 else 15 - n) + o, k)

    def c_read(self, part, c):
        va, vb = (vCA, vCB) if part == 1 else (vCA2, vCB2)
        return ([f"ds_read_b64_tr_b16 {self.fa(part,c,2*e2,2)}, v{va} offset:{256*c + 32*(1-e2)}" for e2 in range(2)] +
                [f"ds_read_b64_tr_b16 {self.fb(part,c,2*e2,2)}, v{vb} offset:{256*c + 32*e2}" for e2 in range(2)])

    def tile_epi(self, g):
        part, k, m = self.tiles[g]
        d = CACC + 4 * (g % NSL)
        p = CACC + 4 * ((g - 1) % NSL)
        dp = "wave_shr:1 row_mask:0xf bank_mask:0xf bound_ctrl:0"
        it = []
        for j, dst in ((3, d + 2), (2, d + 1), (1, CY + g)):
            it.append(f"v_add_f32_dpp v{dst}, v{d+j}, v{d+j-1} {dp}")
            if k:
                it.append(f"v_mov_b32_dpp v{d+j}, v{p+j} wave_shl:1 row_mask:0xf bank_mask:0xf")
        if g in (15, 23):
            va, mk = (vCRW, '0xffff0000') if g == 15 else (vCRW2, '0xff000000')
            it.append((f"s_mov_b32 exec_lo, 0\ns_mov_b32 exec_hi, {mk}\nds_write_b128 v{va}, {vr(d,4)}\ns_mov_b64 exec, -1", f'carw{part}'))
        return it

    def stage(self, g):
        it = []
        for t in (g, g + 1):
            j = t % 4
            it.append(f"v_mov_b32 v{CH+t//4}, v{CY+t}" if j == 0 else
                      f"v_mov_b32_dpp v{CH+t//4}, v{CY+t} row_shr:{4*j} row_mask:0x1 bank_mask:{hex(1 << j)}")
        return it + [f"v_cvt_pk_bf16_f32 v{CY+g}, v{CY+g}, v{CY+g+1}",
                     f"ds_write_b16 v{vZW}, v{CY+g} offset:{128*g}", f"ds_write_b16_d16_hi v{vZW}, v{CY+g} offset:{128*(g+1)}"]

    def conv_sched(self, nt, cpre, cap, sg0=0):
        mf, first = [], []
        for g, (part, k, m) in enumerate(self.tiles[:nt]):
            d = vr(CACC + 4 * (g % NSL), 4)
            first.append(len(mf))
            mf += [f"v_mfma_f32_16x16x32_bf16 {d}, {self.fa(part,c)}, {self.fb(part,m-c)}, {'0' if c == 0 else d}"
                   for c in range(m + 1)]
        first += [len(mf)] * 8
        S = Sched(mf, cap)
        LEAD = self.cfg.get('lead', 7)
        for g in range(1, nt):
            S.reserve(first[g] - 1)
        for c in range(cpre, 16):
            S.add('rd', self.c_read(1, c), 0, max(first[c] - LEAD, 0))
        if nt > 16 and self.role == 'A':
            r0 = self.cfg.get('r2A', 60)
            for c in range(16):
                S.add('rd2', self.c_read(2, c), r0, min(first[16 + c // 2] - LEAD, r0 + 12 + 7 * c))
            S.add('dp', self.dpatch(2), r0 + 20, first[16] - 2)
        elif nt > 16:
            for c in range(16):
                dl = max(first[16 + c // 2] - LEAD, first[15] + c + 1) if c else first[15] + 4
                S.add('rd', self.c_read(2, c), first[15] + c + 1, dl)
            S.add('dp', self.dpatch(2), first[15] + 8, first[16] - 2)
        self.sgrel = {}
        for g in range(nt - 1):
            dl = min(first[g + NSL - 1] - 1, first[g + 1] + (self.cfg.get('epl', 24) if g < 12 else 8))
            S.add('ep', self.tile_epi(g), first[g + 1] + 2, dl)
            if g & 1:
                self.sgrel[g - 1] = max(dl + 1, sg0)
        self.first = first
        return S

    def z_fix(self, part):
        qs = (0, 2) if part == 1 else (4,)
        va, st = (vCRR, 32) if part == 1 else (vCRR2, 64)
        it = [f"ds_read2_b32 {vr(CR+q,2)}, v{va} offset0:{1+st*(q % 4)} offset1:{1+st*(q % 4 + 1)}" for q in qs]
        for q in qs:
            it += [f"v_add_f32 v{CH+q}, v{CH+q}, v{CR+q}", f"v_add_f32 v{CH+q+1}, v{CH+q+1}, v{CR+q+1}",
                   f"v_cvt_pk_bf16_f32 v{CH+q}, v{CH+q}, v{CH+q+1}",
                   f"s_mov_b64 exec, 0x7777\nds_write_b16 v{vZF}, v{CH+q} offset:{512*q}\nds_write_b16_d16_hi v{vZF}, v{CH+q} offset:{512*(q+1)}\ns_mov_b64 exec, -1",
                   f"ds_read_b128 {vr(ZO+2*q,4)}, v{vZR} offset:{512*q}"]
        if part == 1:
            st = [(f"buffer_store_dwordx4 {vr(ZO,4)}, v{vZS}, {srd(S_WS)}, 0 offen sc1", 'zst1'),
                  (f"buffer_store_dwordx4 {vr(ZO+4,4)}, v{vZS}, {srd(S_WS)}, 0 offen offset:2048 sc1", 'zst1')]
        else:
            st = [(f"buffer_store_dwordx4 {vr(ZO+8,4)}, v{vZS2}, {srd(S_WS)}, 0 offen sc1", 'zst2')]
        return it, st

    def conv_run(self, S, nt, early, flag1=None, mid=((), (), ())):
        a = self.a
        for g in range(0, nt - 2, 2):
            S.add('sg', self.stage(g), self.sgrel[g], None)
            if early and g == 14:
                f1, s1 = self.z_fix(1)
                p = self.cfg.get('pE1', 146)
                S.th['sg'][-1][2] = p - 1
                S.add('sg', [('wait', 'carw1'), "s_barrier"], p, p + 1)
                S.add('sg', f1[:2], p + 1, p + 3)
                e1, e2 = self.cfg.get('e12', [6, 20])
                S.add('sg', f1[2:], p + e1, p + e1 + 10)
                S.add('sg', s1, p + e2, p + e2 + 2)
        f1in = early and self.cfg.get('f1in', 1)
        its = S.items(keep=('sg',))
        wi = self.cfg.get('wi' + self.role, 0)
        if wi:
            keep, n = [], 0
            for x in its:
                t = txt_of(x)
                if t.startswith('v_mfma'):
                    n += 1
                drop = n > wi and (t.startswith(('v_mfma', 'v_add_f32_dpp', 'v_mov_b32_dpp')) or t.startswith('ds_read_b64_tr_b16 v'))
                if not drop:
                    keep.append(x)
            its = keep
        a.run(its)
        self.info['conv'] = (S.over, S.under, len(S.left.get('sg', [])))
        a.run([self.stamp('conv')])
        if f1in:
            a.run([('wait', 'zst1'), flag1])
        a.run(mid[0])
        a.run(merge(S.left.get('sg', []) or ["s_nop 0"], self.tile_epi(nt - 1)))
        a.run(self.stage(nt - 2))
        a.run(mid[1])
        a.wait('carw2' if nt > 16 else 'carw1')
        a("s_barrier")
        parts = [2] if early else ([1, 2] if nt > 16 else [1])
        fs = [self.z_fix(p) for p in parts]
        if early and not f1in:
            a.run(fs[0][0][:1] + [('wait', 'zst1'), flag1] + fs[0][0][1:])
        else:
            a.run([x for f in fs for x in f[0]])
        a.run(mid[2])
        a.run([x for f in fs for x in f[1]])
        a.run([self.stamp('z_st')])

    def finish(self):
        a = self.a
        a.run([self.stamp('end')])
        amp = self.cfg.get('amp')
        if amp and amp[0] == self.role:
            if self.role == 'A':
                a(f"s_cmp_ge_u32 s{sID}, 30")
                a("s_cbranch_scc1 L_end")
            a("s_memrealtime s[100:101]")
            a("s_sub_u32 s98, s98, s96")
            a("s_mul_i32 s98, s98, 20")
            a("s_min_u32 s98, s98, 200000")
            a("s_add_u32 s98, s98, s100")
            a.label("L_amp")
            a("s_memrealtime s[100:101]")
            a("s_sub_u32 s100, s100, s98")
            a("s_cmp_lt_i32 s100, 0")
            a("s_cbranch_scc1 L_amp")
        if self.stamps:
            if not self.cfg.get('nodrain'):
                a.wait_all()
            a("s_memrealtime s[98:99]")
            a(f"v_writelane_b32 v255, s96, 30")
            a(f"v_writelane_b32 v255, s98, 31")
            for k in range(self.npoll):
                a(f"v_readlane_b32 s{sT0}, v254, {k}")
                a(f"v_writelane_b32 v255, s{sT0}, {24+k}")
            a(f"s_lshl2_add_u32 s{sT0}, s2, s{sW}")
            a(f"s_lshl_b32 s{sT0}, s{sT0}, 8")
            a(f"s_add_u32 s{sT0}, s{sT0}, {WS_DBG}")
            a(f"v_lshlrev_b32 v{vT}, 2, v0")
            a(f"buffer_store_dword v255, v{vT}, {srd(S_WS)}, s{sT0} offen")


KERNARG = {f"s{i}" for i in range(36, 68)}


def prog_A(cfg):
    P = Prog('A', cfg)
    a, stamp = P.a, P.stamp
    a.smem_pending = set(KERNARG) | {'s96', 's97'}
    FS1, FSU, FSZ = cfg.get('fs1', 32), cfg.get('fsu', 64), cfg.get('fsz', 32)
    NB, GR = cfg.get('nb', 14), cfg.get('grp', 2)
    sDG, sFT = sA, sB
    KW, HW = cfg.get('kw', 1), cfg.get('hw', 1)
    NC = 3 if cfg.get('third', 'A') == 'A' else 2
    NT = 8*NC
    if cfg.get('cpf', 1) and cfg.get('lay', 'C') != 'C':
        a.run(P.code_prefetch("L_Amain", "L_end"))
    a(f"s_mul_i32 s{sT0}, s{sID}, 52")
    a(f"s_lshr_b32 s{sT0}, s{sT0}, 8")
    a(f"s_mul_i32 s{sT1}, s{sT0}, 5")
    a(f"s_sub_u32 s{sDG}, s{sID}, s{sT1}")
    a(f"s_min_u32 s{sT0}, s{sT0}, 5")
    a(f"s_mul_i32 s{sFT}, s{sXQ}, 6")
    a(f"s_add_u32 s{sFT}, s{sFT}, s{sT0}")
    a(f"s_lshl4_add_u32 s{sT1}, s{sDG}, s{sW}")
    a(f"s_mul_i32 s{sT1}, s{sT1}, 205")
    a(f"s_lshr_b32 s{sT1}, s{sT1}, 10")
    sOWN = 38
    if cfg.get('rkA', 0):
        a(f"s_lshr_b32 s{sCNT}, s{sT0}, 1")
        a(f"s_mul_i32 s{sCNT}, s{sCNT}, {cfg.get('rkA', 0)}")
        a(f"s_add_u32 s{sT1}, s{sT1}, s{sCNT}")
        a(f"s_and_b32 s{sT1}, s{sT1}, 15")
    a(f"s_lshl_b32 s{TK}, s{sT1}, 10")
    a(f"s_add_u32 s{sT1}, s{TK}, 1024")
    a(f"s_and_b32 s{TK+1}, s{sT1}, 0x3c00")
    a(f"s_lshl_b32 s{sRING}, s{sW}, 12")
    a(f"s_mul_i32 s{sT0}, s{sW}, {512*3072}")
    a(f"s_lshl_b32 s{sT1}, s{sFT}, 7")
    a(f"s_add_u32 s{sT0}, s{sT0}, s{sT1}")
    a.run(P.weight_src(3072, sT0))
    a(f"s_mov_b32 s{S_W+2}, 6291456")
    a(f"s_mov_b32 s{S_W+3}, 0x20000")
    P.split0 = len(a.out)
    a(f"s_cmp_ge_u32 s{sID}, 30")
    a(f"s_cselect_b32 s{sSP}, {OOB}, 0")
    a(f"s_mov_b64 {sp(S_W)}, {sp(50)}")
    a("s_cbranch_scc1 L_Amain")
    a.run(P.w_step())
    a.run([stamp('start')])
    a.run(P.w_step())
    a("s_branch L_Amain")
    P.split = len(a.out)
    a.label("L_Amain")
    if cfg.get('lay', 'C') != 'C':
        a.run(P.lanes())
    if cfg.get('hlpA', 1):
        a(f"s_cmp_lt_u32 s{sID}, 30")
        a("s_cbranch_scc1 L_Anh")
        a.begin_cond('hlp')
        a(f"s_lshl1_add_u32 s{sT0}, s{sXQ}, 3")
        a(f"s_and_b32 s{sT0}, s{sT0}, 7")
        a(f"s_min_u32 s{sT0}, s{sT0}, 5")
        a(f"s_lshr_b32 s{sCNT}, s{sT0}, 1")
        a(f"s_mul_i32 s{sCNT}, s{sCNT}, {cfg.get('rkA', 0)}")
        a(f"s_add_u32 s{sCNT}, s{sCNT}, 15")
        a(f"s_mul_i32 s{sT1}, s{sXQ}, 6")
        a(f"s_add_u32 s{sT0}, s{sT0}, s{sT1}")
        a(f"s_lshl_b32 s{sT0}, s{sT0}, 7")
        a(f"s_mul_i32 s{sT1}, s{sW}, {512*3072}")
        a(f"s_add_u32 s{sU0}, s{sT0}, s{sT1}")
        for i in range(2):
            if i == 0:
                a(f"v_lshrrev_b32 v{vT}, 5, v0")
                a(f"v_lshl_add_u32 v{vT}, s{sDG}, 1, v{vT}")
                a(f"v_and_b32 v{vT2}, 31, v0")
            else:
                a(f"v_mov_b32 v{vT}, 4")
                a(f"v_lshl_add_u32 v{vT2}, s{sDG}, 4, v{vI}")
            a(f"v_add_u32 v{vT}, 1, v{vT}")
            a(f"v_lshl_add_u32 v{vT}, v{vT}, 4, s{sW}")
            a(f"v_mul_u32_u24 v{vT}, 205, v{vT}")
            a(f"v_lshrrev_b32 v{vT}, 10, v{vT}")
            a(f"v_add_u32 v{vT}, s{sCNT}, v{vT}")
            a(f"v_and_b32 v{vT}, 15, v{vT}")
            a(f"v_lshl_add_u32 v{vT}, v{vT}, 5, v{vT2}")
            a(f"v_mul_u32_u24 v{vT}, 3072, v{vT}")
            if i:
                a("s_mov_b64 exec, 0xffff")
            a(f"buffer_load_dword v{250+i}, v{vT}, {srd(S_W)}, s{sU0} offen")
        a("s_mov_b64 exec, -1")
        a.end_cond()
        a.label("L_Anh")
    HA = cfg.get('hlpA2', 0)
    if HA:
        a(f"s_lshl1_add_u32 s{sT0}, s{sXQ}, 3")
        a(f"s_and_b32 s{sT0}, s{sT0}, 7")
        a(f"s_mul_i32 s{sT1}, s{sXQ}, 6")
        a(f"s_add_u32 s{sU0}, s{sT0}, s{sT1}")
        a(f"s_sub_u32 s{sT1}, s{sFT}, s{sU0}")
        a(f"s_add_u32 s{sT1}, s{sT1}, 5")
        a(f"s_cmp_ge_u32 s{sT1}, 6")
        a(f"s_cselect_b32 s{sCNT}, 6, 0")
        a(f"s_sub_u32 s{sT1}, s{sT1}, s{sCNT}")
        a(f"s_lshl_b32 s{sU0}, s{sU0}, 7")
        a(f"s_cmp_ge_u32 s{sT1}, 5")
        a(f"s_cselect_b32 s{sU0}, {OOB}, s{sU0}")
        a(f"s_cmp_ge_u32 s{sT0}, 6")
        a(f"s_cselect_b32 s{sU0}, {OOB}, s{sU0}")
        a(f"s_or_b32 s{sU0}, s{sU0}, s{sSP}")
        a(f"s_lshr_b32 s{sT0}, s{sT0}, 1")
        a(f"s_mul_i32 s{sT0}, s{sT0}, {cfg.get('rkA', 0)}")
        a(f"s_add_u32 s{sCNT}, s{sDG}, 1")
        a(f"s_lshl4_add_u32 s{sCNT}, s{sCNT}, s{sW}")
        a(f"s_mul_i32 s{sCNT}, s{sCNT}, 205")
        a(f"s_lshr_b32 s{sCNT}, s{sCNT}, 10")
        a(f"s_add_u32 s{sT0}, s{sT0}, s{sCNT}")
        a(f"s_add_u32 s{sT0}, s{sT0}, 14")
        a(f"s_and_b32 s{sT0}, s{sT0}, 15")
        a(f"s_lshl4_add_u32 s{sT0}, s{sW}, s{sT0}")
        a(f"s_lshl_b32 s{sT0}, s{sT0}, 5")
        a(f"s_mul_i32 s{sT1}, s{sT1}, {HA}")
        a(f"s_add_u32 s{sT0}, s{sT0}, s{sT1}")
        a(f"s_add_u32 s{sT0}, s{sT0}, {32 - 5*HA}")
        a(f"v_add_u32 v{vT}, s{sT0}, v0")
        a(f"v_mul_u32_u24 v{vT}, 3072, v{vT}")
        a(f"s_mov_b64 exec, {hex((1 << HA) - 1)}")
        a(f"buffer_load_dword v249, v{vT}, {srd(S_W)}, s{sU0} offen")
        a("s_mov_b64 exec, -1")
    for (s, n) in ((S_WS, WS_SIZE), (S_SSM, 2621440)):
        a(f"s_mov_b32 s{s+2}, {n}")
        a(f"s_mov_b32 s{s+3}, 0x20000")
    for j in range(2, 16):
        a(f"s_add_u32 s{sT1}, s{TK+j-1}, 1024")
        a(f"s_and_b32 s{TK+j}, s{sT1}, 0x3c00")
    a(f"s_add_u32 s{S_WS}, s66, {cfg.get('wso', 0) << 20}")
    a(f"s_addc_u32 s{S_WS+1}, s67, 0")
    a(f"s_mov_b64 {sp(S_SSM)}, {sp(44)}")
    a.run(P.weight_dst(False))
    a.run(P.zflag_addr(sFJ, 128))
    a.run(P.conv_setup(NC))
    vHL, vRW, vRR, vUS, vEP, vX0 = 10, 44, 47, 48, 49, 50
    BL = 54
    g1set = [f"s_mul_i32 s{sOWN}, s{sFT}, {cfg.get('roA', 0)}", f"s_add_u32 s{sOWN}, s{sOWN}, s{sW}", f"s_and_b32 s{sOWN}, s{sOWN}, 3",
             f"s_lshl_b32 s{sCNT}, s{sDG}, 18", f"s_lshl_b32 s{sT1}, s{sW}, 14", f"s_add_u32 s{sCNT}, s{sCNT}, s{sT1}",
             f"s_add_u32 s{sCNT}, s{sCNT}, s{sSP}"]
    for i in range(4):
        g1set += [f"s_add_u32 s{sT0}, s{sOWN}, {i+1}",
                  f"s_and_b32 s{sT0}, s{sT0}, 3",
                  f"s_mul_i32 s{sT1}, s{sT0}, 12288",
                  f"s_add_u32 s{sT1}, s{sT1}, {L_RED + (i*4096 if i < 3 else 0)}",
                  f"v_add_u32 v{vRW+i}, s{sT1}, v1",
                  f"s_lshl_b32 s{sT0}, s{sT0}, 16",
                  f"s_add_u32 s{sT0}, s{sT0}, s{sCNT}",
                  f"v_add_u32 v{vHL+i}, s{sT0}, v1",
                  f"v_add_u32 v{vHL+4+i}, {20*65536}, v{vHL+i}"]
    g1set += [f"v_lshl_add_u32 v{vP0}, s{sW}, 5, v0",
              f"v_mul_u32_u24 v{vP0}, {FS1}, v{vP0}",
              f"v_add_u32 v{vP0}, {WS_F1}, v{vP0}",
              f"s_lshl_b32 s{sT0}, s{sFT}, 7",
              f"v_lshl_add_u32 v{vX0}, v{vH}, 3, s{sT0}",
              f"s_lshl2_add_u32 s{sT0}, s{sDG}, s{sOWN}",
              f"s_mul_i32 s{sFI}, s{sT0}, 24",
              f"s_add_u32 s{sFI}, s{sFI}, s{sFT}",
              f"s_mul_i32 s{sFI}, s{sFI}, {FSU}",
              f"s_add_u32 s{sFI}, s{sFI}, {WS_FU}",
              f"s_add_u32 s{sFI}, s{sFI}, s{sSP}",
              f"s_mul_i32 s{sT0}, s{sT0}, 48",
              f"s_lshl1_add_u32 s{sT0}, s{sFT}, s{sT0}",
              f"s_lshl_b32 s{sT0}, s{sT0}, 10",
              f"s_add_u32 s{sT0}, s{sT0}, {WS_U}",
              f"s_add_u32 s{sT0}, s{sT0}, s{sSP}",
              f"v_add_u32 v{vUS}, s{sT0}, v1",
              f"s_mov_b32 s{sU2}, 0xbdd2d3e8",
              f"s_mov_b32 s{sU3}, {20*48*1024}",
              f"v_mov_b32 v52, 0xc0135761"]
    a.run(g1set)
    a.run(P.conv_setup2(NC))
    a.run(P.epoch_load(vEP))
    for t in range(4):
        a(f"global_load_dwordx2 {vr(BL+2*t,2)}, v{vX0}, {sp(P_B1)} offset:{32*t}")
    a(f"s_cmp_ge_u32 s{sID}, 30")
    a("s_cbranch_scc1 L_Aspare")
    a.run(P.w_step())
    a.run(P.w_step())
    BI, RD, PD4 = 112, 144, 248
    bun = []
    for t in range(8):
        bun += [f"v_lshlrev_b32 v{BI+2*t}, 16, v{BL+t}", f"v_and_b32 v{BI+2*t+1}, 0xffff0000, v{BL+t}"]
    PA = cfg.get('pollA', 14)
    while P.nxt < 16:
        if P.nxt == 8:
            a.run(P.set_tag(vEP))
            a.run(bun)
        a.run([stamp(f'w{P.nxt}')])
        it = P.w_step()
        if P.nxt - 1 == PA:
            it.insert(9, P.poll_issue(vP0, 32, 1, PD4))
        a.run(it)
    while P.drn < PA:
        a.run(P.w_step())
    a.run([P.poll_check('f1', vP0, 32, 1, PD4), stamp('f1_ok')])
    BUFS = ([64 + 4*i for i in range(8)] + [128 + 4*i for i in range(4)] + [228 + 4*i for i in range(5)] + [208 + 4*i for i in range(3)])[:NB]

    def h_load(n):
        i, j = divmod(n, 16)
        return f"buffer_load_dwordx4 {vr(BUFS[n % NB],4)}, v{vHL+i}, {srd(S_WS)}, s{TK+j} offen {cfg.get('apol', 'sc1')}"
    hn = 0
    HE = cfg.get('hearly', 8)
    left = 16 - P.drn
    while P.drn < 16:
        for _ in range(HE // left):
            a(h_load(hn)); hn += 1
        a.run(P.w_step())
    ACC = (96, 192)
    Z, G0, UO = ACC[1], 160, 220
    for r in range(2):
        mf, pos = [], {}
        for q in range(64 // GR):
            for t in range(4):
                for n in range(q * GR, (q + 1) * GR):
                    i, j = divmod(n, 16)
                    d = vr(ACC[i & 1] + 4 * t, 4)
                    pos.setdefault(n, len(mf))
                    c = d if j else ('0' if i < 3 else vr(BI + 4 * t, 4))
                    mf.append(f"v_mfma_f32_16x16x32_bf16 {d}, {ar(16*j+4*t,4)}, {vr(BUFS[(64*r + n) % NB],4)}, {c}")
        S = Sched(mf)
        for n in range(64):
            S.reserve(pos[n] - 1)
        k = 0
        while hn < 128:
            n = hn - 64 * r
            free = 4 * GR * ((n - NB) // GR + 1) if n >= NB else 0
            p = max(free, 4 * (n - NB + GR) + 1, 2 * k)
            if p > 255:
                break
            S.add('h', [h_load(hn)], p, p)
            hn += 1
            k += 1
        S.add('st', [stamp(f'g1first{r}')], 0, 0)
        lasth = p if r else 0
        if r == 0 and cfg.get('h2', 1):
            p2 = cfg.get('pH2', 40)
            S.add('f2', [f"v_lshl_add_u32 v{vP0}, s{sW}, 5, v0", f"v_lshlrev_b32 v{vP0}, 4, v{vP0}", f"v_add_u32 v{vP0}, {WS_F1 + 0x4000}, v{vP0}",
                         P.poll_issue(vP0, 32, 1, PD4)], p2 - 4, p2)
            S.add('f2', [P.poll_check('f2', vP0, 32, 1, PD4)], 150, 152)
            assert 4 * (64 - NB + GR) + 1 > 153
        for i in range(3):
            S.add('red', [(f"ds_write_b128 v{vRW+i}, {vr(ACC[i & 1]+4*t,4)} offset:{t*1024}", f'redw{r}{i}') for t in range(4)],
                  64 * (i + 1) + 1, 64 * (i + 1) + 13, pace=4 if i < 2 else 3)
        pR = 192 + cfg.get('pR', 15)
        S.add('red', [('wait', f'redw{r}2'), "s_barrier"], pR, pR + 1)
        S.add('red', [f"ds_read_b128 {vr(RD+4*k,4)}, v{vRR} offset:{k*1024}" for k in range(12)], pR + 2, pR + 16)
        S.add('add', [f"v_add_f32 v{RD+k}, v{RD+k}, v{RD+16+k}" for k in range(16)] +
                     [f"v_add_f32 v{RD+k}, v{RD+k}, v{RD+32+k}" for k in range(16)], pR + 17, 255)
        if r == 1:
            S.add('set', [f"v_subrev_u32 v{vRW+i}, {L_RED}, v{vRW+i}" for i in range(4)], 2, 30)
            pD = cfg.get('pD0', 40)
            S.add('fl', [('wait', 'ust0'), stamp('barD0'), P.flag(sFI), f"s_add_u32 s{sFI}, s{sFI}, {20*24*FSU}"], pD, pD + 1)
            S.add('fl', [P.poll_check('fk', vP1, 16, KW, PD4), stamp('fk_ok')], 150, 152)
            for i, x in enumerate(P.ssm_loads(NC) + P.x_loads(NC)):
                S.add('h', [x], lasth + 4 * (i + 1), lasth + 4 * (i + 1))
        a.run(S.items())
        P.info[f'g1{r}'] = (S.over, S.under)
        a.run([stamp(f'g1mfma{r}')])
        side = []
        if r == 0:
            while hn < 64 + NB:
                side.append(h_load(hn)); hn += 1
            a.run(side)
        for t in range(8):
            a(f"v_pk_add_f32 {vr(Z+2*t,2)}, {vr(Z+2*t,2)}, {vr(RD+2*t,2)}")
        for t in range(8):
            a(f"v_pk_mul_f32 {vr(G0+2*t,2)}, {vr(Z+2*t,2)}, {vr(Z+2*t,2)}")
        for t in range(8):
            a(f"v_pk_fma_f32 {vr(G0+2*t,2)}, {vr(G0+2*t,2)}, {sp(sU2)}, v[52:53] op_sel_hi:[1,0,0]")
        for t in range(8):
            a(f"v_pk_mul_f32 {vr(G0+2*t,2)}, {vr(G0+2*t,2)}, {vr(Z+2*t,2)}")
        for t in range(16):
            a(f"v_exp_f32 v{G0+t}, v{G0+t}")
        for t in range(8):
            a(f"v_pk_add_f32 {vr(G0+2*t,2)}, {vr(G0+2*t,2)}, 1.0 op_sel_hi:[1,0]")
        for t in range(16):
            a(f"v_rcp_f32 v{G0+t}, v{G0+t}")
        for t in range(8):
            a(f"v_pk_mul_f32 {vr(G0+2*t,2)}, {vr(G0+2*t,2)}, {vr(Z+2*t,2)}")
        for t in range(8):
            a(f"v_cvt_pk_bf16_f32 v{UO+t}, v{G0+2*t}, v{G0+2*t+1}")
        for half in range(2):
            a(f"buffer_store_dwordx4 {vr(UO+4*half,4)}, v{vUS}, {srd(S_WS)}, {'0' if r == 0 else f's{sU3}'} offen offset:{1024*half} sc1", tok=f'ust{r}')
        if r == 0:
            a(P.poll_issue(vP1, 16, KW, PD4))
        a.run([stamp(f'ust{r}')])
    a.label("L_Ajoin")
    a.wait('xd')
    a("s_barrier")
    CPA = cfg.get('cpreA', 4)
    a.run(P.conv_pre(CPA))
    S = P.conv_sched(NT, CPA, 2)
    pD = cfg.get('pD1', 30)
    S.add('fl', [('wait', 'ust1'), stamp('barD1'), P.flag(sFI)], pD, pD + 1)
    Z2 = NC == 3 and cfg.get('z2', 1)
    P.conv_run(S, NT, Z2, P.flag(sFJ))
    if Z2:
        a(f"s_add_u32 s{sFJ}, s{sJ}, 128")
        a(f"s_mul_i32 s{sFJ}, s{sFJ}, {FSZ}")
        a(f"s_lshl2_add_u32 s{sFJ}, s{sW}, s{sFJ}")
        a(f"s_add_u32 s{sFJ}, s{sFJ}, {WS_FZ + 16}")
    a.wait('zst2' if NC == 3 else 'zst1')
    a(P.flag(sFJ))
    a(f"s_cmp_lg_u32 s{sJ}, 31")
    a("s_cbranch_scc1 L_Adone")
    st, P.stamps = P.stamps, False
    a(f"v_lshl_add_u32 v{vP0}, s{sW}, 5, v0")
    a(f"v_mul_u32_u24 v{vP0}, {cfg.get('fsk', 16)}, v{vP0}")
    a(f"v_add_u32 v{vP0}, {WS_FK}, v{vP0}")
    a(P.poll_issue(vP0, 32, KW, PD4))
    a.run([P.poll_check('e0', vP0, 32, KW, PD4)])
    for k in range(2):
        a(f"s_mul_i32 s{sT0}, s{sW}, 120")
        a(f"s_add_u32 s{sT0}, s{sT0}, {60*k}")
        a(f"v_add_u32 v{vP0}, s{sT0}, v0")
        a(f"v_mul_u32_u24 v{vP0}, {FSU}, v{vP0}")
        a(f"v_add_u32 v{vP0}, {WS_FU}, v{vP0}")
        a(P.poll_issue(vP0, 60))
        a.run([P.poll_check(f'e{k+1}', vP0, 60)])
    a(f"v_lshl_add_u32 v{vP0}, s{sW}, 5, v0")
    a(f"v_mul_u32_u24 v{vP0}, {FSZ}, v{vP0}")
    a(f"v_add_u32 v{vP0}, {WS_FZ + 158*FSZ}, v{vP0}")
    a(P.poll_issue(vP0, 2, 4, PD4))
    a.run([P.poll_check('e3', vP0, 2, 4, PD4)])
    P.stamps = st
    a("s_barrier")
    a(f"s_mov_b32 s{sT0}, {WS_EP}")
    a(P.flag(sT0))
    a.label("L_Adone")
    P.finish()
    a("s_endpgm")
    b = Asm()
    P.a, st, P.stamps = b, P.stamps, False
    b.label("L_Aspare")
    b(f"s_mul_i32 s{sT0}, s{sXQ}, 160")
    b(f"s_mul_i32 s{sT1}, s{sDG}, {16*NC}")
    b(f"s_add_u32 s{sT0}, s{sT0}, s{sT1}")
    b(f"s_add_u32 s{sT0}, s{sT0}, 64")
    b(f"v_lshrrev_b32 v{vT}, 3, v0")
    b(f"v_add_lshl_u32 v{vT}, s{sT0}, v{vT}, 12")
    b(f"v_and_b32 v{vT2}, 7, v0")
    b(f"v_lshl_add_u32 v{vT2}, s{sW}, 3, v{vT2}")
    b(f"v_lshl_add_u32 v{vT}, v{vT2}, 7, v{vT}")
    b("s_waitcnt vmcnt(0)")
    b.run(P.set_tag(vEP))
    for i in range(2 * NC if cfg.get('spf', 1) else 0):
        b(f"s_mov_b32 s{sT0}, {i*8*4096}")
        b(f"buffer_load_dword v{64+i}, v{vT}, {srd(S_SSM)}, s{sT0} offen")
    b.run(P.ssm_loads(NC))
    b(P.poll_issue(vP1, 16, KW, PD4))
    b.run([P.poll_check('fs', vP1, 16, KW, PD4)])
    for i in range(2 * NC if cfg.get('xpf', 0) else 0):
        b(f"s_mov_b32 s{sT0}, {WS_KV + i*8*4096}")
        b(f"buffer_load_dword v{vPD}, v{vT}, {srd(S_WS)}, s{sT0} offen sc1") if False else b.raw(f"    buffer_load_dword v{vPD}, v{vT}, {srd(S_WS)}, s{sT0} offen sc1")
    b.run(P.x_loads(NC))
    b("s_waitcnt vmcnt(0) lgkmcnt(0)")
    b("s_branch L_Ajoin")
    a.out += b.out
    P.a, P.stamps = a, st
    return P


def prog_B(cfg):
    P = Prog('B', cfg)
    a, stamp = P.a, P.stamp
    a.smem_pending = set(KERNARG) | {'s96', 's97'}
    FS1, FSU, FSZ, FSK = cfg.get('fs1', 32), cfg.get('fsu', 64), cfg.get('fsz', 32), cfg.get('fsk', 16)
    sDT, sST = sA, sB
    KW, HW = cfg.get('kw', 1), cfg.get('hw', 1)
    NC = 3 if cfg.get('third', 'A') == 'B' else 2
    NT = 8*NC
    NMF = 136 if NC == 2 else 208
    a.label("L_B")
    if cfg.get('cpf', 1) and cfg.get('lay', 'C') != 'C':
        a.run(P.code_prefetch("L_pcB", "L_Amain"))
    a.run(P.lanes())
    XR, GR = 160, 180
    vQ, vG, vEP = 200, 201, 202
    a(f"s_lshr_b32 s{sT0}, s{sJ}, 1")
    a(f"s_lshl_b32 s{sT0}, s{sT0}, 5")
    a(f"s_and_b32 s{sT1}, s{sJ}, 1")
    a(f"s_lshl3_add_u32 s{sCNT}, s{sT1}, s{sT0}")
    a(f"s_lshl2_add_u32 s{sCNT}, s{sT2}, s{sCNT}")
    a(f"s_lshl4_add_u32 s{sCNT}, s{sT3}, s{sCNT}")
    a(f"v_add_u32 v{vQ}, s{sCNT}, v{vH}")
    a(f"v_mul_u32_u24 v{vQ}, 1280, v{vQ}")
    a(f"v_lshlrev_b32 v{vG}, 4, v{vI}")
    a(f"v_add_u32 v{vQ}, v{vQ}, v{vG}")
    def kvset():
        a(f"s_lshl3_add_u32 s{sU0}, s{sW}, s{sT0}")
        a(f"s_mul_i32 s{sU0}, s{sU0}, 1280")
        a(f"s_mul_i32 s{sU1}, s{sT1}, 640")
        a(f"s_add_u32 s{sU0}, s{sU0}, s{sU1}")
        a(f"v_add_u32 v{vKV}, s{sU0}, v1")
        a(f"s_mul_i32 s{sU0}, s{sW}, {(-7*1280) & 0xffffffff}")
        a(f"s_sub_u32 s{sU0}, s{sU0}, {4*1280}")
        a(f"v_add_u32 v{vKH}, s{sU0}, v{vKV}")
        a(f"s_mul_i32 s{sKL}, s{sW}, {8*PK + 32}")
        for (s, n) in ((S_K, 2621440), (S_V, 2621440), (S_WS, WS_SIZE), (S_W, 6291456), (S_SSM, 2621440)):
            a(f"s_mov_b32 s{s+2}, {n}")
            a(f"s_mov_b32 s{s+3}, 0x20000")
        a(f"s_lshl2_add_u32 s{sU0}, s{sT1}, s{sW}")
        a(f"s_mul_i32 s{sU0}, s{sU0}, 80")
        a(f"v_add_u32 v{vCH}, s{sU0}, v{vI}")
        a(f"v_lshlrev_b32 v{vS0}, 3, v{vCH}")
    vKV, vKH, vCH, vS0 = 60, 61, 62, 63
    sKL = sFI
    if not cfg.get('qfirst', 1):
        kvset()
    P.split0 = len(a.out)
    for i in range(5):
        a(f"global_load_dwordx4 {vr(XR+4*i,4)}, v{vQ}, {sp(P_Q)} offset:{256*i}")
    a.run([stamp('start')])
    if cfg.get('qfirst', 1):
        kvset()
    for (s, p) in ((S_K, 38), (S_V, 40), (S_W, 56), (S_SSM, 44)):
        a(f"s_mov_b64 {sp(s)}, {sp(p)}")
    a(f"s_add_u32 s{S_WS}, s66, {cfg.get('wso', 0) << 20}")
    a(f"s_addc_u32 s{S_WS+1}, s67, 0")
    a.run(P.epoch_load(vEP))

    def kv_dma(which, i):
        if which == 'h':
            return [f"s_mul_i32 s{sU0}, s{sW}, {PK}", f"s_add_u32 m0, s{sU0}, {L_KI}", "s_mov_b32 exec_hi, 0xff",
                    f"buffer_load_dwordx4 v{vKH}, {srd(S_K)}, 0 offen {cfg.get('kpol', '')} lds", "s_mov_b32 exec_hi, -1"]
        base = L_KI + (4 + i) * PK + (32 if i >= 4 else 0) if which == 'k' else L_VI + i * PK
        return [f"s_add_u32 m0, s{sKL}, {base}", f"s_mov_b32 s{sU0}, {i*1280}", "s_mov_b32 exec_hi, 0xff",
                (f"buffer_load_dwordx4 v{vKV}, {srd(S_K if which == 'k' else S_V)}, s{sU0} offen {cfg.get('kpol', '')} lds", 'kvdma'), "s_mov_b32 exec_hi, -1"]

    def kv_batch(lst):
        it = []
        for (wh, i) in lst:
            x = kv_dma(wh, i)
            if it:
                it.pop()
                x.remove("s_mov_b32 exec_hi, 0xff")
            it += x
        return it
    kvq = [('h', 0)] + [('k', i) for i in range(8)] + [('v', i) for i in range(8)]
    a(f"s_and_b32 s{sDT}, s{sID}, 3")
    a(f"s_lshr_b32 s{sT0}, s{sID}, 2")
    a(f"s_lshl3_add_u32 s{sST}, s{sXQ}, s{sT0}")
    vLW, vA1, vHS, vGS, vKVA, vKVS, vGV = 44, 46, 48, 49, 50, 51, 58
    a(f"v_lshl_add_u32 v{vT}, s{sW}, 2, v{vH}")
    a(f"s_lshl_b32 s{sT0}, s{sJ}, 4")
    a(f"v_add_lshl_u32 v{vGS}, s{sT0}, v{vT}, 2")
    a(f"v_add_u32 v{vGS}, {WS_G}, v{vGS}")
    a(f"v_mul_u32_u24 v{vT}, {PL}, v{vT}")
    a(f"v_add_u32 v{vT}, {L_LN}, v{vT}")
    a(f"v_add_u32 v{vLW}, v{vT}, v{vG}")
    a(f"v_mul_u32_u24 v{vT}, {PL}, v{vR}")
    a(f"v_mul_u32_u24 v{vT2}, 320, v{vH}")
    a(f"s_mul_i32 s{sT0}, s{sT3}, {8*PL}")
    a(f"s_lshl3_add_u32 s{sT0}, s{sT2}, s{sT0}")
    a(f"s_add_u32 s{sT0}, s{sT0}, {L_LN}")
    a(f"v_add3_u32 v{vT}, v{vT}, v{vT2}, s{sT0}")
    a(f"v_lshl_add_u32 v{vA1}, v{vC}, 4, v{vT}")
    a(f"s_lshl1_add_u32 s{sT0}, s{sJ}, s{sT3}")
    a(f"s_lshl_b32 s{sT0}, s{sT0}, 8")
    a(f"s_lshl_b32 s{sT1}, s{sT2}, 16")
    a(f"s_add_u32 s{sT0}, s{sT0}, s{sT1}")
    a(f"v_mul_u32_u24 v{vHS}, {5*65536}, v{vH}")
    a(f"v_lshl_add_u32 v{vHS}, v{vI}, 4, v{vHS}")
    a(f"v_add_u32 v{vHS}, s{sT0}, v{vHS}")
    a(f"s_mul_i32 s52, s{sT2}, {19*65536}")
    a(f"s_add_u32 s52, s52, {4*65536}")
    a(f"s_mov_b32 s53, {20*65536}")
    a(f"s_mov_b32 s64, {22*65536}")
    a(f"v_mul_u32_u24 v{vT}, {8*PK + 32}, v{vH}")
    a(f"v_mul_u32_u24 v{vT2}, {PK}, v{vR}")
    a(f"s_mul_i32 s{sT0}, s{sW}, 160")
    a(f"s_add_u32 s{sT0}, s{sT0}, {L_KI}")
    a(f"v_add3_u32 v{vT}, v{vT}, v{vT2}, s{sT0}")
    a(f"v_lshl_add_u32 v{vKVA}, v{vC}, 3, v{vT}")
    a(f"v_lshlrev_b32 v{vKVS}, 12, v{vCH}")
    a(f"v_lshl_add_u32 v{vKVS}, v{vH}, 4, v{vKVS}")
    a(f"s_lshr_b32 s{sT0}, s{sJ}, 1")
    a(f"s_lshl_b32 s{sT1}, s{sT0}, 6")
    a(f"s_add_u32 s{sT1}, s{sT1}, {WS_KV}")
    a(f"v_add_u32 v{vKVS}, s{sT1}, v{vKVS}")
    a(f"s_and_b32 s{sT1}, s{sJ}, 1")
    a(f"s_lshl_b32 s{sT1}, s{sT1}, 6")
    a(f"s_add_u32 s{sFJ}, s{sT0}, s{sT1}")
    a(f"s_mul_i32 s{sFJ}, s{sFJ}, {FSK}")
    a(f"s_lshl2_add_u32 s{sFJ}, s{sW}, s{sFJ}")
    a(f"s_add_u32 s{sFJ}, s{sFJ}, {WS_FK}")
    a(f"s_mul_i32 s{sU3}, s{sJ}, {FS1}")
    a(f"s_add_u32 s{sU3}, s{sU3}, {WS_F1}")
    for k in range(1, 5):
        a(f"s_mov_b32 s{79+k}, {k*65536}")
    for i in range(5):
        a(f"global_load_dwordx4 {vr(GR+4*i,4)}, v{vG}, {sp(P_GW)} offset:{256*i}")
    nq = cfg.get('kvq0', 6)
    if nq:
        a.run(kv_batch(kvq[:nq])); kvq = kvq[nq:]
    if cfg.get('ptouch'):
        a(f"v_lshlrev_b32 v{vT}, {cfg['ptouch']}, v0")
        a(f"s_lshl_b32 s{sT0}, s{sJ}, 9")
        a(P.setexec(min(64, (5 << 20) >> cfg['ptouch'])) if (5 << 20) >> cfg['ptouch'] < 64 else "s_nop 0")
        a(f"buffer_load_dword v251, v{vT}, {srd(S_WS)}, s{sT0} offen")
        a("s_mov_b64 exec, -1")
    a.run([stamp('iss2')])

    S1, S2, vRS, vNM, XF = 64, 65, 66, 68, 72
    DP = ("quad_perm:[1,0,3,2]", "quad_perm:[2,3,0,1]", "row_half_mirror", "row_mirror")
    unp = []
    for i in range(20):
        unp += [f"v_lshlrev_b32 v{XF+2*i}, 16, v{XR+i}", f"v_and_b32 v{XF+2*i+1}, 0xffff0000, v{XR+i}"]
    ln = [f"s_mov_b32 s{sU2}, 0x3f803f80"]
    for i in range(20):
        c = lambda r: "0" if i == 0 else f"v{r}"
        ln += [f"v_dot2_f32_bf16 v{S1}, v{XR+i}, s{sU2}, {c(S1)}", f"v_dot2_f32_bf16 v{S2}, v{XR+i}, v{XR+i}, {c(S2)}"]
    inv = 0x3ACCCCCD
    red = []
    for m in DP:
        red += [f"v_add_f32_dpp v{x}, v{x}, v{x} {m} row_mask:0xf bank_mask:0xf" for x in (S1, S2)]
    red += [f"v_mul_f32 v{S1}, {hex(inv)}, v{S1}",
            f"v_mul_f32 v{S2}, {hex(inv)}, v{S2}",
            f"v_fma_f32 v{S2}, -v{S1}, v{S1}, v{S2}",
            f"v_max_f32 v{S2}, 0, v{S2}",
            f"v_add_f32 v{S2}, 0x3727c5ac, v{S2}",
            f"v_rsq_f32 v{vRS}, v{S2}",
            f"v_mul_f32_e64 v{vNM}, -v{S1}, v{vRS}"]
    ln += unp[:3] + merge(red, unp[3:])
    HP = 112
    for i in range(5):
        ln += [f"v_pk_fma_f32 {vr(XF+2*k,2)}, {vr(XF+2*k,2)}, {vr(vRS,2)}, {vr(vNM,2)} op_sel_hi:[1,0,0]" for k in range(4*i, 4*i+4)]
        ln += [f"v_cvt_pk_bf16_f32 v{HP+k}, v{XF+2*k}, v{XF+2*k+1}" for k in range(4*i, 4*i+4)]
        ln.append((f"ds_write_b128 v{vLW}, {vr(HP+4*i,4)} offset:{256*i}", 'lnw'))
    gate = [f"v_dot2_f32_bf16 v{vGV}, v{XR+i}, v{GR+i}, {'0' if i == 0 else f'v{vGV}'}" for i in range(20)]
    gate += [f"v_add_f32_dpp v{vGV}, v{vGV}, v{vGV} {m} row_mask:0xf bank_mask:0xf" for m in DP]
    gate += [f"v_mul_f32 v{vGV}, 0xbfb8aa3b, v{vGV}", f"v_exp_f32 v{vGV}, v{vGV}", f"v_add_f32 v{vGV}, 1.0, v{vGV}", f"v_rcp_f32 v{vGV}, v{vGV}",
             "s_mov_b32 exec_lo, 0x10001", "s_mov_b32 exec_hi, 0x10001",
             (f"buffer_store_dword v{vGV}, v{vGS}, {srd(S_WS)}, 0 offen sc1", 'hst2'), "s_mov_b64 exec, -1"]
    a.run(ln[:41])
    a.run([stamp('q_in')])
    nq = cfg.get('kvq1', 4)
    if nq:
        a.run(kv_batch(kvq[:nq])); kvq = kvq[nq:]
    a.run(ln[41:])
    a.wait('lnw')
    a("s_barrier")
    a.run([stamp('barL')])
    HB = 64
    H2 = cfg.get('h2', 1)
    for u, off in enumerate((0, 64, 256, 128, 192)):
        for e2 in range(2):
            a(f"ds_read_b64_tr_b16 {vr(HB+4*u+2*e2,2)}, v{vA1} offset:{off + e2*4*PL}")
    if cfg.get('dummyst') is not None:
        a(f"s_mov_b32 s{S_WS+2}, 0x4000000")
        a(f"v_add_u32 v{vT}, {cfg['dummyst']}, v{vHS}")
        for u, so in enumerate(("0", "s81", "s52", "s53", "s64")):
            a(f"buffer_store_dwordx4 {vr(HB+4*u,4)}, v{vT}, {srd(S_WS)}, {so} offen {cfg.get('dpol', 'sc1')}", tok='dum')
        a.wait('dum')
        a.run([stamp('dum')])
    for u, so in enumerate(("0", "s81", "s52", "s53", "s64")):
        a(f"buffer_store_dwordx4 {vr(HB+4*u,4)}, v{vHS}, {srd(S_WS)}, {so} offen sc1", tok='hst' if u < 3 or not H2 else None)
    a.run([stamp('h_iss')])
    a.run(gate)
    a.run(P.set_tag(vEP))
    vQO, vQO2, vGA, vX1, vQO1 = 36, 41, 253, 250, 15
    QR, vGG, vB2 = 44, 16, 17

    def bigset():
        a(f"s_bfe_u32 s{sT0}, s{sST}, 0x10001")
        a(f"s_mul_i32 s{sT0}, s{sT0}, {cfg.get('rkB', 0)}")
        a(f"s_add_u32 s{sT0}, s{sT0}, s{sDT}")
        a(f"s_and_b32 s{sT0}, s{sT0}, 3")
        a(f"s_mul_i32 s{TK}, s{sT0}, 3072")
        a(f"s_and_b32 s{sSP}, s{sST}, {cfg.get('swB', 1)}")
        for j in range(1, 12):
            a(f"s_add_u32 s{sT0}, s{TK+j-1}, 1024")
            a(f"s_cmp_lt_u32 s{sT0}, {12*1024}")
            a(f"s_cselect_b32 s{TK+j}, s{sT0}, 0")
        a(f"s_mul_i32 s{sT0}, s{sW}, {384*4096}")
        a(f"s_lshl_b32 s{sT1}, s{sST}, 7")
        a(f"s_add_u32 s{sT0}, s{sT0}, s{sT1}")
        a.run(P.weight_src(4096, sT0) + P.weight_dst(True))
        a.run(P.conv_setup(NC))
        a.run(P.conv_setup2(NC))
        a(f"s_lshl2_add_u32 s{sT0}, s{sST}, s{sW}")
        a(f"v_lshl_add_u32 v{vT}, s{sT0}, 4, v{vI}")
        a(f"v_lshlrev_b32 v{vX1}, 1, v{vT}")
        a(f"v_mul_u32_u24 v{vT}, 1280, v{vT}")
        a(f"s_mul_i32 s{sT0}, s{sDT}, 320")
        a(f"v_add_u32 v{vT}, s{sT0}, v{vT}")
        a(f"v_lshl_add_u32 v{vQO2}, v{vH}, 4, v{vT}")
        a(f"s_lshl_b32 s{sT0}, s{sSP}, 6")
        a(f"v_add_u32 v{vQO}, s{sT0}, v{vQO2}")
        a(f"v_subrev_u32 v{vQO1}, s{sT0}, v{vQO2}")
        a(f"s_lshl1_add_u32 s{sT0}, s{sST}, s{sT2}")
        a(f"s_lshl3_add_u32 s{sT0}, s{sT0}, s{sT3}")
        a(f"s_lshl_b32 s{sT0}, s{sT0}, 4")
        a(f"s_add_u32 s{sT0}, s{sT0}, {WS_G}")
        a(f"v_lshl_add_u32 v{vT}, v{vR}, 5, s{sT0}")
        a(f"v_lshl_add_u32 v{vGA}, v{vC}, 2, v{vT}")

    SP = cfg.get('setp', 1)
    if SP == 0:
        bigset()
    nq = cfg.get('kvq2', 7)
    if nq:
        a.run(kv_batch(kvq[:nq])); kvq = kvq[nq:]
    a.wait('hst' if H2 else 'hst2')
    a.run([P.flag_wg(sU3, 'f1'), stamp('barH')])
    if kvq:
        a.run(kv_batch(kvq))
    CF = 148
    for u in range(5):
        a(f"global_load_dwordx2 {vr(CF+2*u,2)}, v{vS0}, {sp(P_SH)} offset:{128*u}")
    if SP == 1:
        bigset()
    a.run(P.ssm_loads(NC))

    def helper():
        HR = cfg.get('hlpB', 6)
        if HR:
            a(f"s_add_u32 s{sT0}, s{sST}, 4")
            a(f"s_and_b32 s{sT0}, s{sT0}, 7")
            a(f"s_mul_i32 s{sT1}, s{sT0}, {HR}")
            a(f"s_cmp_eq_u32 s{sT0}, 7")
            a(f"s_cselect_b32 s{sU2}, {OOB}, 0")
            a(f"s_lshl2_add_u32 s{sT0}, s{sW}, s{sDT}")
            a(f"s_mul_i32 s{sT0}, s{sT0}, 96")
            a(f"s_add_u32 s{sT0}, s{sT0}, s{sT1}")
            a(f"s_add_u32 s{sT0}, s{sT0}, {96 - 7*HR}")
            a(f"v_add_lshl_u32 v{vT}, s{sT0}, v0, 12")
            a(f"s_lshl_b32 s{sT0}, s{sXQ}, 10")
            a(f"s_add_u32 s{sT0}, s{sT0}, 384")
            a(f"s_add_u32 s{sU2}, s{sU2}, s{sT0}")
            a(f"s_mov_b64 exec, {hex((1 << HR) - 1)}")
            a(f"buffer_load_dword v251, v{vT}, {srd(S_W)}, s{sU2} offen")
            a("s_mov_b64 exec, -1")
    WP = cfg.get('wBpre', 1)
    if WP:
        helper()
    if WP >= 2:
        a.run(P.w_step())

    if H2:
        a(f"s_mul_i32 s{sU3}, s{sJ}, 16")
        a(f"s_add_u32 s{sU3}, s{sU3}, {WS_F1 + 0x4000}")
        a.wait('kvdma', 'hst2')
        a.run([P.flag_wg(sU3, 'f2'), stamp('barK')])
    else:
        a.wait('kvdma')
        a.run(["s_barrier", stamp('barK')])
    KR, KO = 64, 160

    def kv_reads(u):
        it = [f"ds_read_b64_tr_b16 {vr(KR+10*u+2*j,2)}, v{vKVA} offset:{32*u + 4*j*PK + (32 if j == 2 else 0)}" for j in range(3)]
        it += [f"ds_read_b64_tr_b16 {vr(KR+10*u+6+2*j,2)}, v{vKVA} offset:{32*u + 4*j*PK + (L_VI-L_KI)}" for j in range(2)]
        return it

    def kv_compute(u):
        it = []
        k = KR + 10 * u
        c10, c32 = CF + 2 * u, CF + 2 * u + 1
        SH, AC, VF, OUT = 116, 124, 132, KO + 4 * u
        for n in range(5):
            it.append(f"v_alignbit_b32 v{SH+n}, v{k+n+1}, v{k+n}, 16")
        pr = lambda e: (k + (e + 1) // 2, k + (e + 3) // 2) if e & 1 else (SH + e // 2, SH + e // 2 + 1)
        for e in range(8):
            it.append(f"v_dot2_f32_bf16 v{AC+e}, v{pr(e)[0]}, v{c32}, 0")
        for e in range(8):
            it.append(f"v_dot2_f32_bf16 v{AC+e}, v{pr(e)[1]}, v{c10}, v{AC+e}")
        for n in range(4):
            it.append(f"v_lshlrev_b32 v{VF+2*n}, 16, v{k+6+n}")
            it.append(f"v_and_b32 v{VF+2*n+1}, 0xffff0000, v{k+6+n}")
        for n in range(4):
            it.append(f"v_pk_mul_f32 {vr(AC+2*n,2)}, {vr(AC+2*n,2)}, {vr(VF+2*n,2)}")
        for n in range(4):
            it.append(f"v_cvt_pk_bf16_f32 v{OUT+n}, v{AC+2*n}, v{AC+2*n+1}")
        it.append((f"buffer_store_dwordx4 {vr(OUT,4)}, v{vKVS}, {srd(S_WS)}, {'0' if u == 0 else f's{79+u}'} offen sc1", 'kvst'))
        return it
    a.run(kv_reads(0) + kv_reads(1))
    if WP & 1:
        a.run(P.w_step())
    for u in range(10):
        a(f"v_alignbit_b32 v{CF+u}, v{CF+u}, v{CF+u}, 16")
    for u in range(5):
        a.run(merge(kv_compute(u), kv_reads(u + 2) if u < 3 else []))
    a.run([stamp('kv_done')])
    if not cfg.get('wBpre', 1):
        helper()
    for _ in range(cfg.get('wB0', 1)):
        a.run(P.w_step())
    a.wait('kvst')
    a.run([P.flag_wg(sFJ, 'fk') if KW == 1 else P.flag(sFJ), stamp('barV')] + P.zflag_addr(sFJ, 0))
    a(f"global_load_ushort v{vB2}, v{vX1}, {sp(P_B2)}")
    while P.nxt < cfg.get('pollB', 7):
        a.run(P.w_step())
    a(P.poll_issue(vP1, 16, KW, 204))
    for _ in range(cfg.get('pollgapB', 0)):
        a.run(P.w_step())
    a.run([P.poll_check('fk', vP1, 16, KW, 204), stamp('fk_ok')])
    a.run(P.x_loads(NC))
    qa = lambda p: f"v{(vQO, vQO1, vQO, vQO1, vQO2)[p]}"
    qld = [f"global_load_dwordx4 {vr(QR+4*p,4)}, {qa(p)}, {sp(P_Q)} offset:{64*p}" for p in range(5)]
    for _ in range(cfg.get('xgapB', 1)):
        a.run(P.w_step())
    a.wait('xd')
    a("s_barrier")
    a.run([stamp('barC')])

    CPB = cfg.get('cpreB', 4)
    a.run(P.conv_pre(CPB))
    while P.nxt < NR:
        a.run(P.w_step())
    S = P.conv_sched(NT, CPB, cfg.get('ccap', 2.3), cfg.get('sg0', 100))
    cS, cE = cfg.get('cS', 0), cfg.get('cE', NMF - 36)
    nst = 12 - P.nxt
    per = (cE - cS) / (nst + 1)
    for r in range(nst):
        p0 = cS + r * per
        it = P.w_step()
        for k, x in enumerate(it[:9]):
            S.add('wd', [x], int(p0 + k * per / 14), int(p0 + (k + 1) * per / 14))
        p1 = p0 + per
        S.add('w', it[9:11], int(p1 - per / 5), int(p1) - 1)
        S.add('w', it[11:12], int(p1), int(p1))
        for k, x in enumerate(it[12:]):
            S.add('w', [x], int(p1 + k * per / 4), int(p1 + k * per / 4))
    S.add('wd', P.w_step(), int(cE - per), int(cE) - 1, pace=per / 11)
    tail = []
    while P.drn < 12:
        tail += P.w_step()
    S.add('wd', tail, cE, None, pace=(NMF - cE) / len(tail))
    vUL = 10
    uset = [f"s_mul_i32 s{sT0}, s{sDT}, 120",
            f"s_mul_i32 s{sT1}, s{sW}, 6",
            f"s_add_u32 s{sT0}, s{sT0}, s{sT1}",
            f"v_mul_u32_u24 v{vT}, 43, v0",
            f"v_lshrrev_b32 v{vT}, 8, v{vT}",
            f"v_mul_u32_u24 v{vT}, 18, v{vT}",
            f"v_add3_u32 v{vP0}, s{sT0}, v0, v{vT}",
            f"v_mul_u32_u24 v{vP0}, {FSU}, v{vP0}",
            f"v_add_u32 v{vP0}, {WS_FU}, v{vP0}",
            f"s_mul_i32 s{sT0}, s{sDT}, {5*48}",
            f"s_lshl1_add_u32 s{sT0}, s{sT1}, s{sT0}",
            f"s_lshl_b32 s{sT0}, s{sT0}, 10",
            f"s_add_u32 s{sT0}, s{sT0}, {WS_U}",
            f"v_add_u32 v{vUL+4}, s{sT0}, v1",
            f"s_mul_i32 s{sT0}, s{sSP}, {96*1024}",
            f"v_add_u32 v{vUL}, s{sT0}, v{vUL+4}",
            f"s_sub_u32 s{sT0}, {96*1024}, s{sT0}",
            f"v_add_u32 v{vUL+2}, s{sT0}, v{vUL+4}",
            f"v_add_u32 v{vUL+1}, {48*1024}, v{vUL}",
            f"v_add_u32 v{vUL+3}, {48*1024}, v{vUL+2}",
            f"v_add_u32 v{vUL+4}, {192*1024}, v{vUL+4}"]
    S.add('set', uset, 40, 118)
    for k, x in enumerate(qld):
        qp = cfg.get('qS', 20) + cfg.get('qD', 16) * k
        S.add('q', [x], qp, qp)
    pU = NMF - cfg.get('pU0', 16)
    S.add('set', [P.poll_issue(vP0, 30)], pU, pU)
    NB2, GR2, UE = cfg.get('nb2', 16), cfg.get('grp2', 2), cfg.get('uearly', 8)
    UBUF = ([ar(192 + 4*i, 4) for i in range(16)] + [vr(92 + 4*i, 4) for i in range(4)])[:NB2]
    vUM = 220

    def u_load(n):
        m, j = divmod(n, 12)
        return f"buffer_load_dwordx4 {UBUF[n % NB2]}, v{vUL+m if m < 5 else vUM+m-5}, {srd(S_WS)}, s{TK+j} offen {cfg.get('apol', 'sc1')}"
    ustart = [P.poll_check('fu0', vP0, 30), stamp('fu0_ok')] + [u_load(n) for n in range(UE)]
    UEP = cfg.get('uep', 1)
    P.conv_run(S, NT, False, mid=[ustart if k == UEP else [] for k in range(3)])

    NB2, GR2, UE = cfg.get('nb2', 16), cfg.get('grp2', 2), cfg.get('uearly', 8)
    UBUF = ([ar(192 + 4*i, 4) for i in range(16)] + [vr(92 + 4*i, 4) for i in range(4)])[:NB2]
    AC2, OWN, RD2, RD4 = (108, 120), 132, 172, 208
    GQ, ZL, ZRg, ZU = 228, 64, 76, 88
    vZG, vZLW, vZT, vOG, vR2R, vR2W, vUM = 20, 21, 22, 28, 33, 25, 220
    vR2S, vR2X, PDZ, vP2 = 23, 30, 226, 225
    opol = cfg.get('opol', 'sc1')
    g2set = [f"v_add_u32 v{vUM+m}, {cfg.get('wiU', 20*48*1024)}, v{vUL+m}" for m in range(5)]
    g2set += [f"v_add_u32 v{vP0}, {20*24*FSU}, v{vP0}",
              f"v_lshrrev_b32 v{vT}, 3, v0",
              f"v_lshl_add_u32 v{vT}, s{sW}, 3, v{vT}",
              f"v_and_b32 v{vT2}, 7, v0",
              f"v_lshlrev_b32 v{vT2}, 4, v{vT2}",
              f"v_lshl_add_u32 v{vZG}, v{vT}, 12, v{vT2}",
              f"v_mul_u32_u24 v{vT}, {PZ}, v{vT}",
              f"v_add_u32 v{vT}, v{vT}, v{vT2}",
              f"v_add_u32 v{vZLW}, {L_ZI}, v{vT}",
              f"s_mul_i32 s{sT0}, s{sDT}, {160*4096}",
              f"s_lshl_b32 s{sT1}, s{sST}, 7",
              f"s_add_u32 s{sT0}, s{sT0}, s{sT1}",
              f"s_add_u32 s{sT0}, s{sT0}, {WS_Z}",
              f"s_lshl_b32 s{sT1}, s{sSP}, 17",
              f"s_add_u32 s80, s{sT0}, s{sT1}",
              f"s_sub_u32 s81, s{sT0}, s{sT1}",
              f"s_add_u32 s81, s81, {32*4096}",
              f"s_add_u32 s82, s80, {64*4096}",
              f"s_add_u32 s83, s81, {64*4096}",
              f"s_add_u32 s{sX0}, s{sT0}, {128*4096}",
              f"v_lshl_add_u32 v{vT}, v{vH}, 3, v{vR}",
              f"v_mul_u32_u24 v{vT}, {PZ}, v{vT}",
              f"s_lshl_b32 s{sT0}, s{sW}, 5",
              f"s_add_u32 s{sT0}, s{sT0}, {L_ZI}",
              f"v_lshl_add_u32 v{vZT}, v{vC}, 3, s{sT0}",
              f"v_add_u32 v{vZT}, v{vZT}, v{vT}"]
    for jn in range(1, 4):
        g2set += [f"s_xor_b32 s{sT0}, s{sW}, {jn}",
                  f"s_mul_i32 s{sT0}, s{sT0}, 3072",
                  f"s_add_u32 s{sT0}, s{sT0}, {(jn-1)*1024}",
                  f"v_add_u32 v{vR2W+jn-1}, s{sT0}, v1",
                  f"v_add_u32 v{vR2X+jn-1}, {L_RED}, v{vR2W+jn-1}"]
    g2set += [f"s_mul_i32 s{sT0}, s{sW}, 3072",
              f"v_add_u32 v{vR2R}, s{sT0}, v1",
              f"v_add_u32 v{vR2S}, {L_RED}, v{vR2R}",
              f"s_lshl3_add_u32 s{sT0}, s{sDT}, s{sW}",
              f"s_lshl_b32 s{sT0}, s{sT0}, 2",
              f"v_lshl_add_u32 v{vP1}, v{vR}, 4, v{vC}",
              f"v_add_u32 v{vP1}, s{sT0}, v{vP1}",
              f"v_mul_u32_u24 v{vP1}, {FSZ}, v{vP1}",
              f"s_and_b32 s{sT1}, s{sST}, 1",
              f"s_lshl_b32 s{sT1}, s{sT1}, 3",
              f"s_add_u32 s{sT1}, s{sT1}, {WS_FZ}",
              f"v_add_u32 v{vP1}, s{sT1}, v{vP1}",
              f"s_lshl2_add_u32 s{sT0}, s{sDT}, s{sW}",
              f"v_and_b32 v{vT}, 7, v0",
              f"v_lshl_add_u32 v{vP2}, s{sT0}, 3, v{vT}",
              f"v_mul_u32_u24 v{vP2}, {FSZ}, v{vP2}"]
    Z2 = NC == 2 and cfg.get('z2', 1)
    if Z2:
        g2set += [f"s_and_b32 s{sT1}, s{sST}, 3", f"s_lshl_b32 s{sT1}, s{sT1}, 2", f"s_add_u32 s{sT1}, s{sT1}, {WS_FZ + 128*FSZ + 16}",
                  f"v_add_u32 v{vP2}, s{sT1}, v{vP2}"]
    else:
        g2set += [f"v_add_u32 v{vP2}, s{sT1}, v{vP2}", f"v_cmp_lt_u32 vcc, 7, v0", "s_nop 1", f"v_cndmask_b32 v{vP1}, v{vP1}, v{vP2}, vcc"]
    nz0 = 16 if NC == 3 else 8
    nz1 = 16 if NC == 2 and not Z2 else 8
    zso = (80, 81, 82, 83, sX0)
    ptile = ((0, 1), (2, 3), (5, 6), (7, 8), (4, 9))

    def u_load(n):
        m, j = divmod(n, 12)
        return f"buffer_load_dwordx4 {UBUF[n % NB2]}, v{vUL+m if m < 5 else vUM+m-5}, {srd(S_WS)}, s{TK+j} offen {cfg.get('apol', 'sc1')}"

    def mf2(n, jn):
        m, j = divmod(n, 12)
        d = vr(OWN + 4 * m, 4) if jn == 0 else vr(AC2[m & 1] + 4 * (jn - 1), 4)
        return f"v_mfma_f32_16x16x32_bf16 {d}, {UBUF[n % NB2]}, {ar(16*j+4*jn,4)}, {'0' if j == 0 else d}"
    rd = lambda m, s: [f"ds_read_b128 {vr(RD2+12*s+4*k,4)}, v{vR2R if m < 5 else vR2S} offset:{(m % 5)*12288 + k*1024}" for k in range(3)]
    ad = lambda m, s: [f"v_add_f32 v{OWN+4*m+r}, v{OWN+4*m+r}, v{RD2+12*s+4*k+r}" for k in range(3) for r in range(4)]
    wr = lambda m: [(f"ds_write_b128 v{(vR2W if m < 5 else vR2X)+jn-1}, {vr(AC2[m & 1]+4*(jn-1),4)} offset:{(m % 5)*12288}", f'r2w{m}') for jn in range(1, 4)]
    z_ld = lambda ps: [f"buffer_load_dwordx4 {vr(ZL+4*i,4)}, v{vZG}, {srd(S_WS)}, s{zso[p]} offen sc1" for i, p in enumerate(ps)]
    z_wr = lambda ps: [f"ds_write_b128 v{vZLW}, {vr(ZL+4*i,4)} offset:{p*32*PZ}" for i, p in enumerate(ps)]
    z_rd = lambda p: [f"ds_read_b64_tr_b16 {vr(ZRg+4*(p % 3)+2*hh,2)}, v{vZT} offset:{(32*p + 4*hh)*PZ}" for hh in range(2)]

    def gq(p):
        it = []
        pp = GQ + 8 * (p % 3)
        for k in range(4):
            it += [f"v_lshlrev_b32 v{pp+2*k}, 16, v{QR+4*p+k}", f"v_and_b32 v{pp+2*k+1}, 0xffff0000, v{QR+4*p+k}",
                   f"v_mul_f32 v{pp+2*k}, v{pp+2*k}, v{vGG}", f"v_mul_f32 v{pp+2*k+1}, v{pp+2*k+1}, v{vGG}"]
        return it
    sc = lambda m: [f"v_fma_f32 v{OWN+4*m+k}, v{OWN+4*m+k}, v{vOG}, v{vB2}" for k in range(4)]

    def fin(p, hh):
        it = []
        o = OWN + 4 * ptile[p][hh]
        for k in range(2):
            zu, z, g = ZU + 2 * k, ZRg + 4 * (p % 3) + 2 * hh + k, GQ + 8 * (p % 3) + 4 * hh + 2 * k
            it += [f"v_lshlrev_b32 v{zu}, 16, v{z}", f"v_and_b32 v{zu+1}, 0xffff0000, v{z}"]
            if (p, hh) == (4, 1):
                it += [f"v_fma_f32 v{g}, v{g}, v{zu}, v{vB2}", f"v_fma_f32 v{g+1}, v{g+1}, v{zu+1}, v{vB2}"]
            else:
                it += [f"v_fmac_f32 v{o+2*k}, v{g}, v{zu}", f"v_fmac_f32 v{o+2*k+1}, v{g+1}, v{zu+1}",
                       f"v_cvt_pk_bf16_f32 v{QR+4*p+2*hh+k}, v{o+2*k}, v{o+2*k+1}"]
        return it
    ost = lambda p: [f"global_store_dwordx4 {qa(p)}, {vr(QR+4*p,4)}, {sp(P_OUT)} offset:{64*p} {opol if p < cfg.get('opn', 5) else ''}"]
    if cfg.get('dly'):
        a(f"s_sleep {cfg['dly']}")
    if UEP == 3:
        a.run(ustart)
    a(f"buffer_load_dword v{vGG}, v{vGA}, {srd(S_WS)}, 0 offen sc1")
    a.run(g2set)
    mf, pos = [], {}
    for q in range(120 // GR2):
        ns = range(q * GR2, (q + 1) * GR2)
        for jn in ((1, 2, 3, 0) if ns[0] < 108 else (1, 2, 3)):
            for n in ns:
                pos.setdefault(n, len(mf))
                mf.append(mf2(n, jn))
    pown = len(mf)
    mf += [mf2(n, 0) for n in range(108, 120)]
    S = Sched(mf)
    for n in range(120):
        S.reserve(pos[n] - 1)
    UC = cfg.get('pUC', 210)
    k = 0
    for n in range(UE, 120):
        free = 4 * GR2 * ((n - NB2) // GR2 + 1) if n >= NB2 else 0
        p = max(free, 4 * (n - NB2 + GR2) + 1, 2 * k)
        if n >= 60:
            p = max(p, min(UC + 1 + 2 * (n - 60), 4 * n - 2 if UC < 236 else max(239, 4 * (n - UE))))
        if n == 60:
            S.add('u', [P.poll_check('fu1', vP0, 30), stamp('fu1_ok')], p, p)
            pZ0 = p
        S.add('u', [u_load(n)], p, p)
        k += 1
    lastu = p
    S.add('st', [stamp('g2first')], 0, 0)
    S.add('st', [stamp('g2mid')], 240, 240)
    pF = cfg.get('pF', 40)
    S.add('z', [('wait', 'zst2' if NC == 3 else 'zst1'), stamp('barF'), P.flag(sFJ)], pF, pF + 1)
    zB = (0, 1) if NC == 2 else (0, 1, 4)
    zA = (2, 3, 4) if NC == 2 and not Z2 else (2, 3)
    UP = UC - cfg.get('pUP', 44)
    S.add('z', [P.poll_issue(vP0, 30), P.poll_issue(vP1, nz0, 2, PDZ)], UP, UP + 1)
    S.add('z', [P.poll_check('fz0', vP1, nz0, 2, PDZ), stamp('fz0_ok')] + z_ld(zB) + [f"v_add_u32 v{vP1}, {128*FSZ}, v{vP1}"], pZ0 + 3, pZ0 + 14, pace=2)
    ZP1, ZC1 = cfg.get('zp1', [325, 372])
    S.add('z', [P.poll_issue(vP1, nz1, 2, PDZ)], ZP1, ZP1)
    S.add('z', [P.poll_check('fz1', vP1, nz1, 2, PDZ), stamp('fz1_ok')] + z_ld(zA), ZC1, ZC1 + 8, pace=2)
    if Z2:
        ZP2, ZC2 = cfg.get('zp2', [390, 434])
        S.add('z2', [P.poll_issue(vP2, 8)], ZP2, ZP2)
        S.add('z2', [P.poll_check('fz2', vP2, 8), stamp('fz2_ok'),
                    f"buffer_load_dwordx4 {vr(ZL+8,4)}, v{vZG}, {srd(S_WS)}, s{zso[4]} offen sc1"], ZC2, ZC2 + 1)
    S.add('fin', [f"v_lshlrev_b32 v{vB2}, 16, v{vB2}", f"v_sub_f32 v{vOG}, 1.0, v{vGG}", f"v_mul_f32 v{vB2}, v{vB2}, v{vOG}"] + gq(0) + gq(1) + gq(2), 44, 200)
    OS = cfg.get('osat', 450)
    bars = cfg.get('bars', [3, 5, 7, 8])
    zlate = cfg.get('zlate', 0)
    flat = lambda l: [x for y in l for x in y]
    done = 0
    tailz = []
    for m in range(9):
        p = 48 * (m + 1)
        if m == 5:
            S.add('red', z_wr(zB), p - 14, p - 1, pace=4)
        if m == 8 and not zlate:
            S.add('red', z_wr(zA), p - 14, p - 1, pace=4)
        S.add('red', wr(m), p, p + 8, pace=3)
        if m in bars:
            S.add('red', [('wait', f'r2w{m}'), "s_barrier"], p + 11, p + 12)
            ms = list(range(done, m + 1))
            done = m + 1
            dl = None if m == 8 else 48 * (bars[bars.index(m) + 1] + 1) + 10
            it = []
            if m == 5:
                it += z_rd(0) + z_rd(1)
            if m == 8 and not zlate:
                it += z_rd(2) + z_rd(3) + ([] if Z2 else z_rd(4))
            it += flat(rd(t, t % 3) for t in ms[:3])
            if m == 8 and not zlate:
                it += ([] if Z2 else fin(4, 0) + fin(4, 1)) + fin(2, 0)
            if m == 5 and ms[0] > 1:
                it += fin(0, 0) + fin(0, 1)
            for i, t in enumerate(ms):
                it += ad(t, t % 3) + (rd(ms[i + 3], t % 3) if i + 3 < len(ms) else []) + sc(t)
            if m == 5:
                it += (fin(0, 0) + fin(0, 1) if ms[0] <= 1 else []) + fin(1, 0) + fin(1, 1) + gq(3) + gq(4)
                dl = min(dl, OS - 1)
                S.add('os', ost(0) + ost(1), OS, OS + 4, pace=3)
            if m == 8:
                last = fin(2, 1) + ost(2) + fin(3, 0) + fin(3, 1) + ost(3)
                if zlate:
                    tailz = fin(2, 0) + last + fin(4, 0) + fin(4, 1)
                else:
                    it += last
            S.add('fin', it, p + 13, dl)
    if zlate:
        S.add('red', z_wr(zA), pown - 8, pown, pace=3)
    S.add('red', wr(9), pown + 1, pown + 6, pace=2)
    ZIN = cfg.get('zin', 1)
    zw2 = (f"ds_write_b128 v{vZLW}, {vr(ZL+8,4)} offset:{4*32*PZ}", 'zw2')
    if Z2 and ZIN:
        S.add('red', [zw2], pown + 8, pown + 8)
    d2 = cfg.get('d2', '')
    post = []
    if 'z' in d2:
        a.run([x[0] for x in S.th['z'][:3]])
        post += [x[0] for x in S.th['z'][3:] + S.th.get('z2', [])]; S.th['z'] = []; S.th['z2'] = []
        S.th['u'] = [x for x in S.th['u'] if not callable(x[0])]
    for nm in ('red', 'fin', 'os'):
        if nm[0] in d2:
            post += [x[0] for x in S.th[nm]]; S.th[nm] = []
    its = S.items(keep=('fin',))
    if 'u' in d2:
        its = [x for x in its if not txt_of(x).startswith('buffer_load_dwordx4 a[')]
    if 'b' in d2:
        its = [x for x in its if txt_of(x) != 's_barrier']
    if 'w' in d2:
        its = [x for x in its if not (txt_of(x).startswith('ds_write_b128') and x[1:] != ('r2w9',)) and not (txt_of(x) == 'wait' and x[1].startswith('r2w'))]
    a.run(its)
    a.run([stamp('g2x')] + ([] if cfg.get('nopost') else post))
    P.info['g2'] = (S.over, S.under, len(S.left.get('fin', [])))
    a.run([stamp('g2mfma')])
    left = S.left.get('fin', [])
    if Z2:
        assert not zlate
        tailz = fin(4, 0) + fin(4, 1)
        if not ZIN:
            a.run(left)
            left = []
            a(zw2[0], tok='zw2')
        a.wait('zw2')
    if 'r2w9' in a.toks:
        a.wait('r2w9')
    a("s_barrier")
    if Z2:
        a.run(z_rd(4))
    for k in range(3):
        a(f"ds_read_b128 {vr(RD4+4*k,4)}, v{vR2S} offset:{4*12288 + k*1024}")
    if zlate:
        a.run(z_rd(2) + z_rd(3) + z_rd(4))
    a.run(left + tailz)
    for k in range(3):
        for hh in range(2):
            a(f"v_pk_add_f32 {vr(OWN+36+2*hh,2)}, {vr(OWN+36+2*hh,2)}, {vr(RD4+4*k+2*hh,2)}")
    g = GQ + 8 + 4
    for hh in range(2):
        a(f"v_pk_fma_f32 {vr(g+2*hh,2)}, {vr(OWN+36+2*hh,2)}, {vr(vOG,2)}, {vr(g+2*hh,2)} op_sel_hi:[1,0,1]")
    for hh in range(2):
        a(f"v_cvt_pk_bf16_f32 v{QR+18+hh}, v{g+2*hh}, v{g+2*hh+1}")
    a.run(ost(4))
    P.finish()
    a("s_endpgm")
    return P


def gen(cfg):
    h = Asm()
    h("s_load_dwordx16 s[36:51], s[0:1], 0")
    h("s_load_dwordx16 s[52:67], s[0:1], 56")
    if cfg.get('stamps') or cfg.get('amp'):
        h("s_memrealtime s[96:97]")
    h("s_cmp_ge_u32 s2, 256")
    h("s_cbranch_scc1 L_end")
    h("v_lshrrev_b32 v1, 6, v0")
    h("v_and_b32 v0, 63, v0")
    h(f"v_readfirstlane_b32 s{sW}, v1")
    rb = cfg.get('rolebit', 0)
    h(f"s_lshr_b32 s{sID}, s2, 3")
    if rb == 0:
        h(f"s_bfe_u32 s{sXQ}, s2, 0x20001")
    elif rb == 2:
        h(f"s_and_b32 s{sXQ}, s2, 3")
    else:
        h(f"s_bfe_u32 s{sXQ}, s2, 0x10002")
        h(f"s_and_b32 s{sT0}, s2, 1")
        h(f"s_lshl1_add_u32 s{sXQ}, s{sXQ}, s{sT0}")
    h(f"s_lshl_b32 s{sJ}, s{sXQ}, 5")
    h(f"s_add_u32 s{sJ}, s{sJ}, s{sID}")
    lay = cfg.get('lay', 'C')
    if lay == 'C':
        if cfg.get('cpf', 1):
            h(f"s_bitcmp0_b32 s2, {rb}")
            h(f"s_cselect_b32 s{sT1}, L_Amain-L_pcC, 0")
            h.run([x.replace("@-L_pcC", f"s{sT1}") for x in Prog('C', cfg).code_prefetch("@", "L_end")])
    elif lay == 'A':
        h(f"s_bitcmp1_b32 s2, {rb}")
        h("s_cbranch_scc1 L_B")
    else:
        h(f"s_bitcmp0_b32 s2, {rb}")
        h("s_cbranch_scc1 L_A")
    A, B = prog_A(cfg), prog_B(cfg)
    ref = open(f"cdna_kernels/{NAME}.s.ref").read().split('\n')
    head = [l for l in ref if l.startswith(';') and '@launch' not in l and 'Override' not in l and 'grid=ceil' not in l]
    txt = '\n'.join(head) + f"\n; @launch grid=(256,1,1) block=(256,1,1) lds={L_END}\n"
    txt += f""".amdgcn_target "amdgcn-amd-amdhsa--gfx950"
.text
.globl {NAME}_kernel
.p2align 8
.type {NAME}_kernel,@function
{NAME}_kernel:
"""
    if lay == 'C':
        J = lambda l: '\n'.join(l) + '\n'
        txt += (h.text() + J(A.a.out[:A.split0]) + J(B.a.out[:B.split0]) + f"    s_waitcnt lgkmcnt(0)\n    s_bitcmp1_b32 s2, {rb}\n    s_cbranch_scc1 L_Bgo\n" +
                J(A.a.out[A.split0:A.split]) + "L_Bgo:\n" + J(B.a.out[B.split0:]) + ".p2align 7\n" + J(A.a.out[A.split:]) + "L_end:\n    s_endpgm\n")
    elif lay == 'A':
        txt += h.text() + '\n'.join(A.a.out[:A.split]) + '\n' + B.a.text() + ".p2align 7\n" + '\n'.join(A.a.out[A.split:]) + "\nL_end:\n    s_endpgm\n"
    else:
        txt += h.text() + B.a.text() + ".p2align 7\nL_A:\n" + '\n'.join(A.a.out[:A.split-1] + A.a.out[A.split:]) + "\nL_end:\n    s_endpgm\n"
    txt += f""".section .rodata,"a"
.p2align 6
.amdhsa_kernel {NAME}_kernel
  .amdhsa_next_free_vgpr 512
  .amdhsa_next_free_sgpr 102
  .amdhsa_accum_offset 256
  .amdhsa_group_segment_fixed_size 0
  .amdhsa_kernarg_size 120
  .amdhsa_user_sgpr_count 2
  .amdhsa_user_sgpr_kernarg_segment_ptr 1
  .amdhsa_system_sgpr_workgroup_id_x 1
  .amdhsa_float_denorm_mode_32 3
.end_amdhsa_kernel
"""
    return txt, dict(n_ins=(A.a.n_ins, B.a.n_ins), n_nop=(A.a.n_nop, B.a.n_nop), stamps=B.names, stampsA=A.names,
                     rolebit=rb, sched=(A.info, B.info))


if __name__ == "__main__":
    import json
    out = sys.argv[1]
    cfg = json.loads(sys.argv[2]) if len(sys.argv) > 2 else {}
    txt, info = gen(cfg)
    open(out, 'w').write(txt)
    print(out, info)


def dmap(T, i):
    dt, m = divmod(T, 5)
    r, g = dt >> 2, dt & 3
    P, hh = (2 * r + (m >> 1), m & 1) if m < 4 else (4, r)
    return 160 * g + 32 * P + 8 * (i >> 2) + 4 * hh + (i & 3)
```

```python
import sys
from asmlib import Asm, merge, Sched

NAME = "gated_mix__ssm_conv_h3__mixer_token_mlp__prompt"

WS_H, WS_U, WS_KV, WS_Z, WS_G = 0x0, 0x280000, 0x480000, 0x700000, 0x980000
WS_F1, WS_FK, WS_FU, WS_FZ, WS_EP, WS_DBG = 0x990000, 0x998000, 0x9A0000, 0x9B0000, 0x9C0000, 0x9D0000
WS_SIZE = 0xA10000
OOB = 0x7F000000
TAGC = 0x9E3779B9

NR = 4
L_RED = 65536
PL = 1344
L_LN = 32768
PK = 704
L_KI = L_RED
L_VI = L_RED + 25600
L_ZSTG = L_RED + 4 * 12288
L_CK = L_RED + 61440
KP, KPAD = 4224, 96
L_CX = L_CK + 3 * KP
XP, XPAD = 4608, 512
L_CAR = L_CX + 3 * XP
L_END = L_CAR + 1600
L_ZI = L_CK
PZ = 144

S_WS, S_K, S_V, S_W, S_SSM = 4, 8, 12, 16, 24
P_Q, P_SH, P_D, P_B1, P_B2, P_GW, P_OUT = 36, 42, 46, 54, 58, 60, 62
TK = 68
sW, sXQ, sID, sA, sB, sJ, sSP, sTAG, sRING, sC0, sFI, sFJ = range(84, 96)
sT0, sT1, sT2, sT3 = 32, 33, 34, 35
sU0, sU1, sU2, sU3 = 20, 21, 22, 23
sX0, sX1, sX2 = 31, 48, 49
sC2 = 39
sCNT = 3
vH, vI, vR, vC, vT, vT2 = 37, 38, 39, 40, 42, 43
VW, VT = 2, 6
vPD = 18
vCA, vCB, vCA2, vCB2 = 20, 21, 22, 23
vCRW, vCRW2, vCRR, vCRR2, vZW, vZR, vZS, vZS2, vCW = 25, 26, 27, 28, 29, 30, 31, 32, 33
vP0, vP1, vTAG = 35, 24, 34
CA, CB, CACC, CY, NSL = 64, 128, 192, 216, 6
CH, CR, ZO = 240, 246, 216
vZF = 252
C20 = 56


def srd(n):
    return f"s[{n}:{n+3}]"


def sp(n):
    return f"s[{n}:{n+1}]"


def vr(n, k):
    return f"v[{n}:{n+k-1}]"


def ar(n, k):
    return f"a[{n}:{n+k-1}]"


def txt_of(x):
    return x if isinstance(x, str) else (x[0] if isinstance(x, tuple) else '')


class Prog:
    def __init__(self, role, cfg):
        self.a = Asm()
        self.role = role
        self.cfg = cfg
        self.stamps = cfg.get('stamps', False)
        self.names = []
        self.npoll = 0
        self.nxt = self.drn = 0
        self.nstep = 16 if role == 'A' else 12
        self.info = {}

    def stamp(self, name):
        def f(a):
            st = self.stamps
            amp = self.cfg.get('amp')
            if amp and amp == [self.role, name]:
                a("s_memrealtime s[98:99]")
            if not st or (st != 1 and name not in st and name not in ('start', 'end')) or (st == 1 and name[0] == 'w' and name != 'w8'):
                return
            k = len(self.names)
            a("s_memtime s[98:99]")
            a("s_memrealtime s[100:101]")
            a(f"v_writelane_b32 v255, s98, {k}")
            a(f"v_writelane_b32 v255, s100, {32+k}")
            self.names.append(name)
        f.cost = 0
        return f

    def weight_src(self, pitch, sbase):
        it = [f"v_lshrrev_b32 v{vT}, 3, v0",
              f"v_and_b32 v{vT2}, 6, v{vT}",
              f"v_xor_b32 v{vT2}, v{vT2}, v0",
              f"v_and_b32 v{vT2}, 7, v{vT2}",
              f"v_mul_u32_u24 v{vT}, {pitch}, v{vT}",
              f"v_lshl_add_u32 v{vT}, v{vT2}, 4, v{vT}",
              f"v_add_u32 v{VW}, s{sbase}, v{vT}"]
        for i in range(1, 4):
            it.append(f"v_add_u32 v{VW+i}, {8*pitch-1024}, v{VW+i-1}")
        return it

    def weight_dst(self, xorw):
        it = [f"v_lshrrev_b32 v{vT}, 2, v0",
              f"v_lshlrev_b32 v{vT}, 7, v{vT}",
              f"v_lshl_add_u32 v{vT}, v{vC}, 3, v{vT}",
              f"v_bfe_u32 v{vT2}, v0, 3, 2"]
        if xorw:
            it.append(f"v_xor_b32 v{vT2}, s{sW}, v{vT2}")
        it += [f"v_lshl_add_u32 v{vT}, v{vT2}, 5, v{vT}",
               f"v_add_u32 v{VT}, s{sRING}, v{vT}"]
        for t in range(1, 4):
            it.append(f"v_xor_b32 v{VT+t}, {t*32}, v{VT}")
        return it

    def w_issue(self, j):
        it = [f"s_mul_i32 s{sU1}, s{TK+j}, {96 if self.role == 'A' else 128}",
              f"s_add_u32 m0, s{sRING}, {(j % NR)*16384}"]
        if j >= NR:
            it.append(('wait', f'wr{j-NR}'))
        for i in range(4):
            it.append((f"buffer_load_dwordx4 v{VW+i}, {srd(S_W)}, s{sU1} offen offset:{i*1024} {self.cfg.get('wpol', '')} lds", f'wd{j}'))
        return it

    def w_drain(self, j):
        it = [('wait', f'wd{j}')]
        for t in range(4):
            for e2 in range(2):
                it.append((f"ds_read_b64_tr_b16 {ar(16*j+4*t+2*e2,2)}, v{VT+t} offset:{(j % NR)*16384 + e2*2048}", f'wr{j}'))
        return it

    def w_step(self):
        it = []
        if self.nxt >= NR or self.nxt == self.nstep:
            it += self.w_drain(self.drn); self.drn += 1
        if self.nxt < self.nstep:
            it += self.w_issue(self.nxt); self.nxt += 1
        return it

    def flag(self, soff):
        return f"s_mov_b64 exec, 1\nbuffer_store_dword v{vTAG}, v0, {srd(S_WS)}, s{soff} offen sc1\ns_mov_b64 exec, -1"

    def flag_wg(self, soff, name):
        def f(a):
            a("s_barrier")
            a(f"s_cmp_lg_u32 s{sW}, 0")
            a(f"s_cbranch_scc1 L_nf_{name}")
            a.begin_cond(name)
            a(self.flag(soff))
            a.end_cond()
            a.label(f"L_nf_{name}")
        return f

    def set_tag(self, v):
        return [f"v_readfirstlane_b32 s{sTAG}, v{v}", f"s_add_u32 s{sTAG}, s{sTAG}, {hex(TAGC)}", f"v_mov_b32 v{vTAG}, s{sTAG}"]

    @staticmethod
    def setexec(n):
        if n == 32:
            return "s_mov_b32 exec_hi, 0"
        if n > 32:
            return f"s_mov_b32 exec_hi, {hex((1 << (n-32)) - 1)}"
        return f"s_mov_b64 exec, {hex((1 << n) - 1)}"

    def poll_load(self, va, wd, vd):
        if wd == 1:
            return f"buffer_load_dword v{vd}, v{va}, {srd(S_WS)}, 0 offen sc1"
        return f"buffer_load_dwordx{wd} {vr(vd,wd)}, v{va}, {srd(S_WS)}, 0 offen sc1"

    def poll_issue(self, va, n=64, wd=1, vd=vPD):
        it = [self.setexec(n)] if n < 64 else []
        it.append(self.poll_load(va, wd, vd))
        if n < 64:
            it.append("s_mov_b64 exec, -1")
        return "\n".join(it)

    def poll_check(self, name, va, n=64, wd=1, vd=vPD):
        name = self.role + name

        def cmp(a):
            if wd == 1:
                a(f"v_cmp_ne_u32 vcc, s{sTAG}, v{vd}")
                return
            a(f"v_xor_b32 v{vd}, s{sTAG}, v{vd}")
            for k in range(1, wd):
                a(f"v_bitop3_b32 v{vd}, v{vd}, v{vd+k}, v{vTAG} bitop3:0xf6")
            a(f"v_cmp_ne_u32 vcc, 0, v{vd}")

        def f(a):
            if n < 64:
                a(self.setexec(n))
            cmp(a)
            a(f"s_mov_b32 s{sCNT}, 0")
            a(f"s_branch L_pk_{name}" if name[1:] in self.cfg.get('nopoll', []) else f"s_cbranch_vccz L_pk_{name}")
            a.label(f"L_pl_{name}")
            a.begin_cond('poll' + name)
            a("s_mov_b64 exec, vcc")
            if self.cfg.get('psleep'):
                a(f"s_sleep {self.cfg['psleep']}")
            a(self.poll_load(va, wd, vd))
            a(f"s_add_u32 s{sCNT}, s{sCNT}, 1")
            a(f"s_cmp_ge_u32 s{sCNT}, 0x40000")
            a(f"s_cbranch_scc1 L_pk_{name}")
            cmp(a)
            a("s_nop 0")
            a(f"s_cbranch_vccnz L_pl_{name}")
            a.end_cond()
            a.label(f"L_pk_{name}")
            a("s_mov_b64 exec, -1")
            if self.stamps:
                a(f"v_writelane_b32 v254, s{sCNT}, {self.npoll}")
                self.npoll += 1
        f.cost = 5
        return f

    def zflag_addr(self, dst, first):
        fsz = self.cfg.get('fsz', 32)
        return [f"s_add_u32 s{dst}, s{sJ}, {first}", f"s_mul_i32 s{dst}, s{dst}, {fsz}",
                f"s_lshl1_add_u32 s{sT0}, s{sT3}, s{sT2}", f"s_lshl2_add_u32 s{dst}, s{sT0}, s{dst}",
                f"s_add_u32 s{dst}, s{dst}, {WS_FZ}"]

    def lanes(self):
        return ["v_lshlrev_b32 v1, 4, v0",
                f"v_lshrrev_b32 v{vH}, 4, v0", f"v_and_b32 v{vI}, 15, v0",
                f"v_bfe_u32 v{vR}, v0, 2, 2", f"v_and_b32 v{vC}, 3, v0",
                f"s_lshr_b32 s{sT2}, s{sW}, 1", f"s_and_b32 s{sT3}, s{sW}, 1",
                f"s_lshl_b32 s{sRING}, s{sW}, 12"]

    def code_prefetch(self, beg, end):
        r = self.role
        return [f"s_getpc_b64 {sp(sU2)}", f"L_pc{r}:",
                f"s_lshl2_add_u32 s{sT2}, s{sID}, s{sW}",
                f"v_lshl_add_u32 v{vT}, s{sT2}, 1, v0",
                f"v_lshlrev_b32 v{vT}, 7, v{vT}",
                f"v_add_u32 v{vT}, {beg}-L_pc{r}, v{vT}",
                f"v_min_u32 v{vT}, {end}-L_pc{r}, v{vT}",
                "s_mov_b64 exec, 3",
                f"global_load_dword v253, v{vT}, {sp(sU2)}",
                "s_mov_b64 exec, -1"]

    def epoch_load(self, v):
        return [f"s_mov_b32 s{sT0}, {WS_EP}", "s_mov_b64 exec, 1",
                f"buffer_load_dword v{v}, v0, {srd(S_WS)}, s{sT0} offen sc1", "s_mov_b64 exec, -1"]

    def conv_setup(self, nch):
        ZR = 68
        it = [f"s_mul_i32 s{sC2}, s{sXQ}, 160",
              f"s_lshl1_add_u32 s{sC0}, s{sID}, s{sC2}",
              f"s_add_u32 s{sC0}, s{sC0}, {64 if self.role == 'A' else 0}",
              f"s_add_u32 s{sC2}, s{sC2}, s{sID}",
              f"s_add_u32 s{sC2}, s{sC2}, 128",
              f"s_lshl_b32 s{sT0}, s{sC0}, 1",
              f"s_load_dword s28, {sp(P_D)}, s{sT0}"]
        if nch == 3:
            it += [f"s_lshr_b32 s{sT1}, s{sC2}, 1", f"s_lshl_b32 s29, s{sT1}, 2", f"s_load_dword s30, {sp(P_D)}, s29"]
        it += [f"s_lshl_b32 s{sX0}, s{sC0}, 12",
               f"s_lshl_b32 s{sT1}, s{sW}, 10",
               f"s_add_u32 s{sX0}, s{sX0}, s{sT1}",
               f"s_add_u32 s{sX1}, s{sX0}, 4096",
               f"s_lshl_b32 s{sX2}, s{sC2}, 12",
               f"s_add_u32 s{sX2}, s{sX2}, s{sT1}"]
        it += [f"v_mov_b32 v{ZR+i}, 0" for i in range(4)]
        it += [f"s_min_u32 s{sT0}, s{sW}, 2",
               f"s_mul_i32 s{sT1}, s{sT0}, {XP}",
               f"s_add_u32 s{sT1}, s{sT1}, {L_CX}",
               f"v_add_u32 v{vT}, s{sT1}, v1",
               f"s_mul_i32 s{sT1}, s{sT0}, {KP}",
               f"s_add_u32 s{sT1}, s{sT1}, {L_CK}",
               f"v_add_u32 v{vT2}, s{sT1}, v1",
               f"s_mul_i32 s{sT1}, s{sT0}, {33*16}",
               f"s_add_u32 s{sT1}, s{sT1}, {L_CAR}",
               f"v_mov_b32 v{vPD}, s{sT1}",
               "s_mov_b32 exec_hi, 0",
               f"ds_write_b128 v{vT}, {vr(ZR,4)}",
               f"s_mov_b64 exec, {hex((1 << (KPAD//16)) - 1)}",
               f"ds_write_b128 v{vT2}, {vr(ZR,4)}",
               "s_mov_b64 exec, 1",
               f"ds_write_b128 v{vPD}, {vr(ZR,4)}",
               "s_mov_b64 exec, -1"]
        it += [f"v_lshl_add_u32 v{vT}, v{vH}, 3, v{vR}",
               f"v_lshlrev_b32 v{vT2}, 2, v{vC}",
               f"v_sub_u32 v{vT2}, v{vT2}, v{vT}",
               f"v_lshlrev_b32 v{vT2}, 3, v{vT2}",
               f"s_mul_i32 s{sT0}, s{sT2}, {KP}",
               f"s_add_u32 s{sT0}, s{sT0}, {L_CK + KPAD + 152 - 32}",
               f"v_add_u32 v{vCA}, s{sT0}, v{vT2}"]
        if nch == 3:
            it.append(f"v_add_u32 v{vCA2}, {L_CK + 2*KP + KPAD + 152 - 32}, v{vT2}")
        it += [f"v_add_lshl_u32 v{vT}, v{vT}, v{vC}, 3",
               f"s_mul_i32 s{sT0}, s{sT2}, {XP}",
               f"s_lshl_b32 s{sT1}, s{sT3}, 7",
               f"s_add_u32 s{sT0}, s{sT0}, s{sT1}",
               f"s_add_u32 s{sT0}, s{sT0}, {L_CX + XPAD - 152}",
               f"v_add_u32 v{vCB}, s{sT0}, v{vT}"]
        if nch == 3:
            it += [f"s_lshl_b32 s{sT0}, s{sW}, 7",
                   f"s_add_u32 s{sT0}, s{sT0}, {L_CX + 2*XP + XPAD - 152 - 256}",
                   f"v_add_u32 v{vCB2}, s{sT0}, v{vT}"]
        return it

    def conv_setup2(self, nch):
        it = [f"s_mul_i32 s{sT0}, s{sT2}, {33*16}",
              f"s_lshl4_add_u32 s{sT0}, s{sT3}, s{sT0}",
              f"s_add_u32 s{sT0}, s{sT0}, {L_CAR}",
              f"v_lshlrev_b32 v{vT}, 2, v{vC}",
              f"v_lshl_add_u32 v{vT2}, v{vR}, 5, v{vT}",
              f"v_add_u32 v{vCRR}, s{sT0}, v{vT2}",
              f"s_add_u32 s{sT0}, s{sT0}, {(16 - 48*32) & 0xffffffff}",
              f"v_lshl_add_u32 v{vCRW}, v0, 5, s{sT0}"]
        if nch == 3:
            it += [f"s_lshl_b32 s{sT0}, s{sW}, 4",
                   f"s_add_u32 s{sT0}, s{sT0}, {L_CAR + 2*33*16}",
                   f"v_lshl_add_u32 v{vT2}, v{vR}, 6, v{vT}",
                   f"v_add_u32 v{vCRR2}, s{sT0}, v{vT2}",
                   f"s_add_u32 s{sT0}, s{sT0}, {(16 - 56*64) & 0xffffffff}",
                   f"v_lshl_add_u32 v{vCRW2}, v0, 6, s{sT0}"]
        it += [f"s_mul_i32 s{sT0}, s{sW}, 3072",
               f"s_add_u32 s{sT0}, s{sT0}, {L_ZSTG}",
               f"v_lshl_add_u32 v{vZW}, v0, 1, s{sT0}",
               f"v_add_u32 v{vZR}, s{sT0}, v1",
               f"v_lshl_add_u32 v{vT}, v{vC}, 1, s{sT0}",
               f"v_lshl_add_u32 v{vZF}, v{vR}, 7, v{vT}",
               f"v_lshrrev_b32 v{vT}, 3, v0",
               f"v_and_b32 v{vT2}, 7, v0",
               f"v_lshlrev_b32 v{vT2}, 4, v{vT2}",
               f"v_lshl_add_u32 v{vZS}, v{vT}, 8, v{vT2}",
               f"s_add_u32 s{sT0}, s{sC0}, s{sT2}",
               f"s_lshl_b32 s{sT0}, s{sT0}, 12",
               f"s_lshl_b32 s{sT1}, s{sT3}, 7",
               f"s_add_u32 s{sT0}, s{sT0}, s{sT1}",
               f"s_add_u32 s{sT0}, s{sT0}, {WS_Z}",
               f"v_add_u32 v{vZS}, s{sT0}, v{vZS}"]
        if nch == 3:
            it += [f"v_lshl_add_u32 v{vZS2}, v{vT}, 9, v{vT2}",
                   f"s_lshl_b32 s{sT0}, s{sC2}, 12",
                   f"s_lshl_b32 s{sT1}, s{sW}, 7",
                   f"s_add_u32 s{sT0}, s{sT0}, s{sT1}",
                   f"s_add_u32 s{sT0}, s{sT0}, {WS_Z}",
                   f"v_add_u32 v{vZS2}, s{sT0}, v{vZS2}"]
        if nch == 3:
            it += [f"s_and_b32 s{sT0}, s{sC2}, 1",
                   f"s_lshl_b32 s{sT0}, s{sT0}, 4",
                   f"s_lshr_b32 s30, s30, s{sT0}",
                   f"s_lshl_b32 s30, s30, 16"]
        fsk = self.cfg.get('fsk', 16)
        it += [f"s_lshl_b32 s{sT0}, s{sT2}, 4", f"s_lshr_b32 s28, s28, s{sT0}", f"s_lshl_b32 s28, s28, 16",
               f"s_lshl_b32 s29, s{sW}, 10",
               f"s_lshr_b32 s{sT0}, s{sXQ}, 1",
               f"s_lshl2_add_u32 s{sT0}, s{sT0}, s{sW}",
               f"v_lshl_add_u32 v{vP1}, s{sT0}, 4, v0",
               f"v_mul_u32_u24 v{vP1}, {fsk}, v{vP1}",
               f"v_add_u32 v{vP1}, {WS_FK}, v{vP1}"]
        return it

    def ssm_loads(self, nch):
        return [(f"s_add_u32 m0, s29, {L_CK + KPAD + cs*KP}\nbuffer_load_dwordx4 v1, {srd(S_SSM)}, s{so} offen {self.cfg.get('spol', '')} lds\ns_add_u32 s{so}, s{so}, {WS_KV}", 'kd')
                for cs, so in enumerate((sX0, sX1, sX2)[:nch])]

    def x_loads(self, nch):
        return [(f"s_add_u32 m0, s29, {L_CX + XPAD + cs*XP}\nbuffer_load_dwordx4 v1, {srd(S_WS)}, s{so} offen sc1 lds", 'xd')
                for cs, so in enumerate((sX0, sX1, sX2)[:nch])]

    def dpatch(self, part):
        it = []
        r0 = C20 if part == 2 and self.role == 'A' else CA
        for r, mk in ((r0 + 1, 0x01000001), (r0 + 3, 0x10000010)):
            it += [f"v_and_b32 v{vT2}, 0xffff0000, v{r}", f"v_lshlrev_b32 v{vT}, 16, v{r}",
                   f"v_add_f32 v{vT2}, s{28 if part == 1 else 30}, v{vT2}",
                   f"s_mov_b32 exec_lo, 0\ns_mov_b32 exec_hi, {hex(mk)}\nv_cvt_pk_bf16_f32 v{r}, v{vT}, v{vT2}\ns_mov_b64 exec, -1"]
        return it

    def conv_pre(self, n):
        it = []
        for c in range(n):
            it += self.c_read(1, c)
        return it + self.dpatch(1)

    tiles = [(1, m, m) for m in range(16)] + [(2, n, 2 * n + 1) for n in range(8)]

    def fa(self, part, c, o=0, k=4):
        if part == 2 and self.role == 'A':
            return vr(C20 + o, k) if c == 0 else ar(4 * c + o, k)
        return vr(CA + 4 * c + o, k)

    def fb(self, part, n, o=0, k=4):
        if part == 2 and self.role == 'A':
            return ar(64 + 4 * n + o, k)
        return vr(CB + 4 * (n if part == 1 else 15 - n) + o, k)

    def c_read(self, part, c):
        va, vb = (vCA, vCB) if part == 1 else (vCA2, vCB2)
        return ([f"ds_read_b64_tr_b16 {self.fa(part,c,2*e2,2)}, v{va} offset:{256*c + 32*(1-e2)}" for e2 in range(2)] +
                [f"ds_read_b64_tr_b16 {self.fb(part,c,2*e2,2)}, v{vb} offset:{256*c + 32*e2}" for e2 in range(2)])

    def tile_epi(self, g):
        part, k, m = self.tiles[g]
        d = CACC + 4 * (g % NSL)
        p = CACC + 4 * ((g - 1) % NSL)
        dp = "wave_shr:1 row_mask:0xf bank_mask:0xf bound_ctrl:0"
        it = []
        for j, dst in ((3, d + 2), (2, d + 1), (1, CY + g)):
            it.append(f"v_add_f32_dpp v{dst}, v{d+j}, v{d+j-1} {dp}")
            if k:
                it.append(f"v_mov_b32_dpp v{d+j}, v{p+j} wave_shl:1 row_mask:0xf bank_mask:0xf")
        if g in (15, 23):
            va, mk = (vCRW, '0xffff0000') if g == 15 else (vCRW2, '0xff000000')
            it.append((f"s_mov_b32 exec_lo, 0\ns_mov_b32 exec_hi, {mk}\nds_write_b128 v{va}, {vr(d,4)}\ns_mov_b64 exec, -1", f'carw{part}'))
        return it

    def stage(self, g):
        it = []
        for t in (g, g + 1):
            j = t % 4
            it.append(f"v_mov_b32 v{CH+t//4}, v{CY+t}" if j == 0 else
                      f"v_mov_b32_dpp v{CH+t//4}, v{CY+t} row_shr:{4*j} row_mask:0x1 bank_mask:{hex(1 << j)}")
        return it + [f"v_cvt_pk_bf16_f32 v{CY+g}, v{CY+g}, v{CY+g+1}",
                     f"ds_write_b16 v{vZW}, v{CY+g} offset:{128*g}", f"ds_write_b16_d16_hi v{vZW}, v{CY+g} offset:{128*(g+1)}"]

    def conv_sched(self, nt, cpre, cap, sg0=0):
        mf, first = [], []
        for g, (part, k, m) in enumerate(self.tiles[:nt]):
            d = vr(CACC + 4 * (g % NSL), 4)
            first.append(len(mf))
            mf += [f"v_mfma_f32_16x16x32_bf16 {d}, {self.fa(part,c)}, {self.fb(part,m-c)}, {'0' if c == 0 else d}"
                   for c in range(m + 1)]
        first += [len(mf)] * 8
        S = Sched(mf, cap)
        LEAD = self.cfg.get('lead', 7)
        for g in range(1, nt):
            S.reserve(first[g] - 1)
        for c in range(cpre, 16):
            S.add('rd', self.c_read(1, c), 0, max(first[c] - LEAD, 0))
        if nt > 16 and self.role == 'A':
            r0 = self.cfg.get('r2A', 60)
            for c in range(16):
                S.add('rd2', self.c_read(2, c), r0, min(first[16 + c // 2] - LEAD, r0 + 12 + 7 * c))
            S.add('dp', self.dpatch(2), r0 + 20, first[16] - 2)
        elif nt > 16:
            for c in range(16):
                dl = max(first[16 + c // 2] - LEAD, first[15] + c + 1) if c else first[15] + 4
                S.add('rd', self.c_read(2, c), first[15] + c + 1, dl)
            S.add('dp', self.dpatch(2), first[15] + 8, first[16] - 2)
        self.sgrel = {}
        for g in range(nt - 1):
            dl = min(first[g + NSL - 1] - 1, first[g + 1] + (self.cfg.get('epl', 24) if g < 12 else 8))
            S.add('ep', self.tile_epi(g), first[g + 1] + 2, dl)
            if g & 1:
                self.sgrel[g - 1] = max(dl + 1, sg0)
        self.first = first
        return S

    def z_fix(self, part):
        qs = (0, 2) if part == 1 else (4,)
        va, st = (vCRR, 32) if part == 1 else (vCRR2, 64)
        it = [f"ds_read2_b32 {vr(CR+q,2)}, v{va} offset0:{1+st*(q % 4)} offset1:{1+st*(q % 4 + 1)}" for q in qs]
        for q in qs:
            it += [f"v_add_f32 v{CH+q}, v{CH+q}, v{CR+q}", f"v_add_f32 v{CH+q+1}, v{CH+q+1}, v{CR+q+1}",
                   f"v_cvt_pk_bf16_f32 v{CH+q}, v{CH+q}, v{CH+q+1}",
                   f"s_mov_b64 exec, 0x7777\nds_write_b16 v{vZF}, v{CH+q} offset:{512*q}\nds_write_b16_d16_hi v{vZF}, v{CH+q} offset:{512*(q+1)}\ns_mov_b64 exec, -1",
                   f"ds_read_b128 {vr(ZO+2*q,4)}, v{vZR} offset:{512*q}"]
        if part == 1:
            st = [(f"buffer_store_dwordx4 {vr(ZO,4)}, v{vZS}, {srd(S_WS)}, 0 offen sc1", 'zst1'),
                  (f"buffer_store_dwordx4 {vr(ZO+4,4)}, v{vZS}, {srd(S_WS)}, 0 offen offset:2048 sc1", 'zst1')]
        else:
            st = [(f"buffer_store_dwordx4 {vr(ZO+8,4)}, v{vZS2}, {srd(S_WS)}, 0 offen sc1", 'zst2')]
        return it, st

    def conv_run(self, S, nt, early, flag1=None, mid=((), (), ())):
        a = self.a
        for g in range(0, nt - 2, 2):
            S.add('sg', self.stage(g), self.sgrel[g], None)
            if early and g == 14:
                f1, s1 = self.z_fix(1)
                p = self.cfg.get('pE1', 146)
                S.th['sg'][-1][2] = p - 1
                S.add('sg', [('wait', 'carw1'), "s_barrier"], p, p + 1)
                S.add('sg', f1[:2], p + 1, p + 3)
                e1, e2 = self.cfg.get('e12', [6, 20])
                S.add('sg', f1[2:], p + e1, p + e1 + 10)
                S.add('sg', s1, p + e2, p + e2 + 2)
        f1in = early and self.cfg.get('f1in', 1)
        its = S.items(keep=('sg',))
        wi = self.cfg.get('wi' + self.role, 0)
        if wi:
            keep, n = [], 0
            for x in its:
                t = txt_of(x)
                if t.startswith('v_mfma'):
                    n += 1
                drop = n > wi and (t.startswith(('v_mfma', 'v_add_f32_dpp', 'v_mov_b32_dpp')) or t.startswith('ds_read_b64_tr_b16 v'))
                if not drop:
                    keep.append(x)
            its = keep
        a.run(its)
        self.info['conv'] = (S.over, S.under, len(S.left.get('sg', [])))
        a.run([self.stamp('conv')])
        if f1in:
            a.run([('wait', 'zst1'), flag1])
        a.run(mid[0])
        a.run(merge(S.left.get('sg', []) or ["s_nop 0"], self.tile_epi(nt - 1)))
        a.run(self.stage(nt - 2))
        a.run(mid[1])
        a.wait('carw2' if nt > 16 else 'carw1')
        a("s_barrier")
        parts = [2] if early else ([1, 2] if nt > 16 else [1])
        fs = [self.z_fix(p) for p in parts]
        if early and not f1in:
            a.run(fs[0][0][:1] + [('wait', 'zst1'), flag1] + fs[0][0][1:])
        else:
            a.run([x for f in fs for x in f[0]])
        a.run(mid[2])
        a.run([x for f in fs for x in f[1]])
        a.run([self.stamp('z_st')])

    def finish(self):
        a = self.a
        a.run([self.stamp('end')])
        amp = self.cfg.get('amp')
        if amp and amp[0] == self.role:
            if self.role == 'A':
                a(f"s_cmp_ge_u32 s{sID}, 30")
                a("s_cbranch_scc1 L_end")
            a("s_memrealtime s[100:101]")
            a("s_sub_u32 s98, s98, s96")
            a("s_mul_i32 s98, s98, 20")
            a("s_min_u32 s98, s98, 200000")
            a("s_add_u32 s98, s98, s100")
            a.label("L_amp")
            a("s_memrealtime s[100:101]")
            a("s_sub_u32 s100, s100, s98")
            a("s_cmp_lt_i32 s100, 0")
            a("s_cbranch_scc1 L_amp")
        if self.stamps:
            if not self.cfg.get('nodrain'):
                a.wait_all()
            a("s_memrealtime s[98:99]")
            a(f"v_writelane_b32 v255, s96, 30")
            a(f"v_writelane_b32 v255, s98, 31")
            for k in range(self.npoll):
                a(f"v_readlane_b32 s{sT0}, v254, {k}")
                a(f"v_writelane_b32 v255, s{sT0}, {24+k}")
            a(f"s_lshl2_add_u32 s{sT0}, s2, s{sW}")
            a(f"s_lshl_b32 s{sT0}, s{sT0}, 8")
            a(f"s_add_u32 s{sT0}, s{sT0}, {WS_DBG}")
            a(f"v_lshlrev_b32 v{vT}, 2, v0")
            a(f"buffer_store_dword v255, v{vT}, {srd(S_WS)}, s{sT0} offen")


KERNARG = {f"s{i}" for i in range(36, 68)}


def prog_A(cfg):
    P = Prog('A', cfg)
    a, stamp = P.a, P.stamp
    a.smem_pending = set(KERNARG) | {'s96', 's97'}
    FS1, FSU, FSZ = cfg.get('fs1', 32), cfg.get('fsu', 64), cfg.get('fsz', 32)
    NB, GR = cfg.get('nb', 14), cfg.get('grp', 2)
    sDG, sFT = sA, sB
    KW, HW = cfg.get('kw', 1), cfg.get('hw', 1)
    NC = 3 if cfg.get('third', 'A') == 'A' else 2
    NT = 8*NC
    if cfg.get('cpf', 1) and cfg.get('lay', 'C') != 'C':
        a.run(P.code_prefetch("L_Amain", "L_end"))
    a(f"s_mul_i32 s{sT0}, s{sID}, 52")
    a(f"s_lshr_b32 s{sT0}, s{sT0}, 8")
    a(f"s_mul_i32 s{sT1}, s{sT0}, 5")
    a(f"s_sub_u32 s{sDG}, s{sID}, s{sT1}")
    a(f"s_min_u32 s{sT0}, s{sT0}, 5")
    a(f"s_mul_i32 s{sFT}, s{sXQ}, 6")
    a(f"s_add_u32 s{sFT}, s{sFT}, s{sT0}")
    a(f"s_lshl4_add_u32 s{sT1}, s{sDG}, s{sW}")
    a(f"s_mul_i32 s{sT1}, s{sT1}, 205")
    a(f"s_lshr_b32 s{sT1}, s{sT1}, 10")
    sOWN = 38
    if cfg.get('rkA', 0):
        a(f"s_lshr_b32 s{sCNT}, s{sT0}, 1")
        a(f"s_mul_i32 s{sCNT}, s{sCNT}, {cfg.get('rkA', 0)}")
        a(f"s_add_u32 s{sT1}, s{sT1}, s{sCNT}")
        a(f"s_and_b32 s{sT1}, s{sT1}, 15")
    a(f"s_lshl_b32 s{TK}, s{sT1}, 10")
    a(f"s_add_u32 s{sT1}, s{TK}, 1024")
    a(f"s_and_b32 s{TK+1}, s{sT1}, 0x3c00")
    a(f"s_lshl_b32 s{sRING}, s{sW}, 12")
    a(f"s_mul_i32 s{sT0}, s{sW}, {512*3072}")
    a(f"s_lshl_b32 s{sT1}, s{sFT}, 7")
    a(f"s_add_u32 s{sT0}, s{sT0}, s{sT1}")
    a.run(P.weight_src(3072, sT0))
    a(f"s_mov_b32 s{S_W+2}, 6291456")
    a(f"s_mov_b32 s{S_W+3}, 0x20000")
    P.split0 = len(a.out)
    a(f"s_cmp_ge_u32 s{sID}, 30")
    a(f"s_cselect_b32 s{sSP}, {OOB}, 0")
    a(f"s_mov_b64 {sp(S_W)}, {sp(50)}")
    a("s_cbranch_scc1 L_Amain")
    a.run(P.w_step())
    a.run([stamp('start')])
    a.run(P.w_step())
    a("s_branch L_Amain")
    P.split = len(a.out)
    a.label("L_Amain")
    if cfg.get('lay', 'C') != 'C':
        a.run(P.lanes())
    if cfg.get('hlpA', 1):
        a(f"s_cmp_lt_u32 s{sID}, 30")
        a("s_cbranch_scc1 L_Anh")
        a.begin_cond('hlp')
        a(f"s_lshl1_add_u32 s{sT0}, s{sXQ}, 3")
        a(f"s_and_b32 s{sT0}, s{sT0}, 7")
        a(f"s_min_u32 s{sT0}, s{sT0}, 5")
        a(f"s_lshr_b32 s{sCNT}, s{sT0}, 1")
        a(f"s_mul_i32 s{sCNT}, s{sCNT}, {cfg.get('rkA', 0)}")
        a(f"s_add_u32 s{sCNT}, s{sCNT}, 15")
        a(f"s_mul_i32 s{sT1}, s{sXQ}, 6")
        a(f"s_add_u32 s{sT0}, s{sT0}, s{sT1}")
        a(f"s_lshl_b32 s{sT0}, s{sT0}, 7")
        a(f"s_mul_i32 s{sT1}, s{sW}, {512*3072}")
        a(f"s_add_u32 s{sU0}, s{sT0}, s{sT1}")
        for i in range(2):
            if i == 0:
                a(f"v_lshrrev_b32 v{vT}, 5, v0")
                a(f"v_lshl_add_u32 v{vT}, s{sDG}, 1, v{vT}")
                a(f"v_and_b32 v{vT2}, 31, v0")
            else:
                a(f"v_mov_b32 v{vT}, 4")
                a(f"v_lshl_add_u32 v{vT2}, s{sDG}, 4, v{vI}")
            a(f"v_add_u32 v{vT}, 1, v{vT}")
            a(f"v_lshl_add_u32 v{vT}, v{vT}, 4, s{sW}")
            a(f"v_mul_u32_u24 v{vT}, 205, v{vT}")
            a(f"v_lshrrev_b32 v{vT}, 10, v{vT}")
            a(f"v_add_u32 v{vT}, s{sCNT}, v{vT}")
            a(f"v_and_b32 v{vT}, 15, v{vT}")
            a(f"v_lshl_add_u32 v{vT}, v{vT}, 5, v{vT2}")
            a(f"v_mul_u32_u24 v{vT}, 3072, v{vT}")
            if i:
                a("s_mov_b64 exec, 0xffff")
            a(f"buffer_load_dword v{250+i}, v{vT}, {srd(S_W)}, s{sU0} offen")
        a("s_mov_b64 exec, -1")
        a.end_cond()
        a.label("L_Anh")
    HA = cfg.get('hlpA2', 0)
    if HA:
        a(f"s_lshl1_add_u32 s{sT0}, s{sXQ}, 3")
        a(f"s_and_b32 s{sT0}, s{sT0}, 7")
        a(f"s_mul_i32 s{sT1}, s{sXQ}, 6")
        a(f"s_add_u32 s{sU0}, s{sT0}, s{sT1}")
        a(f"s_sub_u32 s{sT1}, s{sFT}, s{sU0}")
        a(f"s_add_u32 s{sT1}, s{sT1}, 5")
        a(f"s_cmp_ge_u32 s{sT1}, 6")
        a(f"s_cselect_b32 s{sCNT}, 6, 0")
        a(f"s_sub_u32 s{sT1}, s{sT1}, s{sCNT}")
        a(f"s_lshl_b32 s{sU0}, s{sU0}, 7")
        a(f"s_cmp_ge_u32 s{sT1}, 5")
        a(f"s_cselect_b32 s{sU0}, {OOB}, s{sU0}")
        a(f"s_cmp_ge_u32 s{sT0}, 6")
        a(f"s_cselect_b32 s{sU0}, {OOB}, s{sU0}")
        a(f"s_or_b32 s{sU0}, s{sU0}, s{sSP}")
        a(f"s_lshr_b32 s{sT0}, s{sT0}, 1")
        a(f"s_mul_i32 s{sT0}, s{sT0}, {cfg.get('rkA', 0)}")
        a(f"s_add_u32 s{sCNT}, s{sDG}, 1")
        a(f"s_lshl4_add_u32 s{sCNT}, s{sCNT}, s{sW}")
        a(f"s_mul_i32 s{sCNT}, s{sCNT}, 205")
        a(f"s_lshr_b32 s{sCNT}, s{sCNT}, 10")
        a(f"s_add_u32 s{sT0}, s{sT0}, s{sCNT}")
        a(f"s_add_u32 s{sT0}, s{sT0}, 14")
        a(f"s_and_b32 s{sT0}, s{sT0}, 15")
        a(f"s_lshl4_add_u32 s{sT0}, s{sW}, s{sT0}")
        a(f"s_lshl_b32 s{sT0}, s{sT0}, 5")
        a(f"s_mul_i32 s{sT1}, s{sT1}, {HA}")
        a(f"s_add_u32 s{sT0}, s{sT0}, s{sT1}")
        a(f"s_add_u32 s{sT0}, s{sT0}, {32 - 5*HA}")
        a(f"v_add_u32 v{vT}, s{sT0}, v0")
        a(f"v_mul_u32_u24 v{vT}, 3072, v{vT}")
        a(f"s_mov_b64 exec, {hex((1 << HA) - 1)}")
        a(f"buffer_load_dword v249, v{vT}, {srd(S_W)}, s{sU0} offen")
        a("s_mov_b64 exec, -1")
    for (s, n) in ((S_WS, WS_SIZE), (S_SSM, 2621440)):
        a(f"s_mov_b32 s{s+2}, {n}")
        a(f"s_mov_b32 s{s+3}, 0x20000")
    for j in range(2, 16):
        a(f"s_add_u32 s{sT1}, s{TK+j-1}, 1024")
        a(f"s_and_b32 s{TK+j}, s{sT1}, 0x3c00")
    a(f"s_add_u32 s{S_WS}, s66, {cfg.get('wso', 0) << 20}")
    a(f"s_addc_u32 s{S_WS+1}, s67, 0")
    a(f"s_mov_b64 {sp(S_SSM)}, {sp(44)}")
    a.run(P.weight_dst(False))
    a.run(P.zflag_addr(sFJ, 128))
    a.run(P.conv_setup(NC))
    vHL, vRW, vRR, vUS, vEP, vX0 = 10, 44, 47, 48, 49, 50
    BL = 54
    g1set = [f"s_mul_i32 s{sOWN}, s{sFT}, {cfg.get('roA', 0)}", f"s_add_u32 s{sOWN}, s{sOWN}, s{sW}", f"s_and_b32 s{sOWN}, s{sOWN}, 3",
             f"s_lshl_b32 s{sCNT}, s{sDG}, 18", f"s_lshl_b32 s{sT1}, s{sW}, 14", f"s_add_u32 s{sCNT}, s{sCNT}, s{sT1}",
             f"s_add_u32 s{sCNT}, s{sCNT}, s{sSP}"]
    for i in range(4):
        g1set += [f"s_add_u32 s{sT0}, s{sOWN}, {i+1}",
                  f"s_and_b32 s{sT0}, s{sT0}, 3",
                  f"s_mul_i32 s{sT1}, s{sT0}, 12288",
                  f"s_add_u32 s{sT1}, s{sT1}, {L_RED + (i*4096 if i < 3 else 0)}",
                  f"v_add_u32 v{vRW+i}, s{sT1}, v1",
                  f"s_lshl_b32 s{sT0}, s{sT0}, 16",
                  f"s_add_u32 s{sT0}, s{sT0}, s{sCNT}",
                  f"v_add_u32 v{vHL+i}, s{sT0}, v1",
                  f"v_add_u32 v{vHL+4+i}, {20*65536}, v{vHL+i}"]
    g1set += [f"v_lshl_add_u32 v{vP0}, s{sW}, 5, v0",
              f"v_mul_u32_u24 v{vP0}, {FS1}, v{vP0}",
              f"v_add_u32 v{vP0}, {WS_F1}, v{vP0}",
              f"s_lshl_b32 s{sT0}, s{sFT}, 7",
              f"v_lshl_add_u32 v{vX0}, v{vH}, 3, s{sT0}",
              f"s_lshl2_add_u32 s{sT0}, s{sDG}, s{sOWN}",
              f"s_mul_i32 s{sFI}, s{sT0}, 24",
              f"s_add_u32 s{sFI}, s{sFI}, s{sFT}",
              f"s_mul_i32 s{sFI}, s{sFI}, {FSU}",
              f"s_add_u32 s{sFI}, s{sFI}, {WS_FU}",
              f"s_add_u32 s{sFI}, s{sFI}, s{sSP}",
              f"s_mul_i32 s{sT0}, s{sT0}, 48",
              f"s_lshl1_add_u32 s{sT0}, s{sFT}, s{sT0}",
              f"s_lshl_b32 s{sT0}, s{sT0}, 10",
              f"s_add_u32 s{sT0}, s{sT0}, {WS_U}",
              f"s_add_u32 s{sT0}, s{sT0}, s{sSP}",
              f"v_add_u32 v{vUS}, s{sT0}, v1",
              f"s_mov_b32 s{sU2}, 0xbdd2d3e8",
              f"s_mov_b32 s{sU3}, {20*48*1024}",
              f"v_mov_b32 v52, 0xc0135761"]
    a.run(g1set)
    a.run(P.conv_setup2(NC))
    a.run(P.epoch_load(vEP))
    for t in range(4):
        a(f"global_load_dwordx2 {vr(BL+2*t,2)}, v{vX0}, {sp(P_B1)} offset:{32*t}")
    a(f"s_cmp_ge_u32 s{sID}, 30")
    a("s_cbranch_scc1 L_Aspare")
    a.run(P.w_step())
    a.run(P.w_step())
    BI, RD, PD4 = 112, 144, 248
    bun = []
    for t in range(8):
        bun += [f"v_lshlrev_b32 v{BI+2*t}, 16, v{BL+t}", f"v_and_b32 v{BI+2*t+1}, 0xffff0000, v{BL+t}"]
    PA = cfg.get('pollA', 14)
    while P.nxt < 16:
        if P.nxt == 8:
            a.run(P.set_tag(vEP))
            a.run(bun)
        a.run([stamp(f'w{P.nxt}')])
        it = P.w_step()
        if P.nxt - 1 == PA:
            it.insert(9, P.poll_issue(vP0, 32, 1, PD4))
        a.run(it)
    while P.drn < PA:
        a.run(P.w_step())
    a.run([P.poll_check('f1', vP0, 32, 1, PD4), stamp('f1_ok')])
    BUFS = ([64 + 4*i for i in range(8)] + [128 + 4*i for i in range(4)] + [228 + 4*i for i in range(5)] + [208 + 4*i for i in range(3)])[:NB]

    def h_load(n):
        i, j = divmod(n, 16)
        return f"buffer_load_dwordx4 {vr(BUFS[n % NB],4)}, v{vHL+i}, {srd(S_WS)}, s{TK+j} offen {cfg.get('apol', 'sc1')}"
    hn = 0
    HE = cfg.get('hearly', 8)
    left = 16 - P.drn
    while P.drn < 16:
        for _ in range(HE // left):
            a(h_load(hn)); hn += 1
        a.run(P.w_step())
    ACC = (96, 192)
    Z, G0, UO = ACC[1], 160, 220
    for r in range(2):
        mf, pos = [], {}
        for q in range(64 // GR):
            for t in range(4):
                for n in range(q * GR, (q + 1) * GR):
                    i, j = divmod(n, 16)
                    d = vr(ACC[i & 1] + 4 * t, 4)
                    pos.setdefault(n, len(mf))
                    c = d if j else ('0' if i < 3 else vr(BI + 4 * t, 4))
                    mf.append(f"v_mfma_f32_16x16x32_bf16 {d}, {ar(16*j+4*t,4)}, {vr(BUFS[(64*r + n) % NB],4)}, {c}")
        S = Sched(mf)
        for n in range(64):
            S.reserve(pos[n] - 1)
        k = 0
        while hn < 128:
            n = hn - 64 * r
            free = 4 * GR * ((n - NB) // GR + 1) if n >= NB else 0
            p = max(free, 4 * (n - NB + GR) + 1, 2 * k)
            if p > 255:
                break
            S.add('h', [h_load(hn)], p, p)
            hn += 1
            k += 1
        S.add('st', [stamp(f'g1first{r}')], 0, 0)
        lasth = p if r else 0
        if r == 0 and cfg.get('h2', 1):
            p2 = cfg.get('pH2', 40)
            S.add('f2', [f"v_lshl_add_u32 v{vP0}, s{sW}, 5, v0", f"v_lshlrev_b32 v{vP0}, 4, v{vP0}", f"v_add_u32 v{vP0}, {WS_F1 + 0x4000}, v{vP0}",
                         P.poll_issue(vP0, 32, 1, PD4)], p2 - 4, p2)
            S.add('f2', [P.poll_check('f2', vP0, 32, 1, PD4)], 150, 152)
            assert 4 * (64 - NB + GR) + 1 > 153
        for i in range(3):
            S.add('red', [(f"ds_write_b128 v{vRW+i}, {vr(ACC[i & 1]+4*t,4)} offset:{t*1024}", f'redw{r}{i}') for t in range(4)],
                  64 * (i + 1) + 1, 64 * (i + 1) + 13, pace=4 if i < 2 else 3)
        pR = 192 + cfg.get('pR', 15)
        S.add('red', [('wait', f'redw{r}2'), "s_barrier"], pR, pR + 1)
        S.add('red', [f"ds_read_b128 {vr(RD+4*k,4)}, v{vRR} offset:{k*1024}" for k in range(12)], pR + 2, pR + 16)
        S.add('add', [f"v_add_f32 v{RD+k}, v{RD+k}, v{RD+16+k}" for k in range(16)] +
                     [f"v_add_f32 v{RD+k}, v{RD+k}, v{RD+32+k}" for k in range(16)], pR + 17, 255)
        if r == 1:
            S.add('set', [f"v_subrev_u32 v{vRW+i}, {L_RED}, v{vRW+i}" for i in range(4)], 2, 30)
            pD = cfg.get('pD0', 40)
            S.add('fl', [('wait', 'ust0'), stamp('barD0'), P.flag(sFI), f"s_add_u32 s{sFI}, s{sFI}, {20*24*FSU}"], pD, pD + 1)
            S.add('fl', [P.poll_check('fk', vP1, 16, KW, PD4), stamp('fk_ok')], 150, 152)
            for i, x in enumerate(P.ssm_loads(NC) + P.x_loads(NC)):
                S.add('h', [x], lasth + 4 * (i + 1), lasth + 4 * (i + 1))
        a.run(S.items())
        P.info[f'g1{r}'] = (S.over, S.under)
        a.run([stamp(f'g1mfma{r}')])
        side = []
        if r == 0:
            while hn < 64 + NB:
                side.append(h_load(hn)); hn += 1
            a.run(side)
        for t in range(8):
            a(f"v_pk_add_f32 {vr(Z+2*t,2)}, {vr(Z+2*t,2)}, {vr(RD+2*t,2)}")
        for t in range(8):
            a(f"v_pk_mul_f32 {vr(G0+2*t,2)}, {vr(Z+2*t,2)}, {vr(Z+2*t,2)}")
        for t in range(8):
            a(f"v_pk_fma_f32 {vr(G0+2*t,2)}, {vr(G0+2*t,2)}, {sp(sU2)}, v[52:53] op_sel_hi:[1,0,0]")
        for t in range(8):
            a(f"v_pk_mul_f32 {vr(G0+2*t,2)}, {vr(G0+2*t,2)}, {vr(Z+2*t,2)}")
        for t in range(16):
            a(f"v_exp_f32 v{G0+t}, v{G0+t}")
        for t in range(8):
            a(f"v_pk_add_f32 {vr(G0+2*t,2)}, {vr(G0+2*t,2)}, 1.0 op_sel_hi:[1,0]")
        for t in range(16):
            a(f"v_rcp_f32 v{G0+t}, v{G0+t}")
        for t in range(8):
            a(f"v_pk_mul_f32 {vr(G0+2*t,2)}, {vr(G0+2*t,2)}, {vr(Z+2*t,2)}")
        for t in range(8):
            a(f"v_cvt_pk_bf16_f32 v{UO+t}, v{G0+2*t}, v{G0+2*t+1}")
        for half in range(2):
            a(f"buffer_store_dwordx4 {vr(UO+4*half,4)}, v{vUS}, {srd(S_WS)}, {'0' if r == 0 else f's{sU3}'} offen offset:{1024*half} sc1", tok=f'ust{r}')
        if r == 0:
            a(P.poll_issue(vP1, 16, KW, PD4))
        a.run([stamp(f'ust{r}')])
    a.label("L_Ajoin")
    a.wait('xd')
    a("s_barrier")
    CPA = cfg.get('cpreA', 4)
    a.run(P.conv_pre(CPA))
    S = P.conv_sched(NT, CPA, 2)
    pD = cfg.get('pD1', 30)
    S.add('fl', [('wait', 'ust1'), stamp('barD1'), P.flag(sFI)], pD, pD + 1)
    Z2 = NC == 3 and cfg.get('z2', 1)
    P.conv_run(S, NT, Z2, P.flag(sFJ))
    if Z2:
        a(f"s_add_u32 s{sFJ}, s{sJ}, 128")
        a(f"s_mul_i32 s{sFJ}, s{sFJ}, {FSZ}")
        a(f"s_lshl2_add_u32 s{sFJ}, s{sW}, s{sFJ}")
        a(f"s_add_u32 s{sFJ}, s{sFJ}, {WS_FZ + 16}")
    a.wait('zst2' if NC == 3 else 'zst1')
    a(P.flag(sFJ))
    a(f"s_cmp_lg_u32 s{sJ}, 31")
    a("s_cbranch_scc1 L_Adone")
    st, P.stamps = P.stamps, False
    a(f"v_lshl_add_u32 v{vP0}, s{sW}, 5, v0")
    a(f"v_mul_u32_u24 v{vP0}, {cfg.get('fsk', 16)}, v{vP0}")
    a(f"v_add_u32 v{vP0}, {WS_FK}, v{vP0}")
    a(P.poll_issue(vP0, 32, KW, PD4))
    a.run([P.poll_check('e0', vP0, 32, KW, PD4)])
    for k in range(2):
        a(f"s_mul_i32 s{sT0}, s{sW}, 120")
        a(f"s_add_u32 s{sT0}, s{sT0}, {60*k}")
        a(f"v_add_u32 v{vP0}, s{sT0}, v0")
        a(f"v_mul_u32_u24 v{vP0}, {FSU}, v{vP0}")
        a(f"v_add_u32 v{vP0}, {WS_FU}, v{vP0}")
        a(P.poll_issue(vP0, 60))
        a.run([P.poll_check(f'e{k+1}', vP0, 60)])
    a(f"v_lshl_add_u32 v{vP0}, s{sW}, 5, v0")
    a(f"v_mul_u32_u24 v{vP0}, {FSZ}, v{vP0}")
    a(f"v_add_u32 v{vP0}, {WS_FZ + 158*FSZ}, v{vP0}")
    a(P.poll_issue(vP0, 2, 4, PD4))
    a.run([P.poll_check('e3', vP0, 2, 4, PD4)])
    P.stamps = st
    a("s_barrier")
    a(f"s_mov_b32 s{sT0}, {WS_EP}")
    a(P.flag(sT0))
    a.label("L_Adone")
    P.finish()
    a("s_endpgm")
    b = Asm()
    P.a, st, P.stamps = b, P.stamps, False
    b.label("L_Aspare")
    b(f"s_mul_i32 s{sT0}, s{sXQ}, 160")
    b(f"s_mul_i32 s{sT1}, s{sDG}, {16*NC}")
    b(f"s_add_u32 s{sT0}, s{sT0}, s{sT1}")
    b(f"s_add_u32 s{sT0}, s{sT0}, 64")
    b(f"v_lshrrev_b32 v{vT}, 3, v0")
    b(f"v_add_lshl_u32 v{vT}, s{sT0}, v{vT}, 12")
    b(f"v_and_b32 v{vT2}, 7, v0")
    b(f"v_lshl_add_u32 v{vT2}, s{sW}, 3, v{vT2}")
    b(f"v_lshl_add_u32 v{vT}, v{vT2}, 7, v{vT}")
    b("s_waitcnt vmcnt(0)")
    b.run(P.set_tag(vEP))
    for i in range(2 * NC if cfg.get('spf', 1) else 0):
        b(f"s_mov_b32 s{sT0}, {i*8*4096}")
        b(f"buffer_load_dword v{64+i}, v{vT}, {srd(S_SSM)}, s{sT0} offen")
    b.run(P.ssm_loads(NC))
    b(P.poll_issue(vP1, 16, KW, PD4))
    b.run([P.poll_check('fs', vP1, 16, KW, PD4)])
    for i in range(2 * NC if cfg.get('xpf', 0) else 0):
        b(f"s_mov_b32 s{sT0}, {WS_KV + i*8*4096}")
        b(f"buffer_load_dword v{vPD}, v{vT}, {srd(S_WS)}, s{sT0} offen sc1") if False else b.raw(f"    buffer_load_dword v{vPD}, v{vT}, {srd(S_WS)}, s{sT0} offen sc1")
    b.run(P.x_loads(NC))
    b("s_waitcnt vmcnt(0) lgkmcnt(0)")
    b("s_branch L_Ajoin")
    a.out += b.out
    P.a, P.stamps = a, st
    return P


def prog_B(cfg):
    P = Prog('B', cfg)
    a, stamp = P.a, P.stamp
    a.smem_pending = set(KERNARG) | {'s96', 's97'}
    FS1, FSU, FSZ, FSK = cfg.get('fs1', 32), cfg.get('fsu', 64), cfg.get('fsz', 32), cfg.get('fsk', 16)
    sDT, sST = sA, sB
    KW, HW = cfg.get('kw', 1), cfg.get('hw', 1)
    NC = 3 if cfg.get('third', 'A') == 'B' else 2
    NT = 8*NC
    NMF = 136 if NC == 2 else 208
    a.label("L_B")
    if cfg.get('cpf', 1) and cfg.get('lay', 'C') != 'C':
        a.run(P.code_prefetch("L_pcB", "L_Amain"))
    a.run(P.lanes())
    XR, GR = 160, 180
    vQ, vG, vEP = 200, 201, 202
    a(f"s_lshr_b32 s{sT0}, s{sJ}, 1")
    a(f"s_lshl_b32 s{sT0}, s{sT0}, 5")
    a(f"s_and_b32 s{sT1}, s{sJ}, 1")
    a(f"s_lshl3_add_u32 s{sCNT}, s{sT1}, s{sT0}")
    a(f"s_lshl2_add_u32 s{sCNT}, s{sT2}, s{sCNT}")
    a(f"s_lshl4_add_u32 s{sCNT}, s{sT3}, s{sCNT}")
    a(f"v_add_u32 v{vQ}, s{sCNT}, v{vH}")
    a(f"v_mul_u32_u24 v{vQ}, 1280, v{vQ}")
    a(f"v_lshlrev_b32 v{vG}, 4, v{vI}")
    a(f"v_add_u32 v{vQ}, v{vQ}, v{vG}")
    def kvset():
        a(f"s_lshl3_add_u32 s{sU0}, s{sW}, s{sT0}")
        a(f"s_mul_i32 s{sU0}, s{sU0}, 1280")
        a(f"s_mul_i32 s{sU1}, s{sT1}, 640")
        a(f"s_add_u32 s{sU0}, s{sU0}, s{sU1}")
        a(f"v_add_u32 v{vKV}, s{sU0}, v1")
        a(f"s_mul_i32 s{sU0}, s{sW}, {(-7*1280) & 0xffffffff}")
        a(f"s_sub_u32 s{sU0}, s{sU0}, {4*1280}")
        a(f"v_add_u32 v{vKH}, s{sU0}, v{vKV}")
        a(f"s_mul_i32 s{sKL}, s{sW}, {8*PK + 32}")
        for (s, n) in ((S_K, 2621440), (S_V, 2621440), (S_WS, WS_SIZE), (S_W, 6291456), (S_SSM, 2621440)):
            a(f"s_mov_b32 s{s+2}, {n}")
            a(f"s_mov_b32 s{s+3}, 0x20000")
        a(f"s_lshl2_add_u32 s{sU0}, s{sT1}, s{sW}")
        a(f"s_mul_i32 s{sU0}, s{sU0}, 80")
        a(f"v_add_u32 v{vCH}, s{sU0}, v{vI}")
        a(f"v_lshlrev_b32 v{vS0}, 3, v{vCH}")
    vKV, vKH, vCH, vS0 = 60, 61, 62, 63
    sKL = sFI
    if not cfg.get('qfirst', 1):
        kvset()
    P.split0 = len(a.out)
    for i in range(5):
        a(f"global_load_dwordx4 {vr(XR+4*i,4)}, v{vQ}, {sp(P_Q)} offset:{256*i}")
    a.run([stamp('start')])
    if cfg.get('qfirst', 1):
        kvset()
    for (s, p) in ((S_K, 38), (S_V, 40), (S_W, 56), (S_SSM, 44)):
        a(f"s_mov_b64 {sp(s)}, {sp(p)}")
    a(f"s_add_u32 s{S_WS}, s66, {cfg.get('wso', 0) << 20}")
    a(f"s_addc_u32 s{S_WS+1}, s67, 0")
    vHS = 48
    a(f"s_lshl1_add_u32 s{sT0}, s{sJ}, s{sT3}")
    a(f"s_lshl_b32 s{sT0}, s{sT0}, 8")
    a(f"s_lshl_b32 s{sT1}, s{sT2}, 16")
    a(f"s_add_u32 s{sT0}, s{sT0}, s{sT1}")
    a(f"v_mul_u32_u24 v{vHS}, {5*65536}, v{vH}")
    a(f"v_lshl_add_u32 v{vHS}, v{vI}, 4, v{vHS}")
    a(f"v_add_u32 v{vHS}, s{sT0}, v{vHS}")
    a(f"s_mul_i32 s52, s{sT2}, {19*65536}")
    a(f"s_add_u32 s52, s52, {4*65536}")
    a(f"s_mov_b32 s53, {20*65536}")
    a(f"s_mov_b32 s64, {22*65536}")
    a(f"s_mov_b32 s81, {2*65536}")

    def claim():
        a(f"s_mov_b32 exec_lo, {cfg.get('clm', '0x01010101')}")
        a(f"s_mov_b32 exec_hi, {cfg.get('clm', '0x01010101')}")
        for so in ("0", "s81", "s52", "s53", "s64")[:cfg.get('ncl', 5)]:
            a(f"buffer_store_dword v0, v{vHS}, {srd(S_WS)}, {so} offen sc1", tok='claim')
        a("s_mov_b64 exec, -1")
    CL = cfg.get('claim', 1)
    if CL == 1:
        claim()
    a.run(P.epoch_load(vEP))

    def kv_dma(which, i):
        if which == 'h':
            return [f"s_mul_i32 s{sU0}, s{sW}, {PK}", f"s_add_u32 m0, s{sU0}, {L_KI}", "s_mov_b32 exec_hi, 0xff",
                    f"buffer_load_dwordx4 v{vKH}, {srd(S_K)}, 0 offen {cfg.get('kpol', '')} lds", "s_mov_b32 exec_hi, -1"]
        base = L_KI + (4 + i) * PK + (32 if i >= 4 else 0) if which == 'k' else L_VI + i * PK
        return [f"s_add_u32 m0, s{sKL}, {base}", f"s_mov_b32 s{sU0}, {i*1280}", "s_mov_b32 exec_hi, 0xff",
                (f"buffer_load_dwordx4 v{vKV}, {srd(S_K if which == 'k' else S_V)}, s{sU0} offen {cfg.get('kpol', '')} lds", 'kvdma'), "s_mov_b32 exec_hi, -1"]

    def kv_batch(lst):
        it = []
        for (wh, i) in lst:
            x = kv_dma(wh, i)
            if it:
                it.pop()
                x.remove("s_mov_b32 exec_hi, 0xff")
            it += x
        return it
    kvq = [('h', 0)] + [('k', i) for i in range(8)] + [('v', i) for i in range(8)]
    a(f"s_and_b32 s{sDT}, s{sID}, 3")
    a(f"s_lshr_b32 s{sT0}, s{sID}, 2")
    a(f"s_lshl3_add_u32 s{sST}, s{sXQ}, s{sT0}")
    vLW, vA1, vHS, vGS, vKVA, vKVS, vGV = 44, 46, 48, 49, 50, 51, 58
    a(f"v_lshl_add_u32 v{vT}, s{sW}, 2, v{vH}")
    a(f"s_lshl_b32 s{sT0}, s{sJ}, 4")
    a(f"v_add_lshl_u32 v{vGS}, s{sT0}, v{vT}, 2")
    a(f"v_add_u32 v{vGS}, {WS_G}, v{vGS}")
    a(f"v_mul_u32_u24 v{vT}, {PL}, v{vT}")
    a(f"v_add_u32 v{vT}, {L_LN}, v{vT}")
    a(f"v_add_u32 v{vLW}, v{vT}, v{vG}")
    a(f"v_mul_u32_u24 v{vT}, {PL}, v{vR}")
    a(f"v_mul_u32_u24 v{vT2}, 320, v{vH}")
    a(f"s_mul_i32 s{sT0}, s{sT3}, {8*PL}")
    a(f"s_lshl3_add_u32 s{sT0}, s{sT2}, s{sT0}")
    a(f"s_add_u32 s{sT0}, s{sT0}, {L_LN}")
    a(f"v_add3_u32 v{vT}, v{vT}, v{vT2}, s{sT0}")
    a(f"v_lshl_add_u32 v{vA1}, v{vC}, 4, v{vT}")
    a(f"v_mul_u32_u24 v{vT}, {8*PK + 32}, v{vH}")
    a(f"v_mul_u32_u24 v{vT2}, {PK}, v{vR}")
    a(f"s_mul_i32 s{sT0}, s{sW}, 160")
    a(f"s_add_u32 s{sT0}, s{sT0}, {L_KI}")
    a(f"v_add3_u32 v{vT}, v{vT}, v{vT2}, s{sT0}")
    a(f"v_lshl_add_u32 v{vKVA}, v{vC}, 3, v{vT}")
    a(f"v_lshlrev_b32 v{vKVS}, 12, v{vCH}")
    a(f"v_lshl_add_u32 v{vKVS}, v{vH}, 4, v{vKVS}")
    a(f"s_lshr_b32 s{sT0}, s{sJ}, 1")
    a(f"s_lshl_b32 s{sT1}, s{sT0}, 6")
    a(f"s_add_u32 s{sT1}, s{sT1}, {WS_KV}")
    a(f"v_add_u32 v{vKVS}, s{sT1}, v{vKVS}")
    a(f"s_and_b32 s{sT1}, s{sJ}, 1")
    a(f"s_lshl_b32 s{sT1}, s{sT1}, 6")
    a(f"s_add_u32 s{sFJ}, s{sT0}, s{sT1}")
    a(f"s_mul_i32 s{sFJ}, s{sFJ}, {FSK}")
    a(f"s_lshl2_add_u32 s{sFJ}, s{sW}, s{sFJ}")
    a(f"s_add_u32 s{sFJ}, s{sFJ}, {WS_FK}")
    a(f"s_mul_i32 s{sU3}, s{sJ}, {FS1}")
    a(f"s_add_u32 s{sU3}, s{sU3}, {WS_F1}")
    for k in range(1, 5):
        a(f"s_mov_b32 s{79+k}, {k*65536}")
    for i in range(5):
        a(f"global_load_dwordx4 {vr(GR+4*i,4)}, v{vG}, {sp(P_GW)} offset:{256*i}")
    nq = cfg.get('kvq0', 6)
    if nq:
        a.run(kv_batch(kvq[:nq])); kvq = kvq[nq:]
    if CL == 2:
        claim()
    if cfg.get('ptouch'):
        a(f"v_lshlrev_b32 v{vT}, {cfg['ptouch']}, v0")
        a(f"s_lshl_b32 s{sT0}, s{sJ}, 9")
        a(P.setexec(min(64, (5 << 20) >> cfg['ptouch'])) if (5 << 20) >> cfg['ptouch'] < 64 else "s_nop 0")
        a(f"buffer_load_dword v251, v{vT}, {srd(S_WS)}, s{sT0} offen")
        a("s_mov_b64 exec, -1")
    a.run([stamp('iss2')])

    S1, S2, vRS, vNM, XF = 64, 65, 66, 68, 72
    DP = ("quad_perm:[1,0,3,2]", "quad_perm:[2,3,0,1]", "row_half_mirror", "row_mirror")
    unp = []
    for i in range(20):
        unp += [f"v_lshlrev_b32 v{XF+2*i}, 16, v{XR+i}", f"v_and_b32 v{XF+2*i+1}, 0xffff0000, v{XR+i}"]
    ln = [f"s_mov_b32 s{sU2}, 0x3f803f80"]
    for i in range(20):
        c = lambda r: "0" if i == 0 else f"v{r}"
        ln += [f"v_dot2_f32_bf16 v{S1}, v{XR+i}, s{sU2}, {c(S1)}", f"v_dot2_f32_bf16 v{S2}, v{XR+i}, v{XR+i}, {c(S2)}"]
    inv = 0x3ACCCCCD
    red = []
    for m in DP:
        red += [f"v_add_f32_dpp v{x}, v{x}, v{x} {m} row_mask:0xf bank_mask:0xf" for x in (S1, S2)]
    red += [f"v_mul_f32 v{S1}, {hex(inv)}, v{S1}",
            f"v_mul_f32 v{S2}, {hex(inv)}, v{S2}",
            f"v_fma_f32 v{S2}, -v{S1}, v{S1}, v{S2}",
            f"v_max_f32 v{S2}, 0, v{S2}",
            f"v_add_f32 v{S2}, 0x3727c5ac, v{S2}",
            f"v_rsq_f32 v{vRS}, v{S2}",
            f"v_mul_f32_e64 v{vNM}, -v{S1}, v{vRS}"]
    ln += unp[:3] + merge(red, unp[3:])
    HP = 112
    for i in range(5):
        ln += [f"v_pk_fma_f32 {vr(XF+2*k,2)}, {vr(XF+2*k,2)}, {vr(vRS,2)}, {vr(vNM,2)} op_sel_hi:[1,0,0]" for k in range(4*i, 4*i+4)]
        ln += [f"v_cvt_pk_bf16_f32 v{HP+k}, v{XF+2*k}, v{XF+2*k+1}" for k in range(4*i, 4*i+4)]
        ln.append((f"ds_write_b128 v{vLW}, {vr(HP+4*i,4)} offset:{256*i}", 'lnw'))
    gate = [f"v_dot2_f32_bf16 v{vGV}, v{XR+i}, v{GR+i}, {'0' if i == 0 else f'v{vGV}'}" for i in range(20)]
    gate += [f"v_add_f32_dpp v{vGV}, v{vGV}, v{vGV} {m} row_mask:0xf bank_mask:0xf" for m in DP]
    gate += [f"v_mul_f32 v{vGV}, 0xbfb8aa3b, v{vGV}", f"v_exp_f32 v{vGV}, v{vGV}", f"v_add_f32 v{vGV}, 1.0, v{vGV}", f"v_rcp_f32 v{vGV}, v{vGV}",
             "s_mov_b32 exec_lo, 0x10001", "s_mov_b32 exec_hi, 0x10001",
             (f"buffer_store_dword v{vGV}, v{vGS}, {srd(S_WS)}, 0 offen sc1", 'hst2'), "s_mov_b64 exec, -1"]
    a.run(ln[:41])
    a.run([stamp('q_in')])
    nq = cfg.get('kvq1', 4)
    if nq:
        a.run(kv_batch(kvq[:nq])); kvq = kvq[nq:]
    a.run(ln[41:])
    a.wait('lnw')
    a("s_barrier")
    a.run([stamp('barL')])
    HB = 64
    H2 = cfg.get('h2', 1)
    for u, off in enumerate((0, 64, 256, 128, 192)):
        for e2 in range(2):
            a(f"ds_read_b64_tr_b16 {vr(HB+4*u+2*e2,2)}, v{vA1} offset:{off + e2*4*PL}")
    if CL:
        a.wait('claim')
    if cfg.get('dummyst') is not None:
        a(f"s_mov_b32 s{S_WS+2}, 0x4000000")
        a(f"v_add_u32 v{vT}, {cfg['dummyst']}, v{vHS}")
        for u, so in enumerate(("0", "s81", "s52", "s53", "s64")):
            a(f"buffer_store_dwordx4 {vr(HB+4*u,4)}, v{vT}, {srd(S_WS)}, {so} offen {cfg.get('dpol', 'sc1')}", tok='dum')
        a.wait('dum')
        a.run([stamp('dum')])
    for u, so in enumerate(("0", "s81", "s52", "s53", "s64")):
        a(f"buffer_store_dwordx4 {vr(HB+4*u,4)}, v{vHS}, {srd(S_WS)}, {so} offen sc1", tok='hst' if u < 3 or not H2 else None)
    a.run([stamp('h_iss')])
    a.run(gate)
    a.run(P.set_tag(vEP))
    vQO, vQO2, vGA, vX1, vQO1 = 36, 41, 253, 250, 15
    QR, vGG, vB2 = 44, 16, 17

    def bigset():
        a(f"s_bfe_u32 s{sT0}, s{sST}, 0x10001")
        a(f"s_mul_i32 s{sT0}, s{sT0}, {cfg.get('rkB', 0)}")
        a(f"s_add_u32 s{sT0}, s{sT0}, s{sDT}")
        a(f"s_and_b32 s{sT0}, s{sT0}, 3")
        a(f"s_mul_i32 s{TK}, s{sT0}, 3072")
        a(f"s_and_b32 s{sSP}, s{sST}, {cfg.get('swB', 1)}")
        for j in range(1, 12):
            a(f"s_add_u32 s{sT0}, s{TK+j-1}, 1024")
            a(f"s_cmp_lt_u32 s{sT0}, {12*1024}")
            a(f"s_cselect_b32 s{TK+j}, s{sT0}, 0")
        a(f"s_mul_i32 s{sT0}, s{sW}, {384*4096}")
        a(f"s_lshl_b32 s{sT1}, s{sST}, 7")
        a(f"s_add_u32 s{sT0}, s{sT0}, s{sT1}")
        a.run(P.weight_src(4096, sT0) + P.weight_dst(True))
        a.run(P.conv_setup(NC))
        a.run(P.conv_setup2(NC))
        a(f"s_lshl2_add_u32 s{sT0}, s{sST}, s{sW}")
        a(f"v_lshl_add_u32 v{vT}, s{sT0}, 4, v{vI}")
        a(f"v_lshlrev_b32 v{vX1}, 1, v{vT}")
        a(f"v_mul_u32_u24 v{vT}, 1280, v{vT}")
        a(f"s_mul_i32 s{sT0}, s{sDT}, 320")
        a(f"v_add_u32 v{vT}, s{sT0}, v{vT}")
        a(f"v_lshl_add_u32 v{vQO2}, v{vH}, 4, v{vT}")
        a(f"s_lshl_b32 s{sT0}, s{sSP}, 6")
        a(f"v_add_u32 v{vQO}, s{sT0}, v{vQO2}")
        a(f"v_subrev_u32 v{vQO1}, s{sT0}, v{vQO2}")
        a(f"s_lshl1_add_u32 s{sT0}, s{sST}, s{sT2}")
        a(f"s_lshl3_add_u32 s{sT0}, s{sT0}, s{sT3}")
        a(f"s_lshl_b32 s{sT0}, s{sT0}, 4")
        a(f"s_add_u32 s{sT0}, s{sT0}, {WS_G}")
        a(f"v_lshl_add_u32 v{vT}, v{vR}, 5, s{sT0}")
        a(f"v_lshl_add_u32 v{vGA}, v{vC}, 2, v{vT}")

    SP = cfg.get('setp', 1)
    if SP == 0:
        bigset()
    nq = cfg.get('kvq2', 7)
    if nq:
        a.run(kv_batch(kvq[:nq])); kvq = kvq[nq:]
    a.wait('hst' if H2 else 'hst2')
    a.run([P.flag_wg(sU3, 'f1'), stamp('barH')])
    if kvq:
        a.run(kv_batch(kvq))
    CF = 148
    for u in range(5):
        a(f"global_load_dwordx2 {vr(CF+2*u,2)}, v{vS0}, {sp(P_SH)} offset:{128*u}")
    if SP == 1:
        bigset()
    a.run(P.ssm_loads(NC))

    def helper():
        HR = cfg.get('hlpB', 6)
        if HR:
            a(f"s_add_u32 s{sT0}, s{sST}, 4")
            a(f"s_and_b32 s{sT0}, s{sT0}, 7")
            a(f"s_mul_i32 s{sT1}, s{sT0}, {HR}")
            a(f"s_cmp_eq_u32 s{sT0}, 7")
            a(f"s_cselect_b32 s{sU2}, {OOB}, 0")
            a(f"s_lshl2_add_u32 s{sT0}, s{sW}, s{sDT}")
            a(f"s_mul_i32 s{sT0}, s{sT0}, 96")
            a(f"s_add_u32 s{sT0}, s{sT0}, s{sT1}")
            a(f"s_add_u32 s{sT0}, s{sT0}, {96 - 7*HR}")
            a(f"v_add_lshl_u32 v{vT}, s{sT0}, v0, 12")
            a(f"s_lshl_b32 s{sT0}, s{sXQ}, 10")
            a(f"s_add_u32 s{sT0}, s{sT0}, 384")
            a(f"s_add_u32 s{sU2}, s{sU2}, s{sT0}")
            a(f"s_mov_b64 exec, {hex((1 << HR) - 1)}")
            a(f"buffer_load_dword v251, v{vT}, {srd(S_W)}, s{sU2} offen")
            a("s_mov_b64 exec, -1")
    WP = cfg.get('wBpre', 1)
    if WP:
        helper()
    if WP >= 2:
        a.run(P.w_step())

    if H2:
        a(f"s_mul_i32 s{sU3}, s{sJ}, 16")
        a(f"s_add_u32 s{sU3}, s{sU3}, {WS_F1 + 0x4000}")
        a.wait('kvdma', 'hst2')
        a.run([P.flag_wg(sU3, 'f2'), stamp('barK')])
    else:
        a.wait('kvdma')
        a.run(["s_barrier", stamp('barK')])
    KR, KO = 64, 160

    def kv_reads(u):
        it = [f"ds_read_b64_tr_b16 {vr(KR+10*u+2*j,2)}, v{vKVA} offset:{32*u + 4*j*PK + (32 if j == 2 else 0)}" for j in range(3)]
        it += [f"ds_read_b64_tr_b16 {vr(KR+10*u+6+2*j,2)}, v{vKVA} offset:{32*u + 4*j*PK + (L_VI-L_KI)}" for j in range(2)]
        return it

    def kv_compute(u):
        it = []
        k = KR + 10 * u
        c10, c32 = CF + 2 * u, CF + 2 * u + 1
        SH, AC, VF, OUT = 116, 124, 132, KO + 4 * u
        for n in range(5):
            it.append(f"v_alignbit_b32 v{SH+n}, v{k+n+1}, v{k+n}, 16")
        pr = lambda e: (k + (e + 1) // 2, k + (e + 3) // 2) if e & 1 else (SH + e // 2, SH + e // 2 + 1)
        for e in range(8):
            it.append(f"v_dot2_f32_bf16 v{AC+e}, v{pr(e)[0]}, v{c32}, 0")
        for e in range(8):
            it.append(f"v_dot2_f32_bf16 v{AC+e}, v{pr(e)[1]}, v{c10}, v{AC+e}")
        for n in range(4):
            it.append(f"v_lshlrev_b32 v{VF+2*n}, 16, v{k+6+n}")
            it.append(f"v_and_b32 v{VF+2*n+1}, 0xffff0000, v{k+6+n}")
        for n in range(4):
            it.append(f"v_pk_mul_f32 {vr(AC+2*n,2)}, {vr(AC+2*n,2)}, {vr(VF+2*n,2)}")
        for n in range(4):
            it.append(f"v_cvt_pk_bf16_f32 v{OUT+n}, v{AC+2*n}, v{AC+2*n+1}")
        it.append((f"buffer_store_dwordx4 {vr(OUT,4)}, v{vKVS}, {srd(S_WS)}, {'0' if u == 0 else f's{79+u}'} offen sc1", 'kvst'))
        return it
    a.run(kv_reads(0) + kv_reads(1))
    if WP & 1:
        a.run(P.w_step())
    for u in range(10):
        a(f"v_alignbit_b32 v{CF+u}, v{CF+u}, v{CF+u}, 16")
    for u in range(5):
        a.run(merge(kv_compute(u), kv_reads(u + 2) if u < 3 else []))
    a.run([stamp('kv_done')])
    if not cfg.get('wBpre', 1):
        helper()
    for _ in range(cfg.get('wB0', 1)):
        a.run(P.w_step())
    a.wait('kvst')
    a.run([P.flag_wg(sFJ, 'fk') if KW == 1 else P.flag(sFJ), stamp('barV')] + P.zflag_addr(sFJ, 0))
    a(f"global_load_ushort v{vB2}, v{vX1}, {sp(P_B2)}")
    while P.nxt < cfg.get('pollB', 7):
        a.run(P.w_step())
    a(P.poll_issue(vP1, 16, KW, 204))
    for _ in range(cfg.get('pollgapB', 0)):
        a.run(P.w_step())
    a.run([P.poll_check('fk', vP1, 16, KW, 204), stamp('fk_ok')])
    a.run(P.x_loads(NC))
    qa = lambda p: f"v{(vQO, vQO1, vQO, vQO1, vQO2)[p]}"
    qld = [f"global_load_dwordx4 {vr(QR+4*p,4)}, {qa(p)}, {sp(P_Q)} offset:{64*p}" for p in range(5)]
    for _ in range(cfg.get('xgapB', 1)):
        a.run(P.w_step())
    a.wait('xd')
    a("s_barrier")
    a.run([stamp('barC')])

    CPB = cfg.get('cpreB', 4)
    a.run(P.conv_pre(CPB))
    while P.nxt < NR:
        a.run(P.w_step())
    S = P.conv_sched(NT, CPB, cfg.get('ccap', 2.3), cfg.get('sg0', 100))
    cS, cE = cfg.get('cS', 0), cfg.get('cE', NMF - 36)
    nst = 12 - P.nxt
    per = (cE - cS) / (nst + 1)
    for r in range(nst):
        p0 = cS + r * per
        it = P.w_step()
        for k, x in enumerate(it[:9]):
            S.add('wd', [x], int(p0 + k * per / 14), int(p0 + (k + 1) * per / 14))
        p1 = p0 + per
        S.add('w', it[9:11], int(p1 - per / 5), int(p1) - 1)
        S.add('w', it[11:12], int(p1), int(p1))
        for k, x in enumerate(it[12:]):
            S.add('w', [x], int(p1 + k * per / 4), int(p1 + k * per / 4))
    S.add('wd', P.w_step(), int(cE - per), int(cE) - 1, pace=per / 11)
    tail = []
    while P.drn < 12:
        tail += P.w_step()
    S.add('wd', tail, cE, None, pace=(NMF - cE) / len(tail))
    vUL = 10
    uset = [f"s_mul_i32 s{sT0}, s{sDT}, 120",
            f"s_mul_i32 s{sT1}, s{sW}, 6",
            f"s_add_u32 s{sT0}, s{sT0}, s{sT1}",
            f"v_mul_u32_u24 v{vT}, 43, v0",
            f"v_lshrrev_b32 v{vT}, 8, v{vT}",
            f"v_mul_u32_u24 v{vT}, 18, v{vT}",
            f"v_add3_u32 v{vP0}, s{sT0}, v0, v{vT}",
            f"v_mul_u32_u24 v{vP0}, {FSU}, v{vP0}",
            f"v_add_u32 v{vP0}, {WS_FU}, v{vP0}",
            f"s_mul_i32 s{sT0}, s{sDT}, {5*48}",
            f"s_lshl1_add_u32 s{sT0}, s{sT1}, s{sT0}",
            f"s_lshl_b32 s{sT0}, s{sT0}, 10",
            f"s_add_u32 s{sT0}, s{sT0}, {WS_U}",
            f"v_add_u32 v{vUL+4}, s{sT0}, v1",
            f"s_mul_i32 s{sT0}, s{sSP}, {96*1024}",
            f"v_add_u32 v{vUL}, s{sT0}, v{vUL+4}",
            f"s_sub_u32 s{sT0}, {96*1024}, s{sT0}",
            f"v_add_u32 v{vUL+2}, s{sT0}, v{vUL+4}",
            f"v_add_u32 v{vUL+1}, {48*1024}, v{vUL}",
            f"v_add_u32 v{vUL+3}, {48*1024}, v{vUL+2}",
            f"v_add_u32 v{vUL+4}, {192*1024}, v{vUL+4}"]
    S.add('set', uset, 40, 118)
    for k, x in enumerate(qld):
        qp = cfg.get('qS', 20) + cfg.get('qD', 16) * k
        S.add('q', [x], qp, qp)
    pU = NMF - cfg.get('pU0', 16)
    S.add('set', [P.poll_issue(vP0, 30)], pU, pU)
    NB2, GR2, UE = cfg.get('nb2', 16), cfg.get('grp2', 2), cfg.get('uearly', 8)
    UBUF = ([ar(192 + 4*i, 4) for i in range(16)] + [vr(92 + 4*i, 4) for i in range(4)])[:NB2]
    vUM = 220

    def u_load(n):
        m, j = divmod(n, 12)
        return f"buffer_load_dwordx4 {UBUF[n % NB2]}, v{vUL+m if m < 5 else vUM+m-5}, {srd(S_WS)}, s{TK+j} offen {cfg.get('apol', 'sc1')}"
    ustart = [P.poll_check('fu0', vP0, 30), stamp('fu0_ok')] + [u_load(n) for n in range(UE)]
    UEP = cfg.get('uep', 1)
    P.conv_run(S, NT, False, mid=[ustart if k == UEP else [] for k in range(3)])

    NB2, GR2, UE = cfg.get('nb2', 16), cfg.get('grp2', 2), cfg.get('uearly', 8)
    UBUF = ([ar(192 + 4*i, 4) for i in range(16)] + [vr(92 + 4*i, 4) for i in range(4)])[:NB2]
    AC2, OWN, RD2, RD4 = (108, 120), 132, 172, 208
    GQ, ZL, ZRg, ZU = 228, 64, 76, 88
    vZG, vZLW, vZT, vOG, vR2R, vR2W, vUM = 20, 21, 22, 28, 33, 25, 220
    vR2S, vR2X, PDZ, vP2 = 23, 30, 226, 225
    opol = cfg.get('opol', 'sc1')
    g2set = [f"v_add_u32 v{vUM+m}, {cfg.get('wiU', 20*48*1024)}, v{vUL+m}" for m in range(5)]
    g2set += [f"v_add_u32 v{vP0}, {20*24*FSU}, v{vP0}",
              f"v_lshrrev_b32 v{vT}, 3, v0",
              f"v_lshl_add_u32 v{vT}, s{sW}, 3, v{vT}",
              f"v_and_b32 v{vT2}, 7, v0",
              f"v_lshlrev_b32 v{vT2}, 4, v{vT2}",
              f"v_lshl_add_u32 v{vZG}, v{vT}, 12, v{vT2}",
              f"v_mul_u32_u24 v{vT}, {PZ}, v{vT}",
              f"v_add_u32 v{vT}, v{vT}, v{vT2}",
              f"v_add_u32 v{vZLW}, {L_ZI}, v{vT}",
              f"s_mul_i32 s{sT0}, s{sDT}, {160*4096}",
              f"s_lshl_b32 s{sT1}, s{sST}, 7",
              f"s_add_u32 s{sT0}, s{sT0}, s{sT1}",
              f"s_add_u32 s{sT0}, s{sT0}, {WS_Z}",
              f"s_lshl_b32 s{sT1}, s{sSP}, 17",
              f"s_add_u32 s80, s{sT0}, s{sT1}",
              f"s_sub_u32 s81, s{sT0}, s{sT1}",
              f"s_add_u32 s81, s81, {32*4096}",
              f"s_add_u32 s82, s80, {64*4096}",
              f"s_add_u32 s83, s81, {64*4096}",
              f"s_add_u32 s{sX0}, s{sT0}, {128*4096}",
              f"v_lshl_add_u32 v{vT}, v{vH}, 3, v{vR}",
              f"v_mul_u32_u24 v{vT}, {PZ}, v{vT}",
              f"s_lshl_b32 s{sT0}, s{sW}, 5",
              f"s_add_u32 s{sT0}, s{sT0}, {L_ZI}",
              f"v_lshl_add_u32 v{vZT}, v{vC}, 3, s{sT0}",
              f"v_add_u32 v{vZT}, v{vZT}, v{vT}"]
    for jn in range(1, 4):
        g2set += [f"s_xor_b32 s{sT0}, s{sW}, {jn}",
                  f"s_mul_i32 s{sT0}, s{sT0}, 3072",
                  f"s_add_u32 s{sT0}, s{sT0}, {(jn-1)*1024}",
                  f"v_add_u32 v{vR2W+jn-1}, s{sT0}, v1",
                  f"v_add_u32 v{vR2X+jn-1}, {L_RED}, v{vR2W+jn-1}"]
    g2set += [f"s_mul_i32 s{sT0}, s{sW}, 3072",
              f"v_add_u32 v{vR2R}, s{sT0}, v1",
              f"v_add_u32 v{vR2S}, {L_RED}, v{vR2R}",
              f"s_lshl3_add_u32 s{sT0}, s{sDT}, s{sW}",
              f"s_lshl_b32 s{sT0}, s{sT0}, 2",
              f"v_lshl_add_u32 v{vP1}, v{vR}, 4, v{vC}",
              f"v_add_u32 v{vP1}, s{sT0}, v{vP1}",
              f"v_mul_u32_u24 v{vP1}, {FSZ}, v{vP1}",
              f"s_and_b32 s{sT1}, s{sST}, 1",
              f"s_lshl_b32 s{sT1}, s{sT1}, 3",
              f"s_add_u32 s{sT1}, s{sT1}, {WS_FZ}",
              f"v_add_u32 v{vP1}, s{sT1}, v{vP1}",
              f"s_lshl2_add_u32 s{sT0}, s{sDT}, s{sW}",
              f"v_and_b32 v{vT}, 7, v0",
              f"v_lshl_add_u32 v{vP2}, s{sT0}, 3, v{vT}",
              f"v_mul_u32_u24 v{vP2}, {FSZ}, v{vP2}"]
    Z2 = NC == 2 and cfg.get('z2', 1)
    if Z2:
        g2set += [f"s_and_b32 s{sT1}, s{sST}, 3", f"s_lshl_b32 s{sT1}, s{sT1}, 2", f"s_add_u32 s{sT1}, s{sT1}, {WS_FZ + 128*FSZ + 16}",
                  f"v_add_u32 v{vP2}, s{sT1}, v{vP2}"]
    else:
        g2set += [f"v_add_u32 v{vP2}, s{sT1}, v{vP2}", f"v_cmp_lt_u32 vcc, 7, v0", "s_nop 1", f"v_cndmask_b32 v{vP1}, v{vP1}, v{vP2}, vcc"]
    nz0 = 16 if NC == 3 else 8
    nz1 = 16 if NC == 2 and not Z2 else 8
    zso = (80, 81, 82, 83, sX0)
    ptile = ((0, 1), (2, 3), (5, 6), (7, 8), (4, 9))

    def u_load(n):
        m, j = divmod(n, 12)
        return f"buffer_load_dwordx4 {UBUF[n % NB2]}, v{vUL+m if m < 5 else vUM+m-5}, {srd(S_WS)}, s{TK+j} offen {cfg.get('apol', 'sc1')}"

    def mf2(n, jn):
        m, j = divmod(n, 12)
        d = vr(OWN + 4 * m, 4) if jn == 0 else vr(AC2[m & 1] + 4 * (jn - 1), 4)
        return f"v_mfma_f32_16x16x32_bf16 {d}, {UBUF[n % NB2]}, {ar(16*j+4*jn,4)}, {'0' if j == 0 else d}"
    rd = lambda m, s: [f"ds_read_b128 {vr(RD2+12*s+4*k,4)}, v{vR2R if m < 5 else vR2S} offset:{(m % 5)*12288 + k*1024}" for k in range(3)]
    ad = lambda m, s: [f"v_add_f32 v{OWN+4*m+r}, v{OWN+4*m+r}, v{RD2+12*s+4*k+r}" for k in range(3) for r in range(4)]
    wr = lambda m: [(f"ds_write_b128 v{(vR2W if m < 5 else vR2X)+jn-1}, {vr(AC2[m & 1]+4*(jn-1),4)} offset:{(m % 5)*12288}", f'r2w{m}') for jn in range(1, 4)]
    z_ld = lambda ps: [f"buffer_load_dwordx4 {vr(ZL+4*i,4)}, v{vZG}, {srd(S_WS)}, s{zso[p]} offen sc1" for i, p in enumerate(ps)]
    z_wr = lambda ps: [f"ds_write_b128 v{vZLW}, {vr(ZL+4*i,4)} offset:{p*32*PZ}" for i, p in enumerate(ps)]
    z_rd = lambda p: [f"ds_read_b64_tr_b16 {vr(ZRg+4*(p % 3)+2*hh,2)}, v{vZT} offset:{(32*p + 4*hh)*PZ}" for hh in range(2)]

    def gq(p):
        it = []
        pp = GQ + 8 * (p % 3)
        for k in range(4):
            it += [f"v_lshlrev_b32 v{pp+2*k}, 16, v{QR+4*p+k}", f"v_and_b32 v{pp+2*k+1}, 0xffff0000, v{QR+4*p+k}",
                   f"v_mul_f32 v{pp+2*k}, v{pp+2*k}, v{vGG}", f"v_mul_f32 v{pp+2*k+1}, v{pp+2*k+1}, v{vGG}"]
        return it
    sc = lambda m: [f"v_fma_f32 v{OWN+4*m+k}, v{OWN+4*m+k}, v{vOG}, v{vB2}" for k in range(4)]

    def fin(p, hh):
        it = []
        o = OWN + 4 * ptile[p][hh]
        for k in range(2):
            zu, z, g = ZU + 2 * k, ZRg + 4 * (p % 3) + 2 * hh + k, GQ + 8 * (p % 3) + 4 * hh + 2 * k
            it += [f"v_lshlrev_b32 v{zu}, 16, v{z}", f"v_and_b32 v{zu+1}, 0xffff0000, v{z}"]
            if (p, hh) == (4, 1):
                it += [f"v_fma_f32 v{g}, v{g}, v{zu}, v{vB2}", f"v_fma_f32 v{g+1}, v{g+1}, v{zu+1}, v{vB2}"]
            else:
                it += [f"v_fmac_f32 v{o+2*k}, v{g}, v{zu}", f"v_fmac_f32 v{o+2*k+1}, v{g+1}, v{zu+1}",
                       f"v_cvt_pk_bf16_f32 v{QR+4*p+2*hh+k}, v{o+2*k}, v{o+2*k+1}"]
        return it
    ost = lambda p: [f"global_store_dwordx4 {qa(p)}, {vr(QR+4*p,4)}, {sp(P_OUT)} offset:{64*p} {opol if p < cfg.get('opn', 5) else ''}"]
    if cfg.get('dly'):
        a(f"s_sleep {cfg['dly']}")
    if UEP == 3:
        a.run(ustart)
    a(f"buffer_load_dword v{vGG}, v{vGA}, {srd(S_WS)}, 0 offen sc1")
    a.run(g2set)
    mf, pos = [], {}
    for q in range(120 // GR2):
        ns = range(q * GR2, (q + 1) * GR2)
        for jn in ((1, 2, 3, 0) if ns[0] < 108 else (1, 2, 3)):
            for n in ns:
                pos.setdefault(n, len(mf))
                mf.append(mf2(n, jn))
    pown = len(mf)
    mf += [mf2(n, 0) for n in range(108, 120)]
    S = Sched(mf)
    for n in range(120):
        S.reserve(pos[n] - 1)
    UC = cfg.get('pUC', 210)
    k = 0
    for n in range(UE, 120):
        free = 4 * GR2 * ((n - NB2) // GR2 + 1) if n >= NB2 else 0
        p = max(free, 4 * (n - NB2 + GR2) + 1, 2 * k)
        if n >= 60:
            p = max(p, min(UC + 1 + 2 * (n - 60), 4 * n - 2 if UC < 236 else max(239, 4 * (n - UE))))
        if n == 60:
            S.add('u', [P.poll_check('fu1', vP0, 30), stamp('fu1_ok')], p, p)
            pZ0 = p
        S.add('u', [u_load(n)], p, p)
        k += 1
    lastu = p
    S.add('st', [stamp('g2first')], 0, 0)
    S.add('st', [stamp('g2mid')], 240, 240)
    pF = cfg.get('pF', 40)
    S.add('z', [('wait', 'zst2' if NC == 3 else 'zst1'), stamp('barF'), P.flag(sFJ)], pF, pF + 1)
    zB = (0, 1) if NC == 2 else (0, 1, 4)
    zA = (2, 3, 4) if NC == 2 and not Z2 else (2, 3)
    UP = UC - cfg.get('pUP', 44)
    S.add('z', [P.poll_issue(vP0, 30), P.poll_issue(vP1, nz0, 2, PDZ)], UP, UP + 1)
    S.add('z', [P.poll_check('fz0', vP1, nz0, 2, PDZ), stamp('fz0_ok')] + z_ld(zB) + [f"v_add_u32 v{vP1}, {128*FSZ}, v{vP1}"], pZ0 + 3, pZ0 + 14, pace=2)
    ZP1, ZC1 = cfg.get('zp1', [325, 372])
    S.add('z', [P.poll_issue(vP1, nz1, 2, PDZ)], ZP1, ZP1)
    S.add('z', [P.poll_check('fz1', vP1, nz1, 2, PDZ), stamp('fz1_ok')] + z_ld(zA), ZC1, ZC1 + 8, pace=2)
    if Z2:
        ZP2, ZC2 = cfg.get('zp2', [390, 434])
        S.add('z2', [P.poll_issue(vP2, 8)], ZP2, ZP2)
        S.add('z2', [P.poll_check('fz2', vP2, 8), stamp('fz2_ok'),
                    f"buffer_load_dwordx4 {vr(ZL+8,4)}, v{vZG}, {srd(S_WS)}, s{zso[4]} offen sc1"], ZC2, ZC2 + 1)
    S.add('fin', [f"v_lshlrev_b32 v{vB2}, 16, v{vB2}", f"v_sub_f32 v{vOG}, 1.0, v{vGG}", f"v_mul_f32 v{vB2}, v{vB2}, v{vOG}"] + gq(0) + gq(1) + gq(2), 44, 200)
    OS = cfg.get('osat', 450)
    bars = cfg.get('bars', [3, 5, 7, 8])
    zlate = cfg.get('zlate', 0)
    flat = lambda l: [x for y in l for x in y]
    done = 0
    tailz = []
    for m in range(9):
        p = 48 * (m + 1)
        if m == 5:
            S.add('red', z_wr(zB), p - 14, p - 1, pace=4)
        if m == 8 and not zlate:
            S.add('red', z_wr(zA), p - 14, p - 1, pace=4)
        S.add('red', wr(m), p, p + 8, pace=3)
        if m in bars:
            S.add('red', [('wait', f'r2w{m}'), "s_barrier"], p + 11, p + 12)
            ms = list(range(done, m + 1))
            done = m + 1
            dl = None if m == 8 else 48 * (bars[bars.index(m) + 1] + 1) + 10
            it = []
            if m == 5:
                it += z_rd(0) + z_rd(1)
            if m == 8 and not zlate:
                it += z_rd(2) + z_rd(3) + ([] if Z2 else z_rd(4))
            it += flat(rd(t, t % 3) for t in ms[:3])
            if m == 8 and not zlate:
                it += ([] if Z2 else fin(4, 0) + fin(4, 1)) + fin(2, 0)
            if m == 5 and ms[0] > 1:
                it += fin(0, 0) + fin(0, 1)
            for i, t in enumerate(ms):
                it += ad(t, t % 3) + (rd(ms[i + 3], t % 3) if i + 3 < len(ms) else []) + sc(t)
            if m == 5:
                it += (fin(0, 0) + fin(0, 1) if ms[0] <= 1 else []) + fin(1, 0) + fin(1, 1) + gq(3) + gq(4)
                dl = min(dl, OS - 1)
                S.add('os', ost(0) + ost(1), OS, OS + 4, pace=3)
            if m == 8:
                last = fin(2, 1) + ost(2) + fin(3, 0) + fin(3, 1) + ost(3)
                if zlate:
                    tailz = fin(2, 0) + last + fin(4, 0) + fin(4, 1)
                else:
                    it += last
            S.add('fin', it, p + 13, dl)
    if zlate:
        S.add('red', z_wr(zA), pown - 8, pown, pace=3)
    S.add('red', wr(9), pown + 1, pown + 6, pace=2)
    ZIN = cfg.get('zin', 1)
    zw2 = (f"ds_write_b128 v{vZLW}, {vr(ZL+8,4)} offset:{4*32*PZ}", 'zw2')
    if Z2 and ZIN:
        S.add('red', [zw2], pown + 8, pown + 8)
    d2 = cfg.get('d2', '')
    post = []
    if 'z' in d2:
        a.run([x[0] for x in S.th['z'][:3]])
        post += [x[0] for x in S.th['z'][3:] + S.th.get('z2', [])]; S.th['z'] = []; S.th['z2'] = []
        S.th['u'] = [x for x in S.th['u'] if not callable(x[0])]
    for nm in ('red', 'fin', 'os'):
        if nm[0] in d2:
            post += [x[0] for x in S.th[nm]]; S.th[nm] = []
    its = S.items(keep=('fin',))
    if 'u' in d2:
        its = [x for x in its if not txt_of(x).startswith('buffer_load_dwordx4 a[')]
    if 'b' in d2:
        its = [x for x in its if txt_of(x) != 's_barrier']
    if 'w' in d2:
        its = [x for x in its if not (txt_of(x).startswith('ds_write_b128') and x[1:] != ('r2w9',)) and not (txt_of(x) == 'wait' and x[1].startswith('r2w'))]
    a.run(its)
    a.run([stamp('g2x')] + ([] if cfg.get('nopost') else post))
    P.info['g2'] = (S.over, S.under, len(S.left.get('fin', [])))
    a.run([stamp('g2mfma')])
    left = S.left.get('fin', [])
    if Z2:
        assert not zlate
        tailz = fin(4, 0) + fin(4, 1)
        if not ZIN:
            a.run(left)
            left = []
            a(zw2[0], tok='zw2')
        a.wait('zw2')
    if 'r2w9' in a.toks:
        a.wait('r2w9')
    a("s_barrier")
    if Z2:
        a.run(z_rd(4))
    for k in range(3):
        a(f"ds_read_b128 {vr(RD4+4*k,4)}, v{vR2S} offset:{4*12288 + k*1024}")
    if zlate:
        a.run(z_rd(2) + z_rd(3) + z_rd(4))
    a.run(left + tailz)
    for k in range(3):
        for hh in range(2):
            a(f"v_pk_add_f32 {vr(OWN+36+2*hh,2)}, {vr(OWN+36+2*hh,2)}, {vr(RD4+4*k+2*hh,2)}")
    g = GQ + 8 + 4
    for hh in range(2):
        a(f"v_pk_fma_f32 {vr(g+2*hh,2)}, {vr(OWN+36+2*hh,2)}, {vr(vOG,2)}, {vr(g+2*hh,2)} op_sel_hi:[1,0,1]")
    for hh in range(2):
        a(f"v_cvt_pk_bf16_f32 v{QR+18+hh}, v{g+2*hh}, v{g+2*hh+1}")
    a.run(ost(4))
    P.finish()
    a("s_endpgm")
    return P


def gen(cfg):
    h = Asm()
    h("s_load_dwordx16 s[36:51], s[0:1], 0")
    h("s_load_dwordx16 s[52:67], s[0:1], 56")
    if cfg.get('stamps') or cfg.get('amp'):
        h("s_memrealtime s[96:97]")
    h("s_cmp_ge_u32 s2, 256")
    h("s_cbranch_scc1 L_end")
    h("v_lshrrev_b32 v1, 6, v0")
    h("v_and_b32 v0, 63, v0")
    h(f"v_readfirstlane_b32 s{sW}, v1")
    rb = cfg.get('rolebit', 0)
    h(f"s_lshr_b32 s{sID}, s2, 3")
    if rb == 0:
        h(f"s_bfe_u32 s{sXQ}, s2, 0x20001")
    elif rb == 2:
        h(f"s_and_b32 s{sXQ}, s2, 3")
    else:
        h(f"s_bfe_u32 s{sXQ}, s2, 0x10002")
        h(f"s_and_b32 s{sT0}, s2, 1")
        h(f"s_lshl1_add_u32 s{sXQ}, s{sXQ}, s{sT0}")
    h(f"s_lshl_b32 s{sJ}, s{sXQ}, 5")
    h(f"s_add_u32 s{sJ}, s{sJ}, s{sID}")
    lay = cfg.get('lay', 'C')
    if lay == 'C':
        if cfg.get('cpf', 1):
            h(f"s_bitcmp0_b32 s2, {rb}")
            h(f"s_cselect_b32 s{sT1}, L_Amain-L_pcC, 0")
            h.run([x.replace("@-L_pcC", f"s{sT1}") for x in Prog('C', cfg).code_prefetch("@", "L_end")])
    elif lay == 'A':
        h(f"s_bitcmp1_b32 s2, {rb}")
        h("s_cbranch_scc1 L_B")
    else:
        h(f"s_bitcmp0_b32 s2, {rb}")
        h("s_cbranch_scc1 L_A")
    A, B = prog_A(cfg), prog_B(cfg)
    ref = open(f"cdna_kernels/{NAME}.s.ref").read().split('\n')
    head = [l for l in ref if l.startswith(';') and '@launch' not in l and 'Override' not in l and 'grid=ceil' not in l]
    txt = '\n'.join(head) + f"\n; @launch grid=(256,1,1) block=(256,1,1) lds={L_END}\n"
    txt += f""".amdgcn_target "amdgcn-amd-amdhsa--gfx950"
.text
.globl {NAME}_kernel
.p2align 8
.type {NAME}_kernel,@function
{NAME}_kernel:
"""
    if lay == 'C':
        J = lambda l: '\n'.join(l) + '\n'
        txt += (h.text() + J(A.a.out[:A.split0]) + J(B.a.out[:B.split0]) + f"    s_waitcnt lgkmcnt(0)\n    s_bitcmp1_b32 s2, {rb}\n    s_cbranch_scc1 L_Bgo\n" +
                J(A.a.out[A.split0:A.split]) + "L_Bgo:\n" + J(B.a.out[B.split0:]) + ".p2align 7\n" + J(A.a.out[A.split:]) + "L_end:\n    s_endpgm\n")
    elif lay == 'A':
        txt += h.text() + '\n'.join(A.a.out[:A.split]) + '\n' + B.a.text() + ".p2align 7\n" + '\n'.join(A.a.out[A.split:]) + "\nL_end:\n    s_endpgm\n"
    else:
        txt += h.text() + B.a.text() + ".p2align 7\nL_A:\n" + '\n'.join(A.a.out[:A.split-1] + A.a.out[A.split:]) + "\nL_end:\n    s_endpgm\n"
    txt += f""".section .rodata,"a"
.p2align 6
.amdhsa_kernel {NAME}_kernel
  .amdhsa_next_free_vgpr 512
  .amdhsa_next_free_sgpr 102
  .amdhsa_accum_offset 256
  .amdhsa_group_segment_fixed_size 0
  .amdhsa_kernarg_size 120
  .amdhsa_user_sgpr_count 2
  .amdhsa_user_sgpr_kernarg_segment_ptr 1
  .amdhsa_system_sgpr_workgroup_id_x 1
  .amdhsa_float_denorm_mode_32 3
.end_amdhsa_kernel
"""
    return txt, dict(n_ins=(A.a.n_ins, B.a.n_ins), n_nop=(A.a.n_nop, B.a.n_nop), stamps=B.names, stampsA=A.names,
                     rolebit=rb, sched=(A.info, B.info))


if __name__ == "__main__":
    import json
    out = sys.argv[1]
    cfg = json.loads(sys.argv[2]) if len(sys.argv) > 2 else {}
    txt, info = gen(cfg)
    open(out, 'w').write(txt)
    print(out, info)


def dmap(T, i):
    dt, m = divmod(T, 5)
    r, g = dt >> 2, dt & 3
    P, hh = (2 * r + (m >> 1), m & 1) if m < 4 else (4, r)
    return 160 * g + 32 * P + 8 * (i >> 2) + 4 * hh + (i & 3)
```

```python
import sys
from asmlib import Asm, merge, Sched

NAME = "gated_mix__ssm_conv_h3__mixer_token_mlp__prompt"

WS_H, WS_U, WS_KV, WS_Z, WS_G = 0x0, 0x280000, 0x480000, 0x700000, 0x980000
WS_F1, WS_FK, WS_FU, WS_FZ, WS_EP, WS_DBG = 0x990000, 0x998000, 0x9A0000, 0x9B0000, 0x9C0000, 0x9D0000
WS_SIZE = 0xA10000
OOB = 0x7F000000
TAGC = 0x9E3779B9

NR = 4
L_RED = 65536
PL = 1344
L_LN = 32768
PK = 704
L_KI = L_RED
L_VI = L_RED + 25600
L_ZSTG = L_RED + 4 * 12288
L_CK = L_RED + 61440
KP, KPAD = 4224, 96
L_CX = L_CK + 3 * KP
XP, XPAD = 4608, 512
L_CAR = L_CX + 3 * XP
L_END = L_CAR + 1600
L_ZI = L_CK
PZ = 144

S_WS, S_K, S_V, S_W, S_SSM = 4, 8, 12, 16, 24
P_Q, P_SH, P_D, P_B1, P_B2, P_GW, P_OUT = 36, 42, 46, 54, 58, 60, 62
TK = 68
sW, sXQ, sID, sA, sB, sJ, sSP, sTAG, sRING, sC0, sFI, sFJ = range(84, 96)
sT0, sT1, sT2, sT3 = 32, 33, 34, 35
sU0, sU1, sU2, sU3 = 20, 21, 22, 23
sX0, sX1, sX2 = 31, 48, 49
sC2 = 39
sCNT = 3
vH, vI, vR, vC, vT, vT2 = 37, 38, 39, 40, 42, 43
VW, VT = 2, 6
vPD = 18
vCA, vCB, vCA2, vCB2 = 20, 21, 22, 23
vCRW, vCRW2, vCRR, vCRR2, vZW, vZR, vZS, vZS2, vCW = 25, 26, 27, 28, 29, 30, 31, 32, 33
vP0, vP1, vTAG = 35, 24, 34
CA, CB, CACC, CY, NSL = 64, 128, 192, 216, 6
CH, CR, ZO = 240, 246, 216
vZF = 252
C20 = 56


def srd(n):
    return f"s[{n}:{n+3}]"


def sp(n):
    return f"s[{n}:{n+1}]"


def vr(n, k):
    return f"v[{n}:{n+k-1}]"


def ar(n, k):
    return f"a[{n}:{n+k-1}]"


def txt_of(x):
    return x if isinstance(x, str) else (x[0] if isinstance(x, tuple) else '')


class Prog:
    def __init__(self, role, cfg):
        self.a = Asm()
        self.role = role
        self.cfg = cfg
        self.stamps = cfg.get('stamps', False)
        self.names = []
        self.npoll = 0
        self.nxt = self.drn = 0
        self.nstep = 16 if role == 'A' else 12
        self.info = {}

    def stamp(self, name):
        def f(a):
            st = self.stamps
            amp = self.cfg.get('amp')
            if amp and amp == [self.role, name]:
                a("s_memrealtime s[98:99]")
            if not st or (st != 1 and name not in st and name not in ('start', 'end')) or (st == 1 and name[0] == 'w' and name != 'w8'):
                return
            k = len(self.names)
            a("s_memtime s[98:99]")
            a("s_memrealtime s[100:101]")
            a(f"v_writelane_b32 v255, s98, {k}")
            a(f"v_writelane_b32 v255, s100, {32+k}")
            self.names.append(name)
        f.cost = 0
        return f

    def weight_src(self, pitch, sbase):
        it = [f"v_lshrrev_b32 v{vT}, 3, v0",
              f"v_and_b32 v{vT2}, 6, v{vT}",
              f"v_xor_b32 v{vT2}, v{vT2}, v0",
              f"v_and_b32 v{vT2}, 7, v{vT2}",
              f"v_mul_u32_u24 v{vT}, {pitch}, v{vT}",
              f"v_lshl_add_u32 v{vT}, v{vT2}, 4, v{vT}",
              f"v_add_u32 v{VW}, s{sbase}, v{vT}"]
        for i in range(1, 4):
            it.append(f"v_add_u32 v{VW+i}, {8*pitch-1024}, v{VW+i-1}")
        return it

    def weight_dst(self, xorw):
        it = [f"v_lshrrev_b32 v{vT}, 2, v0",
              f"v_lshlrev_b32 v{vT}, 7, v{vT}",
              f"v_lshl_add_u32 v{vT}, v{vC}, 3, v{vT}",
              f"v_bfe_u32 v{vT2}, v0, 3, 2"]
        if xorw:
            it.append(f"v_xor_b32 v{vT2}, s{sW}, v{vT2}")
        it += [f"v_lshl_add_u32 v{vT}, v{vT2}, 5, v{vT}",
               f"v_add_u32 v{VT}, s{sRING}, v{vT}"]
        for t in range(1, 4):
            it.append(f"v_xor_b32 v{VT+t}, {t*32}, v{VT}")
        return it

    def w_issue(self, j):
        it = [f"s_mul_i32 s{sU1}, s{TK+j}, {96 if self.role == 'A' else 128}",
              f"s_add_u32 m0, s{sRING}, {(j % NR)*16384}"]
        if j >= NR:
            it.append(('wait', f'wr{j-NR}'))
        for i in range(4):
            it.append((f"buffer_load_dwordx4 v{VW+i}, {srd(S_W)}, s{sU1} offen offset:{i*1024} {self.cfg.get('wpol', '')} lds", f'wd{j}'))
        return it

    def w_drain(self, j):
        it = [('wait', f'wd{j}')]
        for t in range(4):
            for e2 in range(2):
                it.append((f"ds_read_b64_tr_b16 {ar(16*j+4*t+2*e2,2)}, v{VT+t} offset:{(j % NR)*16384 + e2*2048}", f'wr{j}'))
        return it

    def w_step(self):
        it = []
        if self.nxt >= NR or self.nxt == self.nstep:
            it += self.w_drain(self.drn); self.drn += 1
        if self.nxt < self.nstep:
            it += self.w_issue(self.nxt); self.nxt += 1
        return it

    def flag(self, soff):
        return f"s_mov_b64 exec, 1\nbuffer_store_dword v{vTAG}, v0, {srd(S_WS)}, s{soff} offen sc1\ns_mov_b64 exec, -1"

    def flag_wg(self, soff, name):
        def f(a):
            a("s_barrier")
            a(f"s_cmp_lg_u32 s{sW}, 0")
            a(f"s_cbranch_scc1 L_nf_{name}")
            a.begin_cond(name)
            a(self.flag(soff))
            a.end_cond()
            a.label(f"L_nf_{name}")
        return f

    def set_tag(self, v):
        return [f"v_readfirstlane_b32 s{sTAG}, v{v}", f"s_add_u32 s{sTAG}, s{sTAG}, {hex(TAGC)}", f"v_mov_b32 v{vTAG}, s{sTAG}"]

    @staticmethod
    def setexec(n):
        if n == 32:
            return "s_mov_b32 exec_hi, 0"
        if n > 32:
            return f"s_mov_b32 exec_hi, {hex((1 << (n-32)) - 1)}"
        return f"s_mov_b64 exec, {hex((1 << n) - 1)}"

    def poll_load(self, va, wd, vd):
        if wd == 1:
            return f"buffer_load_dword v{vd}, v{va}, {srd(S_WS)}, 0 offen sc1"
        return f"buffer_load_dwordx{wd} {vr(vd,wd)}, v{va}, {srd(S_WS)}, 0 offen sc1"

    def poll_issue(self, va, n=64, wd=1, vd=vPD):
        it = [self.setexec(n)] if n < 64 else []
        it.append(self.poll_load(va, wd, vd))
        if n < 64:
            it.append("s_mov_b64 exec, -1")
        return "\n".join(it)

    def poll_check(self, name, va, n=64, wd=1, vd=vPD):
        name = self.role + name

        def cmp(a):
            if wd == 1:
                a(f"v_cmp_ne_u32 vcc, s{sTAG}, v{vd}")
                return
            a(f"v_xor_b32 v{vd}, s{sTAG}, v{vd}")
            for k in range(1, wd):
                a(f"v_bitop3_b32 v{vd}, v{vd}, v{vd+k}, v{vTAG} bitop3:0xf6")
            a(f"v_cmp_ne_u32 vcc, 0, v{vd}")

        def f(a):
            if n < 64:
                a(self.setexec(n))
            cmp(a)
            a(f"s_mov_b32 s{sCNT}, 0")
            a(f"s_branch L_pk_{name}" if name[1:] in self.cfg.get('nopoll', []) else f"s_cbranch_vccz L_pk_{name}")
            a.label(f"L_pl_{name}")
            a.begin_cond('poll' + name)
            a("s_mov_b64 exec, vcc")
            if self.cfg.get('psleep'):
                a(f"s_sleep {self.cfg['psleep']}")
            a(self.poll_load(va, wd, vd))
            a(f"s_add_u32 s{sCNT}, s{sCNT}, 1")
            a(f"s_cmp_ge_u32 s{sCNT}, 0x40000")
            a(f"s_cbranch_scc1 L_pk_{name}")
            cmp(a)
            a("s_nop 0")
            a(f"s_cbranch_vccnz L_pl_{name}")
            a.end_cond()
            a.label(f"L_pk_{name}")
            a("s_mov_b64 exec, -1")
            if self.stamps:
                a(f"v_writelane_b32 v254, s{sCNT}, {self.npoll}")
                self.npoll += 1
        f.cost = 5
        return f

    def zflag_addr(self, dst, first):
        fsz = self.cfg.get('fsz', 32)
        return [f"s_add_u32 s{dst}, s{sJ}, {first}", f"s_mul_i32 s{dst}, s{dst}, {fsz}",
                f"s_lshl1_add_u32 s{sT0}, s{sT3}, s{sT2}", f"s_lshl2_add_u32 s{dst}, s{sT0}, s{dst}",
                f"s_add_u32 s{dst}, s{dst}, {WS_FZ}"]

    def lanes(self):
        return ["v_lshlrev_b32 v1, 4, v0",
                f"v_lshrrev_b32 v{vH}, 4, v0", f"v_and_b32 v{vI}, 15, v0",
                f"v_bfe_u32 v{vR}, v0, 2, 2", f"v_and_b32 v{vC}, 3, v0",
                f"s_lshr_b32 s{sT2}, s{sW}, 1", f"s_and_b32 s{sT3}, s{sW}, 1",
                f"s_lshl_b32 s{sRING}, s{sW}, 12"]

    def code_prefetch(self, beg, end):
        r = self.role
        return [f"s_getpc_b64 {sp(sU2)}", f"L_pc{r}:",
                f"s_lshl2_add_u32 s{sT2}, s{sID}, s{sW}",
                f"v_lshl_add_u32 v{vT}, s{sT2}, 1, v0",
                f"v_lshlrev_b32 v{vT}, 7, v{vT}",
                f"v_add_u32 v{vT}, {beg}-L_pc{r}, v{vT}",
                f"v_min_u32 v{vT}, {end}-L_pc{r}, v{vT}",
                "s_mov_b64 exec, 3",
                f"global_load_dword v253, v{vT}, {sp(sU2)}",
                "s_mov_b64 exec, -1"]

    def epoch_load(self, v):
        return [f"s_mov_b32 s{sT0}, {WS_EP}", "s_mov_b64 exec, 1",
                f"buffer_load_dword v{v}, v0, {srd(S_WS)}, s{sT0} offen sc1", "s_mov_b64 exec, -1"]

    def conv_setup(self, nch):
        ZR = 68
        it = [f"s_mul_i32 s{sC2}, s{sXQ}, 160",
              f"s_lshl1_add_u32 s{sC0}, s{sID}, s{sC2}",
              f"s_add_u32 s{sC0}, s{sC0}, {64 if self.role == 'A' else 0}",
              f"s_add_u32 s{sC2}, s{sC2}, s{sID}",
              f"s_add_u32 s{sC2}, s{sC2}, 128",
              f"s_lshl_b32 s{sT0}, s{sC0}, 1",
              f"s_load_dword s28, {sp(P_D)}, s{sT0}"]
        if nch == 3:
            it += [f"s_lshr_b32 s{sT1}, s{sC2}, 1", f"s_lshl_b32 s29, s{sT1}, 2", f"s_load_dword s30, {sp(P_D)}, s29"]
        it += [f"s_lshl_b32 s{sX0}, s{sC0}, 12",
               f"s_lshl_b32 s{sT1}, s{sW}, 10",
               f"s_add_u32 s{sX0}, s{sX0}, s{sT1}",
               f"s_add_u32 s{sX1}, s{sX0}, 4096",
               f"s_lshl_b32 s{sX2}, s{sC2}, 12",
               f"s_add_u32 s{sX2}, s{sX2}, s{sT1}"]
        it += [f"v_mov_b32 v{ZR+i}, 0" for i in range(4)]
        it += [f"s_min_u32 s{sT0}, s{sW}, 2",
               f"s_mul_i32 s{sT1}, s{sT0}, {XP}",
               f"s_add_u32 s{sT1}, s{sT1}, {L_CX}",
               f"v_add_u32 v{vT}, s{sT1}, v1",
               f"s_mul_i32 s{sT1}, s{sT0}, {KP}",
               f"s_add_u32 s{sT1}, s{sT1}, {L_CK}",
               f"v_add_u32 v{vT2}, s{sT1}, v1",
               f"s_mul_i32 s{sT1}, s{sT0}, {33*16}",
               f"s_add_u32 s{sT1}, s{sT1}, {L_CAR}",
               f"v_mov_b32 v{vPD}, s{sT1}",
               "s_mov_b32 exec_hi, 0",
               f"ds_write_b128 v{vT}, {vr(ZR,4)}",
               f"s_mov_b64 exec, {hex((1 << (KPAD//16)) - 1)}",
               f"ds_write_b128 v{vT2}, {vr(ZR,4)}",
               "s_mov_b64 exec, 1",
               f"ds_write_b128 v{vPD}, {vr(ZR,4)}",
               "s_mov_b64 exec, -1"]
        it += [f"v_lshl_add_u32 v{vT}, v{vH}, 3, v{vR}",
               f"v_lshlrev_b32 v{vT2}, 2, v{vC}",
               f"v_sub_u32 v{vT2}, v{vT2}, v{vT}",
               f"v_lshlrev_b32 v{vT2}, 3, v{vT2}",
               f"s_mul_i32 s{sT0}, s{sT2}, {KP}",
               f"s_add_u32 s{sT0}, s{sT0}, {L_CK + KPAD + 152 - 32}",
               f"v_add_u32 v{vCA}, s{sT0}, v{vT2}"]
        if nch == 3:
            it.append(f"v_add_u32 v{vCA2}, {L_CK + 2*KP + KPAD + 152 - 32}, v{vT2}")
        it += [f"v_add_lshl_u32 v{vT}, v{vT}, v{vC}, 3",
               f"s_mul_i32 s{sT0}, s{sT2}, {XP}",
               f"s_lshl_b32 s{sT1}, s{sT3}, 7",
               f"s_add_u32 s{sT0}, s{sT0}, s{sT1}",
               f"s_add_u32 s{sT0}, s{sT0}, {L_CX + XPAD - 152}",
               f"v_add_u32 v{vCB}, s{sT0}, v{vT}"]
        if nch == 3:
            it += [f"s_lshl_b32 s{sT0}, s{sW}, 7",
                   f"s_add_u32 s{sT0}, s{sT0}, {L_CX + 2*XP + XPAD - 152 - 256}",
                   f"v_add_u32 v{vCB2}, s{sT0}, v{vT}"]
        return it

    def conv_setup2(self, nch):
        it = [f"s_mul_i32 s{sT0}, s{sT2}, {33*16}",
              f"s_lshl4_add_u32 s{sT0}, s{sT3}, s{sT0}",
              f"s_add_u32 s{sT0}, s{sT0}, {L_CAR}",
              f"v_lshlrev_b32 v{vT}, 2, v{vC}",
              f"v_lshl_add_u32 v{vT2}, v{vR}, 5, v{vT}",
              f"v_add_u32 v{vCRR}, s{sT0}, v{vT2}",
              f"s_add_u32 s{sT0}, s{sT0}, {(16 - 48*32) & 0xffffffff}",
              f"v_lshl_add_u32 v{vCRW}, v0, 5, s{sT0}"]
        if nch == 3:
            it += [f"s_lshl_b32 s{sT0}, s{sW}, 4",
                   f"s_add_u32 s{sT0}, s{sT0}, {L_CAR + 2*33*16}",
                   f"v_lshl_add_u32 v{vT2}, v{vR}, 6, v{vT}",
                   f"v_add_u32 v{vCRR2}, s{sT0}, v{vT2}",
                   f"s_add_u32 s{sT0}, s{sT0}, {(16 - 56*64) & 0xffffffff}",
                   f"v_lshl_add_u32 v{vCRW2}, v0, 6, s{sT0}"]
        it += [f"s_mul_i32 s{sT0}, s{sW}, 3072",
               f"s_add_u32 s{sT0}, s{sT0}, {L_ZSTG}",
               f"v_lshl_add_u32 v{vZW}, v0, 1, s{sT0}",
               f"v_add_u32 v{vZR}, s{sT0}, v1",
               f"v_lshl_add_u32 v{vT}, v{vC}, 1, s{sT0}",
               f"v_lshl_add_u32 v{vZF}, v{vR}, 7, v{vT}",
               f"v_lshrrev_b32 v{vT}, 3, v0",
               f"v_and_b32 v{vT2}, 7, v0",
               f"v_lshlrev_b32 v{vT2}, 4, v{vT2}",
               f"v_lshl_add_u32 v{vZS}, v{vT}, 8, v{vT2}",
               f"s_add_u32 s{sT0}, s{sC0}, s{sT2}",
               f"s_lshl_b32 s{sT0}, s{sT0}, 12",
               f"s_lshl_b32 s{sT1}, s{sT3}, 7",
               f"s_add_u32 s{sT0}, s{sT0}, s{sT1}",
               f"s_add_u32 s{sT0}, s{sT0}, {WS_Z}",
               f"v_add_u32 v{vZS}, s{sT0}, v{vZS}"]
        if nch == 3:
            it += [f"v_lshl_add_u32 v{vZS2}, v{vT}, 9, v{vT2}",
                   f"s_lshl_b32 s{sT0}, s{sC2}, 12",
                   f"s_lshl_b32 s{sT1}, s{sW}, 7",
                   f"s_add_u32 s{sT0}, s{sT0}, s{sT1}",
                   f"s_add_u32 s{sT0}, s{sT0}, {WS_Z}",
                   f"v_add_u32 v{vZS2}, s{sT0}, v{vZS2}"]
        if nch == 3:
            it += [f"s_and_b32 s{sT0}, s{sC2}, 1",
                   f"s_lshl_b32 s{sT0}, s{sT0}, 4",
                   f"s_lshr_b32 s30, s30, s{sT0}",
                   f"s_lshl_b32 s30, s30, 16"]
        fsk = self.cfg.get('fsk', 16)
        it += [f"s_lshl_b32 s{sT0}, s{sT2}, 4", f"s_lshr_b32 s28, s28, s{sT0}", f"s_lshl_b32 s28, s28, 16",
               f"s_lshl_b32 s29, s{sW}, 10",
               f"s_lshr_b32 s{sT0}, s{sXQ}, 1",
               f"s_lshl2_add_u32 s{sT0}, s{sT0}, s{sW}",
               f"v_lshl_add_u32 v{vP1}, s{sT0}, 4, v0",
               f"v_mul_u32_u24 v{vP1}, {fsk}, v{vP1}",
               f"v_add_u32 v{vP1}, {WS_FK}, v{vP1}"]
        return it

    def ssm_loads(self, nch):
        return [(f"s_add_u32 m0, s29, {L_CK + KPAD + cs*KP}\nbuffer_load_dwordx4 v1, {srd(S_SSM)}, s{so} offen {self.cfg.get('spol', '')} lds\ns_add_u32 s{so}, s{so}, {WS_KV}", 'kd')
                for cs, so in enumerate((sX0, sX1, sX2)[:nch])]

    def x_loads(self, nch):
        return [(f"s_add_u32 m0, s29, {L_CX + XPAD + cs*XP}\nbuffer_load_dwordx4 v1, {srd(S_WS)}, s{so} offen sc1 lds", 'xd')
                for cs, so in enumerate((sX0, sX1, sX2)[:nch])]

    def dpatch(self, part):
        it = []
        r0 = C20 if part == 2 and self.role == 'A' else CA
        for r, mk in ((r0 + 1, 0x01000001), (r0 + 3, 0x10000010)):
            it += [f"v_and_b32 v{vT2}, 0xffff0000, v{r}", f"v_lshlrev_b32 v{vT}, 16, v{r}",
                   f"v_add_f32 v{vT2}, s{28 if part == 1 else 30}, v{vT2}",
                   f"s_mov_b32 exec_lo, 0\ns_mov_b32 exec_hi, {hex(mk)}\nv_cvt_pk_bf16_f32 v{r}, v{vT}, v{vT2}\ns_mov_b64 exec, -1"]
        return it

    def conv_pre(self, n):
        it = []
        for c in range(n):
            it += self.c_read(1, c)
        return it + self.dpatch(1)

    tiles = [(1, m, m) for m in range(16)] + [(2, n, 2 * n + 1) for n in range(8)]

    def fa(self, part, c, o=0, k=4):
        if part == 2 and self.role == 'A':
            return vr(C20 + o, k) if c == 0 else ar(4 * c + o, k)
        return vr(CA + 4 * c + o, k)

    def fb(self, part, n, o=0, k=4):
        if part == 2 and self.role == 'A':
            return ar(64 + 4 * n + o, k)
        return vr(CB + 4 * (n if part == 1 else 15 - n) + o, k)

    def c_read(self, part, c):
        va, vb = (vCA, vCB) if part == 1 else (vCA2, vCB2)
        return ([f"ds_read_b64_tr_b16 {self.fa(part,c,2*e2,2)}, v{va} offset:{256*c + 32*(1-e2)}" for e2 in range(2)] +
                [f"ds_read_b64_tr_b16 {self.fb(part,c,2*e2,2)}, v{vb} offset:{256*c + 32*e2}" for e2 in range(2)])

    def tile_epi(self, g):
        part, k, m = self.tiles[g]
        d = CACC + 4 * (g % NSL)
        p = CACC + 4 * ((g - 1) % NSL)
        dp = "wave_shr:1 row_mask:0xf bank_mask:0xf bound_ctrl:0"
        it = []
        for j, dst in ((3, d + 2), (2, d + 1), (1, CY + g)):
            it.append(f"v_add_f32_dpp v{dst}, v{d+j}, v{d+j-1} {dp}")
            if k:
                it.append(f"v_mov_b32_dpp v{d+j}, v{p+j} wave_shl:1 row_mask:0xf bank_mask:0xf")
        if g in (15, 23):
            va, mk = (vCRW, '0xffff0000') if g == 15 else (vCRW2, '0xff000000')
            it.append((f"s_mov_b32 exec_lo, 0\ns_mov_b32 exec_hi, {mk}\nds_write_b128 v{va}, {vr(d,4)}\ns_mov_b64 exec, -1", f'carw{part}'))
        return it

    def stage(self, g):
        it = []
        for t in (g, g + 1):
            j = t % 4
            it.append(f"v_mov_b32 v{CH+t//4}, v{CY+t}" if j == 0 else
                      f"v_mov_b32_dpp v{CH+t//4}, v{CY+t} row_shr:{4*j} row_mask:0x1 bank_mask:{hex(1 << j)}")
        return it + [f"v_cvt_pk_bf16_f32 v{CY+g}, v{CY+g}, v{CY+g+1}",
                     f"ds_write_b16 v{vZW}, v{CY+g} offset:{128*g}", f"ds_write_b16_d16_hi v{vZW}, v{CY+g} offset:{128*(g+1)}"]

    def conv_sched(self, nt, cpre, cap, sg0=0):
        mf, first = [], []
        for g, (part, k, m) in enumerate(self.tiles[:nt]):
            d = vr(CACC + 4 * (g % NSL), 4)
            first.append(len(mf))
            mf += [f"v_mfma_f32_16x16x32_bf16 {d}, {self.fa(part,c)}, {self.fb(part,m-c)}, {'0' if c == 0 else d}"
                   for c in range(m + 1)]
        first += [len(mf)] * 8
        S = Sched(mf, cap)
        LEAD = self.cfg.get('lead', 7)
        for g in range(1, nt):
            S.reserve(first[g] - 1)
        for c in range(cpre, 16):
            S.add('rd', self.c_read(1, c), 0, max(first[c] - LEAD, 0))
        if nt > 16 and self.role == 'A':
            r0 = self.cfg.get('r2A', 60)
            for c in range(16):
                S.add('rd2', self.c_read(2, c), r0, min(first[16 + c // 2] - LEAD, r0 + 12 + 7 * c))
            S.add('dp', self.dpatch(2), r0 + 20, first[16] - 2)
        elif nt > 16:
            for c in range(16):
                dl = max(first[16 + c // 2] - LEAD, first[15] + c + 1) if c else first[15] + 4
                S.add('rd', self.c_read(2, c), first[15] + c + 1, dl)
            S.add('dp', self.dpatch(2), first[15] + 8, first[16] - 2)
        self.sgrel = {}
        for g in range(nt - 1):
            dl = min(first[g + NSL - 1] - 1, first[g + 1] + (self.cfg.get('epl', 24) if g < 12 else 8))
            S.add('ep', self.tile_epi(g), first[g + 1] + 2, dl)
            if g & 1:
                self.sgrel[g - 1] = max(dl + 1, sg0)
        self.first = first
        return S

    def z_fix(self, part):
        qs = (0, 2) if part == 1 else (4,)
        va, st = (vCRR, 32) if part == 1 else (vCRR2, 64)
        it = [f"ds_read2_b32 {vr(CR+q,2)}, v{va} offset0:{1+st*(q % 4)} offset1:{1+st*(q % 4 + 1)}" for q in qs]
        for q in qs:
            it += [f"v_add_f32 v{CH+q}, v{CH+q}, v{CR+q}", f"v_add_f32 v{CH+q+1}, v{CH+q+1}, v{CR+q+1}",
                   f"v_cvt_pk_bf16_f32 v{CH+q}, v{CH+q}, v{CH+q+1}",
                   f"s_mov_b64 exec, 0x7777\nds_write_b16 v{vZF}, v{CH+q} offset:{512*q}\nds_write_b16_d16_hi v{vZF}, v{CH+q} offset:{512*(q+1)}\ns_mov_b64 exec, -1",
                   f"ds_read_b128 {vr(ZO+2*q,4)}, v{vZR} offset:{512*q}"]
        if part == 1:
            st = [(f"buffer_store_dwordx4 {vr(ZO,4)}, v{vZS}, {srd(S_WS)}, 0 offen sc1", 'zst1'),
                  (f"buffer_store_dwordx4 {vr(ZO+4,4)}, v{vZS}, {srd(S_WS)}, 0 offen offset:2048 sc1", 'zst1')]
        else:
            st = [(f"buffer_store_dwordx4 {vr(ZO+8,4)}, v{vZS2}, {srd(S_WS)}, 0 offen sc1", 'zst2')]
        return it, st

    def conv_run(self, S, nt, early, flag1=None, mid=((), (), ())):
        a = self.a
        for g in range(0, nt - 2, 2):
            S.add('sg', self.stage(g), self.sgrel[g], None)
            if early and g == 14:
                f1, s1 = self.z_fix(1)
                p = self.cfg.get('pE1', 146)
                S.th['sg'][-1][2] = p - 1
                S.add('sg', [('wait', 'carw1'), "s_barrier"], p, p + 1)
                S.add('sg', f1[:2], p + 1, p + 3)
                e1, e2 = self.cfg.get('e12', [6, 20])
                S.add('sg', f1[2:], p + e1, p + e1 + 10)
                S.add('sg', s1, p + e2, p + e2 + 2)
        f1in = early and self.cfg.get('f1in', 1)
        its = S.items(keep=('sg',))
        wi = self.cfg.get('wi' + self.role, 0)
        if wi:
            keep, n = [], 0
            for x in its:
                t = txt_of(x)
                if t.startswith('v_mfma'):
                    n += 1
                drop = n > wi and (t.startswith(('v_mfma', 'v_add_f32_dpp', 'v_mov_b32_dpp')) or t.startswith('ds_read_b64_tr_b16 v'))
                if not drop:
                    keep.append(x)
            its = keep
        a.run(its)
        self.info['conv'] = (S.over, S.under, len(S.left.get('sg', [])))
        a.run([self.stamp('conv')])
        if f1in:
            a.run([('wait', 'zst1'), flag1])
        a.run(mid[0])
        a.run(merge(S.left.get('sg', []) or ["s_nop 0"], self.tile_epi(nt - 1)))
        a.run(self.stage(nt - 2))
        a.run(mid[1])
        a.wait('carw2' if nt > 16 else 'carw1')
        a("s_barrier")
        parts = [2] if early else ([1, 2] if nt > 16 else [1])
        fs = [self.z_fix(p) for p in parts]
        if early and not f1in:
            a.run(fs[0][0][:1] + [('wait', 'zst1'), flag1] + fs[0][0][1:])
        else:
            a.run([x for f in fs for x in f[0]])
        a.run(mid[2])
        a.run([x for f in fs for x in f[1]])
        a.run([self.stamp('z_st')])

    def finish(self):
        a = self.a
        a.run([self.stamp('end')])
        amp = self.cfg.get('amp')
        if amp and amp[0] == self.role:
            if self.role == 'A':
                a(f"s_cmp_ge_u32 s{sID}, 30")
                a("s_cbranch_scc1 L_end")
            a("s_memrealtime s[100:101]")
            a("s_sub_u32 s98, s98, s96")
            a("s_mul_i32 s98, s98, 20")
            a("s_min_u32 s98, s98, 200000")
            a("s_add_u32 s98, s98, s100")
            a.label("L_amp")
            a("s_memrealtime s[100:101]")
            a("s_sub_u32 s100, s100, s98")
            a("s_cmp_lt_i32 s100, 0")
            a("s_cbranch_scc1 L_amp")
        if self.stamps:
            if not self.cfg.get('nodrain'):
                a.wait_all()
            a("s_memrealtime s[98:99]")
            a(f"v_writelane_b32 v255, s96, 30")
            a(f"v_writelane_b32 v255, s98, 31")
            for k in range(self.npoll):
                a(f"v_readlane_b32 s{sT0}, v254, {k}")
                a(f"v_writelane_b32 v255, s{sT0}, {24+k}")
            a(f"s_lshl2_add_u32 s{sT0}, s2, s{sW}")
            a(f"s_lshl_b32 s{sT0}, s{sT0}, 8")
            a(f"s_add_u32 s{sT0}, s{sT0}, {WS_DBG}")
            a(f"v_lshlrev_b32 v{vT}, 2, v0")
            a(f"buffer_store_dword v255, v{vT}, {srd(S_WS)}, s{sT0} offen")


KERNARG = {f"s{i}" for i in range(36, 68)}


def prog_A(cfg):
    P = Prog('A', cfg)
    a, stamp = P.a, P.stamp
    a.smem_pending = set(KERNARG) | {'s96', 's97'}
    FS1, FSU, FSZ = cfg.get('fs1', 32), cfg.get('fsu', 64), cfg.get('fsz', 32)
    NB, GR = cfg.get('nb', 14), cfg.get('grp', 2)
    sDG, sFT = sA, sB
    KW, HW = cfg.get('kw', 1), cfg.get('hw', 1)
    NC = 3 if cfg.get('third', 'A') == 'A' else 2
    NT = 8*NC
    if cfg.get('cpf', 1) and cfg.get('lay', 'C') != 'C':
        a.run(P.code_prefetch("L_Amain", "L_end"))
    a(f"s_mul_i32 s{sT0}, s{sID}, 52")
    a(f"s_lshr_b32 s{sT0}, s{sT0}, 8")
    a(f"s_mul_i32 s{sT1}, s{sT0}, 5")
    a(f"s_sub_u32 s{sDG}, s{sID}, s{sT1}")
    a(f"s_min_u32 s{sT0}, s{sT0}, 5")
    a(f"s_mul_i32 s{sFT}, s{sXQ}, 6")
    a(f"s_add_u32 s{sFT}, s{sFT}, s{sT0}")
    a(f"s_lshl4_add_u32 s{sT1}, s{sDG}, s{sW}")
    a(f"s_mul_i32 s{sT1}, s{sT1}, 205")
    a(f"s_lshr_b32 s{sT1}, s{sT1}, 10")
    sOWN = 38
    if cfg.get('rkA', 0):
        a(f"s_lshr_b32 s{sCNT}, s{sT0}, 1")
        a(f"s_mul_i32 s{sCNT}, s{sCNT}, {cfg.get('rkA', 0)}")
        a(f"s_add_u32 s{sT1}, s{sT1}, s{sCNT}")
        a(f"s_and_b32 s{sT1}, s{sT1}, 15")
    a(f"s_lshl_b32 s{TK}, s{sT1}, 10")
    a(f"s_add_u32 s{sT1}, s{TK}, 1024")
    a(f"s_and_b32 s{TK+1}, s{sT1}, 0x3c00")
    a(f"s_lshl_b32 s{sRING}, s{sW}, 12")
    a(f"s_mul_i32 s{sT0}, s{sW}, {512*3072}")
    a(f"s_lshl_b32 s{sT1}, s{sFT}, 7")
    a(f"s_add_u32 s{sT0}, s{sT0}, s{sT1}")
    a.run(P.weight_src(3072, sT0))
    a(f"s_mov_b32 s{S_W+2}, 6291456")
    a(f"s_mov_b32 s{S_W+3}, 0x20000")
    P.split0 = len(a.out)
    a(f"s_cmp_ge_u32 s{sID}, 30")
    a(f"s_cselect_b32 s{sSP}, {OOB}, 0")
    a(f"s_mov_b64 {sp(S_W)}, {sp(50)}")
    a("s_cbranch_scc1 L_Amain")
    a.run(P.w_step())
    a.run([stamp('start')])
    a.run(P.w_step())
    a("s_branch L_Amain")
    P.split = len(a.out)
    a.label("L_Amain")
    if cfg.get('lay', 'C') != 'C':
        a.run(P.lanes())
    if cfg.get('hlpA', 1):
        a(f"s_cmp_lt_u32 s{sID}, 30")
        a("s_cbranch_scc1 L_Anh")
        a.begin_cond('hlp')
        a(f"s_lshl1_add_u32 s{sT0}, s{sXQ}, 3")
        a(f"s_and_b32 s{sT0}, s{sT0}, 7")
        a(f"s_min_u32 s{sT0}, s{sT0}, 5")
        a(f"s_lshr_b32 s{sCNT}, s{sT0}, 1")
        a(f"s_mul_i32 s{sCNT}, s{sCNT}, {cfg.get('rkA', 0)}")
        a(f"s_add_u32 s{sCNT}, s{sCNT}, 15")
        a(f"s_mul_i32 s{sT1}, s{sXQ}, 6")
        a(f"s_add_u32 s{sT0}, s{sT0}, s{sT1}")
        a(f"s_lshl_b32 s{sT0}, s{sT0}, 7")
        a(f"s_mul_i32 s{sT1}, s{sW}, {512*3072}")
        a(f"s_add_u32 s{sU0}, s{sT0}, s{sT1}")
        for i in range(2):
            if i == 0:
                a(f"v_lshrrev_b32 v{vT}, 5, v0")
                a(f"v_lshl_add_u32 v{vT}, s{sDG}, 1, v{vT}")
                a(f"v_and_b32 v{vT2}, 31, v0")
            else:
                a(f"v_mov_b32 v{vT}, 4")
                a(f"v_lshl_add_u32 v{vT2}, s{sDG}, 4, v{vI}")
            a(f"v_add_u32 v{vT}, 1, v{vT}")
            a(f"v_lshl_add_u32 v{vT}, v{vT}, 4, s{sW}")
            a(f"v_mul_u32_u24 v{vT}, 205, v{vT}")
            a(f"v_lshrrev_b32 v{vT}, 10, v{vT}")
            a(f"v_add_u32 v{vT}, s{sCNT}, v{vT}")
            a(f"v_and_b32 v{vT}, 15, v{vT}")
            a(f"v_lshl_add_u32 v{vT}, v{vT}, 5, v{vT2}")
            a(f"v_mul_u32_u24 v{vT}, 3072, v{vT}")
            if i:
                a("s_mov_b64 exec, 0xffff")
            a(f"buffer_load_dword v{250+i}, v{vT}, {srd(S_W)}, s{sU0} offen")
        a("s_mov_b64 exec, -1")
        a.end_cond()
        a.label("L_Anh")
    HA = cfg.get('hlpA2', 0)
    if HA:
        a(f"s_lshl1_add_u32 s{sT0}, s{sXQ}, 3")
        a(f"s_and_b32 s{sT0}, s{sT0}, 7")
        a(f"s_mul_i32 s{sT1}, s{sXQ}, 6")
        a(f"s_add_u32 s{sU0}, s{sT0}, s{sT1}")
        a(f"s_sub_u32 s{sT1}, s{sFT}, s{sU0}")
        a(f"s_add_u32 s{sT1}, s{sT1}, 5")
        a(f"s_cmp_ge_u32 s{sT1}, 6")
        a(f"s_cselect_b32 s{sCNT}, 6, 0")
        a(f"s_sub_u32 s{sT1}, s{sT1}, s{sCNT}")
        a(f"s_lshl_b32 s{sU0}, s{sU0}, 7")
        a(f"s_cmp_ge_u32 s{sT1}, 5")
        a(f"s_cselect_b32 s{sU0}, {OOB}, s{sU0}")
        a(f"s_cmp_ge_u32 s{sT0}, 6")
        a(f"s_cselect_b32 s{sU0}, {OOB}, s{sU0}")
        a(f"s_or_b32 s{sU0}, s{sU0}, s{sSP}")
        a(f"s_lshr_b32 s{sT0}, s{sT0}, 1")
        a(f"s_mul_i32 s{sT0}, s{sT0}, {cfg.get('rkA', 0)}")
        a(f"s_add_u32 s{sCNT}, s{sDG}, 1")
        a(f"s_lshl4_add_u32 s{sCNT}, s{sCNT}, s{sW}")
        a(f"s_mul_i32 s{sCNT}, s{sCNT}, 205")
        a(f"s_lshr_b32 s{sCNT}, s{sCNT}, 10")
        a(f"s_add_u32 s{sT0}, s{sT0}, s{sCNT}")
        a(f"s_add_u32 s{sT0}, s{sT0}, 14")
        a(f"s_and_b32 s{sT0}, s{sT0}, 15")
        a(f"s_lshl4_add_u32 s{sT0}, s{sW}, s{sT0}")
        a(f"s_lshl_b32 s{sT0}, s{sT0}, 5")
        a(f"s_mul_i32 s{sT1}, s{sT1}, {HA}")
        a(f"s_add_u32 s{sT0}, s{sT0}, s{sT1}")
        a(f"s_add_u32 s{sT0}, s{sT0}, {32 - 5*HA}")
        a(f"v_add_u32 v{vT}, s{sT0}, v0")
        a(f"v_mul_u32_u24 v{vT}, 3072, v{vT}")
        a(f"s_mov_b64 exec, {hex((1 << HA) - 1)}")
        a(f"buffer_load_dword v249, v{vT}, {srd(S_W)}, s{sU0} offen")
        a("s_mov_b64 exec, -1")
    for (s, n) in ((S_WS, WS_SIZE), (S_SSM, 2621440)):
        a(f"s_mov_b32 s{s+2}, {n}")
        a(f"s_mov_b32 s{s+3}, 0x20000")
    for j in range(2, 16):
        a(f"s_add_u32 s{sT1}, s{TK+j-1}, 1024")
        a(f"s_and_b32 s{TK+j}, s{sT1}, 0x3c00")
    a(f"s_add_u32 s{S_WS}, s66, {cfg.get('wso', 0) << 20}")
    a(f"s_addc_u32 s{S_WS+1}, s67, 0")
    a(f"s_mov_b64 {sp(S_SSM)}, {sp(44)}")
    a.run(P.weight_dst(False))
    a.run(P.zflag_addr(sFJ, 128))
    a.run(P.conv_setup(NC))
    vHL, vRW, vRR, vUS, vEP, vX0 = 10, 44, 47, 48, 49, 50
    BL = 54
    g1set = [f"s_mul_i32 s{sOWN}, s{sFT}, {cfg.get('roA', 0)}", f"s_add_u32 s{sOWN}, s{sOWN}, s{sW}", f"s_and_b32 s{sOWN}, s{sOWN}, 3",
             f"s_lshl_b32 s{sCNT}, s{sDG}, 18", f"s_lshl_b32 s{sT1}, s{sW}, 14", f"s_add_u32 s{sCNT}, s{sCNT}, s{sT1}",
             f"s_add_u32 s{sCNT}, s{sCNT}, s{sSP}"]
    for i in range(4):
        g1set += [f"s_add_u32 s{sT0}, s{sOWN}, {i+1}",
                  f"s_and_b32 s{sT0}, s{sT0}, 3",
                  f"s_mul_i32 s{sT1}, s{sT0}, 12288",
                  f"s_add_u32 s{sT1}, s{sT1}, {L_RED + (i*4096 if i < 3 else 0)}",
                  f"v_add_u32 v{vRW+i}, s{sT1}, v1",
                  f"s_lshl_b32 s{sT0}, s{sT0}, 16",
                  f"s_add_u32 s{sT0}, s{sT0}, s{sCNT}",
                  f"v_add_u32 v{vHL+i}, s{sT0}, v1",
                  f"v_add_u32 v{vHL+4+i}, {20*65536}, v{vHL+i}"]
    g1set += [f"v_lshl_add_u32 v{vP0}, s{sW}, 5, v0",
              f"v_mul_u32_u24 v{vP0}, {FS1}, v{vP0}",
              f"v_add_u32 v{vP0}, {WS_F1}, v{vP0}",
              f"s_lshl_b32 s{sT0}, s{sFT}, 7",
              f"v_lshl_add_u32 v{vX0}, v{vH}, 3, s{sT0}",
              f"s_lshl2_add_u32 s{sT0}, s{sDG}, s{sOWN}",
              f"s_mul_i32 s{sFI}, s{sT0}, 24",
              f"s_add_u32 s{sFI}, s{sFI}, s{sFT}",
              f"s_mul_i32 s{sFI}, s{sFI}, {FSU}",
              f"s_add_u32 s{sFI}, s{sFI}, {WS_FU}",
              f"s_add_u32 s{sFI}, s{sFI}, s{sSP}",
              f"s_mul_i32 s{sT0}, s{sT0}, 48",
              f"s_lshl1_add_u32 s{sT0}, s{sFT}, s{sT0}",
              f"s_lshl_b32 s{sT0}, s{sT0}, 10",
              f"s_add_u32 s{sT0}, s{sT0}, {WS_U}",
              f"s_add_u32 s{sT0}, s{sT0}, s{sSP}",
              f"v_add_u32 v{vUS}, s{sT0}, v1",
              f"s_mov_b32 s{sU2}, 0xbdd2d3e8",
              f"s_mov_b32 s{sU3}, {20*48*1024}",
              f"v_mov_b32 v52, 0xc0135761"]
    a.run(g1set)
    a.run(P.conv_setup2(NC))
    a.run(P.epoch_load(vEP))
    for t in range(4):
        a(f"global_load_dwordx2 {vr(BL+2*t,2)}, v{vX0}, {sp(P_B1)} offset:{32*t}")
    a(f"s_cmp_ge_u32 s{sID}, 30")
    a("s_cbranch_scc1 L_Aspare")
    a.run(P.w_step())
    a.run(P.w_step())
    BI, RD, PD4 = 112, 144, 248
    bun = []
    for t in range(8):
        bun += [f"v_lshlrev_b32 v{BI+2*t}, 16, v{BL+t}", f"v_and_b32 v{BI+2*t+1}, 0xffff0000, v{BL+t}"]
    PA = cfg.get('pollA', 14)
    while P.nxt < 16:
        if P.nxt == 8:
            a.run(P.set_tag(vEP))
            a.run(bun)
        a.run([stamp(f'w{P.nxt}')])
        it = P.w_step()
        if P.nxt - 1 == PA:
            it.insert(9, P.poll_issue(vP0, 32, 1, PD4))
        a.run(it)
    while P.drn < PA:
        a.run(P.w_step())
    a.run([P.poll_check('f1', vP0, 32, 1, PD4), stamp('f1_ok')])
    BUFS = ([64 + 4*i for i in range(8)] + [128 + 4*i for i in range(4)] + [228 + 4*i for i in range(5)] + [208 + 4*i for i in range(3)])[:NB]

    def h_load(n):
        i, j = divmod(n, 16)
        return f"buffer_load_dwordx4 {vr(BUFS[n % NB],4)}, v{vHL+i}, {srd(S_WS)}, s{TK+j} offen {cfg.get('apol', 'sc1')}"
    hn = 0
    HE = cfg.get('hearly', 8)
    left = 16 - P.drn
    while P.drn < 16:
        for _ in range(HE // left):
            a(h_load(hn)); hn += 1
        a.run(P.w_step())
    ACC = (96, 192)
    Z, G0, UO = ACC[1], 160, 220
    for r in range(2):
        mf, pos = [], {}
        for q in range(64 // GR):
            for t in range(4):
                for n in range(q * GR, (q + 1) * GR):
                    i, j = divmod(n, 16)
                    d = vr(ACC[i & 1] + 4 * t, 4)
                    pos.setdefault(n, len(mf))
                    c = d if j else ('0' if i < 3 else vr(BI + 4 * t, 4))
                    mf.append(f"v_mfma_f32_16x16x32_bf16 {d}, {ar(16*j+4*t,4)}, {vr(BUFS[(64*r + n) % NB],4)}, {c}")
        S = Sched(mf)
        for n in range(64):
            S.reserve(pos[n] - 1)
        k = 0
        while hn < 128:
            n = hn - 64 * r
            free = 4 * GR * ((n - NB) // GR + 1) if n >= NB else 0
            p = max(free, 4 * (n - NB + GR) + 1, 2 * k)
            if p > 255:
                break
            S.add('h', [h_load(hn)], p, p)
            hn += 1
            k += 1
        S.add('st', [stamp(f'g1first{r}')], 0, 0)
        lasth = p if r else 0
        if r == 0 and cfg.get('h2', 1):
            p2 = cfg.get('pH2', 40)
            S.add('f2', [f"v_lshl_add_u32 v{vP0}, s{sW}, 5, v0", f"v_lshlrev_b32 v{vP0}, 4, v{vP0}", f"v_add_u32 v{vP0}, {WS_F1 + 0x4000}, v{vP0}",
                         P.poll_issue(vP0, 32, 1, PD4)], p2 - 4, p2)
            S.add('f2', [P.poll_check('f2', vP0, 32, 1, PD4)], 150, 152)
            assert 4 * (64 - NB + GR) + 1 > 153
        for i in range(3):
            S.add('red', [(f"ds_write_b128 v{vRW+i}, {vr(ACC[i & 1]+4*t,4)} offset:{t*1024}", f'redw{r}{i}') for t in range(4)],
                  64 * (i + 1) + 1, 64 * (i + 1) + 13, pace=4 if i < 2 else 3)
        pR = 192 + cfg.get('pR', 15)
        S.add('red', [('wait', f'redw{r}2'), "s_barrier"], pR, pR + 1)
        S.add('red', [f"ds_read_b128 {vr(RD+4*k,4)}, v{vRR} offset:{k*1024}" for k in range(12)], pR + 2, pR + 16)
        S.add('add', [f"v_add_f32 v{RD+k}, v{RD+k}, v{RD+16+k}" for k in range(16)] +
                     [f"v_add_f32 v{RD+k}, v{RD+k}, v{RD+32+k}" for k in range(16)], pR + 17, 255)
        if r == 1:
            S.add('set', [f"v_subrev_u32 v{vRW+i}, {L_RED}, v{vRW+i}" for i in range(4)], 2, 30)
            pD = cfg.get('pD0', 40)
            S.add('fl', [('wait', 'ust0'), stamp('barD0'), P.flag(sFI), f"s_add_u32 s{sFI}, s{sFI}, {20*24*FSU}"], pD, pD + 1)
            S.add('fl', [P.poll_check('fk', vP1, 16, KW, PD4), stamp('fk_ok')], 150, 152)
            for i, x in enumerate(P.ssm_loads(NC) + P.x_loads(NC)):
                S.add('h', [x], lasth + 4 * (i + 1), lasth + 4 * (i + 1))
        a.run(S.items())
        P.info[f'g1{r}'] = (S.over, S.under)
        a.run([stamp(f'g1mfma{r}')])
        side = []
        if r == 0:
            while hn < 64 + NB:
                side.append(h_load(hn)); hn += 1
            a.run(side)
        for t in range(8):
            a(f"v_pk_add_f32 {vr(Z+2*t,2)}, {vr(Z+2*t,2)}, {vr(RD+2*t,2)}")
        for t in range(8):
            a(f"v_pk_mul_f32 {vr(G0+2*t,2)}, {vr(Z+2*t,2)}, {vr(Z+2*t,2)}")
        for t in range(8):
            a(f"v_pk_fma_f32 {vr(G0+2*t,2)}, {vr(G0+2*t,2)}, {sp(sU2)}, v[52:53] op_sel_hi:[1,0,0]")
        for t in range(8):
            a(f"v_pk_mul_f32 {vr(G0+2*t,2)}, {vr(G0+2*t,2)}, {vr(Z+2*t,2)}")
        for t in range(16):
            a(f"v_exp_f32 v{G0+t}, v{G0+t}")
        for t in range(8):
            a(f"v_pk_add_f32 {vr(G0+2*t,2)}, {vr(G0+2*t,2)}, 1.0 op_sel_hi:[1,0]")
        for t in range(16):
            a(f"v_rcp_f32 v{G0+t}, v{G0+t}")
        for t in range(8):
            a(f"v_pk_mul_f32 {vr(G0+2*t,2)}, {vr(G0+2*t,2)}, {vr(Z+2*t,2)}")
        for t in range(8):
            a(f"v_cvt_pk_bf16_f32 v{UO+t}, v{G0+2*t}, v{G0+2*t+1}")
        for half in range(2):
            a(f"buffer_store_dwordx4 {vr(UO+4*half,4)}, v{vUS}, {srd(S_WS)}, {'0' if r == 0 else f's{sU3}'} offen offset:{1024*half} sc1", tok=f'ust{r}')
        if r == 0:
            a(P.poll_issue(vP1, 16, KW, PD4))
        a.run([stamp(f'ust{r}')])
    a.label("L_Ajoin")
    a.wait('xd')
    a("s_barrier")
    CPA = cfg.get('cpreA', 4)
    a.run(P.conv_pre(CPA))
    S = P.conv_sched(NT, CPA, 2)
    pD = cfg.get('pD1', 30)
    S.add('fl', [('wait', 'ust1'), stamp('barD1'), P.flag(sFI)], pD, pD + 1)
    Z2 = NC == 3 and cfg.get('z2', 1)
    P.conv_run(S, NT, Z2, P.flag(sFJ))
    if Z2:
        a(f"s_add_u32 s{sFJ}, s{sJ}, 128")
        a(f"s_mul_i32 s{sFJ}, s{sFJ}, {FSZ}")
        a(f"s_lshl2_add_u32 s{sFJ}, s{sW}, s{sFJ}")
        a(f"s_add_u32 s{sFJ}, s{sFJ}, {WS_FZ + 16}")
    a.wait('zst2' if NC == 3 else 'zst1')
    a(P.flag(sFJ))
    if cfg.get('diagclean'):
        a(f"s_cmp_ge_u32 s{sID}, 20")
        a("s_cbranch_scc1 L_ncl")
        a(f"s_mul_i32 s{sT0}, s{sXQ}, 20")
        a(f"s_add_u32 s{sT0}, s{sT0}, s{sID}")
        a(f"s_lshl2_add_u32 s{sT0}, s{sT0}, s{sW}")
        a(f"s_lshl_b32 s{sT0}, s{sT0}, 13")
        a(f"v_lshlrev_b32 v{vT}, 7, v0")
        a(f"buffer_store_dword v0, v{vT}, {srd(S_WS)}, s{sT0} offen sc1")
        a(f"buffer_store_dword v0, v{vT}, {srd(S_WS)}, s{sT0} offen offset:64 sc1")
        a.label("L_ncl")
    a(f"s_cmp_lg_u32 s{sJ}, 31")
    a("s_cbranch_scc1 L_Adone")
    st, P.stamps = P.stamps, False
    a(f"v_lshl_add_u32 v{vP0}, s{sW}, 5, v0")
    a(f"v_mul_u32_u24 v{vP0}, {cfg.get('fsk', 16)}, v{vP0}")
    a(f"v_add_u32 v{vP0}, {WS_FK}, v{vP0}")
    a(P.poll_issue(vP0, 32, KW, PD4))
    a.run([P.poll_check('e0', vP0, 32, KW, PD4)])
    for k in range(2):
        a(f"s_mul_i32 s{sT0}, s{sW}, 120")
        a(f"s_add_u32 s{sT0}, s{sT0}, {60*k}")
        a(f"v_add_u32 v{vP0}, s{sT0}, v0")
        a(f"v_mul_u32_u24 v{vP0}, {FSU}, v{vP0}")
        a(f"v_add_u32 v{vP0}, {WS_FU}, v{vP0}")
        a(P.poll_issue(vP0, 60))
        a.run([P.poll_check(f'e{k+1}', vP0, 60)])
    a(f"v_lshl_add_u32 v{vP0}, s{sW}, 5, v0")
    a(f"v_mul_u32_u24 v{vP0}, {FSZ}, v{vP0}")
    a(f"v_add_u32 v{vP0}, {WS_FZ + 158*FSZ}, v{vP0}")
    a(P.poll_issue(vP0, 2, 4, PD4))
    a.run([P.poll_check('e3', vP0, 2, 4, PD4)])
    P.stamps = st
    a("s_barrier")
    a(f"s_mov_b32 s{sT0}, {WS_EP}")
    a(P.flag(sT0))
    a.label("L_Adone")
    P.finish()
    a("s_endpgm")
    b = Asm()
    P.a, st, P.stamps = b, P.stamps, False
    b.label("L_Aspare")
    b(f"s_mul_i32 s{sT0}, s{sXQ}, 160")
    b(f"s_mul_i32 s{sT1}, s{sDG}, {16*NC}")
    b(f"s_add_u32 s{sT0}, s{sT0}, s{sT1}")
    b(f"s_add_u32 s{sT0}, s{sT0}, 64")
    b(f"v_lshrrev_b32 v{vT}, 3, v0")
    b(f"v_add_lshl_u32 v{vT}, s{sT0}, v{vT}, 12")
    b(f"v_and_b32 v{vT2}, 7, v0")
    b(f"v_lshl_add_u32 v{vT2}, s{sW}, 3, v{vT2}")
    b(f"v_lshl_add_u32 v{vT}, v{vT2}, 7, v{vT}")
    b("s_waitcnt vmcnt(0)")
    b.run(P.set_tag(vEP))
    for i in range(2 * NC if cfg.get('spf', 1) else 0):
        b(f"s_mov_b32 s{sT0}, {i*8*4096}")
        b(f"buffer_load_dword v{64+i}, v{vT}, {srd(S_SSM)}, s{sT0} offen")
    b.run(P.ssm_loads(NC))
    b(P.poll_issue(vP1, 16, KW, PD4))
    b.run([P.poll_check('fs', vP1, 16, KW, PD4)])
    for i in range(2 * NC if cfg.get('xpf', 0) else 0):
        b(f"s_mov_b32 s{sT0}, {WS_KV + i*8*4096}")
        b(f"buffer_load_dword v{vPD}, v{vT}, {srd(S_WS)}, s{sT0} offen sc1") if False else b.raw(f"    buffer_load_dword v{vPD}, v{vT}, {srd(S_WS)}, s{sT0} offen sc1")
    b.run(P.x_loads(NC))
    b("s_waitcnt vmcnt(0) lgkmcnt(0)")
    b("s_branch L_Ajoin")
    a.out += b.out
    P.a, P.stamps = a, st
    return P


def prog_B(cfg):
    P = Prog('B', cfg)
    a, stamp = P.a, P.stamp
    a.smem_pending = set(KERNARG) | {'s96', 's97'}
    FS1, FSU, FSZ, FSK = cfg.get('fs1', 32), cfg.get('fsu', 64), cfg.get('fsz', 32), cfg.get('fsk', 16)
    sDT, sST = sA, sB
    KW, HW = cfg.get('kw', 1), cfg.get('hw', 1)
    NC = 3 if cfg.get('third', 'A') == 'B' else 2
    NT = 8*NC
    NMF = 136 if NC == 2 else 208
    a.label("L_B")
    if cfg.get('cpf', 1) and cfg.get('lay', 'C') != 'C':
        a.run(P.code_prefetch("L_pcB", "L_Amain"))
    a.run(P.lanes())
    XR, GR = 160, 180
    vQ, vG, vEP = 200, 201, 202
    a(f"s_lshr_b32 s{sT0}, s{sJ}, 1")
    a(f"s_lshl_b32 s{sT0}, s{sT0}, 5")
    a(f"s_and_b32 s{sT1}, s{sJ}, 1")
    a(f"s_lshl3_add_u32 s{sCNT}, s{sT1}, s{sT0}")
    a(f"s_lshl2_add_u32 s{sCNT}, s{sT2}, s{sCNT}")
    a(f"s_lshl4_add_u32 s{sCNT}, s{sT3}, s{sCNT}")
    a(f"v_add_u32 v{vQ}, s{sCNT}, v{vH}")
    a(f"v_mul_u32_u24 v{vQ}, 1280, v{vQ}")
    a(f"v_lshlrev_b32 v{vG}, 4, v{vI}")
    a(f"v_add_u32 v{vQ}, v{vQ}, v{vG}")
    def kvset():
        a(f"s_lshl3_add_u32 s{sU0}, s{sW}, s{sT0}")
        a(f"s_mul_i32 s{sU0}, s{sU0}, 1280")
        a(f"s_mul_i32 s{sU1}, s{sT1}, 640")
        a(f"s_add_u32 s{sU0}, s{sU0}, s{sU1}")
        a(f"v_add_u32 v{vKV}, s{sU0}, v1")
        a(f"s_mul_i32 s{sU0}, s{sW}, {(-7*1280) & 0xffffffff}")
        a(f"s_sub_u32 s{sU0}, s{sU0}, {4*1280}")
        a(f"v_add_u32 v{vKH}, s{sU0}, v{vKV}")
        a(f"s_mul_i32 s{sKL}, s{sW}, {8*PK + 32}")
        for (s, n) in ((S_K, 2621440), (S_V, 2621440), (S_WS, WS_SIZE), (S_W, 6291456), (S_SSM, 2621440)):
            a(f"s_mov_b32 s{s+2}, {n}")
            a(f"s_mov_b32 s{s+3}, 0x20000")
        a(f"s_lshl2_add_u32 s{sU0}, s{sT1}, s{sW}")
        a(f"s_mul_i32 s{sU0}, s{sU0}, 80")
        a(f"v_add_u32 v{vCH}, s{sU0}, v{vI}")
        a(f"v_lshlrev_b32 v{vS0}, 3, v{vCH}")
    vKV, vKH, vCH, vS0 = 60, 61, 62, 63
    sKL = sFI
    if not cfg.get('qfirst', 1):
        kvset()
    P.split0 = len(a.out)
    for i in range(5):
        a(f"global_load_dwordx4 {vr(XR+4*i,4)}, v{vQ}, {sp(P_Q)} offset:{256*i}")
    a.run([stamp('start')])
    if cfg.get('qfirst', 1):
        kvset()
    for (s, p) in ((S_K, 38), (S_V, 40), (S_W, 56), (S_SSM, 44)):
        a(f"s_mov_b64 {sp(s)}, {sp(p)}")
    a(f"s_add_u32 s{S_WS}, s66, {cfg.get('wso', 0) << 20}")
    a(f"s_addc_u32 s{S_WS+1}, s67, 0")
    vHS = 48
    a(f"s_lshl1_add_u32 s{sT0}, s{sJ}, s{sT3}")
    a(f"s_lshl_b32 s{sT0}, s{sT0}, 8")
    a(f"s_lshl_b32 s{sT1}, s{sT2}, 16")
    a(f"s_add_u32 s{sT0}, s{sT0}, s{sT1}")
    a(f"v_mul_u32_u24 v{vHS}, {5*65536}, v{vH}")
    a(f"v_lshl_add_u32 v{vHS}, v{vI}, 4, v{vHS}")
    a(f"v_add_u32 v{vHS}, s{sT0}, v{vHS}")
    a(f"s_mul_i32 s52, s{sT2}, {19*65536}")
    a(f"s_add_u32 s52, s52, {4*65536}")
    a(f"s_mov_b32 s53, {20*65536}")
    a(f"s_mov_b32 s64, {22*65536}")
    a(f"s_mov_b32 s81, {2*65536}")

    def claim():
        a(f"s_mov_b32 exec_lo, {cfg.get('clm', '0x01010101')}")
        a(f"s_mov_b32 exec_hi, {cfg.get('clm', '0x01010101')}")
        for so in ("0", "s81", "s52", "s53", "s64")[:cfg.get('ncl', 5)]:
            a(f"buffer_store_dword v0, v{vHS}, {srd(S_WS)}, {so} offen sc1", tok='claim')
        a("s_mov_b64 exec, -1")
    CL = cfg.get('claim', 0)
    if CL == 1:
        claim()
    a.run(P.epoch_load(vEP))

    def kv_dma(which, i):
        if which == 'h':
            return [f"s_mul_i32 s{sU0}, s{sW}, {PK}", f"s_add_u32 m0, s{sU0}, {L_KI}", "s_mov_b32 exec_hi, 0xff",
                    f"buffer_load_dwordx4 v{vKH}, {srd(S_K)}, 0 offen {cfg.get('kpol', '')} lds", "s_mov_b32 exec_hi, -1"]
        base = L_KI + (4 + i) * PK + (32 if i >= 4 else 0) if which == 'k' else L_VI + i * PK
        return [f"s_add_u32 m0, s{sKL}, {base}", f"s_mov_b32 s{sU0}, {i*1280}", "s_mov_b32 exec_hi, 0xff",
                (f"buffer_load_dwordx4 v{vKV}, {srd(S_K if which == 'k' else S_V)}, s{sU0} offen {cfg.get('kpol', '')} lds", 'kvdma'), "s_mov_b32 exec_hi, -1"]

    def kv_batch(lst):
        it = []
        for (wh, i) in lst:
            x = kv_dma(wh, i)
            if it:
                it.pop()
                x.remove("s_mov_b32 exec_hi, 0xff")
            it += x
        return it
    kvq = [('h', 0)] + [('k', i) for i in range(8)] + [('v', i) for i in range(8)]
    a(f"s_and_b32 s{sDT}, s{sID}, 3")
    a(f"s_lshr_b32 s{sT0}, s{sID}, 2")
    a(f"s_lshl3_add_u32 s{sST}, s{sXQ}, s{sT0}")
    vLW, vA1, vHS, vGS, vKVA, vKVS, vGV = 44, 46, 48, 49, 50, 51, 58
    a(f"v_lshl_add_u32 v{vT}, s{sW}, 2, v{vH}")
    a(f"s_lshl_b32 s{sT0}, s{sJ}, 4")
    a(f"v_add_lshl_u32 v{vGS}, s{sT0}, v{vT}, 2")
    a(f"v_add_u32 v{vGS}, {WS_G}, v{vGS}")
    a(f"v_mul_u32_u24 v{vT}, {PL}, v{vT}")
    a(f"v_add_u32 v{vT}, {L_LN}, v{vT}")
    a(f"v_add_u32 v{vLW}, v{vT}, v{vG}")
    a(f"v_mul_u32_u24 v{vT}, {PL}, v{vR}")
    a(f"v_mul_u32_u24 v{vT2}, 320, v{vH}")
    a(f"s_mul_i32 s{sT0}, s{sT3}, {8*PL}")
    a(f"s_lshl3_add_u32 s{sT0}, s{sT2}, s{sT0}")
    a(f"s_add_u32 s{sT0}, s{sT0}, {L_LN}")
    a(f"v_add3_u32 v{vT}, v{vT}, v{vT2}, s{sT0}")
    a(f"v_lshl_add_u32 v{vA1}, v{vC}, 4, v{vT}")
    a(f"v_mul_u32_u24 v{vT}, {8*PK + 32}, v{vH}")
    a(f"v_mul_u32_u24 v{vT2}, {PK}, v{vR}")
    a(f"s_mul_i32 s{sT0}, s{sW}, 160")
    a(f"s_add_u32 s{sT0}, s{sT0}, {L_KI}")
    a(f"v_add3_u32 v{vT}, v{vT}, v{vT2}, s{sT0}")
    a(f"v_lshl_add_u32 v{vKVA}, v{vC}, 3, v{vT}")
    a(f"v_lshlrev_b32 v{vKVS}, 12, v{vCH}")
    a(f"v_lshl_add_u32 v{vKVS}, v{vH}, 4, v{vKVS}")
    a(f"s_lshr_b32 s{sT0}, s{sJ}, 1")
    a(f"s_lshl_b32 s{sT1}, s{sT0}, 6")
    a(f"s_add_u32 s{sT1}, s{sT1}, {WS_KV}")
    a(f"v_add_u32 v{vKVS}, s{sT1}, v{vKVS}")
    a(f"s_and_b32 s{sT1}, s{sJ}, 1")
    a(f"s_lshl_b32 s{sT1}, s{sT1}, 6")
    a(f"s_add_u32 s{sFJ}, s{sT0}, s{sT1}")
    a(f"s_mul_i32 s{sFJ}, s{sFJ}, {FSK}")
    a(f"s_lshl2_add_u32 s{sFJ}, s{sW}, s{sFJ}")
    a(f"s_add_u32 s{sFJ}, s{sFJ}, {WS_FK}")
    a(f"s_mul_i32 s{sU3}, s{sJ}, {FS1}")
    a(f"s_add_u32 s{sU3}, s{sU3}, {WS_F1}")
    for k in range(1, 5):
        a(f"s_mov_b32 s{79+k}, {k*65536}")
    for i in range(5):
        a(f"global_load_dwordx4 {vr(GR+4*i,4)}, v{vG}, {sp(P_GW)} offset:{256*i}")
    nq = cfg.get('kvq0', 6)
    if nq:
        a.run(kv_batch(kvq[:nq])); kvq = kvq[nq:]
    if CL == 2:
        claim()
    if cfg.get('ptouch'):
        a(f"v_lshlrev_b32 v{vT}, {cfg['ptouch']}, v0")
        a(f"s_lshl_b32 s{sT0}, s{sJ}, 9")
        a(P.setexec(min(64, (5 << 20) >> cfg['ptouch'])) if (5 << 20) >> cfg['ptouch'] < 64 else "s_nop 0")
        a(f"buffer_load_dword v251, v{vT}, {srd(S_WS)}, s{sT0} offen")
        a("s_mov_b64 exec, -1")
    a.run([stamp('iss2')])

    S1, S2, vRS, vNM, XF = 64, 65, 66, 68, 72
    DP = ("quad_perm:[1,0,3,2]", "quad_perm:[2,3,0,1]", "row_half_mirror", "row_mirror")
    unp = []
    for i in range(20):
        unp += [f"v_lshlrev_b32 v{XF+2*i}, 16, v{XR+i}", f"v_and_b32 v{XF+2*i+1}, 0xffff0000, v{XR+i}"]
    ln = [f"s_mov_b32 s{sU2}, 0x3f803f80"]
    for i in range(20):
        c = lambda r: "0" if i == 0 else f"v{r}"
        ln += [f"v_dot2_f32_bf16 v{S1}, v{XR+i}, s{sU2}, {c(S1)}", f"v_dot2_f32_bf16 v{S2}, v{XR+i}, v{XR+i}, {c(S2)}"]
    inv = 0x3ACCCCCD
    red = []
    for m in DP:
        red += [f"v_add_f32_dpp v{x}, v{x}, v{x} {m} row_mask:0xf bank_mask:0xf" for x in (S1, S2)]
    red += [f"v_mul_f32 v{S1}, {hex(inv)}, v{S1}",
            f"v_mul_f32 v{S2}, {hex(inv)}, v{S2}",
            f"v_fma_f32 v{S2}, -v{S1}, v{S1}, v{S2}",
            f"v_max_f32 v{S2}, 0, v{S2}",
            f"v_add_f32 v{S2}, 0x3727c5ac, v{S2}",
            f"v_rsq_f32 v{vRS}, v{S2}",
            f"v_mul_f32_e64 v{vNM}, -v{S1}, v{vRS}"]
    ln += unp[:3] + merge(red, unp[3:])
    HP = 112
    for i in range(5):
        ln += [f"v_pk_fma_f32 {vr(XF+2*k,2)}, {vr(XF+2*k,2)}, {vr(vRS,2)}, {vr(vNM,2)} op_sel_hi:[1,0,0]" for k in range(4*i, 4*i+4)]
        ln += [f"v_cvt_pk_bf16_f32 v{HP+k}, v{XF+2*k}, v{XF+2*k+1}" for k in range(4*i, 4*i+4)]
        ln.append((f"ds_write_b128 v{vLW}, {vr(HP+4*i,4)} offset:{256*i}", 'lnw'))
    gate = [f"v_dot2_f32_bf16 v{vGV}, v{XR+i}, v{GR+i}, {'0' if i == 0 else f'v{vGV}'}" for i in range(20)]
    gate += [f"v_add_f32_dpp v{vGV}, v{vGV}, v{vGV} {m} row_mask:0xf bank_mask:0xf" for m in DP]
    gate += [f"v_mul_f32 v{vGV}, 0xbfb8aa3b, v{vGV}", f"v_exp_f32 v{vGV}, v{vGV}", f"v_add_f32 v{vGV}, 1.0, v{vGV}", f"v_rcp_f32 v{vGV}, v{vGV}",
             "s_mov_b32 exec_lo, 0x10001", "s_mov_b32 exec_hi, 0x10001",
             (f"buffer_store_dword v{vGV}, v{vGS}, {srd(S_WS)}, 0 offen sc1", 'hst2'), "s_mov_b64 exec, -1"]
    a.run(ln[:41])
    a.run([stamp('q_in')])
    nq = cfg.get('kvq1', 4)
    if nq:
        a.run(kv_batch(kvq[:nq])); kvq = kvq[nq:]
    a.run(ln[41:])
    a.wait('lnw')
    a("s_barrier")
    a.run([stamp('barL')])
    HB = 64
    H2 = cfg.get('h2', 1)
    for u, off in enumerate((0, 64, 256, 128, 192)):
        for e2 in range(2):
            a(f"ds_read_b64_tr_b16 {vr(HB+4*u+2*e2,2)}, v{vA1} offset:{off + e2*4*PL}")
    if CL:
        a.wait('claim')
    if cfg.get('dummyst') is not None:
        a(f"s_mov_b32 s{S_WS+2}, 0x4000000")
        a(f"v_add_u32 v{vT}, {cfg['dummyst']}, v{vHS}")
        for u, so in enumerate(("0", "s81", "s52", "s53", "s64")):
            a(f"buffer_store_dwordx4 {vr(HB+4*u,4)}, v{vT}, {srd(S_WS)}, {so} offen {cfg.get('dpol', 'sc1')}", tok='dum')
        a.wait('dum')
        a.run([stamp('dum')])
    for u, so in enumerate(("0", "s81", "s52", "s53", "s64")):
        a(f"buffer_store_dwordx4 {vr(HB+4*u,4)}, v{vHS}, {srd(S_WS)}, {so} offen sc1", tok='hst' if u < 3 or not H2 else None)
    a.run([stamp('h_iss')])
    a.run(gate)
    a.run(P.set_tag(vEP))
    vQO, vQO2, vGA, vX1, vQO1 = 36, 41, 253, 250, 15
    QR, vGG, vB2 = 44, 16, 17

    def bigset():
        a(f"s_bfe_u32 s{sT0}, s{sST}, 0x10001")
        a(f"s_mul_i32 s{sT0}, s{sT0}, {cfg.get('rkB', 0)}")
        a(f"s_add_u32 s{sT0}, s{sT0}, s{sDT}")
        a(f"s_and_b32 s{sT0}, s{sT0}, 3")
        a(f"s_mul_i32 s{TK}, s{sT0}, 3072")
        a(f"s_and_b32 s{sSP}, s{sST}, {cfg.get('swB', 1)}")
        for j in range(1, 12):
            a(f"s_add_u32 s{sT0}, s{TK+j-1}, 1024")
            a(f"s_cmp_lt_u32 s{sT0}, {12*1024}")
            a(f"s_cselect_b32 s{TK+j}, s{sT0}, 0")
        a(f"s_mul_i32 s{sT0}, s{sW}, {384*4096}")
        a(f"s_lshl_b32 s{sT1}, s{sST}, 7")
        a(f"s_add_u32 s{sT0}, s{sT0}, s{sT1}")
        a.run(P.weight_src(4096, sT0) + P.weight_dst(True))
        a.run(P.conv_setup(NC))
        a.run(P.conv_setup2(NC))
        a(f"s_lshl2_add_u32 s{sT0}, s{sST}, s{sW}")
        a(f"v_lshl_add_u32 v{vT}, s{sT0}, 4, v{vI}")
        a(f"v_lshlrev_b32 v{vX1}, 1, v{vT}")
        a(f"v_mul_u32_u24 v{vT}, 1280, v{vT}")
        a(f"s_mul_i32 s{sT0}, s{sDT}, 320")
        a(f"v_add_u32 v{vT}, s{sT0}, v{vT}")
        a(f"v_lshl_add_u32 v{vQO2}, v{vH}, 4, v{vT}")
        a(f"s_lshl_b32 s{sT0}, s{sSP}, 6")
        a(f"v_add_u32 v{vQO}, s{sT0}, v{vQO2}")
        a(f"v_subrev_u32 v{vQO1}, s{sT0}, v{vQO2}")
        a(f"s_lshl1_add_u32 s{sT0}, s{sST}, s{sT2}")
        a(f"s_lshl3_add_u32 s{sT0}, s{sT0}, s{sT3}")
        a(f"s_lshl_b32 s{sT0}, s{sT0}, 4")
        a(f"s_add_u32 s{sT0}, s{sT0}, {WS_G}")
        a(f"v_lshl_add_u32 v{vT}, v{vR}, 5, s{sT0}")
        a(f"v_lshl_add_u32 v{vGA}, v{vC}, 2, v{vT}")

    SP = cfg.get('setp', 1)
    if SP == 0:
        bigset()
    nq = cfg.get('kvq2', 7)
    if nq:
        a.run(kv_batch(kvq[:nq])); kvq = kvq[nq:]
    a.wait('hst' if H2 else 'hst2')
    a.run([P.flag_wg(sU3, 'f1'), stamp('barH')])
    if kvq:
        a.run(kv_batch(kvq))
    CF = 148
    for u in range(5):
        a(f"global_load_dwordx2 {vr(CF+2*u,2)}, v{vS0}, {sp(P_SH)} offset:{128*u}")
    if SP == 1:
        bigset()
    a.run(P.ssm_loads(NC))

    def helper():
        HR = cfg.get('hlpB', 6)
        if HR:
            a(f"s_add_u32 s{sT0}, s{sST}, 4")
            a(f"s_and_b32 s{sT0}, s{sT0}, 7")
            a(f"s_mul_i32 s{sT1}, s{sT0}, {HR}")
            a(f"s_cmp_eq_u32 s{sT0}, 7")
            a(f"s_cselect_b32 s{sU2}, {OOB}, 0")
            a(f"s_lshl2_add_u32 s{sT0}, s{sW}, s{sDT}")
            a(f"s_mul_i32 s{sT0}, s{sT0}, 96")
            a(f"s_add_u32 s{sT0}, s{sT0}, s{sT1}")
            a(f"s_add_u32 s{sT0}, s{sT0}, {96 - 7*HR}")
            a(f"v_add_lshl_u32 v{vT}, s{sT0}, v0, 12")
            a(f"s_lshl_b32 s{sT0}, s{sXQ}, 10")
            a(f"s_add_u32 s{sT0}, s{sT0}, 384")
            a(f"s_add_u32 s{sU2}, s{sU2}, s{sT0}")
            a(f"s_mov_b64 exec, {hex((1 << HR) - 1)}")
            a(f"buffer_load_dword v251, v{vT}, {srd(S_W)}, s{sU2} offen")
            a("s_mov_b64 exec, -1")
    WP = cfg.get('wBpre', 1)
    if WP:
        helper()
    if WP >= 2:
        a.run(P.w_step())

    if H2:
        a(f"s_mul_i32 s{sU3}, s{sJ}, 16")
        a(f"s_add_u32 s{sU3}, s{sU3}, {WS_F1 + 0x4000}")
        a.wait('kvdma', 'hst2')
        a.run([P.flag_wg(sU3, 'f2'), stamp('barK')])
    else:
        a.wait('kvdma')
        a.run(["s_barrier", stamp('barK')])
    KR, KO = 64, 160

    def kv_reads(u):
        it = [f"ds_read_b64_tr_b16 {vr(KR+10*u+2*j,2)}, v{vKVA} offset:{32*u + 4*j*PK + (32 if j == 2 else 0)}" for j in range(3)]
        it += [f"ds_read_b64_tr_b16 {vr(KR+10*u+6+2*j,2)}, v{vKVA} offset:{32*u + 4*j*PK + (L_VI-L_KI)}" for j in range(2)]
        return it

    def kv_compute(u):
        it = []
        k = KR + 10 * u
        c10, c32 = CF + 2 * u, CF + 2 * u + 1
        SH, AC, VF, OUT = 116, 124, 132, KO + 4 * u
        for n in range(5):
            it.append(f"v_alignbit_b32 v{SH+n}, v{k+n+1}, v{k+n}, 16")
        pr = lambda e: (k + (e + 1) // 2, k + (e + 3) // 2) if e & 1 else (SH + e // 2, SH + e // 2 + 1)
        for e in range(8):
            it.append(f"v_dot2_f32_bf16 v{AC+e}, v{pr(e)[0]}, v{c32}, 0")
        for e in range(8):
            it.append(f"v_dot2_f32_bf16 v{AC+e}, v{pr(e)[1]}, v{c10}, v{AC+e}")
        for n in range(4):
            it.append(f"v_lshlrev_b32 v{VF+2*n}, 16, v{k+6+n}")
            it.append(f"v_and_b32 v{VF+2*n+1}, 0xffff0000, v{k+6+n}")
        for n in range(4):
            it.append(f"v_pk_mul_f32 {vr(AC+2*n,2)}, {vr(AC+2*n,2)}, {vr(VF+2*n,2)}")
        for n in range(4):
            it.append(f"v_cvt_pk_bf16_f32 v{OUT+n}, v{AC+2*n}, v{AC+2*n+1}")
        it.append((f"buffer_store_dwordx4 {vr(OUT,4)}, v{vKVS}, {srd(S_WS)}, {'0' if u == 0 else f's{79+u}'} offen sc1", 'kvst'))
        return it
    a.run(kv_reads(0) + kv_reads(1))
    if WP & 1:
        a.run(P.w_step())
    for u in range(10):
        a(f"v_alignbit_b32 v{CF+u}, v{CF+u}, v{CF+u}, 16")
    for u in range(5):
        a.run(merge(kv_compute(u), kv_reads(u + 2) if u < 3 else []))
    a.run([stamp('kv_done')])
    if not cfg.get('wBpre', 1):
        helper()
    for _ in range(cfg.get('wB0', 1)):
        a.run(P.w_step())
    a.wait('kvst')
    a.run([P.flag_wg(sFJ, 'fk') if KW == 1 else P.flag(sFJ), stamp('barV')] + P.zflag_addr(sFJ, 0))
    a(f"global_load_ushort v{vB2}, v{vX1}, {sp(P_B2)}")
    while P.nxt < cfg.get('pollB', 7):
        a.run(P.w_step())
    a(P.poll_issue(vP1, 16, KW, 204))
    for _ in range(cfg.get('pollgapB', 0)):
        a.run(P.w_step())
    a.run([P.poll_check('fk', vP1, 16, KW, 204), stamp('fk_ok')])
    a.run(P.x_loads(NC))
    qa = lambda p: f"v{(vQO, vQO1, vQO, vQO1, vQO2)[p]}"
    qld = [f"global_load_dwordx4 {vr(QR+4*p,4)}, {qa(p)}, {sp(P_Q)} offset:{64*p}" for p in range(5)]
    for _ in range(cfg.get('xgapB', 1)):
        a.run(P.w_step())
    a.wait('xd')
    a("s_barrier")
    a.run([stamp('barC')])

    CPB = cfg.get('cpreB', 4)
    a.run(P.conv_pre(CPB))
    while P.nxt < NR:
        a.run(P.w_step())
    S = P.conv_sched(NT, CPB, cfg.get('ccap', 2.3), cfg.get('sg0', 100))
    cS, cE = cfg.get('cS', 0), cfg.get('cE', NMF - 36)
    nst = 12 - P.nxt
    per = (cE - cS) / (nst + 1)
    for r in range(nst):
        p0 = cS + r * per
        it = P.w_step()
        for k, x in enumerate(it[:9]):
            S.add('wd', [x], int(p0 + k * per / 14), int(p0 + (k + 1) * per / 14))
        p1 = p0 + per
        S.add('w', it[9:11], int(p1 - per / 5), int(p1) - 1)
        S.add('w', it[11:12], int(p1), int(p1))
        for k, x in enumerate(it[12:]):
            S.add('w', [x], int(p1 + k * per / 4), int(p1 + k * per / 4))
    S.add('wd', P.w_step(), int(cE - per), int(cE) - 1, pace=per / 11)
    tail = []
    while P.drn < 12:
        tail += P.w_step()
    S.add('wd', tail, cE, None, pace=(NMF - cE) / len(tail))
    vUL = 10
    uset = [f"s_mul_i32 s{sT0}, s{sDT}, 120",
            f"s_mul_i32 s{sT1}, s{sW}, 6",
            f"s_add_u32 s{sT0}, s{sT0}, s{sT1}",
            f"v_mul_u32_u24 v{vT}, 43, v0",
            f"v_lshrrev_b32 v{vT}, 8, v{vT}",
            f"v_mul_u32_u24 v{vT}, 18, v{vT}",
            f"v_add3_u32 v{vP0}, s{sT0}, v0, v{vT}",
            f"v_mul_u32_u24 v{vP0}, {FSU}, v{vP0}",
            f"v_add_u32 v{vP0}, {WS_FU}, v{vP0}",
            f"s_mul_i32 s{sT0}, s{sDT}, {5*48}",
            f"s_lshl1_add_u32 s{sT0}, s{sT1}, s{sT0}",
            f"s_lshl_b32 s{sT0}, s{sT0}, 10",
            f"s_add_u32 s{sT0}, s{sT0}, {WS_U}",
            f"v_add_u32 v{vUL+4}, s{sT0}, v1",
            f"s_mul_i32 s{sT0}, s{sSP}, {96*1024}",
            f"v_add_u32 v{vUL}, s{sT0}, v{vUL+4}",
            f"s_sub_u32 s{sT0}, {96*1024}, s{sT0}",
            f"v_add_u32 v{vUL+2}, s{sT0}, v{vUL+4}",
            f"v_add_u32 v{vUL+1}, {48*1024}, v{vUL}",
            f"v_add_u32 v{vUL+3}, {48*1024}, v{vUL+2}",
            f"v_add_u32 v{vUL+4}, {192*1024}, v{vUL+4}"]
    S.add('set', uset, 40, 118)
    for k, x in enumerate(qld):
        qp = cfg.get('qS', 20) + cfg.get('qD', 16) * k
        S.add('q', [x], qp, qp)
    pU = NMF - cfg.get('pU0', 16)
    S.add('set', [P.poll_issue(vP0, 30)], pU, pU)
    NB2, GR2, UE = cfg.get('nb2', 16), cfg.get('grp2', 2), cfg.get('uearly', 8)
    UBUF = ([ar(192 + 4*i, 4) for i in range(16)] + [vr(92 + 4*i, 4) for i in range(4)])[:NB2]
    vUM = 220

    def u_load(n):
        m, j = divmod(n, 12)
        return f"buffer_load_dwordx4 {UBUF[n % NB2]}, v{vUL+m if m < 5 else vUM+m-5}, {srd(S_WS)}, s{TK+j} offen {cfg.get('apol', 'sc1')}"
    ustart = [P.poll_check('fu0', vP0, 30), stamp('fu0_ok')] + [u_load(n) for n in range(UE)]
    UEP = cfg.get('uep', 1)
    P.conv_run(S, NT, False, mid=[ustart if k == UEP else [] for k in range(3)])

    NB2, GR2, UE = cfg.get('nb2', 16), cfg.get('grp2', 2), cfg.get('uearly', 8)
    UBUF = ([ar(192 + 4*i, 4) for i in range(16)] + [vr(92 + 4*i, 4) for i in range(4)])[:NB2]
    AC2, OWN, RD2, RD4 = (108, 120), 132, 172, 208
    GQ, ZL, ZRg, ZU = 228, 64, 76, 88
    vZG, vZLW, vZT, vOG, vR2R, vR2W, vUM = 20, 21, 22, 28, 33, 25, 220
    vR2S, vR2X, PDZ, vP2 = 23, 30, 226, 225
    opol = cfg.get('opol', 'sc1')
    g2set = [f"v_add_u32 v{vUM+m}, {cfg.get('wiU', 20*48*1024)}, v{vUL+m}" for m in range(5)]
    g2set += [f"v_add_u32 v{vP0}, {20*24*FSU}, v{vP0}",
              f"v_lshrrev_b32 v{vT}, 3, v0",
              f"v_lshl_add_u32 v{vT}, s{sW}, 3, v{vT}",
              f"v_and_b32 v{vT2}, 7, v0",
              f"v_lshlrev_b32 v{vT2}, 4, v{vT2}",
              f"v_lshl_add_u32 v{vZG}, v{vT}, 12, v{vT2}",
              f"v_mul_u32_u24 v{vT}, {PZ}, v{vT}",
              f"v_add_u32 v{vT}, v{vT}, v{vT2}",
              f"v_add_u32 v{vZLW}, {L_ZI}, v{vT}",
              f"s_mul_i32 s{sT0}, s{sDT}, {160*4096}",
              f"s_lshl_b32 s{sT1}, s{sST}, 7",
              f"s_add_u32 s{sT0}, s{sT0}, s{sT1}",
              f"s_add_u32 s{sT0}, s{sT0}, {WS_Z}",
              f"s_lshl_b32 s{sT1}, s{sSP}, 17",
              f"s_add_u32 s80, s{sT0}, s{sT1}",
              f"s_sub_u32 s81, s{sT0}, s{sT1}",
              f"s_add_u32 s81, s81, {32*4096}",
              f"s_add_u32 s82, s80, {64*4096}",
              f"s_add_u32 s83, s81, {64*4096}",
              f"s_add_u32 s{sX0}, s{sT0}, {128*4096}",
              f"v_lshl_add_u32 v{vT}, v{vH}, 3, v{vR}",
              f"v_mul_u32_u24 v{vT}, {PZ}, v{vT}",
              f"s_lshl_b32 s{sT0}, s{sW}, 5",
              f"s_add_u32 s{sT0}, s{sT0}, {L_ZI}",
              f"v_lshl_add_u32 v{vZT}, v{vC}, 3, s{sT0}",
              f"v_add_u32 v{vZT}, v{vZT}, v{vT}"]
    for jn in range(1, 4):
        g2set += [f"s_xor_b32 s{sT0}, s{sW}, {jn}",
                  f"s_mul_i32 s{sT0}, s{sT0}, 3072",
                  f"s_add_u32 s{sT0}, s{sT0}, {(jn-1)*1024}",
                  f"v_add_u32 v{vR2W+jn-1}, s{sT0}, v1",
                  f"v_add_u32 v{vR2X+jn-1}, {L_RED}, v{vR2W+jn-1}"]
    g2set += [f"s_mul_i32 s{sT0}, s{sW}, 3072",
              f"v_add_u32 v{vR2R}, s{sT0}, v1",
              f"v_add_u32 v{vR2S}, {L_RED}, v{vR2R}",
              f"s_lshl3_add_u32 s{sT0}, s{sDT}, s{sW}",
              f"s_lshl_b32 s{sT0}, s{sT0}, 2",
              f"v_lshl_add_u32 v{vP1}, v{vR}, 4, v{vC}",
              f"v_add_u32 v{vP1}, s{sT0}, v{vP1}",
              f"v_mul_u32_u24 v{vP1}, {FSZ}, v{vP1}",
              f"s_and_b32 s{sT1}, s{sST}, 1",
              f"s_lshl_b32 s{sT1}, s{sT1}, 3",
              f"s_add_u32 s{sT1}, s{sT1}, {WS_FZ}",
              f"v_add_u32 v{vP1}, s{sT1}, v{vP1}",
              f"s_lshl2_add_u32 s{sT0}, s{sDT}, s{sW}",
              f"v_and_b32 v{vT}, 7, v0",
              f"v_lshl_add_u32 v{vP2}, s{sT0}, 3, v{vT}",
              f"v_mul_u32_u24 v{vP2}, {FSZ}, v{vP2}"]
    Z2 = NC == 2 and cfg.get('z2', 1)
    if Z2:
        g2set += [f"s_and_b32 s{sT1}, s{sST}, 3", f"s_lshl_b32 s{sT1}, s{sT1}, 2", f"s_add_u32 s{sT1}, s{sT1}, {WS_FZ + 128*FSZ + 16}",
                  f"v_add_u32 v{vP2}, s{sT1}, v{vP2}"]
    else:
        g2set += [f"v_add_u32 v{vP2}, s{sT1}, v{vP2}", f"v_cmp_lt_u32 vcc, 7, v0", "s_nop 1", f"v_cndmask_b32 v{vP1}, v{vP1}, v{vP2}, vcc"]
    nz0 = 16 if NC == 3 else 8
    nz1 = 16 if NC == 2 and not Z2 else 8
    zso = (80, 81, 82, 83, sX0)
    ptile = ((0, 1), (2, 3), (5, 6), (7, 8), (4, 9))

    def u_load(n):
        m, j = divmod(n, 12)
        return f"buffer_load_dwordx4 {UBUF[n % NB2]}, v{vUL+m if m < 5 else vUM+m-5}, {srd(S_WS)}, s{TK+j} offen {cfg.get('apol', 'sc1')}"

    def mf2(n, jn):
        m, j = divmod(n, 12)
        d = vr(OWN + 4 * m, 4) if jn == 0 else vr(AC2[m & 1] + 4 * (jn - 1), 4)
        return f"v_mfma_f32_16x16x32_bf16 {d}, {UBUF[n % NB2]}, {ar(16*j+4*jn,4)}, {'0' if j == 0 else d}"
    rd = lambda m, s: [f"ds_read_b128 {vr(RD2+12*s+4*k,4)}, v{vR2R if m < 5 else vR2S} offset:{(m % 5)*12288 + k*1024}" for k in range(3)]
    ad = lambda m, s: [f"v_add_f32 v{OWN+4*m+r}, v{OWN+4*m+r}, v{RD2+12*s+4*k+r}" for k in range(3) for r in range(4)]
    wr = lambda m: [(f"ds_write_b128 v{(vR2W if m < 5 else vR2X)+jn-1}, {vr(AC2[m & 1]+4*(jn-1),4)} offset:{(m % 5)*12288}", f'r2w{m}') for jn in range(1, 4)]
    z_ld = lambda ps: [f"buffer_load_dwordx4 {vr(ZL+4*i,4)}, v{vZG}, {srd(S_WS)}, s{zso[p]} offen sc1" for i, p in enumerate(ps)]
    z_wr = lambda ps: [f"ds_write_b128 v{vZLW}, {vr(ZL+4*i,4)} offset:{p*32*PZ}" for i, p in enumerate(ps)]
    z_rd = lambda p: [f"ds_read_b64_tr_b16 {vr(ZRg+4*(p % 3)+2*hh,2)}, v{vZT} offset:{(32*p + 4*hh)*PZ}" for hh in range(2)]

    def gq(p):
        it = []
        pp = GQ + 8 * (p % 3)
        for k in range(4):
            it += [f"v_lshlrev_b32 v{pp+2*k}, 16, v{QR+4*p+k}", f"v_and_b32 v{pp+2*k+1}, 0xffff0000, v{QR+4*p+k}",
                   f"v_mul_f32 v{pp+2*k}, v{pp+2*k}, v{vGG}", f"v_mul_f32 v{pp+2*k+1}, v{pp+2*k+1}, v{vGG}"]
        return it
    sc = lambda m: [f"v_fma_f32 v{OWN+4*m+k}, v{OWN+4*m+k}, v{vOG}, v{vB2}" for k in range(4)]

    def fin(p, hh):
        it = []
        o = OWN + 4 * ptile[p][hh]
        for k in range(2):
            zu, z, g = ZU + 2 * k, ZRg + 4 * (p % 3) + 2 * hh + k, GQ + 8 * (p % 3) + 4 * hh + 2 * k
            it += [f"v_lshlrev_b32 v{zu}, 16, v{z}", f"v_and_b32 v{zu+1}, 0xffff0000, v{z}"]
            if (p, hh) == (4, 1):
                it += [f"v_fma_f32 v{g}, v{g}, v{zu}, v{vB2}", f"v_fma_f32 v{g+1}, v{g+1}, v{zu+1}, v{vB2}"]
            else:
                it += [f"v_fmac_f32 v{o+2*k}, v{g}, v{zu}", f"v_fmac_f32 v{o+2*k+1}, v{g+1}, v{zu+1}",
                       f"v_cvt_pk_bf16_f32 v{QR+4*p+2*hh+k}, v{o+2*k}, v{o+2*k+1}"]
        return it
    ost = lambda p: [f"global_store_dwordx4 {qa(p)}, {vr(QR+4*p,4)}, {sp(P_OUT)} offset:{64*p} {opol if p < cfg.get('opn', 5) else ''}"]
    if cfg.get('dly'):
        a(f"s_sleep {cfg['dly']}")
    if UEP == 3:
        a.run(ustart)
    a(f"buffer_load_dword v{vGG}, v{vGA}, {srd(S_WS)}, 0 offen sc1")
    a.run(g2set)
    mf, pos = [], {}
    for q in range(120 // GR2):
        ns = range(q * GR2, (q + 1) * GR2)
        for jn in ((1, 2, 3, 0) if ns[0] < 108 else (1, 2, 3)):
            for n in ns:
                pos.setdefault(n, len(mf))
                mf.append(mf2(n, jn))
    pown = len(mf)
    mf += [mf2(n, 0) for n in range(108, 120)]
    S = Sched(mf)
    for n in range(120):
        S.reserve(pos[n] - 1)
    UC = cfg.get('pUC', 210)
    k = 0
    for n in range(UE, 120):
        free = 4 * GR2 * ((n - NB2) // GR2 + 1) if n >= NB2 else 0
        p = max(free, 4 * (n - NB2 + GR2) + 1, 2 * k)
        if n >= 60:
            p = max(p, min(UC + 1 + 2 * (n - 60), 4 * n - 2 if UC < 236 else max(239, 4 * (n - UE))))
        if n == 60:
            S.add('u', [P.poll_check('fu1', vP0, 30), stamp('fu1_ok')], p, p)
            pZ0 = p
        S.add('u', [u_load(n)], p, p)
        k += 1
    lastu = p
    S.add('st', [stamp('g2first')], 0, 0)
    S.add('st', [stamp('g2mid')], 240, 240)
    pF = cfg.get('pF', 40)
    S.add('z', [('wait', 'zst2' if NC == 3 else 'zst1'), stamp('barF'), P.flag(sFJ)], pF, pF + 1)
    zB = (0, 1) if NC == 2 else (0, 1, 4)
    zA = (2, 3, 4) if NC == 2 and not Z2 else (2, 3)
    UP = UC - cfg.get('pUP', 44)
    S.add('z', [P.poll_issue(vP0, 30), P.poll_issue(vP1, nz0, 2, PDZ)], UP, UP + 1)
    S.add('z', [P.poll_check('fz0', vP1, nz0, 2, PDZ), stamp('fz0_ok')] + z_ld(zB) + [f"v_add_u32 v{vP1}, {128*FSZ}, v{vP1}"], pZ0 + 3, pZ0 + 14, pace=2)
    ZP1, ZC1 = cfg.get('zp1', [325, 372])
    S.add('z', [P.poll_issue(vP1, nz1, 2, PDZ)], ZP1, ZP1)
    S.add('z', [P.poll_check('fz1', vP1, nz1, 2, PDZ), stamp('fz1_ok')] + z_ld(zA), ZC1, ZC1 + 8, pace=2)
    if Z2:
        ZP2, ZC2 = cfg.get('zp2', [390, 434])
        S.add('z2', [P.poll_issue(vP2, 8)], ZP2, ZP2)
        S.add('z2', [P.poll_check('fz2', vP2, 8), stamp('fz2_ok'),
                    f"buffer_load_dwordx4 {vr(ZL+8,4)}, v{vZG}, {srd(S_WS)}, s{zso[4]} offen sc1"], ZC2, ZC2 + 1)
    S.add('fin', [f"v_lshlrev_b32 v{vB2}, 16, v{vB2}", f"v_sub_f32 v{vOG}, 1.0, v{vGG}", f"v_mul_f32 v{vB2}, v{vB2}, v{vOG}"] + gq(0) + gq(1) + gq(2), 44, 200)
    OS = cfg.get('osat', 450)
    bars = cfg.get('bars', [3, 5, 7, 8])
    zlate = cfg.get('zlate', 0)
    flat = lambda l: [x for y in l for x in y]
    done = 0
    tailz = []
    for m in range(9):
        p = 48 * (m + 1)
        if m == 5:
            S.add('red', z_wr(zB), p - 14, p - 1, pace=4)
        if m == 8 and not zlate:
            S.add('red', z_wr(zA), p - 14, p - 1, pace=4)
        S.add('red', wr(m), p, p + 8, pace=3)
        if m in bars:
            S.add('red', [('wait', f'r2w{m}'), "s_barrier"], p + 11, p + 12)
            ms = list(range(done, m + 1))
            done = m + 1
            dl = None if m == 8 else 48 * (bars[bars.index(m) + 1] + 1) + 10
            it = []
            if m == 5:
                it += z_rd(0) + z_rd(1)
            if m == 8 and not zlate:
                it += z_rd(2) + z_rd(3) + ([] if Z2 else z_rd(4))
            it += flat(rd(t, t % 3) for t in ms[:3])
            if m == 8 and not zlate:
                it += ([] if Z2 else fin(4, 0) + fin(4, 1)) + fin(2, 0)
            if m == 5 and ms[0] > 1:
                it += fin(0, 0) + fin(0, 1)
            for i, t in enumerate(ms):
                it += ad(t, t % 3) + (rd(ms[i + 3], t % 3) if i + 3 < len(ms) else []) + sc(t)
            if m == 5:
                it += (fin(0, 0) + fin(0, 1) if ms[0] <= 1 else []) + fin(1, 0) + fin(1, 1) + gq(3) + gq(4)
                dl = min(dl, OS - 1)
                S.add('os', ost(0) + ost(1), OS, OS + 4, pace=3)
            if m == 8:
                last = fin(2, 1) + ost(2) + fin(3, 0) + fin(3, 1) + ost(3)
                if zlate:
                    tailz = fin(2, 0) + last + fin(4, 0) + fin(4, 1)
                else:
                    it += last
            S.add('fin', it, p + 13, dl)
    if zlate:
        S.add('red', z_wr(zA), pown - 8, pown, pace=3)
    S.add('red', wr(9), pown + 1, pown + 6, pace=2)
    ZIN = cfg.get('zin', 1)
    zw2 = (f"ds_write_b128 v{vZLW}, {vr(ZL+8,4)} offset:{4*32*PZ}", 'zw2')
    if Z2 and ZIN:
        S.add('red', [zw2], pown + 8, pown + 8)
    d2 = cfg.get('d2', '')
    post = []
    if 'z' in d2:
        a.run([x[0] for x in S.th['z'][:3]])
        post += [x[0] for x in S.th['z'][3:] + S.th.get('z2', [])]; S.th['z'] = []; S.th['z2'] = []
        S.th['u'] = [x for x in S.th['u'] if not callable(x[0])]
    for nm in ('red', 'fin', 'os'):
        if nm[0] in d2:
            post += [x[0] for x in S.th[nm]]; S.th[nm] = []
    its = S.items(keep=('fin',))
    if 'u' in d2:
        its = [x for x in its if not txt_of(x).startswith('buffer_load_dwordx4 a[')]
    if 'b' in d2:
        its = [x for x in its if txt_of(x) != 's_barrier']
    if 'w' in d2:
        its = [x for x in its if not (txt_of(x).startswith('ds_write_b128') and x[1:] != ('r2w9',)) and not (txt_of(x) == 'wait' and x[1].startswith('r2w'))]
    a.run(its)
    a.run([stamp('g2x')] + ([] if cfg.get('nopost') else post))
    P.info['g2'] = (S.over, S.under, len(S.left.get('fin', [])))
    a.run([stamp('g2mfma')])
    left = S.left.get('fin', [])
    if Z2:
        assert not zlate
        tailz = fin(4, 0) + fin(4, 1)
        if not ZIN:
            a.run(left)
            left = []
            a(zw2[0], tok='zw2')
        a.wait('zw2')
    if 'r2w9' in a.toks:
        a.wait('r2w9')
    a("s_barrier")
    if Z2:
        a.run(z_rd(4))
    for k in range(3):
        a(f"ds_read_b128 {vr(RD4+4*k,4)}, v{vR2S} offset:{4*12288 + k*1024}")
    if zlate:
        a.run(z_rd(2) + z_rd(3) + z_rd(4))
    a.run(left + tailz)
    for k in range(3):
        for hh in range(2):
            a(f"v_pk_add_f32 {vr(OWN+36+2*hh,2)}, {vr(OWN+36+2*hh,2)}, {vr(RD4+4*k+2*hh,2)}")
    g = GQ + 8 + 4
    for hh in range(2):
        a(f"v_pk_fma_f32 {vr(g+2*hh,2)}, {vr(OWN+36+2*hh,2)}, {vr(vOG,2)}, {vr(g+2*hh,2)} op_sel_hi:[1,0,1]")
    for hh in range(2):
        a(f"v_cvt_pk_bf16_f32 v{QR+18+hh}, v{g+2*hh}, v{g+2*hh+1}")
    a.run(ost(4))
    P.finish()
    a("s_endpgm")
    return P


def gen(cfg):
    h = Asm()
    h("s_load_dwordx16 s[36:51], s[0:1], 0")
    h("s_load_dwordx16 s[52:67], s[0:1], 56")
    if cfg.get('stamps') or cfg.get('amp'):
        h("s_memrealtime s[96:97]")
    h("s_cmp_ge_u32 s2, 256")
    h("s_cbranch_scc1 L_end")
    h("v_lshrrev_b32 v1, 6, v0")
    h("v_and_b32 v0, 63, v0")
    h(f"v_readfirstlane_b32 s{sW}, v1")
    rb = cfg.get('rolebit', 0)
    h(f"s_lshr_b32 s{sID}, s2, 3")
    if rb == 0:
        h(f"s_bfe_u32 s{sXQ}, s2, 0x20001")
    elif rb == 2:
        h(f"s_and_b32 s{sXQ}, s2, 3")
    else:
        h(f"s_bfe_u32 s{sXQ}, s2, 0x10002")
        h(f"s_and_b32 s{sT0}, s2, 1")
        h(f"s_lshl1_add_u32 s{sXQ}, s{sXQ}, s{sT0}")
    h(f"s_lshl_b32 s{sJ}, s{sXQ}, 5")
    h(f"s_add_u32 s{sJ}, s{sJ}, s{sID}")
    lay = cfg.get('lay', 'C')
    if lay == 'C':
        if cfg.get('cpf', 1):
            h(f"s_bitcmp0_b32 s2, {rb}")
            h(f"s_cselect_b32 s{sT1}, L_Amain-L_pcC, 0")
            h.run([x.replace("@-L_pcC", f"s{sT1}") for x in Prog('C', cfg).code_prefetch("@", "L_end")])
    elif lay == 'A':
        h(f"s_bitcmp1_b32 s2, {rb}")
        h("s_cbranch_scc1 L_B")
    else:
        h(f"s_bitcmp0_b32 s2, {rb}")
        h("s_cbranch_scc1 L_A")
    A, B = prog_A(cfg), prog_B(cfg)
    ref = open(f"cdna_kernels/{NAME}.s.ref").read().split('\n')
    head = [l for l in ref if l.startswith(';') and '@launch' not in l and 'Override' not in l and 'grid=ceil' not in l]
    txt = '\n'.join(head) + f"\n; @launch grid=(256,1,1) block=(256,1,1) lds={L_END}\n"
    txt += f""".amdgcn_target "amdgcn-amd-amdhsa--gfx950"
.text
.globl {NAME}_kernel
.p2align 8
.type {NAME}_kernel,@function
{NAME}_kernel:
"""
    if lay == 'C':
        J = lambda l: '\n'.join(l) + '\n'
        txt += (h.text() + J(A.a.out[:A.split0]) + J(B.a.out[:B.split0]) + f"    s_waitcnt lgkmcnt(0)\n    s_bitcmp1_b32 s2, {rb}\n    s_cbranch_scc1 L_Bgo\n" +
                J(A.a.out[A.split0:A.split]) + "L_Bgo:\n" + J(B.a.out[B.split0:]) + ".p2align 7\n" + J(A.a.out[A.split:]) + "L_end:\n    s_endpgm\n")
    elif lay == 'A':
        txt += h.text() + '\n'.join(A.a.out[:A.split]) + '\n' + B.a.text() + ".p2align 7\n" + '\n'.join(A.a.out[A.split:]) + "\nL_end:\n    s_endpgm\n"
    else:
        txt += h.text() + B.a.text() + ".p2align 7\nL_A:\n" + '\n'.join(A.a.out[:A.split-1] + A.a.out[A.split:]) + "\nL_end:\n    s_endpgm\n"
    txt += f""".section .rodata,"a"
.p2align 6
.amdhsa_kernel {NAME}_kernel
  .amdhsa_next_free_vgpr 512
  .amdhsa_next_free_sgpr 102
  .amdhsa_accum_offset 256
  .amdhsa_group_segment_fixed_size 0
  .amdhsa_kernarg_size 120
  .amdhsa_user_sgpr_count 2
  .amdhsa_user_sgpr_kernarg_segment_ptr 1
  .amdhsa_system_sgpr_workgroup_id_x 1
  .amdhsa_float_denorm_mode_32 3
.end_amdhsa_kernel
"""
    return txt, dict(n_ins=(A.a.n_ins, B.a.n_ins), n_nop=(A.a.n_nop, B.a.n_nop), stamps=B.names, stampsA=A.names,
                     rolebit=rb, sched=(A.info, B.info))


if __name__ == "__main__":
    import json
    out = sys.argv[1]
    cfg = json.loads(sys.argv[2]) if len(sys.argv) > 2 else {}
    txt, info = gen(cfg)
    open(out, 'w').write(txt)
    print(out, info)


def dmap(T, i):
    dt, m = divmod(T, 5)
    r, g = dt >> 2, dt & 3
    P, hh = (2 * r + (m >> 1), m & 1) if m < 4 else (4, r)
    return 160 * g + 32 * P + 8 * (i >> 2) + 4 * hh + (i & 3)
```

```python
import sys
from asmlib import Asm, merge, Sched

NAME = "gated_mix__ssm_conv_h3__mixer_token_mlp__prompt"

WS_H, WS_U, WS_KV, WS_Z, WS_G = 0x0, 0x280000, 0x480000, 0x700000, 0x980000
WS_F1, WS_FK, WS_FU, WS_FZ, WS_EP, WS_DBG = 0x990000, 0x998000, 0x9A0000, 0x9B0000, 0x9C0000, 0x9D0000
WS_SIZE = 0xA10000
OOB = 0x7F000000
TAGC = 0x9E3779B9

NR = 4
L_RED = 65536
PL = 1344
L_LN = 32768
PK = 704
L_KI = L_RED
L_VI = L_RED + 25600
L_ZSTG = L_RED + 4 * 12288
L_CK = L_RED + 61440
KP, KPAD = 4224, 96
L_CX = L_CK + 3 * KP
XP, XPAD = 4608, 512
L_CAR = L_CX + 3 * XP
L_END = L_CAR + 1600
L_ZI = L_CK
PZ = 144

S_WS, S_K, S_V, S_W, S_SSM = 4, 8, 12, 16, 24
P_Q, P_SH, P_D, P_B1, P_B2, P_GW, P_OUT = 36, 42, 46, 54, 58, 60, 62
TK = 68
sW, sXQ, sID, sA, sB, sJ, sSP, sTAG, sRING, sC0, sFI, sFJ = range(84, 96)
sT0, sT1, sT2, sT3 = 32, 33, 34, 35
sU0, sU1, sU2, sU3 = 20, 21, 22, 23
sX0, sX1, sX2 = 31, 48, 49
sC2 = 39
sCNT = 3
vH, vI, vR, vC, vT, vT2 = 37, 38, 39, 40, 42, 43
VW, VT = 2, 6
vPD = 18
vCA, vCB, vCA2, vCB2 = 20, 21, 22, 23
vCRW, vCRW2, vCRR, vCRR2, vZW, vZR, vZS, vZS2, vCW = 25, 26, 27, 28, 29, 30, 31, 32, 33
vP0, vP1, vTAG = 35, 24, 34
CA, CB, CACC, CY, NSL = 64, 128, 192, 216, 6
CH, CR, ZO = 240, 246, 216
vZF = 252
C20 = 56


def srd(n):
    return f"s[{n}:{n+3}]"


def sp(n):
    return f"s[{n}:{n+1}]"


def vr(n, k):
    return f"v[{n}:{n+k-1}]"


def ar(n, k):
    return f"a[{n}:{n+k-1}]"


def txt_of(x):
    return x if isinstance(x, str) else (x[0] if isinstance(x, tuple) else '')


class Prog:
    def __init__(self, role, cfg):
        self.a = Asm()
        self.role = role
        self.cfg = cfg
        self.stamps = cfg.get('stamps', False)
        self.names = []
        self.npoll = 0
        self.nxt = self.drn = 0
        self.nstep = 16 if role == 'A' else 12
        self.info = {}

    def stamp(self, name):
        def f(a):
            st = self.stamps
            amp = self.cfg.get('amp')
            if amp and amp == [self.role, name]:
                a("s_memrealtime s[98:99]")
            if not st or (st != 1 and name not in st and name not in ('start', 'end')) or (st == 1 and name[0] == 'w' and name != 'w8'):
                return
            k = len(self.names)
            a("s_memtime s[98:99]")
            a("s_memrealtime s[100:101]")
            a(f"v_writelane_b32 v255, s98, {k}")
            a(f"v_writelane_b32 v255, s100, {32+k}")
            self.names.append(name)
        f.cost = 0
        return f

    def weight_src(self, pitch, sbase):
        it = [f"v_lshrrev_b32 v{vT}, 3, v0",
              f"v_and_b32 v{vT2}, 6, v{vT}",
              f"v_xor_b32 v{vT2}, v{vT2}, v0",
              f"v_and_b32 v{vT2}, 7, v{vT2}",
              f"v_mul_u32_u24 v{vT}, {pitch}, v{vT}",
              f"v_lshl_add_u32 v{vT}, v{vT2}, 4, v{vT}",
              f"v_add_u32 v{VW}, s{sbase}, v{vT}"]
        for i in range(1, 4):
            it.append(f"v_add_u32 v{VW+i}, {8*pitch-1024}, v{VW+i-1}")
        return it

    def weight_dst(self, xorw):
        it = [f"v_lshrrev_b32 v{vT}, 2, v0",
              f"v_lshlrev_b32 v{vT}, 7, v{vT}",
              f"v_lshl_add_u32 v{vT}, v{vC}, 3, v{vT}",
              f"v_bfe_u32 v{vT2}, v0, 3, 2"]
        if xorw:
            it.append(f"v_xor_b32 v{vT2}, s{sW}, v{vT2}")
        it += [f"v_lshl_add_u32 v{vT}, v{vT2}, 5, v{vT}",
               f"v_add_u32 v{VT}, s{sRING}, v{vT}"]
        for t in range(1, 4):
            it.append(f"v_xor_b32 v{VT+t}, {t*32}, v{VT}")
        return it

    def w_issue(self, j):
        it = [f"s_mul_i32 s{sU1}, s{TK+j}, {96 if self.role == 'A' else 128}",
              f"s_add_u32 m0, s{sRING}, {(j % NR)*16384}"]
        if j >= NR:
            it.append(('wait', f'wr{j-NR}'))
        for i in range(4):
            it.append((f"buffer_load_dwordx4 v{VW+i}, {srd(S_W)}, s{sU1} offen offset:{i*1024} {self.cfg.get('wpol', '')} lds", f'wd{j}'))
        return it

    def w_drain(self, j):
        it = [('wait', f'wd{j}')]
        for t in range(4):
            for e2 in range(2):
                it.append((f"ds_read_b64_tr_b16 {ar(16*j+4*t+2*e2,2)}, v{VT+t} offset:{(j % NR)*16384 + e2*2048}", f'wr{j}'))
        return it

    def w_step(self):
        it = []
        if self.nxt >= NR or self.nxt == self.nstep:
            it += self.w_drain(self.drn); self.drn += 1
        if self.nxt < self.nstep:
            it += self.w_issue(self.nxt); self.nxt += 1
        return it

    def flag(self, soff):
        return f"s_mov_b64 exec, 1\nbuffer_store_dword v{vTAG}, v0, {srd(S_WS)}, s{soff} offen sc1\ns_mov_b64 exec, -1"

    def flag_wg(self, soff, name):
        def f(a):
            a("s_barrier")
            a(f"s_cmp_lg_u32 s{sW}, 0")
            a(f"s_cbranch_scc1 L_nf_{name}")
            a.begin_cond(name)
            a(self.flag(soff))
            a.end_cond()
            a.label(f"L_nf_{name}")
        return f

    def set_tag(self, v):
        return [f"v_readfirstlane_b32 s{sTAG}, v{v}", f"s_add_u32 s{sTAG}, s{sTAG}, {hex(TAGC)}", f"v_mov_b32 v{vTAG}, s{sTAG}"]

    @staticmethod
    def setexec(n):
        if n == 32:
            return "s_mov_b32 exec_hi, 0"
        if n > 32:
            return f"s_mov_b32 exec_hi, {hex((1 << (n-32)) - 1)}"
        return f"s_mov_b64 exec, {hex((1 << n) - 1)}"

    def poll_load(self, va, wd, vd):
        if wd == 1:
            return f"buffer_load_dword v{vd}, v{va}, {srd(S_WS)}, 0 offen sc1"
        return f"buffer_load_dwordx{wd} {vr(vd,wd)}, v{va}, {srd(S_WS)}, 0 offen sc1"

    def poll_issue(self, va, n=64, wd=1, vd=vPD):
        it = [self.setexec(n)] if n < 64 else []
        it.append(self.poll_load(va, wd, vd))
        if n < 64:
            it.append("s_mov_b64 exec, -1")
        return "\n".join(it)

    def poll_check(self, name, va, n=64, wd=1, vd=vPD):
        name = self.role + name

        def cmp(a):
            if wd == 1:
                a(f"v_cmp_ne_u32 vcc, s{sTAG}, v{vd}")
                return
            a(f"v_xor_b32 v{vd}, s{sTAG}, v{vd}")
            for k in range(1, wd):
                a(f"v_bitop3_b32 v{vd}, v{vd}, v{vd+k}, v{vTAG} bitop3:0xf6")
            a(f"v_cmp_ne_u32 vcc, 0, v{vd}")

        def f(a):
            if n < 64:
                a(self.setexec(n))
            cmp(a)
            a(f"s_mov_b32 s{sCNT}, 0")
            a(f"s_branch L_pk_{name}" if name[1:] in self.cfg.get('nopoll', []) else f"s_cbranch_vccz L_pk_{name}")
            a.label(f"L_pl_{name}")
            a.begin_cond('poll' + name)
            a("s_mov_b64 exec, vcc")
            if self.cfg.get('psleep'):
                a(f"s_sleep {self.cfg['psleep']}")
            a(self.poll_load(va, wd, vd))
            a(f"s_add_u32 s{sCNT}, s{sCNT}, 1")
            a(f"s_cmp_ge_u32 s{sCNT}, 0x40000")
            a(f"s_cbranch_scc1 L_pk_{name}")
            cmp(a)
            a("s_nop 0")
            a(f"s_cbranch_vccnz L_pl_{name}")
            a.end_cond()
            a.label(f"L_pk_{name}")
            a("s_mov_b64 exec, -1")
            if self.stamps:
                a(f"v_writelane_b32 v254, s{sCNT}, {self.npoll}")
                self.npoll += 1
        f.cost = 5
        return f

    def zflag_addr(self, dst, first):
        fsz = self.cfg.get('fsz', 32)
        return [f"s_add_u32 s{dst}, s{sJ}, {first}", f"s_mul_i32 s{dst}, s{dst}, {fsz}",
                f"s_lshl1_add_u32 s{sT0}, s{sT3}, s{sT2}", f"s_lshl2_add_u32 s{dst}, s{sT0}, s{dst}",
                f"s_add_u32 s{dst}, s{dst}, {WS_FZ}"]

    def lanes(self):
        return ["v_lshlrev_b32 v1, 4, v0",
                f"v_lshrrev_b32 v{vH}, 4, v0", f"v_and_b32 v{vI}, 15, v0",
                f"v_bfe_u32 v{vR}, v0, 2, 2", f"v_and_b32 v{vC}, 3, v0",
                f"s_lshr_b32 s{sT2}, s{sW}, 1", f"s_and_b32 s{sT3}, s{sW}, 1",
                f"s_lshl_b32 s{sRING}, s{sW}, 12"]

    def code_prefetch(self, beg, end):
        r = self.role
        return [f"s_getpc_b64 {sp(sU2)}", f"L_pc{r}:",
                f"s_lshl2_add_u32 s{sT2}, s{sID}, s{sW}",
                f"v_lshl_add_u32 v{vT}, s{sT2}, 1, v0",
                f"v_lshlrev_b32 v{vT}, 7, v{vT}",
                f"v_add_u32 v{vT}, {beg}-L_pc{r}, v{vT}",
                f"v_min_u32 v{vT}, {end}-L_pc{r}, v{vT}",
                "s_mov_b64 exec, 3",
                f"global_load_dword v253, v{vT}, {sp(sU2)}",
                "s_mov_b64 exec, -1"]

    def epoch_load(self, v):
        return [f"s_mov_b32 s{sT0}, {WS_EP}", "s_mov_b64 exec, 1",
                f"buffer_load_dword v{v}, v0, {srd(S_WS)}, s{sT0} offen sc1", "s_mov_b64 exec, -1"]

    def conv_setup(self, nch):
        ZR = 68
        it = [f"s_mul_i32 s{sC2}, s{sXQ}, 160",
              f"s_lshl1_add_u32 s{sC0}, s{sID}, s{sC2}",
              f"s_add_u32 s{sC0}, s{sC0}, {64 if self.role == 'A' else 0}",
              f"s_add_u32 s{sC2}, s{sC2}, s{sID}",
              f"s_add_u32 s{sC2}, s{sC2}, 128",
              f"s_lshl_b32 s{sT0}, s{sC0}, 1",
              f"s_load_dword s28, {sp(P_D)}, s{sT0}"]
        if nch == 3:
            it += [f"s_lshr_b32 s{sT1}, s{sC2}, 1", f"s_lshl_b32 s29, s{sT1}, 2", f"s_load_dword s30, {sp(P_D)}, s29"]
        it += [f"s_lshl_b32 s{sX0}, s{sC0}, 12",
               f"s_lshl_b32 s{sT1}, s{sW}, 10",
               f"s_add_u32 s{sX0}, s{sX0}, s{sT1}",
               f"s_add_u32 s{sX1}, s{sX0}, 4096",
               f"s_lshl_b32 s{sX2}, s{sC2}, 12",
               f"s_add_u32 s{sX2}, s{sX2}, s{sT1}"]
        it += [f"v_mov_b32 v{ZR+i}, 0" for i in range(4)]
        it += [f"s_min_u32 s{sT0}, s{sW}, 2",
               f"s_mul_i32 s{sT1}, s{sT0}, {XP}",
               f"s_add_u32 s{sT1}, s{sT1}, {L_CX}",
               f"v_add_u32 v{vT}, s{sT1}, v1",
               f"s_mul_i32 s{sT1}, s{sT0}, {KP}",
               f"s_add_u32 s{sT1}, s{sT1}, {L_CK}",
               f"v_add_u32 v{vT2}, s{sT1}, v1",
               f"s_mul_i32 s{sT1}, s{sT0}, {33*16}",
               f"s_add_u32 s{sT1}, s{sT1}, {L_CAR}",
               f"v_mov_b32 v{vPD}, s{sT1}",
               "s_mov_b32 exec_hi, 0",
               f"ds_write_b128 v{vT}, {vr(ZR,4)}",
               f"s_mov_b64 exec, {hex((1 << (KPAD//16)) - 1)}",
               f"ds_write_b128 v{vT2}, {vr(ZR,4)}",
               "s_mov_b64 exec, 1",
               f"ds_write_b128 v{vPD}, {vr(ZR,4)}",
               "s_mov_b64 exec, -1"]
        it += [f"v_lshl_add_u32 v{vT}, v{vH}, 3, v{vR}",
               f"v_lshlrev_b32 v{vT2}, 2, v{vC}",
               f"v_sub_u32 v{vT2}, v{vT2}, v{vT}",
               f"v_lshlrev_b32 v{vT2}, 3, v{vT2}",
               f"s_mul_i32 s{sT0}, s{sT2}, {KP}",
               f"s_add_u32 s{sT0}, s{sT0}, {L_CK + KPAD + 152 - 32}",
               f"v_add_u32 v{vCA}, s{sT0}, v{vT2}"]
        if nch == 3:
            it.append(f"v_add_u32 v{vCA2}, {L_CK + 2*KP + KPAD + 152 - 32}, v{vT2}")
        it += [f"v_add_lshl_u32 v{vT}, v{vT}, v{vC}, 3",
               f"s_mul_i32 s{sT0}, s{sT2}, {XP}",
               f"s_lshl_b32 s{sT1}, s{sT3}, 7",
               f"s_add_u32 s{sT0}, s{sT0}, s{sT1}",
               f"s_add_u32 s{sT0}, s{sT0}, {L_CX + XPAD - 152}",
               f"v_add_u32 v{vCB}, s{sT0}, v{vT}"]
        if nch == 3:
            it += [f"s_lshl_b32 s{sT0}, s{sW}, 7",
                   f"s_add_u32 s{sT0}, s{sT0}, {L_CX + 2*XP + XPAD - 152 - 256}",
                   f"v_add_u32 v{vCB2}, s{sT0}, v{vT}"]
        return it

    def conv_setup2(self, nch):
        it = [f"s_mul_i32 s{sT0}, s{sT2}, {33*16}",
              f"s_lshl4_add_u32 s{sT0}, s{sT3}, s{sT0}",
              f"s_add_u32 s{sT0}, s{sT0}, {L_CAR}",
              f"v_lshlrev_b32 v{vT}, 2, v{vC}",
              f"v_lshl_add_u32 v{vT2}, v{vR}, 5, v{vT}",
              f"v_add_u32 v{vCRR}, s{sT0}, v{vT2}",
              f"s_add_u32 s{sT0}, s{sT0}, {(16 - 48*32) & 0xffffffff}",
              f"v_lshl_add_u32 v{vCRW}, v0, 5, s{sT0}"]
        if nch == 3:
            it += [f"s_lshl_b32 s{sT0}, s{sW}, 4",
                   f"s_add_u32 s{sT0}, s{sT0}, {L_CAR + 2*33*16}",
                   f"v_lshl_add_u32 v{vT2}, v{vR}, 6, v{vT}",
                   f"v_add_u32 v{vCRR2}, s{sT0}, v{vT2}",
                   f"s_add_u32 s{sT0}, s{sT0}, {(16 - 56*64) & 0xffffffff}",
                   f"v_lshl_add_u32 v{vCRW2}, v0, 6, s{sT0}"]
        it += [f"s_mul_i32 s{sT0}, s{sW}, 3072",
               f"s_add_u32 s{sT0}, s{sT0}, {L_ZSTG}",
               f"v_lshl_add_u32 v{vZW}, v0, 1, s{sT0}",
               f"v_add_u32 v{vZR}, s{sT0}, v1",
               f"v_lshl_add_u32 v{vT}, v{vC}, 1, s{sT0}",
               f"v_lshl_add_u32 v{vZF}, v{vR}, 7, v{vT}",
               f"v_lshrrev_b32 v{vT}, 3, v0",
               f"v_and_b32 v{vT2}, 7, v0",
               f"v_lshlrev_b32 v{vT2}, 4, v{vT2}",
               f"v_lshl_add_u32 v{vZS}, v{vT}, 8, v{vT2}",
               f"s_add_u32 s{sT0}, s{sC0}, s{sT2}",
               f"s_lshl_b32 s{sT0}, s{sT0}, 12",
               f"s_lshl_b32 s{sT1}, s{sT3}, 7",
               f"s_add_u32 s{sT0}, s{sT0}, s{sT1}",
               f"s_add_u32 s{sT0}, s{sT0}, {WS_Z}",
               f"v_add_u32 v{vZS}, s{sT0}, v{vZS}"]
        if nch == 3:
            it += [f"v_lshl_add_u32 v{vZS2}, v{vT}, 9, v{vT2}",
                   f"s_lshl_b32 s{sT0}, s{sC2}, 12",
                   f"s_lshl_b32 s{sT1}, s{sW}, 7",
                   f"s_add_u32 s{sT0}, s{sT0}, s{sT1}",
                   f"s_add_u32 s{sT0}, s{sT0}, {WS_Z}",
                   f"v_add_u32 v{vZS2}, s{sT0}, v{vZS2}"]
        if nch == 3:
            it += [f"s_and_b32 s{sT0}, s{sC2}, 1",
                   f"s_lshl_b32 s{sT0}, s{sT0}, 4",
                   f"s_lshr_b32 s30, s30, s{sT0}",
                   f"s_lshl_b32 s30, s30, 16"]
        fsk = self.cfg.get('fsk', 16)
        it += [f"s_lshl_b32 s{sT0}, s{sT2}, 4", f"s_lshr_b32 s28, s28, s{sT0}", f"s_lshl_b32 s28, s28, 16",
               f"s_lshl_b32 s29, s{sW}, 10",
               f"s_lshr_b32 s{sT0}, s{sXQ}, 1",
               f"s_lshl2_add_u32 s{sT0}, s{sT0}, s{sW}",
               f"v_lshl_add_u32 v{vP1}, s{sT0}, 4, v0",
               f"v_mul_u32_u24 v{vP1}, {fsk}, v{vP1}",
               f"v_add_u32 v{vP1}, {WS_FK}, v{vP1}"]
        return it

    def ssm_loads(self, nch):
        return [(f"s_add_u32 m0, s29, {L_CK + KPAD + cs*KP}\nbuffer_load_dwordx4 v1, {srd(S_SSM)}, s{so} offen {self.cfg.get('spol', '')} lds\ns_add_u32 s{so}, s{so}, {WS_KV}", 'kd')
                for cs, so in enumerate((sX0, sX1, sX2)[:nch])]

    def x_loads(self, nch):
        return [(f"s_add_u32 m0, s29, {L_CX + XPAD + cs*XP}\nbuffer_load_dwordx4 v1, {srd(S_WS)}, s{so} offen sc1 lds", 'xd')
                for cs, so in enumerate((sX0, sX1, sX2)[:nch])]

    def dpatch(self, part):
        it = []
        r0 = C20 if part == 2 and self.role == 'A' else CA
        for r, mk in ((r0 + 1, 0x01000001), (r0 + 3, 0x10000010)):
            it += [f"v_and_b32 v{vT2}, 0xffff0000, v{r}", f"v_lshlrev_b32 v{vT}, 16, v{r}",
                   f"v_add_f32 v{vT2}, s{28 if part == 1 else 30}, v{vT2}",
                   f"s_mov_b32 exec_lo, 0\ns_mov_b32 exec_hi, {hex(mk)}\nv_cvt_pk_bf16_f32 v{r}, v{vT}, v{vT2}\ns_mov_b64 exec, -1"]
        return it

    def conv_pre(self, n):
        it = []
        for c in range(n):
            it += self.c_read(1, c)
        return it + self.dpatch(1)

    tiles = [(1, m, m) for m in range(16)] + [(2, n, 2 * n + 1) for n in range(8)]

    def fa(self, part, c, o=0, k=4):
        if part == 2 and self.role == 'A':
            return vr(C20 + o, k) if c == 0 else ar(4 * c + o, k)
        return vr(CA + 4 * c + o, k)

    def fb(self, part, n, o=0, k=4):
        if part == 2 and self.role == 'A':
            return ar(64 + 4 * n + o, k)
        return vr(CB + 4 * (n if part == 1 else 15 - n) + o, k)

    def c_read(self, part, c):
        va, vb = (vCA, vCB) if part == 1 else (vCA2, vCB2)
        return ([f"ds_read_b64_tr_b16 {self.fa(part,c,2*e2,2)}, v{va} offset:{256*c + 32*(1-e2)}" for e2 in range(2)] +
                [f"ds_read_b64_tr_b16 {self.fb(part,c,2*e2,2)}, v{vb} offset:{256*c + 32*e2}" for e2 in range(2)])

    def tile_epi(self, g):
        part, k, m = self.tiles[g]
        d = CACC + 4 * (g % NSL)
        p = CACC + 4 * ((g - 1) % NSL)
        dp = "wave_shr:1 row_mask:0xf bank_mask:0xf bound_ctrl:0"
        it = []
        for j, dst in ((3, d + 2), (2, d + 1), (1, CY + g)):
            it.append(f"v_add_f32_dpp v{dst}, v{d+j}, v{d+j-1} {dp}")
            if k:
                it.append(f"v_mov_b32_dpp v{d+j}, v{p+j} wave_shl:1 row_mask:0xf bank_mask:0xf")
        if g in (15, 23):
            va, mk = (vCRW, '0xffff0000') if g == 15 else (vCRW2, '0xff000000')
            it.append((f"s_mov_b32 exec_lo, 0\ns_mov_b32 exec_hi, {mk}\nds_write_b128 v{va}, {vr(d,4)}\ns_mov_b64 exec, -1", f'carw{part}'))
        return it

    def stage(self, g):
        it = []
        for t in (g, g + 1):
            j = t % 4
            it.append(f"v_mov_b32 v{CH+t//4}, v{CY+t}" if j == 0 else
                      f"v_mov_b32_dpp v{CH+t//4}, v{CY+t} row_shr:{4*j} row_mask:0x1 bank_mask:{hex(1 << j)}")
        return it + [f"v_cvt_pk_bf16_f32 v{CY+g}, v{CY+g}, v{CY+g+1}",
                     f"ds_write_b16 v{vZW}, v{CY+g} offset:{128*g}", f"ds_write_b16_d16_hi v{vZW}, v{CY+g} offset:{128*(g+1)}"]

    def conv_sched(self, nt, cpre, cap, sg0=0):
        mf, first = [], []
        for g, (part, k, m) in enumerate(self.tiles[:nt]):
            d = vr(CACC + 4 * (g % NSL), 4)
            first.append(len(mf))
            mf += [f"v_mfma_f32_16x16x32_bf16 {d}, {self.fa(part,c)}, {self.fb(part,m-c)}, {'0' if c == 0 else d}"
                   for c in range(m + 1)]
        first += [len(mf)] * 8
        S = Sched(mf, cap)
        LEAD = self.cfg.get('lead', 7)
        for g in range(1, nt):
            S.reserve(first[g] - 1)
        for c in range(cpre, 16):
            S.add('rd', self.c_read(1, c), 0, max(first[c] - LEAD, 0))
        if nt > 16 and self.role == 'A':
            r0 = self.cfg.get('r2A', 60)
            for c in range(16):
                S.add('rd2', self.c_read(2, c), r0, min(first[16 + c // 2] - LEAD, r0 + 12 + 7 * c))
            S.add('dp', self.dpatch(2), r0 + 20, first[16] - 2)
        elif nt > 16:
            for c in range(16):
                dl = max(first[16 + c // 2] - LEAD, first[15] + c + 1) if c else first[15] + 4
                S.add('rd', self.c_read(2, c), first[15] + c + 1, dl)
            S.add('dp', self.dpatch(2), first[15] + 8, first[16] - 2)
        self.sgrel = {}
        for g in range(nt - 1):
            dl = min(first[g + NSL - 1] - 1, first[g + 1] + (self.cfg.get('epl', 24) if g < 12 else 8))
            S.add('ep', self.tile_epi(g), first[g + 1] + 2, dl)
            if g & 1:
                self.sgrel[g - 1] = max(dl + 1, sg0)
        self.first = first
        return S

    def z_fix(self, part):
        qs = (0, 2) if part == 1 else (4,)
        va, st = (vCRR, 32) if part == 1 else (vCRR2, 64)
        it = [f"ds_read2_b32 {vr(CR+q,2)}, v{va} offset0:{1+st*(q % 4)} offset1:{1+st*(q % 4 + 1)}" for q in qs]
        for q in qs:
            it += [f"v_add_f32 v{CH+q}, v{CH+q}, v{CR+q}", f"v_add_f32 v{CH+q+1}, v{CH+q+1}, v{CR+q+1}",
                   f"v_cvt_pk_bf16_f32 v{CH+q}, v{CH+q}, v{CH+q+1}",
                   f"s_mov_b64 exec, 0x7777\nds_write_b16 v{vZF}, v{CH+q} offset:{512*q}\nds_write_b16_d16_hi v{vZF}, v{CH+q} offset:{512*(q+1)}\ns_mov_b64 exec, -1",
                   f"ds_read_b128 {vr(ZO+2*q,4)}, v{vZR} offset:{512*q}"]
        if part == 1:
            st = [(f"buffer_store_dwordx4 {vr(ZO,4)}, v{vZS}, {srd(S_WS)}, 0 offen sc1", 'zst1'),
                  (f"buffer_store_dwordx4 {vr(ZO+4,4)}, v{vZS}, {srd(S_WS)}, 0 offen offset:2048 sc1", 'zst1')]
        else:
            st = [(f"buffer_store_dwordx4 {vr(ZO+8,4)}, v{vZS2}, {srd(S_WS)}, 0 offen sc1", 'zst2')]
        return it, st

    def conv_run(self, S, nt, early, flag1=None, mid=((), (), ())):
        a = self.a
        for g in range(0, nt - 2, 2):
            S.add('sg', self.stage(g), self.sgrel[g], None)
            if early and g == 14:
                f1, s1 = self.z_fix(1)
                p = self.cfg.get('pE1', 146)
                S.th['sg'][-1][2] = p - 1
                S.add('sg', [('wait', 'carw1'), "s_barrier"], p, p + 1)
                S.add('sg', f1[:2], p + 1, p + 3)
                e1, e2 = self.cfg.get('e12', [6, 20])
                S.add('sg', f1[2:], p + e1, p + e1 + 10)
                S.add('sg', s1, p + e2, p + e2 + 2)
        f1in = early and self.cfg.get('f1in', 1)
        its = S.items(keep=('sg',))
        wi = self.cfg.get('wi' + self.role, 0)
        if wi:
            keep, n = [], 0
            for x in its:
                t = txt_of(x)
                if t.startswith('v_mfma'):
                    n += 1
                drop = n > wi and (t.startswith(('v_mfma', 'v_add_f32_dpp', 'v_mov_b32_dpp')) or t.startswith('ds_read_b64_tr_b16 v'))
                if not drop:
                    keep.append(x)
            its = keep
        a.run(its)
        self.info['conv'] = (S.over, S.under, len(S.left.get('sg', [])))
        a.run([self.stamp('conv')])
        if f1in:
            a.run([('wait', 'zst1'), flag1])
        a.run(mid[0])
        a.run(merge(S.left.get('sg', []) or ["s_nop 0"], self.tile_epi(nt - 1)))
        a.run(self.stage(nt - 2))
        a.run(mid[1])
        a.wait('carw2' if nt > 16 else 'carw1')
        a("s_barrier")
        parts = [2] if early else ([1, 2] if nt > 16 else [1])
        fs = [self.z_fix(p) for p in parts]
        if early and not f1in:
            a.run(fs[0][0][:1] + [('wait', 'zst1'), flag1] + fs[0][0][1:])
        else:
            a.run([x for f in fs for x in f[0]])
        a.run(mid[2])
        a.run([x for f in fs for x in f[1]])
        a.run([self.stamp('z_st')])

    def finish(self):
        a = self.a
        a.run([self.stamp('end')])
        amp = self.cfg.get('amp')
        if amp and amp[0] == self.role:
            if self.role == 'A':
                a(f"s_cmp_ge_u32 s{sID}, 30")
                a("s_cbranch_scc1 L_end")
            a("s_memrealtime s[100:101]")
            a("s_sub_u32 s98, s98, s96")
            a("s_mul_i32 s98, s98, 20")
            a("s_min_u32 s98, s98, 200000")
            a("s_add_u32 s98, s98, s100")
            a.label("L_amp")
            a("s_memrealtime s[100:101]")
            a("s_sub_u32 s100, s100, s98")
            a("s_cmp_lt_i32 s100, 0")
            a("s_cbranch_scc1 L_amp")
        if self.stamps:
            if not self.cfg.get('nodrain'):
                a.wait_all()
            a("s_memrealtime s[98:99]")
            a(f"v_writelane_b32 v255, s96, 30")
            a(f"v_writelane_b32 v255, s98, 31")
            for k in range(self.npoll):
                a(f"v_readlane_b32 s{sT0}, v254, {k}")
                a(f"v_writelane_b32 v255, s{sT0}, {24+k}")
            a(f"s_lshl2_add_u32 s{sT0}, s2, s{sW}")
            a(f"s_lshl_b32 s{sT0}, s{sT0}, 8")
            a(f"s_add_u32 s{sT0}, s{sT0}, {WS_DBG}")
            a(f"v_lshlrev_b32 v{vT}, 2, v0")
            a(f"buffer_store_dword v255, v{vT}, {srd(S_WS)}, s{sT0} offen")


KERNARG = {f"s{i}" for i in range(36, 68)}


def prog_A(cfg):
    P = Prog('A', cfg)
    a, stamp = P.a, P.stamp
    a.smem_pending = set(KERNARG) | {'s96', 's97'}
    FS1, FSU, FSZ = cfg.get('fs1', 32), cfg.get('fsu', 64), cfg.get('fsz', 32)
    NB, GR = cfg.get('nb', 14), cfg.get('grp', 2)
    sDG, sFT = sA, sB
    KW, HW = cfg.get('kw', 1), cfg.get('hw', 1)
    NC = 3 if cfg.get('third', 'A') == 'A' else 2
    NT = 8*NC
    if cfg.get('cpf', 1) and cfg.get('lay', 'C') != 'C':
        a.run(P.code_prefetch("L_Amain", "L_end"))
    a(f"s_mul_i32 s{sT0}, s{sID}, 52")
    a(f"s_lshr_b32 s{sT0}, s{sT0}, 8")
    a(f"s_mul_i32 s{sT1}, s{sT0}, 5")
    a(f"s_sub_u32 s{sDG}, s{sID}, s{sT1}")
    a(f"s_min_u32 s{sT0}, s{sT0}, 5")
    a(f"s_mul_i32 s{sFT}, s{sXQ}, 6")
    a(f"s_add_u32 s{sFT}, s{sFT}, s{sT0}")
    a(f"s_lshl4_add_u32 s{sT1}, s{sDG}, s{sW}")
    a(f"s_mul_i32 s{sT1}, s{sT1}, 205")
    a(f"s_lshr_b32 s{sT1}, s{sT1}, 10")
    sOWN = 38
    if cfg.get('rkA', 0):
        a(f"s_lshr_b32 s{sCNT}, s{sT0}, 1")
        a(f"s_mul_i32 s{sCNT}, s{sCNT}, {cfg.get('rkA', 0)}")
        a(f"s_add_u32 s{sT1}, s{sT1}, s{sCNT}")
        a(f"s_and_b32 s{sT1}, s{sT1}, 15")
    a(f"s_lshl_b32 s{TK}, s{sT1}, 10")
    a(f"s_add_u32 s{sT1}, s{TK}, 1024")
    a(f"s_and_b32 s{TK+1}, s{sT1}, 0x3c00")
    a(f"s_lshl_b32 s{sRING}, s{sW}, 12")
    a(f"s_mul_i32 s{sT0}, s{sW}, {512*3072}")
    a(f"s_lshl_b32 s{sT1}, s{sFT}, 7")
    a(f"s_add_u32 s{sT0}, s{sT0}, s{sT1}")
    a.run(P.weight_src(3072, sT0))
    a(f"s_mov_b32 s{S_W+2}, 6291456")
    a(f"s_mov_b32 s{S_W+3}, 0x20000")
    P.split0 = len(a.out)
    a(f"s_cmp_ge_u32 s{sID}, 30")
    a(f"s_cselect_b32 s{sSP}, {OOB}, 0")
    a(f"s_mov_b64 {sp(S_W)}, {sp(50)}")
    a("s_cbranch_scc1 L_Amain")
    a.run(P.w_step())
    a.run([stamp('start')])
    a.run(P.w_step())
    a("s_branch L_Amain")
    P.split = len(a.out)
    a.label("L_Amain")
    if cfg.get('lay', 'C') != 'C':
        a.run(P.lanes())
    if cfg.get('hlpA', 1):
        a(f"s_cmp_lt_u32 s{sID}, 30")
        a("s_cbranch_scc1 L_Anh")
        a.begin_cond('hlp')
        a(f"s_lshl1_add_u32 s{sT0}, s{sXQ}, 3")
        a(f"s_and_b32 s{sT0}, s{sT0}, 7")
        a(f"s_min_u32 s{sT0}, s{sT0}, 5")
        a(f"s_lshr_b32 s{sCNT}, s{sT0}, 1")
        a(f"s_mul_i32 s{sCNT}, s{sCNT}, {cfg.get('rkA', 0)}")
        a(f"s_add_u32 s{sCNT}, s{sCNT}, 15")
        a(f"s_mul_i32 s{sT1}, s{sXQ}, 6")
        a(f"s_add_u32 s{sT0}, s{sT0}, s{sT1}")
        a(f"s_lshl_b32 s{sT0}, s{sT0}, 7")
        a(f"s_mul_i32 s{sT1}, s{sW}, {512*3072}")
        a(f"s_add_u32 s{sU0}, s{sT0}, s{sT1}")
        for i in range(2):
            if i == 0:
                a(f"v_lshrrev_b32 v{vT}, 5, v0")
                a(f"v_lshl_add_u32 v{vT}, s{sDG}, 1, v{vT}")
                a(f"v_and_b32 v{vT2}, 31, v0")
            else:
                a(f"v_mov_b32 v{vT}, 4")
                a(f"v_lshl_add_u32 v{vT2}, s{sDG}, 4, v{vI}")
            a(f"v_add_u32 v{vT}, 1, v{vT}")
            a(f"v_lshl_add_u32 v{vT}, v{vT}, 4, s{sW}")
            a(f"v_mul_u32_u24 v{vT}, 205, v{vT}")
            a(f"v_lshrrev_b32 v{vT}, 10, v{vT}")
            a(f"v_add_u32 v{vT}, s{sCNT}, v{vT}")
            a(f"v_and_b32 v{vT}, 15, v{vT}")
            a(f"v_lshl_add_u32 v{vT}, v{vT}, 5, v{vT2}")
            a(f"v_mul_u32_u24 v{vT}, 3072, v{vT}")
            if i:
                a("s_mov_b64 exec, 0xffff")
            a(f"buffer_load_dword v{250+i}, v{vT}, {srd(S_W)}, s{sU0} offen")
        a("s_mov_b64 exec, -1")
        a.end_cond()
        a.label("L_Anh")
    HA = cfg.get('hlpA2', 0)
    if HA:
        a(f"s_lshl1_add_u32 s{sT0}, s{sXQ}, 3")
        a(f"s_and_b32 s{sT0}, s{sT0}, 7")
        a(f"s_mul_i32 s{sT1}, s{sXQ}, 6")
        a(f"s_add_u32 s{sU0}, s{sT0}, s{sT1}")
        a(f"s_sub_u32 s{sT1}, s{sFT}, s{sU0}")
        a(f"s_add_u32 s{sT1}, s{sT1}, 5")
        a(f"s_cmp_ge_u32 s{sT1}, 6")
        a(f"s_cselect_b32 s{sCNT}, 6, 0")
        a(f"s_sub_u32 s{sT1}, s{sT1}, s{sCNT}")
        a(f"s_lshl_b32 s{sU0}, s{sU0}, 7")
        a(f"s_cmp_ge_u32 s{sT1}, 5")
        a(f"s_cselect_b32 s{sU0}, {OOB}, s{sU0}")
        a(f"s_cmp_ge_u32 s{sT0}, 6")
        a(f"s_cselect_b32 s{sU0}, {OOB}, s{sU0}")
        a(f"s_or_b32 s{sU0}, s{sU0}, s{sSP}")
        a(f"s_lshr_b32 s{sT0}, s{sT0}, 1")
        a(f"s_mul_i32 s{sT0}, s{sT0}, {cfg.get('rkA', 0)}")
        a(f"s_add_u32 s{sCNT}, s{sDG}, 1")
        a(f"s_lshl4_add_u32 s{sCNT}, s{sCNT}, s{sW}")
        a(f"s_mul_i32 s{sCNT}, s{sCNT}, 205")
        a(f"s_lshr_b32 s{sCNT}, s{sCNT}, 10")
        a(f"s_add_u32 s{sT0}, s{sT0}, s{sCNT}")
        a(f"s_add_u32 s{sT0}, s{sT0}, 14")
        a(f"s_and_b32 s{sT0}, s{sT0}, 15")
        a(f"s_lshl4_add_u32 s{sT0}, s{sW}, s{sT0}")
        a(f"s_lshl_b32 s{sT0}, s{sT0}, 5")
        a(f"s_mul_i32 s{sT1}, s{sT1}, {HA}")
        a(f"s_add_u32 s{sT0}, s{sT0}, s{sT1}")
        a(f"s_add_u32 s{sT0}, s{sT0}, {32 - 5*HA}")
        a(f"v_add_u32 v{vT}, s{sT0}, v0")
        a(f"v_mul_u32_u24 v{vT}, 3072, v{vT}")
        a(f"s_mov_b64 exec, {hex((1 << HA) - 1)}")
        a(f"buffer_load_dword v249, v{vT}, {srd(S_W)}, s{sU0} offen")
        a("s_mov_b64 exec, -1")
    for (s, n) in ((S_WS, WS_SIZE), (S_SSM, 2621440)):
        a(f"s_mov_b32 s{s+2}, {n}")
        a(f"s_mov_b32 s{s+3}, 0x20000")
    for j in range(2, 16):
        a(f"s_add_u32 s{sT1}, s{TK+j-1}, 1024")
        a(f"s_and_b32 s{TK+j}, s{sT1}, 0x3c00")
    a(f"s_add_u32 s{S_WS}, s66, {cfg.get('wso', 0) << 20}")
    a(f"s_addc_u32 s{S_WS+1}, s67, 0")
    a(f"s_mov_b64 {sp(S_SSM)}, {sp(44)}")
    a.run(P.weight_dst(False))
    a.run(P.zflag_addr(sFJ, 128))
    a.run(P.conv_setup(NC))
    vHL, vRW, vRR, vUS, vEP, vX0 = 10, 44, 47, 48, 49, 50
    BL = 54
    g1set = [f"s_mul_i32 s{sOWN}, s{sFT}, {cfg.get('roA', 0)}", f"s_add_u32 s{sOWN}, s{sOWN}, s{sW}", f"s_and_b32 s{sOWN}, s{sOWN}, 3",
             f"s_lshl_b32 s{sCNT}, s{sDG}, 18", f"s_lshl_b32 s{sT1}, s{sW}, 14", f"s_add_u32 s{sCNT}, s{sCNT}, s{sT1}",
             f"s_add_u32 s{sCNT}, s{sCNT}, s{sSP}"]
    for i in range(4):
        g1set += [f"s_add_u32 s{sT0}, s{sOWN}, {i+1}",
                  f"s_and_b32 s{sT0}, s{sT0}, 3",
                  f"s_mul_i32 s{sT1}, s{sT0}, 12288",
                  f"s_add_u32 s{sT1}, s{sT1}, {L_RED + (i*4096 if i < 3 else 0)}",
                  f"v_add_u32 v{vRW+i}, s{sT1}, v1",
                  f"s_lshl_b32 s{sT0}, s{sT0}, 16",
                  f"s_add_u32 s{sT0}, s{sT0}, s{sCNT}",
                  f"v_add_u32 v{vHL+i}, s{sT0}, v1",
                  f"v_add_u32 v{vHL+4+i}, {20*65536}, v{vHL+i}"]
    g1set += [f"v_lshl_add_u32 v{vP0}, s{sW}, 5, v0",
              f"v_mul_u32_u24 v{vP0}, {FS1}, v{vP0}",
              f"v_add_u32 v{vP0}, {WS_F1}, v{vP0}",
              f"s_lshl_b32 s{sT0}, s{sFT}, 7",
              f"v_lshl_add_u32 v{vX0}, v{vH}, 3, s{sT0}",
              f"s_lshl2_add_u32 s{sT0}, s{sDG}, s{sOWN}",
              f"s_mul_i32 s{sFI}, s{sT0}, 24",
              f"s_add_u32 s{sFI}, s{sFI}, s{sFT}",
              f"s_mul_i32 s{sFI}, s{sFI}, {FSU}",
              f"s_add_u32 s{sFI}, s{sFI}, {WS_FU}",
              f"s_add_u32 s{sFI}, s{sFI}, s{sSP}",
              f"s_mul_i32 s{sT0}, s{sT0}, 48",
              f"s_lshl1_add_u32 s{sT0}, s{sFT}, s{sT0}",
              f"s_lshl_b32 s{sT0}, s{sT0}, 10",
              f"s_add_u32 s{sT0}, s{sT0}, {WS_U}",
              f"s_add_u32 s{sT0}, s{sT0}, s{sSP}",
              f"v_add_u32 v{vUS}, s{sT0}, v1",
              f"s_mov_b32 s{sU2}, 0xbdd2d3e8",
              f"s_mov_b32 s{sU3}, {20*48*1024}",
              f"v_mov_b32 v52, 0xc0135761"]
    a.run(g1set)
    a.run(P.conv_setup2(NC))
    a.run(P.epoch_load(vEP))
    for t in range(4):
        a(f"global_load_dwordx2 {vr(BL+2*t,2)}, v{vX0}, {sp(P_B1)} offset:{32*t}")
    a(f"s_cmp_ge_u32 s{sID}, 30")
    a("s_cbranch_scc1 L_Aspare")
    a.run(P.w_step())
    a.run(P.w_step())
    BI, RD, PD4 = 112, 144, 248
    bun = []
    for t in range(8):
        bun += [f"v_lshlrev_b32 v{BI+2*t}, 16, v{BL+t}", f"v_and_b32 v{BI+2*t+1}, 0xffff0000, v{BL+t}"]
    PA = cfg.get('pollA', 14)
    while P.nxt < 16:
        if P.nxt == 8:
            a.run(P.set_tag(vEP))
            a.run(bun)
        a.run([stamp(f'w{P.nxt}')])
        it = P.w_step()
        if P.nxt - 1 == PA:
            it.insert(9, P.poll_issue(vP0, 32, 1, PD4))
        a.run(it)
    while P.drn < PA:
        a.run(P.w_step())
    a.run([P.poll_check('f1', vP0, 32, 1, PD4), stamp('f1_ok')])
    BUFS = ([64 + 4*i for i in range(8)] + [128 + 4*i for i in range(4)] + [228 + 4*i for i in range(5)] + [208 + 4*i for i in range(3)])[:NB]

    def h_load(n):
        i, j = divmod(n, 16)
        return f"buffer_load_dwordx4 {vr(BUFS[n % NB],4)}, v{vHL+i}, {srd(S_WS)}, s{TK+j} offen {cfg.get('apol', 'sc1')}"
    hn = 0
    HE = cfg.get('hearly', 8)
    left = 16 - P.drn
    while P.drn < 16:
        for _ in range(HE // left):
            a(h_load(hn)); hn += 1
        a.run(P.w_step())
    ACC = (96, 192)
    Z, G0, UO = ACC[1], 160, 220
    for r in range(2):
        mf, pos = [], {}
        for q in range(64 // GR):
            for t in range(4):
                for n in range(q * GR, (q + 1) * GR):
                    i, j = divmod(n, 16)
                    d = vr(ACC[i & 1] + 4 * t, 4)
                    pos.setdefault(n, len(mf))
                    c = d if j else ('0' if i < 3 else vr(BI + 4 * t, 4))
                    mf.append(f"v_mfma_f32_16x16x32_bf16 {d}, {ar(16*j+4*t,4)}, {vr(BUFS[(64*r + n) % NB],4)}, {c}")
        S = Sched(mf)
        for n in range(64):
            S.reserve(pos[n] - 1)
        k = 0
        while hn < 128:
            n = hn - 64 * r
            free = 4 * GR * ((n - NB) // GR + 1) if n >= NB else 0
            p = max(free, 4 * (n - NB + GR) + 1, 2 * k)
            if p > 255:
                break
            S.add('h', [h_load(hn)], p, p)
            hn += 1
            k += 1
        S.add('st', [stamp(f'g1first{r}')], 0, 0)
        lasth = p if r else 0
        if r == 0 and cfg.get('h2', 1):
            W2 = 4 if cfg.get('hl', 0) else 1
            p2 = cfg.get('pH2', 120 if W2 == 4 else 40)
            pc = max(150, p2 + 64)
            S.add('f2', [f"v_lshl_add_u32 v{vP0}, s{sW}, 5, v0", f"v_lshlrev_b32 v{vP0}, 4, v{vP0}", f"v_add_u32 v{vP0}, {WS_F1 + 0x4000}, v{vP0}",
                         P.poll_issue(vP0, 32, W2, PD4)], p2 - 4, p2)
            S.add('f2', [P.poll_check('f2', vP0, 32, W2, PD4)], pc, pc + 2)
            assert 4 * (64 - NB + GR) + 1 > pc + 3 and pc + 3 < 192 + cfg.get('pR', 15)
        for i in range(3):
            S.add('red', [(f"ds_write_b128 v{vRW+i}, {vr(ACC[i & 1]+4*t,4)} offset:{t*1024}", f'redw{r}{i}') for t in range(4)],
                  64 * (i + 1) + 1, 64 * (i + 1) + 13, pace=4 if i < 2 else 3)
        pR = 192 + cfg.get('pR', 15)
        S.add('red', [('wait', f'redw{r}2'), "s_barrier"], pR, pR + 1)
        S.add('red', [f"ds_read_b128 {vr(RD+4*k,4)}, v{vRR} offset:{k*1024}" for k in range(12)], pR + 2, pR + 16)
        S.add('add', [f"v_add_f32 v{RD+k}, v{RD+k}, v{RD+16+k}" for k in range(16)] +
                     [f"v_add_f32 v{RD+k}, v{RD+k}, v{RD+32+k}" for k in range(16)], pR + 17, 255)
        if r == 1:
            S.add('set', [f"v_subrev_u32 v{vRW+i}, {L_RED}, v{vRW+i}" for i in range(4)], 2, 30)
            pD = cfg.get('pD0', 40)
            S.add('fl', [('wait', 'ust0'), stamp('barD0'), P.flag(sFI), f"s_add_u32 s{sFI}, s{sFI}, {20*24*FSU}"], pD, pD + 1)
            S.add('fl', [P.poll_check('fk', vP1, 16, KW, PD4), stamp('fk_ok')], 150, 152)
            for i, x in enumerate(P.ssm_loads(NC) + P.x_loads(NC)):
                S.add('h', [x], lasth + 4 * (i + 1), lasth + 4 * (i + 1))
        a.run(S.items())
        P.info[f'g1{r}'] = (S.over, S.under)
        a.run([stamp(f'g1mfma{r}')])
        side = []
        if r == 0:
            while hn < 64 + NB:
                side.append(h_load(hn)); hn += 1
            a.run(side)
        for t in range(8):
            a(f"v_pk_add_f32 {vr(Z+2*t,2)}, {vr(Z+2*t,2)}, {vr(RD+2*t,2)}")
        for t in range(8):
            a(f"v_pk_mul_f32 {vr(G0+2*t,2)}, {vr(Z+2*t,2)}, {vr(Z+2*t,2)}")
        for t in range(8):
            a(f"v_pk_fma_f32 {vr(G0+2*t,2)}, {vr(G0+2*t,2)}, {sp(sU2)}, v[52:53] op_sel_hi:[1,0,0]")
        for t in range(8):
            a(f"v_pk_mul_f32 {vr(G0+2*t,2)}, {vr(G0+2*t,2)}, {vr(Z+2*t,2)}")
        for t in range(16):
            a(f"v_exp_f32 v{G0+t}, v{G0+t}")
        for t in range(8):
            a(f"v_pk_add_f32 {vr(G0+2*t,2)}, {vr(G0+2*t,2)}, 1.0 op_sel_hi:[1,0]")
        for t in range(16):
            a(f"v_rcp_f32 v{G0+t}, v{G0+t}")
        for t in range(8):
            a(f"v_pk_mul_f32 {vr(G0+2*t,2)}, {vr(G0+2*t,2)}, {vr(Z+2*t,2)}")
        for t in range(8):
            a(f"v_cvt_pk_bf16_f32 v{UO+t}, v{G0+2*t}, v{G0+2*t+1}")
        for half in range(2):
            a(f"buffer_store_dwordx4 {vr(UO+4*half,4)}, v{vUS}, {srd(S_WS)}, {'0' if r == 0 else f's{sU3}'} offen offset:{1024*half} sc1", tok=f'ust{r}')
        if r == 0:
            a(P.poll_issue(vP1, 16, KW, PD4))
        a.run([stamp(f'ust{r}')])
    a.label("L_Ajoin")
    a.wait('xd')
    a("s_barrier")
    CPA = cfg.get('cpreA', 4)
    a.run(P.conv_pre(CPA))
    S = P.conv_sched(NT, CPA, 2)
    pD = cfg.get('pD1', 30)
    S.add('fl', [('wait', 'ust1'), stamp('barD1'), P.flag(sFI)], pD, pD + 1)
    Z2 = NC == 3 and cfg.get('z2', 1)
    P.conv_run(S, NT, Z2, P.flag(sFJ))
    if Z2:
        a(f"s_add_u32 s{sFJ}, s{sJ}, 128")
        a(f"s_mul_i32 s{sFJ}, s{sFJ}, {FSZ}")
        a(f"s_lshl2_add_u32 s{sFJ}, s{sW}, s{sFJ}")
        a(f"s_add_u32 s{sFJ}, s{sFJ}, {WS_FZ + 16}")
    a.wait('zst2' if NC == 3 else 'zst1')
    a(P.flag(sFJ))
    if cfg.get('diagclean'):
        a(f"s_cmp_ge_u32 s{sID}, 20")
        a("s_cbranch_scc1 L_ncl")
        a(f"s_mul_i32 s{sT0}, s{sXQ}, 20")
        a(f"s_add_u32 s{sT0}, s{sT0}, s{sID}")
        a(f"s_lshl2_add_u32 s{sT0}, s{sT0}, s{sW}")
        a(f"s_lshl_b32 s{sT0}, s{sT0}, 13")
        a(f"v_lshlrev_b32 v{vT}, 7, v0")
        a(f"buffer_store_dword v0, v{vT}, {srd(S_WS)}, s{sT0} offen sc1")
        a(f"buffer_store_dword v0, v{vT}, {srd(S_WS)}, s{sT0} offen offset:64 sc1")
        a.label("L_ncl")
    a(f"s_cmp_lg_u32 s{sJ}, 31")
    a("s_cbranch_scc1 L_Adone")
    st, P.stamps = P.stamps, False
    a(f"v_lshl_add_u32 v{vP0}, s{sW}, 5, v0")
    a(f"v_mul_u32_u24 v{vP0}, {cfg.get('fsk', 16)}, v{vP0}")
    a(f"v_add_u32 v{vP0}, {WS_FK}, v{vP0}")
    a(P.poll_issue(vP0, 32, KW, PD4))
    a.run([P.poll_check('e0', vP0, 32, KW, PD4)])
    for k in range(2):
        a(f"s_mul_i32 s{sT0}, s{sW}, 120")
        a(f"s_add_u32 s{sT0}, s{sT0}, {60*k}")
        a(f"v_add_u32 v{vP0}, s{sT0}, v0")
        a(f"v_mul_u32_u24 v{vP0}, {FSU}, v{vP0}")
        a(f"v_add_u32 v{vP0}, {WS_FU}, v{vP0}")
        a(P.poll_issue(vP0, 60))
        a.run([P.poll_check(f'e{k+1}', vP0, 60)])
    a(f"v_lshl_add_u32 v{vP0}, s{sW}, 5, v0")
    a(f"v_mul_u32_u24 v{vP0}, {FSZ}, v{vP0}")
    a(f"v_add_u32 v{vP0}, {WS_FZ + 158*FSZ}, v{vP0}")
    a(P.poll_issue(vP0, 2, 4, PD4))
    a.run([P.poll_check('e3', vP0, 2, 4, PD4)])
    P.stamps = st
    a("s_barrier")
    a(f"s_mov_b32 s{sT0}, {WS_EP}")
    a(P.flag(sT0))
    a.label("L_Adone")
    P.finish()
    a("s_endpgm")
    b = Asm()
    P.a, st, P.stamps = b, P.stamps, False
    b.label("L_Aspare")
    b(f"s_mul_i32 s{sT0}, s{sXQ}, 160")
    b(f"s_mul_i32 s{sT1}, s{sDG}, {16*NC}")
    b(f"s_add_u32 s{sT0}, s{sT0}, s{sT1}")
    b(f"s_add_u32 s{sT0}, s{sT0}, 64")
    b(f"v_lshrrev_b32 v{vT}, 3, v0")
    b(f"v_add_lshl_u32 v{vT}, s{sT0}, v{vT}, 12")
    b(f"v_and_b32 v{vT2}, 7, v0")
    b(f"v_lshl_add_u32 v{vT2}, s{sW}, 3, v{vT2}")
    b(f"v_lshl_add_u32 v{vT}, v{vT2}, 7, v{vT}")
    b("s_waitcnt vmcnt(0)")
    b.run(P.set_tag(vEP))
    for i in range(2 * NC if cfg.get('spf', 1) else 0):
        b(f"s_mov_b32 s{sT0}, {i*8*4096}")
        b(f"buffer_load_dword v{64+i}, v{vT}, {srd(S_SSM)}, s{sT0} offen")
    b.run(P.ssm_loads(NC))
    b(P.poll_issue(vP1, 16, KW, PD4))
    b.run([P.poll_check('fs', vP1, 16, KW, PD4)])
    for i in range(2 * NC if cfg.get('xpf', 0) else 0):
        b(f"s_mov_b32 s{sT0}, {WS_KV + i*8*4096}")
        b(f"buffer_load_dword v{vPD}, v{vT}, {srd(S_WS)}, s{sT0} offen sc1") if False else b.raw(f"    buffer_load_dword v{vPD}, v{vT}, {srd(S_WS)}, s{sT0} offen sc1")
    b.run(P.x_loads(NC))
    b("s_waitcnt vmcnt(0) lgkmcnt(0)")
    b("s_branch L_Ajoin")
    a.out += b.out
    P.a, P.stamps = a, st
    return P


def prog_B(cfg):
    P = Prog('B', cfg)
    a, stamp = P.a, P.stamp
    a.smem_pending = set(KERNARG) | {'s96', 's97'}
    FS1, FSU, FSZ, FSK = cfg.get('fs1', 32), cfg.get('fsu', 64), cfg.get('fsz', 32), cfg.get('fsk', 16)
    sDT, sST = sA, sB
    KW, HW = cfg.get('kw', 1), cfg.get('hw', 1)
    NC = 3 if cfg.get('third', 'A') == 'B' else 2
    NT = 8*NC
    NMF = 136 if NC == 2 else 208
    a.label("L_B")
    if cfg.get('cpf', 1) and cfg.get('lay', 'C') != 'C':
        a.run(P.code_prefetch("L_pcB", "L_Amain"))
    a.run(P.lanes())
    XR, GR = 160, 180
    vQ, vG, vEP = 200, 201, 202
    a(f"s_lshr_b32 s{sT0}, s{sJ}, 1")
    a(f"s_lshl_b32 s{sT0}, s{sT0}, 5")
    a(f"s_and_b32 s{sT1}, s{sJ}, 1")
    a(f"s_lshl3_add_u32 s{sCNT}, s{sT1}, s{sT0}")
    a(f"s_lshl2_add_u32 s{sCNT}, s{sT2}, s{sCNT}")
    a(f"s_lshl4_add_u32 s{sCNT}, s{sT3}, s{sCNT}")
    a(f"v_add_u32 v{vQ}, s{sCNT}, v{vH}")
    a(f"v_mul_u32_u24 v{vQ}, 1280, v{vQ}")
    a(f"v_lshlrev_b32 v{vG}, 4, v{vI}")
    a(f"v_add_u32 v{vQ}, v{vQ}, v{vG}")
    def kvset():
        a(f"s_lshl3_add_u32 s{sU0}, s{sW}, s{sT0}")
        a(f"s_mul_i32 s{sU0}, s{sU0}, 1280")
        a(f"s_mul_i32 s{sU1}, s{sT1}, 640")
        a(f"s_add_u32 s{sU0}, s{sU0}, s{sU1}")
        a(f"v_add_u32 v{vKV}, s{sU0}, v1")
        a(f"s_mul_i32 s{sU0}, s{sW}, {(-7*1280) & 0xffffffff}")
        a(f"s_sub_u32 s{sU0}, s{sU0}, {4*1280}")
        a(f"v_add_u32 v{vKH}, s{sU0}, v{vKV}")
        a(f"s_mul_i32 s{sKL}, s{sW}, {8*PK + 32}")
        for (s, n) in ((S_K, 2621440), (S_V, 2621440), (S_WS, WS_SIZE), (S_W, 6291456), (S_SSM, 2621440)):
            a(f"s_mov_b32 s{s+2}, {n}")
            a(f"s_mov_b32 s{s+3}, 0x20000")
        a(f"s_lshl2_add_u32 s{sU0}, s{sT1}, s{sW}")
        a(f"s_mul_i32 s{sU0}, s{sU0}, 80")
        a(f"v_add_u32 v{vCH}, s{sU0}, v{vI}")
        a(f"v_lshlrev_b32 v{vS0}, 3, v{vCH}")
    vKV, vKH, vCH, vS0 = 60, 61, 62, 63
    sKL = sFI
    if not cfg.get('qfirst', 1):
        kvset()
    P.split0 = len(a.out)
    for i in range(5):
        a(f"global_load_dwordx4 {vr(XR+4*i,4)}, v{vQ}, {sp(P_Q)} offset:{256*i}")
    a.run([stamp('start')])
    if cfg.get('qfirst', 1):
        kvset()
    for (s, p) in ((S_K, 38), (S_V, 40), (S_W, 56), (S_SSM, 44)):
        a(f"s_mov_b64 {sp(s)}, {sp(p)}")
    a(f"s_add_u32 s{S_WS}, s66, {cfg.get('wso', 0) << 20}")
    a(f"s_addc_u32 s{S_WS+1}, s67, 0")
    vHS = 48
    a(f"s_lshl1_add_u32 s{sT0}, s{sJ}, s{sT3}")
    a(f"s_lshl_b32 s{sT0}, s{sT0}, 8")
    a(f"s_lshl_b32 s{sT1}, s{sT2}, 16")
    a(f"s_add_u32 s{sT0}, s{sT0}, s{sT1}")
    a(f"v_mul_u32_u24 v{vHS}, {5*65536}, v{vH}")
    a(f"v_lshl_add_u32 v{vHS}, v{vI}, 4, v{vHS}")
    a(f"v_add_u32 v{vHS}, s{sT0}, v{vHS}")
    a(f"s_mul_i32 s52, s{sT2}, {19*65536}")
    a(f"s_add_u32 s52, s52, {4*65536}")
    a(f"s_mov_b32 s53, {20*65536}")
    a(f"s_mov_b32 s64, {22*65536}")
    a(f"s_mov_b32 s81, {2*65536}")

    def claim():
        a(f"s_mov_b32 exec_lo, {cfg.get('clm', '0x01010101')}")
        a(f"s_mov_b32 exec_hi, {cfg.get('clm', '0x01010101')}")
        for so in ("0", "s81", "s52", "s53", "s64")[:cfg.get('ncl', 5)]:
            a(f"buffer_store_dword v0, v{vHS}, {srd(S_WS)}, {so} offen sc1", tok='claim')
        a("s_mov_b64 exec, -1")
    CL = cfg.get('claim', 0)
    if CL == 1:
        claim()
    a.run(P.epoch_load(vEP))

    def kv_dma(which, i):
        if which == 'h':
            return [f"s_mul_i32 s{sU0}, s{sW}, {PK}", f"s_add_u32 m0, s{sU0}, {L_KI}", "s_mov_b32 exec_hi, 0xff",
                    f"buffer_load_dwordx4 v{vKH}, {srd(S_K)}, 0 offen {cfg.get('kpol', '')} lds", "s_mov_b32 exec_hi, -1"]
        base = L_KI + (4 + i) * PK + (32 if i >= 4 else 0) if which == 'k' else L_VI + i * PK
        return [f"s_add_u32 m0, s{sKL}, {base}", f"s_mov_b32 s{sU0}, {i*1280}", "s_mov_b32 exec_hi, 0xff",
                (f"buffer_load_dwordx4 v{vKV}, {srd(S_K if which == 'k' else S_V)}, s{sU0} offen {cfg.get('kpol', '')} lds", 'kvdma'), "s_mov_b32 exec_hi, -1"]

    def kv_batch(lst):
        it = []
        for (wh, i) in lst:
            x = kv_dma(wh, i)
            if it:
                it.pop()
                x.remove("s_mov_b32 exec_hi, 0xff")
            it += x
        return it
    kvq = [('h', 0)] + [('k', i) for i in range(8)] + [('v', i) for i in range(8)]
    a(f"s_and_b32 s{sDT}, s{sID}, 3")
    a(f"s_lshr_b32 s{sT0}, s{sID}, 2")
    a(f"s_lshl3_add_u32 s{sST}, s{sXQ}, s{sT0}")
    vLW, vA1, vHS, vGS, vKVA, vKVS, vGV = 44, 46, 48, 49, 50, 51, 58
    a(f"v_lshl_add_u32 v{vT}, s{sW}, 2, v{vH}")
    a(f"s_lshl_b32 s{sT0}, s{sJ}, 4")
    a(f"v_add_lshl_u32 v{vGS}, s{sT0}, v{vT}, 2")
    a(f"v_add_u32 v{vGS}, {WS_G}, v{vGS}")
    a(f"v_mul_u32_u24 v{vT}, {PL}, v{vT}")
    a(f"v_add_u32 v{vT}, {L_LN}, v{vT}")
    a(f"v_add_u32 v{vLW}, v{vT}, v{vG}")
    a(f"v_mul_u32_u24 v{vT}, {PL}, v{vR}")
    a(f"v_mul_u32_u24 v{vT2}, 320, v{vH}")
    a(f"s_mul_i32 s{sT0}, s{sT3}, {8*PL}")
    a(f"s_lshl3_add_u32 s{sT0}, s{sT2}, s{sT0}")
    a(f"s_add_u32 s{sT0}, s{sT0}, {L_LN}")
    a(f"v_add3_u32 v{vT}, v{vT}, v{vT2}, s{sT0}")
    a(f"v_lshl_add_u32 v{vA1}, v{vC}, 4, v{vT}")
    a(f"v_mul_u32_u24 v{vT}, {8*PK + 32}, v{vH}")
    a(f"v_mul_u32_u24 v{vT2}, {PK}, v{vR}")
    a(f"s_mul_i32 s{sT0}, s{sW}, 160")
    a(f"s_add_u32 s{sT0}, s{sT0}, {L_KI}")
    a(f"v_add3_u32 v{vT}, v{vT}, v{vT2}, s{sT0}")
    a(f"v_lshl_add_u32 v{vKVA}, v{vC}, 3, v{vT}")
    a(f"v_lshlrev_b32 v{vKVS}, 12, v{vCH}")
    a(f"v_lshl_add_u32 v{vKVS}, v{vH}, 4, v{vKVS}")
    a(f"s_lshr_b32 s{sT0}, s{sJ}, 1")
    a(f"s_lshl_b32 s{sT1}, s{sT0}, 6")
    a(f"s_add_u32 s{sT1}, s{sT1}, {WS_KV}")
    a(f"v_add_u32 v{vKVS}, s{sT1}, v{vKVS}")
    a(f"s_and_b32 s{sT1}, s{sJ}, 1")
    a(f"s_lshl_b32 s{sT1}, s{sT1}, 6")
    a(f"s_add_u32 s{sFJ}, s{sT0}, s{sT1}")
    a(f"s_mul_i32 s{sFJ}, s{sFJ}, {FSK}")
    a(f"s_lshl2_add_u32 s{sFJ}, s{sW}, s{sFJ}")
    a(f"s_add_u32 s{sFJ}, s{sFJ}, {WS_FK}")
    a(f"s_mul_i32 s{sU3}, s{sJ}, {FS1}")
    a(f"s_add_u32 s{sU3}, s{sU3}, {WS_F1}")
    for k in range(1, 5):
        a(f"s_mov_b32 s{79+k}, {k*65536}")
    for i in range(5):
        a(f"global_load_dwordx4 {vr(GR+4*i,4)}, v{vG}, {sp(P_GW)} offset:{256*i}")
    nq = cfg.get('kvq0', 6)
    if nq:
        a.run(kv_batch(kvq[:nq])); kvq = kvq[nq:]
    if CL == 2:
        claim()
    if cfg.get('ptouch'):
        a(f"v_lshlrev_b32 v{vT}, {cfg['ptouch']}, v0")
        a(f"s_lshl_b32 s{sT0}, s{sJ}, 9")
        a(P.setexec(min(64, (5 << 20) >> cfg['ptouch'])) if (5 << 20) >> cfg['ptouch'] < 64 else "s_nop 0")
        a(f"buffer_load_dword v251, v{vT}, {srd(S_WS)}, s{sT0} offen")
        a("s_mov_b64 exec, -1")
    a.run([stamp('iss2')])

    S1, S2, vRS, vNM, XF = 64, 65, 66, 68, 72
    DP = ("quad_perm:[1,0,3,2]", "quad_perm:[2,3,0,1]", "row_half_mirror", "row_mirror")
    unp = []
    for i in range(20):
        unp += [f"v_lshlrev_b32 v{XF+2*i}, 16, v{XR+i}", f"v_and_b32 v{XF+2*i+1}, 0xffff0000, v{XR+i}"]
    ln = [f"s_mov_b32 s{sU2}, 0x3f803f80"]
    for i in range(20):
        c = lambda r: "0" if i == 0 else f"v{r}"
        ln += [f"v_dot2_f32_bf16 v{S1}, v{XR+i}, s{sU2}, {c(S1)}", f"v_dot2_f32_bf16 v{S2}, v{XR+i}, v{XR+i}, {c(S2)}"]
    inv = 0x3ACCCCCD
    red = []
    for m in DP:
        red += [f"v_add_f32_dpp v{x}, v{x}, v{x} {m} row_mask:0xf bank_mask:0xf" for x in (S1, S2)]
    red += [f"v_mul_f32 v{S1}, {hex(inv)}, v{S1}",
            f"v_mul_f32 v{S2}, {hex(inv)}, v{S2}",
            f"v_fma_f32 v{S2}, -v{S1}, v{S1}, v{S2}",
            f"v_max_f32 v{S2}, 0, v{S2}",
            f"v_add_f32 v{S2}, 0x3727c5ac, v{S2}",
            f"v_rsq_f32 v{vRS}, v{S2}",
            f"v_mul_f32_e64 v{vNM}, -v{S1}, v{vRS}"]
    ln += unp[:3] + merge(red, unp[3:])
    HP = 112
    for i in range(5):
        ln += [f"v_pk_fma_f32 {vr(XF+2*k,2)}, {vr(XF+2*k,2)}, {vr(vRS,2)}, {vr(vNM,2)} op_sel_hi:[1,0,0]" for k in range(4*i, 4*i+4)]
        ln += [f"v_cvt_pk_bf16_f32 v{HP+k}, v{XF+2*k}, v{XF+2*k+1}" for k in range(4*i, 4*i+4)]
        ln.append((f"ds_write_b128 v{vLW}, {vr(HP+4*i,4)} offset:{256*i}", 'lnw'))
    gate = [f"v_dot2_f32_bf16 v{vGV}, v{XR+i}, v{GR+i}, {'0' if i == 0 else f'v{vGV}'}" for i in range(20)]
    gate += [f"v_add_f32_dpp v{vGV}, v{vGV}, v{vGV} {m} row_mask:0xf bank_mask:0xf" for m in DP]
    gate += [f"v_mul_f32 v{vGV}, 0xbfb8aa3b, v{vGV}", f"v_exp_f32 v{vGV}, v{vGV}", f"v_add_f32 v{vGV}, 1.0, v{vGV}", f"v_rcp_f32 v{vGV}, v{vGV}",
             "s_mov_b32 exec_lo, 0x10001", "s_mov_b32 exec_hi, 0x10001",
             (f"buffer_store_dword v{vGV}, v{vGS}, {srd(S_WS)}, 0 offen sc1", 'hst2'), "s_mov_b64 exec, -1"]
    a.run(ln[:41])
    a.run([stamp('q_in')])
    nq = cfg.get('kvq1', 4)
    if nq:
        a.run(kv_batch(kvq[:nq])); kvq = kvq[nq:]
    a.run(ln[41:])
    a.wait('lnw')
    a("s_barrier")
    a.run([stamp('barL')])
    HB = 64
    H2 = cfg.get('h2', 1)
    HL = cfg.get('hl', 0) if H2 else 0
    HBR = (64, 68, 72, 208, 212) if HL else (64, 68, 72, 76, 80)
    for u, off in enumerate((0, 64, 256, 128, 192)):
        for e2 in range(2):
            a(f"ds_read_b64_tr_b16 {vr(HBR[u]+2*e2,2)}, v{vA1} offset:{off + e2*4*PL}")
    if CL:
        a.wait('claim')
    if cfg.get('dummyst') is not None:
        a(f"s_mov_b32 s{S_WS+2}, 0x4000000")
        a(f"v_add_u32 v{vT}, {cfg['dummyst']}, v{vHS}")
        for u, so in enumerate(("0", "s81", "s52", "s53", "s64")):
            if u in cfg.get('dun', range(5)):
                a(f"buffer_store_dwordx4 {vr(HB+4*u,4)}, v{vT}, {srd(S_WS)}, {so} offen {cfg.get('dpol', 'sc1')}", tok='dum')
        a.wait('dum')
        a.run([stamp('dum')])
    hst = [(f"buffer_store_dwordx4 {vr(HBR[u],4)}, v{vHS}, {srd(S_WS)}, {so} offen sc1", 'hst' if u < 3 or not H2 else 'hst3')
           for u, so in enumerate(("0", "s81", "s52", "s53", "s64"))]
    a.run(hst[:3] if HL else hst)
    a.run([stamp('h_iss')])
    a.run(gate)
    a.run(P.set_tag(vEP))
    vQO, vQO2, vGA, vX1, vQO1 = 36, 41, 253, 250, 15
    QR, vGG, vB2 = 44, 16, 17

    def bigset():
        a(f"s_bfe_u32 s{sT0}, s{sST}, 0x10001")
        a(f"s_mul_i32 s{sT0}, s{sT0}, {cfg.get('rkB', 0)}")
        a(f"s_add_u32 s{sT0}, s{sT0}, s{sDT}")
        a(f"s_and_b32 s{sT0}, s{sT0}, 3")
        a(f"s_mul_i32 s{TK}, s{sT0}, 3072")
        a(f"s_and_b32 s{sSP}, s{sST}, {cfg.get('swB', 1)}")
        for j in range(1, 12):
            a(f"s_add_u32 s{sT0}, s{TK+j-1}, 1024")
            a(f"s_cmp_lt_u32 s{sT0}, {12*1024}")
            a(f"s_cselect_b32 s{TK+j}, s{sT0}, 0")
        a(f"s_mul_i32 s{sT0}, s{sW}, {384*4096}")
        a(f"s_lshl_b32 s{sT1}, s{sST}, 7")
        a(f"s_add_u32 s{sT0}, s{sT0}, s{sT1}")
        a.run(P.weight_src(4096, sT0) + P.weight_dst(True))
        a.run(P.conv_setup(NC))
        a.run(P.conv_setup2(NC))
        a(f"s_lshl2_add_u32 s{sT0}, s{sST}, s{sW}")
        a(f"v_lshl_add_u32 v{vT}, s{sT0}, 4, v{vI}")
        a(f"v_lshlrev_b32 v{vX1}, 1, v{vT}")
        a(f"v_mul_u32_u24 v{vT}, 1280, v{vT}")
        a(f"s_mul_i32 s{sT0}, s{sDT}, 320")
        a(f"v_add_u32 v{vT}, s{sT0}, v{vT}")
        a(f"v_lshl_add_u32 v{vQO2}, v{vH}, 4, v{vT}")
        a(f"s_lshl_b32 s{sT0}, s{sSP}, 6")
        a(f"v_add_u32 v{vQO}, s{sT0}, v{vQO2}")
        a(f"v_subrev_u32 v{vQO1}, s{sT0}, v{vQO2}")
        a(f"s_lshl1_add_u32 s{sT0}, s{sST}, s{sT2}")
        a(f"s_lshl3_add_u32 s{sT0}, s{sT0}, s{sT3}")
        a(f"s_lshl_b32 s{sT0}, s{sT0}, 4")
        a(f"s_add_u32 s{sT0}, s{sT0}, {WS_G}")
        a(f"v_lshl_add_u32 v{vT}, v{vR}, 5, s{sT0}")
        a(f"v_lshl_add_u32 v{vGA}, v{vC}, 2, v{vT}")

    SP = cfg.get('setp', 1)
    if SP == 0:
        bigset()
    nq = cfg.get('kvq2', 7)
    if nq:
        a.run(kv_batch(kvq[:nq])); kvq = kvq[nq:]
    a.wait('hst' if H2 else 'hst2')
    a.run([P.flag_wg(sU3, 'f1'), stamp('barH')])
    if kvq:
        a.run(kv_batch(kvq))
    CF = 148
    for u in range(5):
        a(f"global_load_dwordx2 {vr(CF+2*u,2)}, v{vS0}, {sp(P_SH)} offset:{128*u}")
    if HL:
        a.run(hst[3:])
    if SP == 1:
        bigset()
    a.run(P.ssm_loads(NC))

    def helper():
        HR = cfg.get('hlpB', 6)
        if HR:
            a(f"s_add_u32 s{sT0}, s{sST}, 4")
            a(f"s_and_b32 s{sT0}, s{sT0}, 7")
            a(f"s_mul_i32 s{sT1}, s{sT0}, {HR}")
            a(f"s_cmp_eq_u32 s{sT0}, 7")
            a(f"s_cselect_b32 s{sU2}, {OOB}, 0")
            a(f"s_lshl2_add_u32 s{sT0}, s{sW}, s{sDT}")
            a(f"s_mul_i32 s{sT0}, s{sT0}, 96")
            a(f"s_add_u32 s{sT0}, s{sT0}, s{sT1}")
            a(f"s_add_u32 s{sT0}, s{sT0}, {96 - 7*HR}")
            a(f"v_add_lshl_u32 v{vT}, s{sT0}, v0, 12")
            a(f"s_lshl_b32 s{sT0}, s{sXQ}, 10")
            a(f"s_add_u32 s{sT0}, s{sT0}, 384")
            a(f"s_add_u32 s{sU2}, s{sU2}, s{sT0}")
            a(f"s_mov_b64 exec, {hex((1 << HR) - 1)}")
            a(f"buffer_load_dword v251, v{vT}, {srd(S_W)}, s{sU2} offen")
            a("s_mov_b64 exec, -1")
    WP = cfg.get('wBpre', 1)
    if WP:
        helper()
    if WP >= 2:
        a.run(P.w_step())

    if HL:
        a(f"s_lshl2_add_u32 s{sU3}, s{sJ}, s{sW}")
        a(f"s_lshl_b32 s{sU3}, s{sU3}, 2")
        a(f"s_add_u32 s{sU3}, s{sU3}, {WS_F1 + 0x4000}")
        a.wait('kvdma')
        a.run(["s_barrier", stamp('barK')])
    elif H2:
        a(f"s_mul_i32 s{sU3}, s{sJ}, 16")
        a(f"s_add_u32 s{sU3}, s{sU3}, {WS_F1 + 0x4000}")
        a.wait('kvdma', 'hst2')
        a.run([P.flag_wg(sU3, 'f2'), stamp('barK')])
    else:
        a.wait('kvdma')
        a.run(["s_barrier", stamp('barK')])
    KR, KO = 64, 160

    def kv_reads(u):
        it = [f"ds_read_b64_tr_b16 {vr(KR+10*u+2*j,2)}, v{vKVA} offset:{32*u + 4*j*PK + (32 if j == 2 else 0)}" for j in range(3)]
        it += [f"ds_read_b64_tr_b16 {vr(KR+10*u+6+2*j,2)}, v{vKVA} offset:{32*u + 4*j*PK + (L_VI-L_KI)}" for j in range(2)]
        return it

    def kv_compute(u):
        it = []
        k = KR + 10 * u
        c10, c32 = CF + 2 * u, CF + 2 * u + 1
        SH, AC, VF, OUT = 116, 124, 132, KO + 4 * u
        for n in range(5):
            it.append(f"v_alignbit_b32 v{SH+n}, v{k+n+1}, v{k+n}, 16")
        pr = lambda e: (k + (e + 1) // 2, k + (e + 3) // 2) if e & 1 else (SH + e // 2, SH + e // 2 + 1)
        for e in range(8):
            it.append(f"v_dot2_f32_bf16 v{AC+e}, v{pr(e)[0]}, v{c32}, 0")
        for e in range(8):
            it.append(f"v_dot2_f32_bf16 v{AC+e}, v{pr(e)[1]}, v{c10}, v{AC+e}")
        for n in range(4):
            it.append(f"v_lshlrev_b32 v{VF+2*n}, 16, v{k+6+n}")
            it.append(f"v_and_b32 v{VF+2*n+1}, 0xffff0000, v{k+6+n}")
        for n in range(4):
            it.append(f"v_pk_mul_f32 {vr(AC+2*n,2)}, {vr(AC+2*n,2)}, {vr(VF+2*n,2)}")
        for n in range(4):
            it.append(f"v_cvt_pk_bf16_f32 v{OUT+n}, v{AC+2*n}, v{AC+2*n+1}")
        it.append((f"buffer_store_dwordx4 {vr(OUT,4)}, v{vKVS}, {srd(S_WS)}, {'0' if u == 0 else f's{79+u}'} offen sc1", 'kvst'))
        return it
    a.run(kv_reads(0) + kv_reads(1))
    if WP & 1:
        a.run(P.w_step())
    for u in range(10):
        a(f"v_alignbit_b32 v{CF+u}, v{CF+u}, v{CF+u}, 16")
    for u in range(5):
        a.run(merge(kv_compute(u), kv_reads(u + 2) if u < 3 else []))
        if HL and u == HL - 1:
            a.run([('wait', 'hst3'), P.flag(sU3)])
    a.run([stamp('kv_done')])
    if not cfg.get('wBpre', 1):
        helper()
    for _ in range(cfg.get('wB0', 1)):
        a.run(P.w_step())
    a.wait('kvst')
    a.run([P.flag_wg(sFJ, 'fk') if KW == 1 else P.flag(sFJ), stamp('barV')] + P.zflag_addr(sFJ, 0))
    a(f"global_load_ushort v{vB2}, v{vX1}, {sp(P_B2)}")
    while P.nxt < cfg.get('pollB', 7):
        a.run(P.w_step())
    a(P.poll_issue(vP1, 16, KW, 204))
    for _ in range(cfg.get('pollgapB', 0)):
        a.run(P.w_step())
    a.run([P.poll_check('fk', vP1, 16, KW, 204), stamp('fk_ok')])
    a.run(P.x_loads(NC))
    qa = lambda p: f"v{(vQO, vQO1, vQO, vQO1, vQO2)[p]}"
    qld = [f"global_load_dwordx4 {vr(QR+4*p,4)}, {qa(p)}, {sp(P_Q)} offset:{64*p}" for p in range(5)]
    for _ in range(cfg.get('xgapB', 1)):
        a.run(P.w_step())
    a.wait('xd')
    a("s_barrier")
    a.run([stamp('barC')])

    CPB = cfg.get('cpreB', 4)
    a.run(P.conv_pre(CPB))
    while P.nxt < NR:
        a.run(P.w_step())
    S = P.conv_sched(NT, CPB, cfg.get('ccap', 2.3), cfg.get('sg0', 100))
    cS, cE = cfg.get('cS', 0), cfg.get('cE', NMF - 36)
    nst = 12 - P.nxt
    per = (cE - cS) / (nst + 1)
    for r in range(nst):
        p0 = cS + r * per
        it = P.w_step()
        for k, x in enumerate(it[:9]):
            S.add('wd', [x], int(p0 + k * per / 14), int(p0 + (k + 1) * per / 14))
        p1 = p0 + per
        S.add('w', it[9:11], int(p1 - per / 5), int(p1) - 1)
        S.add('w', it[11:12], int(p1), int(p1))
        for k, x in enumerate(it[12:]):
            S.add('w', [x], int(p1 + k * per / 4), int(p1 + k * per / 4))
    S.add('wd', P.w_step(), int(cE - per), int(cE) - 1, pace=per / 11)
    tail = []
    while P.drn < 12:
        tail += P.w_step()
    S.add('wd', tail, cE, None, pace=(NMF - cE) / len(tail))
    vUL = 10
    uset = [f"s_mul_i32 s{sT0}, s{sDT}, 120",
            f"s_mul_i32 s{sT1}, s{sW}, 6",
            f"s_add_u32 s{sT0}, s{sT0}, s{sT1}",
            f"v_mul_u32_u24 v{vT}, 43, v0",
            f"v_lshrrev_b32 v{vT}, 8, v{vT}",
            f"v_mul_u32_u24 v{vT}, 18, v{vT}",
            f"v_add3_u32 v{vP0}, s{sT0}, v0, v{vT}",
            f"v_mul_u32_u24 v{vP0}, {FSU}, v{vP0}",
            f"v_add_u32 v{vP0}, {WS_FU}, v{vP0}",
            f"s_mul_i32 s{sT0}, s{sDT}, {5*48}",
            f"s_lshl1_add_u32 s{sT0}, s{sT1}, s{sT0}",
            f"s_lshl_b32 s{sT0}, s{sT0}, 10",
            f"s_add_u32 s{sT0}, s{sT0}, {WS_U}",
            f"v_add_u32 v{vUL+4}, s{sT0}, v1",
            f"s_mul_i32 s{sT0}, s{sSP}, {96*1024}",
            f"v_add_u32 v{vUL}, s{sT0}, v{vUL+4}",
            f"s_sub_u32 s{sT0}, {96*1024}, s{sT0}",
            f"v_add_u32 v{vUL+2}, s{sT0}, v{vUL+4}",
            f"v_add_u32 v{vUL+1}, {48*1024}, v{vUL}",
            f"v_add_u32 v{vUL+3}, {48*1024}, v{vUL+2}",
            f"v_add_u32 v{vUL+4}, {192*1024}, v{vUL+4}"]
    S.add('set', uset, 40, 118)
    for k, x in enumerate(qld):
        qp = cfg.get('qS', 20) + cfg.get('qD', 16) * k
        S.add('q', [x], qp, qp)
    pU = NMF - cfg.get('pU0', 16)
    S.add('set', [P.poll_issue(vP0, 30)], pU, pU)
    NB2, GR2, UE = cfg.get('nb2', 16), cfg.get('grp2', 2), cfg.get('uearly', 8)
    UBUF = ([ar(192 + 4*i, 4) for i in range(16)] + [vr(92 + 4*i, 4) for i in range(4)])[:NB2]
    vUM = 220

    def u_load(n):
        m, j = divmod(n, 12)
        return f"buffer_load_dwordx4 {UBUF[n % NB2]}, v{vUL+m if m < 5 else vUM+m-5}, {srd(S_WS)}, s{TK+j} offen {cfg.get('apol', 'sc1')}"
    ustart = [P.poll_check('fu0', vP0, 30), stamp('fu0_ok')] + [u_load(n) for n in range(UE)]
    UEP = cfg.get('uep', 1)
    P.conv_run(S, NT, False, mid=[ustart if k == UEP else [] for k in range(3)])

    NB2, GR2, UE = cfg.get('nb2', 16), cfg.get('grp2', 2), cfg.get('uearly', 8)
    UBUF = ([ar(192 + 4*i, 4) for i in range(16)] + [vr(92 + 4*i, 4) for i in range(4)])[:NB2]
    AC2, OWN, RD2, RD4 = (108, 120), 132, 172, 208
    GQ, ZL, ZRg, ZU = 228, 64, 76, 88
    vZG, vZLW, vZT, vOG, vR2R, vR2W, vUM = 20, 21, 22, 28, 33, 25, 220
    vR2S, vR2X, PDZ, vP2 = 23, 30, 226, 225
    opol = cfg.get('opol', 'sc1')
    g2set = [f"v_add_u32 v{vUM+m}, {cfg.get('wiU', 20*48*1024)}, v{vUL+m}" for m in range(5)]
    g2set += [f"v_add_u32 v{vP0}, {20*24*FSU}, v{vP0}",
              f"v_lshrrev_b32 v{vT}, 3, v0",
              f"v_lshl_add_u32 v{vT}, s{sW}, 3, v{vT}",
              f"v_and_b32 v{vT2}, 7, v0",
              f"v_lshlrev_b32 v{vT2}, 4, v{vT2}",
              f"v_lshl_add_u32 v{vZG}, v{vT}, 12, v{vT2}",
              f"v_mul_u32_u24 v{vT}, {PZ}, v{vT}",
              f"v_add_u32 v{vT}, v{vT}, v{vT2}",
              f"v_add_u32 v{vZLW}, {L_ZI}, v{vT}",
              f"s_mul_i32 s{sT0}, s{sDT}, {160*4096}",
              f"s_lshl_b32 s{sT1}, s{sST}, 7",
              f"s_add_u32 s{sT0}, s{sT0}, s{sT1}",
              f"s_add_u32 s{sT0}, s{sT0}, {WS_Z}",
              f"s_lshl_b32 s{sT1}, s{sSP}, 17",
              f"s_add_u32 s80, s{sT0}, s{sT1}",
              f"s_sub_u32 s81, s{sT0}, s{sT1}",
              f"s_add_u32 s81, s81, {32*4096}",
              f"s_add_u32 s82, s80, {64*4096}",
              f"s_add_u32 s83, s81, {64*4096}",
              f"s_add_u32 s{sX0}, s{sT0}, {128*4096}",
              f"v_lshl_add_u32 v{vT}, v{vH}, 3, v{vR}",
              f"v_mul_u32_u24 v{vT}, {PZ}, v{vT}",
              f"s_lshl_b32 s{sT0}, s{sW}, 5",
              f"s_add_u32 s{sT0}, s{sT0}, {L_ZI}",
              f"v_lshl_add_u32 v{vZT}, v{vC}, 3, s{sT0}",
              f"v_add_u32 v{vZT}, v{vZT}, v{vT}"]
    for jn in range(1, 4):
        g2set += [f"s_xor_b32 s{sT0}, s{sW}, {jn}",
                  f"s_mul_i32 s{sT0}, s{sT0}, 3072",
                  f"s_add_u32 s{sT0}, s{sT0}, {(jn-1)*1024}",
                  f"v_add_u32 v{vR2W+jn-1}, s{sT0}, v1",
                  f"v_add_u32 v{vR2X+jn-1}, {L_RED}, v{vR2W+jn-1}"]
    g2set += [f"s_mul_i32 s{sT0}, s{sW}, 3072",
              f"v_add_u32 v{vR2R}, s{sT0}, v1",
              f"v_add_u32 v{vR2S}, {L_RED}, v{vR2R}",
              f"s_lshl3_add_u32 s{sT0}, s{sDT}, s{sW}",
              f"s_lshl_b32 s{sT0}, s{sT0}, 2",
              f"v_lshl_add_u32 v{vP1}, v{vR}, 4, v{vC}",
              f"v_add_u32 v{vP1}, s{sT0}, v{vP1}",
              f"v_mul_u32_u24 v{vP1}, {FSZ}, v{vP1}",
              f"s_and_b32 s{sT1}, s{sST}, 1",
              f"s_lshl_b32 s{sT1}, s{sT1}, 3",
              f"s_add_u32 s{sT1}, s{sT1}, {WS_FZ}",
              f"v_add_u32 v{vP1}, s{sT1}, v{vP1}",
              f"s_lshl2_add_u32 s{sT0}, s{sDT}, s{sW}",
              f"v_and_b32 v{vT}, 7, v0",
              f"v_lshl_add_u32 v{vP2}, s{sT0}, 3, v{vT}",
              f"v_mul_u32_u24 v{vP2}, {FSZ}, v{vP2}"]
    Z2 = NC == 2 and cfg.get('z2', 1)
    if Z2:
        g2set += [f"s_and_b32 s{sT1}, s{sST}, 3", f"s_lshl_b32 s{sT1}, s{sT1}, 2", f"s_add_u32 s{sT1}, s{sT1}, {WS_FZ + 128*FSZ + 16}",
                  f"v_add_u32 v{vP2}, s{sT1}, v{vP2}"]
    else:
        g2set += [f"v_add_u32 v{vP2}, s{sT1}, v{vP2}", f"v_cmp_lt_u32 vcc, 7, v0", "s_nop 1", f"v_cndmask_b32 v{vP1}, v{vP1}, v{vP2}, vcc"]
    nz0 = 16 if NC == 3 else 8
    nz1 = 16 if NC == 2 and not Z2 else 8
    zso = (80, 81, 82, 83, sX0)
    ptile = ((0, 1), (2, 3), (5, 6), (7, 8), (4, 9))

    def u_load(n):
        m, j = divmod(n, 12)
        return f"buffer_load_dwordx4 {UBUF[n % NB2]}, v{vUL+m if m < 5 else vUM+m-5}, {srd(S_WS)}, s{TK+j} offen {cfg.get('apol', 'sc1')}"

    def mf2(n, jn):
        m, j = divmod(n, 12)
        d = vr(OWN + 4 * m, 4) if jn == 0 else vr(AC2[m & 1] + 4 * (jn - 1), 4)
        return f"v_mfma_f32_16x16x32_bf16 {d}, {UBUF[n % NB2]}, {ar(16*j+4*jn,4)}, {'0' if j == 0 else d}"
    rd = lambda m, s: [f"ds_read_b128 {vr(RD2+12*s+4*k,4)}, v{vR2R if m < 5 else vR2S} offset:{(m % 5)*12288 + k*1024}" for k in range(3)]
    ad = lambda m, s: [f"v_add_f32 v{OWN+4*m+r}, v{OWN+4*m+r}, v{RD2+12*s+4*k+r}" for k in range(3) for r in range(4)]
    wr = lambda m: [(f"ds_write_b128 v{(vR2W if m < 5 else vR2X)+jn-1}, {vr(AC2[m & 1]+4*(jn-1),4)} offset:{(m % 5)*12288}", f'r2w{m}') for jn in range(1, 4)]
    z_ld = lambda ps: [f"buffer_load_dwordx4 {vr(ZL+4*i,4)}, v{vZG}, {srd(S_WS)}, s{zso[p]} offen sc1" for i, p in enumerate(ps)]
    z_wr = lambda ps: [f"ds_write_b128 v{vZLW}, {vr(ZL+4*i,4)} offset:{p*32*PZ}" for i, p in enumerate(ps)]
    z_rd = lambda p: [f"ds_read_b64_tr_b16 {vr(ZRg+4*(p % 3)+2*hh,2)}, v{vZT} offset:{(32*p + 4*hh)*PZ}" for hh in range(2)]

    def gq(p):
        it = []
        pp = GQ + 8 * (p % 3)
        for k in range(4):
            it += [f"v_lshlrev_b32 v{pp+2*k}, 16, v{QR+4*p+k}", f"v_and_b32 v{pp+2*k+1}, 0xffff0000, v{QR+4*p+k}",
                   f"v_mul_f32 v{pp+2*k}, v{pp+2*k}, v{vGG}", f"v_mul_f32 v{pp+2*k+1}, v{pp+2*k+1}, v{vGG}"]
        return it
    sc = lambda m: [f"v_fma_f32 v{OWN+4*m+k}, v{OWN+4*m+k}, v{vOG}, v{vB2}" for k in range(4)]

    def fin(p, hh):
        it = []
        o = OWN + 4 * ptile[p][hh]
        for k in range(2):
            zu, z, g = ZU + 2 * k, ZRg + 4 * (p % 3) + 2 * hh + k, GQ + 8 * (p % 3) + 4 * hh + 2 * k
            it += [f"v_lshlrev_b32 v{zu}, 16, v{z}", f"v_and_b32 v{zu+1}, 0xffff0000, v{z}"]
            if (p, hh) == (4, 1):
                it += [f"v_fma_f32 v{g}, v{g}, v{zu}, v{vB2}", f"v_fma_f32 v{g+1}, v{g+1}, v{zu+1}, v{vB2}"]
            else:
                it += [f"v_fmac_f32 v{o+2*k}, v{g}, v{zu}", f"v_fmac_f32 v{o+2*k+1}, v{g+1}, v{zu+1}",
                       f"v_cvt_pk_bf16_f32 v{QR+4*p+2*hh+k}, v{o+2*k}, v{o+2*k+1}"]
        return it
    ost = lambda p: [f"global_store_dwordx4 {qa(p)}, {vr(QR+4*p,4)}, {sp(P_OUT)} offset:{64*p} {opol if p < cfg.get('opn', 5) else ''}"]
    if cfg.get('dly'):
        a(f"s_sleep {cfg['dly']}")
    if UEP == 3:
        a.run(ustart)
    a(f"buffer_load_dword v{vGG}, v{vGA}, {srd(S_WS)}, 0 offen sc1")
    a.run(g2set)
    mf, pos = [], {}
    for q in range(120 // GR2):
        ns = range(q * GR2, (q + 1) * GR2)
        for jn in ((1, 2, 3, 0) if ns[0] < 108 else (1, 2, 3)):
            for n in ns:
                pos.setdefault(n, len(mf))
                mf.append(mf2(n, jn))
    pown = len(mf)
    mf += [mf2(n, 0) for n in range(108, 120)]
    S = Sched(mf)
    for n in range(120):
        S.reserve(pos[n] - 1)
    UC = cfg.get('pUC', 210)
    k = 0
    for n in range(UE, 120):
        free = 4 * GR2 * ((n - NB2) // GR2 + 1) if n >= NB2 else 0
        p = max(free, 4 * (n - NB2 + GR2) + 1, 2 * k)
        if n >= 60:
            p = max(p, min(UC + 1 + 2 * (n - 60), 4 * n - 2 if UC < 236 else max(239, 4 * (n - UE))))
        if n == 60:
            S.add('u', [P.poll_check('fu1', vP0, 30), stamp('fu1_ok')], p, p)
            pZ0 = p
        S.add('u', [u_load(n)], p, p)
        k += 1
    lastu = p
    S.add('st', [stamp('g2first')], 0, 0)
    S.add('st', [stamp('g2mid')], 240, 240)
    pF = cfg.get('pF', 40)
    S.add('z', [('wait', 'zst2' if NC == 3 else 'zst1'), stamp('barF'), P.flag(sFJ)], pF, pF + 1)
    zB = (0, 1) if NC == 2 else (0, 1, 4)
    zA = (2, 3, 4) if NC == 2 and not Z2 else (2, 3)
    UP = UC - cfg.get('pUP', 44)
    S.add('z', [P.poll_issue(vP0, 30), P.poll_issue(vP1, nz0, 2, PDZ)], UP, UP + 1)
    S.add('z', [P.poll_check('fz0', vP1, nz0, 2, PDZ), stamp('fz0_ok')] + z_ld(zB) + [f"v_add_u32 v{vP1}, {128*FSZ}, v{vP1}"], pZ0 + 3, pZ0 + 14, pace=2)
    ZP1, ZC1 = cfg.get('zp1', [325, 372])
    S.add('z', [P.poll_issue(vP1, nz1, 2, PDZ)], ZP1, ZP1)
    S.add('z', [P.poll_check('fz1', vP1, nz1, 2, PDZ), stamp('fz1_ok')] + z_ld(zA), ZC1, ZC1 + 8, pace=2)
    if Z2:
        ZP2, ZC2 = cfg.get('zp2', [390, 434])
        S.add('z2', [P.poll_issue(vP2, 8)], ZP2, ZP2)
        S.add('z2', [P.poll_check('fz2', vP2, 8), stamp('fz2_ok'),
                    f"buffer_load_dwordx4 {vr(ZL+8,4)}, v{vZG}, {srd(S_WS)}, s{zso[4]} offen sc1"], ZC2, ZC2 + 1)
    S.add('fin', [f"v_lshlrev_b32 v{vB2}, 16, v{vB2}", f"v_sub_f32 v{vOG}, 1.0, v{vGG}", f"v_mul_f32 v{vB2}, v{vB2}, v{vOG}"] + gq(0) + gq(1) + gq(2), 44, 200)
    OS = cfg.get('osat', 450)
    bars = cfg.get('bars', [3, 5, 7, 8])
    zlate = cfg.get('zlate', 0)
    flat = lambda l: [x for y in l for x in y]
    done = 0
    tailz = []
    for m in range(9):
        p = 48 * (m + 1)
        if m == 5:
            S.add('red', z_wr(zB), p - 14, p - 1, pace=4)
        if m == 8 and not zlate:
            S.add('red', z_wr(zA), p - 14, p - 1, pace=4)
        S.add('red', wr(m), p, p + 8, pace=3)
        if m in bars:
            S.add('red', [('wait', f'r2w{m}'), "s_barrier"], p + 11, p + 12)
            ms = list(range(done, m + 1))
            done = m + 1
            dl = None if m == 8 else 48 * (bars[bars.index(m) + 1] + 1) + 10
            it = []
            if m == 5:
                it += z_rd(0) + z_rd(1)
            if m == 8 and not zlate:
                it += z_rd(2) + z_rd(3) + ([] if Z2 else z_rd(4))
            it += flat(rd(t, t % 3) for t in ms[:3])
            if m == 8 and not zlate:
                it += ([] if Z2 else fin(4, 0) + fin(4, 1)) + fin(2, 0)
            if m == 5 and ms[0] > 1:
                it += fin(0, 0) + fin(0, 1)
            for i, t in enumerate(ms):
                it += ad(t, t % 3) + (rd(ms[i + 3], t % 3) if i + 3 < len(ms) else []) + sc(t)
            if m == 5:
                it += (fin(0, 0) + fin(0, 1) if ms[0] <= 1 else []) + fin(1, 0) + fin(1, 1) + gq(3) + gq(4)
                dl = min(dl, OS - 1)
                S.add('os', ost(0) + ost(1), OS, OS + 4, pace=3)
            if m == 8:
                last = fin(2, 1) + ost(2) + fin(3, 0) + fin(3, 1) + ost(3)
                if zlate:
                    tailz = fin(2, 0) + last + fin(4, 0) + fin(4, 1)
                else:
                    it += last
            S.add('fin', it, p + 13, dl)
    if zlate:
        S.add('red', z_wr(zA), pown - 8, pown, pace=3)
    S.add('red', wr(9), pown + 1, pown + 6, pace=2)
    ZIN = cfg.get('zin', 1)
    zw2 = (f"ds_write_b128 v{vZLW}, {vr(ZL+8,4)} offset:{4*32*PZ}", 'zw2')
    if Z2 and ZIN:
        S.add('red', [zw2], pown + 8, pown + 8)
    d2 = cfg.get('d2', '')
    post = []
    if 'z' in d2:
        a.run([x[0] for x in S.th['z'][:3]])
        post += [x[0] for x in S.th['z'][3:] + S.th.get('z2', [])]; S.th['z'] = []; S.th['z2'] = []
        S.th['u'] = [x for x in S.th['u'] if not callable(x[0])]
    for nm in ('red', 'fin', 'os'):
        if nm[0] in d2:
            post += [x[0] for x in S.th[nm]]; S.th[nm] = []
    its = S.items(keep=('fin',))
    if 'u' in d2:
        its = [x for x in its if not txt_of(x).startswith('buffer_load_dwordx4 a[')]
    if 'b' in d2:
        its = [x for x in its if txt_of(x) != 's_barrier']
    if 'w' in d2:
        its = [x for x in its if not (txt_of(x).startswith('ds_write_b128') and x[1:] != ('r2w9',)) and not (txt_of(x) == 'wait' and x[1].startswith('r2w'))]
    a.run(its)
    a.run([stamp('g2x')] + ([] if cfg.get('nopost') else post))
    P.info['g2'] = (S.over, S.under, len(S.left.get('fin', [])))
    a.run([stamp('g2mfma')])
    left = S.left.get('fin', [])
    if Z2:
        assert not zlate
        tailz = fin(4, 0) + fin(4, 1)
        if not ZIN:
            a.run(left)
            left = []
            a(zw2[0], tok='zw2')
        a.wait('zw2')
    if 'r2w9' in a.toks:
        a.wait('r2w9')
    a("s_barrier")
    if Z2:
        a.run(z_rd(4))
    for k in range(3):
        a(f"ds_read_b128 {vr(RD4+4*k,4)}, v{vR2S} offset:{4*12288 + k*1024}")
    if zlate:
        a.run(z_rd(2) + z_rd(3) + z_rd(4))
    a.run(left + tailz)
    for k in range(3):
        for hh in range(2):
            a(f"v_pk_add_f32 {vr(OWN+36+2*hh,2)}, {vr(OWN+36+2*hh,2)}, {vr(RD4+4*k+2*hh,2)}")
    g = GQ + 8 + 4
    for hh in range(2):
        a(f"v_pk_fma_f32 {vr(g+2*hh,2)}, {vr(OWN+36+2*hh,2)}, {vr(vOG,2)}, {vr(g+2*hh,2)} op_sel_hi:[1,0,1]")
    for hh in range(2):
        a(f"v_cvt_pk_bf16_f32 v{QR+18+hh}, v{g+2*hh}, v{g+2*hh+1}")
    a.run(ost(4))
    P.finish()
    a("s_endpgm")
    return P


def gen(cfg):
    h = Asm()
    h("s_load_dwordx16 s[36:51], s[0:1], 0")
    h("s_load_dwordx16 s[52:67], s[0:1], 56")
    if cfg.get('stamps') or cfg.get('amp'):
        h("s_memrealtime s[96:97]")
    h("s_cmp_ge_u32 s2, 256")
    h("s_cbranch_scc1 L_end")
    h("v_lshrrev_b32 v1, 6, v0")
    h("v_and_b32 v0, 63, v0")
    h(f"v_readfirstlane_b32 s{sW}, v1")
    rb = cfg.get('rolebit', 0)
    h(f"s_lshr_b32 s{sID}, s2, 3")
    if rb == 0:
        h(f"s_bfe_u32 s{sXQ}, s2, 0x20001")
    elif rb == 2:
        h(f"s_and_b32 s{sXQ}, s2, 3")
    else:
        h(f"s_bfe_u32 s{sXQ}, s2, 0x10002")
        h(f"s_and_b32 s{sT0}, s2, 1")
        h(f"s_lshl1_add_u32 s{sXQ}, s{sXQ}, s{sT0}")
    h(f"s_lshl_b32 s{sJ}, s{sXQ}, 5")
    h(f"s_add_u32 s{sJ}, s{sJ}, s{sID}")
    lay = cfg.get('lay', 'C')
    if lay == 'C':
        if cfg.get('cpf', 1):
            h(f"s_bitcmp0_b32 s2, {rb}")
            h(f"s_cselect_b32 s{sT1}, L_Amain-L_pcC, 0")
            h.run([x.replace("@-L_pcC", f"s{sT1}") for x in Prog('C', cfg).code_prefetch("@", "L_end")])
    elif lay == 'A':
        h(f"s_bitcmp1_b32 s2, {rb}")
        h("s_cbranch_scc1 L_B")
    else:
        h(f"s_bitcmp0_b32 s2, {rb}")
        h("s_cbranch_scc1 L_A")
    A, B = prog_A(cfg), prog_B(cfg)
    ref = open(f"cdna_kernels/{NAME}.s.ref").read().split('\n')
    head = [l for l in ref if l.startswith(';') and '@launch' not in l and 'Override' not in l and 'grid=ceil' not in l]
    txt = '\n'.join(head) + f"\n; @launch grid=(256,1,1) block=(256,1,1) lds={L_END}\n"
    txt += f""".amdgcn_target "amdgcn-amd-amdhsa--gfx950"
.text
.globl {NAME}_kernel
.p2align 8
.type {NAME}_kernel,@function
{NAME}_kernel:
"""
    if lay == 'C':
        J = lambda l: '\n'.join(l) + '\n'
        txt += (h.text() + J(A.a.out[:A.split0]) + J(B.a.out[:B.split0]) + f"    s_waitcnt lgkmcnt(0)\n    s_bitcmp1_b32 s2, {rb}\n    s_cbranch_scc1 L_Bgo\n" +
                J(A.a.out[A.split0:A.split]) + "L_Bgo:\n" + J(B.a.out[B.split0:]) + ".p2align 7\n" + J(A.a.out[A.split:]) + "L_end:\n    s_endpgm\n")
    elif lay == 'A':
        txt += h.text() + '\n'.join(A.a.out[:A.split]) + '\n' + B.a.text() + ".p2align 7\n" + '\n'.join(A.a.out[A.split:]) + "\nL_end:\n    s_endpgm\n"
    else:
        txt += h.text() + B.a.text() + ".p2align 7\nL_A:\n" + '\n'.join(A.a.out[:A.split-1] + A.a.out[A.split:]) + "\nL_end:\n    s_endpgm\n"
    txt += f""".section .rodata,"a"
.p2align 6
.amdhsa_kernel {NAME}_kernel
  .amdhsa_next_free_vgpr 512
  .amdhsa_next_free_sgpr 102
  .amdhsa_accum_offset 256
  .amdhsa_group_segment_fixed_size 0
  .amdhsa_kernarg_size 120
  .amdhsa_user_sgpr_count 2
  .amdhsa_user_sgpr_kernarg_segment_ptr 1
  .amdhsa_system_sgpr_workgroup_id_x 1
  .amdhsa_float_denorm_mode_32 3
.end_amdhsa_kernel
"""
    return txt, dict(n_ins=(A.a.n_ins, B.a.n_ins), n_nop=(A.a.n_nop, B.a.n_nop), stamps=B.names, stampsA=A.names,
                     rolebit=rb, sched=(A.info, B.info))


if __name__ == "__main__":
    import json
    out = sys.argv[1]
    cfg = json.loads(sys.argv[2]) if len(sys.argv) > 2 else {}
    txt, info = gen(cfg)
    open(out, 'w').write(txt)
    print(out, info)


def dmap(T, i):
    dt, m = divmod(T, 5)
    r, g = dt >> 2, dt & 3
    P, hh = (2 * r + (m >> 1), m & 1) if m < 4 else (4, r)
    return 160 * g + 32 * P + 8 * (i >> 2) + 4 * hh + (i & 3)
```

```python
import sys
from asmlib import Asm, merge, Sched

NAME = "gated_mix__ssm_conv_h3__mixer_token_mlp__prompt"

WS_H, WS_U, WS_KV, WS_Z, WS_G = 0x0, 0x280000, 0x480000, 0x700000, 0x980000
WS_F1, WS_FK, WS_FU, WS_FZ, WS_EP, WS_DBG = 0x990000, 0x998000, 0x9A0000, 0x9B0000, 0x9C0000, 0x9D0000
WS_SIZE = 0xA10000
OOB = 0x7F000000
TAGC = 0x9E3779B9

NR = 4
L_RED = 65536
PL = 1344
L_LN = 32768
PK = 704
L_KI = L_RED
L_VI = L_RED + 25600
L_ZSTG = L_RED + 4 * 12288
L_CK = L_RED + 61440
KP, KPAD = 4224, 96
L_CX = L_CK + 3 * KP
XP, XPAD = 4608, 512
L_CAR = L_CX + 3 * XP
L_END = L_CAR + 1600
L_ZI = L_CK
PZ = 144

S_WS, S_K, S_V, S_W, S_SSM = 4, 8, 12, 16, 24
P_Q, P_SH, P_D, P_B1, P_B2, P_GW, P_OUT = 36, 42, 46, 54, 58, 60, 62
TK = 68
sW, sXQ, sID, sA, sB, sJ, sSP, sTAG, sRING, sC0, sFI, sFJ = range(84, 96)
sT0, sT1, sT2, sT3 = 32, 33, 34, 35
sU0, sU1, sU2, sU3 = 20, 21, 22, 23
sX0, sX1, sX2 = 31, 48, 49
sC2 = 39
sCNT = 3
vH, vI, vR, vC, vT, vT2 = 37, 38, 39, 40, 42, 43
VW, VT = 2, 6
vPD = 18
vCA, vCB, vCA2, vCB2 = 20, 21, 22, 23
vCRW, vCRW2, vCRR, vCRR2, vZW, vZR, vZS, vZS2, vCW = 25, 26, 27, 28, 29, 30, 31, 32, 33
vP0, vP1, vTAG = 35, 24, 34
CA, CB, CACC, CY, NSL = 64, 128, 192, 216, 6
CH, CR, ZO = 240, 246, 216
vZF = 252
C20 = 56


def srd(n):
    return f"s[{n}:{n+3}]"


def sp(n):
    return f"s[{n}:{n+1}]"


def vr(n, k):
    return f"v[{n}:{n+k-1}]"


def ar(n, k):
    return f"a[{n}:{n+k-1}]"


def txt_of(x):
    return x if isinstance(x, str) else (x[0] if isinstance(x, tuple) else '')


class Prog:
    def __init__(self, role, cfg):
        self.a = Asm()
        self.role = role
        self.cfg = cfg
        self.stamps = cfg.get('stamps', False)
        self.names = []
        self.npoll = 0
        self.nxt = self.drn = 0
        self.nstep = 16 if role == 'A' else 12
        self.info = {}

    def stamp(self, name):
        def f(a):
            st = self.stamps
            amp = self.cfg.get('amp')
            if amp and amp == [self.role, name]:
                a("s_memrealtime s[98:99]")
            if not st or (st != 1 and name not in st and name not in ('start', 'end')) or (st == 1 and name[0] == 'w' and name != 'w8'):
                return
            k = len(self.names)
            a("s_memtime s[98:99]")
            a("s_memrealtime s[100:101]")
            a(f"v_writelane_b32 v255, s98, {k}")
            a(f"v_writelane_b32 v255, s100, {32+k}")
            self.names.append(name)
        f.cost = 0
        return f

    def weight_src(self, pitch, sbase):
        it = [f"v_lshrrev_b32 v{vT}, 3, v0",
              f"v_and_b32 v{vT2}, 6, v{vT}",
              f"v_xor_b32 v{vT2}, v{vT2}, v0",
              f"v_and_b32 v{vT2}, 7, v{vT2}",
              f"v_mul_u32_u24 v{vT}, {pitch}, v{vT}",
              f"v_lshl_add_u32 v{vT}, v{vT2}, 4, v{vT}",
              f"v_add_u32 v{VW}, s{sbase}, v{vT}"]
        for i in range(1, 4):
            it.append(f"v_add_u32 v{VW+i}, {8*pitch-1024}, v{VW+i-1}")
        return it

    def weight_dst(self, xorw):
        it = [f"v_lshrrev_b32 v{vT}, 2, v0",
              f"v_lshlrev_b32 v{vT}, 7, v{vT}",
              f"v_lshl_add_u32 v{vT}, v{vC}, 3, v{vT}",
              f"v_bfe_u32 v{vT2}, v0, 3, 2"]
        if xorw:
            it.append(f"v_xor_b32 v{vT2}, s{sW}, v{vT2}")
        it += [f"v_lshl_add_u32 v{vT}, v{vT2}, 5, v{vT}",
               f"v_add_u32 v{VT}, s{sRING}, v{vT}"]
        for t in range(1, 4):
            it.append(f"v_xor_b32 v{VT+t}, {t*32}, v{VT}")
        return it

    def w_issue(self, j):
        it = [f"s_mul_i32 s{sU1}, s{TK+j}, {96 if self.role == 'A' else 128}",
              f"s_add_u32 m0, s{sRING}, {(j % NR)*16384}"]
        if j >= NR:
            it.append(('wait', f'wr{j-NR}'))
        for i in range(4):
            it.append((f"buffer_load_dwordx4 v{VW+i}, {srd(S_W)}, s{sU1} offen offset:{i*1024} {self.cfg.get('wpol', '')} lds", f'wd{j}'))
        return it

    def w_drain(self, j):
        it = [('wait', f'wd{j}')]
        for t in range(4):
            for e2 in range(2):
                it.append((f"ds_read_b64_tr_b16 {ar(16*j+4*t+2*e2,2)}, v{VT+t} offset:{(j % NR)*16384 + e2*2048}", f'wr{j}'))
        return it

    def w_step(self):
        it = []
        if self.nxt >= NR or self.nxt == self.nstep:
            it += self.w_drain(self.drn); self.drn += 1
        if self.nxt < self.nstep:
            it += self.w_issue(self.nxt); self.nxt += 1
        return it

    def flag(self, soff):
        return f"s_mov_b64 exec, 1\nbuffer_store_dword v{vTAG}, v0, {srd(S_WS)}, s{soff} offen sc1\ns_mov_b64 exec, -1"

    def flag_wg(self, soff, name):
        def f(a):
            a("s_barrier")
            a(f"s_cmp_lg_u32 s{sW}, 0")
            a(f"s_cbranch_scc1 L_nf_{name}")
            a.begin_cond(name)
            a(self.flag(soff))
            a.end_cond()
            a.label(f"L_nf_{name}")
        return f

    def set_tag(self, v):
        return [f"v_readfirstlane_b32 s{sTAG}, v{v}", f"s_add_u32 s{sTAG}, s{sTAG}, {hex(TAGC)}", f"v_mov_b32 v{vTAG}, s{sTAG}"]

    @staticmethod
    def setexec(n):
        if n == 32:
            return "s_mov_b32 exec_hi, 0"
        if n > 32:
            return f"s_mov_b32 exec_hi, {hex((1 << (n-32)) - 1)}"
        return f"s_mov_b64 exec, {hex((1 << n) - 1)}"

    def poll_load(self, va, wd, vd):
        if wd == 1:
            return f"buffer_load_dword v{vd}, v{va}, {srd(S_WS)}, 0 offen sc1"
        return f"buffer_load_dwordx{wd} {vr(vd,wd)}, v{va}, {srd(S_WS)}, 0 offen sc1"

    def poll_issue(self, va, n=64, wd=1, vd=vPD):
        it = [self.setexec(n)] if n < 64 else []
        it.append(self.poll_load(va, wd, vd))
        if n < 64:
            it.append("s_mov_b64 exec, -1")
        return "\n".join(it)

    def poll_check(self, name, va, n=64, wd=1, vd=vPD):
        name = self.role + name

        def cmp(a):
            if wd == 1:
                a(f"v_cmp_ne_u32 vcc, s{sTAG}, v{vd}")
                return
            a(f"v_xor_b32 v{vd}, s{sTAG}, v{vd}")
            for k in range(1, wd):
                a(f"v_bitop3_b32 v{vd}, v{vd}, v{vd+k}, v{vTAG} bitop3:0xf6")
            a(f"v_cmp_ne_u32 vcc, 0, v{vd}")

        def f(a):
            if n < 64:
                a(self.setexec(n))
            cmp(a)
            a(f"s_mov_b32 s{sCNT}, 0")
            a(f"s_branch L_pk_{name}" if name[1:] in self.cfg.get('nopoll', []) else f"s_cbranch_vccz L_pk_{name}")
            a.label(f"L_pl_{name}")
            a.begin_cond('poll' + name)
            a("s_mov_b64 exec, vcc")
            if self.cfg.get('psleep'):
                a(f"s_sleep {self.cfg['psleep']}")
            a(self.poll_load(va, wd, vd))
            a(f"s_add_u32 s{sCNT}, s{sCNT}, 1")
            a(f"s_cmp_ge_u32 s{sCNT}, 0x40000")
            a(f"s_cbranch_scc1 L_pk_{name}")
            cmp(a)
            a("s_nop 0")
            a(f"s_cbranch_vccnz L_pl_{name}")
            a.end_cond()
            a.label(f"L_pk_{name}")
            a("s_mov_b64 exec, -1")
            if self.stamps:
                a(f"v_writelane_b32 v254, s{sCNT}, {self.npoll}")
                self.npoll += 1
        f.cost = 5
        return f

    def zflag_addr(self, dst, first):
        fsz = self.cfg.get('fsz', 32)
        return [f"s_add_u32 s{dst}, s{sJ}, {first}", f"s_mul_i32 s{dst}, s{dst}, {fsz}",
                f"s_lshl1_add_u32 s{sT0}, s{sT3}, s{sT2}", f"s_lshl2_add_u32 s{dst}, s{sT0}, s{dst}",
                f"s_add_u32 s{dst}, s{dst}, {WS_FZ}"]

    def lanes(self):
        return ["v_lshlrev_b32 v1, 4, v0",
                f"v_lshrrev_b32 v{vH}, 4, v0", f"v_and_b32 v{vI}, 15, v0",
                f"v_bfe_u32 v{vR}, v0, 2, 2", f"v_and_b32 v{vC}, 3, v0",
                f"s_lshr_b32 s{sT2}, s{sW}, 1", f"s_and_b32 s{sT3}, s{sW}, 1",
                f"s_lshl_b32 s{sRING}, s{sW}, 12"]

    def code_prefetch(self, beg, end):
        r = self.role
        return [f"s_getpc_b64 {sp(sU2)}", f"L_pc{r}:",
                f"s_lshl2_add_u32 s{sT2}, s{sID}, s{sW}",
                f"v_lshl_add_u32 v{vT}, s{sT2}, 1, v0",
                f"v_lshlrev_b32 v{vT}, 7, v{vT}",
                f"v_add_u32 v{vT}, {beg}-L_pc{r}, v{vT}",
                f"v_min_u32 v{vT}, {end}-L_pc{r}, v{vT}",
                "s_mov_b64 exec, 3",
                f"global_load_dword v253, v{vT}, {sp(sU2)}",
                "s_mov_b64 exec, -1"]

    def epoch_load(self, v):
        return [f"s_mov_b32 s{sT0}, {WS_EP}", "s_mov_b64 exec, 1",
                f"buffer_load_dword v{v}, v0, {srd(S_WS)}, s{sT0} offen sc1", "s_mov_b64 exec, -1"]

    def conv_setup(self, nch):
        ZR = 68
        it = [f"s_mul_i32 s{sC2}, s{sXQ}, 160",
              f"s_lshl1_add_u32 s{sC0}, s{sID}, s{sC2}",
              f"s_add_u32 s{sC0}, s{sC0}, {64 if self.role == 'A' else 0}",
              f"s_add_u32 s{sC2}, s{sC2}, s{sID}",
              f"s_add_u32 s{sC2}, s{sC2}, 128",
              f"s_lshl_b32 s{sT0}, s{sC0}, 1",
              f"s_load_dword s28, {sp(P_D)}, s{sT0}"]
        if nch == 3:
            it += [f"s_lshr_b32 s{sT1}, s{sC2}, 1", f"s_lshl_b32 s29, s{sT1}, 2", f"s_load_dword s30, {sp(P_D)}, s29"]
        it += [f"s_lshl_b32 s{sX0}, s{sC0}, 12",
               f"s_lshl_b32 s{sT1}, s{sW}, 10",
               f"s_add_u32 s{sX0}, s{sX0}, s{sT1}",
               f"s_add_u32 s{sX1}, s{sX0}, 4096",
               f"s_lshl_b32 s{sX2}, s{sC2}, 12",
               f"s_add_u32 s{sX2}, s{sX2}, s{sT1}"]
        it += [f"v_mov_b32 v{ZR+i}, 0" for i in range(4)]
        it += [f"s_min_u32 s{sT0}, s{sW}, 2",
               f"s_mul_i32 s{sT1}, s{sT0}, {XP}",
               f"s_add_u32 s{sT1}, s{sT1}, {L_CX}",
               f"v_add_u32 v{vT}, s{sT1}, v1",
               f"s_mul_i32 s{sT1}, s{sT0}, {KP}",
               f"s_add_u32 s{sT1}, s{sT1}, {L_CK}",
               f"v_add_u32 v{vT2}, s{sT1}, v1",
               f"s_mul_i32 s{sT1}, s{sT0}, {33*16}",
               f"s_add_u32 s{sT1}, s{sT1}, {L_CAR}",
               f"v_mov_b32 v{vPD}, s{sT1}",
               "s_mov_b32 exec_hi, 0",
               f"ds_write_b128 v{vT}, {vr(ZR,4)}",
               f"s_mov_b64 exec, {hex((1 << (KPAD//16)) - 1)}",
               f"ds_write_b128 v{vT2}, {vr(ZR,4)}",
               "s_mov_b64 exec, 1",
               f"ds_write_b128 v{vPD}, {vr(ZR,4)}",
               "s_mov_b64 exec, -1"]
        it += [f"v_lshl_add_u32 v{vT}, v{vH}, 3, v{vR}",
               f"v_lshlrev_b32 v{vT2}, 2, v{vC}",
               f"v_sub_u32 v{vT2}, v{vT2}, v{vT}",
               f"v_lshlrev_b32 v{vT2}, 3, v{vT2}",
               f"s_mul_i32 s{sT0}, s{sT2}, {KP}",
               f"s_add_u32 s{sT0}, s{sT0}, {L_CK + KPAD + 152 - 32}",
               f"v_add_u32 v{vCA}, s{sT0}, v{vT2}"]
        if nch == 3:
            it.append(f"v_add_u32 v{vCA2}, {L_CK + 2*KP + KPAD + 152 - 32}, v{vT2}")
        it += [f"v_add_lshl_u32 v{vT}, v{vT}, v{vC}, 3",
               f"s_mul_i32 s{sT0}, s{sT2}, {XP}",
               f"s_lshl_b32 s{sT1}, s{sT3}, 7",
               f"s_add_u32 s{sT0}, s{sT0}, s{sT1}",
               f"s_add_u32 s{sT0}, s{sT0}, {L_CX + XPAD - 152}",
               f"v_add_u32 v{vCB}, s{sT0}, v{vT}"]
        if nch == 3:
            it += [f"s_lshl_b32 s{sT0}, s{sW}, 7",
                   f"s_add_u32 s{sT0}, s{sT0}, {L_CX + 2*XP + XPAD - 152 - 256}",
                   f"v_add_u32 v{vCB2}, s{sT0}, v{vT}"]
        return it

    def conv_setup2(self, nch):
        it = [f"s_mul_i32 s{sT0}, s{sT2}, {33*16}",
              f"s_lshl4_add_u32 s{sT0}, s{sT3}, s{sT0}",
              f"s_add_u32 s{sT0}, s{sT0}, {L_CAR}",
              f"v_lshlrev_b32 v{vT}, 2, v{vC}",
              f"v_lshl_add_u32 v{vT2}, v{vR}, 5, v{vT}",
              f"v_add_u32 v{vCRR}, s{sT0}, v{vT2}",
              f"s_add_u32 s{sT0}, s{sT0}, {(16 - 48*32) & 0xffffffff}",
              f"v_lshl_add_u32 v{vCRW}, v0, 5, s{sT0}"]
        if nch == 3:
            it += [f"s_lshl_b32 s{sT0}, s{sW}, 4",
                   f"s_add_u32 s{sT0}, s{sT0}, {L_CAR + 2*33*16}",
                   f"v_lshl_add_u32 v{vT2}, v{vR}, 6, v{vT}",
                   f"v_add_u32 v{vCRR2}, s{sT0}, v{vT2}",
                   f"s_add_u32 s{sT0}, s{sT0}, {(16 - 56*64) & 0xffffffff}",
                   f"v_lshl_add_u32 v{vCRW2}, v0, 6, s{sT0}"]
        it += [f"s_mul_i32 s{sT0}, s{sW}, 3072",
               f"s_add_u32 s{sT0}, s{sT0}, {L_ZSTG}",
               f"v_lshl_add_u32 v{vZW}, v0, 1, s{sT0}",
               f"v_add_u32 v{vZR}, s{sT0}, v1",
               f"v_lshl_add_u32 v{vT}, v{vC}, 1, s{sT0}",
               f"v_lshl_add_u32 v{vZF}, v{vR}, 7, v{vT}",
               f"v_lshrrev_b32 v{vT}, 3, v0",
               f"v_and_b32 v{vT2}, 7, v0",
               f"v_lshlrev_b32 v{vT2}, 4, v{vT2}",
               f"v_lshl_add_u32 v{vZS}, v{vT}, 8, v{vT2}",
               f"s_add_u32 s{sT0}, s{sC0}, s{sT2}",
               f"s_lshl_b32 s{sT0}, s{sT0}, 12",
               f"s_lshl_b32 s{sT1}, s{sT3}, 7",
               f"s_add_u32 s{sT0}, s{sT0}, s{sT1}",
               f"s_add_u32 s{sT0}, s{sT0}, {WS_Z}",
               f"v_add_u32 v{vZS}, s{sT0}, v{vZS}"]
        if nch == 3:
            it += [f"v_lshl_add_u32 v{vZS2}, v{vT}, 9, v{vT2}",
                   f"s_lshl_b32 s{sT0}, s{sC2}, 12",
                   f"s_lshl_b32 s{sT1}, s{sW}, 7",
                   f"s_add_u32 s{sT0}, s{sT0}, s{sT1}",
                   f"s_add_u32 s{sT0}, s{sT0}, {WS_Z}",
                   f"v_add_u32 v{vZS2}, s{sT0}, v{vZS2}"]
        if nch == 3:
            it += [f"s_and_b32 s{sT0}, s{sC2}, 1",
                   f"s_lshl_b32 s{sT0}, s{sT0}, 4",
                   f"s_lshr_b32 s30, s30, s{sT0}",
                   f"s_lshl_b32 s30, s30, 16"]
        fsk = self.cfg.get('fsk', 16)
        it += [f"s_lshl_b32 s{sT0}, s{sT2}, 4", f"s_lshr_b32 s28, s28, s{sT0}", f"s_lshl_b32 s28, s28, 16",
               f"s_lshl_b32 s29, s{sW}, 10",
               f"s_lshr_b32 s{sT0}, s{sXQ}, 1",
               f"s_lshl2_add_u32 s{sT0}, s{sT0}, s{sW}",
               f"v_lshl_add_u32 v{vP1}, s{sT0}, 4, v0",
               f"v_mul_u32_u24 v{vP1}, {fsk}, v{vP1}",
               f"v_add_u32 v{vP1}, {WS_FK}, v{vP1}"]
        return it

    def ssm_loads(self, nch):
        return [(f"s_add_u32 m0, s29, {L_CK + KPAD + cs*KP}\nbuffer_load_dwordx4 v1, {srd(S_SSM)}, s{so} offen {self.cfg.get('spol', '')} lds\ns_add_u32 s{so}, s{so}, {WS_KV}", 'kd')
                for cs, so in enumerate((sX0, sX1, sX2)[:nch])]

    def x_loads(self, nch):
        return [(f"s_add_u32 m0, s29, {L_CX + XPAD + cs*XP}\nbuffer_load_dwordx4 v1, {srd(S_WS)}, s{so} offen sc1 lds", 'xd')
                for cs, so in enumerate((sX0, sX1, sX2)[:nch])]

    def dpatch(self, part):
        it = []
        r0 = C20 if part == 2 and self.role == 'A' else CA
        for r, mk in ((r0 + 1, 0x01000001), (r0 + 3, 0x10000010)):
            it += [f"v_and_b32 v{vT2}, 0xffff0000, v{r}", f"v_lshlrev_b32 v{vT}, 16, v{r}",
                   f"v_add_f32 v{vT2}, s{28 if part == 1 else 30}, v{vT2}",
                   f"s_mov_b32 exec_lo, 0\ns_mov_b32 exec_hi, {hex(mk)}\nv_cvt_pk_bf16_f32 v{r}, v{vT}, v{vT2}\ns_mov_b64 exec, -1"]
        return it

    def conv_pre(self, n):
        it = []
        for c in range(n):
            it += self.c_read(1, c)
        return it + self.dpatch(1)

    tiles = [(1, m, m) for m in range(16)] + [(2, n, 2 * n + 1) for n in range(8)]

    def fa(self, part, c, o=0, k=4):
        if part == 2 and self.role == 'A':
            return vr(C20 + o, k) if c == 0 else ar(4 * c + o, k)
        return vr(CA + 4 * c + o, k)

    def fb(self, part, n, o=0, k=4):
        if part == 2 and self.role == 'A':
            return ar(64 + 4 * n + o, k)
        return vr(CB + 4 * (n if part == 1 else 15 - n) + o, k)

    def c_read(self, part, c):
        va, vb = (vCA, vCB) if part == 1 else (vCA2, vCB2)
        return ([f"ds_read_b64_tr_b16 {self.fa(part,c,2*e2,2)}, v{va} offset:{256*c + 32*(1-e2)}" for e2 in range(2)] +
                [f"ds_read_b64_tr_b16 {self.fb(part,c,2*e2,2)}, v{vb} offset:{256*c + 32*e2}" for e2 in range(2)])

    def tile_epi(self, g):
        part, k, m = self.tiles[g]
        d = CACC + 4 * (g % NSL)
        p = CACC + 4 * ((g - 1) % NSL)
        dp = "wave_shr:1 row_mask:0xf bank_mask:0xf bound_ctrl:0"
        it = []
        for j, dst in ((3, d + 2), (2, d + 1), (1, CY + g)):
            it.append(f"v_add_f32_dpp v{dst}, v{d+j}, v{d+j-1} {dp}")
            if k:
                it.append(f"v_mov_b32_dpp v{d+j}, v{p+j} wave_shl:1 row_mask:0xf bank_mask:0xf")
        if g in (15, 23):
            va, mk = (vCRW, '0xffff0000') if g == 15 else (vCRW2, '0xff000000')
            it.append((f"s_mov_b32 exec_lo, 0\ns_mov_b32 exec_hi, {mk}\nds_write_b128 v{va}, {vr(d,4)}\ns_mov_b64 exec, -1", f'carw{part}'))
        return it

    def stage(self, g):
        it = []
        for t in (g, g + 1):
            j = t % 4
            it.append(f"v_mov_b32 v{CH+t//4}, v{CY+t}" if j == 0 else
                      f"v_mov_b32_dpp v{CH+t//4}, v{CY+t} row_shr:{4*j} row_mask:0x1 bank_mask:{hex(1 << j)}")
        return it + [f"v_cvt_pk_bf16_f32 v{CY+g}, v{CY+g}, v{CY+g+1}",
                     f"ds_write_b16 v{vZW}, v{CY+g} offset:{128*g}", f"ds_write_b16_d16_hi v{vZW}, v{CY+g} offset:{128*(g+1)}"]

    def conv_sched(self, nt, cpre, cap, sg0=0):
        mf, first = [], []
        for g, (part, k, m) in enumerate(self.tiles[:nt]):
            d = vr(CACC + 4 * (g % NSL), 4)
            first.append(len(mf))
            mf += [f"v_mfma_f32_16x16x32_bf16 {d}, {self.fa(part,c)}, {self.fb(part,m-c)}, {'0' if c == 0 else d}"
                   for c in range(m + 1)]
        first += [len(mf)] * 8
        S = Sched(mf, cap)
        LEAD = self.cfg.get('lead', 7)
        for g in range(1, nt):
            S.reserve(first[g] - 1)
        for c in range(cpre, 16):
            S.add('rd', self.c_read(1, c), 0, max(first[c] - LEAD, 0))
        if nt > 16 and self.role == 'A':
            r0 = self.cfg.get('r2A', 60)
            for c in range(16):
                S.add('rd2', self.c_read(2, c), r0, min(first[16 + c // 2] - LEAD, r0 + 12 + 7 * c))
            S.add('dp', self.dpatch(2), r0 + 20, first[16] - 2)
        elif nt > 16:
            for c in range(16):
                dl = max(first[16 + c // 2] - LEAD, first[15] + c + 1) if c else first[15] + 4
                S.add('rd', self.c_read(2, c), first[15] + c + 1, dl)
            S.add('dp', self.dpatch(2), first[15] + 8, first[16] - 2)
        self.sgrel = {}
        for g in range(nt - 1):
            dl = min(first[g + NSL - 1] - 1, first[g + 1] + (self.cfg.get('epl', 24) if g < 12 else 8))
            S.add('ep', self.tile_epi(g), first[g + 1] + 2, dl)
            if g & 1:
                self.sgrel[g - 1] = max(dl + 1, sg0)
        self.first = first
        return S

    def z_fix(self, part):
        qs = (0, 2) if part == 1 else (4,)
        va, st = (vCRR, 32) if part == 1 else (vCRR2, 64)
        it = [f"ds_read2_b32 {vr(CR+q,2)}, v{va} offset0:{1+st*(q % 4)} offset1:{1+st*(q % 4 + 1)}" for q in qs]
        for q in qs:
            it += [f"v_add_f32 v{CH+q}, v{CH+q}, v{CR+q}", f"v_add_f32 v{CH+q+1}, v{CH+q+1}, v{CR+q+1}",
                   f"v_cvt_pk_bf16_f32 v{CH+q}, v{CH+q}, v{CH+q+1}",
                   f"s_mov_b64 exec, 0x7777\nds_write_b16 v{vZF}, v{CH+q} offset:{512*q}\nds_write_b16_d16_hi v{vZF}, v{CH+q} offset:{512*(q+1)}\ns_mov_b64 exec, -1",
                   f"ds_read_b128 {vr(ZO+2*q,4)}, v{vZR} offset:{512*q}"]
        if part == 1:
            st = [(f"buffer_store_dwordx4 {vr(ZO,4)}, v{vZS}, {srd(S_WS)}, 0 offen sc1", 'zst1'),
                  (f"buffer_store_dwordx4 {vr(ZO+4,4)}, v{vZS}, {srd(S_WS)}, 0 offen offset:2048 sc1", 'zst1')]
        else:
            st = [(f"buffer_store_dwordx4 {vr(ZO+8,4)}, v{vZS2}, {srd(S_WS)}, 0 offen sc1", 'zst2')]
        return it, st

    def conv_run(self, S, nt, early, flag1=None, mid=((), (), ())):
        a = self.a
        for g in range(0, nt - 2, 2):
            S.add('sg', self.stage(g), self.sgrel[g], None)
            if early and g == 14:
                f1, s1 = self.z_fix(1)
                p = self.cfg.get('pE1', 146)
                S.th['sg'][-1][2] = p - 1
                S.add('sg', [('wait', 'carw1'), "s_barrier"], p, p + 1)
                S.add('sg', f1[:2], p + 1, p + 3)
                e1, e2 = self.cfg.get('e12', [6, 20])
                S.add('sg', f1[2:], p + e1, p + e1 + 10)
                S.add('sg', s1, p + e2, p + e2 + 2)
        f1in = early and self.cfg.get('f1in', 1)
        its = S.items(keep=('sg',))
        wi = self.cfg.get('wi' + self.role, 0)
        if wi:
            keep, n = [], 0
            for x in its:
                t = txt_of(x)
                if t.startswith('v_mfma'):
                    n += 1
                drop = n > wi and (t.startswith(('v_mfma', 'v_add_f32_dpp', 'v_mov_b32_dpp')) or t.startswith('ds_read_b64_tr_b16 v'))
                if not drop:
                    keep.append(x)
            its = keep
        a.run(its)
        self.info['conv'] = (S.over, S.under, len(S.left.get('sg', [])))
        a.run([self.stamp('conv')])
        if f1in:
            a.run([('wait', 'zst1'), flag1])
        a.run(mid[0])
        a.run(merge(S.left.get('sg', []) or ["s_nop 0"], self.tile_epi(nt - 1)))
        a.run(self.stage(nt - 2))
        a.run(mid[1])
        a.wait('carw2' if nt > 16 else 'carw1')
        a("s_barrier")
        parts = [2] if early else ([1, 2] if nt > 16 else [1])
        fs = [self.z_fix(p) for p in parts]
        if early and not f1in:
            a.run(fs[0][0][:1] + [('wait', 'zst1'), flag1] + fs[0][0][1:])
        else:
            a.run([x for f in fs for x in f[0]])
        a.run(mid[2])
        a.run([x for f in fs for x in f[1]])
        a.run([self.stamp('z_st')])

    def finish(self):
        a = self.a
        a.run([self.stamp('end')])
        amp = self.cfg.get('amp')
        if amp and amp[0] == self.role:
            if self.role == 'A':
                a(f"s_cmp_ge_u32 s{sID}, 30")
                a("s_cbranch_scc1 L_end")
            a("s_memrealtime s[100:101]")
            a("s_sub_u32 s98, s98, s96")
            a("s_mul_i32 s98, s98, 20")
            a("s_min_u32 s98, s98, 200000")
            a("s_add_u32 s98, s98, s100")
            a.label("L_amp")
            a("s_memrealtime s[100:101]")
            a("s_sub_u32 s100, s100, s98")
            a("s_cmp_lt_i32 s100, 0")
            a("s_cbranch_scc1 L_amp")
        if self.stamps:
            if not self.cfg.get('nodrain'):
                a.wait_all()
            a("s_memrealtime s[98:99]")
            a(f"v_writelane_b32 v255, s96, 30")
            a(f"v_writelane_b32 v255, s98, 31")
            for k in range(self.npoll):
                a(f"v_readlane_b32 s{sT0}, v254, {k}")
                a(f"v_writelane_b32 v255, s{sT0}, {24+k}")
            a(f"s_lshl2_add_u32 s{sT0}, s2, s{sW}")
            a(f"s_lshl_b32 s{sT0}, s{sT0}, 8")
            a(f"s_add_u32 s{sT0}, s{sT0}, {WS_DBG}")
            a(f"v_lshlrev_b32 v{vT}, 2, v0")
            a(f"buffer_store_dword v255, v{vT}, {srd(S_WS)}, s{sT0} offen")


KERNARG = {f"s{i}" for i in range(36, 68)}


def prog_A(cfg):
    P = Prog('A', cfg)
    a, stamp = P.a, P.stamp
    a.smem_pending = set(KERNARG) | {'s96', 's97'}
    FS1, FSU, FSZ = cfg.get('fs1', 32), cfg.get('fsu', 64), cfg.get('fsz', 32)
    NB, GR = cfg.get('nb', 14), cfg.get('grp', 2)
    sDG, sFT = sA, sB
    KW, HW = cfg.get('kw', 1), cfg.get('hw', 1)
    NC = 3 if cfg.get('third', 'A') == 'A' else 2
    NT = 8*NC
    if cfg.get('cpf', 1) and cfg.get('lay', 'C') != 'C':
        a.run(P.code_prefetch("L_Amain", "L_end"))
    a(f"s_mul_i32 s{sT0}, s{sID}, 52")
    a(f"s_lshr_b32 s{sT0}, s{sT0}, 8")
    a(f"s_mul_i32 s{sT1}, s{sT0}, 5")
    a(f"s_sub_u32 s{sDG}, s{sID}, s{sT1}")
    a(f"s_min_u32 s{sT0}, s{sT0}, 5")
    a(f"s_mul_i32 s{sFT}, s{sXQ}, 6")
    a(f"s_add_u32 s{sFT}, s{sFT}, s{sT0}")
    a(f"s_lshl4_add_u32 s{sT1}, s{sDG}, s{sW}")
    a(f"s_mul_i32 s{sT1}, s{sT1}, 205")
    a(f"s_lshr_b32 s{sT1}, s{sT1}, 10")
    sOWN = 38
    if cfg.get('rkA', 0):
        a(f"s_lshr_b32 s{sCNT}, s{sT0}, 1")
        a(f"s_mul_i32 s{sCNT}, s{sCNT}, {cfg.get('rkA', 0)}")
        a(f"s_add_u32 s{sT1}, s{sT1}, s{sCNT}")
        a(f"s_and_b32 s{sT1}, s{sT1}, 15")
    a(f"s_lshl_b32 s{TK}, s{sT1}, 10")
    a(f"s_add_u32 s{sT1}, s{TK}, 1024")
    a(f"s_and_b32 s{TK+1}, s{sT1}, 0x3c00")
    a(f"s_lshl_b32 s{sRING}, s{sW}, 12")
    a(f"s_mul_i32 s{sT0}, s{sW}, {512*3072}")
    a(f"s_lshl_b32 s{sT1}, s{sFT}, 7")
    a(f"s_add_u32 s{sT0}, s{sT0}, s{sT1}")
    a.run(P.weight_src(3072, sT0))
    a(f"s_mov_b32 s{S_W+2}, 6291456")
    a(f"s_mov_b32 s{S_W+3}, 0x20000")
    P.split0 = len(a.out)
    a(f"s_cmp_ge_u32 s{sID}, 30")
    a(f"s_cselect_b32 s{sSP}, {OOB}, 0")
    a(f"s_mov_b64 {sp(S_W)}, {sp(50)}")
    a("s_cbranch_scc1 L_Amain")
    a.run(P.w_step())
    a.run([stamp('start')])
    a.run(P.w_step())
    a("s_branch L_Amain")
    P.split = len(a.out)
    a.label("L_Amain")
    if cfg.get('lay', 'C') != 'C':
        a.run(P.lanes())
    if cfg.get('hlpA', 1):
        a(f"s_cmp_lt_u32 s{sID}, 30")
        a("s_cbranch_scc1 L_Anh")
        a.begin_cond('hlp')
        a(f"s_lshl1_add_u32 s{sT0}, s{sXQ}, 3")
        a(f"s_and_b32 s{sT0}, s{sT0}, 7")
        a(f"s_min_u32 s{sT0}, s{sT0}, 5")
        a(f"s_lshr_b32 s{sCNT}, s{sT0}, 1")
        a(f"s_mul_i32 s{sCNT}, s{sCNT}, {cfg.get('rkA', 0)}")
        a(f"s_add_u32 s{sCNT}, s{sCNT}, 15")
        a(f"s_mul_i32 s{sT1}, s{sXQ}, 6")
        a(f"s_add_u32 s{sT0}, s{sT0}, s{sT1}")
        a(f"s_lshl_b32 s{sT0}, s{sT0}, 7")
        a(f"s_mul_i32 s{sT1}, s{sW}, {512*3072}")
        a(f"s_add_u32 s{sU0}, s{sT0}, s{sT1}")
        for i in range(2):
            if i == 0:
                a(f"v_lshrrev_b32 v{vT}, 5, v0")
                a(f"v_lshl_add_u32 v{vT}, s{sDG}, 1, v{vT}")
                a(f"v_and_b32 v{vT2}, 31, v0")
            else:
                a(f"v_mov_b32 v{vT}, 4")
                a(f"v_lshl_add_u32 v{vT2}, s{sDG}, 4, v{vI}")
            a(f"v_add_u32 v{vT}, 1, v{vT}")
            a(f"v_lshl_add_u32 v{vT}, v{vT}, 4, s{sW}")
            a(f"v_mul_u32_u24 v{vT}, 205, v{vT}")
            a(f"v_lshrrev_b32 v{vT}, 10, v{vT}")
            a(f"v_add_u32 v{vT}, s{sCNT}, v{vT}")
            a(f"v_and_b32 v{vT}, 15, v{vT}")
            a(f"v_lshl_add_u32 v{vT}, v{vT}, 5, v{vT2}")
            a(f"v_mul_u32_u24 v{vT}, 3072, v{vT}")
            if i:
                a("s_mov_b64 exec, 0xffff")
            a(f"buffer_load_dword v{250+i}, v{vT}, {srd(S_W)}, s{sU0} offen")
        a("s_mov_b64 exec, -1")
        a.end_cond()
        a.label("L_Anh")
    HA = cfg.get('hlpA2', 0)
    if HA:
        a(f"s_lshl1_add_u32 s{sT0}, s{sXQ}, 3")
        a(f"s_and_b32 s{sT0}, s{sT0}, 7")
        a(f"s_mul_i32 s{sT1}, s{sXQ}, 6")
        a(f"s_add_u32 s{sU0}, s{sT0}, s{sT1}")
        a(f"s_sub_u32 s{sT1}, s{sFT}, s{sU0}")
        a(f"s_add_u32 s{sT1}, s{sT1}, 5")
        a(f"s_cmp_ge_u32 s{sT1}, 6")
        a(f"s_cselect_b32 s{sCNT}, 6, 0")
        a(f"s_sub_u32 s{sT1}, s{sT1}, s{sCNT}")
        a(f"s_lshl_b32 s{sU0}, s{sU0}, 7")
        a(f"s_cmp_ge_u32 s{sT1}, 5")
        a(f"s_cselect_b32 s{sU0}, {OOB}, s{sU0}")
        a(f"s_cmp_ge_u32 s{sT0}, 6")
        a(f"s_cselect_b32 s{sU0}, {OOB}, s{sU0}")
        a(f"s_or_b32 s{sU0}, s{sU0}, s{sSP}")
        a(f"s_lshr_b32 s{sT0}, s{sT0}, 1")
        a(f"s_mul_i32 s{sT0}, s{sT0}, {cfg.get('rkA', 0)}")
        a(f"s_add_u32 s{sCNT}, s{sDG}, 1")
        a(f"s_lshl4_add_u32 s{sCNT}, s{sCNT}, s{sW}")
        a(f"s_mul_i32 s{sCNT}, s{sCNT}, 205")
        a(f"s_lshr_b32 s{sCNT}, s{sCNT}, 10")
        a(f"s_add_u32 s{sT0}, s{sT0}, s{sCNT}")
        a(f"s_add_u32 s{sT0}, s{sT0}, 14")
        a(f"s_and_b32 s{sT0}, s{sT0}, 15")
        a(f"s_lshl4_add_u32 s{sT0}, s{sW}, s{sT0}")
        a(f"s_lshl_b32 s{sT0}, s{sT0}, 5")
        a(f"s_mul_i32 s{sT1}, s{sT1}, {HA}")
        a(f"s_add_u32 s{sT0}, s{sT0}, s{sT1}")
        a(f"s_add_u32 s{sT0}, s{sT0}, {32 - 5*HA}")
        a(f"v_add_u32 v{vT}, s{sT0}, v0")
        a(f"v_mul_u32_u24 v{vT}, 3072, v{vT}")
        a(f"s_mov_b64 exec, {hex((1 << HA) - 1)}")
        a(f"buffer_load_dword v249, v{vT}, {srd(S_W)}, s{sU0} offen")
        a("s_mov_b64 exec, -1")
    for (s, n) in ((S_WS, WS_SIZE), (S_SSM, 2621440)):
        a(f"s_mov_b32 s{s+2}, {n}")
        a(f"s_mov_b32 s{s+3}, 0x20000")
    for j in range(2, 16):
        a(f"s_add_u32 s{sT1}, s{TK+j-1}, 1024")
        a(f"s_and_b32 s{TK+j}, s{sT1}, 0x3c00")
    a(f"s_add_u32 s{S_WS}, s66, {cfg.get('wso', 0) << 20}")
    a(f"s_addc_u32 s{S_WS+1}, s67, 0")
    a(f"s_mov_b64 {sp(S_SSM)}, {sp(44)}")
    a.run(P.weight_dst(False))
    a.run(P.zflag_addr(sFJ, 128))
    a.run(P.conv_setup(NC))
    vHL, vRW, vRR, vUS, vEP, vX0 = 10, 44, 47, 48, 49, 50
    BL = 54
    g1set = [f"s_mul_i32 s{sOWN}, s{sFT}, {cfg.get('roA', 0)}", f"s_add_u32 s{sOWN}, s{sOWN}, s{sW}", f"s_and_b32 s{sOWN}, s{sOWN}, 3",
             f"s_lshl_b32 s{sCNT}, s{sDG}, 18", f"s_lshl_b32 s{sT1}, s{sW}, 14", f"s_add_u32 s{sCNT}, s{sCNT}, s{sT1}",
             f"s_add_u32 s{sCNT}, s{sCNT}, s{sSP}"]
    for i in range(4):
        g1set += [f"s_add_u32 s{sT0}, s{sOWN}, {i+1}",
                  f"s_and_b32 s{sT0}, s{sT0}, 3",
                  f"s_mul_i32 s{sT1}, s{sT0}, 12288",
                  f"s_add_u32 s{sT1}, s{sT1}, {L_RED + (i*4096 if i < 3 else 0)}",
                  f"v_add_u32 v{vRW+i}, s{sT1}, v1",
                  f"s_lshl_b32 s{sT0}, s{sT0}, 16",
                  f"s_add_u32 s{sT0}, s{sT0}, s{sCNT}",
                  f"v_add_u32 v{vHL+i}, s{sT0}, v1",
                  f"v_add_u32 v{vHL+4+i}, {20*65536}, v{vHL+i}"]
    g1set += [f"v_lshl_add_u32 v{vP0}, s{sW}, 5, v0",
              f"v_mul_u32_u24 v{vP0}, {FS1}, v{vP0}",
              f"v_add_u32 v{vP0}, {WS_F1}, v{vP0}",
              f"s_lshl_b32 s{sT0}, s{sFT}, 7",
              f"v_lshl_add_u32 v{vX0}, v{vH}, 3, s{sT0}",
              f"s_lshl2_add_u32 s{sT0}, s{sDG}, s{sOWN}",
              f"s_mul_i32 s{sFI}, s{sT0}, 24",
              f"s_add_u32 s{sFI}, s{sFI}, s{sFT}",
              f"s_mul_i32 s{sFI}, s{sFI}, {FSU}",
              f"s_add_u32 s{sFI}, s{sFI}, {WS_FU}",
              f"s_add_u32 s{sFI}, s{sFI}, s{sSP}",
              f"s_mul_i32 s{sT0}, s{sT0}, 48",
              f"s_lshl1_add_u32 s{sT0}, s{sFT}, s{sT0}",
              f"s_lshl_b32 s{sT0}, s{sT0}, 10",
              f"s_add_u32 s{sT0}, s{sT0}, {WS_U}",
              f"s_add_u32 s{sT0}, s{sT0}, s{sSP}",
              f"v_add_u32 v{vUS}, s{sT0}, v1",
              f"s_mov_b32 s{sU2}, 0xbdd2d3e8",
              f"s_mov_b32 s{sU3}, {20*48*1024}",
              f"v_mov_b32 v52, 0xc0135761"]
    a.run(g1set)
    a.run(P.conv_setup2(NC))
    a.run(P.epoch_load(vEP))
    for t in range(4):
        a(f"global_load_dwordx2 {vr(BL+2*t,2)}, v{vX0}, {sp(P_B1)} offset:{32*t}")
    a(f"s_cmp_ge_u32 s{sID}, 30")
    a("s_cbranch_scc1 L_Aspare")
    a.run(P.w_step())
    a.run(P.w_step())
    BI, RD, PD4 = 112, 144, 248
    bun = []
    for t in range(8):
        bun += [f"v_lshlrev_b32 v{BI+2*t}, 16, v{BL+t}", f"v_and_b32 v{BI+2*t+1}, 0xffff0000, v{BL+t}"]
    PA = cfg.get('pollA', 14)
    while P.nxt < 16:
        if P.nxt == 8:
            a.run(P.set_tag(vEP))
            a.run(bun)
        a.run([stamp(f'w{P.nxt}')])
        it = P.w_step()
        if P.nxt - 1 == PA:
            it.insert(9, P.poll_issue(vP0, 32, 1, PD4))
        a.run(it)
    while P.drn < PA:
        a.run(P.w_step())
    a.run([P.poll_check('f1', vP0, 32, 1, PD4), stamp('f1_ok')])
    BUFS = ([64 + 4*i for i in range(8)] + [128 + 4*i for i in range(4)] + [228 + 4*i for i in range(5)] + [208 + 4*i for i in range(3)])[:NB]

    def h_load(n):
        i, j = divmod(n, 16)
        return f"buffer_load_dwordx4 {vr(BUFS[n % NB],4)}, v{vHL+i}, {srd(S_WS)}, s{TK+j} offen {cfg.get('apol', 'sc1')}"
    hn = 0
    HE = cfg.get('hearly', 8)
    left = 16 - P.drn
    while P.drn < 16:
        for _ in range(HE // left):
            a(h_load(hn)); hn += 1
        a.run(P.w_step())
    ACC = (96, 192)
    Z, G0, UO = ACC[1], 160, 220
    for r in range(2):
        mf, pos = [], {}
        for q in range(64 // GR):
            for t in range(4):
                for n in range(q * GR, (q + 1) * GR):
                    i, j = divmod(n, 16)
                    d = vr(ACC[i & 1] + 4 * t, 4)
                    pos.setdefault(n, len(mf))
                    c = d if j else ('0' if i < 3 else vr(BI + 4 * t, 4))
                    mf.append(f"v_mfma_f32_16x16x32_bf16 {d}, {ar(16*j+4*t,4)}, {vr(BUFS[(64*r + n) % NB],4)}, {c}")
        S = Sched(mf)
        for n in range(64):
            S.reserve(pos[n] - 1)
        k = 0
        while hn < 128:
            n = hn - 64 * r
            free = 4 * GR * ((n - NB) // GR + 1) if n >= NB else 0
            p = max(free, 4 * (n - NB + GR) + 1, 2 * k)
            if p > 255:
                break
            S.add('h', [h_load(hn)], p, p)
            hn += 1
            k += 1
        S.add('st', [stamp(f'g1first{r}')], 0, 0)
        lasth = p if r else 0
        if r == 0 and cfg.get('h2', 1):
            W2 = 4 if cfg.get('hl', 3) else 1
            p2 = cfg.get('pH2', 120 if W2 == 4 else 40)
            pc = max(150, p2 + 64)
            S.add('f2', [f"v_lshl_add_u32 v{vP0}, s{sW}, 5, v0", f"v_lshlrev_b32 v{vP0}, 4, v{vP0}", f"v_add_u32 v{vP0}, {WS_F1 + 0x4000}, v{vP0}",
                         P.poll_issue(vP0, 32, W2, PD4)], p2 - 4, p2)
            S.add('f2', [P.poll_check('f2', vP0, 32, W2, PD4)], pc, pc + 2)
            assert 4 * (64 - NB + GR) + 1 > pc + 3 and pc + 3 < 192 + cfg.get('pR', 15)
        for i in range(3):
            S.add('red', [(f"ds_write_b128 v{vRW+i}, {vr(ACC[i & 1]+4*t,4)} offset:{t*1024}", f'redw{r}{i}') for t in range(4)],
                  64 * (i + 1) + 1, 64 * (i + 1) + 13, pace=4 if i < 2 else 3)
        pR = 192 + cfg.get('pR', 15)
        S.add('red', [('wait', f'redw{r}2'), "s_barrier"], pR, pR + 1)
        S.add('red', [f"ds_read_b128 {vr(RD+4*k,4)}, v{vRR} offset:{k*1024}" for k in range(12)], pR + 2, pR + 16)
        S.add('add', [f"v_add_f32 v{RD+k}, v{RD+k}, v{RD+16+k}" for k in range(16)] +
                     [f"v_add_f32 v{RD+k}, v{RD+k}, v{RD+32+k}" for k in range(16)], pR + 17, 255)
        if r == 1:
            S.add('set', [f"v_subrev_u32 v{vRW+i}, {L_RED}, v{vRW+i}" for i in range(4)], 2, 30)
            pD = cfg.get('pD0', 40)
            S.add('fl', [('wait', 'ust0'), stamp('barD0'), P.flag(sFI), f"s_add_u32 s{sFI}, s{sFI}, {20*24*FSU}"], pD, pD + 1)
            S.add('fl', [P.poll_check('fk', vP1, 16, KW, PD4), stamp('fk_ok')], 150, 152)
            for i, x in enumerate(P.ssm_loads(NC) + P.x_loads(NC)):
                S.add('h', [x], lasth + 4 * (i + 1), lasth + 4 * (i + 1))
        a.run(S.items())
        P.info[f'g1{r}'] = (S.over, S.under)
        a.run([stamp(f'g1mfma{r}')])
        side = []
        if r == 0:
            while hn < 64 + NB:
                side.append(h_load(hn)); hn += 1
            a.run(side)
        for t in range(8):
            a(f"v_pk_add_f32 {vr(Z+2*t,2)}, {vr(Z+2*t,2)}, {vr(RD+2*t,2)}")
        for t in range(8):
            a(f"v_pk_mul_f32 {vr(G0+2*t,2)}, {vr(Z+2*t,2)}, {vr(Z+2*t,2)}")
        for t in range(8):
            a(f"v_pk_fma_f32 {vr(G0+2*t,2)}, {vr(G0+2*t,2)}, {sp(sU2)}, v[52:53] op_sel_hi:[1,0,0]")
        for t in range(8):
            a(f"v_pk_mul_f32 {vr(G0+2*t,2)}, {vr(G0+2*t,2)}, {vr(Z+2*t,2)}")
        for t in range(16):
            a(f"v_exp_f32 v{G0+t}, v{G0+t}")
        for t in range(8):
            a(f"v_pk_add_f32 {vr(G0+2*t,2)}, {vr(G0+2*t,2)}, 1.0 op_sel_hi:[1,0]")
        for t in range(16):
            a(f"v_rcp_f32 v{G0+t}, v{G0+t}")
        for t in range(8):
            a(f"v_pk_mul_f32 {vr(G0+2*t,2)}, {vr(G0+2*t,2)}, {vr(Z+2*t,2)}")
        for t in range(8):
            a(f"v_cvt_pk_bf16_f32 v{UO+t}, v{G0+2*t}, v{G0+2*t+1}")
        for half in range(2):
            a(f"buffer_store_dwordx4 {vr(UO+4*half,4)}, v{vUS}, {srd(S_WS)}, {'0' if r == 0 else f's{sU3}'} offen offset:{1024*half} sc1", tok=f'ust{r}')
        if r == 0:
            a(P.poll_issue(vP1, 16, KW, PD4))
        a.run([stamp(f'ust{r}')])
    a.label("L_Ajoin")
    a.wait('xd')
    a("s_barrier")
    CPA = cfg.get('cpreA', 4)
    a.run(P.conv_pre(CPA))
    S = P.conv_sched(NT, CPA, 2)
    pD = cfg.get('pD1', 30)
    S.add('fl', [('wait', 'ust1'), stamp('barD1'), P.flag(sFI)], pD, pD + 1)
    Z2 = NC == 3 and cfg.get('z2', 1)
    P.conv_run(S, NT, Z2, P.flag(sFJ))
    if Z2:
        a(f"s_add_u32 s{sFJ}, s{sJ}, 128")
        a(f"s_mul_i32 s{sFJ}, s{sFJ}, {FSZ}")
        a(f"s_lshl2_add_u32 s{sFJ}, s{sW}, s{sFJ}")
        a(f"s_add_u32 s{sFJ}, s{sFJ}, {WS_FZ + 16}")
    a.wait('zst2' if NC == 3 else 'zst1')
    a(P.flag(sFJ))
    if cfg.get('diagclean'):
        a(f"s_cmp_ge_u32 s{sID}, 20")
        a("s_cbranch_scc1 L_ncl")
        a(f"s_mul_i32 s{sT0}, s{sXQ}, 20")
        a(f"s_add_u32 s{sT0}, s{sT0}, s{sID}")
        a(f"s_lshl2_add_u32 s{sT0}, s{sT0}, s{sW}")
        a(f"s_lshl_b32 s{sT0}, s{sT0}, 13")
        a(f"v_lshlrev_b32 v{vT}, 7, v0")
        a(f"buffer_store_dword v0, v{vT}, {srd(S_WS)}, s{sT0} offen sc1")
        a(f"buffer_store_dword v0, v{vT}, {srd(S_WS)}, s{sT0} offen offset:64 sc1")
        a.label("L_ncl")
    a(f"s_cmp_lg_u32 s{sJ}, 31")
    a("s_cbranch_scc1 L_Adone")
    st, P.stamps = P.stamps, False
    a(f"v_lshl_add_u32 v{vP0}, s{sW}, 5, v0")
    a(f"v_mul_u32_u24 v{vP0}, {cfg.get('fsk', 16)}, v{vP0}")
    a(f"v_add_u32 v{vP0}, {WS_FK}, v{vP0}")
    a(P.poll_issue(vP0, 32, KW, PD4))
    a.run([P.poll_check('e0', vP0, 32, KW, PD4)])
    for k in range(2):
        a(f"s_mul_i32 s{sT0}, s{sW}, 120")
        a(f"s_add_u32 s{sT0}, s{sT0}, {60*k}")
        a(f"v_add_u32 v{vP0}, s{sT0}, v0")
        a(f"v_mul_u32_u24 v{vP0}, {FSU}, v{vP0}")
        a(f"v_add_u32 v{vP0}, {WS_FU}, v{vP0}")
        a(P.poll_issue(vP0, 60))
        a.run([P.poll_check(f'e{k+1}', vP0, 60)])
    a(f"v_lshl_add_u32 v{vP0}, s{sW}, 5, v0")
    a(f"v_mul_u32_u24 v{vP0}, {FSZ}, v{vP0}")
    a(f"v_add_u32 v{vP0}, {WS_FZ + 158*FSZ}, v{vP0}")
    a(P.poll_issue(vP0, 2, 4, PD4))
    a.run([P.poll_check('e3', vP0, 2, 4, PD4)])
    P.stamps = st
    a("s_barrier")
    a(f"s_mov_b32 s{sT0}, {WS_EP}")
    a(P.flag(sT0))
    a.label("L_Adone")
    P.finish()
    a("s_endpgm")
    b = Asm()
    P.a, st, P.stamps = b, P.stamps, False
    b.label("L_Aspare")
    b(f"s_mul_i32 s{sT0}, s{sXQ}, 160")
    b(f"s_mul_i32 s{sT1}, s{sDG}, {16*NC}")
    b(f"s_add_u32 s{sT0}, s{sT0}, s{sT1}")
    b(f"s_add_u32 s{sT0}, s{sT0}, 64")
    b(f"v_lshrrev_b32 v{vT}, 3, v0")
    b(f"v_add_lshl_u32 v{vT}, s{sT0}, v{vT}, 12")
    b(f"v_and_b32 v{vT2}, 7, v0")
    b(f"v_lshl_add_u32 v{vT2}, s{sW}, 3, v{vT2}")
    b(f"v_lshl_add_u32 v{vT}, v{vT2}, 7, v{vT}")
    b("s_waitcnt vmcnt(0)")
    b.run(P.set_tag(vEP))
    for i in range(2 * NC if cfg.get('spf', 1) else 0):
        b(f"s_mov_b32 s{sT0}, {i*8*4096}")
        b(f"buffer_load_dword v{64+i}, v{vT}, {srd(S_SSM)}, s{sT0} offen")
    b.run(P.ssm_loads(NC))
    b(P.poll_issue(vP1, 16, KW, PD4))
    b.run([P.poll_check('fs', vP1, 16, KW, PD4)])
    for i in range(2 * NC if cfg.get('xpf', 0) else 0):
        b(f"s_mov_b32 s{sT0}, {WS_KV + i*8*4096}")
        b(f"buffer_load_dword v{vPD}, v{vT}, {srd(S_WS)}, s{sT0} offen sc1") if False else b.raw(f"    buffer_load_dword v{vPD}, v{vT}, {srd(S_WS)}, s{sT0} offen sc1")
    b.run(P.x_loads(NC))
    b("s_waitcnt vmcnt(0) lgkmcnt(0)")
    b("s_branch L_Ajoin")
    a.out += b.out
    P.a, P.stamps = a, st
    return P


def prog_B(cfg):
    P = Prog('B', cfg)
    a, stamp = P.a, P.stamp
    a.smem_pending = set(KERNARG) | {'s96', 's97'}
    FS1, FSU, FSZ, FSK = cfg.get('fs1', 32), cfg.get('fsu', 64), cfg.get('fsz', 32), cfg.get('fsk', 16)
    sDT, sST = sA, sB
    KW, HW = cfg.get('kw', 1), cfg.get('hw', 1)
    NC = 3 if cfg.get('third', 'A') == 'B' else 2
    NT = 8*NC
    NMF = 136 if NC == 2 else 208
    a.label("L_B")
    if cfg.get('cpf', 1) and cfg.get('lay', 'C') != 'C':
        a.run(P.code_prefetch("L_pcB", "L_Amain"))
    a.run(P.lanes())
    XR, GR = 160, 180
    vQ, vG, vEP = 200, 201, 202
    a(f"s_lshr_b32 s{sT0}, s{sJ}, 1")
    a(f"s_lshl_b32 s{sT0}, s{sT0}, 5")
    a(f"s_and_b32 s{sT1}, s{sJ}, 1")
    a(f"s_lshl3_add_u32 s{sCNT}, s{sT1}, s{sT0}")
    a(f"s_lshl2_add_u32 s{sCNT}, s{sT2}, s{sCNT}")
    a(f"s_lshl4_add_u32 s{sCNT}, s{sT3}, s{sCNT}")
    a(f"v_add_u32 v{vQ}, s{sCNT}, v{vH}")
    a(f"v_mul_u32_u24 v{vQ}, 1280, v{vQ}")
    a(f"v_lshlrev_b32 v{vG}, 4, v{vI}")
    a(f"v_add_u32 v{vQ}, v{vQ}, v{vG}")
    def kvset():
        a(f"s_lshl3_add_u32 s{sU0}, s{sW}, s{sT0}")
        a(f"s_mul_i32 s{sU0}, s{sU0}, 1280")
        a(f"s_mul_i32 s{sU1}, s{sT1}, 640")
        a(f"s_add_u32 s{sU0}, s{sU0}, s{sU1}")
        a(f"v_add_u32 v{vKV}, s{sU0}, v1")
        a(f"s_mul_i32 s{sU0}, s{sW}, {(-7*1280) & 0xffffffff}")
        a(f"s_sub_u32 s{sU0}, s{sU0}, {4*1280}")
        a(f"v_add_u32 v{vKH}, s{sU0}, v{vKV}")
        a(f"s_mul_i32 s{sKL}, s{sW}, {8*PK + 32}")
        for (s, n) in ((S_K, 2621440), (S_V, 2621440), (S_WS, WS_SIZE), (S_W, 6291456), (S_SSM, 2621440)):
            a(f"s_mov_b32 s{s+2}, {n}")
            a(f"s_mov_b32 s{s+3}, 0x20000")
        a(f"s_lshl2_add_u32 s{sU0}, s{sT1}, s{sW}")
        a(f"s_mul_i32 s{sU0}, s{sU0}, 80")
        a(f"v_add_u32 v{vCH}, s{sU0}, v{vI}")
        a(f"v_lshlrev_b32 v{vS0}, 3, v{vCH}")
    vKV, vKH, vCH, vS0 = 60, 61, 62, 63
    sKL = sFI
    if not cfg.get('qfirst', 1):
        kvset()
    P.split0 = len(a.out)
    for i in range(5):
        a(f"global_load_dwordx4 {vr(XR+4*i,4)}, v{vQ}, {sp(P_Q)} offset:{256*i}")
    a.run([stamp('start')])
    if cfg.get('qfirst', 1):
        kvset()
    for (s, p) in ((S_K, 38), (S_V, 40), (S_W, 56), (S_SSM, 44)):
        a(f"s_mov_b64 {sp(s)}, {sp(p)}")
    a(f"s_add_u32 s{S_WS}, s66, {cfg.get('wso', 0) << 20}")
    a(f"s_addc_u32 s{S_WS+1}, s67, 0")
    vHS = 48
    a(f"s_lshl1_add_u32 s{sT0}, s{sJ}, s{sT3}")
    a(f"s_lshl_b32 s{sT0}, s{sT0}, 8")
    a(f"s_lshl_b32 s{sT1}, s{sT2}, 16")
    a(f"s_add_u32 s{sT0}, s{sT0}, s{sT1}")
    a(f"v_mul_u32_u24 v{vHS}, {5*65536}, v{vH}")
    a(f"v_lshl_add_u32 v{vHS}, v{vI}, 4, v{vHS}")
    a(f"v_add_u32 v{vHS}, s{sT0}, v{vHS}")
    a(f"s_mul_i32 s52, s{sT2}, {19*65536}")
    a(f"s_add_u32 s52, s52, {4*65536}")
    a(f"s_mov_b32 s53, {20*65536}")
    a(f"s_mov_b32 s64, {22*65536}")
    a(f"s_mov_b32 s81, {2*65536}")

    def claim():
        a(f"s_mov_b32 exec_lo, {cfg.get('clm', '0x01010101')}")
        a(f"s_mov_b32 exec_hi, {cfg.get('clm', '0x01010101')}")
        for so in ("0", "s81", "s52", "s53", "s64")[:cfg.get('ncl', 5)]:
            a(f"buffer_store_dword v0, v{vHS}, {srd(S_WS)}, {so} offen sc1", tok='claim')
        a("s_mov_b64 exec, -1")
    CL = cfg.get('claim', 0)
    if CL == 1:
        claim()
    a.run(P.epoch_load(vEP))

    def kv_dma(which, i):
        if which == 'h':
            return [f"s_mul_i32 s{sU0}, s{sW}, {PK}", f"s_add_u32 m0, s{sU0}, {L_KI}", "s_mov_b32 exec_hi, 0xff",
                    f"buffer_load_dwordx4 v{vKH}, {srd(S_K)}, 0 offen {cfg.get('kpol', '')} lds", "s_mov_b32 exec_hi, -1"]
        base = L_KI + (4 + i) * PK + (32 if i >= 4 else 0) if which == 'k' else L_VI + i * PK
        return [f"s_add_u32 m0, s{sKL}, {base}", f"s_mov_b32 s{sU0}, {i*1280}", "s_mov_b32 exec_hi, 0xff",
                (f"buffer_load_dwordx4 v{vKV}, {srd(S_K if which == 'k' else S_V)}, s{sU0} offen {cfg.get('kpol', '')} lds", 'kvdma'), "s_mov_b32 exec_hi, -1"]

    def kv_batch(lst):
        it = []
        for (wh, i) in lst:
            x = kv_dma(wh, i)
            if it:
                it.pop()
                x.remove("s_mov_b32 exec_hi, 0xff")
            it += x
        return it
    kvq = [('h', 0)] + [('k', i) for i in range(8)] + [('v', i) for i in range(8)]
    a(f"s_and_b32 s{sDT}, s{sID}, 3")
    a(f"s_lshr_b32 s{sT0}, s{sID}, 2")
    a(f"s_lshl3_add_u32 s{sST}, s{sXQ}, s{sT0}")
    vLW, vA1, vHS, vGS, vKVA, vKVS, vGV = 44, 46, 48, 49, 50, 51, 58
    a(f"v_lshl_add_u32 v{vT}, s{sW}, 2, v{vH}")
    a(f"s_lshl_b32 s{sT0}, s{sJ}, 4")
    a(f"v_add_lshl_u32 v{vGS}, s{sT0}, v{vT}, 2")
    a(f"v_add_u32 v{vGS}, {WS_G}, v{vGS}")
    a(f"v_mul_u32_u24 v{vT}, {PL}, v{vT}")
    a(f"v_add_u32 v{vT}, {L_LN}, v{vT}")
    a(f"v_add_u32 v{vLW}, v{vT}, v{vG}")
    a(f"v_mul_u32_u24 v{vT}, {PL}, v{vR}")
    a(f"v_mul_u32_u24 v{vT2}, 320, v{vH}")
    a(f"s_mul_i32 s{sT0}, s{sT3}, {8*PL}")
    a(f"s_lshl3_add_u32 s{sT0}, s{sT2}, s{sT0}")
    a(f"s_add_u32 s{sT0}, s{sT0}, {L_LN}")
    a(f"v_add3_u32 v{vT}, v{vT}, v{vT2}, s{sT0}")
    a(f"v_lshl_add_u32 v{vA1}, v{vC}, 4, v{vT}")
    a(f"v_mul_u32_u24 v{vT}, {8*PK + 32}, v{vH}")
    a(f"v_mul_u32_u24 v{vT2}, {PK}, v{vR}")
    a(f"s_mul_i32 s{sT0}, s{sW}, 160")
    a(f"s_add_u32 s{sT0}, s{sT0}, {L_KI}")
    a(f"v_add3_u32 v{vT}, v{vT}, v{vT2}, s{sT0}")
    a(f"v_lshl_add_u32 v{vKVA}, v{vC}, 3, v{vT}")
    a(f"v_lshlrev_b32 v{vKVS}, 12, v{vCH}")
    a(f"v_lshl_add_u32 v{vKVS}, v{vH}, 4, v{vKVS}")
    a(f"s_lshr_b32 s{sT0}, s{sJ}, 1")
    a(f"s_lshl_b32 s{sT1}, s{sT0}, 6")
    a(f"s_add_u32 s{sT1}, s{sT1}, {WS_KV}")
    a(f"v_add_u32 v{vKVS}, s{sT1}, v{vKVS}")
    a(f"s_and_b32 s{sT1}, s{sJ}, 1")
    a(f"s_lshl_b32 s{sT1}, s{sT1}, 6")
    a(f"s_add_u32 s{sFJ}, s{sT0}, s{sT1}")
    a(f"s_mul_i32 s{sFJ}, s{sFJ}, {FSK}")
    a(f"s_lshl2_add_u32 s{sFJ}, s{sW}, s{sFJ}")
    a(f"s_add_u32 s{sFJ}, s{sFJ}, {WS_FK}")
    a(f"s_mul_i32 s{sU3}, s{sJ}, {FS1}")
    a(f"s_add_u32 s{sU3}, s{sU3}, {WS_F1}")
    for k in range(1, 5):
        a(f"s_mov_b32 s{79+k}, {k*65536}")
    for i in range(5):
        a(f"global_load_dwordx4 {vr(GR+4*i,4)}, v{vG}, {sp(P_GW)} offset:{256*i}")
    nq = cfg.get('kvq0', 6)
    if nq:
        a.run(kv_batch(kvq[:nq])); kvq = kvq[nq:]
    if CL == 2:
        claim()
    if cfg.get('ptouch'):
        a(f"v_lshlrev_b32 v{vT}, {cfg['ptouch']}, v0")
        a(f"s_lshl_b32 s{sT0}, s{sJ}, 9")
        a(P.setexec(min(64, (5 << 20) >> cfg['ptouch'])) if (5 << 20) >> cfg['ptouch'] < 64 else "s_nop 0")
        a(f"buffer_load_dword v251, v{vT}, {srd(S_WS)}, s{sT0} offen")
        a("s_mov_b64 exec, -1")
    a.run([stamp('iss2')])

    S1, S2, vRS, vNM, XF = 64, 65, 66, 68, 72
    DP = ("quad_perm:[1,0,3,2]", "quad_perm:[2,3,0,1]", "row_half_mirror", "row_mirror")
    unp = []
    for i in range(20):
        unp += [f"v_lshlrev_b32 v{XF+2*i}, 16, v{XR+i}", f"v_and_b32 v{XF+2*i+1}, 0xffff0000, v{XR+i}"]
    ln = [f"s_mov_b32 s{sU2}, 0x3f803f80"]
    for i in range(20):
        c = lambda r: "0" if i == 0 else f"v{r}"
        ln += [f"v_dot2_f32_bf16 v{S1}, v{XR+i}, s{sU2}, {c(S1)}", f"v_dot2_f32_bf16 v{S2}, v{XR+i}, v{XR+i}, {c(S2)}"]
    inv = 0x3ACCCCCD
    red = []
    for m in DP:
        red += [f"v_add_f32_dpp v{x}, v{x}, v{x} {m} row_mask:0xf bank_mask:0xf" for x in (S1, S2)]
    red += [f"v_mul_f32 v{S1}, {hex(inv)}, v{S1}",
            f"v_mul_f32 v{S2}, {hex(inv)}, v{S2}",
            f"v_fma_f32 v{S2}, -v{S1}, v{S1}, v{S2}",
            f"v_max_f32 v{S2}, 0, v{S2}",
            f"v_add_f32 v{S2}, 0x3727c5ac, v{S2}",
            f"v_rsq_f32 v{vRS}, v{S2}",
            f"v_mul_f32_e64 v{vNM}, -v{S1}, v{vRS}"]
    ln += unp[:3] + merge(red, unp[3:])
    HP = 112
    for i in range(5):
        ln += [f"v_pk_fma_f32 {vr(XF+2*k,2)}, {vr(XF+2*k,2)}, {vr(vRS,2)}, {vr(vNM,2)} op_sel_hi:[1,0,0]" for k in range(4*i, 4*i+4)]
        ln += [f"v_cvt_pk_bf16_f32 v{HP+k}, v{XF+2*k}, v{XF+2*k+1}" for k in range(4*i, 4*i+4)]
        ln.append((f"ds_write_b128 v{vLW}, {vr(HP+4*i,4)} offset:{256*i}", 'lnw'))
    gate = [f"v_dot2_f32_bf16 v{vGV}, v{XR+i}, v{GR+i}, {'0' if i == 0 else f'v{vGV}'}" for i in range(20)]
    gate += [f"v_add_f32_dpp v{vGV}, v{vGV}, v{vGV} {m} row_mask:0xf bank_mask:0xf" for m in DP]
    gate += [f"v_mul_f32 v{vGV}, 0xbfb8aa3b, v{vGV}", f"v_exp_f32 v{vGV}, v{vGV}", f"v_add_f32 v{vGV}, 1.0, v{vGV}", f"v_rcp_f32 v{vGV}, v{vGV}",
             "s_mov_b32 exec_lo, 0x10001", "s_mov_b32 exec_hi, 0x10001",
             (f"buffer_store_dword v{vGV}, v{vGS}, {srd(S_WS)}, 0 offen sc1", 'hst2'), "s_mov_b64 exec, -1"]
    a.run(ln[:41])
    a.run([stamp('q_in')])
    nq = cfg.get('kvq1', 4)
    if nq:
        a.run(kv_batch(kvq[:nq])); kvq = kvq[nq:]
    a.run(ln[41:])
    a.wait('lnw')
    a("s_barrier")
    a.run([stamp('barL')])
    HB = 64
    H2 = cfg.get('h2', 1)
    HL = cfg.get('hl', 3) if H2 else 0
    HBR = (64, 68, 204, 208, 212) if HL else (64, 68, 72, 76, 80)
    for u, off in enumerate((0, 64, 256, 128, 192)):
        for e2 in range(2):
            a(f"ds_read_b64_tr_b16 {vr(HBR[u]+2*e2,2)}, v{vA1} offset:{off + e2*4*PL}")
    if CL:
        a.wait('claim')
    if cfg.get('dummyst') is not None:
        a(f"s_mov_b32 s{S_WS+2}, 0x4000000")
        a(f"v_add_u32 v{vT}, {cfg['dummyst']}, v{vHS}")
        for u, so in enumerate(("0", "s81", "s52", "s53", "s64")):
            if u in cfg.get('dun', range(5)):
                a(f"buffer_store_dwordx4 {vr(HB+4*u,4)}, v{vT}, {srd(S_WS)}, {so} offen {cfg.get('dpol', 'sc1')}", tok='dum')
        a.wait('dum')
        a.run([stamp('dum')])
    hst = [(f"buffer_store_dwordx4 {vr(HBR[u],4)}, v{vHS}, {srd(S_WS)}, {so} offen sc1", 'hst' if u < 3 or not H2 else 'hst3')
           for u, so in enumerate(("0", "s81", "s52", "s53", "s64"))]
    HX = HL and cfg.get('hx', 0)
    if HX:
        a(f"s_cmp_lt_u32 s{sW}, 2")
        a(f"s_cselect_b32 s65, {OOB}, s52")
        a(f"s_cselect_b32 s52, s52, {OOB}")
        hst.insert(3, (hst[2][0].replace("s52", "s65"), 'hst3'))
    HS = cfg.get('hs', 0)
    for x in (hst[:3] if HL else hst):
        a.run([x])
        if HS and x is not hst[2]:
            a.run(kv_batch(kvq[:HS])); kvq = kvq[HS:]
    a.run([stamp('h_iss')])
    a.run(gate)
    a.run(P.set_tag(vEP))
    vQO, vQO2, vGA, vX1, vQO1 = 36, 41, 253, 250, 15
    QR, vGG, vB2 = 44, 16, 17

    def bigset():
        a(f"s_bfe_u32 s{sT0}, s{sST}, 0x10001")
        a(f"s_mul_i32 s{sT0}, s{sT0}, {cfg.get('rkB', 0)}")
        a(f"s_add_u32 s{sT0}, s{sT0}, s{sDT}")
        a(f"s_and_b32 s{sT0}, s{sT0}, 3")
        a(f"s_mul_i32 s{TK}, s{sT0}, 3072")
        a(f"s_and_b32 s{sSP}, s{sST}, {cfg.get('swB', 1)}")
        for j in range(1, 12):
            a(f"s_add_u32 s{sT0}, s{TK+j-1}, 1024")
            a(f"s_cmp_lt_u32 s{sT0}, {12*1024}")
            a(f"s_cselect_b32 s{TK+j}, s{sT0}, 0")
        a(f"s_mul_i32 s{sT0}, s{sW}, {384*4096}")
        a(f"s_lshl_b32 s{sT1}, s{sST}, 7")
        a(f"s_add_u32 s{sT0}, s{sT0}, s{sT1}")
        a.run(P.weight_src(4096, sT0) + P.weight_dst(True))
        a.run(P.conv_setup(NC))
        a.run(P.conv_setup2(NC))
        a(f"s_lshl2_add_u32 s{sT0}, s{sST}, s{sW}")
        a(f"v_lshl_add_u32 v{vT}, s{sT0}, 4, v{vI}")
        a(f"v_lshlrev_b32 v{vX1}, 1, v{vT}")
        a(f"v_mul_u32_u24 v{vT}, 1280, v{vT}")
        a(f"s_mul_i32 s{sT0}, s{sDT}, 320")
        a(f"v_add_u32 v{vT}, s{sT0}, v{vT}")
        a(f"v_lshl_add_u32 v{vQO2}, v{vH}, 4, v{vT}")
        a(f"s_lshl_b32 s{sT0}, s{sSP}, 6")
        a(f"v_add_u32 v{vQO}, s{sT0}, v{vQO2}")
        a(f"v_subrev_u32 v{vQO1}, s{sT0}, v{vQO2}")
        a(f"s_lshl1_add_u32 s{sT0}, s{sST}, s{sT2}")
        a(f"s_lshl3_add_u32 s{sT0}, s{sT0}, s{sT3}")
        a(f"s_lshl_b32 s{sT0}, s{sT0}, 4")
        a(f"s_add_u32 s{sT0}, s{sT0}, {WS_G}")
        a(f"v_lshl_add_u32 v{vT}, v{vR}, 5, s{sT0}")
        a(f"v_lshl_add_u32 v{vGA}, v{vC}, 2, v{vT}")

    SP = cfg.get('setp', 1)
    if SP == 0:
        bigset()
    nq = cfg.get('kvq2', 7)
    if nq and kvq:
        a.run(kv_batch(kvq[:nq])); kvq = kvq[nq:]
    a.wait('hst' if H2 else 'hst2')
    a.run([P.flag_wg(sU3, 'f1'), stamp('barH')])
    if kvq:
        a.run(kv_batch(kvq))
    CF = 148
    for u in range(5):
        a(f"global_load_dwordx2 {vr(CF+2*u,2)}, v{vS0}, {sp(P_SH)} offset:{128*u}")
    if HL:
        a.run(hst[3:])
    if SP == 1:
        bigset()
    a.run(P.ssm_loads(NC))

    def helper():
        HR = cfg.get('hlpB', 6)
        if HR:
            a(f"s_add_u32 s{sT0}, s{sST}, 4")
            a(f"s_and_b32 s{sT0}, s{sT0}, 7")
            a(f"s_mul_i32 s{sT1}, s{sT0}, {HR}")
            a(f"s_cmp_eq_u32 s{sT0}, 7")
            a(f"s_cselect_b32 s{sU2}, {OOB}, 0")
            a(f"s_lshl2_add_u32 s{sT0}, s{sW}, s{sDT}")
            a(f"s_mul_i32 s{sT0}, s{sT0}, 96")
            a(f"s_add_u32 s{sT0}, s{sT0}, s{sT1}")
            a(f"s_add_u32 s{sT0}, s{sT0}, {96 - 7*HR}")
            a(f"v_add_lshl_u32 v{vT}, s{sT0}, v0, 12")
            a(f"s_lshl_b32 s{sT0}, s{sXQ}, 10")
            a(f"s_add_u32 s{sT0}, s{sT0}, 384")
            a(f"s_add_u32 s{sU2}, s{sU2}, s{sT0}")
            a(f"s_mov_b64 exec, {hex((1 << HR) - 1)}")
            a(f"buffer_load_dword v251, v{vT}, {srd(S_W)}, s{sU2} offen")
            a("s_mov_b64 exec, -1")
    WP = cfg.get('wBpre', 1)
    if WP:
        helper()
    if WP >= 2:
        a.run(P.w_step())

    if HL:
        a(f"s_lshl2_add_u32 s{sU3}, s{sJ}, s{sW}")
        a(f"s_lshl_b32 s{sU3}, s{sU3}, 2")
        a(f"s_add_u32 s{sU3}, s{sU3}, {WS_F1 + 0x4000}")
        a.wait('kvdma')
        a.run(["s_barrier", stamp('barK')])
    elif H2:
        a(f"s_mul_i32 s{sU3}, s{sJ}, 16")
        a(f"s_add_u32 s{sU3}, s{sU3}, {WS_F1 + 0x4000}")
        a.wait('kvdma', 'hst2')
        a.run([P.flag_wg(sU3, 'f2'), stamp('barK')])
    else:
        a.wait('kvdma')
        a.run(["s_barrier", stamp('barK')])
    KR, KO = 64, 160

    def kv_reads(u):
        it = [f"ds_read_b64_tr_b16 {vr(KR+10*u+2*j,2)}, v{vKVA} offset:{32*u + 4*j*PK + (32 if j == 2 else 0)}" for j in range(3)]
        it += [f"ds_read_b64_tr_b16 {vr(KR+10*u+6+2*j,2)}, v{vKVA} offset:{32*u + 4*j*PK + (L_VI-L_KI)}" for j in range(2)]
        return it

    def kv_compute(u):
        it = []
        k = KR + 10 * u
        c10, c32 = CF + 2 * u, CF + 2 * u + 1
        SH, AC, VF, OUT = 116, 124, 132, KO + 4 * u
        for n in range(5):
            it.append(f"v_alignbit_b32 v{SH+n}, v{k+n+1}, v{k+n}, 16")
        pr = lambda e: (k + (e + 1) // 2, k + (e + 3) // 2) if e & 1 else (SH + e // 2, SH + e // 2 + 1)
        for e in range(8):
            it.append(f"v_dot2_f32_bf16 v{AC+e}, v{pr(e)[0]}, v{c32}, 0")
        for e in range(8):
            it.append(f"v_dot2_f32_bf16 v{AC+e}, v{pr(e)[1]}, v{c10}, v{AC+e}")
        for n in range(4):
            it.append(f"v_lshlrev_b32 v{VF+2*n}, 16, v{k+6+n}")
            it.append(f"v_and_b32 v{VF+2*n+1}, 0xffff0000, v{k+6+n}")
        for n in range(4):
            it.append(f"v_pk_mul_f32 {vr(AC+2*n,2)}, {vr(AC+2*n,2)}, {vr(VF+2*n,2)}")
        for n in range(4):
            it.append(f"v_cvt_pk_bf16_f32 v{OUT+n}, v{AC+2*n}, v{AC+2*n+1}")
        it.append((f"buffer_store_dwordx4 {vr(OUT,4)}, v{vKVS}, {srd(S_WS)}, {'0' if u == 0 else f's{79+u}'} offen sc1", 'kvst'))
        return it
    a.run(kv_reads(0) + kv_reads(1))
    if WP & 1:
        a.run(P.w_step())
    for u in range(10):
        a(f"v_alignbit_b32 v{CF+u}, v{CF+u}, v{CF+u}, 16")
    for u in range(5):
        a.run(merge(kv_compute(u), kv_reads(u + 2) if u < 3 else []))
        if HL and u == HL - 1:
            a.run([('wait', 'hst3'), P.flag(sU3)])
    a.run([stamp('kv_done')])
    if not cfg.get('wBpre', 1):
        helper()
    for _ in range(cfg.get('wB0', 1)):
        a.run(P.w_step())
    a.wait('kvst')
    a.run([P.flag_wg(sFJ, 'fk') if KW == 1 else P.flag(sFJ), stamp('barV')] + P.zflag_addr(sFJ, 0))
    a(f"global_load_ushort v{vB2}, v{vX1}, {sp(P_B2)}")
    while P.nxt < cfg.get('pollB', 7):
        a.run(P.w_step())
    a(P.poll_issue(vP1, 16, KW, 204))
    for _ in range(cfg.get('pollgapB', 0)):
        a.run(P.w_step())
    a.run([P.poll_check('fk', vP1, 16, KW, 204), stamp('fk_ok')])
    a.run(P.x_loads(NC))
    qa = lambda p: f"v{(vQO, vQO1, vQO, vQO1, vQO2)[p]}"
    qld = [f"global_load_dwordx4 {vr(QR+4*p,4)}, {qa(p)}, {sp(P_Q)} offset:{64*p}" for p in range(5)]
    for _ in range(cfg.get('xgapB', 1)):
        a.run(P.w_step())
    a.wait('xd')
    a("s_barrier")
    a.run([stamp('barC')])

    CPB = cfg.get('cpreB', 4)
    a.run(P.conv_pre(CPB))
    while P.nxt < NR:
        a.run(P.w_step())
    S = P.conv_sched(NT, CPB, cfg.get('ccap', 2.3), cfg.get('sg0', 100))
    cS, cE = cfg.get('cS', 0), cfg.get('cE', NMF - 36)
    nst = 12 - P.nxt
    per = (cE - cS) / (nst + 1)
    for r in range(nst):
        p0 = cS + r * per
        it = P.w_step()
        for k, x in enumerate(it[:9]):
            S.add('wd', [x], int(p0 + k * per / 14), int(p0 + (k + 1) * per / 14))
        p1 = p0 + per
        S.add('w', it[9:11], int(p1 - per / 5), int(p1) - 1)
        S.add('w', it[11:12], int(p1), int(p1))
        for k, x in enumerate(it[12:]):
            S.add('w', [x], int(p1 + k * per / 4), int(p1 + k * per / 4))
    S.add('wd', P.w_step(), int(cE - per), int(cE) - 1, pace=per / 11)
    tail = []
    while P.drn < 12:
        tail += P.w_step()
    S.add('wd', tail, cE, None, pace=(NMF - cE) / len(tail))
    vUL = 10
    uset = [f"s_mul_i32 s{sT0}, s{sDT}, 120",
            f"s_mul_i32 s{sT1}, s{sW}, 6",
            f"s_add_u32 s{sT0}, s{sT0}, s{sT1}",
            f"v_mul_u32_u24 v{vT}, 43, v0",
            f"v_lshrrev_b32 v{vT}, 8, v{vT}",
            f"v_mul_u32_u24 v{vT}, 18, v{vT}",
            f"v_add3_u32 v{vP0}, s{sT0}, v0, v{vT}",
            f"v_mul_u32_u24 v{vP0}, {FSU}, v{vP0}",
            f"v_add_u32 v{vP0}, {WS_FU}, v{vP0}",
            f"s_mul_i32 s{sT0}, s{sDT}, {5*48}",
            f"s_lshl1_add_u32 s{sT0}, s{sT1}, s{sT0}",
            f"s_lshl_b32 s{sT0}, s{sT0}, 10",
            f"s_add_u32 s{sT0}, s{sT0}, {WS_U}",
            f"v_add_u32 v{vUL+4}, s{sT0}, v1",
            f"s_mul_i32 s{sT0}, s{sSP}, {96*1024}",
            f"v_add_u32 v{vUL}, s{sT0}, v{vUL+4}",
            f"s_sub_u32 s{sT0}, {96*1024}, s{sT0}",
            f"v_add_u32 v{vUL+2}, s{sT0}, v{vUL+4}",
            f"v_add_u32 v{vUL+1}, {48*1024}, v{vUL}",
            f"v_add_u32 v{vUL+3}, {48*1024}, v{vUL+2}",
            f"v_add_u32 v{vUL+4}, {192*1024}, v{vUL+4}"]
    S.add('set', uset, 40, 118)
    for k, x in enumerate(qld):
        qp = cfg.get('qS', 20) + cfg.get('qD', 16) * k
        S.add('q', [x], qp, qp)
    pU = NMF - cfg.get('pU0', 16)
    S.add('set', [P.poll_issue(vP0, 30)], pU, pU)
    NB2, GR2, UE = cfg.get('nb2', 16), cfg.get('grp2', 2), cfg.get('uearly', 8)
    UBUF = ([ar(192 + 4*i, 4) for i in range(16)] + [vr(92 + 4*i, 4) for i in range(4)])[:NB2]
    vUM = 220

    def u_load(n):
        m, j = divmod(n, 12)
        return f"buffer_load_dwordx4 {UBUF[n % NB2]}, v{vUL+m if m < 5 else vUM+m-5}, {srd(S_WS)}, s{TK+j} offen {cfg.get('apol', 'sc1')}"
    ustart = [P.poll_check('fu0', vP0, 30), stamp('fu0_ok')] + [u_load(n) for n in range(UE)]
    UEP = cfg.get('uep', 1)
    P.conv_run(S, NT, False, mid=[ustart if k == UEP else [] for k in range(3)])

    NB2, GR2, UE = cfg.get('nb2', 16), cfg.get('grp2', 2), cfg.get('uearly', 8)
    UBUF = ([ar(192 + 4*i, 4) for i in range(16)] + [vr(92 + 4*i, 4) for i in range(4)])[:NB2]
    AC2, OWN, RD2, RD4 = (108, 120), 132, 172, 208
    GQ, ZL, ZRg, ZU = 228, 64, 76, 88
    vZG, vZLW, vZT, vOG, vR2R, vR2W, vUM = 20, 21, 22, 28, 33, 25, 220
    vR2S, vR2X, PDZ, vP2 = 23, 30, 226, 225
    opol = cfg.get('opol', 'sc1')
    g2set = [f"v_add_u32 v{vUM+m}, {cfg.get('wiU', 20*48*1024)}, v{vUL+m}" for m in range(5)]
    g2set += [f"v_add_u32 v{vP0}, {20*24*FSU}, v{vP0}",
              f"v_lshrrev_b32 v{vT}, 3, v0",
              f"v_lshl_add_u32 v{vT}, s{sW}, 3, v{vT}",
              f"v_and_b32 v{vT2}, 7, v0",
              f"v_lshlrev_b32 v{vT2}, 4, v{vT2}",
              f"v_lshl_add_u32 v{vZG}, v{vT}, 12, v{vT2}",
              f"v_mul_u32_u24 v{vT}, {PZ}, v{vT}",
              f"v_add_u32 v{vT}, v{vT}, v{vT2}",
              f"v_add_u32 v{vZLW}, {L_ZI}, v{vT}",
              f"s_mul_i32 s{sT0}, s{sDT}, {160*4096}",
              f"s_lshl_b32 s{sT1}, s{sST}, 7",
              f"s_add_u32 s{sT0}, s{sT0}, s{sT1}",
              f"s_add_u32 s{sT0}, s{sT0}, {WS_Z}",
              f"s_lshl_b32 s{sT1}, s{sSP}, 17",
              f"s_add_u32 s80, s{sT0}, s{sT1}",
              f"s_sub_u32 s81, s{sT0}, s{sT1}",
              f"s_add_u32 s81, s81, {32*4096}",
              f"s_add_u32 s82, s80, {64*4096}",
              f"s_add_u32 s83, s81, {64*4096}",
              f"s_add_u32 s{sX0}, s{sT0}, {128*4096}",
              f"v_lshl_add_u32 v{vT}, v{vH}, 3, v{vR}",
              f"v_mul_u32_u24 v{vT}, {PZ}, v{vT}",
              f"s_lshl_b32 s{sT0}, s{sW}, 5",
              f"s_add_u32 s{sT0}, s{sT0}, {L_ZI}",
              f"v_lshl_add_u32 v{vZT}, v{vC}, 3, s{sT0}",
              f"v_add_u32 v{vZT}, v{vZT}, v{vT}"]
    for jn in range(1, 4):
        g2set += [f"s_xor_b32 s{sT0}, s{sW}, {jn}",
                  f"s_mul_i32 s{sT0}, s{sT0}, 3072",
                  f"s_add_u32 s{sT0}, s{sT0}, {(jn-1)*1024}",
                  f"v_add_u32 v{vR2W+jn-1}, s{sT0}, v1",
                  f"v_add_u32 v{vR2X+jn-1}, {L_RED}, v{vR2W+jn-1}"]
    g2set += [f"s_mul_i32 s{sT0}, s{sW}, 3072",
              f"v_add_u32 v{vR2R}, s{sT0}, v1",
              f"v_add_u32 v{vR2S}, {L_RED}, v{vR2R}",
              f"s_lshl3_add_u32 s{sT0}, s{sDT}, s{sW}",
              f"s_lshl_b32 s{sT0}, s{sT0}, 2",
              f"v_lshl_add_u32 v{vP1}, v{vR}, 4, v{vC}",
              f"v_add_u32 v{vP1}, s{sT0}, v{vP1}",
              f"v_mul_u32_u24 v{vP1}, {FSZ}, v{vP1}",
              f"s_and_b32 s{sT1}, s{sST}, 1",
              f"s_lshl_b32 s{sT1}, s{sT1}, 3",
              f"s_add_u32 s{sT1}, s{sT1}, {WS_FZ}",
              f"v_add_u32 v{vP1}, s{sT1}, v{vP1}",
              f"s_lshl2_add_u32 s{sT0}, s{sDT}, s{sW}",
              f"v_and_b32 v{vT}, 7, v0",
              f"v_lshl_add_u32 v{vP2}, s{sT0}, 3, v{vT}",
              f"v_mul_u32_u24 v{vP2}, {FSZ}, v{vP2}"]
    Z2 = NC == 2 and cfg.get('z2', 1)
    if Z2:
        g2set += [f"s_and_b32 s{sT1}, s{sST}, 3", f"s_lshl_b32 s{sT1}, s{sT1}, 2", f"s_add_u32 s{sT1}, s{sT1}, {WS_FZ + 128*FSZ + 16}",
                  f"v_add_u32 v{vP2}, s{sT1}, v{vP2}"]
    else:
        g2set += [f"v_add_u32 v{vP2}, s{sT1}, v{vP2}", f"v_cmp_lt_u32 vcc, 7, v0", "s_nop 1", f"v_cndmask_b32 v{vP1}, v{vP1}, v{vP2}, vcc"]
    nz0 = 16 if NC == 3 else 8
    nz1 = 16 if NC == 2 and not Z2 else 8
    zso = (80, 81, 82, 83, sX0)
    ptile = ((0, 1), (2, 3), (5, 6), (7, 8), (4, 9))

    def u_load(n):
        m, j = divmod(n, 12)
        return f"buffer_load_dwordx4 {UBUF[n % NB2]}, v{vUL+m if m < 5 else vUM+m-5}, {srd(S_WS)}, s{TK+j} offen {cfg.get('apol', 'sc1')}"

    def mf2(n, jn):
        m, j = divmod(n, 12)
        d = vr(OWN + 4 * m, 4) if jn == 0 else vr(AC2[m & 1] + 4 * (jn - 1), 4)
        return f"v_mfma_f32_16x16x32_bf16 {d}, {UBUF[n % NB2]}, {ar(16*j+4*jn,4)}, {'0' if j == 0 else d}"
    rd = lambda m, s: [f"ds_read_b128 {vr(RD2+12*s+4*k,4)}, v{vR2R if m < 5 else vR2S} offset:{(m % 5)*12288 + k*1024}" for k in range(3)]
    ad = lambda m, s: [f"v_add_f32 v{OWN+4*m+r}, v{OWN+4*m+r}, v{RD2+12*s+4*k+r}" for k in range(3) for r in range(4)]
    wr = lambda m: [(f"ds_write_b128 v{(vR2W if m < 5 else vR2X)+jn-1}, {vr(AC2[m & 1]+4*(jn-1),4)} offset:{(m % 5)*12288}", f'r2w{m}') for jn in range(1, 4)]
    z_ld = lambda ps: [f"buffer_load_dwordx4 {vr(ZL+4*i,4)}, v{vZG}, {srd(S_WS)}, s{zso[p]} offen sc1" for i, p in enumerate(ps)]
    z_wr = lambda ps: [f"ds_write_b128 v{vZLW}, {vr(ZL+4*i,4)} offset:{p*32*PZ}" for i, p in enumerate(ps)]
    z_rd = lambda p: [f"ds_read_b64_tr_b16 {vr(ZRg+4*(p % 3)+2*hh,2)}, v{vZT} offset:{(32*p + 4*hh)*PZ}" for hh in range(2)]

    def gq(p):
        it = []
        pp = GQ + 8 * (p % 3)
        for k in range(4):
            it += [f"v_lshlrev_b32 v{pp+2*k}, 16, v{QR+4*p+k}", f"v_and_b32 v{pp+2*k+1}, 0xffff0000, v{QR+4*p+k}",
                   f"v_mul_f32 v{pp+2*k}, v{pp+2*k}, v{vGG}", f"v_mul_f32 v{pp+2*k+1}, v{pp+2*k+1}, v{vGG}"]
        return it
    sc = lambda m: [f"v_fma_f32 v{OWN+4*m+k}, v{OWN+4*m+k}, v{vOG}, v{vB2}" for k in range(4)]

    def fin(p, hh):
        it = []
        o = OWN + 4 * ptile[p][hh]
        for k in range(2):
            zu, z, g = ZU + 2 * k, ZRg + 4 * (p % 3) + 2 * hh + k, GQ + 8 * (p % 3) + 4 * hh + 2 * k
            it += [f"v_lshlrev_b32 v{zu}, 16, v{z}", f"v_and_b32 v{zu+1}, 0xffff0000, v{z}"]
            if (p, hh) == (4, 1):
                it += [f"v_fma_f32 v{g}, v{g}, v{zu}, v{vB2}", f"v_fma_f32 v{g+1}, v{g+1}, v{zu+1}, v{vB2}"]
            else:
                it += [f"v_fmac_f32 v{o+2*k}, v{g}, v{zu}", f"v_fmac_f32 v{o+2*k+1}, v{g+1}, v{zu+1}",
                       f"v_cvt_pk_bf16_f32 v{QR+4*p+2*hh+k}, v{o+2*k}, v{o+2*k+1}"]
        return it
    ost = lambda p: [f"global_store_dwordx4 {qa(p)}, {vr(QR+4*p,4)}, {sp(P_OUT)} offset:{64*p} {opol if p < cfg.get('opn', 5) else ''}"]
    if cfg.get('dly'):
        a(f"s_sleep {cfg['dly']}")
    if UEP == 3:
        a.run(ustart)
    a(f"buffer_load_dword v{vGG}, v{vGA}, {srd(S_WS)}, 0 offen sc1")
    a.run(g2set)
    mf, pos = [], {}
    for q in range(120 // GR2):
        ns = range(q * GR2, (q + 1) * GR2)
        for jn in ((1, 2, 3, 0) if ns[0] < 108 else (1, 2, 3)):
            for n in ns:
                pos.setdefault(n, len(mf))
                mf.append(mf2(n, jn))
    pown = len(mf)
    mf += [mf2(n, 0) for n in range(108, 120)]
    S = Sched(mf)
    for n in range(120):
        S.reserve(pos[n] - 1)
    UC = cfg.get('pUC', 210)
    k = 0
    for n in range(UE, 120):
        free = 4 * GR2 * ((n - NB2) // GR2 + 1) if n >= NB2 else 0
        p = max(free, 4 * (n - NB2 + GR2) + 1, 2 * k)
        if n >= 60:
            p = max(p, min(UC + 1 + 2 * (n - 60), 4 * n - 2 if UC < 236 else max(239, 4 * (n - UE))))
        if n == 60:
            S.add('u', [P.poll_check('fu1', vP0, 30), stamp('fu1_ok')], p, p)
            pZ0 = p
        S.add('u', [u_load(n)], p, p)
        k += 1
    lastu = p
    S.add('st', [stamp('g2first')], 0, 0)
    S.add('st', [stamp('g2mid')], 240, 240)
    pF = cfg.get('pF', 40)
    S.add('z', [('wait', 'zst2' if NC == 3 else 'zst1'), stamp('barF'), P.flag(sFJ)], pF, pF + 1)
    zB = (0, 1) if NC == 2 else (0, 1, 4)
    zA = (2, 3, 4) if NC == 2 and not Z2 else (2, 3)
    UP = UC - cfg.get('pUP', 44)
    S.add('z', [P.poll_issue(vP0, 30), P.poll_issue(vP1, nz0, 2, PDZ)], UP, UP + 1)
    S.add('z', [P.poll_check('fz0', vP1, nz0, 2, PDZ), stamp('fz0_ok')] + z_ld(zB) + [f"v_add_u32 v{vP1}, {128*FSZ}, v{vP1}"], pZ0 + 3, pZ0 + 14, pace=2)
    ZP1, ZC1 = cfg.get('zp1', [325, 372])
    S.add('z', [P.poll_issue(vP1, nz1, 2, PDZ)], ZP1, ZP1)
    S.add('z', [P.poll_check('fz1', vP1, nz1, 2, PDZ), stamp('fz1_ok')] + z_ld(zA), ZC1, ZC1 + 8, pace=2)
    if Z2:
        ZP2, ZC2 = cfg.get('zp2', [390, 434])
        S.add('z2', [P.poll_issue(vP2, 8)], ZP2, ZP2)
        S.add('z2', [P.poll_check('fz2', vP2, 8), stamp('fz2_ok'),
                    f"buffer_load_dwordx4 {vr(ZL+8,4)}, v{vZG}, {srd(S_WS)}, s{zso[4]} offen sc1"], ZC2, ZC2 + 1)
    S.add('fin', [f"v_lshlrev_b32 v{vB2}, 16, v{vB2}", f"v_sub_f32 v{vOG}, 1.0, v{vGG}", f"v_mul_f32 v{vB2}, v{vB2}, v{vOG}"] + gq(0) + gq(1) + gq(2), 44, 200)
    OS = cfg.get('osat', 450)
    bars = cfg.get('bars', [3, 5, 7, 8])
    zlate = cfg.get('zlate', 0)
    flat = lambda l: [x for y in l for x in y]
    done = 0
    tailz = []
    for m in range(9):
        p = 48 * (m + 1)
        if m == 5:
            S.add('red', z_wr(zB), p - 14, p - 1, pace=4)
        if m == 8 and not zlate:
            S.add('red', z_wr(zA), p - 14, p - 1, pace=4)
        S.add('red', wr(m), p, p + 8, pace=3)
        if m in bars:
            S.add('red', [('wait', f'r2w{m}'), "s_barrier"], p + 11, p + 12)
            ms = list(range(done, m + 1))
            done = m + 1
            dl = None if m == 8 else 48 * (bars[bars.index(m) + 1] + 1) + 10
            it = []
            if m == 5:
                it += z_rd(0) + z_rd(1)
            if m == 8 and not zlate:
                it += z_rd(2) + z_rd(3) + ([] if Z2 else z_rd(4))
            it += flat(rd(t, t % 3) for t in ms[:3])
            if m == 8 and not zlate:
                it += ([] if Z2 else fin(4, 0) + fin(4, 1)) + fin(2, 0)
            if m == 5 and ms[0] > 1:
                it += fin(0, 0) + fin(0, 1)
            for i, t in enumerate(ms):
                it += ad(t, t % 3) + (rd(ms[i + 3], t % 3) if i + 3 < len(ms) else []) + sc(t)
            if m == 5:
                it += (fin(0, 0) + fin(0, 1) if ms[0] <= 1 else []) + fin(1, 0) + fin(1, 1) + gq(3) + gq(4)
                dl = min(dl, OS - 1)
                S.add('os', ost(0) + ost(1), OS, OS + 4, pace=3)
            if m == 8:
                last = fin(2, 1) + ost(2) + fin(3, 0) + fin(3, 1) + ost(3)
                if zlate:
                    tailz = fin(2, 0) + last + fin(4, 0) + fin(4, 1)
                else:
                    it += last
            S.add('fin', it, p + 13, dl)
    if zlate:
        S.add('red', z_wr(zA), pown - 8, pown, pace=3)
    S.add('red', wr(9), pown + 1, pown + 6, pace=2)
    ZIN = cfg.get('zin', 1)
    zw2 = (f"ds_write_b128 v{vZLW}, {vr(ZL+8,4)} offset:{4*32*PZ}", 'zw2')
    if Z2 and ZIN:
        S.add('red', [zw2], pown + 8, pown + 8)
    d2 = cfg.get('d2', '')
    post = []
    if 'z' in d2:
        a.run([x[0] for x in S.th['z'][:3]])
        post += [x[0] for x in S.th['z'][3:] + S.th.get('z2', [])]; S.th['z'] = []; S.th['z2'] = []
        S.th['u'] = [x for x in S.th['u'] if not callable(x[0])]
    for nm in ('red', 'fin', 'os'):
        if nm[0] in d2:
            post += [x[0] for x in S.th[nm]]; S.th[nm] = []
    its = S.items(keep=('fin',))
    if 'u' in d2:
        its = [x for x in its if not txt_of(x).startswith('buffer_load_dwordx4 a[')]
    if 'b' in d2:
        its = [x for x in its if txt_of(x) != 's_barrier']
    if 'w' in d2:
        its = [x for x in its if not (txt_of(x).startswith('ds_write_b128') and x[1:] != ('r2w9',)) and not (txt_of(x) == 'wait' and x[1].startswith('r2w'))]
    a.run(its)
    a.run([stamp('g2x')] + ([] if cfg.get('nopost') else post))
    P.info['g2'] = (S.over, S.under, len(S.left.get('fin', [])))
    a.run([stamp('g2mfma')])
    left = S.left.get('fin', [])
    if Z2:
        assert not zlate
        tailz = fin(4, 0) + fin(4, 1)
        if not ZIN:
            a.run(left)
            left = []
            a(zw2[0], tok='zw2')
        a.wait('zw2')
    if 'r2w9' in a.toks:
        a.wait('r2w9')
    a("s_barrier")
    if Z2:
        a.run(z_rd(4))
    for k in range(3):
        a(f"ds_read_b128 {vr(RD4+4*k,4)}, v{vR2S} offset:{4*12288 + k*1024}")
    if zlate:
        a.run(z_rd(2) + z_rd(3) + z_rd(4))
    a.run(left + tailz)
    for k in range(3):
        for hh in range(2):
            a(f"v_pk_add_f32 {vr(OWN+36+2*hh,2)}, {vr(OWN+36+2*hh,2)}, {vr(RD4+4*k+2*hh,2)}")
    g = GQ + 8 + 4
    for hh in range(2):
        a(f"v_pk_fma_f32 {vr(g+2*hh,2)}, {vr(OWN+36+2*hh,2)}, {vr(vOG,2)}, {vr(g+2*hh,2)} op_sel_hi:[1,0,1]")
    for hh in range(2):
        a(f"v_cvt_pk_bf16_f32 v{QR+18+hh}, v{g+2*hh}, v{g+2*hh+1}")
    a.run(ost(4))
    P.finish()
    a("s_endpgm")
    return P


def gen(cfg):
    h = Asm()
    h("s_load_dwordx16 s[36:51], s[0:1], 0")
    h("s_load_dwordx16 s[52:67], s[0:1], 56")
    if cfg.get('stamps') or cfg.get('amp'):
        h("s_memrealtime s[96:97]")
    h("s_cmp_ge_u32 s2, 256")
    h("s_cbranch_scc1 L_end")
    h("v_lshrrev_b32 v1, 6, v0")
    h("v_and_b32 v0, 63, v0")
    h(f"v_readfirstlane_b32 s{sW}, v1")
    rb = cfg.get('rolebit', 0)
    h(f"s_lshr_b32 s{sID}, s2, 3")
    if rb == 0:
        h(f"s_bfe_u32 s{sXQ}, s2, 0x20001")
    elif rb == 2:
        h(f"s_and_b32 s{sXQ}, s2, 3")
    else:
        h(f"s_bfe_u32 s{sXQ}, s2, 0x10002")
        h(f"s_and_b32 s{sT0}, s2, 1")
        h(f"s_lshl1_add_u32 s{sXQ}, s{sXQ}, s{sT0}")
    h(f"s_lshl_b32 s{sJ}, s{sXQ}, 5")
    h(f"s_add_u32 s{sJ}, s{sJ}, s{sID}")
    lay = cfg.get('lay', 'C')
    if lay == 'C':
        if cfg.get('cpf', 1):
            h(f"s_bitcmp0_b32 s2, {rb}")
            h(f"s_cselect_b32 s{sT1}, L_Amain-L_pcC, 0")
            h.run([x.replace("@-L_pcC", f"s{sT1}") for x in Prog('C', cfg).code_prefetch("@", "L_end")])
    elif lay == 'A':
        h(f"s_bitcmp1_b32 s2, {rb}")
        h("s_cbranch_scc1 L_B")
    else:
        h(f"s_bitcmp0_b32 s2, {rb}")
        h("s_cbranch_scc1 L_A")
    A, B = prog_A(cfg), prog_B(cfg)
    ref = open(f"cdna_kernels/{NAME}.s.ref").read().split('\n')
    head = [l for l in ref if l.startswith(';') and '@launch' not in l and 'Override' not in l and 'grid=ceil' not in l]
    txt = '\n'.join(head) + f"\n; @launch grid=(256,1,1) block=(256,1,1) lds={L_END}\n"
    txt += f""".amdgcn_target "amdgcn-amd-amdhsa--gfx950"
.text
.globl {NAME}_kernel
.p2align 8
.type {NAME}_kernel,@function
{NAME}_kernel:
"""
    if lay == 'C':
        J = lambda l: '\n'.join(l) + '\n'
        txt += (h.text() + J(A.a.out[:A.split0]) + J(B.a.out[:B.split0]) + f"    s_waitcnt lgkmcnt(0)\n    s_bitcmp1_b32 s2, {rb}\n    s_cbranch_scc1 L_Bgo\n" +
                J(A.a.out[A.split0:A.split]) + "L_Bgo:\n" + J(B.a.out[B.split0:]) + ".p2align 7\n" + J(A.a.out[A.split:]) + "L_end:\n    s_endpgm\n")
    elif lay == 'A':
        txt += h.text() + '\n'.join(A.a.out[:A.split]) + '\n' + B.a.text() + ".p2align 7\n" + '\n'.join(A.a.out[A.split:]) + "\nL_end:\n    s_endpgm\n"
    else:
        txt += h.text() + B.a.text() + ".p2align 7\nL_A:\n" + '\n'.join(A.a.out[:A.split-1] + A.a.out[A.split:]) + "\nL_end:\n    s_endpgm\n"
    txt += f""".section .rodata,"a"
.p2align 6
.amdhsa_kernel {NAME}_kernel
  .amdhsa_next_free_vgpr 512
  .amdhsa_next_free_sgpr 102
  .amdhsa_accum_offset 256
  .amdhsa_group_segment_fixed_size 0
  .amdhsa_kernarg_size 120
  .amdhsa_user_sgpr_count 2
  .amdhsa_user_sgpr_kernarg_segment_ptr 1
  .amdhsa_system_sgpr_workgroup_id_x 1
  .amdhsa_float_denorm_mode_32 3
.end_amdhsa_kernel
"""
    return txt, dict(n_ins=(A.a.n_ins, B.a.n_ins), n_nop=(A.a.n_nop, B.a.n_nop), stamps=B.names, stampsA=A.names,
                     rolebit=rb, sched=(A.info, B.info))


if __name__ == "__main__":
    import json
    out = sys.argv[1]
    cfg = json.loads(sys.argv[2]) if len(sys.argv) > 2 else {}
    txt, info = gen(cfg)
    open(out, 'w').write(txt)
    print(out, info)


def dmap(T, i):
    dt, m = divmod(T, 5)
    r, g = dt >> 2, dt & 3
    P, hh = (2 * r + (m >> 1), m & 1) if m < 4 else (4, r)
    return 160 * g + 32 * P + 8 * (i >> 2) + 4 * hh + (i & 3)
```

```python
import sys
from asmlib import Asm, merge, Sched

NAME = "gated_mix__ssm_conv_h3__mixer_token_mlp__prompt"

WS_H, WS_U, WS_KV, WS_Z, WS_G = 0x0, 0x280000, 0x480000, 0x700000, 0x980000
WS_F1, WS_FK, WS_FU, WS_FZ, WS_EP, WS_DBG = 0x990000, 0x998000, 0x9A0000, 0x9B0000, 0x9C0000, 0x9D0000
WS_SIZE = 0xA10000
OOB = 0x7F000000
TAGC = 0x9E3779B9

NR = 4
L_RED = 65536
PL = 1344
L_LN = 32768
PK = 704
L_KI = L_RED
L_VI = L_RED + 25600
L_ZSTG = L_RED + 4 * 12288
L_CK = L_RED + 61440
KP, KPAD = 4224, 96
L_CX = L_CK + 3 * KP
XP, XPAD = 4608, 512
L_CAR = L_CX + 3 * XP
L_END = L_CAR + 1600
L_ZI = L_CK
PZ = 144

S_WS, S_K, S_V, S_W, S_SSM = 4, 8, 12, 16, 24
P_Q, P_SH, P_D, P_B1, P_B2, P_GW, P_OUT = 36, 42, 46, 54, 58, 60, 62
TK = 68
sW, sXQ, sID, sA, sB, sJ, sSP, sTAG, sRING, sC0, sFI, sFJ = range(84, 96)
sT0, sT1, sT2, sT3 = 32, 33, 34, 35
sU0, sU1, sU2, sU3 = 20, 21, 22, 23
sX0, sX1, sX2 = 31, 48, 49
sC2 = 39
sCNT = 3
vH, vI, vR, vC, vT, vT2 = 37, 38, 39, 40, 42, 43
VW, VT = 2, 6
vPD = 18
vCA, vCB, vCA2, vCB2 = 20, 21, 22, 23
vCRW, vCRW2, vCRR, vCRR2, vZW, vZR, vZS, vZS2, vCW = 25, 26, 27, 28, 29, 30, 31, 32, 33
vP0, vP1, vTAG = 35, 24, 34
CA, CB, CACC, CY, NSL = 64, 128, 192, 216, 6
CH, CR, ZO = 240, 246, 216
vZF = 252
C20 = 56


def srd(n):
    return f"s[{n}:{n+3}]"


def sp(n):
    return f"s[{n}:{n+1}]"


def vr(n, k):
    return f"v[{n}:{n+k-1}]"


def ar(n, k):
    return f"a[{n}:{n+k-1}]"


def txt_of(x):
    return x if isinstance(x, str) else (x[0] if isinstance(x, tuple) else '')


class Prog:
    def __init__(self, role, cfg):
        self.a = Asm()
        self.role = role
        self.cfg = cfg
        self.stamps = cfg.get('stamps', False)
        self.names = []
        self.npoll = 0
        self.nxt = self.drn = 0
        self.nstep = 16 if role == 'A' else 12
        self.info = {}

    def stamp(self, name):
        def f(a):
            st = self.stamps
            amp = self.cfg.get('amp')
            if amp and amp == [self.role, name]:
                a("s_memrealtime s[98:99]")
            if not st or (st != 1 and name not in st and name not in ('start', 'end')) or (st == 1 and name[0] == 'w' and name != 'w8'):
                return
            k = len(self.names)
            a("s_memtime s[98:99]")
            a("s_memrealtime s[100:101]")
            a(f"v_writelane_b32 v255, s98, {k}")
            a(f"v_writelane_b32 v255, s100, {32+k}")
            self.names.append(name)
        f.cost = 0
        return f

    def weight_src(self, pitch, sbase):
        it = [f"v_lshrrev_b32 v{vT}, 3, v0",
              f"v_and_b32 v{vT2}, 6, v{vT}",
              f"v_xor_b32 v{vT2}, v{vT2}, v0",
              f"v_and_b32 v{vT2}, 7, v{vT2}",
              f"v_mul_u32_u24 v{vT}, {pitch}, v{vT}",
              f"v_lshl_add_u32 v{vT}, v{vT2}, 4, v{vT}",
              f"v_add_u32 v{VW}, s{sbase}, v{vT}"]
        for i in range(1, 4):
            it.append(f"v_add_u32 v{VW+i}, {8*pitch-1024}, v{VW+i-1}")
        return it

    def weight_dst(self, xorw):
        it = [f"v_lshrrev_b32 v{vT}, 2, v0",
              f"v_lshlrev_b32 v{vT}, 7, v{vT}",
              f"v_lshl_add_u32 v{vT}, v{vC}, 3, v{vT}",
              f"v_bfe_u32 v{vT2}, v0, 3, 2"]
        if xorw:
            it.append(f"v_xor_b32 v{vT2}, s{sW}, v{vT2}")
        it += [f"v_lshl_add_u32 v{vT}, v{vT2}, 5, v{vT}",
               f"v_add_u32 v{VT}, s{sRING}, v{vT}"]
        for t in range(1, 4):
            it.append(f"v_xor_b32 v{VT+t}, {t*32}, v{VT}")
        return it

    def w_issue(self, j):
        it = [f"s_mul_i32 s{sU1}, s{TK+j}, {96 if self.role == 'A' else 128}",
              f"s_add_u32 m0, s{sRING}, {(j % NR)*16384}"]
        if j >= NR:
            it.append(('wait', f'wr{j-NR}'))
        for i in range(4):
            it.append((f"buffer_load_dwordx4 v{VW+i}, {srd(S_W)}, s{sU1} offen offset:{i*1024} {self.cfg.get('wpol', '')} lds", f'wd{j}'))
        return it

    def w_drain(self, j):
        it = [('wait', f'wd{j}')]
        for t in range(4):
            for e2 in range(2):
                it.append((f"ds_read_b64_tr_b16 {ar(16*j+4*t+2*e2,2)}, v{VT+t} offset:{(j % NR)*16384 + e2*2048}", f'wr{j}'))
        return it

    def w_step(self):
        it = []
        if self.nxt >= NR or self.nxt == self.nstep:
            it += self.w_drain(self.drn); self.drn += 1
        if self.nxt < self.nstep:
            it += self.w_issue(self.nxt); self.nxt += 1
        return it

    def flag(self, soff):
        return f"s_mov_b64 exec, 1\nbuffer_store_dword v{vTAG}, v0, {srd(S_WS)}, s{soff} offen sc1\ns_mov_b64 exec, -1"

    def flag_wg(self, soff, name):
        def f(a):
            a("s_barrier")
            a(f"s_cmp_lg_u32 s{sW}, 0")
            a(f"s_cbranch_scc1 L_nf_{name}")
            a.begin_cond(name)
            a(self.flag(soff))
            a.end_cond()
            a.label(f"L_nf_{name}")
        return f

    def set_tag(self, v):
        return [f"v_readfirstlane_b32 s{sTAG}, v{v}", f"s_add_u32 s{sTAG}, s{sTAG}, {hex(TAGC)}", f"v_mov_b32 v{vTAG}, s{sTAG}"]

    @staticmethod
    def setexec(n):
        if n == 32:
            return "s_mov_b32 exec_hi, 0"
        if n > 32:
            return f"s_mov_b32 exec_hi, {hex((1 << (n-32)) - 1)}"
        return f"s_mov_b64 exec, {hex((1 << n) - 1)}"

    def poll_load(self, va, wd, vd):
        if wd == 1:
            return f"buffer_load_dword v{vd}, v{va}, {srd(S_WS)}, 0 offen sc1"
        return f"buffer_load_dwordx{wd} {vr(vd,wd)}, v{va}, {srd(S_WS)}, 0 offen sc1"

    def poll_issue(self, va, n=64, wd=1, vd=vPD):
        it = [self.setexec(n)] if n < 64 else []
        it.append(self.poll_load(va, wd, vd))
        if n < 64:
            it.append("s_mov_b64 exec, -1")
        return "\n".join(it)

    def poll_check(self, name, va, n=64, wd=1, vd=vPD):
        name = self.role + name

        def cmp(a):
            if wd == 1:
                a(f"v_cmp_ne_u32 vcc, s{sTAG}, v{vd}")
                return
            a(f"v_xor_b32 v{vd}, s{sTAG}, v{vd}")
            for k in range(1, wd):
                a(f"v_bitop3_b32 v{vd}, v{vd}, v{vd+k}, v{vTAG} bitop3:0xf6")
            a(f"v_cmp_ne_u32 vcc, 0, v{vd}")

        def f(a):
            if n < 64:
                a(self.setexec(n))
            cmp(a)
            a(f"s_mov_b32 s{sCNT}, 0")
            a(f"s_branch L_pk_{name}" if name[1:] in self.cfg.get('nopoll', []) else f"s_cbranch_vccz L_pk_{name}")
            a.label(f"L_pl_{name}")
            a.begin_cond('poll' + name)
            a("s_mov_b64 exec, vcc")
            if self.cfg.get('psleep'):
                a(f"s_sleep {self.cfg['psleep']}")
            a(self.poll_load(va, wd, vd))
            a(f"s_add_u32 s{sCNT}, s{sCNT}, 1")
            a(f"s_cmp_ge_u32 s{sCNT}, 0x40000")
            a(f"s_cbranch_scc1 L_pk_{name}")
            cmp(a)
            a("s_nop 0")
            a(f"s_cbranch_vccnz L_pl_{name}")
            a.end_cond()
            a.label(f"L_pk_{name}")
            a("s_mov_b64 exec, -1")
            if self.stamps:
                a(f"v_writelane_b32 v254, s{sCNT}, {self.npoll}")
                self.npoll += 1
        f.cost = 5
        return f

    def zflag_addr(self, dst, first):
        fsz = self.cfg.get('fsz', 32)
        return [f"s_add_u32 s{dst}, s{sJ}, {first}", f"s_mul_i32 s{dst}, s{dst}, {fsz}",
                f"s_lshl1_add_u32 s{sT0}, s{sT3}, s{sT2}", f"s_lshl2_add_u32 s{dst}, s{sT0}, s{dst}",
                f"s_add_u32 s{dst}, s{dst}, {WS_FZ}"]

    def lanes(self):
        return ["v_lshlrev_b32 v1, 4, v0",
                f"v_lshrrev_b32 v{vH}, 4, v0", f"v_and_b32 v{vI}, 15, v0",
                f"v_bfe_u32 v{vR}, v0, 2, 2", f"v_and_b32 v{vC}, 3, v0",
                f"s_lshr_b32 s{sT2}, s{sW}, 1", f"s_and_b32 s{sT3}, s{sW}, 1",
                f"s_lshl_b32 s{sRING}, s{sW}, 12"]

    def code_prefetch(self, beg, end):
        r = self.role
        return [f"s_getpc_b64 {sp(sU2)}", f"L_pc{r}:",
                f"s_lshl2_add_u32 s{sT2}, s{sID}, s{sW}",
                f"v_lshl_add_u32 v{vT}, s{sT2}, 1, v0",
                f"v_lshlrev_b32 v{vT}, 7, v{vT}",
                f"v_add_u32 v{vT}, {beg}-L_pc{r}, v{vT}",
                f"v_min_u32 v{vT}, {end}-L_pc{r}, v{vT}",
                "s_mov_b64 exec, 3",
                f"global_load_dword v253, v{vT}, {sp(sU2)}",
                "s_mov_b64 exec, -1"]

    def epoch_load(self, v):
        return [f"s_mov_b32 s{sT0}, {WS_EP}", "s_mov_b64 exec, 1",
                f"buffer_load_dword v{v}, v0, {srd(S_WS)}, s{sT0} offen sc1", "s_mov_b64 exec, -1"]

    def conv_setup(self, nch):
        ZR = 68
        it = [f"s_mul_i32 s{sC2}, s{sXQ}, 160",
              f"s_lshl1_add_u32 s{sC0}, s{sID}, s{sC2}",
              f"s_add_u32 s{sC0}, s{sC0}, {64 if self.role == 'A' else 0}",
              f"s_add_u32 s{sC2}, s{sC2}, s{sID}",
              f"s_add_u32 s{sC2}, s{sC2}, 128",
              f"s_lshl_b32 s{sT0}, s{sC0}, 1",
              f"s_load_dword s28, {sp(P_D)}, s{sT0}"]
        if nch == 3:
            it += [f"s_lshr_b32 s{sT1}, s{sC2}, 1", f"s_lshl_b32 s29, s{sT1}, 2", f"s_load_dword s30, {sp(P_D)}, s29"]
        it += [f"s_lshl_b32 s{sX0}, s{sC0}, 12",
               f"s_lshl_b32 s{sT1}, s{sW}, 10",
               f"s_add_u32 s{sX0}, s{sX0}, s{sT1}",
               f"s_add_u32 s{sX1}, s{sX0}, 4096",
               f"s_lshl_b32 s{sX2}, s{sC2}, 12",
               f"s_add_u32 s{sX2}, s{sX2}, s{sT1}"]
        it += [f"v_mov_b32 v{ZR+i}, 0" for i in range(4)]
        it += [f"s_min_u32 s{sT0}, s{sW}, 2",
               f"s_mul_i32 s{sT1}, s{sT0}, {XP}",
               f"s_add_u32 s{sT1}, s{sT1}, {L_CX}",
               f"v_add_u32 v{vT}, s{sT1}, v1",
               f"s_mul_i32 s{sT1}, s{sT0}, {KP}",
               f"s_add_u32 s{sT1}, s{sT1}, {L_CK}",
               f"v_add_u32 v{vT2}, s{sT1}, v1",
               f"s_mul_i32 s{sT1}, s{sT0}, {33*16}",
               f"s_add_u32 s{sT1}, s{sT1}, {L_CAR}",
               f"v_mov_b32 v{vPD}, s{sT1}",
               "s_mov_b32 exec_hi, 0",
               f"ds_write_b128 v{vT}, {vr(ZR,4)}",
               f"s_mov_b64 exec, {hex((1 << (KPAD//16)) - 1)}",
               f"ds_write_b128 v{vT2}, {vr(ZR,4)}",
               "s_mov_b64 exec, 1",
               f"ds_write_b128 v{vPD}, {vr(ZR,4)}",
               "s_mov_b64 exec, -1"]
        it += [f"v_lshl_add_u32 v{vT}, v{vH}, 3, v{vR}",
               f"v_lshlrev_b32 v{vT2}, 2, v{vC}",
               f"v_sub_u32 v{vT2}, v{vT2}, v{vT}",
               f"v_lshlrev_b32 v{vT2}, 3, v{vT2}",
               f"s_mul_i32 s{sT0}, s{sT2}, {KP}",
               f"s_add_u32 s{sT0}, s{sT0}, {L_CK + KPAD + 152 - 32}",
               f"v_add_u32 v{vCA}, s{sT0}, v{vT2}"]
        if nch == 3:
            it.append(f"v_add_u32 v{vCA2}, {L_CK + 2*KP + KPAD + 152 - 32}, v{vT2}")
        it += [f"v_add_lshl_u32 v{vT}, v{vT}, v{vC}, 3",
               f"s_mul_i32 s{sT0}, s{sT2}, {XP}",
               f"s_lshl_b32 s{sT1}, s{sT3}, 7",
               f"s_add_u32 s{sT0}, s{sT0}, s{sT1}",
               f"s_add_u32 s{sT0}, s{sT0}, {L_CX + XPAD - 152}",
               f"v_add_u32 v{vCB}, s{sT0}, v{vT}"]
        if nch == 3:
            it += [f"s_lshl_b32 s{sT0}, s{sW}, 7",
                   f"s_add_u32 s{sT0}, s{sT0}, {L_CX + 2*XP + XPAD - 152 - 256}",
                   f"v_add_u32 v{vCB2}, s{sT0}, v{vT}"]
        return it

    def conv_setup2(self, nch):
        it = [f"s_mul_i32 s{sT0}, s{sT2}, {33*16}",
              f"s_lshl4_add_u32 s{sT0}, s{sT3}, s{sT0}",
              f"s_add_u32 s{sT0}, s{sT0}, {L_CAR}",
              f"v_lshlrev_b32 v{vT}, 2, v{vC}",
              f"v_lshl_add_u32 v{vT2}, v{vR}, 5, v{vT}",
              f"v_add_u32 v{vCRR}, s{sT0}, v{vT2}",
              f"s_add_u32 s{sT0}, s{sT0}, {(16 - 48*32) & 0xffffffff}",
              f"v_lshl_add_u32 v{vCRW}, v0, 5, s{sT0}"]
        if nch == 3:
            it += [f"s_lshl_b32 s{sT0}, s{sW}, 4",
                   f"s_add_u32 s{sT0}, s{sT0}, {L_CAR + 2*33*16}",
                   f"v_lshl_add_u32 v{vT2}, v{vR}, 6, v{vT}",
                   f"v_add_u32 v{vCRR2}, s{sT0}, v{vT2}",
                   f"s_add_u32 s{sT0}, s{sT0}, {(16 - 56*64) & 0xffffffff}",
                   f"v_lshl_add_u32 v{vCRW2}, v0, 6, s{sT0}"]
        it += [f"s_mul_i32 s{sT0}, s{sW}, 3072",
               f"s_add_u32 s{sT0}, s{sT0}, {L_ZSTG}",
               f"v_lshl_add_u32 v{vZW}, v0, 1, s{sT0}",
               f"v_add_u32 v{vZR}, s{sT0}, v1",
               f"v_lshl_add_u32 v{vT}, v{vC}, 1, s{sT0}",
               f"v_lshl_add_u32 v{vZF}, v{vR}, 7, v{vT}",
               f"v_lshrrev_b32 v{vT}, 3, v0",
               f"v_and_b32 v{vT2}, 7, v0",
               f"v_lshlrev_b32 v{vT2}, 4, v{vT2}",
               f"v_lshl_add_u32 v{vZS}, v{vT}, 8, v{vT2}",
               f"s_add_u32 s{sT0}, s{sC0}, s{sT2}",
               f"s_lshl_b32 s{sT0}, s{sT0}, 12",
               f"s_lshl_b32 s{sT1}, s{sT3}, 7",
               f"s_add_u32 s{sT0}, s{sT0}, s{sT1}",
               f"s_add_u32 s{sT0}, s{sT0}, {WS_Z}",
               f"v_add_u32 v{vZS}, s{sT0}, v{vZS}"]
        if nch == 3:
            it += [f"v_lshl_add_u32 v{vZS2}, v{vT}, 9, v{vT2}",
                   f"s_lshl_b32 s{sT0}, s{sC2}, 12",
                   f"s_lshl_b32 s{sT1}, s{sW}, 7",
                   f"s_add_u32 s{sT0}, s{sT0}, s{sT1}",
                   f"s_add_u32 s{sT0}, s{sT0}, {WS_Z}",
                   f"v_add_u32 v{vZS2}, s{sT0}, v{vZS2}"]
        if nch == 3:
            it += [f"s_and_b32 s{sT0}, s{sC2}, 1",
                   f"s_lshl_b32 s{sT0}, s{sT0}, 4",
                   f"s_lshr_b32 s30, s30, s{sT0}",
                   f"s_lshl_b32 s30, s30, 16"]
        fsk = self.cfg.get('fsk', 16)
        it += [f"s_lshl_b32 s{sT0}, s{sT2}, 4", f"s_lshr_b32 s28, s28, s{sT0}", f"s_lshl_b32 s28, s28, 16",
               f"s_lshl_b32 s29, s{sW}, 10",
               f"s_lshr_b32 s{sT0}, s{sXQ}, 1",
               f"s_lshl2_add_u32 s{sT0}, s{sT0}, s{sW}",
               f"v_lshl_add_u32 v{vP1}, s{sT0}, 4, v0",
               f"v_mul_u32_u24 v{vP1}, {fsk}, v{vP1}",
               f"v_add_u32 v{vP1}, {WS_FK}, v{vP1}"]
        return it

    def ssm_loads(self, nch):
        return [(f"s_add_u32 m0, s29, {L_CK + KPAD + cs*KP}\nbuffer_load_dwordx4 v1, {srd(S_SSM)}, s{so} offen {self.cfg.get('spol', '')} lds\ns_add_u32 s{so}, s{so}, {WS_KV}", 'kd')
                for cs, so in enumerate((sX0, sX1, sX2)[:nch])]

    def x_loads(self, nch):
        return [(f"s_add_u32 m0, s29, {L_CX + XPAD + cs*XP}\nbuffer_load_dwordx4 v1, {srd(S_WS)}, s{so} offen sc1 lds", 'xd')
                for cs, so in enumerate((sX0, sX1, sX2)[:nch])]

    def dpatch(self, part):
        it = []
        r0 = C20 if part == 2 and self.role == 'A' else CA
        for r, mk in ((r0 + 1, 0x01000001), (r0 + 3, 0x10000010)):
            it += [f"v_and_b32 v{vT2}, 0xffff0000, v{r}", f"v_lshlrev_b32 v{vT}, 16, v{r}",
                   f"v_add_f32 v{vT2}, s{28 if part == 1 else 30}, v{vT2}",
                   f"s_mov_b32 exec_lo, 0\ns_mov_b32 exec_hi, {hex(mk)}\nv_cvt_pk_bf16_f32 v{r}, v{vT}, v{vT2}\ns_mov_b64 exec, -1"]
        return it

    def conv_pre(self, n):
        it = []
        for c in range(n):
            it += self.c_read(1, c)
        return it + self.dpatch(1)

    tiles = [(1, m, m) for m in range(16)] + [(2, n, 2 * n + 1) for n in range(8)]

    def fa(self, part, c, o=0, k=4):
        if part == 2 and self.role == 'A':
            return vr(C20 + o, k) if c == 0 else ar(4 * c + o, k)
        return vr(CA + 4 * c + o, k)

    def fb(self, part, n, o=0, k=4):
        if part == 2 and self.role == 'A':
            return ar(64 + 4 * n + o, k)
        return vr(CB + 4 * (n if part == 1 else 15 - n) + o, k)

    def c_read(self, part, c):
        va, vb = (vCA, vCB) if part == 1 else (vCA2, vCB2)
        return ([f"ds_read_b64_tr_b16 {self.fa(part,c,2*e2,2)}, v{va} offset:{256*c + 32*(1-e2)}" for e2 in range(2)] +
                [f"ds_read_b64_tr_b16 {self.fb(part,c,2*e2,2)}, v{vb} offset:{256*c + 32*e2}" for e2 in range(2)])

    def tile_epi(self, g):
        part, k, m = self.tiles[g]
        d = CACC + 4 * (g % NSL)
        p = CACC + 4 * ((g - 1) % NSL)
        dp = "wave_shr:1 row_mask:0xf bank_mask:0xf bound_ctrl:0"
        it = []
        for j, dst in ((3, d + 2), (2, d + 1), (1, CY + g)):
            it.append(f"v_add_f32_dpp v{dst}, v{d+j}, v{d+j-1} {dp}")
            if k:
                it.append(f"v_mov_b32_dpp v{d+j}, v{p+j} wave_shl:1 row_mask:0xf bank_mask:0xf")
        if g in (15, 23):
            va, mk = (vCRW, '0xffff0000') if g == 15 else (vCRW2, '0xff000000')
            it.append((f"s_mov_b32 exec_lo, 0\ns_mov_b32 exec_hi, {mk}\nds_write_b128 v{va}, {vr(d,4)}\ns_mov_b64 exec, -1", f'carw{part}'))
        return it

    def stage(self, g):
        it = []
        for t in (g, g + 1):
            j = t % 4
            it.append(f"v_mov_b32 v{CH+t//4}, v{CY+t}" if j == 0 else
                      f"v_mov_b32_dpp v{CH+t//4}, v{CY+t} row_shr:{4*j} row_mask:0x1 bank_mask:{hex(1 << j)}")
        return it + [f"v_cvt_pk_bf16_f32 v{CY+g}, v{CY+g}, v{CY+g+1}",
                     f"ds_write_b16 v{vZW}, v{CY+g} offset:{128*g}", f"ds_write_b16_d16_hi v{vZW}, v{CY+g} offset:{128*(g+1)}"]

    def conv_sched(self, nt, cpre, cap, sg0=0):
        mf, first = [], []
        for g, (part, k, m) in enumerate(self.tiles[:nt]):
            d = vr(CACC + 4 * (g % NSL), 4)
            first.append(len(mf))
            mf += [f"v_mfma_f32_16x16x32_bf16 {d}, {self.fa(part,c)}, {self.fb(part,m-c)}, {'0' if c == 0 else d}"
                   for c in range(m + 1)]
        first += [len(mf)] * 8
        S = Sched(mf, cap)
        LEAD = self.cfg.get('lead', 7)
        for g in range(1, nt):
            S.reserve(first[g] - 1)
        for c in range(cpre, 16):
            S.add('rd', self.c_read(1, c), 0, max(first[c] - LEAD, 0))
        if nt > 16 and self.role == 'A':
            r0 = self.cfg.get('r2A', 60)
            for c in range(16):
                S.add('rd2', self.c_read(2, c), r0, min(first[16 + c // 2] - LEAD, r0 + 12 + 7 * c))
            S.add('dp', self.dpatch(2), r0 + 20, first[16] - 2)
        elif nt > 16:
            for c in range(16):
                dl = max(first[16 + c // 2] - LEAD, first[15] + c + 1) if c else first[15] + 4
                S.add('rd', self.c_read(2, c), first[15] + c + 1, dl)
            S.add('dp', self.dpatch(2), first[15] + 8, first[16] - 2)
        self.sgrel = {}
        for g in range(nt - 1):
            dl = min(first[g + NSL - 1] - 1, first[g + 1] + (self.cfg.get('epl', 24) if g < 12 else 8))
            S.add('ep', self.tile_epi(g), first[g + 1] + 2, dl)
            if g & 1:
                self.sgrel[g - 1] = max(dl + 1, sg0)
        self.first = first
        return S

    def z_fix(self, part):
        qs = (0, 2) if part == 1 else (4,)
        va, st = (vCRR, 32) if part == 1 else (vCRR2, 64)
        it = [f"ds_read2_b32 {vr(CR+q,2)}, v{va} offset0:{1+st*(q % 4)} offset1:{1+st*(q % 4 + 1)}" for q in qs]
        for q in qs:
            it += [f"v_add_f32 v{CH+q}, v{CH+q}, v{CR+q}", f"v_add_f32 v{CH+q+1}, v{CH+q+1}, v{CR+q+1}",
                   f"v_cvt_pk_bf16_f32 v{CH+q}, v{CH+q}, v{CH+q+1}",
                   f"s_mov_b64 exec, 0x7777\nds_write_b16 v{vZF}, v{CH+q} offset:{512*q}\nds_write_b16_d16_hi v{vZF}, v{CH+q} offset:{512*(q+1)}\ns_mov_b64 exec, -1",
                   f"ds_read_b128 {vr(ZO+2*q,4)}, v{vZR} offset:{512*q}"]
        if part == 1:
            st = [(f"buffer_store_dwordx4 {vr(ZO,4)}, v{vZS}, {srd(S_WS)}, 0 offen sc1", 'zst1'),
                  (f"buffer_store_dwordx4 {vr(ZO+4,4)}, v{vZS}, {srd(S_WS)}, 0 offen offset:2048 sc1", 'zst1')]
        else:
            st = [(f"buffer_store_dwordx4 {vr(ZO+8,4)}, v{vZS2}, {srd(S_WS)}, 0 offen sc1", 'zst2')]
        return it, st

    def conv_run(self, S, nt, early, flag1=None, mid=((), (), ())):
        a = self.a
        for g in range(0, nt - 2, 2):
            S.add('sg', self.stage(g), self.sgrel[g], None)
            if early and g == 14:
                f1, s1 = self.z_fix(1)
                p = self.cfg.get('pE1', 146)
                S.th['sg'][-1][2] = p - 1
                S.add('sg', [('wait', 'carw1'), "s_barrier"], p, p + 1)
                S.add('sg', f1[:2], p + 1, p + 3)
                e1, e2 = self.cfg.get('e12', [6, 20])
                S.add('sg', f1[2:], p + e1, p + e1 + 10)
                S.add('sg', s1, p + e2, p + e2 + 2)
        f1in = early and self.cfg.get('f1in', 1)
        its = S.items(keep=('sg',))
        wi = self.cfg.get('wi' + self.role, 0)
        if wi:
            keep, n = [], 0
            for x in its:
                t = txt_of(x)
                if t.startswith('v_mfma'):
                    n += 1
                drop = n > wi and (t.startswith(('v_mfma', 'v_add_f32_dpp', 'v_mov_b32_dpp')) or t.startswith('ds_read_b64_tr_b16 v'))
                if not drop:
                    keep.append(x)
            its = keep
        a.run(its)
        self.info['conv'] = (S.over, S.under, len(S.left.get('sg', [])))
        a.run([self.stamp('conv')])
        if f1in:
            a.run([('wait', 'zst1'), flag1])
        a.run(mid[0])
        a.run(merge(S.left.get('sg', []) or ["s_nop 0"], self.tile_epi(nt - 1)))
        a.run(self.stage(nt - 2))
        a.run(mid[1])
        a.wait('carw2' if nt > 16 else 'carw1')
        a("s_barrier")
        parts = [2] if early else ([1, 2] if nt > 16 else [1])
        fs = [self.z_fix(p) for p in parts]
        if early and not f1in:
            a.run(fs[0][0][:1] + [('wait', 'zst1'), flag1] + fs[0][0][1:])
        else:
            a.run([x for f in fs for x in f[0]])
        a.run(mid[2])
        a.run([x for f in fs for x in f[1]])
        a.run([self.stamp('z_st')])

    def finish(self):
        a = self.a
        a.run([self.stamp('end')])
        amp = self.cfg.get('amp')
        if amp and amp[0] == self.role:
            if self.role == 'A':
                a(f"s_cmp_ge_u32 s{sID}, 30")
                a("s_cbranch_scc1 L_end")
            a("s_memrealtime s[100:101]")
            a("s_sub_u32 s98, s98, s96")
            a("s_mul_i32 s98, s98, 20")
            a("s_min_u32 s98, s98, 200000")
            a("s_add_u32 s98, s98, s100")
            a.label("L_amp")
            a("s_memrealtime s[100:101]")
            a("s_sub_u32 s100, s100, s98")
            a("s_cmp_lt_i32 s100, 0")
            a("s_cbranch_scc1 L_amp")
        if self.stamps:
            if not self.cfg.get('nodrain'):
                a.wait_all()
            a("s_memrealtime s[98:99]")
            a(f"v_writelane_b32 v255, s96, 30")
            a(f"v_writelane_b32 v255, s98, 31")
            for k in range(self.npoll):
                a(f"v_readlane_b32 s{sT0}, v254, {k}")
                a(f"v_writelane_b32 v255, s{sT0}, {24+k}")
            a(f"s_lshl2_add_u32 s{sT0}, s2, s{sW}")
            a(f"s_lshl_b32 s{sT0}, s{sT0}, 8")
            a(f"s_add_u32 s{sT0}, s{sT0}, {WS_DBG}")
            a(f"v_lshlrev_b32 v{vT}, 2, v0")
            a(f"buffer_store_dword v255, v{vT}, {srd(S_WS)}, s{sT0} offen")


KERNARG = {f"s{i}" for i in range(36, 68)}


def prog_A(cfg):
    P = Prog('A', cfg)
    a, stamp = P.a, P.stamp
    a.smem_pending = set(KERNARG) | {'s96', 's97'}
    FS1, FSU, FSZ = cfg.get('fs1', 32), cfg.get('fsu', 64), cfg.get('fsz', 32)
    NB, GR = cfg.get('nb', 14), cfg.get('grp', 2)
    sDG, sFT = sA, sB
    KW, HW = cfg.get('kw', 1), cfg.get('hw', 1)
    NC = 3 if cfg.get('third', 'A') == 'A' else 2
    NT = 8*NC
    if cfg.get('cpf', 1) and cfg.get('lay', 'C') != 'C':
        a.run(P.code_prefetch("L_Amain", "L_end"))
    a(f"s_mul_i32 s{sT0}, s{sID}, 52")
    a(f"s_lshr_b32 s{sT0}, s{sT0}, 8")
    a(f"s_mul_i32 s{sT1}, s{sT0}, 5")
    a(f"s_sub_u32 s{sDG}, s{sID}, s{sT1}")
    a(f"s_min_u32 s{sT0}, s{sT0}, 5")
    a(f"s_mul_i32 s{sFT}, s{sXQ}, 6")
    a(f"s_add_u32 s{sFT}, s{sFT}, s{sT0}")
    a(f"s_lshl4_add_u32 s{sT1}, s{sDG}, s{sW}")
    a(f"s_mul_i32 s{sT1}, s{sT1}, 205")
    a(f"s_lshr_b32 s{sT1}, s{sT1}, 10")
    sOWN = 38
    if cfg.get('rkA', 0):
        a(f"s_lshr_b32 s{sCNT}, s{sT0}, 1")
        a(f"s_mul_i32 s{sCNT}, s{sCNT}, {cfg.get('rkA', 0)}")
        a(f"s_add_u32 s{sT1}, s{sT1}, s{sCNT}")
        a(f"s_and_b32 s{sT1}, s{sT1}, 15")
    a(f"s_lshl_b32 s{TK}, s{sT1}, 10")
    a(f"s_add_u32 s{sT1}, s{TK}, 1024")
    a(f"s_and_b32 s{TK+1}, s{sT1}, 0x3c00")
    a(f"s_lshl_b32 s{sRING}, s{sW}, 12")
    a(f"s_mul_i32 s{sT0}, s{sW}, {512*3072}")
    a(f"s_lshl_b32 s{sT1}, s{sFT}, 7")
    a(f"s_add_u32 s{sT0}, s{sT0}, s{sT1}")
    a.run(P.weight_src(3072, sT0))
    a(f"s_mov_b32 s{S_W+2}, 6291456")
    a(f"s_mov_b32 s{S_W+3}, 0x20000")
    P.split0 = len(a.out)
    a(f"s_cmp_ge_u32 s{sID}, 30")
    a(f"s_cselect_b32 s{sSP}, {OOB}, 0")
    a(f"s_mov_b64 {sp(S_W)}, {sp(50)}")
    a("s_cbranch_scc1 L_Amain")
    a.run(P.w_step())
    a.run([stamp('start')])
    a.run(P.w_step())
    a("s_branch L_Amain")
    P.split = len(a.out)
    a.label("L_Amain")
    if cfg.get('lay', 'C') != 'C':
        a.run(P.lanes())
    if cfg.get('hlpA', 1):
        a(f"s_cmp_lt_u32 s{sID}, 30")
        a("s_cbranch_scc1 L_Anh")
        a.begin_cond('hlp')
        a(f"s_lshl1_add_u32 s{sT0}, s{sXQ}, 3")
        a(f"s_and_b32 s{sT0}, s{sT0}, 7")
        a(f"s_min_u32 s{sT0}, s{sT0}, 5")
        a(f"s_lshr_b32 s{sCNT}, s{sT0}, 1")
        a(f"s_mul_i32 s{sCNT}, s{sCNT}, {cfg.get('rkA', 0)}")
        a(f"s_add_u32 s{sCNT}, s{sCNT}, 15")
        a(f"s_mul_i32 s{sT1}, s{sXQ}, 6")
        a(f"s_add_u32 s{sT0}, s{sT0}, s{sT1}")
        a(f"s_lshl_b32 s{sT0}, s{sT0}, 7")
        a(f"s_mul_i32 s{sT1}, s{sW}, {512*3072}")
        a(f"s_add_u32 s{sU0}, s{sT0}, s{sT1}")
        for i in range(2):
            if i == 0:
                a(f"v_lshrrev_b32 v{vT}, 5, v0")
                a(f"v_lshl_add_u32 v{vT}, s{sDG}, 1, v{vT}")
                a(f"v_and_b32 v{vT2}, 31, v0")
            else:
                a(f"v_mov_b32 v{vT}, 4")
                a(f"v_lshl_add_u32 v{vT2}, s{sDG}, 4, v{vI}")
            a(f"v_add_u32 v{vT}, 1, v{vT}")
            a(f"v_lshl_add_u32 v{vT}, v{vT}, 4, s{sW}")
            a(f"v_mul_u32_u24 v{vT}, 205, v{vT}")
            a(f"v_lshrrev_b32 v{vT}, 10, v{vT}")
            a(f"v_add_u32 v{vT}, s{sCNT}, v{vT}")
            a(f"v_and_b32 v{vT}, 15, v{vT}")
            a(f"v_lshl_add_u32 v{vT}, v{vT}, 5, v{vT2}")
            a(f"v_mul_u32_u24 v{vT}, 3072, v{vT}")
            if i:
                a("s_mov_b64 exec, 0xffff")
            a(f"buffer_load_dword v{250+i}, v{vT}, {srd(S_W)}, s{sU0} offen")
        a("s_mov_b64 exec, -1")
        a.end_cond()
        a.label("L_Anh")
    HA = cfg.get('hlpA2', 0)
    if HA:
        a(f"s_lshl1_add_u32 s{sT0}, s{sXQ}, 3")
        a(f"s_and_b32 s{sT0}, s{sT0}, 7")
        a(f"s_mul_i32 s{sT1}, s{sXQ}, 6")
        a(f"s_add_u32 s{sU0}, s{sT0}, s{sT1}")
        a(f"s_sub_u32 s{sT1}, s{sFT}, s{sU0}")
        a(f"s_add_u32 s{sT1}, s{sT1}, 5")
        a(f"s_cmp_ge_u32 s{sT1}, 6")
        a(f"s_cselect_b32 s{sCNT}, 6, 0")
        a(f"s_sub_u32 s{sT1}, s{sT1}, s{sCNT}")
        a(f"s_lshl_b32 s{sU0}, s{sU0}, 7")
        a(f"s_cmp_ge_u32 s{sT1}, 5")
        a(f"s_cselect_b32 s{sU0}, {OOB}, s{sU0}")
        a(f"s_cmp_ge_u32 s{sT0}, 6")
        a(f"s_cselect_b32 s{sU0}, {OOB}, s{sU0}")
        a(f"s_or_b32 s{sU0}, s{sU0}, s{sSP}")
        a(f"s_lshr_b32 s{sT0}, s{sT0}, 1")
        a(f"s_mul_i32 s{sT0}, s{sT0}, {cfg.get('rkA', 0)}")
        a(f"s_add_u32 s{sCNT}, s{sDG}, 1")
        a(f"s_lshl4_add_u32 s{sCNT}, s{sCNT}, s{sW}")
        a(f"s_mul_i32 s{sCNT}, s{sCNT}, 205")
        a(f"s_lshr_b32 s{sCNT}, s{sCNT}, 10")
        a(f"s_add_u32 s{sT0}, s{sT0}, s{sCNT}")
        a(f"s_add_u32 s{sT0}, s{sT0}, 14")
        a(f"s_and_b32 s{sT0}, s{sT0}, 15")
        a(f"s_lshl4_add_u32 s{sT0}, s{sW}, s{sT0}")
        a(f"s_lshl_b32 s{sT0}, s{sT0}, 5")
        a(f"s_mul_i32 s{sT1}, s{sT1}, {HA}")
        a(f"s_add_u32 s{sT0}, s{sT0}, s{sT1}")
        a(f"s_add_u32 s{sT0}, s{sT0}, {32 - 5*HA}")
        a(f"v_add_u32 v{vT}, s{sT0}, v0")
        a(f"v_mul_u32_u24 v{vT}, 3072, v{vT}")
        a(f"s_mov_b64 exec, {hex((1 << HA) - 1)}")
        a(f"buffer_load_dword v249, v{vT}, {srd(S_W)}, s{sU0} offen")
        a("s_mov_b64 exec, -1")
    for (s, n) in ((S_WS, WS_SIZE), (S_SSM, 2621440)):
        a(f"s_mov_b32 s{s+2}, {n}")
        a(f"s_mov_b32 s{s+3}, 0x20000")
    for j in range(2, 16):
        a(f"s_add_u32 s{sT1}, s{TK+j-1}, 1024")
        a(f"s_and_b32 s{TK+j}, s{sT1}, 0x3c00")
    a(f"s_add_u32 s{S_WS}, s66, {cfg.get('wso', 0) << 20}")
    a(f"s_addc_u32 s{S_WS+1}, s67, 0")
    a(f"s_mov_b64 {sp(S_SSM)}, {sp(44)}")
    a.run(P.weight_dst(False))
    a.run(P.zflag_addr(sFJ, 128))
    a.run(P.conv_setup(NC))
    vHL, vRW, vRR, vUS, vEP, vX0 = 10, 44, 47, 48, 49, 50
    BL = 54
    g1set = [f"s_mul_i32 s{sOWN}, s{sFT}, {cfg.get('roA', 0)}", f"s_add_u32 s{sOWN}, s{sOWN}, s{sW}", f"s_and_b32 s{sOWN}, s{sOWN}, 3",
             f"s_lshl_b32 s{sCNT}, s{sDG}, 18", f"s_lshl_b32 s{sT1}, s{sW}, 14", f"s_add_u32 s{sCNT}, s{sCNT}, s{sT1}",
             f"s_add_u32 s{sCNT}, s{sCNT}, s{sSP}"]
    for i in range(4):
        g1set += [f"s_add_u32 s{sT0}, s{sOWN}, {i+1}",
                  f"s_and_b32 s{sT0}, s{sT0}, 3",
                  f"s_mul_i32 s{sT1}, s{sT0}, 12288",
                  f"s_add_u32 s{sT1}, s{sT1}, {L_RED + (i*4096 if i < 3 else 0)}",
                  f"v_add_u32 v{vRW+i}, s{sT1}, v1",
                  f"s_lshl_b32 s{sT0}, s{sT0}, 16",
                  f"s_add_u32 s{sT0}, s{sT0}, s{sCNT}",
                  f"v_add_u32 v{vHL+i}, s{sT0}, v1",
                  f"v_add_u32 v{vHL+4+i}, {20*65536}, v{vHL+i}"]
    g1set += [f"v_lshl_add_u32 v{vP0}, s{sW}, 5, v0",
              f"v_mul_u32_u24 v{vP0}, {FS1}, v{vP0}",
              f"v_add_u32 v{vP0}, {WS_F1}, v{vP0}",
              f"s_lshl_b32 s{sT0}, s{sFT}, 7",
              f"v_lshl_add_u32 v{vX0}, v{vH}, 3, s{sT0}",
              f"s_lshl2_add_u32 s{sT0}, s{sDG}, s{sOWN}",
              f"s_mul_i32 s{sFI}, s{sT0}, 24",
              f"s_add_u32 s{sFI}, s{sFI}, s{sFT}",
              f"s_mul_i32 s{sFI}, s{sFI}, {FSU}",
              f"s_add_u32 s{sFI}, s{sFI}, {WS_FU}",
              f"s_add_u32 s{sFI}, s{sFI}, s{sSP}",
              f"s_mul_i32 s{sT0}, s{sT0}, 48",
              f"s_lshl1_add_u32 s{sT0}, s{sFT}, s{sT0}",
              f"s_lshl_b32 s{sT0}, s{sT0}, 10",
              f"s_add_u32 s{sT0}, s{sT0}, {WS_U}",
              f"s_add_u32 s{sT0}, s{sT0}, s{sSP}",
              f"v_add_u32 v{vUS}, s{sT0}, v1",
              f"s_mov_b32 s{sU2}, 0xbdd2d3e8",
              f"s_mov_b32 s{sU3}, {20*48*1024}",
              f"v_mov_b32 v52, 0xc0135761"]
    a.run(g1set)
    a.run(P.conv_setup2(NC))
    a.run(P.epoch_load(vEP))
    for t in range(4):
        a(f"global_load_dwordx2 {vr(BL+2*t,2)}, v{vX0}, {sp(P_B1)} offset:{32*t}")
    a(f"s_cmp_ge_u32 s{sID}, 30")
    a("s_cbranch_scc1 L_Aspare")
    a.run(P.w_step())
    a.run(P.w_step())
    BI, RD, PD4 = 112, 144, 248
    bun = []
    for t in range(8):
        bun += [f"v_lshlrev_b32 v{BI+2*t}, 16, v{BL+t}", f"v_and_b32 v{BI+2*t+1}, 0xffff0000, v{BL+t}"]
    PA = cfg.get('pollA', 14)
    while P.nxt < 16:
        if P.nxt == 8:
            a.run(P.set_tag(vEP))
            a.run(bun)
        a.run([stamp(f'w{P.nxt}')])
        it = P.w_step()
        if P.nxt - 1 == PA:
            it.insert(9, P.poll_issue(vP0, 32, 1, PD4))
        a.run(it)
    while P.drn < PA:
        a.run(P.w_step())
    a.run([P.poll_check('f1', vP0, 32, 1, PD4), stamp('f1_ok')])
    BUFS = ([64 + 4*i for i in range(8)] + [128 + 4*i for i in range(4)] + [228 + 4*i for i in range(5)] + [208 + 4*i for i in range(3)])[:NB]

    def h_load(n):
        i, j = divmod(n, 16)
        return f"buffer_load_dwordx4 {vr(BUFS[n % NB],4)}, v{vHL+i}, {srd(S_WS)}, s{TK+j} offen {cfg.get('apol', 'sc1')}"
    hn = 0
    HE = cfg.get('hearly', 8)
    left = 16 - P.drn
    while P.drn < 16:
        for _ in range(HE // left):
            a(h_load(hn)); hn += 1
        a.run(P.w_step())
    ACC = (96, 192)
    Z, G0, UO = ACC[1], 160, 220
    for r in range(2):
        mf, pos = [], {}
        for q in range(64 // GR):
            for t in range(4):
                for n in range(q * GR, (q + 1) * GR):
                    i, j = divmod(n, 16)
                    d = vr(ACC[i & 1] + 4 * t, 4)
                    pos.setdefault(n, len(mf))
                    c = d if j else ('0' if i < 3 else vr(BI + 4 * t, 4))
                    mf.append(f"v_mfma_f32_16x16x32_bf16 {d}, {ar(16*j+4*t,4)}, {vr(BUFS[(64*r + n) % NB],4)}, {c}")
        S = Sched(mf)
        for n in range(64):
            S.reserve(pos[n] - 1)
        k = 0
        while hn < 128:
            n = hn - 64 * r
            free = 4 * GR * ((n - NB) // GR + 1) if n >= NB else 0
            p = max(free, 4 * (n - NB + GR) + 1, 2 * k)
            if p > 255:
                break
            S.add('h', [h_load(hn)], p, p)
            hn += 1
            k += 1
        S.add('st', [stamp(f'g1first{r}')], 0, 0)
        lasth = p if r else 0
        if r == 0 and cfg.get('h2', 1):
            W2 = 4 if cfg.get('hl', 4) else 1
            p2 = cfg.get('pH2', 120 if W2 == 4 else 40)
            pc = max(150, p2 + 64)
            S.add('f2', [f"v_lshl_add_u32 v{vP0}, s{sW}, 5, v0", f"v_lshlrev_b32 v{vP0}, 4, v{vP0}", f"v_add_u32 v{vP0}, {WS_F1 + 0x4000}, v{vP0}",
                         P.poll_issue(vP0, 32, W2, PD4)], p2 - 4, p2)
            S.add('f2', [P.poll_check('f2', vP0, 32, W2, PD4)], pc, pc + 2)
            assert 4 * (64 - NB + GR) + 1 > pc + 3 and pc + 3 < 192 + cfg.get('pR', 15)
        for i in range(3):
            S.add('red', [(f"ds_write_b128 v{vRW+i}, {vr(ACC[i & 1]+4*t,4)} offset:{t*1024}", f'redw{r}{i}') for t in range(4)],
                  64 * (i + 1) + 1, 64 * (i + 1) + 13, pace=4 if i < 2 else 3)
        pR = 192 + cfg.get('pR', 15)
        S.add('red', [('wait', f'redw{r}2'), "s_barrier"], pR, pR + 1)
        S.add('red', [f"ds_read_b128 {vr(RD+4*k,4)}, v{vRR} offset:{k*1024}" for k in range(12)], pR + 2, pR + 16)
        S.add('add', [f"v_add_f32 v{RD+k}, v{RD+k}, v{RD+16+k}" for k in range(16)] +
                     [f"v_add_f32 v{RD+k}, v{RD+k}, v{RD+32+k}" for k in range(16)], pR + 17, 255)
        if r == 1:
            S.add('set', [f"v_subrev_u32 v{vRW+i}, {L_RED}, v{vRW+i}" for i in range(4)], 2, 30)
            pD = cfg.get('pD0', 40)
            S.add('fl', [('wait', 'ust0'), stamp('barD0'), P.flag(sFI), f"s_add_u32 s{sFI}, s{sFI}, {20*24*FSU}"], pD, pD + 1)
            S.add('fl', [P.poll_check('fk', vP1, 16, KW, PD4), stamp('fk_ok')], 150, 152)
            for i, x in enumerate(P.ssm_loads(NC) + P.x_loads(NC)):
                S.add('h', [x], lasth + 4 * (i + 1), lasth + 4 * (i + 1))
        a.run(S.items())
        P.info[f'g1{r}'] = (S.over, S.under)
        a.run([stamp(f'g1mfma{r}')])
        side = []
        if r == 0:
            while hn < 64 + NB:
                side.append(h_load(hn)); hn += 1
            a.run(side)
        for t in range(8):
            a(f"v_pk_add_f32 {vr(Z+2*t,2)}, {vr(Z+2*t,2)}, {vr(RD+2*t,2)}")
        for t in range(8):
            a(f"v_pk_mul_f32 {vr(G0+2*t,2)}, {vr(Z+2*t,2)}, {vr(Z+2*t,2)}")
        for t in range(8):
            a(f"v_pk_fma_f32 {vr(G0+2*t,2)}, {vr(G0+2*t,2)}, {sp(sU2)}, v[52:53] op_sel_hi:[1,0,0]")
        for t in range(8):
            a(f"v_pk_mul_f32 {vr(G0+2*t,2)}, {vr(G0+2*t,2)}, {vr(Z+2*t,2)}")
        for t in range(16):
            a(f"v_exp_f32 v{G0+t}, v{G0+t}")
        for t in range(8):
            a(f"v_pk_add_f32 {vr(G0+2*t,2)}, {vr(G0+2*t,2)}, 1.0 op_sel_hi:[1,0]")
        for t in range(16):
            a(f"v_rcp_f32 v{G0+t}, v{G0+t}")
        for t in range(8):
            a(f"v_pk_mul_f32 {vr(G0+2*t,2)}, {vr(G0+2*t,2)}, {vr(Z+2*t,2)}")
        for t in range(8):
            a(f"v_cvt_pk_bf16_f32 v{UO+t}, v{G0+2*t}, v{G0+2*t+1}")
        for half in range(2):
            a(f"buffer_store_dwordx4 {vr(UO+4*half,4)}, v{vUS}, {srd(S_WS)}, {'0' if r == 0 else f's{sU3}'} offen offset:{1024*half} sc1", tok=f'ust{r}')
        if r == 0:
            a(P.poll_issue(vP1, 16, KW, PD4))
        a.run([stamp(f'ust{r}')])
    a.label("L_Ajoin")
    a.wait('xd')
    a("s_barrier")
    CPA = cfg.get('cpreA', 4)
    a.run(P.conv_pre(CPA))
    S = P.conv_sched(NT, CPA, 2)
    pD = cfg.get('pD1', 30)
    S.add('fl', [('wait', 'ust1'), stamp('barD1'), P.flag(sFI)], pD, pD + 1)
    Z2 = NC == 3 and cfg.get('z2', 1)
    P.conv_run(S, NT, Z2, P.flag(sFJ))
    if Z2:
        a(f"s_add_u32 s{sFJ}, s{sJ}, 128")
        a(f"s_mul_i32 s{sFJ}, s{sFJ}, {FSZ}")
        a(f"s_lshl2_add_u32 s{sFJ}, s{sW}, s{sFJ}")
        a(f"s_add_u32 s{sFJ}, s{sFJ}, {WS_FZ + 16}")
    a.wait('zst2' if NC == 3 else 'zst1')
    a(P.flag(sFJ))
    if cfg.get('diagclean'):
        a(f"s_cmp_ge_u32 s{sID}, 20")
        a("s_cbranch_scc1 L_ncl")
        a(f"s_mul_i32 s{sT0}, s{sXQ}, 20")
        a(f"s_add_u32 s{sT0}, s{sT0}, s{sID}")
        a(f"s_lshl2_add_u32 s{sT0}, s{sT0}, s{sW}")
        a(f"s_lshl_b32 s{sT0}, s{sT0}, 13")
        a(f"v_lshlrev_b32 v{vT}, 7, v0")
        a(f"buffer_store_dword v0, v{vT}, {srd(S_WS)}, s{sT0} offen sc1")
        a(f"buffer_store_dword v0, v{vT}, {srd(S_WS)}, s{sT0} offen offset:64 sc1")
        a.label("L_ncl")
    a(f"s_cmp_lg_u32 s{sJ}, 31")
    a("s_cbranch_scc1 L_Adone")
    st, P.stamps = P.stamps, False
    a(f"v_lshl_add_u32 v{vP0}, s{sW}, 5, v0")
    a(f"v_mul_u32_u24 v{vP0}, {cfg.get('fsk', 16)}, v{vP0}")
    a(f"v_add_u32 v{vP0}, {WS_FK}, v{vP0}")
    a(P.poll_issue(vP0, 32, KW, PD4))
    a.run([P.poll_check('e0', vP0, 32, KW, PD4)])
    for k in range(2):
        a(f"s_mul_i32 s{sT0}, s{sW}, 120")
        a(f"s_add_u32 s{sT0}, s{sT0}, {60*k}")
        a(f"v_add_u32 v{vP0}, s{sT0}, v0")
        a(f"v_mul_u32_u24 v{vP0}, {FSU}, v{vP0}")
        a(f"v_add_u32 v{vP0}, {WS_FU}, v{vP0}")
        a(P.poll_issue(vP0, 60))
        a.run([P.poll_check(f'e{k+1}', vP0, 60)])
    a(f"v_lshl_add_u32 v{vP0}, s{sW}, 5, v0")
    a(f"v_mul_u32_u24 v{vP0}, {FSZ}, v{vP0}")
    a(f"v_add_u32 v{vP0}, {WS_FZ + 158*FSZ}, v{vP0}")
    a(P.poll_issue(vP0, 2, 4, PD4))
    a.run([P.poll_check('e3', vP0, 2, 4, PD4)])
    P.stamps = st
    a("s_barrier")
    a(f"s_mov_b32 s{sT0}, {WS_EP}")
    a(P.flag(sT0))
    a.label("L_Adone")
    P.finish()
    a("s_endpgm")
    b = Asm()
    P.a, st, P.stamps = b, P.stamps, False
    b.label("L_Aspare")
    b(f"s_mul_i32 s{sT0}, s{sXQ}, 160")
    b(f"s_mul_i32 s{sT1}, s{sDG}, {16*NC}")
    b(f"s_add_u32 s{sT0}, s{sT0}, s{sT1}")
    b(f"s_add_u32 s{sT0}, s{sT0}, 64")
    b(f"v_lshrrev_b32 v{vT}, 3, v0")
    b(f"v_add_lshl_u32 v{vT}, s{sT0}, v{vT}, 12")
    b(f"v_and_b32 v{vT2}, 7, v0")
    b(f"v_lshl_add_u32 v{vT2}, s{sW}, 3, v{vT2}")
    b(f"v_lshl_add_u32 v{vT}, v{vT2}, 7, v{vT}")
    b("s_waitcnt vmcnt(0)")
    b.run(P.set_tag(vEP))
    for i in range(2 * NC if cfg.get('spf', 1) else 0):
        b(f"s_mov_b32 s{sT0}, {i*8*4096}")
        b(f"buffer_load_dword v{64+i}, v{vT}, {srd(S_SSM)}, s{sT0} offen")
    b.run(P.ssm_loads(NC))
    b(P.poll_issue(vP1, 16, KW, PD4))
    b.run([P.poll_check('fs', vP1, 16, KW, PD4)])
    for i in range(2 * NC if cfg.get('xpf', 0) else 0):
        b(f"s_mov_b32 s{sT0}, {WS_KV + i*8*4096}")
        b(f"buffer_load_dword v{vPD}, v{vT}, {srd(S_WS)}, s{sT0} offen sc1") if False else b.raw(f"    buffer_load_dword v{vPD}, v{vT}, {srd(S_WS)}, s{sT0} offen sc1")
    b.run(P.x_loads(NC))
    b("s_waitcnt vmcnt(0) lgkmcnt(0)")
    b("s_branch L_Ajoin")
    a.out += b.out
    P.a, P.stamps = a, st
    return P


def prog_B(cfg):
    P = Prog('B', cfg)
    a, stamp = P.a, P.stamp
    a.smem_pending = set(KERNARG) | {'s96', 's97'}
    FS1, FSU, FSZ, FSK = cfg.get('fs1', 32), cfg.get('fsu', 64), cfg.get('fsz', 32), cfg.get('fsk', 16)
    sDT, sST = sA, sB
    KW, HW = cfg.get('kw', 1), cfg.get('hw', 1)
    NC = 3 if cfg.get('third', 'A') == 'B' else 2
    NT = 8*NC
    NMF = 136 if NC == 2 else 208
    a.label("L_B")
    if cfg.get('cpf', 1) and cfg.get('lay', 'C') != 'C':
        a.run(P.code_prefetch("L_pcB", "L_Amain"))
    a.run(P.lanes())
    XR, GR = 160, 180
    vQ, vG, vEP = 200, 201, 202
    a(f"s_lshr_b32 s{sT0}, s{sJ}, 1")
    a(f"s_lshl_b32 s{sT0}, s{sT0}, 5")
    a(f"s_and_b32 s{sT1}, s{sJ}, 1")
    a(f"s_lshl3_add_u32 s{sCNT}, s{sT1}, s{sT0}")
    a(f"s_lshl2_add_u32 s{sCNT}, s{sT2}, s{sCNT}")
    a(f"s_lshl4_add_u32 s{sCNT}, s{sT3}, s{sCNT}")
    a(f"v_add_u32 v{vQ}, s{sCNT}, v{vH}")
    a(f"v_mul_u32_u24 v{vQ}, 1280, v{vQ}")
    a(f"v_lshlrev_b32 v{vG}, 4, v{vI}")
    a(f"v_add_u32 v{vQ}, v{vQ}, v{vG}")
    def kvset():
        a(f"s_lshl3_add_u32 s{sU0}, s{sW}, s{sT0}")
        a(f"s_mul_i32 s{sU0}, s{sU0}, 1280")
        a(f"s_mul_i32 s{sU1}, s{sT1}, 640")
        a(f"s_add_u32 s{sU0}, s{sU0}, s{sU1}")
        a(f"v_add_u32 v{vKV}, s{sU0}, v1")
        a(f"s_mul_i32 s{sU0}, s{sW}, {(-7*1280) & 0xffffffff}")
        a(f"s_sub_u32 s{sU0}, s{sU0}, {4*1280}")
        a(f"v_add_u32 v{vKH}, s{sU0}, v{vKV}")
        a(f"s_mul_i32 s{sKL}, s{sW}, {8*PK + 32}")
        for (s, n) in ((S_K, 2621440), (S_V, 2621440), (S_WS, WS_SIZE), (S_W, 6291456), (S_SSM, 2621440)):
            a(f"s_mov_b32 s{s+2}, {n}")
            a(f"s_mov_b32 s{s+3}, 0x20000")
        a(f"s_lshl2_add_u32 s{sU0}, s{sT1}, s{sW}")
        a(f"s_mul_i32 s{sU0}, s{sU0}, 80")
        a(f"v_add_u32 v{vCH}, s{sU0}, v{vI}")
        a(f"v_lshlrev_b32 v{vS0}, 3, v{vCH}")
    vKV, vKH, vCH, vS0 = 60, 61, 62, 63
    sKL = sFI
    if not cfg.get('qfirst', 1):
        kvset()
    P.split0 = len(a.out)
    for i in range(5):
        a(f"global_load_dwordx4 {vr(XR+4*i,4)}, v{vQ}, {sp(P_Q)} offset:{256*i}")
    a.run([stamp('start')])
    if cfg.get('qfirst', 1):
        kvset()
    for (s, p) in ((S_K, 38), (S_V, 40), (S_W, 56), (S_SSM, 44)):
        a(f"s_mov_b64 {sp(s)}, {sp(p)}")
    a(f"s_add_u32 s{S_WS}, s66, {cfg.get('wso', 0) << 20}")
    a(f"s_addc_u32 s{S_WS+1}, s67, 0")
    vHS = 48
    a(f"s_lshl1_add_u32 s{sT0}, s{sJ}, s{sT3}")
    a(f"s_lshl_b32 s{sT0}, s{sT0}, 8")
    a(f"s_lshl_b32 s{sT1}, s{sT2}, 16")
    a(f"s_add_u32 s{sT0}, s{sT0}, s{sT1}")
    a(f"v_mul_u32_u24 v{vHS}, {5*65536}, v{vH}")
    a(f"v_lshl_add_u32 v{vHS}, v{vI}, 4, v{vHS}")
    a(f"v_add_u32 v{vHS}, s{sT0}, v{vHS}")
    a(f"s_mul_i32 s52, s{sT2}, {19*65536}")
    a(f"s_add_u32 s52, s52, {4*65536}")
    a(f"s_mov_b32 s53, {20*65536}")
    a(f"s_mov_b32 s64, {22*65536}")
    a(f"s_mov_b32 s81, {2*65536}")

    def claim():
        a(f"s_mov_b32 exec_lo, {cfg.get('clm', '0x01010101')}")
        a(f"s_mov_b32 exec_hi, {cfg.get('clm', '0x01010101')}")
        for so in ("0", "s81", "s52", "s53", "s64")[:cfg.get('ncl', 5)]:
            a(f"buffer_store_dword v0, v{vHS}, {srd(S_WS)}, {so} offen sc1", tok='claim')
        a("s_mov_b64 exec, -1")
    CL = cfg.get('claim', 0)
    if CL == 1:
        claim()
    a.run(P.epoch_load(vEP))

    def kv_dma(which, i):
        if which == 'h':
            return [f"s_mul_i32 s{sU0}, s{sW}, {PK}", f"s_add_u32 m0, s{sU0}, {L_KI}", "s_mov_b32 exec_hi, 0xff",
                    f"buffer_load_dwordx4 v{vKH}, {srd(S_K)}, 0 offen {cfg.get('kpol', '')} lds", "s_mov_b32 exec_hi, -1"]
        base = L_KI + (4 + i) * PK + (32 if i >= 4 else 0) if which == 'k' else L_VI + i * PK
        return [f"s_add_u32 m0, s{sKL}, {base}", f"s_mov_b32 s{sU0}, {i*1280}", "s_mov_b32 exec_hi, 0xff",
                (f"buffer_load_dwordx4 v{vKV}, {srd(S_K if which == 'k' else S_V)}, s{sU0} offen {cfg.get('kpol', '')} lds", 'kvdma'), "s_mov_b32 exec_hi, -1"]

    def kv_batch(lst):
        it = []
        for (wh, i) in lst:
            x = kv_dma(wh, i)
            if it:
                it.pop()
                x.remove("s_mov_b32 exec_hi, 0xff")
            it += x
        return it
    kvq = [('h', 0)] + [('k', i) for i in range(8)] + [('v', i) for i in range(8)]
    a(f"s_and_b32 s{sDT}, s{sID}, 3")
    a(f"s_lshr_b32 s{sT0}, s{sID}, 2")
    a(f"s_lshl3_add_u32 s{sST}, s{sXQ}, s{sT0}")
    vLW, vA1, vHS, vGS, vKVA, vKVS, vGV = 44, 46, 48, 49, 50, 51, 58
    a(f"v_lshl_add_u32 v{vT}, s{sW}, 2, v{vH}")
    a(f"s_lshl_b32 s{sT0}, s{sJ}, 4")
    a(f"v_add_lshl_u32 v{vGS}, s{sT0}, v{vT}, 2")
    a(f"v_add_u32 v{vGS}, {WS_G}, v{vGS}")
    a(f"v_mul_u32_u24 v{vT}, {PL}, v{vT}")
    a(f"v_add_u32 v{vT}, {L_LN}, v{vT}")
    a(f"v_add_u32 v{vLW}, v{vT}, v{vG}")
    a(f"v_mul_u32_u24 v{vT}, {PL}, v{vR}")
    a(f"v_mul_u32_u24 v{vT2}, 320, v{vH}")
    a(f"s_mul_i32 s{sT0}, s{sT3}, {8*PL}")
    a(f"s_lshl3_add_u32 s{sT0}, s{sT2}, s{sT0}")
    a(f"s_add_u32 s{sT0}, s{sT0}, {L_LN}")
    a(f"v_add3_u32 v{vT}, v{vT}, v{vT2}, s{sT0}")
    a(f"v_lshl_add_u32 v{vA1}, v{vC}, 4, v{vT}")
    a(f"v_mul_u32_u24 v{vT}, {8*PK + 32}, v{vH}")
    a(f"v_mul_u32_u24 v{vT2}, {PK}, v{vR}")
    a(f"s_mul_i32 s{sT0}, s{sW}, 160")
    a(f"s_add_u32 s{sT0}, s{sT0}, {L_KI}")
    a(f"v_add3_u32 v{vT}, v{vT}, v{vT2}, s{sT0}")
    a(f"v_lshl_add_u32 v{vKVA}, v{vC}, 3, v{vT}")
    a(f"v_lshlrev_b32 v{vKVS}, 12, v{vCH}")
    a(f"v_lshl_add_u32 v{vKVS}, v{vH}, 4, v{vKVS}")
    a(f"s_lshr_b32 s{sT0}, s{sJ}, 1")
    a(f"s_lshl_b32 s{sT1}, s{sT0}, 6")
    a(f"s_add_u32 s{sT1}, s{sT1}, {WS_KV}")
    a(f"v_add_u32 v{vKVS}, s{sT1}, v{vKVS}")
    a(f"s_and_b32 s{sT1}, s{sJ}, 1")
    a(f"s_lshl_b32 s{sT1}, s{sT1}, 6")
    a(f"s_add_u32 s{sFJ}, s{sT0}, s{sT1}")
    a(f"s_mul_i32 s{sFJ}, s{sFJ}, {FSK}")
    a(f"s_lshl2_add_u32 s{sFJ}, s{sW}, s{sFJ}")
    a(f"s_add_u32 s{sFJ}, s{sFJ}, {WS_FK}")
    a(f"s_mul_i32 s{sU3}, s{sJ}, {FS1}")
    a(f"s_add_u32 s{sU3}, s{sU3}, {WS_F1}")
    for k in range(1, 5):
        a(f"s_mov_b32 s{79+k}, {k*65536}")
    for i in range(5):
        a(f"global_load_dwordx4 {vr(GR+4*i,4)}, v{vG}, {sp(P_GW)} offset:{256*i}")
    nq = cfg.get('kvq0', 6)
    if nq:
        a.run(kv_batch(kvq[:nq])); kvq = kvq[nq:]
    if CL == 2:
        claim()
    if cfg.get('ptouch'):
        a(f"v_lshlrev_b32 v{vT}, {cfg['ptouch']}, v0")
        a(f"s_lshl_b32 s{sT0}, s{sJ}, 9")
        a(P.setexec(min(64, (5 << 20) >> cfg['ptouch'])) if (5 << 20) >> cfg['ptouch'] < 64 else "s_nop 0")
        a(f"buffer_load_dword v251, v{vT}, {srd(S_WS)}, s{sT0} offen")
        a("s_mov_b64 exec, -1")
    a.run([stamp('iss2')])

    S1, S2, vRS, vNM, XF = 64, 65, 66, 68, 72
    DP = ("quad_perm:[1,0,3,2]", "quad_perm:[2,3,0,1]", "row_half_mirror", "row_mirror")
    unp = []
    for i in range(20):
        unp += [f"v_lshlrev_b32 v{XF+2*i}, 16, v{XR+i}", f"v_and_b32 v{XF+2*i+1}, 0xffff0000, v{XR+i}"]
    ln = [f"s_mov_b32 s{sU2}, 0x3f803f80"]
    for i in range(20):
        c = lambda r: "0" if i == 0 else f"v{r}"
        ln += [f"v_dot2_f32_bf16 v{S1}, v{XR+i}, s{sU2}, {c(S1)}", f"v_dot2_f32_bf16 v{S2}, v{XR+i}, v{XR+i}, {c(S2)}"]
    inv = 0x3ACCCCCD
    red = []
    for m in DP:
        red += [f"v_add_f32_dpp v{x}, v{x}, v{x} {m} row_mask:0xf bank_mask:0xf" for x in (S1, S2)]
    red += [f"v_mul_f32 v{S1}, {hex(inv)}, v{S1}",
            f"v_mul_f32 v{S2}, {hex(inv)}, v{S2}",
            f"v_fma_f32 v{S2}, -v{S1}, v{S1}, v{S2}",
            f"v_max_f32 v{S2}, 0, v{S2}",
            f"v_add_f32 v{S2}, 0x3727c5ac, v{S2}",
            f"v_rsq_f32 v{vRS}, v{S2}",
            f"v_mul_f32_e64 v{vNM}, -v{S1}, v{vRS}"]
    ln += unp[:3] + merge(red, unp[3:])
    HP = 112
    for i in range(5):
        ln += [f"v_pk_fma_f32 {vr(XF+2*k,2)}, {vr(XF+2*k,2)}, {vr(vRS,2)}, {vr(vNM,2)} op_sel_hi:[1,0,0]" for k in range(4*i, 4*i+4)]
        ln += [f"v_cvt_pk_bf16_f32 v{HP+k}, v{XF+2*k}, v{XF+2*k+1}" for k in range(4*i, 4*i+4)]
        ln.append((f"ds_write_b128 v{vLW}, {vr(HP+4*i,4)} offset:{256*i}", 'lnw'))
    gate = [f"v_dot2_f32_bf16 v{vGV}, v{XR+i}, v{GR+i}, {'0' if i == 0 else f'v{vGV}'}" for i in range(20)]
    gate += [f"v_add_f32_dpp v{vGV}, v{vGV}, v{vGV} {m} row_mask:0xf bank_mask:0xf" for m in DP]
    gate += [f"v_mul_f32 v{vGV}, 0xbfb8aa3b, v{vGV}", f"v_exp_f32 v{vGV}, v{vGV}", f"v_add_f32 v{vGV}, 1.0, v{vGV}", f"v_rcp_f32 v{vGV}, v{vGV}",
             "s_mov_b32 exec_lo, 0x10001", "s_mov_b32 exec_hi, 0x10001",
             (f"buffer_store_dword v{vGV}, v{vGS}, {srd(S_WS)}, 0 offen sc1", 'hst2'), "s_mov_b64 exec, -1"]
    a.run(ln[:41])
    a.run([stamp('q_in')])
    nq = cfg.get('kvq1', 4)
    if nq:
        a.run(kv_batch(kvq[:nq])); kvq = kvq[nq:]
    a.run(ln[41:])
    a.wait('lnw')
    a("s_barrier")
    a.run([stamp('barL')])
    HB = 64
    H2 = cfg.get('h2', 1)
    HL = cfg.get('hl', 4) if H2 else 0
    HBR = (64, 68, 204, 208, 212) if HL else (64, 68, 72, 76, 80)
    for u, off in enumerate((0, 64, 256, 128, 192)):
        for e2 in range(2):
            a(f"ds_read_b64_tr_b16 {vr(HBR[u]+2*e2,2)}, v{vA1} offset:{off + e2*4*PL}")
    if CL:
        a.wait('claim')
    if cfg.get('dummyst') is not None:
        a(f"s_mov_b32 s{S_WS+2}, 0x4000000")
        a(f"v_add_u32 v{vT}, {cfg['dummyst']}, v{vHS}")
        for u, so in enumerate(("0", "s81", "s52", "s53", "s64")):
            if u in cfg.get('dun', range(5)):
                a(f"buffer_store_dwordx4 {vr(HB+4*u,4)}, v{vT}, {srd(S_WS)}, {so} offen {cfg.get('dpol', 'sc1')}", tok='dum')
        a.wait('dum')
        a.run([stamp('dum')])
    hst = [(f"buffer_store_dwordx4 {vr(HBR[u],4)}, v{vHS}, {srd(S_WS)}, {so} offen sc1", 'hst' if u < 3 or not H2 else 'hst3')
           for u, so in enumerate(("0", "s81", "s52", "s53", "s64"))]
    HX = HL and cfg.get('hx', 1)
    if HX:
        a(f"s_cmp_lt_u32 s{sW}, 2")
        a(f"s_cselect_b32 s65, {OOB}, s52")
        a(f"s_cselect_b32 s52, s52, {OOB}")
        hst.insert(3, (hst[2][0].replace("s52", "s65"), 'hst3'))
    HS = cfg.get('hs', 0)
    for x in (hst[:3] if HL else hst):
        a.run([x])
        if HS and x is not hst[2]:
            a.run(kv_batch(kvq[:HS])); kvq = kvq[HS:]
    a.run([stamp('h_iss')])
    a.run(gate)
    a.run(P.set_tag(vEP))
    vQO, vQO2, vGA, vX1, vQO1 = 36, 41, 253, 250, 15
    QR, vGG, vB2 = 44, 16, 17

    def bigset():
        a(f"s_bfe_u32 s{sT0}, s{sST}, 0x10001")
        a(f"s_mul_i32 s{sT0}, s{sT0}, {cfg.get('rkB', 0)}")
        a(f"s_add_u32 s{sT0}, s{sT0}, s{sDT}")
        a(f"s_and_b32 s{sT0}, s{sT0}, 3")
        a(f"s_mul_i32 s{TK}, s{sT0}, 3072")
        a(f"s_and_b32 s{sSP}, s{sST}, {cfg.get('swB', 1)}")
        for j in range(1, 12):
            a(f"s_add_u32 s{sT0}, s{TK+j-1}, 1024")
            a(f"s_cmp_lt_u32 s{sT0}, {12*1024}")
            a(f"s_cselect_b32 s{TK+j}, s{sT0}, 0")
        a(f"s_mul_i32 s{sT0}, s{sW}, {384*4096}")
        a(f"s_lshl_b32 s{sT1}, s{sST}, 7")
        a(f"s_add_u32 s{sT0}, s{sT0}, s{sT1}")
        a.run(P.weight_src(4096, sT0) + P.weight_dst(True))
        a.run(P.conv_setup(NC))
        a.run(P.conv_setup2(NC))
        a(f"s_lshl2_add_u32 s{sT0}, s{sST}, s{sW}")
        a(f"v_lshl_add_u32 v{vT}, s{sT0}, 4, v{vI}")
        a(f"v_lshlrev_b32 v{vX1}, 1, v{vT}")
        a(f"v_mul_u32_u24 v{vT}, 1280, v{vT}")
        a(f"s_mul_i32 s{sT0}, s{sDT}, 320")
        a(f"v_add_u32 v{vT}, s{sT0}, v{vT}")
        a(f"v_lshl_add_u32 v{vQO2}, v{vH}, 4, v{vT}")
        a(f"s_lshl_b32 s{sT0}, s{sSP}, 6")
        a(f"v_add_u32 v{vQO}, s{sT0}, v{vQO2}")
        a(f"v_subrev_u32 v{vQO1}, s{sT0}, v{vQO2}")
        a(f"s_lshl1_add_u32 s{sT0}, s{sST}, s{sT2}")
        a(f"s_lshl3_add_u32 s{sT0}, s{sT0}, s{sT3}")
        a(f"s_lshl_b32 s{sT0}, s{sT0}, 4")
        a(f"s_add_u32 s{sT0}, s{sT0}, {WS_G}")
        a(f"v_lshl_add_u32 v{vT}, v{vR}, 5, s{sT0}")
        a(f"v_lshl_add_u32 v{vGA}, v{vC}, 2, v{vT}")

    SP = cfg.get('setp', 1)
    if SP == 0:
        bigset()
    nq = cfg.get('kvq2', 7)
    if nq and kvq:
        a.run(kv_batch(kvq[:nq])); kvq = kvq[nq:]
    a.wait('hst' if H2 else 'hst2')
    a.run([P.flag_wg(sU3, 'f1'), stamp('barH')])
    if kvq:
        a.run(kv_batch(kvq))
    CF = 148
    for u in range(5):
        a(f"global_load_dwordx2 {vr(CF+2*u,2)}, v{vS0}, {sp(P_SH)} offset:{128*u}")
    if HL:
        a.run(hst[3:])
    if SP == 1:
        bigset()
    a.run(P.ssm_loads(NC))

    def helper():
        HR = cfg.get('hlpB', 6)
        if HR:
            a(f"s_add_u32 s{sT0}, s{sST}, 4")
            a(f"s_and_b32 s{sT0}, s{sT0}, 7")
            a(f"s_mul_i32 s{sT1}, s{sT0}, {HR}")
            a(f"s_cmp_eq_u32 s{sT0}, 7")
            a(f"s_cselect_b32 s{sU2}, {OOB}, 0")
            a(f"s_lshl2_add_u32 s{sT0}, s{sW}, s{sDT}")
            a(f"s_mul_i32 s{sT0}, s{sT0}, 96")
            a(f"s_add_u32 s{sT0}, s{sT0}, s{sT1}")
            a(f"s_add_u32 s{sT0}, s{sT0}, {96 - 7*HR}")
            a(f"v_add_lshl_u32 v{vT}, s{sT0}, v0, 12")
            a(f"s_lshl_b32 s{sT0}, s{sXQ}, 10")
            a(f"s_add_u32 s{sT0}, s{sT0}, 384")
            a(f"s_add_u32 s{sU2}, s{sU2}, s{sT0}")
            a(f"s_mov_b64 exec, {hex((1 << HR) - 1)}")
            a(f"buffer_load_dword v251, v{vT}, {srd(S_W)}, s{sU2} offen")
            a("s_mov_b64 exec, -1")
    WP = cfg.get('wBpre', 1)
    if WP:
        helper()
    if WP >= 2:
        a.run(P.w_step())

    if HL:
        a(f"s_lshl2_add_u32 s{sU3}, s{sJ}, s{sW}")
        a(f"s_lshl_b32 s{sU3}, s{sU3}, 2")
        a(f"s_add_u32 s{sU3}, s{sU3}, {WS_F1 + 0x4000}")
        a.wait('kvdma')
        a.run(["s_barrier", stamp('barK')])
    elif H2:
        a(f"s_mul_i32 s{sU3}, s{sJ}, 16")
        a(f"s_add_u32 s{sU3}, s{sU3}, {WS_F1 + 0x4000}")
        a.wait('kvdma', 'hst2')
        a.run([P.flag_wg(sU3, 'f2'), stamp('barK')])
    else:
        a.wait('kvdma')
        a.run(["s_barrier", stamp('barK')])
    KR, KO = 64, 160

    def kv_reads(u):
        it = [f"ds_read_b64_tr_b16 {vr(KR+10*u+2*j,2)}, v{vKVA} offset:{32*u + 4*j*PK + (32 if j == 2 else 0)}" for j in range(3)]
        it += [f"ds_read_b64_tr_b16 {vr(KR+10*u+6+2*j,2)}, v{vKVA} offset:{32*u + 4*j*PK + (L_VI-L_KI)}" for j in range(2)]
        return it

    def kv_compute(u):
        it = []
        k = KR + 10 * u
        c10, c32 = CF + 2 * u, CF + 2 * u + 1
        SH, AC, VF, OUT = 116, 124, 132, KO + 4 * u
        for n in range(5):
            it.append(f"v_alignbit_b32 v{SH+n}, v{k+n+1}, v{k+n}, 16")
        pr = lambda e: (k + (e + 1) // 2, k + (e + 3) // 2) if e & 1 else (SH + e // 2, SH + e // 2 + 1)
        for e in range(8):
            it.append(f"v_dot2_f32_bf16 v{AC+e}, v{pr(e)[0]}, v{c32}, 0")
        for e in range(8):
            it.append(f"v_dot2_f32_bf16 v{AC+e}, v{pr(e)[1]}, v{c10}, v{AC+e}")
        for n in range(4):
            it.append(f"v_lshlrev_b32 v{VF+2*n}, 16, v{k+6+n}")
            it.append(f"v_and_b32 v{VF+2*n+1}, 0xffff0000, v{k+6+n}")
        for n in range(4):
            it.append(f"v_pk_mul_f32 {vr(AC+2*n,2)}, {vr(AC+2*n,2)}, {vr(VF+2*n,2)}")
        for n in range(4):
            it.append(f"v_cvt_pk_bf16_f32 v{OUT+n}, v{AC+2*n}, v{AC+2*n+1}")
        it.append((f"buffer_store_dwordx4 {vr(OUT,4)}, v{vKVS}, {srd(S_WS)}, {'0' if u == 0 else f's{79+u}'} offen sc1", 'kvst'))
        return it
    a.run(kv_reads(0) + kv_reads(1))
    if WP & 1:
        a.run(P.w_step())
    for u in range(10):
        a(f"v_alignbit_b32 v{CF+u}, v{CF+u}, v{CF+u}, 16")
    for u in range(5):
        a.run(merge(kv_compute(u), kv_reads(u + 2) if u < 3 else []))
        if HL and u == HL - 1:
            a.run([('wait', 'hst3'), P.flag(sU3)])
    a.run([stamp('kv_done')])
    if not cfg.get('wBpre', 1):
        helper()
    for _ in range(cfg.get('wB0', 1)):
        a.run(P.w_step())
    a.wait('kvst')
    a.run([P.flag_wg(sFJ, 'fk') if KW == 1 else P.flag(sFJ), stamp('barV')] + P.zflag_addr(sFJ, 0))
    a(f"global_load_ushort v{vB2}, v{vX1}, {sp(P_B2)}")
    while P.nxt < cfg.get('pollB', 8):
        a.run(P.w_step())
    a(P.poll_issue(vP1, 16, KW, 204))
    for _ in range(cfg.get('pollgapB', 0)):
        a.run(P.w_step())
    a.run([P.poll_check('fk', vP1, 16, KW, 204), stamp('fk_ok')])
    a.run(P.x_loads(NC))
    qa = lambda p: f"v{(vQO, vQO1, vQO, vQO1, vQO2)[p]}"
    qld = [f"global_load_dwordx4 {vr(QR+4*p,4)}, {qa(p)}, {sp(P_Q)} offset:{64*p}" for p in range(5)]
    for _ in range(cfg.get('xgapB', 1)):
        a.run(P.w_step())
    a.wait('xd')
    a("s_barrier")
    a.run([stamp('barC')])

    CPB = cfg.get('cpreB', 4)
    a.run(P.conv_pre(CPB))
    while P.nxt < NR:
        a.run(P.w_step())
    S = P.conv_sched(NT, CPB, cfg.get('ccap', 2.3), cfg.get('sg0', 100))
    cS, cE = cfg.get('cS', 0), cfg.get('cE', NMF - 36)
    nst = 12 - P.nxt
    per = (cE - cS) / (nst + 1)
    for r in range(nst):
        p0 = cS + r * per
        it = P.w_step()
        for k, x in enumerate(it[:9]):
            S.add('wd', [x], int(p0 + k * per / 14), int(p0 + (k + 1) * per / 14))
        p1 = p0 + per
        S.add('w', it[9:11], int(p1 - per / 5), int(p1) - 1)
        S.add('w', it[11:12], int(p1), int(p1))
        for k, x in enumerate(it[12:]):
            S.add('w', [x], int(p1 + k * per / 4), int(p1 + k * per / 4))
    S.add('wd', P.w_step(), int(cE - per), int(cE) - 1, pace=per / 11)
    tail = []
    while P.drn < 12:
        tail += P.w_step()
    S.add('wd', tail, cE, None, pace=(NMF - cE) / len(tail))
    vUL = 10
    uset = [f"s_mul_i32 s{sT0}, s{sDT}, 120",
            f"s_mul_i32 s{sT1}, s{sW}, 6",
            f"s_add_u32 s{sT0}, s{sT0}, s{sT1}",
            f"v_mul_u32_u24 v{vT}, 43, v0",
            f"v_lshrrev_b32 v{vT}, 8, v{vT}",
            f"v_mul_u32_u24 v{vT}, 18, v{vT}",
            f"v_add3_u32 v{vP0}, s{sT0}, v0, v{vT}",
            f"v_mul_u32_u24 v{vP0}, {FSU}, v{vP0}",
            f"v_add_u32 v{vP0}, {WS_FU}, v{vP0}",
            f"s_mul_i32 s{sT0}, s{sDT}, {5*48}",
            f"s_lshl1_add_u32 s{sT0}, s{sT1}, s{sT0}",
            f"s_lshl_b32 s{sT0}, s{sT0}, 10",
            f"s_add_u32 s{sT0}, s{sT0}, {WS_U}",
            f"v_add_u32 v{vUL+4}, s{sT0}, v1",
            f"s_mul_i32 s{sT0}, s{sSP}, {96*1024}",
            f"v_add_u32 v{vUL}, s{sT0}, v{vUL+4}",
            f"s_sub_u32 s{sT0}, {96*1024}, s{sT0}",
            f"v_add_u32 v{vUL+2}, s{sT0}, v{vUL+4}",
            f"v_add_u32 v{vUL+1}, {48*1024}, v{vUL}",
            f"v_add_u32 v{vUL+3}, {48*1024}, v{vUL+2}",
            f"v_add_u32 v{vUL+4}, {192*1024}, v{vUL+4}"]
    S.add('set', uset, 40, 118)
    for k, x in enumerate(qld):
        qp = cfg.get('qS', 20) + cfg.get('qD', 16) * k
        S.add('q', [x], qp, qp)
    pU = NMF - cfg.get('pU0', 16)
    S.add('set', [P.poll_issue(vP0, 30)], pU, pU)
    NB2, GR2, UE = cfg.get('nb2', 16), cfg.get('grp2', 2), cfg.get('uearly', 8)
    UBUF = ([ar(192 + 4*i, 4) for i in range(16)] + [vr(92 + 4*i, 4) for i in range(4)])[:NB2]
    vUM = 220

    def u_load(n):
        m, j = divmod(n, 12)
        return f"buffer_load_dwordx4 {UBUF[n % NB2]}, v{vUL+m if m < 5 else vUM+m-5}, {srd(S_WS)}, s{TK+j} offen {cfg.get('apol', 'sc1')}"
    ustart = [P.poll_check('fu0', vP0, 30), stamp('fu0_ok')] + [u_load(n) for n in range(UE)]
    UEP = cfg.get('uep', 1)
    P.conv_run(S, NT, False, mid=[ustart if k == UEP else [] for k in range(3)])

    NB2, GR2, UE = cfg.get('nb2', 16), cfg.get('grp2', 2), cfg.get('uearly', 8)
    UBUF = ([ar(192 + 4*i, 4) for i in range(16)] + [vr(92 + 4*i, 4) for i in range(4)])[:NB2]
    AC2, OWN, RD2, RD4 = (108, 120), 132, 172, 208
    GQ, ZL, ZRg, ZU = 228, 64, 76, 88
    vZG, vZLW, vZT, vOG, vR2R, vR2W, vUM = 20, 21, 22, 28, 33, 25, 220
    vR2S, vR2X, PDZ, vP2 = 23, 30, 226, 225
    opol = cfg.get('opol', 'sc1')
    g2set = [f"v_add_u32 v{vUM+m}, {cfg.get('wiU', 20*48*1024)}, v{vUL+m}" for m in range(5)]
    g2set += [f"v_add_u32 v{vP0}, {20*24*FSU}, v{vP0}",
              f"v_lshrrev_b32 v{vT}, 3, v0",
              f"v_lshl_add_u32 v{vT}, s{sW}, 3, v{vT}",
              f"v_and_b32 v{vT2}, 7, v0",
              f"v_lshlrev_b32 v{vT2}, 4, v{vT2}",
              f"v_lshl_add_u32 v{vZG}, v{vT}, 12, v{vT2}",
              f"v_mul_u32_u24 v{vT}, {PZ}, v{vT}",
              f"v_add_u32 v{vT}, v{vT}, v{vT2}",
              f"v_add_u32 v{vZLW}, {L_ZI}, v{vT}",
              f"s_mul_i32 s{sT0}, s{sDT}, {160*4096}",
              f"s_lshl_b32 s{sT1}, s{sST}, 7",
              f"s_add_u32 s{sT0}, s{sT0}, s{sT1}",
              f"s_add_u32 s{sT0}, s{sT0}, {WS_Z}",
              f"s_lshl_b32 s{sT1}, s{sSP}, 17",
              f"s_add_u32 s80, s{sT0}, s{sT1}",
              f"s_sub_u32 s81, s{sT0}, s{sT1}",
              f"s_add_u32 s81, s81, {32*4096}",
              f"s_add_u32 s82, s80, {64*4096}",
              f"s_add_u32 s83, s81, {64*4096}",
              f"s_add_u32 s{sX0}, s{sT0}, {128*4096}",
              f"v_lshl_add_u32 v{vT}, v{vH}, 3, v{vR}",
              f"v_mul_u32_u24 v{vT}, {PZ}, v{vT}",
              f"s_lshl_b32 s{sT0}, s{sW}, 5",
              f"s_add_u32 s{sT0}, s{sT0}, {L_ZI}",
              f"v_lshl_add_u32 v{vZT}, v{vC}, 3, s{sT0}",
              f"v_add_u32 v{vZT}, v{vZT}, v{vT}"]
    for jn in range(1, 4):
        g2set += [f"s_xor_b32 s{sT0}, s{sW}, {jn}",
                  f"s_mul_i32 s{sT0}, s{sT0}, 3072",
                  f"s_add_u32 s{sT0}, s{sT0}, {(jn-1)*1024}",
                  f"v_add_u32 v{vR2W+jn-1}, s{sT0}, v1",
                  f"v_add_u32 v{vR2X+jn-1}, {L_RED}, v{vR2W+jn-1}"]
    g2set += [f"s_mul_i32 s{sT0}, s{sW}, 3072",
              f"v_add_u32 v{vR2R}, s{sT0}, v1",
              f"v_add_u32 v{vR2S}, {L_RED}, v{vR2R}",
              f"s_lshl3_add_u32 s{sT0}, s{sDT}, s{sW}",
              f"s_lshl_b32 s{sT0}, s{sT0}, 2",
              f"v_lshl_add_u32 v{vP1}, v{vR}, 4, v{vC}",
              f"v_add_u32 v{vP1}, s{sT0}, v{vP1}",
              f"v_mul_u32_u24 v{vP1}, {FSZ}, v{vP1}",
              f"s_and_b32 s{sT1}, s{sST}, 1",
              f"s_lshl_b32 s{sT1}, s{sT1}, 3",
              f"s_add_u32 s{sT1}, s{sT1}, {WS_FZ}",
              f"v_add_u32 v{vP1}, s{sT1}, v{vP1}",
              f"s_lshl2_add_u32 s{sT0}, s{sDT}, s{sW}",
              f"v_and_b32 v{vT}, 7, v0",
              f"v_lshl_add_u32 v{vP2}, s{sT0}, 3, v{vT}",
              f"v_mul_u32_u24 v{vP2}, {FSZ}, v{vP2}"]
    Z2 = NC == 2 and cfg.get('z2', 1)
    if Z2:
        g2set += [f"s_and_b32 s{sT1}, s{sST}, 3", f"s_lshl_b32 s{sT1}, s{sT1}, 2", f"s_add_u32 s{sT1}, s{sT1}, {WS_FZ + 128*FSZ + 16}",
                  f"v_add_u32 v{vP2}, s{sT1}, v{vP2}"]
    else:
        g2set += [f"v_add_u32 v{vP2}, s{sT1}, v{vP2}", f"v_cmp_lt_u32 vcc, 7, v0", "s_nop 1", f"v_cndmask_b32 v{vP1}, v{vP1}, v{vP2}, vcc"]
    nz0 = 16 if NC == 3 else 8
    nz1 = 16 if NC == 2 and not Z2 else 8
    zso = (80, 81, 82, 83, sX0)
    ptile = ((0, 1), (2, 3), (5, 6), (7, 8), (4, 9))

    def u_load(n):
        m, j = divmod(n, 12)
        return f"buffer_load_dwordx4 {UBUF[n % NB2]}, v{vUL+m if m < 5 else vUM+m-5}, {srd(S_WS)}, s{TK+j} offen {cfg.get('apol', 'sc1')}"

    def mf2(n, jn):
        m, j = divmod(n, 12)
        d = vr(OWN + 4 * m, 4) if jn == 0 else vr(AC2[m & 1] + 4 * (jn - 1), 4)
        return f"v_mfma_f32_16x16x32_bf16 {d}, {UBUF[n % NB2]}, {ar(16*j+4*jn,4)}, {'0' if j == 0 else d}"
    rd = lambda m, s: [f"ds_read_b128 {vr(RD2+12*s+4*k,4)}, v{vR2R if m < 5 else vR2S} offset:{(m % 5)*12288 + k*1024}" for k in range(3)]
    ad = lambda m, s: [f"v_add_f32 v{OWN+4*m+r}, v{OWN+4*m+r}, v{RD2+12*s+4*k+r}" for k in range(3) for r in range(4)]
    wr = lambda m: [(f"ds_write_b128 v{(vR2W if m < 5 else vR2X)+jn-1}, {vr(AC2[m & 1]+4*(jn-1),4)} offset:{(m % 5)*12288}", f'r2w{m}') for jn in range(1, 4)]
    z_ld = lambda ps: [f"buffer_load_dwordx4 {vr(ZL+4*i,4)}, v{vZG}, {srd(S_WS)}, s{zso[p]} offen sc1" for i, p in enumerate(ps)]
    z_wr = lambda ps: [f"ds_write_b128 v{vZLW}, {vr(ZL+4*i,4)} offset:{p*32*PZ}" for i, p in enumerate(ps)]
    z_rd = lambda p: [f"ds_read_b64_tr_b16 {vr(ZRg+4*(p % 3)+2*hh,2)}, v{vZT} offset:{(32*p + 4*hh)*PZ}" for hh in range(2)]

    def gq(p):
        it = []
        pp = GQ + 8 * (p % 3)
        for k in range(4):
            it += [f"v_lshlrev_b32 v{pp+2*k}, 16, v{QR+4*p+k}", f"v_and_b32 v{pp+2*k+1}, 0xffff0000, v{QR+4*p+k}",
                   f"v_mul_f32 v{pp+2*k}, v{pp+2*k}, v{vGG}", f"v_mul_f32 v{pp+2*k+1}, v{pp+2*k+1}, v{vGG}"]
        return it
    sc = lambda m: [f"v_fma_f32 v{OWN+4*m+k}, v{OWN+4*m+k}, v{vOG}, v{vB2}" for k in range(4)]

    def fin(p, hh):
        it = []
        o = OWN + 4 * ptile[p][hh]
        for k in range(2):
            zu, z, g = ZU + 2 * k, ZRg + 4 * (p % 3) + 2 * hh + k, GQ + 8 * (p % 3) + 4 * hh + 2 * k
            it += [f"v_lshlrev_b32 v{zu}, 16, v{z}", f"v_and_b32 v{zu+1}, 0xffff0000, v{z}"]
            if (p, hh) == (4, 1):
                it += [f"v_fma_f32 v{g}, v{g}, v{zu}, v{vB2}", f"v_fma_f32 v{g+1}, v{g+1}, v{zu+1}, v{vB2}"]
            else:
                it += [f"v_fmac_f32 v{o+2*k}, v{g}, v{zu}", f"v_fmac_f32 v{o+2*k+1}, v{g+1}, v{zu+1}",
                       f"v_cvt_pk_bf16_f32 v{QR+4*p+2*hh+k}, v{o+2*k}, v{o+2*k+1}"]
        return it
    ost = lambda p: [f"global_store_dwordx4 {qa(p)}, {vr(QR+4*p,4)}, {sp(P_OUT)} offset:{64*p} {opol if p < cfg.get('opn', 5) else ''}"]
    if cfg.get('dly'):
        a(f"s_sleep {cfg['dly']}")
    if UEP == 3:
        a.run(ustart)
    a(f"buffer_load_dword v{vGG}, v{vGA}, {srd(S_WS)}, 0 offen sc1")
    a.run(g2set)
    mf, pos = [], {}
    for q in range(120 // GR2):
        ns = range(q * GR2, (q + 1) * GR2)
        for jn in ((1, 2, 3, 0) if ns[0] < 108 else (1, 2, 3)):
            for n in ns:
                pos.setdefault(n, len(mf))
                mf.append(mf2(n, jn))
    pown = len(mf)
    mf += [mf2(n, 0) for n in range(108, 120)]
    S = Sched(mf)
    for n in range(120):
        S.reserve(pos[n] - 1)
    UC = cfg.get('pUC', 210)
    k = 0
    for n in range(UE, 120):
        free = 4 * GR2 * ((n - NB2) // GR2 + 1) if n >= NB2 else 0
        p = max(free, 4 * (n - NB2 + GR2) + 1, 2 * k)
        if n >= 60:
            p = max(p, min(UC + 1 + 2 * (n - 60), 4 * n - 2 if UC < 236 else max(239, 4 * (n - UE))))
        if n == 60:
            S.add('u', [P.poll_check('fu1', vP0, 30), stamp('fu1_ok')], p, p)
            pZ0 = p
        S.add('u', [u_load(n)], p, p)
        k += 1
    lastu = p
    S.add('st', [stamp('g2first')], 0, 0)
    S.add('st', [stamp('g2mid')], 240, 240)
    pF = cfg.get('pF', 40)
    S.add('z', [('wait', 'zst2' if NC == 3 else 'zst1'), stamp('barF'), P.flag(sFJ)], pF, pF + 1)
    zB = (0, 1) if NC == 2 else (0, 1, 4)
    zA = (2, 3, 4) if NC == 2 and not Z2 else (2, 3)
    UP = UC - cfg.get('pUP', 44)
    S.add('z', [P.poll_issue(vP0, 30), P.poll_issue(vP1, nz0, 2, PDZ)], UP, UP + 1)
    S.add('z', [P.poll_check('fz0', vP1, nz0, 2, PDZ), stamp('fz0_ok')] + z_ld(zB) + [f"v_add_u32 v{vP1}, {128*FSZ}, v{vP1}"], pZ0 + 3, pZ0 + 14, pace=2)
    ZP1, ZC1 = cfg.get('zp1', [325, 372])
    S.add('z', [P.poll_issue(vP1, nz1, 2, PDZ)], ZP1, ZP1)
    S.add('z', [P.poll_check('fz1', vP1, nz1, 2, PDZ), stamp('fz1_ok')] + z_ld(zA), ZC1, ZC1 + 8, pace=2)
    if Z2:
        ZP2, ZC2 = cfg.get('zp2', [390, 434])
        S.add('z2', [P.poll_issue(vP2, 8)], ZP2, ZP2)
        S.add('z2', [P.poll_check('fz2', vP2, 8), stamp('fz2_ok'),
                    f"buffer_load_dwordx4 {vr(ZL+8,4)}, v{vZG}, {srd(S_WS)}, s{zso[4]} offen sc1"], ZC2, ZC2 + 1)
    S.add('fin', [f"v_lshlrev_b32 v{vB2}, 16, v{vB2}", f"v_sub_f32 v{vOG}, 1.0, v{vGG}", f"v_mul_f32 v{vB2}, v{vB2}, v{vOG}"] + gq(0) + gq(1) + gq(2), 44, 200)
    OS = cfg.get('osat', 450)
    bars = cfg.get('bars', [3, 5, 7, 8])
    zlate = cfg.get('zlate', 0)
    flat = lambda l: [x for y in l for x in y]
    done = 0
    tailz = []
    for m in range(9):
        p = 48 * (m + 1)
        if m == 5:
            S.add('red', z_wr(zB), p - 14, p - 1, pace=4)
        if m == 8 and not zlate:
            S.add('red', z_wr(zA), p - 14, p - 1, pace=4)
        S.add('red', wr(m), p, p + 8, pace=3)
        if m in bars:
            S.add('red', [('wait', f'r2w{m}'), "s_barrier"], p + 11, p + 12)
            ms = list(range(done, m + 1))
            done = m + 1
            dl = None if m == 8 else 48 * (bars[bars.index(m) + 1] + 1) + 10
            it = []
            if m == 5:
                it += z_rd(0) + z_rd(1)
            if m == 8 and not zlate:
                it += z_rd(2) + z_rd(3) + ([] if Z2 else z_rd(4))
            it += flat(rd(t, t % 3) for t in ms[:3])
            if m == 8 and not zlate:
                it += ([] if Z2 else fin(4, 0) + fin(4, 1)) + fin(2, 0)
            if m == 5 and ms[0] > 1:
                it += fin(0, 0) + fin(0, 1)
            for i, t in enumerate(ms):
                it += ad(t, t % 3) + (rd(ms[i + 3], t % 3) if i + 3 < len(ms) else []) + sc(t)
            if m == 5:
                it += (fin(0, 0) + fin(0, 1) if ms[0] <= 1 else []) + fin(1, 0) + fin(1, 1) + gq(3) + gq(4)
                dl = min(dl, OS - 1)
                S.add('os', ost(0) + ost(1), OS, OS + 4, pace=3)
            if m == 8:
                last = fin(2, 1) + ost(2) + fin(3, 0) + fin(3, 1) + ost(3)
                if zlate:
                    tailz = fin(2, 0) + last + fin(4, 0) + fin(4, 1)
                else:
                    it += last
            S.add('fin', it, p + 13, dl)
    if zlate:
        S.add('red', z_wr(zA), pown - 8, pown, pace=3)
    S.add('red', wr(9), pown + 1, pown + 6, pace=2)
    ZIN = cfg.get('zin', 1)
    zw2 = (f"ds_write_b128 v{vZLW}, {vr(ZL+8,4)} offset:{4*32*PZ}", 'zw2')
    if Z2 and ZIN:
        S.add('red', [zw2], pown + 8, pown + 8)
    d2 = cfg.get('d2', '')
    post = []
    if 'z' in d2:
        a.run([x[0] for x in S.th['z'][:3]])
        post += [x[0] for x in S.th['z'][3:] + S.th.get('z2', [])]; S.th['z'] = []; S.th['z2'] = []
        S.th['u'] = [x for x in S.th['u'] if not callable(x[0])]
    for nm in ('red', 'fin', 'os'):
        if nm[0] in d2:
            post += [x[0] for x in S.th[nm]]; S.th[nm] = []
    its = S.items(keep=('fin',))
    if 'u' in d2:
        its = [x for x in its if not txt_of(x).startswith('buffer_load_dwordx4 a[')]
    if 'b' in d2:
        its = [x for x in its if txt_of(x) != 's_barrier']
    if 'w' in d2:
        its = [x for x in its if not (txt_of(x).startswith('ds_write_b128') and x[1:] != ('r2w9',)) and not (txt_of(x) == 'wait' and x[1].startswith('r2w'))]
    a.run(its)
    a.run([stamp('g2x')] + ([] if cfg.get('nopost') else post))
    P.info['g2'] = (S.over, S.under, len(S.left.get('fin', [])))
    a.run([stamp('g2mfma')])
    left = S.left.get('fin', [])
    if Z2:
        assert not zlate
        tailz = fin(4, 0) + fin(4, 1)
        if not ZIN:
            a.run(left)
            left = []
            a(zw2[0], tok='zw2')
        a.wait('zw2')
    if 'r2w9' in a.toks:
        a.wait('r2w9')
    a("s_barrier")
    if Z2:
        a.run(z_rd(4))
    for k in range(3):
        a(f"ds_read_b128 {vr(RD4+4*k,4)}, v{vR2S} offset:{4*12288 + k*1024}")
    if zlate:
        a.run(z_rd(2) + z_rd(3) + z_rd(4))
    a.run(left + tailz)
    for k in range(3):
        for hh in range(2):
            a(f"v_pk_add_f32 {vr(OWN+36+2*hh,2)}, {vr(OWN+36+2*hh,2)}, {vr(RD4+4*k+2*hh,2)}")
    g = GQ + 8 + 4
    for hh in range(2):
        a(f"v_pk_fma_f32 {vr(g+2*hh,2)}, {vr(OWN+36+2*hh,2)}, {vr(vOG,2)}, {vr(g+2*hh,2)} op_sel_hi:[1,0,1]")
    for hh in range(2):
        a(f"v_cvt_pk_bf16_f32 v{QR+18+hh}, v{g+2*hh}, v{g+2*hh+1}")
    a.run(ost(4))
    P.finish()
    a("s_endpgm")
    return P


def gen(cfg):
    h = Asm()
    h("s_load_dwordx16 s[36:51], s[0:1], 0")
    h("s_load_dwordx16 s[52:67], s[0:1], 56")
    if cfg.get('stamps') or cfg.get('amp'):
        h("s_memrealtime s[96:97]")
    h("s_cmp_ge_u32 s2, 256")
    h("s_cbranch_scc1 L_end")
    h("v_lshrrev_b32 v1, 6, v0")
    h("v_and_b32 v0, 63, v0")
    h(f"v_readfirstlane_b32 s{sW}, v1")
    rb = cfg.get('rolebit', 0)
    h(f"s_lshr_b32 s{sID}, s2, 3")
    if rb == 0:
        h(f"s_bfe_u32 s{sXQ}, s2, 0x20001")
    elif rb == 2:
        h(f"s_and_b32 s{sXQ}, s2, 3")
    else:
        h(f"s_bfe_u32 s{sXQ}, s2, 0x10002")
        h(f"s_and_b32 s{sT0}, s2, 1")
        h(f"s_lshl1_add_u32 s{sXQ}, s{sXQ}, s{sT0}")
    h(f"s_lshl_b32 s{sJ}, s{sXQ}, 5")
    h(f"s_add_u32 s{sJ}, s{sJ}, s{sID}")
    lay = cfg.get('lay', 'C')
    if lay == 'C':
        if cfg.get('cpf', 1):
            h(f"s_bitcmp0_b32 s2, {rb}")
            h(f"s_cselect_b32 s{sT1}, L_Amain-L_pcC, 0")
            h.run([x.replace("@-L_pcC", f"s{sT1}") for x in Prog('C', cfg).code_prefetch("@", "L_end")])
    elif lay == 'A':
        h(f"s_bitcmp1_b32 s2, {rb}")
        h("s_cbranch_scc1 L_B")
    else:
        h(f"s_bitcmp0_b32 s2, {rb}")
        h("s_cbranch_scc1 L_A")
    A, B = prog_A(cfg), prog_B(cfg)
    ref = open(f"cdna_kernels/{NAME}.s.ref").read().split('\n')
    head = [l for l in ref if l.startswith(';') and '@launch' not in l and 'Override' not in l and 'grid=ceil' not in l]
    txt = '\n'.join(head) + f"\n; @launch grid=(256,1,1) block=(256,1,1) lds={L_END}\n"
    txt += f""".amdgcn_target "amdgcn-amd-amdhsa--gfx950"
.text
.globl {NAME}_kernel
.p2align 8
.type {NAME}_kernel,@function
{NAME}_kernel:
"""
    if lay == 'C':
        J = lambda l: '\n'.join(l) + '\n'
        txt += (h.text() + J(A.a.out[:A.split0]) + J(B.a.out[:B.split0]) + f"    s_waitcnt lgkmcnt(0)\n    s_bitcmp1_b32 s2, {rb}\n    s_cbranch_scc1 L_Bgo\n" +
                J(A.a.out[A.split0:A.split]) + "L_Bgo:\n" + J(B.a.out[B.split0:]) + ".p2align 7\n" + J(A.a.out[A.split:]) + "L_end:\n    s_endpgm\n")
    elif lay == 'A':
        txt += h.text() + '\n'.join(A.a.out[:A.split]) + '\n' + B.a.text() + ".p2align 7\n" + '\n'.join(A.a.out[A.split:]) + "\nL_end:\n    s_endpgm\n"
    else:
        txt += h.text() + B.a.text() + ".p2align 7\nL_A:\n" + '\n'.join(A.a.out[:A.split-1] + A.a.out[A.split:]) + "\nL_end:\n    s_endpgm\n"
    txt += f""".section .rodata,"a"
.p2align 6
.amdhsa_kernel {NAME}_kernel
  .amdhsa_next_free_vgpr 512
  .amdhsa_next_free_sgpr 102
  .amdhsa_accum_offset 256
  .amdhsa_group_segment_fixed_size 0
  .amdhsa_kernarg_size 120
  .amdhsa_user_sgpr_count 2
  .amdhsa_user_sgpr_kernarg_segment_ptr 1
  .amdhsa_system_sgpr_workgroup_id_x 1
  .amdhsa_float_denorm_mode_32 3
.end_amdhsa_kernel
"""
    return txt, dict(n_ins=(A.a.n_ins, B.a.n_ins), n_nop=(A.a.n_nop, B.a.n_nop), stamps=B.names, stampsA=A.names,
                     rolebit=rb, sched=(A.info, B.info))


if __name__ == "__main__":
    import json
    out = sys.argv[1]
    cfg = json.loads(sys.argv[2]) if len(sys.argv) > 2 else {}
    txt, info = gen(cfg)
    open(out, 'w').write(txt)
    print(out, info)


def dmap(T, i):
    dt, m = divmod(T, 5)
    r, g = dt >> 2, dt & 3
    P, hh = (2 * r + (m >> 1), m & 1) if m < 4 else (4, r)
    return 160 * g + 32 * P + 8 * (i >> 2) + 4 * hh + (i & 3)
```
